```python
import torch

def _softmax(x, axis=-1):
    return torch.softmax(x, dim=axis)
def _gelu(x):
    return torch.nn.functional.gelu(x, approximate="tanh")
def _silu(x):
    return torch.nn.functional.silu(x)
def _sigmoid(x):
    return torch.sigmoid(x)
def _layernorm(x, axis=-1, eps=1e-5):
    m = x.mean(dim=axis, keepdim=True)
    v = x.var(dim=axis, keepdim=True, unbiased=False)
    return (x - m) / torch.sqrt(v + eps)
def _scatter_add(tgt, idx, src, axis=0):
    return tgt.clone().index_add_(axis, idx, src)
def _segment_sum(src, seg, n):
    out = torch.zeros((n,) + src.shape[1:], dtype=src.dtype)
    return out.index_add_(0, seg, src)
def _pad(x, pw):
    flat = tuple(v for pair in reversed(pw) for v in pair)
    return torch.nn.functional.pad(x, flat)

kernel_name = 'concat_heads__mha_block_cached__gqa_block_cached__near_ridge'

def setup_inputs():

    _w = (lambda a: (lambda t: t.to(torch.bfloat16) if t.is_floating_point() else t)(torch.as_tensor(a)))
    def _A_setup():
        B, Sq, D = 16, 112, 640
        H, Sk, Dh = 32, 512, 192
        return {
            "x": _w((lambda *s: torch.randn(*s, dtype=torch.bfloat16) * 0.8)(B, Sq, D)),
            "k_cache": _w((lambda *s: torch.randn(*s, dtype=torch.bfloat16) * 0.8)(B, H, Sk, Dh)),
            "v_cache": _w((lambda *s: torch.randn(*s, dtype=torch.bfloat16) * 0.05)(B, H, Sk, Dh)),
            "wq": _w((lambda *s: torch.randn(*s, dtype=torch.bfloat16) * 0.8)(D, H * Dh) * (D ** -0.5)),
            "wo": _w((lambda *s: torch.randn(*s, dtype=torch.bfloat16) * 0.05)(H * Dh, D) * ((H * Dh) ** -0.5)),
        }
    _A_in = _A_setup()

    def _B_setup():
        B, Sq, D = 16, 112, 640
        Hq, Hkv, Sk, Dh = 32, 32, 512, 192
        assert Hq % Hkv == 0, (Hq, Hkv)
        return {
            "x": _w((lambda *s: torch.randn(*s, dtype=torch.bfloat16) * 0.8)(B, Sq, D)),
            "k_cache": _w((lambda *s: torch.randn(*s, dtype=torch.bfloat16) * 0.8)(B, Hkv, Sk, Dh)),
            "v_cache": _w((lambda *s: torch.randn(*s, dtype=torch.bfloat16) * 0.05)(B, Hkv, Sk, Dh)),
            "wq": _w((lambda *s: torch.randn(*s, dtype=torch.bfloat16) * 0.8)(D, Hq * Dh) * (D ** -0.5)),
            "wo": _w((lambda *s: torch.randn(*s, dtype=torch.bfloat16) * 0.05)(Hq * Dh, D) * ((Hq * Dh) ** -0.5)),
        }
    _B_in = _B_setup()

    return {
        "A_x": _A_in["x"],
        "A_k_cache": _A_in["k_cache"],
        "A_v_cache": _A_in["v_cache"],
        "A_wq": _A_in["wq"],
        "A_wo": _A_in["wo"],
        "B_x": _B_in["x"],
        "B_k_cache": _B_in["k_cache"],
        "B_v_cache": _B_in["v_cache"],
        "B_wq": _B_in["wq"],
        "B_wo": _B_in["wo"],
    }

def reference(A_x, A_k_cache, A_v_cache, A_wq, A_wo, B_x, B_k_cache, B_v_cache, B_wq, B_wo):
    def _A_ref(x, k_cache, v_cache, wq, wo):
        B, Sq, D = x.shape
        H, Dh = 32, 192
        q = (lambda x, *d: x.permute(*d))((x @ wq).reshape(B, Sq, H, Dh), 0, 2, 1, 3)
        scores = torch.einsum("bhqd,bhkd->bhqk", q, k_cache) * (Dh ** -0.5)
        p = _softmax(scores, axis=-1)
        o = torch.einsum("bhqk,bhkd->bhqd", p, v_cache)
        return (lambda x, *d: x.permute(*d))(o, 0, 2, 1, 3).reshape(B, Sq, H * Dh) @ wo

    def _B_ref(x, k_cache, v_cache, wq, wo):
        B, Sq, D = x.shape
        Hq, Dh = 32, 192
        Hkv = k_cache.shape[1]
        rep = Hq // Hkv
        q = (lambda x, *d: x.permute(*d))((x @ wq).reshape(B, Sq, Hq, Dh), 0, 2, 1, 3)
        k = (lambda x, n, axis: torch.repeat_interleave(x, n, dim=axis))(k_cache, rep, axis=1)
        v = (lambda x, n, axis: torch.repeat_interleave(x, n, dim=axis))(v_cache, rep, axis=1)
        scores = torch.einsum("bhqd,bhkd->bhqk", q, k) * (Dh ** -0.5)
        p = _softmax(scores, axis=-1)
        o = torch.einsum("bhqk,bhkd->bhqd", p, v)
        return (lambda x, *d: x.permute(*d))(o, 0, 2, 1, 3).reshape(B, Sq, Hq * Dh) @ wo

    a = _A_ref(A_x, A_k_cache, A_v_cache, A_wq, A_wo)
    b = _B_ref(B_x, B_k_cache, B_v_cache, B_wq, B_wo)
    return torch.concatenate([a, b], axis=-1)
```

```python
import re

class Prog:
    def __init__(self):
        self.L = []
    def __call__(self, s):
        for line in s.split("\n"):
            line = line.strip()
            if line:
                self.L.append(line)
    def label(self, n):
        self.L.append(n + ":")
    def text(self):
        out = []
        for l in self.L:
            if l.endswith(":") or l.startswith("."):
                out.append(l)
            else:
                out.append("    " + l)
        return "\n".join(out) + "\n"

def v(a, n=1):
    return f"v{a}" if n == 1 else f"v[{a}:{a+n-1}]"
def a_(a, n=1):
    return f"a{a}" if n == 1 else f"a[{a}:{a+n-1}]"
def s(a, n=1):
    return f"s{a}" if n == 1 else f"s[{a}:{a+n-1}]"

_REG = re.compile(r"^-?(?:abs\()?\|?([vas])(?:(\d+)|\[(\d+):(\d+)\])\)?\|?$")
def regs_of(op):
    op = op.strip()
    if op in ("vcc",): return {("s", 106), ("s", 107)}
    if op == "vcc_lo": return {("s", 106)}
    if op == "vcc_hi": return {("s", 107)}
    if op == "exec": return {("s", 126), ("s", 127)}
    if op == "m0": return {("s", 124)}
    m = _REG.match(op)
    if not m: return set()
    k = m.group(1)
    if m.group(2) is not None:
        return {(k, int(m.group(2)))}
    return {(k, i) for i in range(int(m.group(3)), int(m.group(4)) + 1)}

TRANS = ("v_exp_", "v_log_", "v_rcp_", "v_rsq_", "v_sqrt_", "v_sin_", "v_cos_")
class Ins:
    def __init__(self, text):
        self.text = text
        t = text.split(";")[0].strip()
        parts = t.split(None, 1)
        self.op = parts[0]
        rest = parts[1] if len(parts) > 1 else ""
        ops = [o.strip() for o in rest.split(",")] if rest else []
        self.mods = ""
        if ops:
            last = ops[-1].split(None, 1)
            if len(last) > 1 and not ops[-1].startswith("abs("):
                ops[-1] = last[0]; self.mods = last[1]
        self.ops = ops
        op = self.op
        self.dst = set(); self.src = set(); self.srcA = set(); self.srcB = set(); self.srcC = set()
        self.is_mfma = op.startswith("v_mfma")
        self.is_valu = op.startswith("v_") and not self.is_mfma
        self.is_trans = op.startswith(TRANS)
        self.is_ds = op.startswith("ds_")
        self.is_vmem = op.startswith(("buffer_", "global_", "flat_"))
        self.is_salu = op.startswith("s_")
        self.is_branch = op.startswith(("s_branch", "s_cbranch"))
        self.is_lds_dma = self.is_vmem and (" lds" in " " + self.mods or "load_lds" in op)
        self.is_dpp = "dpp" in op or "row_" in self.mods or "quad_perm" in self.mods
        self.passes = 0
        R = [regs_of(o) for o in ops]
        if self.is_mfma:
            self.dst = R[0]; self.srcA = R[1]; self.srcB = R[2]; self.srcC = R[3]
            self.src = R[1] | R[2] | R[3]
            self.passes = 4 if "16x16x32" in op else 8
        elif op.startswith("v_cmp"):
            self.dst = R[0]; self.src = set().union(*R[1:])
            if op.startswith("v_cmpx"): self.dst |= regs_of("exec")
        elif op.startswith("v_permlane") and "swap" in op:
            self.dst = R[0] | R[1]; self.src = R[0] | R[1]
        elif op.startswith(("v_add_co", "v_sub_co", "v_addc_co", "v_subb_co", "v_subrev_co")):
            self.dst = R[0] | R[1]; self.src = set().union(*R[2:])
        elif op.startswith(("v_fmac", "v_pk_fmac", "v_mac")):
            self.dst = R[0]; self.src = set().union(*R)
        elif op.startswith("v_nop"):
            pass
        elif self.is_valu:
            self.dst = R[0]; self.src = set().union(*R[1:]) if len(R) > 1 else set()
            if op.startswith("v_cndmask") and len(R) == 3: self.src |= regs_of("vcc")
            if self.is_dpp: self.src |= R[0]
        elif self.is_ds:
            if op.startswith(("ds_read", "ds_bpermute", "ds_permute", "ds_swizzle")) or "_rtn" in op:
                self.dst = R[0]; self.src = set().union(*R[1:])
            else:
                self.src = set().union(*R)
        elif self.is_vmem:
            if op.startswith(("buffer_wbl2", "buffer_inv")):
                pass
            elif self.is_lds_dma:
                self.src = set().union(*R) | regs_of("m0")
            elif "load" in op or ("atomic" in op and "sc0" in self.mods and op.startswith("global")):
                self.dst = R[0]; self.src = set().union(*R[1:])
            elif "atomic" in op and "sc0" in self.mods:
                self.dst = R[0]; self.src = set().union(*R)
            else:
                self.src = set().union(*R)
                self.store_data = R[0] if op.startswith("buffer") else R[1]
        elif self.is_salu:
            if op.startswith(("s_cmp", "s_waitcnt", "s_barrier", "s_nop", "s_branch", "s_cbranch", "s_setprio", "s_endpgm", "s_sleep", "s_setpc", "s_bitcmp")):
                self.src = set().union(*R) if R else set()
            else:
                self.dst = R[0] if R else set(); self.src = set().union(*R[1:]) if len(R) > 1 else set()
                if op.startswith("s_bitset"): self.src |= R[0]
                if "saveexec" in op: self.dst |= regs_of("exec"); self.src |= regs_of("exec")
        self.ws = 1
        if op == "s_nop":
            self.ws = int(ops[0], 0) + 1
        self.wide_store = self.is_vmem and "store" in op and ("x3" in op or "x4" in op)

def vonly(S): return {r for r in S if r[0] in "va"}
def sonly(S): return {r for r in S if r[0] == "s"}

def required(p, c):
    need = 0
    if p.is_valu and not p.is_mfma:
        pv = vonly(p.dst); ps = sonly(p.dst)
        if c.is_mfma and pv & c.src: need = max(need, 2)
        if c.op.startswith("v_permlane") and pv & c.src: need = max(need, 2)
        if c.is_dpp and pv & c.src: need = max(need, 2)
        if c.op.startswith(("v_readfirstlane", "v_readlane")) and pv & c.src: need = max(need, 1)
        if p.is_trans and c.is_valu and not c.is_trans and pv & c.src: need = max(need, 1)
        if p.is_trans and (c.is_mfma or c.is_ds or c.is_vmem) and pv & c.src: need = max(need, 2)
        if ps:
            if c.is_valu and ps & c.src: need = max(need, 2)
            if c.is_vmem and ps & c.src: need = max(need, 5)
            if c.op.startswith(("v_readlane", "v_writelane")) and ps & c.src: need = max(need, 4)
            if (c.is_salu) and ps & c.src: need = max(need, 1)
            if c.op.startswith("s_cbranch_vcc") and ps & regs_of("vcc"): need = max(need, 1)
            if ps & regs_of("exec"):
                if c.is_mfma: need = max(need, 4)
                if c.op.startswith(("v_permlane", "v_readlane", "v_readfirstlane")): need = max(need, 4)
                if c.is_dpp: need = max(need, 5)
    if p.is_mfma:
        n = p.passes
        d = p.dst
        if c.is_mfma:
            if d & (c.srcA | c.srcB): need = max(need, {4: 8, 8: 12}[n])
            if d & c.srcC:
                if not (d == c.srcC and c.passes == n): need = max(need, {4: 6, 8: 10}[n])
            if d & c.dst and not (d == c.srcC and c.passes == n):
                need = max(need, {4: 6, 8: 10}[n])
        elif c.is_valu or c.is_ds or c.is_vmem:
            if d & (c.src | c.dst): need = max(need, {4: 8, 8: 12}[n])
        if c.is_valu and (p.srcC & c.dst): need = max(need, {4: 3, 8: 7}[n])
    if p.is_salu and regs_of("m0") & p.dst and (c.is_lds_dma or "addtid" in c.op): need = max(need, 1)
    if p.wide_store and (c.is_valu or c.is_mfma or c.is_ds or c.is_vmem) and p.store_data & c.dst:
        need = max(need, 2)
    return need

def fix_hazards(lines, maxws=20, verbose=False):
    inserted = 0
    while True:
        ins = []; labels = {}
        idx = []
        for li, l in enumerate(lines):
            if l.endswith(":"):
                labels[l[:-1]] = len(ins)
            elif l.startswith(".") or l.startswith(";"):
                continue
            else:
                ins.append(Ins(l)); idx.append(li)
        preds = [[] for _ in ins]
        calls = []
        for i, x in enumerate(ins):
            if i + 1 < len(ins) and x.op not in ("s_branch", "s_endpgm", "s_setpc_b64"):
                preds[i + 1].append(i)
            if x.is_branch:
                t = labels[x.ops[0]]
                if t < len(ins): preds[t].append(i)
            if x.op == "s_call_b64":
                t = labels[x.ops[1]]
                preds[t].append(i); calls.append(i)
        rets = [i for i, x in enumerate(ins) if x.op == "s_setpc_b64"]
        for c in calls:
            for r in rets:
                if c + 1 < len(ins): preds[c + 1].append(r)
        fixes = []
        lastfix = -1000
        for i, c in enumerate(ins):
            if not (c.src or c.dst or c.is_mfma): continue
            if i - lastfix < maxws: continue
            stack = [(p, 0) for p in preds[i]]
            seen = {}
            worst = 0
            while stack:
                p, dist = stack.pop()
                if dist >= maxws: continue
                if p in seen and seen[p] <= dist: continue
                seen[p] = dist
                need = required(ins[p], c)
                if need > dist: worst = max(worst, need - dist)
                for q in preds[p]:
                    stack.append((q, dist + ins[p].ws))
            if worst:
                fixes.append((i, worst)); lastfix = i
        if not fixes: break
        for i, w in reversed(fixes):
            if verbose: print("hazard: inserting s_nop", w - 1, "before:", ins[i].text)
            lines.insert(idx[i], f"s_nop {w-1}")
            inserted += 1
    return inserted
```

```python
import sys, math, struct
sys.path.insert(0, "work")
from asmlib import *

NAME = "concat_heads__mha_block_cached__gqa_block_cached__near_ridge"
OPT = dict(kv="nt", w="", x="", ost="", o2="", wo="", R=6)
for a in sys.argv[2:]:
    k, val = a.split("=")
    OPT[k] = int(val) if val.lstrip("-").isdigit() else val.replace("+", " ").replace("-", "")
R = OPT["R"]
TILE = 12288
def f2u(f): return struct.unpack("<I", struct.pack("<f", f))[0]

def ACC(rt, t): return rt * 48 + t * 4
def Q(rt, j): return 96 + rt * 24 + j * 4
def S(rt, kt): return 144 + rt * 8 + kt * 4
def P(rt): return 160 + rt * 4
FR0 = 168; NFR = 8
def FR(f): return FR0 + (f % NFR) * 4
def XB(buf, rt): return 200 + buf * 8 + rt * 4
KA0, VA0, WA0 = 232, 233, 234
CUR = [235, 236, 237, 238]
XOFF = [239, 240]
OOFF = 241
MC = [242, 243]
LS = [244, 245]
T0, T1, T2, T3 = 246, 247, 248, 249
def XL(i):
    if i < 12: return 48 + i * 4
    if i < 18: return 120 + (i - 12) * 4
    return 200 + (i - 18) * 4
PK = [208 + i for i in range(6)]
PV = [214 + i for i in range(3)]
PW = [217 + i for i in range(6)]
sWd, sKd, sVd, sXd, sOd = 32, 36, 40, 44, 48
sWAVE, sB, sH, sUNIT, sSLOT, sCTR, sIT, sISLOT, sIU, sSO = 52, 53, 54, 55, 56, 57, 58, 59, 60, 61
sT1, sT2 = 62, 63
sMASK = 64
sC, sTHR, sFLOOR, sOB = 66, 67, 68, 69
sRET = 70
sKVOFF, sWOFF = 72, 73

def k1():
    p = Prog()
    p(f"""
.globl attn_kernel
.p2align 8
.type attn_kernel,@function
attn_kernel:
s_cmp_ge_u32 s2, 512
s_cbranch_scc1 k1_end
s_load_dwordx16 s[4:19], s[0:1], 0
s_load_dwordx8 s[20:27], s[0:1], 64
s_load_dwordx2 s[28:29], s[0:1], 96
v_lshrrev_b32 v1, 6, v0
v_and_b32 v2, 63, v0
v_readfirstlane_b32 s{sWAVE}, v1
s_and_b32 s{sH}, s2, 7
s_lshl_b32 s{sH}, s{sH}, 2
s_lshr_b32 s{sT1}, s2, 3
s_and_b32 s{sT1}, s{sT1}, 3
s_add_u32 s{sH}, s{sH}, s{sT1}
s_lshr_b32 s{sB}, s2, 5
v_and_b32 v3, 15, v2
v_lshrrev_b32 v4, 4, v2
v_lshrrev_b32 v5, 2, v2
v_and_b32 v6, 3, v5
v_and_b32 v7, 3, v2
""")
    p(f"""
v_lshrrev_b32 v8, 1, v3
v_xor_b32 v8, v4, v8
v_lshlrev_b32 v8, 4, v8
v_mul_u32_u24 v9, 384, v3
v_add_u32 v{KA0}, v8, v9
v_lshrrev_b32 v8, 1, v5
v_and_b32 v8, 3, v8
v_lshlrev_b32 v8, 5, v8
v_mul_u32_u24 v9, 384, v5
v_add_u32 v8, v8, v9
v_lshl_add_u32 v{VA0}, v7, 3, v8
v_lshl_add_u32 v8, v4, 3, v6
v_mul_u32_u24 v9, 384, v8
v_lshrrev_b32 v8, 1, v6
v_and_b32 v10, 1, v4
v_lshl_add_u32 v8, v10, 2, v8
v_xor_b32 v8, v7, v8
v_lshl_add_u32 v9, v8, 4, v9
v_and_b32 v10, 1, v7
v_lshl_add_u32 v{WA0}, v10, 3, v9
s_lshl_b32 s{sT1}, s{sWAVE}, 5
v_add_u32 v8, s{sT1}, v3
v_mul_u32_u24 v8, 1280, v8
v_lshl_add_u32 v{XOFF[0]}, v4, 4, v8
v_add_u32 v{XOFF[1]}, 20480, v{XOFF[0]}
v_lshlrev_b32 v{OOFF}, 4, v2
s_mov_b32 s{sMASK}, 0xffff0000
s_mov_b32 s{sMASK+1}, 0xffff0000
s_mov_b32 s{sC}, {hex(f2u(192 ** -0.5 * math.log2(math.e)))}
s_lshl_b32 s{sOB}, s{sWAVE}, 11
s_lshl_b32 s{sT1}, s{sB}, 5
s_add_u32 s{sT1}, s{sT1}, s{sH}
s_mul_i32 s{sKVOFF}, s{sT1}, 196608
s_mul_i32 s{sWOFF}, s{sH}, 384
s_mov_b32 s{sUNIT}, 0
s_mov_b32 s{sSLOT}, 0
s_mov_b32 s{sXd+2}, 143360
s_mov_b32 s{sXd+3}, 0x20000
s_mov_b32 s{sOd+2}, 43008
s_mov_b32 s{sOd+3}, 0x20000
s_waitcnt lgkmcnt(0)
s_mul_i32 s{sT2}, s{sB}, 143360
s_add_u32 s{sXd}, s4, s{sT2}
s_addc_u32 s{sXd+1}, s5, 0
s_mul_i32 s{sT2}, s{sT1}, 43008
s_add_u32 s{sOd}, s28, s{sT2}
s_addc_u32 s{sOd+1}, s29, 0
s_cmp_eq_u32 s{sWAVE}, 3
s_cbranch_scc1 k1_light
""")
    def adv_slot():
        p(f"""
s_add_u32 s{sSLOT}, s{sSLOT}, {TILE}
s_cmp_eq_u32 s{sSLOT}, {R*TILE}
s_cselect_b32 s{sSLOT}, 0, s{sSLOT}
""")
    def top(light):
        if light:
            p(f"s_waitcnt vmcnt({12*(R-2)})")
        p("s_barrier")
        if light:
            p(f"s_call_b64 s[{sRET}:{sRET+1}], k1_issue")
    def set_cur(kind):
        base = {"K": KA0, "V": VA0, "W": WA0}[kind]
        p(f"v_add_u32 v{CUR[0]}, s{sSLOT}, v{base}")
        xs = {"K": [64], "V": [32, 64, 96], "W": [8, 64, 72]}[kind]
        for i, x in enumerate(xs):
            p(f"v_xor_b32 v{CUR[i+1]}, {x}, v{CUR[0]}")
    LEAD = 4
    def step(kind, nrt, bsrc, pre_mfma=None):
        per = 1 if kind == "K" else 2
        def rd(f):
            if kind == "K":
                kt, j = divmod(f, 6)
                p(f"ds_read_b128 {v(FR(f),4)}, v{CUR[j&1]} offset:{kt*6144+(j>>1)*128}")
            else:
                hfo = 6144 if kind == "V" else 1536
                for hf in range(2):
                    p(f"ds_read_b64_tr_b16 {v(FR(f)+2*hf,2)}, v{CUR[f&3]} offset:{(f>>2)*128+hf*hfo}")
        for f in range(LEAD): rd(f)
        if pre_mfma: pre_mfma()
        for f in range(12):
            if f + LEAD < 12: rd(f + LEAD)
            p(f"s_waitcnt lgkmcnt({per*min(LEAD, 11-f)})")
            for rt in range(nrt):
                if kind == "K":
                    kt, j = divmod(f, 6)
                    c = "0" if j == 0 else v(S(rt, kt), 4)
                    p(f"v_mfma_f32_16x16x32_bf16 {v(S(rt,kt),4)}, {v(FR(f),4)}, {v(Q(rt,j),4)}, {c}")
                else:
                    p(f"v_mfma_f32_16x16x32_bf16 {v(ACC(rt,f),4)}, {v(FR(f),4)}, {v(bsrc(rt),4)}, {v(ACC(rt,f),4)}")
    def zero_acc(nrt):
        for rt in range(nrt):
            for i in range(48): p(f"v_mov_b32 v{ACC(rt,0)+i}, 0")
    def xload(dst, rt, i):
        p(f"buffer_load_dwordx4 {v(dst,4)}, v{XOFF[rt]}, s[{sXd}:{sXd+3}], 0 offen offset:{i*64} {OPT['x']}")
    def next_x_srd():
        p(f"""
s_mul_i32 s{sT2}, s{sB}, 143360
s_add_u32 s{sXd}, s14, s{sT2}
s_addc_u32 s{sXd+1}, s15, 0
s_cmp_eq_u32 s{sUNIT}, 0
s_cselect_b32 s{sXd+2}, 143360, 0
""")
    def body(nrt, light, tag):
        p.label(f"k1_unit_{tag}")
        for i in range(20):
            top(light)
            set_cur("W")
            if not light:
                def pre(i=i):
                    if i + 3 < 20:
                        for rt in range(2): xload(XB((i + 3) % 4, rt), rt, i + 3)
                    if i >= 3:
                        p(f"s_waitcnt vmcnt({2*min(3, 19-i)})")
                step("W", nrt, lambda rt, i=i: XB(i % 4, rt), pre)
            else:
                step("W", nrt, lambda rt, i=i: XL(i))
            adv_slot()
        next_x_srd()
        if light:
            for i in range(20): xload(XL(i), 0, i)
        else:
            for i in range(3):
                for rt in range(2): xload(XB(i, rt), rt, i)
        for rt in range(nrt):
            for j in range(6):
                a, b = ACC(rt, 2 * j), ACC(rt, 2 * j + 1)
                p(f"""
v_cvt_pk_bf16_f32 v{T0}, v{a}, v{a+1}
v_cvt_pk_bf16_f32 v{T1}, v{a+2}, v{a+3}
v_cvt_pk_bf16_f32 v{T2}, v{b}, v{b+1}
v_cvt_pk_bf16_f32 v{T3}, v{b+2}, v{b+3}
v_cndmask_b32 v{Q(rt,j)}, v{T0}, v{T2}, s[{sMASK}:{sMASK+1}]
v_cndmask_b32 v{Q(rt,j)+1}, v{T1}, v{T3}, s[{sMASK}:{sMASK+1}]
v_cndmask_b32 v{Q(rt,j)+2}, v{T2}, v{T0}, s[{sMASK}:{sMASK+1}]
v_cndmask_b32 v{Q(rt,j)+3}, v{T3}, v{T1}, s[{sMASK}:{sMASK+1}]
""")
        zero_acc(nrt)
        for rt in range(nrt):
            p(f"v_mov_b32 v{MC[rt]}, 0")
            p(f"v_mov_b32 v{LS[rt]}, 0")
        p(f"s_mov_b32 s{sTHR}, 0xff800000")
        p(f"s_mov_b32 s{sFLOOR}, 0xff800000")
        p(f"s_mov_b32 s{sCTR}, 0")
        p.label(f"k1_att_{tag}")
        top(light)
        set_cur("K")
        step("K", nrt, None)
        adv_slot()
        TM = [FR0, FR0 + 1]
        for rt in range(nrt):
            for i in range(8):
                r = S(rt, 0) + i
                p(f"v_fma_f32 v{r}, v{r}, s{sC}, -v{MC[rt]}")
            r = S(rt, 0)
            p(f"v_max3_f32 v{TM[rt]}, v{r}, v{r+1}, v{r+2}")
            p(f"v_max3_f32 v{TM[rt]}, v{TM[rt]}, v{r+3}, v{r+4}")
            p(f"v_max3_f32 v{TM[rt]}, v{TM[rt]}, v{r+5}, v{r+6}")
            p(f"v_max_f32 v{TM[rt]}, v{TM[rt]}, v{r+7}")
        if nrt == 2:
            p(f"v_max_f32 v{T0}, v{TM[0]}, v{TM[1]}")
            p(f"v_cmp_nge_f32 vcc, s{sTHR}, v{T0}")
        else:
            p(f"v_cmp_nge_f32 vcc, s{sTHR}, v{TM[0]}")
        p(f"s_cbranch_vccnz k1_rare_{tag}")
        p.label(f"k1_back_{tag}")
        for rt in range(nrt):
            r = S(rt, 0)
            for i in range(8): p(f"v_exp_f32 v{r+i}, v{r+i}")
            for i in range(4): p(f"v_cvt_pk_bf16_f32 v{P(rt)+i}, v{r+2*i}, v{r+2*i+1}")
            p(f"v_add_f32 v{T0}, v{r}, v{r+1}")
            p(f"v_add_f32 v{T1}, v{r+2}, v{r+3}")
            p(f"v_add_f32 v{T2}, v{r+4}, v{r+5}")
            p(f"v_add_f32 v{T3}, v{r+6}, v{r+7}")
            p(f"v_add_f32 v{T0}, v{T0}, v{T1}")
            p(f"v_add_f32 v{T2}, v{T2}, v{T3}")
            p(f"v_add_f32 v{LS[rt]}, v{LS[rt]}, v{T0}")
            p(f"v_add_f32 v{LS[rt]}, v{LS[rt]}, v{T2}")
        top(light)
        set_cur("V")
        step("V", nrt, lambda rt: P(rt))
        adv_slot()
        p(f"""
s_add_u32 s{sCTR}, s{sCTR}, 1
s_cmp_lt_u32 s{sCTR}, 16
s_cbranch_scc1 k1_att_{tag}
""")
        if not light:
            p("s_waitcnt vmcnt(0)")
        for rt in range(nrt):
            l = LS[rt]
            p(f"""
v_mov_b32 v{T0}, v{l}
v_permlane32_swap_b32 v{T0}, v{l}
v_add_f32 v{l}, v{l}, v{T0}
v_mov_b32 v{T0}, v{l}
v_permlane16_swap_b32 v{T0}, v{l}
v_add_f32 v{l}, v{l}, v{T0}
v_rcp_f32 v{l}, v{l}
""")
        for j in range(6):
            p(f"s_add_u32 s{sSO}, s{sOB}, {j*7168}")
            for rt in range(nrt):
                a = ACC(rt, 2 * j)
                for i in range(8): p(f"v_mul_f32 v{a+i}, v{a+i}, v{LS[rt]}")
                d = FR(j * 2 + rt)
                for i in range(4): p(f"v_cvt_pk_bf16_f32 v{d+i}, v{a+2*i}, v{a+2*i+1}")
                p(f"buffer_store_dwordx4 {v(d,4)}, v{OOFF}, s[{sOd}:{sOd+3}], s{sSO} offen offset:{rt*1024} {OPT['ost']}")
        zero_acc(nrt)
        p(f"""
s_add_u32 s{sOd}, s{sOd}, {512*43008}
s_addc_u32 s{sOd+1}, s{sOd+1}, 0
s_add_u32 s{sUNIT}, s{sUNIT}, 1
s_cmp_lt_u32 s{sUNIT}, 2
s_cbranch_scc1 k1_unit_{tag}
s_waitcnt vmcnt(0)
s_endpgm
""")
        p.label(f"k1_rare_{tag}")
        for rt in range(nrt):
            t = TM[rt]
            p(f"""
v_mov_b32 v{T0}, v{t}
v_permlane32_swap_b32 v{T0}, v{t}
v_max_f32 v{t}, v{t}, v{T0}
v_mov_b32 v{T0}, v{t}
v_permlane16_swap_b32 v{T0}, v{t}
v_max3_f32 v{t}, v{t}, v{T0}, s{sFLOOR}
v_add_f32 v{MC[rt]}, v{MC[rt]}, v{t}
""")
            for i in range(8):
                r = S(rt, 0) + i
                p(f"v_sub_f32 v{r}, v{r}, v{t}")
        p(f"""
s_cmp_lg_u32 s{sFLOOR}, 0
s_mov_b32 s{sTHR}, {hex(f2u(8.0))}
s_mov_b32 s{sFLOOR}, 0
s_cbranch_scc1 k1_back_{tag}
""")
        for rt in range(nrt):
            t = TM[rt]
            p(f"v_exp_f32 v{t}, -v{t}")
            p(f"v_mul_f32 v{LS[rt]}, v{LS[rt]}, v{t}")
            for i in range(48): p(f"v_mul_f32 v{ACC(rt,0)+i}, v{ACC(rt,0)+i}, v{t}")
        p(f"s_branch k1_back_{tag}")

    for i in range(3):
        for rt in range(2): xload(XB(i, rt), rt, i)
    zero_acc(2)
    p("s_waitcnt vmcnt(0)")
    body(2, False, "h")
    p.label("k1_light")
    for i in range(20): xload(XL(i), 0, i)
    p("v_lshrrev_b32 v8, 3, v2")
    p("v_and_b32 v9, 7, v2")
    for q in range(6):
        p(f"""
v_add_u32 v10, {8*q}, v8
v_mul_u32_u24 v11, 43, v10
v_lshrrev_b32 v11, 7, v11
v_mul_u32_u24 v12, 3, v11
v_sub_u32 v12, v10, v12
v_lshrrev_b32 v13, 1, v11
v_and_b32 v14, 7, v13
v_xor_b32 v14, v9, v14
v_lshlrev_b32 v14, 4, v14
v_lshl_add_u32 v{PK[q]}, v8, 7, v14
""")
        if q < 3:
            p(f"""
v_and_b32 v14, 3, v13
v_lshlrev_b32 v14, 1, v14
v_xor_b32 v14, v9, v14
v_lshlrev_b32 v14, 4, v14
v_lshl_add_u32 v{PV[q]}, v8, 7, v14
""")
        p(f"""
v_and_b32 v14, 1, v13
v_xor_b32 v14, v9, v14
v_xor_b32 v14, {4*(q//3)}, v14
v_lshlrev_b32 v14, 4, v14
v_lshl_add_u32 v14, v12, 7, v14
v_and_b32 v15, 7, v11
v_mul_u32_u24 v15, 12288, v15
v_add_u32 v14, v14, v15
v_subrev_u32 v{PW[q]}, {(q%3)*1024}, v14
""")
    p(f"""
s_add_u32 s{sWd}, s10, s{sWOFF}
s_addc_u32 s{sWd+1}, s11, 0
s_sub_u32 s{sWd+2}, {640*12288}, s{sWOFF}
s_mov_b32 s{sWd+3}, 0x20000
s_add_u32 s{sKd}, s6, s{sKVOFF}
s_addc_u32 s{sKd+1}, s7, 0
s_mov_b32 s{sKd+2}, 196608
s_mov_b32 s{sKd+3}, 0x20000
s_add_u32 s{sVd}, s8, s{sKVOFF}
s_addc_u32 s{sVd+1}, s9, 0
s_mov_b32 s{sVd+2}, 196608
s_mov_b32 s{sVd+3}, 0x20000
s_mov_b32 s{sIT}, 0
s_mov_b32 s{sISLOT}, 0
s_mov_b32 s{sIU}, 0
""")
    for i in range(R - 1):
        p(f"s_call_b64 s[{sRET}:{sRET+1}], k1_issue")
    zero_acc(1)
    body(1, True, "l")
    p.label("k1_issue")
    def loads(pat, srd, rs, flags):
        for gi in range(4):
            for ii in range(3):
                r = pat[(ii + 3 * (gi & 1)) % len(pat)]
                off = f"offset:{ii*1024} " if ii else ""
                p(f"buffer_load_dwordx4 v{r}, s[{srd}:{srd+3}], s{sSO} offen {off}{flags} lds")
            if gi < 3:
                p(f"s_add_u32 m0, m0, 3072")
                p(f"s_add_u32 s{sSO}, s{sSO}, {8*rs}")
    p(f"""
s_mov_b32 m0, s{sISLOT}
s_cmp_lt_u32 s{sIT}, 20
s_cbranch_scc0 k1_is_kv
s_mul_i32 s{sSO}, s{sIT}, {32*12288}
""")
    loads(PW, sWd, 12288, OPT["w"])
    p(f"""
s_branch k1_is_done
k1_is_kv:
s_sub_u32 s{sT1}, s{sIT}, 20
s_lshr_b32 s{sSO}, s{sT1}, 1
s_mul_i32 s{sSO}, s{sSO}, {TILE}
s_bitcmp1_b32 s{sT1}, 0
s_cbranch_scc1 k1_is_v
""")
    loads(PK, sKd, 384, OPT["kv"])
    p("s_branch k1_is_done")
    p.label("k1_is_v")
    loads(PV, sVd, 384, OPT["kv"])
    p(f"""
k1_is_done:
s_add_u32 s{sISLOT}, s{sISLOT}, {TILE}
s_cmp_eq_u32 s{sISLOT}, {R*TILE}
s_cselect_b32 s{sISLOT}, 0, s{sISLOT}
s_add_u32 s{sIT}, s{sIT}, 1
s_cmp_lt_u32 s{sIT}, 52
s_cbranch_scc1 k1_is_ret
s_mov_b32 s{sIT}, 0
s_add_u32 s{sWd}, s20, s{sWOFF}
s_addc_u32 s{sWd+1}, s21, 0
s_add_u32 s{sKd}, s16, s{sKVOFF}
s_addc_u32 s{sKd+1}, s17, 0
s_add_u32 s{sVd}, s18, s{sKVOFF}
s_addc_u32 s{sVd+1}, s19, 0
s_cmp_eq_u32 s{sIU}, 0
s_cselect_b32 s{sWd+2}, s{sWd+2}, 0
s_add_u32 s{sIU}, s{sIU}, 1
k1_is_ret:
s_setpc_b64 s[{sRET}:{sRET+1}]
k1_end:
s_endpgm
""")
    return p

def k2():
    p = Prog()
    def AC(nt, rt): return (nt * 7 + rt) * 4
    def OB(buf, rt): return 140 + buf * 28 + rt * 4
    def AF(nt): return 224 + nt * 4
    PAT = [244 + i for i in range(5)]
    vO, vRD = 249, 250
    sO, sW, sOUT = 32, 36, 40
    sWV, sG, sS, sKS, sLB, sCT, sOS, sWS, sT = 52, 53, 54, 55, 56, 57, 58, 59, 60
    SLOT = 5120
    p(f"""
.globl oproj_kernel
.p2align 8
.type oproj_kernel,@function
oproj_kernel:
s_cmp_ge_u32 s2, 256
s_cbranch_scc1 k2_end
s_load_dwordx2 s[4:5], s[0:1], 32
s_load_dwordx2 s[6:7], s[0:1], 72
s_load_dwordx2 s[8:9], s[0:1], 80
s_load_dwordx2 s[10:11], s[0:1], 96
v_lshrrev_b32 v1, 6, v0
v_and_b32 v2, 63, v0
v_readfirstlane_b32 s{sWV}, v1
s_and_b32 s{sG}, s2, 7
s_lshl_b32 s{sG}, s{sG}, 2
s_lshr_b32 s{sT}, s2, 6
s_add_u32 s{sG}, s{sG}, s{sT}
s_lshr_b32 s{sS}, s2, 3
s_and_b32 s{sS}, s{sS}, 7
v_lshlrev_b32 v{vO}, 4, v2
""")
    for i in range(5):
        p(f"""
v_add_u32 v3, {64*i}, v2
v_mul_u32_u24 v4, 205, v3
v_lshrrev_b32 v4, 11, v4
v_mul_u32_u24 v5, 10, v4
v_sub_u32 v5, v3, v5
v_mul_u32_u24 v4, 1280, v4
v_lshl_add_u32 v4, v5, 4, v4
v_subrev_u32 v{PAT[i]}, {(i%4)*1024}, v4
""")
    p(f"""
s_mul_i32 s{sLB}, s{sWV}, {3*SLOT}
v_lshrrev_b32 v3, 2, v2
v_mul_u32_u24 v3, 160, v3
v_and_b32 v4, 3, v2
v_lshl_add_u32 v3, v4, 3, v3
v_add_u32 v{vRD}, s{sLB}, v3
s_waitcnt lgkmcnt(0)
s_mul_i32 s{sT}, s{sG}, {32*43008}
s_add_u32 s{sO}, s10, s{sT}
s_addc_u32 s{sO+1}, s11, 0
s_mov_b32 s{sO+2}, {32*43008}
s_mov_b32 s{sO+3}, 0x20000
s_cmp_lt_u32 s{sG}, 16
s_cselect_b32 s4, s4, s6
s_cselect_b32 s5, s5, s7
s_mul_i32 s{sT}, s{sS}, 160
s_add_u32 s{sW}, s4, s{sT}
s_addc_u32 s{sW+1}, s5, 0
s_sub_u32 s{sW+2}, {6144*1280}, s{sT}
s_mov_b32 s{sW+3}, 0x20000
s_mul_i32 s{sOS}, s{sWV}, {24*7168}
s_mul_i32 s{sWS}, s{sWV}, {24*40960}
""")
    def issue(buf):
        p(f"s_add_u32 m0, s{sLB}, {buf*SLOT}")
        p(f"s_add_u32 s{sT}, s{sOS}, 4096")
        for i in range(4):
            off = f"offset:{i*1024} " if i else ""
            p(f"buffer_load_dwordx4 v{PAT[i]}, s[{sW}:{sW+3}], s{sWS} offen {off}{OPT['wo']} lds")
        p(f"s_add_u32 m0, m0, 4096")
        for rt in range(7):
            so = sOS if rt < 4 else sT
            p(f"buffer_load_dwordx4 {v(OB(buf,rt),4)}, v{vO}, s[{sO}:{sO+3}], s{so} offen offset:{(rt%4)*1024} {OPT['o2']}")
            if rt == 0:
                p(f"buffer_load_dwordx4 v{PAT[4]}, s[{sW}:{sW+3}], s{sWS} offen {OPT['wo']} lds")
        p(f"s_add_u32 s{sOS}, s{sOS}, 7168")
        p(f"s_add_u32 s{sWS}, s{sWS}, 40960")
    issue(0); issue(1)
    for i in range(140): p(f"v_mov_b32 v{i}, 0")
    p(f"s_mov_b32 s{sCT}, 0")
    p.label("k2_loop")
    for u in range(3):
        issue((u + 2) % 3)
        p("s_waitcnt vmcnt(24)")
        for nt in range(5):
            for hf in range(2):
                p(f"ds_read_b64_tr_b16 {v(AF(nt)+2*hf,2)}, v{vRD} offset:{u*SLOT+nt*32+hf*2560}")
        for nt in range(5):
            p(f"s_waitcnt lgkmcnt({2*(4-nt)})")
            for rt in range(7):
                p(f"v_mfma_f32_16x16x32_bf16 {v(AC(nt,rt),4)}, {v(AF(nt),4)}, {v(OB(u,rt),4)}, {v(AC(nt,rt),4)}")
    p(f"""
s_add_u32 s{sCT}, s{sCT}, 1
s_cmp_lt_u32 s{sCT}, 8
s_cbranch_scc1 k2_loop
s_waitcnt vmcnt(0)
s_barrier
""")
    vA = 244
    for st in (4, 2, 1):
        p(f"""
s_and_b32 s{sT}, s{sWV}, {st-1}
s_mul_i32 s{sT}, s{sT}, 35840
v_add_u32 v{vA}, s{sT}, v{vO}
s_cmp_lt_u32 s{sWV}, {st}
s_cbranch_scc1 k2_rd{st}
s_cmp_ge_u32 s{sWV}, {2*st}
s_cbranch_scc1 k2_skip{st}
""")
        for t in range(35):
            p(f"ds_write_b128 v{vA}, {v(t*4,4)} offset:{t*1024}")
        p(f"""
s_waitcnt lgkmcnt(0)
k2_skip{st}:
s_barrier
s_branch k2_j{st}
k2_rd{st}:
s_barrier
""")
        for t0 in range(0, 35, 7):
            for t in range(7):
                p(f"ds_read_b128 {v(140+t*4,4)}, v{vA} offset:{(t0+t)*1024}")
            for t in range(7):
                p(f"s_waitcnt lgkmcnt({6-t})")
                for i in range(4):
                    p(f"v_add_f32 v{(t0+t)*4+i}, v{(t0+t)*4+i}, v{140+t*4+i}")
        p.label(f"k2_j{st}")
        if st > 1: p("s_barrier")
    p(f"""
s_cmp_lg_u32 s{sWV}, 0
s_cbranch_scc1 k2_end
s_and_b32 s{sT}, s{sG}, 15
s_mul_i32 s{sT}, s{sT}, {112*2560}
s_lshr_b32 s{sKS}, s{sG}, 4
s_mul_i32 s{sKS}, s{sKS}, 1280
s_add_u32 s{sT}, s{sT}, s{sKS}
s_mul_i32 s{sKS}, s{sS}, 160
s_add_u32 s{sT}, s{sT}, s{sKS}
s_mov_b32 s{sOUT}, s8
s_mov_b32 s{sOUT+1}, s9
s_mov_b32 s{sOUT+2}, {16*112*2560}
s_mov_b32 s{sOUT+3}, 0x20000
v_lshrrev_b32 v140, 4, v{vO}
v_and_b32 v141, 15, v140
v_lshrrev_b32 v140, 4, v140
v_mul_u32_u24 v141, 2560, v141
v_lshl_add_u32 v141, v140, 3, v141
""")
    for rt in range(7):
        for nt in range(5):
            a = AC(nt, rt)
            d = 144 + ((rt * 5 + nt) % 8) * 2
            p(f"v_cvt_pk_bf16_f32 v{d}, v{a}, v{a+1}")
            p(f"v_cvt_pk_bf16_f32 v{d+1}, v{a+2}, v{a+3}")
            p(f"buffer_store_dwordx2 {v(d,2)}, v141, s[{sOUT}:{sOUT+3}], s{sT} offen offset:{nt*32}")
        p(f"s_add_u32 s{sT}, s{sT}, {16*2560}")
    p("""
k2_end:
s_endpgm
""")
    return p

def desc(name, vg=256):
    return f""".amdhsa_kernel {name}
  .amdhsa_next_free_vgpr {vg}
  .amdhsa_next_free_sgpr 102
  .amdhsa_accum_offset 256
  .amdhsa_group_segment_fixed_size 0
  .amdhsa_kernarg_size 104
  .amdhsa_user_sgpr_count 2
  .amdhsa_user_sgpr_kernarg_segment_ptr 1
  .amdhsa_system_sgpr_workgroup_id_x 1
.end_amdhsa_kernel
"""

def main():
    a = k1(); b = k2()
    n1 = fix_hazards(a.L); n2 = fix_hazards(b.L)
    print("nops inserted", n1, n2, "instrs", len(a.L), len(b.L), file=sys.stderr)
    hdr = open("cdna_kernels/" + NAME + ".s.ref").read().split("; Override launch")[0]
    out = hdr
    out += f"; @launch kernel=attn_kernel grid=(512,1,1) block=(256,1,1) lds={R*TILE}\n"
    out += f"; @launch kernel=oproj_kernel grid=(256,1,1) block=(512,1,1) lds=143360\n"
    out += '.amdgcn_target "amdgcn-amd-amdhsa--gfx950"\n.text\n'
    out += a.text() + b.text()
    out += '.section .rodata,"a"\n.p2align 6\n' + desc("attn_kernel") + ".p2align 6\n" + desc("oproj_kernel")
    open(sys.argv[1], "w").write(out)
main()
```

```python
import sys
sys.path.insert(0, 'work')
from asmlib import *
OPT = None
def stamp(p, k, real=False, dyn=None):
    if not OPT["prof"]: return
    p(f"s_mem{'real' if real else ''}time s[100:101]")
    p("s_waitcnt lgkmcnt(0)")
    if dyn is None:
        p(f"s_mov_b32 s{80+k}, s100")
    else:
        p(f"s_cmp_eq_u32 s{dyn}, 0")
        p(f"s_cselect_b32 s{80+k}, s100, s{80+k}")
        p(f"s_cselect_b32 s{80+k+4}, s{80+k+4}, s100")
def dump_stamps(p, wsreg, base, idx_expr_regs, nw):
    if not OPT["prof"]: return
    wg, wave = idx_expr_regs
    p(f"s_mul_i32 s100, s{wg}, {nw}")
    p(f"s_add_u32 s100, s100, s{wave}")
    p(f"s_lshl_b32 s100, s100, 6")
    p(f"s_add_u32 s100, s100, {base}")
    p(f"s_add_u32 s96, s{wsreg}, s100")
    p(f"s_addc_u32 s97, s{wsreg+1}, 0")
    p(f"s_mov_b32 s98, 64")
    p(f"s_mov_b32 s99, 0x20000")
    p("v_mov_b32 v1, 0")
    for k in range(16):
        p(f"v_mov_b32 v0, s{80+k}")
        p(f"buffer_store_dword v0, v1, s[96:99], 0 offen offset:{k*4}")
    p("s_waitcnt vmcnt(0)")

def k2():
    p = Prog()
    def AC(nt, rt): return (nt * 7 + rt) * 4
    def OB(buf, rt): return 140 + buf * 28 + rt * 4
    def AF(nt): return 224 + nt * 4
    PAT = [244 + i for i in range(5)]
    vO, vRD = 249, 250
    sO, sW, sOUT = 32, 36, 40
    sWV, sG, sS, sKS, sLB, sCT, sOS, sWS, sT = 52, 53, 54, 55, 56, 57, 58, 59, 60
    SLOT = 5120
    p(f"""
.globl oproj_kernel
.p2align 8
.type oproj_kernel,@function
oproj_kernel:
s_cmp_ge_u32 s2, 256
s_cbranch_scc1 k2_end
s_load_dwordx2 s[4:5], s[0:1], 32
s_load_dwordx2 s[6:7], s[0:1], 72
s_load_dwordx2 s[8:9], s[0:1], 80
s_load_dwordx2 s[10:11], s[0:1], 96
v_lshrrev_b32 v1, 6, v0
v_and_b32 v2, 63, v0
v_readfirstlane_b32 s{sWV}, v1
s_and_b32 s{sG}, s2, 7
s_lshl_b32 s{sG}, s{sG}, 2
s_lshr_b32 s{sT}, s2, 6
s_add_u32 s{sG}, s{sG}, s{sT}
s_lshr_b32 s{sS}, s2, 3
s_and_b32 s{sS}, s{sS}, 7
v_lshlrev_b32 v{vO}, 4, v2
""")
    for i in range(5):
        p(f"""
v_add_u32 v3, {64*i}, v2
v_mul_u32_u24 v4, 205, v3
v_lshrrev_b32 v4, 11, v4
v_mul_u32_u24 v5, 10, v4
v_sub_u32 v5, v3, v5
v_mul_u32_u24 v4, 1280, v4
v_lshl_add_u32 v4, v5, 4, v4
v_subrev_u32 v{PAT[i]}, {(i%4)*1024}, v4
""")
    p(f"""
s_mul_i32 s{sLB}, s{sWV}, {3*SLOT}
v_lshrrev_b32 v3, 2, v2
v_mul_u32_u24 v3, 160, v3
v_and_b32 v4, 3, v2
v_lshl_add_u32 v3, v4, 3, v3
v_add_u32 v{vRD}, s{sLB}, v3
s_waitcnt lgkmcnt(0)
s_mul_i32 s{sT}, s{sG}, {32*43008}
s_add_u32 s{sT}, s{sT}, {OPT.get('wsoff', 0) << 20}
s_add_u32 s{sO}, s10, s{sT}
s_addc_u32 s{sO+1}, s11, 0
s_mov_b32 s{sO+2}, {32*43008}
s_mov_b32 s{sO+3}, 0x20000
s_cmp_lt_u32 s{sG}, 16
s_cselect_b32 s4, s4, s6
s_cselect_b32 s5, s5, s7
s_mul_i32 s{sT}, s{sS}, 160
s_add_u32 s{sW}, s4, s{sT}
s_addc_u32 s{sW+1}, s5, 0
s_sub_u32 s{sW+2}, {6144*1280}, s{sT}
s_mov_b32 s{sW+3}, 0x20000
s_mul_i32 s{sOS}, s{sWV}, {24*7168}
s_mul_i32 s{sWS}, s{sWV}, {24*40960}
""")
    stamp(p, 0); stamp(p, 1, real=True)
    def issue(buf):
        p(f"s_add_u32 m0, s{sLB}, {buf*SLOT}")
        p(f"s_add_u32 s{sT}, s{sOS}, 4096")
        for i in range(4):
            off = f"offset:{i*1024} " if i else ""
            p(f"buffer_load_dwordx4 v{PAT[i]}, s[{sW}:{sW+3}], s{sWS} offen {off}{OPT['wo']} lds")
        p(f"s_add_u32 m0, m0, 4096")
        for rt in range(7):
            so = sOS if rt < 4 else sT
            p(f"buffer_load_dwordx4 {v(OB(buf,rt),4)}, v{vO}, s[{sO}:{sO+3}], s{so} offen offset:{(rt%4)*1024} {OPT['o2']}")
            if rt == 0:
                p(f"buffer_load_dwordx4 v{PAT[4]}, s[{sW}:{sW+3}], s{sWS} offen {OPT['wo']} lds")
        p(f"s_add_u32 s{sOS}, s{sOS}, 7168")
        p(f"s_add_u32 s{sWS}, s{sWS}, 40960")
    issue(0); issue(1)
    for i in range(140): p(f"v_mov_b32 v{i}, 0")
    p(f"s_mov_b32 s{sCT}, 0")
    p.label("k2_loop")
    for u in range(3):
        issue((u + 2) % 3)
        p("s_waitcnt vmcnt(24)")
        for nt in range(5):
            for hf in range(2):
                p(f"ds_read_b64_tr_b16 {v(AF(nt)+2*hf,2)}, v{vRD} offset:{u*SLOT+nt*32+hf*2560}")
        for nt in range(5):
            p(f"s_waitcnt lgkmcnt({2*(4-nt)})")
            for rt in range(7):
                p(f"v_mfma_f32_16x16x32_bf16 {v(AC(nt,rt),4)}, {v(AF(nt),4)}, {v(OB(u,rt),4)}, {v(AC(nt,rt),4)}")
    p(f"""
s_add_u32 s{sCT}, s{sCT}, 1
s_cmp_lt_u32 s{sCT}, 8
s_cbranch_scc1 k2_loop
s_waitcnt vmcnt(0)
""")
    stamp(p, 2)
    p("s_barrier")
    stamp(p, 3)
    vA = 244
    for st in (4, 2, 1):
        p(f"""
s_and_b32 s{sT}, s{sWV}, {st-1}
s_mul_i32 s{sT}, s{sT}, 35840
v_add_u32 v{vA}, s{sT}, v{vO}
s_cmp_lt_u32 s{sWV}, {st}
s_cbranch_scc1 k2_rd{st}
s_cmp_ge_u32 s{sWV}, {2*st}
s_cbranch_scc1 k2_skip{st}
""")
        for t in range(35):
            p(f"ds_write_b128 v{vA}, {v(t*4,4)} offset:{t*1024}")
        p(f"""
s_waitcnt lgkmcnt(0)
k2_skip{st}:
s_barrier
s_branch k2_j{st}
k2_rd{st}:
s_barrier
""")
        for t0 in range(0, 35, 7):
            for t in range(7):
                p(f"ds_read_b128 {v(140+t*4,4)}, v{vA} offset:{(t0+t)*1024}")
            for t in range(7):
                p(f"s_waitcnt lgkmcnt({6-t})")
                for i in range(4):
                    p(f"v_add_f32 v{(t0+t)*4+i}, v{(t0+t)*4+i}, v{140+t*4+i}")
        p.label(f"k2_j{st}")
        if st > 1: p("s_barrier")
    stamp(p, 4)
    p(f"""
s_cmp_lg_u32 s{sWV}, 0
s_cbranch_scc1 k2_fin
s_and_b32 s{sT}, s{sG}, 15
s_mul_i32 s{sT}, s{sT}, {112*2560}
s_lshr_b32 s{sKS}, s{sG}, 4
s_mul_i32 s{sKS}, s{sKS}, 1280
s_add_u32 s{sT}, s{sT}, s{sKS}
s_mul_i32 s{sKS}, s{sS}, 160
s_add_u32 s{sT}, s{sT}, s{sKS}
s_mov_b32 s{sOUT}, s8
s_mov_b32 s{sOUT+1}, s9
s_mov_b32 s{sOUT+2}, {16*112*2560}
s_mov_b32 s{sOUT+3}, 0x20000
v_lshrrev_b32 v140, 4, v{vO}
v_and_b32 v141, 15, v140
v_lshrrev_b32 v140, 4, v140
v_mul_u32_u24 v141, 2560, v141
v_lshl_add_u32 v141, v140, 3, v141
""")
    for rt in range(7):
        for nt in range(5):
            a = AC(nt, rt)
            d = 144 + ((rt * 5 + nt) % 8) * 2
            p(f"v_cvt_pk_bf16_f32 v{d}, v{a}, v{a+1}")
            p(f"v_cvt_pk_bf16_f32 v{d+1}, v{a+2}, v{a+3}")
            p(f"buffer_store_dwordx2 {v(d,2)}, v141, s[{sOUT}:{sOUT+3}], s{sT} offen offset:{nt*32}")
        p(f"s_add_u32 s{sT}, s{sT}, {16*2560}")
    p("k2_fin:")
    p("s_waitcnt vmcnt(0)")
    stamp(p, 10); stamp(p, 11, real=True)
    dump_stamps(p, 10, 65 << 20, (2, sWV), 8)
    p("""
k2_end:
s_endpgm
""")
    return p

def desc(name, vg=256):
    return f""".amdhsa_kernel {name}
  .amdhsa_next_free_vgpr {vg}
  .amdhsa_next_free_sgpr 102
  .amdhsa_accum_offset 256
  .amdhsa_group_segment_fixed_size 0
  .amdhsa_kernarg_size 104
  .amdhsa_user_sgpr_count 2
  .amdhsa_user_sgpr_kernarg_segment_ptr 1
  .amdhsa_system_sgpr_workgroup_id_x 1
.end_amdhsa_kernel
"""
```

```python
import sys, math, struct
sys.path.insert(0, "work")
from asmlib import *
import gen1k2

NAME = "concat_heads__mha_block_cached__gqa_block_cached__near_ridge"
OPT = dict(kv="nt", w="", x="", ost="", o2="", wo="", prof=0, prio=1, pf=1, pfat=0, nox=0, now=0, nokv=0, nomf=0,
           nord=0, nobar=0, novm=0, lead=4, w2=0)
for a in sys.argv[2:]:
    k, val = a.split("=")
    OPT[k] = int(val) if val.lstrip("-").isdigit() else val.replace("+", " ").replace("-", "")
TILE = 12288
LDS_BYTES = 6 * TILE + 4096
def f2u(f): return struct.unpack("<I", struct.pack("<f", f))[0]
gen1k2.OPT = OPT
stamp, dump_stamps = gen1k2.stamp, gen1k2.dump_stamps
LEAD = OPT["lead"]

def ACC(rt, t): return rt * 48 + t * 4
def Q(rt, j): return 96 + rt * 24 + j * 4
def S(par, rt, kt=0): return 144 + par * 16 + rt * 8 + kt * 4
def P(rt): return 176 + rt * 4
def NEGM(rt): return 184 + rt * 4
def LSUM(rt): return 192 + rt * 4
ONES = 200
FR0 = 204; NFR = 6
def FR(f): return FR0 + (f % NFR) * 4
def XF(par, rt): return 144 + par * 16 + rt * 4
KA = [228, 229]; VA = [230, 231, 232, 233]; WA = [234, 235, 236, 237]; XA = [238, 239]
PKV = [240, 241, 242]; PW = [243, 244, 245]; PX = 246
OOFF = 247
T = list(range(248, 256))
KBIAS = 8192
sWd, sKd, sVd, sXd, sOd = 32, 36, 40, 44, 48
sWAVE, sB, sH, sUNIT, sCTR, sSO = 52, 53, 54, 55, 57, 61
sKSO, sVSO, sWSO, sXSO, sLW, sXM = 56, 58, 60, 59, 70, 71
sT1, sT2 = 62, 63
sMASK = 64
sC, sBIT, sOB = 66, 68, 69
sKVOFF, sWOFF = 72, 73
sRET = 30
sZd, sZSO = 76, 74
WSLOT = [0, 1, 3, 4]
XSLOT = [2, 5]

class Gen:
    def __init__(self, needs):
        self.p = Prog(); self.needs = needs; self.rec = {}
        self.mute = 0
        self.vq = []; self.lq = []
        self.pend = []
    def e(self, s):
        if not self.mute: self.p(s)
    def label(self, n):
        if not self.mute: self.p.label(n)
    def _need(self, q, tags):
        idx = [i for i, t in enumerate(q) if t in tags]
        return len(q) - 1 - max(idx) if idx else 999
    def wait(self, kind, key, tags):
        q = self.vq if kind == "vm" else self.lq
        for t in tags:
            assert self.issued.pop(t) == self.expect(t), (t, key)
        n = self._need(q, tags)
        mx = 63 if kind == "vm" else 15
        if n != 999: n = min(n, mx)
        k = (kind, key)
        self.rec[k] = min(self.rec.get(k, 999), n)
        val = self.needs.get(k, n)
        if val == 999: return
        self.e(f"s_waitcnt {'vmcnt' if kind == 'vm' else 'lgkmcnt'}({val})")
        del q[:len(q) - val if val < len(q) else 0]
    def expect(self, t):
        if "f" in t: return self.issued_kind[t]
        if t[0] == "X": return 2 * self.nrt
        return 3
    def vm(self, tag, text):
        self.e(text); self.vq.append(tag); self.issued[tag] = self.issued.get(tag, 0) + 1
    def ld(self, tag, text):
        self.e(text); self.lq.append(tag); self.issued[tag] = self.issued.get(tag, 0) + 1
        self.issued_kind[tag] = 2 if "_tr_" in text else 1
    def drain(self, n=1):
        for _ in range(n):
            if self.pend: self.pend.pop(0)()

def build(needs):
    g = Gen(needs)
    p = g.p
    e = g.e
    e(f"""
.globl attn_kernel
.p2align 8
.type attn_kernel,@function
attn_kernel:
s_cmp_ge_u32 s2, 512
s_cbranch_scc1 k1_end
s_load_dwordx16 s[4:19], s[0:1], 0
s_load_dwordx8 s[20:27], s[0:1], 64
s_load_dwordx2 s[28:29], s[0:1], 96
v_lshrrev_b32 v1, 6, v0
v_and_b32 v2, 63, v0
v_readfirstlane_b32 s{sWAVE}, v1
s_and_b32 s{sH}, s2, 7
s_lshl_b32 s{sH}, s{sH}, 2
s_lshr_b32 s{sT1}, s2, 3
s_and_b32 s{sT1}, s{sT1}, 3
s_add_u32 s{sH}, s{sH}, s{sT1}
s_lshr_b32 s{sB}, s2, 5
v_and_b32 v3, 15, v2
v_lshrrev_b32 v4, 4, v2
v_lshrrev_b32 v5, 2, v2
v_and_b32 v6, 3, v5
v_and_b32 v7, 3, v2
v_lshrrev_b32 v8, 3, v2
v_and_b32 v9, 7, v2
s_and_b32 s{sT1}, s{sWAVE}, 1
s_lshl_b32 s{sT1}, s{sT1}, 2
v_xor_b32 v16, s{sT1}, v9
""")
    for q in range(3):
        e(f"""
v_add_u32 v10, {8*q}, v8
v_mul_u32_u24 v11, 43, v10
v_lshrrev_b32 v11, 7, v11
v_mul_u32_u24 v12, 3, v11
v_sub_u32 v12, v10, v12
v_lshrrev_b32 v13, 1, v11
v_and_b32 v14, 3, v13
v_lshlrev_b32 v14, 1, v14
v_xor_b32 v14, v9, v14
v_lshlrev_b32 v14, 4, v14
v_lshl_add_u32 v{PKV[q]}, v8, 7, v14
v_and_b32 v14, 1, v13
v_xor_b32 v14, v16, v14
v_lshlrev_b32 v14, 4, v14
v_lshl_add_u32 v14, v12, 7, v14
v_mul_u32_u24 v15, 12288, v11
v_add_u32 v14, v14, v15
v_subrev_u32 v{PW[q]}, {q*1024}, v14
""")
    e(f"""
v_lshrrev_b32 v13, 1, v8
v_and_b32 v13, 3, v13
v_lshlrev_b32 v13, 1, v13
v_xor_b32 v13, v9, v13
v_lshlrev_b32 v13, 4, v13
v_mul_u32_u24 v14, 1280, v8
v_add_u32 v{PX}, v13, v14
v_lshlrev_b32 v{OOFF}, 4, v2
s_lshl_b32 s{sT1}, s{sB}, 5
s_add_u32 s{sT1}, s{sT1}, s{sH}
s_mul_i32 s{sKVOFF}, s{sT1}, 196608
s_mul_i32 s{sWOFF}, s{sH}, 384
s_mul_i32 s{sLW}, s{sWAVE}, 3072
s_lshl_b32 s{sXM}, s{sWAVE}, 12
s_mul_i32 s{sWSO}, s{sWAVE}, {8*12288}
s_mul_i32 s{sXSO}, s{sWAVE}, {32*1280}
s_mov_b32 s{sKSO}, s{sLW}
s_mov_b32 s{sVSO}, s{sLW}
s_mov_b32 s{sXd+2}, {0 if OPT['nox'] else 143360}
s_mov_b32 s{sXd+3}, 0x20000
s_mov_b32 s{sOd+2}, 43008
s_mov_b32 s{sOd+3}, 0x20000
s_sub_u32 s{sWd+2}, {640*12288}, s{sWOFF}
{'s_mov_b32 s%d, 0' % (sWd+2) if OPT['now'] else ''}
s_mov_b32 s{sWd+3}, 0x20000
s_mov_b32 s{sKd+2}, {0 if OPT['nokv'] else 196608}
s_mov_b32 s{sKd+3}, 0x20000
s_mov_b32 s{sVd+2}, {0 if OPT['nokv'] else 196608}
s_mov_b32 s{sVd+3}, 0x20000
s_mov_b32 s{sZd+2}, {0 if OPT['nokv'] else 196608}
s_mov_b32 s{sZd+3}, 0x20000
s_waitcnt lgkmcnt(0)
s_mul_i32 s{sT2}, s{sB}, 143360
s_add_u32 s{sXd}, s4, s{sT2}
s_addc_u32 s{sXd+1}, s5, 0
s_mul_i32 s{sT2}, s{sT1}, 43008
s_add_u32 s{sOd}, s28, s{sT2}
s_addc_u32 s{sOd+1}, s29, 0
s_add_u32 s{sWd}, s10, s{sWOFF}
s_addc_u32 s{sWd+1}, s11, 0
s_add_u32 s{sKd}, s6, s{sKVOFF}
s_addc_u32 s{sKd+1}, s7, 0
s_add_u32 s{sVd}, s8, s{sKVOFF}
s_addc_u32 s{sVd+1}, s9, 0
""")
    stamp(p, 0); stamp(p, 1, real=True)
    if OPT["prio"]:
        e(f"""
s_cmp_ge_u32 s2, 256
s_cbranch_scc1 k1_noprio
s_setprio {OPT['prio']}
k1_noprio:
""")
    e(f"""
s_cmp_eq_u32 s{sWAVE}, 3
s_cbranch_scc1 k1_light
""")

    def path(nrt, tag):
        light = nrt == 1
        g.vq = []; g.lq = []; g.pend = []; g.issued = {}; g.issued_kind = {}; g.nrt = nrt
        def dma_tile(kind, slot, tg, wrel=None):
            if kind == "W": pat, srd, so, fl = PW, sWd, sWSO, OPT["w"]
            elif kind == "K": pat, srd, so, fl = PKV, sKd, sKSO, OPT["kv"]
            elif kind == "Z": pat, srd, so, fl = PKV, sZd, sKSO, OPT["kv"]
            else: pat, srd, so, fl = PKV, sVd, sVSO, OPT["kv"]
            out = []
            for ii in range(3):
                def f(ii=ii):
                    soi = so
                    if kind == "Z":
                        soi = sZSO
                        if ii == 0:
                            e(f"s_cmp_eq_u32 s{sCTR}, 0")
                            e(f"s_cselect_b64 s[{sZd}:{sZd+1}], s[{sKd}:{sKd+1}], s[{sVd}:{sVd+1}]")
                            e(f"s_cselect_b32 s{sZSO}, s{sKSO}, s{sVSO}")
                    if ii == 0:
                        e(f"s_add_u32 m0, s{sLW}, {slot*TILE}")
                    if wrel is not None:
                        soi = sT1
                        if ii == 0: e(f"s_add_u32 s{sT1}, s{so}, {wrel*32*12288}")
                    elif ii == 0:
                        e("s_nop 0")
                    off = f"offset:{ii*1024} " if ii else ""
                    g.vm(tg, f"buffer_load_dwordx4 v{pat[ii]}, s[{srd}:{srd+3}], s{soi} offen {off}{fl} lds")
                    if ii == 2 and wrel is None:
                        e(f"s_add_u32 s{so}, s{so}, {32*12288 if kind == 'W' else TILE}")
                out.append(f)
            return out
        def dma_x(par, tg):
            out = []
            n = 2 * nrt
            for q in range(n):
                def f(q=q):
                    if q == 0:
                        if light: e(f"s_mov_b32 m0, {6*TILE + par*2048}")
                        else: e(f"s_add_u32 m0, s{sXM}, {XSLOT[par]*TILE}")
                    if q == 0:
                        e("s_nop 0"); so = sXSO
                    else:
                        e(f"s_add_u32 s{sT2}, s{sXSO}, {q*(10240-1024)}"); so = sT2
                    off = f"offset:{q*1024} " if q else ""
                    g.vm(tg, f"buffer_load_dwordx4 v{PX}, s[{sXd}:{sXd+3}], s{so} offen {off}{OPT['x']} lds")
                    if q == n - 1: e(f"s_add_u32 s{sXSO}, s{sXSO}, 128")
                out.append(f)
            return out
        def rd(kind, slot, f, tg, kregs=None):
            base = slot * TILE
            if kind == "K":
                kt, j = divmod(f, 6)
                regs = kregs or KA
                b = base - (0 if kregs else KBIAS)
                g.ld(tg, f"ds_read_b128 {v(FR(f),4)}, v{regs[j&1]} offset:{b+kt*6144+(j>>1)*128}")
            else:
                hfo = 6144 if kind == "V" else 1536
                regs = VA if kind == "V" else WA
                for hf in range(2):
                    g.ld(tg, f"ds_read_b64_tr_b16 {v(FR(f)+2*hf,2)}, v{regs[f&3]} offset:{base+(f>>2)*128+hf*hfo}")
        def rdx(i):
            par = (i >> 1) & 1
            for rt in range(nrt):
                off = par * 2048 if light else XSLOT[par] * TILE + rt * 2048
                g.ld(f"x{i}", f"ds_read_b128 {v(XF(i&1,rt),4)}, v{XA[i&1]} offset:{off}")
        def mfma(d, a, b, c):
            if not OPT["nomf"]:
                e(f"v_mfma_f32_16x16x32_bf16 {v(d,4)}, {v(a,4)}, {v(b,4)}, {c if c == '0' else v(c,4)}")
        def step(key, kind, slot, tg, mf, nxt=None, waits=(), issue=(), valu=(), kregs=None, barrier=True):
            valu = list(valu)
            per = [len(valu) * (f + 1) // 12 - len(valu) * f // 12 for f in range(12)]
            for f in range(12):
                if f == 12 - LEAD and barrier:
                    if waits: g.wait("vm", key + "b", waits)
                    e("s_barrier")
                    g.pend += list(issue)
                    if nxt and nxt[3] is not None: rdx(nxt[3])
                if f + LEAD < 12: rd(kind, slot, f + LEAD, f"{tg}f{f+LEAD}", kregs)
                elif nxt: rd(nxt[0], nxt[1], f + LEAD - 12, f"{nxt[2]}f{f+LEAD-12}", nxt[4])
                g.drain(1)
                if not (OPT["w2"] and f % 2 == 1):
                    ff = min(11, f + 1) if OPT["w2"] else f
                    g.wait("lg", f"{key}{f}", [f"{tg}f{x}" for x in range(f, ff + 1)])
                vs = [valu.pop(0) for _ in range(per[f])]
                mf(f, vs)
        def mf_acc(bs, first):
            def m(f, vs):
                for rt in range(nrt):
                    mfma(ACC(rt, f), FR(f), bs(rt), "0" if first else ACC(rt, f))
                for x in vs: e(x)
            return m
        def mf_qk(par, zero):
            def m(f, vs):
                kt, j = divmod(f, 6)
                h = (len(vs) + 1) // 2
                for rt in range(nrt):
                    c = ("0" if zero else NEGM(rt)) if j == 0 else S(par, rt, kt)
                    mfma(S(par, rt, kt), FR(f), Q(rt, j), c)
                    for x in (vs[:h] if rt == 0 and nrt == 2 else (vs[h:] if nrt == 2 else vs)): e(x)
            return m
        def mf_pv(first):
            def m(f, vs):
                for rt in range(nrt):
                    mfma(ACC(rt, f), FR(f), P(rt), "0" if first else ACC(rt, f))
                if f == 5:
                    for rt in range(nrt):
                        mfma(LSUM(rt), ONES, P(rt), "0" if first else LSUM(rt))
                for x in vs: e(x)
            return m
        def sm(par):
            out = []
            k = 0
            for rt in range(nrt):
                for i in range(4):
                    a, b = T[(2 * k) % 6], T[(2 * k + 1) % 6]; k += 1
                    r = S(par, rt) + 2 * i
                    out.append((f"v_exp_f32 v{a}, v{r}", f"v_exp_f32 v{b}, v{r+1}", f"v_cvt_pk_bf16_f32 v{P(rt)+i}, v{a}, v{b}"))
            seq = []
            for n, (x, y, z) in enumerate(out):
                seq += [x, y]
                if n > 0: seq.append(out[n - 1][2])
            seq.append(out[-1][2])
            return seq
        def sm_check(par, key):
            t = T[6]
            if nrt == 2:
                e(f"v_or3_b32 v{t}, v{P(0)}, v{P(0)+1}, v{P(0)+2}")
                e(f"v_or3_b32 v{t}, v{t}, v{P(0)+3}, v{P(1)}")
                e(f"v_or3_b32 v{t}, v{t}, v{P(1)+1}, v{P(1)+2}")
                e(f"v_or_b32 v{t}, v{t}, v{P(1)+3}")
            else:
                e(f"v_or3_b32 v{t}, v{P(0)}, v{P(0)+1}, v{P(0)+2}")
                e(f"v_or_b32 v{t}, v{t}, v{P(0)+3}")
            e(f"v_and_b32 v{t}, s{sBIT}, v{t}")
            e(f"v_cmp_ne_u32 vcc, 0, v{t}")
            e(f"s_cbranch_vccz k1_ok{key}_{tag}")
            e(f"s_call_b64 s[{sRET}:{sRET+1}], k1_rare{par}_{tag}")
            g.label(f"k1_ok{key}_{tag}")
        def rowmax(par, rt, t, t2):
            r = S(par, rt)
            e(f"""
v_max3_f32 v{t}, v{r}, v{r+1}, v{r+2}
v_max3_f32 v{t}, v{t}, v{r+3}, v{r+4}
v_max3_f32 v{t}, v{t}, v{r+5}, v{r+6}
v_max_f32 v{t}, v{t}, v{r+7}
v_mov_b32 v{t2}, v{t}
v_permlane32_swap_b32 v{t2}, v{t}
v_max_f32 v{t}, v{t}, v{t2}
v_mov_b32 v{t2}, v{t}
v_permlane16_swap_b32 v{t2}, v{t}
v_max_f32 v{t}, v{t}, v{t2}
v_add_f32 v{t}, {hex(f2u(7.0))}, v{t}
""")
        def prefetch(t0, t1, d):
            e(f"""
s_lshl_b32 s{sT1}, s{sWAVE}, 6
v_lshrrev_b32 v{t0}, 4, v{OOFF}
v_add_u32 v{t0}, s{sT1}, v{t0}
v_mul_u32_u24 v{t1}, 171, v{t0}
v_lshrrev_b32 v{t1}, 10, v{t1}
v_mul_u32_u24 v{d}, 6, v{t1}
v_sub_u32 v{t0}, v{t0}, v{d}
v_lshlrev_b32 v{t0}, 6, v{t0}
v_mul_u32_u24 v{t1}, 12288, v{t1}
v_add_u32 v{t0}, v{t0}, v{t1}
s_mul_i32 s{sT2}, s{sB}, {40*12288}
""")
            g.vm("pf", f"buffer_load_dword v{d}, v{t0}, s[{sWd}:{sWd+3}], s{sT2} offen")
            e(f"""
v_lshlrev_b32 v{t1}, 2, v{OOFF}
s_and_b32 s{sT2}, s{sH}, 3
s_mul_i32 s{sT2}, s{sT2}, 35840
s_mul_i32 s{sT1}, s{sWAVE}, {140*64}
s_add_u32 s{sT2}, s{sT2}, s{sT1}
""")
            for k in range(3):
                g.vm("pf", f"buffer_load_dword v{d}, v{t1}, s[{sXd}:{sXd+3}], s{sT2} offen")
                if k < 2: e(f"s_add_u32 s{sT2}, s{sT2}, 4096")

        for f in dma_x(0, "X0") + dma_tile("W", WSLOT[2], "W2", 2) + dma_x(1, "X1") + dma_tile("W", WSLOT[0], "W0", 0) + dma_tile("W", WSLOT[1], "W1", 1): f()
        e(f"s_add_u32 s{sWSO}, s{sWSO}, {3*32*12288}")
        nst = 6 * nrt
        if OPT["pf"]:
            prefetch(20, 21, T[7]); nst -= 4
        for k in range(nst):
            g.vm("st", f"buffer_load_dword v{T[7]}, v{OOFF}, s[{sXd}:{sXd+3}], 0 offen")
        e(f"""
v_lshrrev_b32 v8, 1, v3
v_and_b32 v8, 3, v8
v_lshlrev_b32 v8, 1, v8
v_xor_b32 v8, v4, v8
v_lshlrev_b32 v8, 4, v8
v_mul_u32_u24 v9, 384, v3
v_add_u32 v9, v8, v9
v_add_u32 v{KA[0]}, {KBIAS}, v9
v_xor_b32 v{KA[1]}, 64, v{KA[0]}
v_lshl_add_u32 v9, v3, 7, v8
v_add_u32 v{XA[0]}, {'s%d' % sXM if not light else 6*TILE}, v9
v_xor_b32 v{XA[1]}, 64, v{XA[0]}
v_lshrrev_b32 v8, 1, v5
v_and_b32 v8, 3, v8
v_lshlrev_b32 v8, 5, v8
v_mul_u32_u24 v9, 384, v5
v_add_u32 v8, v8, v9
v_lshl_add_u32 v{VA[0]}, v7, 3, v8
v_xor_b32 v{VA[1]}, 32, v{VA[0]}
v_xor_b32 v{VA[2]}, 64, v{VA[0]}
v_xor_b32 v{VA[3]}, 96, v{VA[0]}
v_lshl_add_u32 v8, v4, 3, v6
v_mul_u32_u24 v9, 384, v8
v_lshrrev_b32 v8, 1, v6
v_and_b32 v10, 1, v4
v_lshl_add_u32 v8, v10, 2, v8
v_xor_b32 v8, v7, v8
v_lshl_add_u32 v9, v8, 4, v9
v_and_b32 v10, 1, v7
v_lshl_add_u32 v{WA[0]}, v10, 3, v9
v_xor_b32 v{WA[1]}, 8, v{WA[0]}
v_xor_b32 v{WA[2]}, 64, v{WA[0]}
v_xor_b32 v{WA[3]}, 72, v{WA[0]}
s_mov_b32 s{sMASK}, 0xffff0000
s_mov_b32 s{sMASK+1}, 0xffff0000
s_mov_b32 s{sC}, {hex(f2u(192 ** -0.5 * math.log2(math.e)))}
s_mov_b32 s{sC+1}, s{sC}
s_mov_b32 s{sBIT}, 0x40004000
s_lshl_b32 s{sOB}, s{sWAVE}, 11
s_mov_b32 s{sUNIT}, 0
""")
        for i in range(4): e(f"v_mov_b32 v{ONES+i}, 0x3f803f80")

        K0REG = [T[0], T[1]]
        for unit in range(2):
            if unit == 1: g.mute += 1
            g.label(f"k1_unit_{tag}")
            g.wait("vm", "u0", ["W0", "X0"])
            e("s_barrier")
            rdx(0)
            for f in range(LEAD): rd("W", WSLOT[0], f, f"W0f{f}")
            def wstep(i, key):
                issue = []
                if i + 3 < 20:
                    if i % 2 == 1 and (i + 3) // 2 < 10: issue += dma_x(((i + 3) // 2) & 1, f"X{(i+3)//2}")
                    issue += dma_tile("W", WSLOT[(i + 3) % 4], f"W{i+3}")
                elif i == 17: issue += dma_tile("K", 0, "A0")
                elif i == 18: issue += dma_tile("K", 1, "A1") + dma_tile("V", 2, "A2")
                elif i == 19: issue += dma_tile("K", 3, "A3")
                if i < 19:
                    waits = [f"W{i+1}"] + ([f"X{(i+1)//2}"] if (i + 1) % 2 == 0 else [])
                    nxt = ("W", WSLOT[(i + 1) % 4], f"W{i+1}", i + 1, None)
                else:
                    waits = ["A0"]
                    nxt = ("K", 0, "A0", None, K0REG)
                    e(f"v_subrev_u32 v{K0REG[0]}, {KBIAS}, v{KA[0]}")
                    e(f"v_subrev_u32 v{K0REG[1]}, {KBIAS}, v{KA[1]}")
                step(key, "W", WSLOT[i % 4], f"W{i}", mf_acc(lambda rt: XF(i & 1, rt), i == 0), nxt, waits, issue)
            for i in range(4): wstep(i, f"wa{i}")
            e(f"s_mov_b32 s{sCTR}, 0")
            for trip in range(3):
                if trip: g.mute += 1
                g.label(f"k1_wloop_{tag}")
                for i in range(4): wstep(4 + 4 * trip + i, f"wb{i}")
                e(f"s_add_u32 s{sCTR}, s{sCTR}, 1")
                e(f"s_cmp_lt_u32 s{sCTR}, 3")
                e(f"s_cbranch_scc1 k1_wloop_{tag}")
                if trip: g.mute -= 1
            for i in range(16, 20): wstep(i, f"wc{i}")
            if not g.mute: stamp(p, 2, dyn=sUNIT)
            g.drain(9)
            e(f"""
s_mul_i32 s{sT2}, s{sB}, 143360
s_add_u32 s{sXd}, s14, s{sT2}
s_addc_u32 s{sXd+1}, s15, 0
s_add_u32 s{sWd}, s20, s{sWOFF}
s_addc_u32 s{sWd+1}, s21, 0
s_mul_i32 s{sWSO}, s{sWAVE}, {8*12288}
s_mul_i32 s{sXSO}, s{sWAVE}, {32*1280}
s_cmp_eq_u32 s{sUNIT}, 0
s_cselect_b32 s{sXd+2}, s{sXd+2}, 0
s_cselect_b32 s{sWd+2}, s{sWd+2}, 0
""")
            for rt in range(nrt):
                for i in range(0, 48, 2):
                    a = ACC(rt, 0) + i
                    e(f"v_pk_mul_f32 {v(a,2)}, {v(a,2)}, s[{sC}:{sC+1}]")
                for j in range(6):
                    a = ACC(rt, 2 * j)
                    for i in range(4): e(f"v_cvt_pk_bf16_f32 v{Q(rt,j)+i}, v{a+2*i}, v{a+2*i+1}")
            e(f"s_mov_b64 exec, s[{sMASK}:{sMASK+1}]")
            for rt in range(nrt):
                for j in range(6):
                    e(f"v_swap_b32 v{Q(rt,j)}, v{Q(rt,j)+2}")
                    e(f"v_swap_b32 v{Q(rt,j)+1}, v{Q(rt,j)+3}")
            e("s_mov_b64 exec, -1")
            e("s_nop 3")
            def kind_of(a): return "K" if (a == 0 or (a % 2 == 1 and a < 31)) else "V"
            def att_issue(a):
                n = a + 5
                if a == 0: return dma_tile("V", 4, "A4") + dma_tile("K", 5, "A5")
                if a in (14, 26): return dma_tile("Z", n % 6, f"A{n}")
                if n < 32: return dma_tile(kind_of(n), n % 6, f"A{n}")
                if a == 27: return dma_x(0, "X0")
                if a == 28: return dma_tile("W", WSLOT[2], "W2", 2)
                if a == 30: return dma_x(1, "X1")
                if a == 31: return dma_tile("W", WSLOT[0], "W0", 0)
                return []
            def nxt_of(a):
                return (kind_of(a + 1), (a + 1) % 6, f"A{a+1}", None, None) if a < 31 else None
            step("a0", "K", 0, "A0", mf_qk(0, True), nxt_of(0), ["A1"], att_issue(0), kregs=K0REG)
            for rt in range(nrt):
                rowmax(0, rt, T[2], T[3])
                for i in range(4): e(f"v_sub_f32 v{NEGM(rt)+i}, 0, v{T[2]}")
                for i in range(8): e(f"v_sub_f32 v{S(0,rt)+i}, v{S(0,rt)+i}, v{T[2]}")
            def iteration(t, key):
                a = 2 * t + 1
                step(key + "q", "K", a % 6, f"A{a}", mf_qk((t + 1) & 1, False), nxt_of(a), [f"A{a+1}"], att_issue(a), valu=sm(t & 1))
                sm_check(t & 1, key)
                a += 1
                step(key + "p", "V", a % 6, f"A{a}", mf_pv(t == 0), nxt_of(a), [f"A{a+1}"], att_issue(a))
            iteration(0, "i0")
            if OPT["pf"]: prefetch(T[0], T[1], T[7])
            e(f"s_mov_b32 s{sCTR}, 0")
            for trip in range(2):
                if trip: g.mute += 1
                g.label(f"k1_aloop_{tag}")
                for i in range(6): iteration(1 + 6 * trip + i, f"l{i}")
                e(f"s_add_u32 s{sCTR}, s{sCTR}, 1")
                e(f"s_cmp_lt_u32 s{sCTR}, 2")
                e(f"s_cbranch_scc1 k1_aloop_{tag}")
                if trip: g.mute -= 1
            iteration(13, "i13"); iteration(14, "i14")
            for x in sm(1): e(x)
            sm_check(1, "i15")
            step("i15p", "V", 31 % 6, "A31", mf_pv(False), None, [], att_issue(31))
            if not g.mute: stamp(p, 3, dyn=sUNIT)
            g.drain(9)
            e("s_barrier")
            for f in dma_tile("W", WSLOT[1], "W1", 1): f()
            e(f"""
s_add_u32 s{sWSO}, s{sWSO}, {3*32*12288}
s_add_u32 s{sKd}, s16, s{sKVOFF}
s_addc_u32 s{sKd+1}, s17, 0
s_add_u32 s{sVd}, s18, s{sKVOFF}
s_addc_u32 s{sVd+1}, s19, 0
s_mov_b32 s{sKSO}, s{sLW}
s_mov_b32 s{sVSO}, s{sLW}
""")
            for rt in range(nrt):
                e(f"v_rcp_f32 v{T[2*rt]}, v{LSUM(rt)}")
                e(f"v_rcp_f32 v{T[2*rt+1]}, v{LSUM(rt)}")
            for j in range(6):
                e(f"s_add_u32 s{sSO}, s{sOB}, {j*7168}")
                for rt in range(nrt):
                    a = ACC(rt, 2 * j)
                    for i in range(0, 8, 2): e(f"v_pk_mul_f32 {v(a+i,2)}, {v(a+i,2)}, {v(T[2*rt],2)}")
                    d = FR(j * 2 + rt)
                    for i in range(4): e(f"v_cvt_pk_bf16_f32 v{d+i}, v{a+2*i}, v{a+2*i+1}")
                    g.vm("st", f"buffer_store_dwordx4 {v(d,4)}, v{OOFF}, s[{sOd}:{sOd+3}], s{sSO} offen offset:{rt*1024} {OPT['ost']}")
            if not g.mute: stamp(p, 4, dyn=sUNIT)
            e(f"""
s_add_u32 s{sOd}, s{sOd}, {512*43008}
s_addc_u32 s{sOd+1}, s{sOd+1}, 0
s_add_u32 s{sUNIT}, s{sUNIT}, 1
s_cmp_lt_u32 s{sUNIT}, 2
s_cbranch_scc1 k1_unit_{tag}
""")
            if unit == 1: g.mute -= 1
        e("s_waitcnt vmcnt(0)")
        stamp(p, 10); stamp(p, 11, real=True)
        if OPT["prof"]:
            e("s_getreg_b32 s92, hwreg(HW_REG_HW_ID)")
            e("s_getreg_b32 s93, hwreg(HW_REG_XCC_ID)")
        dump_stamps(p, 28, 64 << 20, (2, sWAVE), 4)
        e("s_endpgm")
        for par in range(2):
            g.label(f"k1_rare{par}_{tag}")
            for rt in range(nrt):
                t, t2 = T[6], T[5]
                rowmax(par, rt, t, t2)
                e(f"v_max_f32 v{t}, 0, v{t}")
                for i in range(4): e(f"v_sub_f32 v{NEGM(rt)+i}, v{NEGM(rt)+i}, v{t}")
                for pp in range(2):
                    for i in range(8): e(f"v_sub_f32 v{S(pp,rt)+i}, v{S(pp,rt)+i}, v{t}")
                e(f"v_exp_f32 v{t}, -v{t}")
                for i in range(4): e(f"v_mul_f32 v{LSUM(rt)+i}, v{LSUM(rt)+i}, v{t}")
                for i in range(48): e(f"v_mul_f32 v{ACC(rt,0)+i}, v{ACC(rt,0)+i}, v{t}")
            for x in sm(par): e(x)
            e(f"s_setpc_b64 s[{sRET}:{sRET+1}]")
    path(2, "h")
    rec_h = dict(g.rec); g.rec = {}
    g.label("k1_light")
    g.needs = needs.get("light", {})
    path(1, "l")
    e("""
k1_end:
s_endpgm
""")
    out = dict(rec_h); out["light"] = g.rec
    return p, out

def main():
    _, rec = build({})
    a, rec2 = build(rec)
    a, rec3 = build(rec2)
    assert rec3 == rec2
    b = gen1k2.k2()
    def drop(pred): a.L[:] = [l for l in a.L if not pred(l)]
    if OPT["nord"]: drop(lambda l: l.startswith("ds_read"))
    if OPT["nobar"]: drop(lambda l: l.startswith("s_barrier"))
    if OPT["novm"]: drop(lambda l: l.startswith("buffer_load"))
    n1 = fix_hazards(a.L); n2 = fix_hazards(b.L)
    print("nops inserted", n1, n2, "instrs", len(a.L), len(b.L), file=sys.stderr)
    hdr = open("cdna_kernels/" + NAME + ".s.ref").read().split("; Override launch")[0]
    out = hdr
    out += f"; @launch kernel=attn_kernel grid=(512,1,1) block=(256,1,1) lds={LDS_BYTES}\n"
    out += f"; @launch kernel=oproj_kernel grid=(256,1,1) block=(512,1,1) lds=143360\n"
    out += '.amdgcn_target "amdgcn-amd-amdhsa--gfx950"\n.text\n'
    out += a.text() + b.text()
    out += '.section .rodata,"a"\n.p2align 6\n' + gen1k2.desc("attn_kernel") + ".p2align 6\n" + gen1k2.desc("oproj_kernel")
    open(sys.argv[1], "w").write(out)
main()
```

```python
import sys, math, struct
sys.path.insert(0, "work")
from asmlib import *
import gen1k2

NAME = "concat_heads__mha_block_cached__gqa_block_cached__near_ridge"
OPT = dict(kv="nt", w="", x="", ost="", o2="", wo="", prof=0, prio=1, pf=1, pfat=0, nox=0, now=0, nokv=0, nomf=0,
           nord=0, nobar=0, novm=0, lead=4, w2=0, kl=5, nost=0, wsoff=0)
for a in sys.argv[2:]:
    k, val = a.split("=")
    OPT[k] = int(val) if val.lstrip("-").isdigit() else val.replace("+", " ").replace("-", "")
TILE = 12288
LDS_BYTES = 6 * TILE + 4096
def f2u(f): return struct.unpack("<I", struct.pack("<f", f))[0]
gen1k2.OPT = OPT
stamp, dump_stamps = gen1k2.stamp, gen1k2.dump_stamps
LEAD = OPT["lead"]
KL = OPT["kl"]

def ACC(rt, t): return rt * 48 + t * 4
def Q(rt, j): return 96 + rt * 24 + j * 4
def S(par, rt, kt=0): return 144 + par * 16 + rt * 8 + kt * 4
def P(rt): return 176 + rt * 4
def NEGM(rt): return 184 + rt * 4
def LSUM(rt): return 192 + rt * 4
ONES = 200
FR0 = 204; NFR = 6
def FR(f): return FR0 + (f % NFR) * 4
def XF(par, rt): return 144 + par * 16 + rt * 4
KA = [228, 229]; VA = [230, 231, 232, 233]; WA = [234, 235, 236, 237]; XA = [238, 239]
PKV = [240, 241, 242]; PW = [243, 244, 245]; PX = 246
OOFF = 247
T = list(range(248, 256))
KBIAS = 8192
sWd, sKd, sVd, sXd, sOd = 32, 36, 40, 44, 48
sWAVE, sB, sH, sUNIT, sCTR, sSO = 52, 53, 54, 55, 57, 61
sKSO, sVSO, sWSO, sXSO, sLW, sXM = 56, 58, 60, 59, 70, 71
sT1, sT2 = 62, 63
sMASK = 64
sC, sBIT, sOB = 66, 68, 69
sKVOFF, sWOFF = 72, 73
sRET = 30
sZd, sZSO = 76, 74
WSLOT = [0, 1, 3, 4]
XSLOT = [2, 5]

class Gen:
    def __init__(self, needs):
        self.p = Prog(); self.needs = needs; self.rec = {}
        self.mute = 0
        self.vq = []; self.lq = []
        self.pend = []
    def e(self, s):
        if not self.mute: self.p(s)
    def label(self, n):
        if not self.mute: self.p.label(n)
    def _need(self, q, tags):
        idx = [i for i, t in enumerate(q) if t in tags]
        return len(q) - 1 - max(idx) if idx else 999
    def wait(self, kind, key, tags):
        q = self.vq if kind == "vm" else self.lq
        for t in tags:
            assert self.issued.pop(t) == self.expect(t), (t, key)
        n = self._need(q, tags)
        mx = 63 if kind == "vm" else 15
        if n != 999: n = min(n, mx)
        k = (kind, key)
        self.rec[k] = min(self.rec.get(k, 999), n)
        val = self.needs.get(k, n)
        if val == 999: return
        self.e(f"s_waitcnt {'vmcnt' if kind == 'vm' else 'lgkmcnt'}({val})")
        del q[:len(q) - val if val < len(q) else 0]
    def expect(self, t):
        if "f" in t: return self.issued_kind[t]
        if t[0] == "X": return 2 * self.nrt
        return 3
    def vm(self, tag, text):
        self.e(text); self.vq.append(tag); self.issued[tag] = self.issued.get(tag, 0) + 1
    def ld(self, tag, text):
        self.e(text); self.lq.append(tag); self.issued[tag] = self.issued.get(tag, 0) + 1
        self.issued_kind[tag] = 2 if "_tr_" in text else 1
    def drain(self, n=1):
        for _ in range(n):
            if self.pend: self.pend.pop(0)()

def build(needs):
    g = Gen(needs)
    p = g.p
    e = g.e
    e(f"""
.globl attn_kernel
.p2align 8
.type attn_kernel,@function
attn_kernel:
s_cmp_ge_u32 s2, 512
s_cbranch_scc1 k1_end
s_load_dwordx16 s[4:19], s[0:1], 0
s_load_dwordx8 s[20:27], s[0:1], 64
s_load_dwordx2 s[28:29], s[0:1], 96
v_lshrrev_b32 v1, 6, v0
v_and_b32 v2, 63, v0
v_readfirstlane_b32 s{sWAVE}, v1
s_and_b32 s{sH}, s2, 7
s_lshl_b32 s{sH}, s{sH}, 2
s_lshr_b32 s{sT1}, s2, 3
s_and_b32 s{sT1}, s{sT1}, 3
s_add_u32 s{sH}, s{sH}, s{sT1}
s_lshr_b32 s{sB}, s2, 5
v_and_b32 v3, 15, v2
v_lshrrev_b32 v4, 4, v2
v_lshrrev_b32 v5, 2, v2
v_and_b32 v6, 3, v5
v_and_b32 v7, 3, v2
v_lshrrev_b32 v8, 3, v2
v_and_b32 v9, 7, v2
s_and_b32 s{sT1}, s{sWAVE}, 1
s_lshl_b32 s{sT1}, s{sT1}, 2
v_xor_b32 v16, s{sT1}, v9
""")
    for q in range(3):
        e(f"""
v_add_u32 v10, {8*q}, v8
v_mul_u32_u24 v11, 43, v10
v_lshrrev_b32 v11, 7, v11
v_mul_u32_u24 v12, 3, v11
v_sub_u32 v12, v10, v12
v_lshrrev_b32 v13, 1, v11
v_and_b32 v14, 3, v13
v_lshlrev_b32 v14, 1, v14
v_xor_b32 v14, v9, v14
v_lshlrev_b32 v14, 4, v14
v_lshl_add_u32 v{PKV[q]}, v8, 7, v14
v_and_b32 v14, 1, v13
v_xor_b32 v14, v16, v14
v_lshlrev_b32 v14, 4, v14
v_lshl_add_u32 v14, v12, 7, v14
v_mul_u32_u24 v15, 12288, v11
v_add_u32 v14, v14, v15
v_subrev_u32 v{PW[q]}, {q*1024}, v14
""")
    e(f"""
v_lshrrev_b32 v13, 1, v8
v_and_b32 v13, 3, v13
v_lshlrev_b32 v13, 1, v13
v_xor_b32 v13, v9, v13
v_lshlrev_b32 v13, 4, v13
v_mul_u32_u24 v14, 1280, v8
v_add_u32 v{PX}, v13, v14
v_lshlrev_b32 v{OOFF}, 4, v2
s_lshl_b32 s{sT1}, s{sB}, 5
s_add_u32 s{sT1}, s{sT1}, s{sH}
s_mul_i32 s{sKVOFF}, s{sT1}, 196608
s_mul_i32 s{sWOFF}, s{sH}, 384
s_mul_i32 s{sLW}, s{sWAVE}, 3072
s_lshl_b32 s{sXM}, s{sWAVE}, 12
s_mul_i32 s{sWSO}, s{sWAVE}, {8*12288}
s_mul_i32 s{sXSO}, s{sWAVE}, {32*1280}
s_mov_b32 s{sKSO}, s{sLW}
s_mov_b32 s{sVSO}, s{sLW}
s_mov_b32 s{sXd+2}, {0 if OPT['nox'] else 143360}
s_mov_b32 s{sXd+3}, 0x20000
s_mov_b32 s{sOd+2}, {0 if OPT['nost'] else 43008}
s_mov_b32 s{sOd+3}, 0x20000
s_sub_u32 s{sWd+2}, {640*12288}, s{sWOFF}
{'s_mov_b32 s%d, 0' % (sWd+2) if OPT['now'] else ''}
s_mov_b32 s{sWd+3}, 0x20000
s_mov_b32 s{sKd+2}, {0 if OPT['nokv'] else 196608}
s_mov_b32 s{sKd+3}, 0x20000
s_mov_b32 s{sVd+2}, {0 if OPT['nokv'] else 196608}
s_mov_b32 s{sVd+3}, 0x20000
s_mov_b32 s{sZd+2}, {0 if OPT['nokv'] else 196608}
s_mov_b32 s{sZd+3}, 0x20000
s_waitcnt lgkmcnt(0)
s_mul_i32 s{sT2}, s{sB}, 143360
s_add_u32 s{sXd}, s4, s{sT2}
s_addc_u32 s{sXd+1}, s5, 0
s_mul_i32 s{sT2}, s{sT1}, 43008
s_add_u32 s{sT2}, s{sT2}, {OPT['wsoff'] << 20}
s_add_u32 s{sOd}, s28, s{sT2}
s_addc_u32 s{sOd+1}, s29, 0
s_add_u32 s{sWd}, s10, s{sWOFF}
s_addc_u32 s{sWd+1}, s11, 0
s_add_u32 s{sKd}, s6, s{sKVOFF}
s_addc_u32 s{sKd+1}, s7, 0
s_add_u32 s{sVd}, s8, s{sKVOFF}
s_addc_u32 s{sVd+1}, s9, 0
""")
    stamp(p, 0); stamp(p, 1, real=True)
    if OPT["prio"]:
        e(f"""
s_cmp_ge_u32 s2, 256
s_cbranch_scc1 k1_noprio
s_setprio {OPT['prio']}
k1_noprio:
""")
    e(f"""
s_cmp_eq_u32 s{sWAVE}, 3
s_cbranch_scc1 k1_light
""")

    def path(nrt, tag):
        light = nrt == 1
        g.vq = []; g.lq = []; g.pend = []; g.issued = {}; g.issued_kind = {}; g.nrt = nrt
        def dma_tile(kind, slot, tg, wrel=None):
            if kind == "W": pat, srd, so, fl = PW, sWd, sWSO, OPT["w"]
            elif kind == "K": pat, srd, so, fl = PKV, sKd, sKSO, OPT["kv"]
            elif kind == "Z": pat, srd, so, fl = PKV, sZd, sKSO, OPT["kv"]
            else: pat, srd, so, fl = PKV, sVd, sVSO, OPT["kv"]
            out = []
            for ii in range(3):
                def f(ii=ii):
                    soi = so
                    if kind == "Z":
                        soi = sZSO
                        if ii == 0:
                            e(f"s_cmp_eq_u32 s{sCTR}, 0")
                            e(f"s_cselect_b64 s[{sZd}:{sZd+1}], s[{sKd}:{sKd+1}], s[{sVd}:{sVd+1}]")
                            e(f"s_cselect_b32 s{sZSO}, s{sKSO}, s{sVSO}")
                    if ii == 0:
                        e(f"s_add_u32 m0, s{sLW}, {slot*TILE}")
                    if wrel is not None:
                        soi = sT1
                        if ii == 0: e(f"s_add_u32 s{sT1}, s{so}, {wrel*32*12288}")
                    elif ii == 0:
                        e("s_nop 0")
                    off = f"offset:{ii*1024} " if ii else ""
                    g.vm(tg, f"buffer_load_dwordx4 v{pat[ii]}, s[{srd}:{srd+3}], s{soi} offen {off}{fl} lds")
                    if ii == 2 and wrel is None:
                        e(f"s_add_u32 s{so}, s{so}, {32*12288 if kind == 'W' else TILE}")
                out.append(f)
            return out
        def dma_x(par, tg):
            out = []
            n = 2 * nrt
            for q in range(n):
                def f(q=q):
                    if q == 0:
                        if light: e(f"s_mov_b32 m0, {6*TILE + par*2048}")
                        else: e(f"s_add_u32 m0, s{sXM}, {XSLOT[par]*TILE}")
                    if q == 0:
                        e("s_nop 0"); so = sXSO
                    else:
                        e(f"s_add_u32 s{sT2}, s{sXSO}, {q*(10240-1024)}"); so = sT2
                    off = f"offset:{q*1024} " if q else ""
                    g.vm(tg, f"buffer_load_dwordx4 v{PX}, s[{sXd}:{sXd+3}], s{so} offen {off}{OPT['x']} lds")
                    if q == n - 1: e(f"s_add_u32 s{sXSO}, s{sXSO}, 128")
                out.append(f)
            return out
        def rd(kind, slot, f, tg, kregs=None):
            base = slot * TILE
            if kind == "K":
                kt, j = divmod(f, 6)
                regs = kregs or KA
                b = base - (0 if kregs else KBIAS)
                g.ld(tg, f"ds_read_b128 {v(FR(f),4)}, v{regs[j&1]} offset:{b+kt*6144+(j>>1)*128}")
            else:
                hfo = 6144 if kind == "V" else 1536
                regs = VA if kind == "V" else WA
                for hf in range(2):
                    g.ld(tg, f"ds_read_b64_tr_b16 {v(FR(f)+2*hf,2)}, v{regs[f&3]} offset:{base+(f>>2)*128+hf*hfo}")
        def rdx(i):
            par = (i >> 1) & 1
            for rt in range(nrt):
                off = par * 2048 if light else XSLOT[par] * TILE + rt * 2048
                g.ld(f"x{i}", f"ds_read_b128 {v(XF(i&1,rt),4)}, v{XA[i&1]} offset:{off}")
        def mfma(d, a, b, c):
            if not OPT["nomf"]:
                e(f"v_mfma_f32_16x16x32_bf16 {v(d,4)}, {v(a,4)}, {v(b,4)}, {c if c == '0' else v(c,4)}")
        def step(key, kind, slot, tg, mf, nxt=None, waits=(), issue=(), valu=(), kregs=None, barrier=True):
            valu = list(valu)
            per = [len(valu) * (f + 1) // 12 - len(valu) * f // 12 for f in range(12)]
            for f in range(12):
                if f == 12 - LEAD and barrier:
                    if waits: g.wait("vm", key + "b", waits)
                    e("s_barrier")
                    g.pend += list(issue)
                    if nxt and nxt[3] is not None: rdx(nxt[3])
                if f + LEAD < 12: rd(kind, slot, f + LEAD, f"{tg}f{f+LEAD}", kregs)
                elif nxt: rd(nxt[0], nxt[1], f + LEAD - 12, f"{nxt[2]}f{f+LEAD-12}", nxt[4])
                g.drain(1)
                if not (OPT["w2"] and f % 2 == 1):
                    ff = min(11, f + 1) if OPT["w2"] else f
                    g.wait("lg", f"{key}{f}", [f"{tg}f{x}" for x in range(f, ff + 1)])
                vs = [valu.pop(0) for _ in range(per[f])]
                mf(f, vs)
        def mf_acc(bs, first):
            def m(f, vs):
                for rt in range(nrt):
                    mfma(ACC(rt, f), FR(f), bs(rt), "0" if first else ACC(rt, f))
                for x in vs: e(x)
            return m
        def mf_qk(par, zero):
            def m(f, vs):
                kt, j = divmod(f, 6)
                h = (len(vs) + 1) // 2
                for rt in range(nrt):
                    c = ("0" if zero else NEGM(rt)) if j == 0 else S(par, rt, kt)
                    mfma(S(par, rt, kt), FR(f), Q(rt, j), c)
                    for x in (vs[:h] if rt == 0 and nrt == 2 else (vs[h:] if nrt == 2 else vs)): e(x)
            return m
        def mf_pv(first):
            def m(f, vs):
                for rt in range(nrt):
                    mfma(ACC(rt, f), FR(f), P(rt), "0" if first else ACC(rt, f))
                if f == 5:
                    for rt in range(nrt):
                        mfma(LSUM(rt), ONES, P(rt), "0" if first else LSUM(rt))
                for x in vs: e(x)
            return m
        def sm(par):
            out = []
            k = 0
            for rt in range(nrt):
                for i in range(4):
                    a, b = T[(2 * k) % 6], T[(2 * k + 1) % 6]; k += 1
                    r = S(par, rt) + 2 * i
                    out.append((f"v_exp_f32 v{a}, v{r}", f"v_exp_f32 v{b}, v{r+1}", f"v_cvt_pk_bf16_f32 v{P(rt)+i}, v{a}, v{b}"))
            seq = []
            for n, (x, y, z) in enumerate(out):
                seq += [x, y]
                if n > 0: seq.append(out[n - 1][2])
            seq.append(out[-1][2])
            return seq
        def sm_check(par, key):
            t = T[6]
            if nrt == 2:
                e(f"v_or3_b32 v{t}, v{P(0)}, v{P(0)+1}, v{P(0)+2}")
                e(f"v_or3_b32 v{t}, v{t}, v{P(0)+3}, v{P(1)}")
                e(f"v_or3_b32 v{t}, v{t}, v{P(1)+1}, v{P(1)+2}")
                e(f"v_or_b32 v{t}, v{t}, v{P(1)+3}")
            else:
                e(f"v_or3_b32 v{t}, v{P(0)}, v{P(0)+1}, v{P(0)+2}")
                e(f"v_or_b32 v{t}, v{t}, v{P(0)+3}")
            e(f"v_and_b32 v{t}, s{sBIT}, v{t}")
            e(f"v_cmp_ne_u32 vcc, 0, v{t}")
            e(f"s_cbranch_vccz k1_ok{key}_{tag}")
            e(f"s_call_b64 s[{sRET}:{sRET+1}], k1_rare{par}_{tag}")
            g.label(f"k1_ok{key}_{tag}")
        def rowmax(par, rt, t, t2):
            r = S(par, rt)
            e(f"""
v_max3_f32 v{t}, v{r}, v{r+1}, v{r+2}
v_max3_f32 v{t}, v{t}, v{r+3}, v{r+4}
v_max3_f32 v{t}, v{t}, v{r+5}, v{r+6}
v_max_f32 v{t}, v{t}, v{r+7}
v_mov_b32 v{t2}, v{t}
v_permlane32_swap_b32 v{t2}, v{t}
v_max_f32 v{t}, v{t}, v{t2}
v_mov_b32 v{t2}, v{t}
v_permlane16_swap_b32 v{t2}, v{t}
v_max_f32 v{t}, v{t}, v{t2}
v_add_f32 v{t}, {hex(f2u(7.0))}, v{t}
""")
        def prefetch(t0, t1, d):
            e(f"""
s_lshl_b32 s{sT1}, s{sWAVE}, 6
v_lshrrev_b32 v{t0}, 4, v{OOFF}
v_add_u32 v{t0}, s{sT1}, v{t0}
v_mul_u32_u24 v{t1}, 171, v{t0}
v_lshrrev_b32 v{t1}, 10, v{t1}
v_mul_u32_u24 v{d}, 6, v{t1}
v_sub_u32 v{t0}, v{t0}, v{d}
v_lshlrev_b32 v{t0}, 6, v{t0}
v_mul_u32_u24 v{t1}, 12288, v{t1}
v_add_u32 v{t0}, v{t0}, v{t1}
s_mul_i32 s{sT2}, s{sB}, {40*12288}
""")
            g.vm("pf", f"buffer_load_dword v{d}, v{t0}, s[{sWd}:{sWd+3}], s{sT2} offen")
            e(f"""
v_lshlrev_b32 v{t1}, 2, v{OOFF}
s_and_b32 s{sT2}, s{sH}, 3
s_mul_i32 s{sT2}, s{sT2}, 35840
s_mul_i32 s{sT1}, s{sWAVE}, {140*64}
s_add_u32 s{sT2}, s{sT2}, s{sT1}
""")
            for k in range(3):
                g.vm("pf", f"buffer_load_dword v{d}, v{t1}, s[{sXd}:{sXd+3}], s{sT2} offen")
                if k < 2: e(f"s_add_u32 s{sT2}, s{sT2}, 4096")

        for f in dma_x(0, "X0") + dma_tile("W", WSLOT[2], "W2", 2) + dma_x(1, "X1") + dma_tile("W", WSLOT[0], "W0", 0) + dma_tile("W", WSLOT[1], "W1", 1): f()
        e(f"s_add_u32 s{sWSO}, s{sWSO}, {3*32*12288}")
        nst = 6 * nrt
        if OPT["pf"]:
            prefetch(20, 21, T[7]); nst -= 4
        for k in range(nst):
            g.vm("st", f"buffer_load_dword v{T[7]}, v{OOFF}, s[{sXd}:{sXd+3}], 0 offen")
        e(f"""
v_lshrrev_b32 v8, 1, v3
v_and_b32 v8, 3, v8
v_lshlrev_b32 v8, 1, v8
v_xor_b32 v8, v4, v8
v_lshlrev_b32 v8, 4, v8
v_mul_u32_u24 v9, 384, v3
v_add_u32 v9, v8, v9
v_add_u32 v{KA[0]}, {KBIAS}, v9
v_xor_b32 v{KA[1]}, 64, v{KA[0]}
v_lshl_add_u32 v9, v3, 7, v8
v_add_u32 v{XA[0]}, {'s%d' % sXM if not light else 6*TILE}, v9
v_xor_b32 v{XA[1]}, 64, v{XA[0]}
v_lshrrev_b32 v8, 1, v5
v_and_b32 v8, 3, v8
v_lshlrev_b32 v8, 5, v8
v_mul_u32_u24 v9, 384, v5
v_add_u32 v8, v8, v9
v_lshl_add_u32 v{VA[0]}, v7, 3, v8
v_xor_b32 v{VA[1]}, 32, v{VA[0]}
v_xor_b32 v{VA[2]}, 64, v{VA[0]}
v_xor_b32 v{VA[3]}, 96, v{VA[0]}
v_lshl_add_u32 v8, v4, 3, v6
v_mul_u32_u24 v9, 384, v8
v_lshrrev_b32 v8, 1, v6
v_and_b32 v10, 1, v4
v_lshl_add_u32 v8, v10, 2, v8
v_xor_b32 v8, v7, v8
v_lshl_add_u32 v9, v8, 4, v9
v_and_b32 v10, 1, v7
v_lshl_add_u32 v{WA[0]}, v10, 3, v9
v_xor_b32 v{WA[1]}, 8, v{WA[0]}
v_xor_b32 v{WA[2]}, 64, v{WA[0]}
v_xor_b32 v{WA[3]}, 72, v{WA[0]}
s_mov_b32 s{sMASK}, 0xffff0000
s_mov_b32 s{sMASK+1}, 0xffff0000
s_mov_b32 s{sC}, {hex(f2u(192 ** -0.5 * math.log2(math.e)))}
s_mov_b32 s{sC+1}, s{sC}
s_mov_b32 s{sBIT}, 0x40004000
s_lshl_b32 s{sOB}, s{sWAVE}, 11
s_mov_b32 s{sUNIT}, 0
""")
        for i in range(4): e(f"v_mov_b32 v{ONES+i}, 0x3f803f80")

        K0REG = [T[0], T[1]]
        for unit in range(2):
            if unit == 1: g.mute += 1
            g.label(f"k1_unit_{tag}")
            g.wait("vm", "u0", ["W0", "X0"])
            e("s_barrier")
            rdx(0)
            for f in range(LEAD): rd("W", WSLOT[0], f, f"W0f{f}")
            def wstep(i, key):
                issue = []
                if i + 3 < 20:
                    if i % 2 == 1 and (i + 3) // 2 < 10: issue += dma_x(((i + 3) // 2) & 1, f"X{(i+3)//2}")
                    issue += dma_tile("W", WSLOT[(i + 3) % 4], f"W{i+3}")
                elif i == 17: issue += dma_tile("K", 0, "A0")
                elif i == 18: issue += dma_tile("K", 1, "A1") + (dma_tile("V", 2, "A2") if KL >= 4 else [])
                elif i == 19: issue += dma_tile("K", 3, "A3") if KL >= 4 else (dma_tile("V", 2, "A2") if KL == 3 else [])
                if i < 19:
                    waits = [f"W{i+1}"] + ([f"X{(i+1)//2}"] if (i + 1) % 2 == 0 else [])
                    nxt = ("W", WSLOT[(i + 1) % 4], f"W{i+1}", i + 1, None)
                else:
                    waits = ["A0"]
                    nxt = ("K", 0, "A0", None, K0REG)
                    e(f"v_subrev_u32 v{K0REG[0]}, {KBIAS}, v{KA[0]}")
                    e(f"v_subrev_u32 v{K0REG[1]}, {KBIAS}, v{KA[1]}")
                step(key, "W", WSLOT[i % 4], f"W{i}", mf_acc(lambda rt: XF(i & 1, rt), i == 0), nxt, waits, issue)
            for i in range(4): wstep(i, f"wa{i}")
            e(f"s_mov_b32 s{sCTR}, 0")
            for trip in range(3):
                if trip: g.mute += 1
                g.label(f"k1_wloop_{tag}")
                for i in range(4): wstep(4 + 4 * trip + i, f"wb{i}")
                e(f"s_add_u32 s{sCTR}, s{sCTR}, 1")
                e(f"s_cmp_lt_u32 s{sCTR}, 3")
                e(f"s_cbranch_scc1 k1_wloop_{tag}")
                if trip: g.mute -= 1
            for i in range(16, 20): wstep(i, f"wc{i}")
            if not g.mute: stamp(p, 2, dyn=sUNIT)
            g.drain(9)
            e(f"""
s_mul_i32 s{sT2}, s{sB}, 143360
s_add_u32 s{sXd}, s14, s{sT2}
s_addc_u32 s{sXd+1}, s15, 0
s_add_u32 s{sWd}, s20, s{sWOFF}
s_addc_u32 s{sWd+1}, s21, 0
s_mul_i32 s{sWSO}, s{sWAVE}, {8*12288}
s_mul_i32 s{sXSO}, s{sWAVE}, {32*1280}
s_cmp_eq_u32 s{sUNIT}, 0
s_cselect_b32 s{sXd+2}, s{sXd+2}, 0
s_cselect_b32 s{sWd+2}, s{sWd+2}, 0
""")
            for rt in range(nrt):
                for i in range(0, 48, 2):
                    a = ACC(rt, 0) + i
                    e(f"v_pk_mul_f32 {v(a,2)}, {v(a,2)}, s[{sC}:{sC+1}]")
                for j in range(6):
                    a = ACC(rt, 2 * j)
                    for i in range(4): e(f"v_cvt_pk_bf16_f32 v{Q(rt,j)+i}, v{a+2*i}, v{a+2*i+1}")
            e(f"s_mov_b64 exec, s[{sMASK}:{sMASK+1}]")
            for rt in range(nrt):
                for j in range(6):
                    e(f"v_swap_b32 v{Q(rt,j)}, v{Q(rt,j)+2}")
                    e(f"v_swap_b32 v{Q(rt,j)+1}, v{Q(rt,j)+3}")
            e("s_mov_b64 exec, -1")
            e("s_nop 3")
            def kind_of(a): return "K" if (a == 0 or (a % 2 == 1 and a < 31)) else "V"
            def att_issue(a):
                n = a + KL
                if a == 0 and KL == 5: return dma_tile("V", 4, "A4") + dma_tile("K", 5, "A5")
                if KL == 5 and a in (14, 26): return dma_tile("Z", n % 6, f"A{n}")
                if n < 32 and a >= 27: return dma_tile(kind_of(n), n % 6, f"A{n}") + att_w(a)
                if n < 32: return dma_tile(kind_of(n), n % 6, f"A{n}")
                return att_w(a)
            def att_w(a):
                if a == 27: return dma_x(0, "X0")
                if a == 28: return dma_tile("W", WSLOT[2], "W2", 2)
                if a == 30: return dma_x(1, "X1")
                if a == 31: return dma_tile("W", WSLOT[0], "W0", 0)
                return []
            def nxt_of(a):
                return (kind_of(a + 1), (a + 1) % 6, f"A{a+1}", None, None) if a < 31 else None
            step("a0", "K", 0, "A0", mf_qk(0, True), nxt_of(0), ["A1"], att_issue(0), kregs=K0REG)
            for rt in range(nrt):
                rowmax(0, rt, T[2], T[3])
                for i in range(4): e(f"v_sub_f32 v{NEGM(rt)+i}, 0, v{T[2]}")
                for i in range(8): e(f"v_sub_f32 v{S(0,rt)+i}, v{S(0,rt)+i}, v{T[2]}")
            def iteration(t, key):
                a = 2 * t + 1
                step(key + "q", "K", a % 6, f"A{a}", mf_qk((t + 1) & 1, False), nxt_of(a), [f"A{a+1}"], att_issue(a), valu=sm(t & 1))
                sm_check(t & 1, key)
                a += 1
                step(key + "p", "V", a % 6, f"A{a}", mf_pv(t == 0), nxt_of(a), [f"A{a+1}"], att_issue(a))
            iteration(0, "i0")
            if OPT["pf"]: prefetch(T[0], T[1], T[7])
            e(f"s_mov_b32 s{sCTR}, 0")
            for trip in range(2):
                if trip: g.mute += 1
                g.label(f"k1_aloop_{tag}")
                for i in range(6): iteration(1 + 6 * trip + i, f"l{i}")
                e(f"s_add_u32 s{sCTR}, s{sCTR}, 1")
                e(f"s_cmp_lt_u32 s{sCTR}, 2")
                e(f"s_cbranch_scc1 k1_aloop_{tag}")
                if trip: g.mute -= 1
            iteration(13, "i13"); iteration(14, "i14")
            for x in sm(1): e(x)
            sm_check(1, "i15")
            step("i15p", "V", 31 % 6, "A31", mf_pv(False), None, [], att_issue(31))
            if not g.mute: stamp(p, 3, dyn=sUNIT)
            g.drain(9)
            e("s_barrier")
            for f in dma_tile("W", WSLOT[1], "W1", 1): f()
            e(f"""
s_add_u32 s{sWSO}, s{sWSO}, {3*32*12288}
s_add_u32 s{sKd}, s16, s{sKVOFF}
s_addc_u32 s{sKd+1}, s17, 0
s_add_u32 s{sVd}, s18, s{sKVOFF}
s_addc_u32 s{sVd+1}, s19, 0
s_mov_b32 s{sKSO}, s{sLW}
s_mov_b32 s{sVSO}, s{sLW}
""")
            for rt in range(nrt):
                e(f"v_rcp_f32 v{T[2*rt]}, v{LSUM(rt)}")
                e(f"v_rcp_f32 v{T[2*rt+1]}, v{LSUM(rt)}")
            for j in range(6):
                e(f"s_add_u32 s{sSO}, s{sOB}, {j*7168}")
                for rt in range(nrt):
                    a = ACC(rt, 2 * j)
                    for i in range(0, 8, 2): e(f"v_pk_mul_f32 {v(a+i,2)}, {v(a+i,2)}, {v(T[2*rt],2)}")
                    d = FR(j * 2 + rt)
                    for i in range(4): e(f"v_cvt_pk_bf16_f32 v{d+i}, v{a+2*i}, v{a+2*i+1}")
                    g.vm("st", f"buffer_store_dwordx4 {v(d,4)}, v{OOFF}, s[{sOd}:{sOd+3}], s{sSO} offen offset:{rt*1024} {OPT['ost']}")
            if not g.mute: stamp(p, 4, dyn=sUNIT)
            e(f"""
s_add_u32 s{sOd}, s{sOd}, {512*43008}
s_addc_u32 s{sOd+1}, s{sOd+1}, 0
s_add_u32 s{sUNIT}, s{sUNIT}, 1
s_cmp_lt_u32 s{sUNIT}, 2
s_cbranch_scc1 k1_unit_{tag}
""")
            if unit == 1: g.mute -= 1
        e("s_waitcnt vmcnt(0)")
        stamp(p, 10); stamp(p, 11, real=True)
        if OPT["prof"]:
            e("s_getreg_b32 s92, hwreg(HW_REG_HW_ID)")
            e("s_getreg_b32 s93, hwreg(HW_REG_XCC_ID)")
        dump_stamps(p, 28, 64 << 20, (2, sWAVE), 4)
        e("s_endpgm")
        for par in range(2):
            g.label(f"k1_rare{par}_{tag}")
            for rt in range(nrt):
                t, t2 = T[6], T[5]
                rowmax(par, rt, t, t2)
                e(f"v_max_f32 v{t}, 0, v{t}")
                for i in range(4): e(f"v_sub_f32 v{NEGM(rt)+i}, v{NEGM(rt)+i}, v{t}")
                for pp in range(2):
                    for i in range(8): e(f"v_sub_f32 v{S(pp,rt)+i}, v{S(pp,rt)+i}, v{t}")
                e(f"v_exp_f32 v{t}, -v{t}")
                for i in range(4): e(f"v_mul_f32 v{LSUM(rt)+i}, v{LSUM(rt)+i}, v{t}")
                for i in range(48): e(f"v_mul_f32 v{ACC(rt,0)+i}, v{ACC(rt,0)+i}, v{t}")
            for x in sm(par): e(x)
            e(f"s_setpc_b64 s[{sRET}:{sRET+1}]")
    path(2, "h")
    rec_h = dict(g.rec); g.rec = {}
    g.label("k1_light")
    g.needs = needs.get("light", {})
    path(1, "l")
    e("""
k1_end:
s_endpgm
""")
    out = dict(rec_h); out["light"] = g.rec
    return p, out

def main():
    _, rec = build({})
    a, rec2 = build(rec)
    a, rec3 = build(rec2)
    assert rec3 == rec2
    b = gen1k2.k2()
    def drop(pred): a.L[:] = [l for l in a.L if not pred(l)]
    if OPT["nord"]: drop(lambda l: l.startswith("ds_read"))
    if OPT["nobar"]: drop(lambda l: l.startswith("s_barrier"))
    if OPT["novm"]: drop(lambda l: l.startswith("buffer_load"))
    n1 = fix_hazards(a.L); n2 = fix_hazards(b.L)
    print("nops inserted", n1, n2, "instrs", len(a.L), len(b.L), file=sys.stderr)
    hdr = open("cdna_kernels/" + NAME + ".s.ref").read().split("; Override launch")[0]
    out = hdr
    out += f"; @launch kernel=attn_kernel grid=(512,1,1) block=(256,1,1) lds={LDS_BYTES}\n"
    out += f"; @launch kernel=oproj_kernel grid=(256,1,1) block=(512,1,1) lds=143360\n"
    out += '.amdgcn_target "amdgcn-amd-amdhsa--gfx950"\n.text\n'
    out += a.text() + b.text()
    out += '.section .rodata,"a"\n.p2align 6\n' + gen1k2.desc("attn_kernel") + ".p2align 6\n" + gen1k2.desc("oproj_kernel")
    open(sys.argv[1], "w").write(out)
main()
```

```python
import sys, math, struct, copy
sys.path.insert(0, "work")
from asmlib import *

NAME = "concat_heads__mha_block_cached__gqa_block_cached__near_ridge"
OPT = dict(kv="nt", w="", x="", wo="", st="", rd="", prof=0, prio0=0, prio1=0, touch=1, nox=0, now=0, nokv=0, nomf=0,
           novm=0, lead=4, bp="8.18.28.36.44", map=0)
for a in sys.argv[2:]:
    k, val = a.split("=")
    OPT[k] = int(val) if val.lstrip("-").isdigit() else (val if k == "bp" else val.replace("+", " ").replace("-", ""))
TILE = 12288
T1R = 4 * TILE
QO = 8 * TILE
SPILL = QO + 43008
SPARE = SPILL + 14336
LDS_BYTES = SPARE + 2048
PART_CU = 4 * 35 * 1024
LEAD = OPT["lead"]
BP = [int(x) for x in OPT["bp"].split(".")]
def f2u(f): return struct.unpack("<I", struct.pack("<f", f))[0]

sKd, sVd, sWd, sOd, sXd, sPd = 32, 36, 40, 44, 48, 76
sWAVE, sB, sQUAD, sSLOT, sCTR, sW4 = 52, 53, 54, 55, 57, 56
sT1, sT2, sT3 = 62, 63, 61
sKSO, sVSO, sLW = 58, 59, 60
sWB, sOB, sXB, sXM, sSTR, sXF = 58, 59, 70, 71, 72, 73
sC, sBIT = 66, 68
sRET = 30

def stamp(e, k, real=False):
    if not OPT["prof"]: return
    e(f"s_mem{'real' if real else ''}time s[100:101]")
    e("s_waitcnt lgkmcnt(0)")
    e(f"s_mov_b32 s{80+k}, s100")
def stamp_slot(e):
    if not OPT["prof"]: return
    e("s_memtime s[100:101]")
    e("s_waitcnt lgkmcnt(0)")
    for k in range(0, 7):
        e(f"s_cmp_eq_u32 s{sSLOT}, {k}")
        e(f"s_cselect_b32 s{82+k}, s100, s{82+k}")
def dump_stamps(e, wsreg, base, nw):
    if not OPT["prof"]: return
    e(f"""
s_mul_i32 s100, s2, {nw}
s_add_u32 s100, s100, s{sWAVE}
s_lshl_b32 s100, s100, 6
s_add_u32 s100, s100, {base}
s_add_u32 s96, s{wsreg}, s100
s_addc_u32 s97, s{wsreg+1}, 0
s_mov_b32 s98, 64
s_mov_b32 s99, 0x20000
v_mov_b32 v1, 0
""")
    for k in range(16):
        e(f"v_mov_b32 v0, s{80+k}")
        e(f"buffer_store_dword v0, v1, s[96:99], 0 offen offset:{k*4}")
    e("s_waitcnt vmcnt(0)")

class Gen:
    def __init__(self, prog, needs):
        self.p = prog; self.needs = needs; self.rec = {}
        self.mute = 0
        self.vq = []; self.lq = []; self.pend = []; self.issued = {}
        self.nosim = 0
    def e(self, s):
        if not self.mute: self.p(s)
    def label(self, n):
        if not self.mute: self.p.label(n)
    def wait(self, kind, key, tags):
        q = self.vq if kind == "vm" else self.lq
        for t in tags:
            assert self.issued.pop(t, 0) > 0, (t, key)
        idx = [i for i, t in enumerate(q) if t in tags]
        n = len(q) - 1 - max(idx) if idx else 999
        if n != 999: n = min(n, 63 if kind == "vm" else 15)
        k = (kind, key)
        self.rec[k] = min(self.rec.get(k, 999), n)
        val = self.needs.get(k, n)
        if val == 999: return
        self.e(f"s_waitcnt {'vmcnt' if kind == 'vm' else 'lgkmcnt'}({val})")
        del q[:len(q) - val if val < len(q) else 0]
    def vm(self, tag, text):
        self.e(text); self.vq.append(tag); self.issued[tag] = self.issued.get(tag, 0) + 1
    def ld(self, tag, text):
        self.e(text); self.lq.append(tag); self.issued[tag] = self.issued.get(tag, 0) + 1
    def drain(self, n=1):
        for _ in range(n):
            if self.pend: self.pend.pop(0)()
    def optional(self, taken, fn):
        if taken: fn()
        elif not self.mute:
            st = (list(self.vq), list(self.lq), dict(self.issued))
            fn()
            self.vq[:], self.lq[:] = st[0], st[1]; self.issued = st[2]

def mfma(e, d, a, b, c):
    if not OPT["nomf"]:
        e(f"v_mfma_f32_16x16x32_bf16 {v(d,4)}, {v(a,4)}, {v(b,4)}, {c if c == '0' else v(c,4)}")

def t0_path(p, needs, nrt, tag):
    g = Gen(p, needs); e = g.e
    def ACC(rt, t): return rt * 48 + t * 4
    def Q(rt, j): return 96 + rt * 24 + j * 4
    def S(par, rt, kt=0): return 144 + par * 16 + rt * 8 + kt * 4
    def P(rt): return 176 + rt * 4
    def NEGM(rt): return 184 + rt * 4
    def LSUM(rt): return 192 + rt * 4
    def STG(rt, j): return 144 + (rt * 6 + j) * 4
    ONES = 200
    FR0 = 204; NFR = 6
    def FR(f): return FR0 + (f % NFR) * 4
    KA = [236, 237]; VA = [238, 239, 240, 241]; PKV = [242, 243, 244]; QOA = 245
    T = list(range(246, 254)); JUNK = 254
    def dma_tile(kind, slot, tg):
        srd, so = (sKd, sKSO) if kind == "K" else (sVd, sVSO)
        out = []
        for ii in range(3):
            def f(ii=ii):
                if ii == 0:
                    e(f"s_add_u32 m0, s{sLW}, {slot*TILE}"); e("s_nop 0")
                off = f"offset:{ii*1024} " if ii else ""
                g.vm(tg, f"buffer_load_dwordx4 v{PKV[ii]}, s[{srd}:{srd+3}], s{so} offen {off}{OPT['kv']} lds")
                if ii == 2: e(f"s_add_u32 s{so}, s{so}, {TILE}")
            out.append(f)
        return out
    def kind_of(a):
        a %= 32
        return "K" if (a == 0 or (a % 2 == 1 and a < 31)) else "V"
    def rd(a, f):
        kind = kind_of(a); base = (a % 4) * TILE; tg = f"A{a%32}f{f}"
        if kind == "K":
            kt, j = divmod(f, 6)
            g.ld(tg, f"ds_read_b128 {v(FR(f),4)}, v{KA[j&1]} offset:{base+kt*6144+(j>>1)*128}")
        else:
            for hf in range(2):
                g.ld(tg, f"ds_read_b64_tr_b16 {v(FR(f)+2*hf,2)}, v{VA[f&3]} offset:{base+(f>>2)*128+hf*6144}")
    def roles(pos):
        pub = [k for k in range(1, 5) if max(b for b in BP if b <= 12 * k - LEAD) == pos]
        fr = []
        for k in range(-1, 3):
            c = [b for b in BP if b >= 12 * (k + 1)]
            if c and min(c) == pos: fr.append(k)
        return pub, fr
    assert sorted(sum((roles(b)[0] for b in BP), [])) == [1, 2, 3, 4] and sorted(sum((roles(b)[1] for b in BP), [])) == [-1, 0, 1, 2]
    def step(key, a, mf, valu=(), last=False, extra=None):
        valu = list(valu)
        per = [len(valu) * (f + 1) // 12 - len(valu) * f // 12 for f in range(12)]
        g0 = a - a % 4
        for f in range(12):
            pos = (a % 4) * 12 + f
            if extra and f in extra: extra[f]()
            if pos in BP:
                pub, fr = roles(pos)
                tags = [f"A{(g0+k)%32}" for k in pub if not (last and k == 4)]
                if tags: g.wait("vm", f"{key}b{f}", tags)
                e("s_barrier")
                for k in fr: g.pend += dma_tile(kind_of(g0 + k + 4), (g0 + k) % 4, f"A{(g0+k+4)%32}")
            if f + LEAD < 12: rd(a, f + LEAD)
            elif not last: rd(a + 1, f + LEAD - 12)
            g.drain(1)
            g.wait("lg", f"{key}{f}", [f"A{a}f{f}"])
            mf(f, [valu.pop(0) for _ in range(per[f])])
    def mf_qk(par, zero):
        def m(f, vs):
            kt, j = divmod(f, 6)
            h = (len(vs) + 1) // 2
            for rt in range(nrt):
                c = ("0" if zero else NEGM(rt)) if j == 0 else S(par, rt, kt)
                mfma(e, S(par, rt, kt), FR(f), Q(rt, j), c)
                for x in (vs[:h] if rt == 0 and nrt == 2 else (vs[h:] if nrt == 2 else vs)): e(x)
        return m
    def mf_pv(first):
        def m(f, vs):
            for rt in range(nrt): mfma(e, ACC(rt, f), FR(f), P(rt), "0" if first else ACC(rt, f))
            if f == 5:
                for rt in range(nrt): mfma(e, LSUM(rt), ONES, P(rt), "0" if first else LSUM(rt))
        return m
    def sm(par):
        out = []; k = 0
        for rt in range(nrt):
            for i in range(4):
                a, b = T[(2 * k) % 6], T[(2 * k + 1) % 6]; k += 1
                r = S(par, rt) + 2 * i
                out.append((f"v_exp_f32 v{a}, v{r}", f"v_exp_f32 v{b}, v{r+1}", f"v_cvt_pk_bf16_f32 v{P(rt)+i}, v{a}, v{b}"))
        seq = []
        for n, (x, y, z) in enumerate(out):
            seq += [x, y]
            if n > 0: seq.append(out[n - 1][2])
        seq.append(out[-1][2])
        return seq
    def sm_check(par, key):
        t = T[6]
        e(f"v_or3_b32 v{t}, v{P(0)}, v{P(0)+1}, v{P(0)+2}")
        if nrt == 2:
            e(f"v_or3_b32 v{t}, v{t}, v{P(0)+3}, v{P(1)}")
            e(f"v_or3_b32 v{t}, v{t}, v{P(1)+1}, v{P(1)+2}")
            e(f"v_or_b32 v{t}, v{t}, v{P(1)+3}")
        else:
            e(f"v_or_b32 v{t}, v{t}, v{P(0)+3}")
        e(f"v_and_b32 v{t}, s{sBIT}, v{t}")
        e(f"v_cmp_ne_u32 vcc, 0, v{t}")
        e(f"s_cbranch_vccz t0_ok{key}_{tag}")
        e(f"s_call_b64 s[{sRET}:{sRET+1}], t0_rare{par}_{tag}")
        g.label(f"t0_ok{key}_{tag}")
    def rowmax(par, rt, t, t2):
        r = S(par, rt)
        e(f"""
v_max3_f32 v{t}, v{r}, v{r+1}, v{r+2}
v_max3_f32 v{t}, v{t}, v{r+3}, v{r+4}
v_max3_f32 v{t}, v{t}, v{r+5}, v{r+6}
v_max_f32 v{t}, v{t}, v{r+7}
v_mov_b32 v{t2}, v{t}
v_permlane32_swap_b32 v{t2}, v{t}
v_max_f32 v{t}, v{t}, v{t2}
v_mov_b32 v{t2}, v{t}
v_permlane16_swap_b32 v{t2}, v{t}
v_max_f32 v{t}, v{t}, v{t2}
v_add_f32 v{t}, {hex(f2u(7.0))}, v{t}
""")
    cnt = [0]
    def touch_w(hq, ho):
        nsh = 16 if OPT["map"] == 0 else 8
        cnt[0] += 1
        lab = f"t0_tw{cnt[0]}_{tag}"
        e(f"""
s_and_b32 s{sT1}, s{sB}, {nsh-1}
s_lshl_b32 s{sT1}, s{sT1}, 1
s_and_b32 s{sT2}, s{sWAVE}, 1
s_add_u32 s{sT1}, s{sT1}, s{sT2}
v_lshrrev_b32 v{T[0]}, 4, v{QOA}
v_and_b32 v{T[0]}, 63, v{T[0]}
""")
        for rep in range(16 // nsh):
            if nrt == 2:
                e(f"s_cmp_ge_u32 s{sWAVE}, 2")
                e(f"s_cbranch_scc1 {lab}_o{rep}")
                e(f"""
s_mul_i32 s{sT2}, s{sT1}, {640//(2*nsh)*12288}
s_add_u32 s{sT3}, s{sSLOT}, {hq}
s_mul_i32 s{sT3}, s{sT3}, 384
s_add_u32 s{sT2}, s{sT2}, s{sT3}
s_add_u32 s{sT2}, s{sT2}, {rep*20*12288}
v_mul_u32_u24 v{T[1]}, 43, v{T[0]}
v_lshrrev_b32 v{T[1]}, 7, v{T[1]}
v_mul_u32_u24 v{T[2]}, 3, v{T[1]}
v_sub_u32 v{T[2]}, v{T[0]}, v{T[2]}
v_mul_u32_u24 v{T[1]}, 12288, v{T[1]}
v_lshl_add_u32 v{T[1]}, v{T[2]}, 7, v{T[1]}
buffer_load_dword v{JUNK}, v{T[1]}, s[{sWd}:{sWd+3}], s{sT2} offen
s_branch {lab}_d{rep}
""")
                g.label(f"{lab}_o{rep}")
            e(f"""
s_mul_i32 s{sT2}, s{sT1}, {245760//(2*nsh)}
s_add_u32 s{sT3}, s{sSLOT}, {ho}
s_mul_i32 s{sT3}, s{sT3}, 245760
s_add_u32 s{sT2}, s{sT2}, s{sT3}
s_add_u32 s{sT2}, s{sT2}, {rep*7680}
v_lshlrev_b32 v{T[1]}, 7, v{T[0]}
""")
            g.vm("pf", f"buffer_load_dword v{JUNK}, v{T[1]}, s[{sOd}:{sOd+3}], s{sT2} offen")
            g.label(f"{lab}_d{rep}")

    for q in range(3):
        e(f"""
v_add_u32 v10, {8*q}, v8
v_mul_u32_u24 v11, 43, v10
v_lshrrev_b32 v11, 8, v11
v_and_b32 v14, 3, v11
v_lshlrev_b32 v14, 1, v14
v_xor_b32 v14, v9, v14
v_lshlrev_b32 v14, 4, v14
v_lshl_add_u32 v{PKV[q]}, v8, 7, v14
""")
    e(f"""
s_lshl_b32 s{sT1}, s{sWAVE}, 11
s_add_u32 s{sT1}, s{sT1}, {QO}
v_lshl_add_u32 v{QOA}, v2, 4, s{sT1}
s_mov_b32 s{sSLOT}, 0
""")
    if OPT["touch"]:
        touch_w(0, 1000)
        e(f"""
s_and_b32 s{sT1}, s{sQUAD}, 1
s_mul_i32 s{sT1}, s{sT1}, 71680
s_mul_i32 s{sT2}, s{sWAVE}, {140*128}
s_add_u32 s{sT1}, s{sT1}, s{sT2}
v_lshlrev_b32 v{T[1]}, 7, v2
""")
        for k in range(3):
            g.vm("pf", f"buffer_load_dword v{JUNK}, v{T[1]}, s[{sXd}:{sXd+3}], s{sT1} offen")
            e(f"s_add_u32 s{sT1}, s{sT1}, 8192")
    e(f"""
v_lshrrev_b32 v8, 1, v3
v_and_b32 v8, 3, v8
v_lshlrev_b32 v8, 1, v8
v_xor_b32 v8, v4, v8
v_lshlrev_b32 v8, 4, v8
v_mul_u32_u24 v9, 384, v3
v_add_u32 v{KA[0]}, v8, v9
v_xor_b32 v{KA[1]}, 64, v{KA[0]}
v_lshrrev_b32 v8, 1, v5
v_and_b32 v8, 3, v8
v_lshlrev_b32 v8, 5, v8
v_mul_u32_u24 v9, 384, v5
v_add_u32 v8, v8, v9
v_lshl_add_u32 v{VA[0]}, v7, 3, v8
v_xor_b32 v{VA[1]}, 32, v{VA[0]}
v_xor_b32 v{VA[2]}, 64, v{VA[0]}
v_xor_b32 v{VA[3]}, 96, v{VA[0]}
s_mov_b32 s{sBIT}, 0x40004000
s_mov_b32 s{sKSO}, s{sLW}
s_mov_b32 s{sVSO}, s{sLW}
s_mov_b32 s{sCTR}, 0
""")
    for i in range(4): e(f"v_mov_b32 v{ONES+i}, 0x3f803f80")
    g.label(f"t0_idle_{tag}")
    e(f"""
s_barrier
s_add_u32 s{sCTR}, s{sCTR}, 1
s_cmp_lt_u32 s{sCTR}, 10
s_cbranch_scc1 t0_idle_{tag}
""")
    if OPT["touch"]: touch_w(1, 1000)
    for i in range(8): e("s_barrier")
    for f in dma_tile("K", 0, "A0") + dma_tile("K", 1, "A1") + dma_tile("V", 2, "A2"): f()
    for i in range(3): e("s_barrier")
    e(f"s_mov_b32 s{sSLOT}, 1")

    for unit in range(5):
        if unit >= 1: g.mute += 1
        g.label(f"t0_unit_{tag}")
        if unit < 4: g.wait("vm", "u0", ["A0"])
        else: g.wait("vm", "u0", ["A0"])
        e("s_barrier")
        if not g.mute: stamp_slot(e)
        for j in range(6):
            for rt in range(nrt):
                g.ld("q", f"ds_read_b128 {v(Q(rt,j),4)}, v{QOA} offset:{(j*7+rt)*1024}")
        e(f"s_cmp_eq_u32 s{sSLOT}, 1")
        e(f"s_cbranch_scc1 t0_noo_{tag}")
        e("s_waitcnt lgkmcnt(0)")
        for j in range(6):
            for rt in range(nrt):
                e(f"ds_write_b128 v{QOA}, {v(STG(rt,j),4)} offset:{(j*7+rt)*1024}")
        e(f"s_cmp_eq_u32 s{sSLOT}, 5")
        e(f"s_cbranch_scc1 t0_exit_{tag}")
        g.label(f"t0_noo_{tag}")
        if unit == 4:
            g.mute -= 1; break
        for f in range(LEAD): rd(0, f)
        step("g0a", 0, mf_qk(0, True), extra={1: lambda: e("s_barrier")})
        g.issued.pop("q")
        for rt in range(nrt):
            rowmax(0, rt, T[2], T[3])
            for i in range(4): e(f"v_sub_f32 v{NEGM(rt)+i}, 0, v{T[2]}")
            for i in range(8): e(f"v_sub_f32 v{S(0,rt)+i}, v{S(0,rt)+i}, v{T[2]}")
        def B(t, key):
            step(key, 2 * t + 1, mf_qk((t + 1) & 1, False), valu=sm(t & 1))
            sm_check(t & 1, key)
        def C(t, key, last=False):
            step(key, 2 * t + 2 if t < 15 else 31, mf_pv(t == 0), last=last)
        B(0, "g0b"); C(0, "g0c")
        if OPT["touch"]: touch_w(1, -1)
        B(1, "g0d")
        e(f"s_mov_b32 s{sCTR}, 0")
        for trip in range(6):
            if trip: g.mute += 1
            g.label(f"t0_loop_{tag}")
            gg = trip + 1
            C(2 * gg - 1, "la"); B(2 * gg, "lb"); C(2 * gg, "lc"); B(2 * gg + 1, "ld")
            e(f"s_add_u32 s{sCTR}, s{sCTR}, 1")
            e(f"s_cmp_lt_u32 s{sCTR}, 6")
            e(f"s_cbranch_scc1 t0_loop_{tag}")
            if trip: g.mute -= 1
        C(13, "g7a"); B(14, "g7b"); C(14, "g7c")
        for x in sm(1): e(x)
        sm_check(1, "g7s")
        C(15, "g7d", last=True)
        g.drain(9)
        for rt in range(nrt):
            e(f"v_rcp_f32 v{T[2*rt]}, v{LSUM(rt)}")
            e(f"v_rcp_f32 v{T[2*rt+1]}, v{LSUM(rt)}")
        for j in range(6):
            for rt in range(nrt):
                a = ACC(rt, 2 * j)
                for i in range(0, 8, 2): e(f"v_pk_mul_f32 {v(a+i,2)}, {v(a+i,2)}, {v(T[2*rt],2)}")
                for i in range(4): e(f"v_cvt_pk_bf16_f32 v{STG(rt,j)+i}, v{a+2*i}, v{a+2*i+1}")
        e(f"s_add_u32 s{sSLOT}, s{sSLOT}, 1")
        e(f"s_branch t0_unit_{tag}")
        if unit >= 1: g.mute -= 1
    g.label(f"t0_exit_{tag}")
    e("s_waitcnt lgkmcnt(0)")
    e("s_barrier")
    e("s_waitcnt vmcnt(0)")
    stamp(e, 10); stamp(e, 11, real=True)
    dump_stamps(e, 28, 64 << 20, 8)
    e("s_endpgm")
    for par in range(2):
        g.label(f"t0_rare{par}_{tag}")
        for rt in range(nrt):
            t, t2 = T[6], T[5]
            rowmax(par, rt, t, t2)
            e(f"v_max_f32 v{t}, 0, v{t}")
            for i in range(4): e(f"v_sub_f32 v{NEGM(rt)+i}, v{NEGM(rt)+i}, v{t}")
            for pp in range(2):
                for i in range(8): e(f"v_sub_f32 v{S(pp,rt)+i}, v{S(pp,rt)+i}, v{t}")
            e(f"v_exp_f32 v{t}, -v{t}")
            for i in range(4): e(f"v_mul_f32 v{LSUM(rt)+i}, v{LSUM(rt)+i}, v{t}")
            for i in range(48): e(f"v_mul_f32 v{ACC(rt,0)+i}, v{ACC(rt,0)+i}, v{t}")
        for x in sm(par): e(x)
        e(f"s_setpc_b64 s[{sRET}:{sRET+1}]")
    return g.rec

def t1_path(p, needs):
    g = Gen(p, needs); e = g.e
    def PK(tt): return 2 * tt
    def AC(k): return 126 + 4 * k
    def AF(i): return 210 + 4 * i
    def BF(n): return 222 + 4 * (n % 4)
    WA = [238, 239, 240]; OA = [241, 242, 243]; LA = 244; XA = [245, 246]; OB = 247
    PW = [248, 249, 250]; PO = [251, 252, 253]; PX = 254; TT = 255
    def dma12(pat, srd, base, off, slot, tg, fl):
        out = []
        for ii in range(3):
            def f(ii=ii):
                if ii == 0:
                    e(f"s_add_u32 m0, s{sLW}, {T1R+slot*TILE}")
                    e(f"s_add_u32 s{sT1}, s{base}, {off}")
                o = f"offset:{ii*1024} " if ii else ""
                g.vm(tg, f"buffer_load_dwordx4 v{pat[ii]}, s[{srd}:{srd+3}], s{sT1} offen {o}{fl} lds")
            out.append(f)
        return out
    def dma_w(i): return dma12(PW, sWd, sWB, i * 32 * 12288, i % 4, f"W{i}", OPT["w"])
    def dma_o(i):
        if i >= 2:
            ps, j = divmod(i - 2, 6)
            return dma12(PO, sOd, sOB, j * 32 * 1280 + ps * 384, i % 4, f"O{i}", OPT["wo"])
        out = []
        for q in range(3):
            def f(q=q):
                if q == 0:
                    e(f"s_add_u32 m0, s{sLW}, {T1R+i*TILE}")
                    e(f"s_mul_i32 s{sT1}, s{sW4}, {16*1280}")
                    e(f"s_add_u32 s{sT1}, s{sT1}, s{sOB}")
                e(f"s_add_u32 s{sT2}, s{sT1}, {i*96*1280 + 1152 + q*(10240-1024)}")
                o = f"offset:{q*1024} " if q else ""
                g.vm(f"O{i}", f"buffer_load_dwordx4 v{PX}, s[{sOd}:{sOd+3}], s{sT2} offen {o}{OPT['wo']} lds")
            out.append(f)
        return out
    def dma_x(pp):
        out = []
        for q in range(4):
            def f(q=q):
                if q < 3:
                    e(f"s_add_u32 m0, s{sXM}, {QO+(pp%3)*14336+q*4096}")
                else:
                    e(f"s_add_u32 s{sT2}, s{sXM}, {QO+(pp%3)*14336+q*4096}")
                    e(f"s_cmp_ge_u32 s{sW4}, 2")
                    e(f"s_cselect_b32 m0, s{sXF}, s{sT2}")
                e(f"s_add_u32 s{sT2}, s{sXB}, {pp*128+q*40960}")
                g.vm(f"X{pp}", f"buffer_load_dwordx4 v{PX}, s[{sXd}:{sXd+3}], s{sT2} offen {OPT['x']} lds")
            out.append(f)
        return out
    def variant(key, cond, which, alts):
        def run():
            reg, vals = cond
            if len(vals) == 1: e(f"s_cmp_eq_u32 s{reg}, {vals[0]}")
            else: e(f"s_cmp_le_u32 s{reg}, {max(vals)}")
            e(f"s_cbranch_scc0 t1_v{key}_b")
            g.optional(which == 0, lambda: [f() for f in alts[0]])
            e(f"s_branch t1_v{key}_d")
            g.label(f"t1_v{key}_b")
            g.optional(which == 1, lambda: [f() for f in alts[1]])
            g.label(f"t1_v{key}_d")
        return [run]
    def step(key, waits, issue, areads, nb, bread, mf, stretched, extra=()):
        e(f"s_cmp_eq_u32 s{sSTR}, 0")
        e(f"s_cbranch_scc1 t1_ns{key}")
        e("s_barrier")
        g.optional(stretched, lambda: [f() for f in extra])
        g.label(f"t1_ns{key}")
        g.wait("vm", key, waits)
        e("s_barrier")
        g.pend += list(issue)
        areads(0); bread(0); areads(1); areads(2)
        for n in range(1, 4): bread(n)
        mf()
        g.drain(16)
    def wide_mf(key, zero, bread):
        def m():
            for rt in range(7):
                for i in range(3):
                    if rt == 0: g.wait("lg", f"{key}a{i}", [f"a{i}"] + (["b0"] if i == 0 else []))
                    elif i == 0: g.wait("lg", f"{key}b{rt}", [f"b{rt}"])
                    mfma(e, AC(rt * 3 + i), AF(i), BF(rt), "0" if zero else AC(rt * 3 + i))
                if rt + 4 < 7: bread(rt + 4)
                g.drain(1)
        return m
    def qstep(i, s):
        key = f"q{i}"
        def ar(k):
            for hf in range(2):
                g.ld(f"a{k}", f"ds_read_b64_tr_b16 {v(AF(k)+2*hf,2)}, v{WA[k]} offset:{(i%4)*TILE+hf*1536}")
        def br(rt):
            g.ld(f"b{rt}", f"ds_read_b128 {v(BF(rt),4)}, v{XA[i&1]} offset:{((i>>1)%3)*14336+rt*2048}")
        issue = []
        if i == 0: issue += dma_x(2)
        elif i % 2 == 0 and i // 2 + 2 < 10: issue += dma_x(i // 2 + 2)
        if i + 3 < 20:
            issue += dma_w(i + 3)
            if i == 16: issue.append(lambda: e(f"s_add_u32 s{sWB}, s{sWB}, 384"))
        else:
            issue += variant(key, (sSLOT, [0]), 0 if s == 0 else 1, [dma_w(i - 17), dma_o(i - 17)])
        waits = [f"W{i}"] + ([f"X{i//2}"] if i % 2 == 0 else [])
        step(key, waits, issue, ar, 7, br, wide_mf(key, i == 0, br), s == 1, extra=(dma_x(0) + dma_x(1)) if i == 0 else ())
    def ostep(i, s):
        key = f"o{i}"
        issue = []
        if i + 3 < 20:
            issue += dma_o(i + 3)
            if i == 16: issue.append(lambda: e(f"s_add_u32 s{sOB}, s{sOB}, 245760"))
        nxtq = s <= 3
        if i >= 16:
            a0 = (dma_x((i - 16) // 2) if i in (16, 18) else []) + (dma_w(i - 17) if i >= 17 else [])
            a1 = dma_o(i - 17) if i >= 17 else []
            issue += variant(key, (sSLOT, [2, 3]), 0 if nxtq else 1, [a0, a1])
        if i >= 2:
            ps, j = divmod(i - 2, 6)
            def ar(k):
                for hf in range(2):
                    g.ld(f"a{k}", f"ds_read_b64_tr_b16 {v(AF(k)+2*hf,2)}, v{OA[k]} offset:{(i%4)*TILE+hf*6144}")
            def br(rt):
                g.ld(f"b{rt}", f"ds_read_b128 {v(BF(rt),4)}, v{OB} offset:{(j*7+rt)*1024}")
            step(key, [f"O{i}"], issue, ar, 7, br, wide_mf(key, False, br), s == 4)
        else:
            def ar(k):
                for hf in range(2):
                    g.ld(f"a{k}", f"ds_read_b64_tr_b16 {v(AF(k)+2*hf,2)}, v{LA} offset:{i*TILE+k*4096+hf*2048}")
            def br(n):
                g.ld(f"b{n}", f"ds_read_b128 {v(BF(n),4)}, v{OB} offset:{(i*21+n)*1024}")
            def m():
                for n in range(21):
                    k, rt = divmod(n, 7)
                    g.wait("lg", f"{key}b{n}", [f"b{n}"] + ([f"a{k}"] if rt == 0 else []))
                    mfma(e, AC(rt), AF(k), BF(n), AC(rt))
                    if n + 4 < 21: br(n + 4)
                    if n % 3 == 2: g.drain(1)
            step(key, [f"O{i}"], issue, ar, 21, br, m, s == 4)
    def unpack(dst, src):
        e(f"v_lshlrev_b32 v{dst}, 16, v{src}")
        e(f"v_and_b32 v{dst+1}, 0xffff0000, v{src}")
        e(f"v_lshlrev_b32 v{dst+2}, 16, v{src+1}")
        e(f"v_and_b32 v{dst+3}, 0xffff0000, v{src+1}")
    def pack(dst, src):
        e(f"v_cvt_pk_bf16_f32 v{dst}, v{src}, v{src+1}")
        e(f"v_cvt_pk_bf16_f32 v{dst+1}, v{src+2}, v{src+3}")
    def gstore(key, tts, reg_of, s):
        e(f"s_cmp_lg_u32 s{sSLOT}, 5")
        e(f"s_cbranch_scc1 t1_nst{key}")
        def body():
            e(f"v_subrev_u32 v{TT}, {QO}, v{OB}")
            k = 0
            while k < len(tts):
                tt = tts[k]
                o = (tt >> 1) * 1024
                if o % 4096 == 0 or k == 0: e(f"s_mov_b32 s{sT3}, {o - o % 4096}")
                if tt % 2 == 0 and k + 1 < len(tts):
                    g.vm("st", f"buffer_store_dwordx4 {v(reg_of(tt),4)}, v{TT}, s[{sPd}:{sPd+3}], s{sT3} offen offset:{o%4096} {OPT['st']}")
                    k += 2
                else:
                    g.vm("st", f"buffer_store_dwordx2 {v(reg_of(tt),2)}, v{TT}, s[{sPd}:{sPd+3}], s{sT3} offen offset:{o%4096+(tt&1)*8} {OPT['st']}")
                    k += 1
        g.optional(s == 5, body)
        g.label(f"t1_nst{key}")
    def spill_addr():
        e(f"s_mul_i32 s{sT3}, s{sW4}, 3584")
        e(f"s_add_u32 s{sT3}, s{sT3}, {SPILL - QO//2}")
        e(f"v_lshrrev_b32 v{TT}, 1, v{OB}")
        e(f"v_add_u32 v{TT}, s{sT3}, v{TT}")

    e(f"""
s_and_b32 s{sT1}, s{sW4}, 1
s_lshl_b32 s{sT1}, s{sT1}, 2
v_xor_b32 v16, s{sT1}, v9
""")
    for q in range(3):
        e(f"""
v_add_u32 v10, {8*q}, v8
v_mul_u32_u24 v11, 43, v10
v_lshrrev_b32 v11, 7, v11
v_mul_u32_u24 v12, 3, v11
v_sub_u32 v12, v10, v12
v_lshrrev_b32 v13, 1, v11
v_and_b32 v14, 1, v13
v_xor_b32 v14, v16, v14
v_lshlrev_b32 v14, 4, v14
v_lshl_add_u32 v14, v12, 7, v14
v_mul_u32_u24 v15, 12288, v11
v_add_u32 v14, v14, v15
v_subrev_u32 v{PW[q]}, {q*1024}, v14
v_and_b32 v14, 3, v13
v_lshlrev_b32 v14, 1, v14
v_xor_b32 v14, v9, v14
v_lshlrev_b32 v14, 4, v14
v_lshl_add_u32 v14, v12, 7, v14
v_mul_u32_u24 v15, 1280, v11
v_add_u32 v14, v14, v15
v_subrev_u32 v{PO[q]}, {q*1024}, v14
""")
    e(f"""
v_lshrrev_b32 v13, 1, v8
v_and_b32 v13, 3, v13
v_lshlrev_b32 v13, 1, v13
v_xor_b32 v13, v9, v13
v_lshlrev_b32 v13, 4, v13
v_mul_u32_u24 v14, 1280, v8
v_add_u32 v{PX}, v13, v14
s_mul_i32 s{sWB}, s{sW4}, {8*12288}
s_mul_i32 s{sOB}, s{sW4}, {8*1280}
s_mul_i32 s{sXB}, s{sW4}, 10240
s_lshl_b32 s{sXM}, s{sW4}, 10
s_sub_u32 s{sXF}, s{sXM}, 2048
s_add_u32 s{sXF}, s{sXF}, {SPARE}
s_mov_b32 s{sSLOT}, 0
s_mov_b32 s{sSTR}, 0
""")
    for f in dma_x(0) + dma_w(0) + dma_w(1) + dma_x(1) + dma_w(2): f()
    e(f"""
v_lshrrev_b32 v8, 1, v3
v_and_b32 v8, 3, v8
v_lshlrev_b32 v8, 1, v8
v_xor_b32 v8, v4, v8
v_lshlrev_b32 v8, 4, v8
v_lshl_add_u32 v9, v3, 7, v8
v_add_u32 v{XA[0]}, {QO}, v9
v_xor_b32 v{XA[1]}, 64, v{XA[0]}
v_lshlrev_b32 v{OB}, 4, v2
v_add_u32 v{OB}, {QO}, v{OB}
v_lshrrev_b32 v8, 1, v5
v_and_b32 v8, 3, v8
v_lshlrev_b32 v10, 5, v8
v_mul_u32_u24 v9, 384, v5
v_add_u32 v10, v10, v9
v_lshl_add_u32 v10, v7, 3, v10
v_add_u32 v10, {T1R}, v10
v_xor_b32 v8, s{sW4}, v8
v_lshlrev_b32 v8, 5, v8
v_lshl_add_u32 v8, v5, 7, v8
v_lshl_add_u32 v8, v7, 3, v8
v_add_u32 v{LA}, {T1R}, v8
v_lshl_add_u32 v8, v4, 3, v6
v_mul_u32_u24 v9, 384, v8
v_lshrrev_b32 v8, 1, v6
v_and_b32 v11, 1, v4
v_lshl_add_u32 v8, v11, 2, v8
v_xor_b32 v8, v7, v8
v_lshl_add_u32 v9, v8, 4, v9
v_and_b32 v11, 1, v7
v_lshl_add_u32 v11, v11, 3, v9
v_add_u32 v11, {T1R}, v11
""")
    for i in range(3):
        e(f"""
s_mul_i32 s{sT1}, s{sW4}, 3
s_add_u32 s{sT1}, s{sT1}, {i}
s_lshr_b32 s{sT2}, s{sT1}, 2
s_lshl_b32 s{sT2}, s{sT2}, 7
s_and_b32 s{sT3}, s{sT1}, 3
s_lshl_b32 s{sT3}, s{sT3}, 5
v_xor_b32 v12, s{sT3}, v10
v_add_u32 v{OA[i]}, s{sT2}, v12
s_and_b32 s{sT3}, s{sT1}, 2
s_lshl_b32 s{sT3}, s{sT3}, 5
s_and_b32 s{sT1}, s{sT1}, 1
s_lshl_b32 s{sT1}, s{sT1}, 3
s_or_b32 s{sT3}, s{sT3}, s{sT1}
v_xor_b32 v12, s{sT3}, v11
v_add_u32 v{WA[i]}, s{sT2}, v12
""")
    e(f"""
s_mov_b32 s{sC}, {hex(f2u(192 ** -0.5 * math.log2(math.e)))}
s_mov_b32 s{sC+1}, s{sC}
""")
    for i in range(126): e(f"v_mov_b32 v{i}, 0")
    spill_addr()
    for k in range(7): e(f"ds_write_b64 v{TT}, v[0:1] offset:{k*512}")
    e("s_branch t1_qp")

    main_p = g.p
    segO, segQ = Prog(), Prog()
    for s in range(6):
        if s >= 1:
            g.p = segO
            if s != 2: g.mute += 1
            g.label("t1_slot")
            e("s_barrier")
            if not g.mute: stamp_slot(e)
            e(f"""
s_cmp_eq_u32 s{sSLOT}, 1
s_cselect_b32 s{sSTR}, 1, 0
s_cbranch_scc1 t1_qp
s_cmp_eq_u32 s{sSLOT}, 4
s_cselect_b32 s{sSTR}, 1, 0
""")
            if s >= 2:
                spill_addr()
                for k in range(7): e(f"ds_read_b64 {v(AF(0)+2*k,2)}, v{TT} offset:{k*512}")
                e("s_waitcnt lgkmcnt(0)")
                for k in range(7): unpack(AC(k), AF(0) + 2 * k)
                for i in range(20):
                    ostep(i, s)
                    if i == 1:
                        for k in range(7): pack(AC(7) + 2 + 2 * k, AC(k))
                        spill_addr()
                        for k in range(7): e(f"ds_write_b64 v{TT}, {v(AC(7)+2+2*k,2)} offset:{k*512}")
                        e("s_waitcnt lgkmcnt(0)")
                        gstore("n", list(range(63, 70)), lambda tt: AC(7) + 2 + 2 * (tt - 63), s)
                        for k in range(21): unpack(AC(k), PK(k))
                    if i in (7, 13, 19):
                        ps = (i - 2) // 6
                        for k in range(21):
                            pack(PK(ps * 21 + k), AC(k))
                            if ps < 2: unpack(AC(k), PK((ps + 1) * 21 + k))
                        gstore(f"p{ps}", list(range(ps * 21, ps * 21 + 21)), PK, s)
                e(f"""
s_cmp_eq_u32 s{sSLOT}, 5
s_cbranch_scc1 t1_exit
s_cmp_eq_u32 s{sSLOT}, 4
s_cbranch_scc1 t1_tail
""")
            if s != 2: g.mute -= 1
        if s <= 3:
            g.p = segQ
            if s != 0: g.mute += 1
            g.label("t1_qp")
            for i in range(20): qstep(i, s)
            for k in range(21):
                a = AC(k)
                e(f"v_pk_mul_f32 {v(a,2)}, {v(a,2)}, s[{sC}:{sC+1}]")
                e(f"v_pk_mul_f32 {v(a+2,2)}, {v(a+2,2)}, s[{sC}:{sC+1}]")
                pack(a, a)
            e(f"v_lshrrev_b32 v{TT}, 5, v{OB}")
            e(f"v_and_b32 v{TT}, 8, v{TT}")
            e(f"v_add_u32 v{TT}, v{TT}, v{OB}")
            for i in range(3):
                e(f"""
s_mul_i32 s{sT1}, s{sW4}, 3
s_add_u32 s{sT1}, s{sT1}, {i}
s_lshr_b32 s{sT2}, s{sT1}, 1
s_mul_i32 s{sT2}, s{sT2}, 7168
s_and_b32 s{sT1}, s{sT1}, 1
s_lshl_b32 s{sT1}, s{sT1}, 3
v_xor_b32 v{AF(0)+i}, s{sT1}, v{TT}
v_add_u32 v{AF(0)+i}, s{sT2}, v{AF(0)+i}
""")
            e("s_barrier")
            for rt in range(7):
                for i in range(3):
                    e(f"ds_write_b64 v{AF(0)+i}, {v(AC(rt*3+i),2)} offset:{rt*1024}")
            e(f"""
s_waitcnt lgkmcnt(0)
s_add_u32 s{sSLOT}, s{sSLOT}, 1
s_branch t1_slot
t1_tail:
s_barrier
s_add_u32 s{sSLOT}, s{sSLOT}, 1
s_branch t1_slot
""")
            if s != 0: g.mute -= 1
    g.p = main_p
    main_p.L += segO.L + segQ.L
    g.label("t1_exit")
    e("s_waitcnt vmcnt(0)")
    stamp(e, 10); stamp(e, 11, real=True)
    dump_stamps(e, 28, 64 << 20, 8)
    e("s_endpgm")
    return g.rec

def build(needs):
    p = Prog()
    p(f"""
.globl attn_kernel
.p2align 8
.type attn_kernel,@function
attn_kernel:
s_cmp_ge_u32 s2, 256
s_cbranch_scc1 k1_end
s_load_dwordx16 s[4:19], s[0:1], 0
s_load_dwordx8 s[20:27], s[0:1], 64
s_load_dwordx2 s[28:29], s[0:1], 96
v_lshrrev_b32 v1, 6, v0
v_and_b32 v2, 63, v0
v_readfirstlane_b32 s{sWAVE}, v1
s_and_b32 s{sT1}, s2, 7
s_lshr_b32 s{sT2}, s2, 3
""")
    if OPT["map"] == 0:
        p(f"""
s_and_b32 s{sQUAD}, s{sT1}, 3
s_lshl_b32 s{sQUAD}, s{sQUAD}, 1
s_and_b32 s{sB}, s{sT2}, 1
s_add_u32 s{sQUAD}, s{sQUAD}, s{sB}
s_lshr_b32 s{sB}, s{sT2}, 1
""")
    else:
        p(f"""
s_and_b32 s{sQUAD}, s{sT1}, 1
s_lshl_b32 s{sQUAD}, s{sQUAD}, 2
s_and_b32 s{sB}, s{sT2}, 3
s_add_u32 s{sQUAD}, s{sQUAD}, s{sB}
s_and_b32 s{sB}, s{sT1}, 2
s_lshl_b32 s{sB}, s{sB}, 2
s_lshr_b32 s{sT2}, s{sT2}, 2
s_add_u32 s{sB}, s{sB}, s{sT2}
""")
    p(f"""
s_and_b32 s{sW4}, s{sWAVE}, 3
s_mul_i32 s{sLW}, s{sW4}, 3072
v_and_b32 v3, 15, v2
v_lshrrev_b32 v4, 4, v2
v_lshrrev_b32 v5, 2, v2
v_and_b32 v6, 3, v5
v_and_b32 v7, 3, v2
v_lshrrev_b32 v8, 3, v2
v_and_b32 v9, 7, v2
s_mov_b32 s{sKd+2}, {0 if OPT['nokv'] else 786432}
s_mov_b32 s{sKd+3}, 0x20000
s_mov_b32 s{sVd+2}, {0 if OPT['nokv'] else 786432}
s_mov_b32 s{sVd+3}, 0x20000
s_mov_b32 s{sWd+3}, 0x20000
s_mov_b32 s{sOd+2}, {0 if OPT['now'] else 983040}
s_mov_b32 s{sOd+3}, 0x20000
s_mov_b32 s{sXd+2}, {0 if OPT['nox'] else 143360}
s_mov_b32 s{sXd+3}, 0x20000
s_mov_b32 s{sPd+2}, 35840
s_mov_b32 s{sPd+3}, 0x20000
s_waitcnt lgkmcnt(0)
s_cmp_lt_u32 s{sT1}, 4
s_cselect_b64 s[4:5], s[4:5], s[14:15]
s_cselect_b64 s[6:7], s[6:7], s[16:17]
s_cselect_b64 s[8:9], s[8:9], s[18:19]
s_cselect_b64 s[10:11], s[10:11], s[20:21]
s_cselect_b64 s[12:13], s[12:13], s[22:23]
s_cselect_b32 s{sT3}, 0, 16
s_mul_i32 s{sT2}, s{sB}, 143360
s_add_u32 s{sXd}, s4, s{sT2}
s_addc_u32 s{sXd+1}, s5, 0
s_mul_i32 s{sT2}, s{sQUAD}, 1536
s_add_u32 s{sWd}, s10, s{sT2}
s_addc_u32 s{sWd+1}, s11, 0
s_sub_u32 s{sWd+2}, 7864320, s{sT2}
{'s_mov_b32 s%d, 0' % (sWd+2) if OPT['now'] else ''}
s_lshl_b32 s{sT1}, s{sB}, 3
s_add_u32 s{sT1}, s{sT1}, s{sQUAD}
s_mul_i32 s{sT2}, s{sT1}, 786432
s_add_u32 s{sKd}, s6, s{sT2}
s_addc_u32 s{sKd+1}, s7, 0
s_add_u32 s{sVd}, s8, s{sT2}
s_addc_u32 s{sVd+1}, s9, 0
s_mul_i32 s{sT2}, s{sQUAD}, 983040
s_add_u32 s{sOd}, s12, s{sT2}
s_addc_u32 s{sOd+1}, s13, 0
s_lshl_b32 s{sT3}, s{sT3}, 3
s_add_u32 s{sT1}, s{sT1}, s{sT3}
s_mul_i32 s{sT1}, s{sT1}, {PART_CU}
s_mul_i32 s{sT2}, s{sW4}, 35840
s_add_u32 s{sT1}, s{sT1}, s{sT2}
s_add_u32 s{sPd}, s28, s{sT1}
s_addc_u32 s{sPd+1}, s29, 0
""")
    stamp(p, 0); stamp(p, 1, real=True)
    p(f"""
s_cmp_ge_u32 s{sWAVE}, 4
s_cbranch_scc1 k1_t1
""")
    if OPT["prio0"]: p(f"s_setprio {OPT['prio0']}")
    p(f"""
s_cmp_eq_u32 s{sWAVE}, 3
s_cbranch_scc1 k1_light
""")
    rec = {}
    rec["h"] = t0_path(p, needs.get("h", {}), 2, "h")
    p.label("k1_light")
    rec["l"] = t0_path(p, needs.get("l", {}), 1, "l")
    p.label("k1_t1")
    if OPT["prio1"]: p(f"s_setprio {OPT['prio1']}")
    rec["t1"] = t1_path(p, needs.get("t1", {}))
    p("""
k1_end:
s_endpgm
""")
    return p, rec

def reduce_kernel():
    p = Prog()
    p(f"""
.globl reduce_kernel
.p2align 8
.type reduce_kernel,@function
reduce_kernel:
s_cmp_ge_u32 s2, 1120
s_cbranch_scc1 k2_end
s_load_dwordx2 s[8:9], s[0:1], 80
s_load_dwordx2 s[10:11], s[0:1], 96
v_lshrrev_b32 v1, 6, v0
v_and_b32 v2, 63, v0
v_readfirstlane_b32 s3, v1
s_lshl_b32 s4, s2, 2
s_add_u32 s4, s4, s3
s_mul_i32 s5, s4, 59919
s_lshr_b32 s5, s5, 23
s_mul_i32 s6, s5, 140
s_sub_u32 s6, s4, s6
s_mul_i32 s7, s5, {8*PART_CU}
s_lshl_b32 s20, s6, 10
v_lshlrev_b32 v3, 4, v2
s_mov_b32 s14, {8*PART_CU}
s_mov_b32 s15, 0x20000
s_waitcnt lgkmcnt(0)
s_add_u32 s12, s10, s7
s_addc_u32 s13, s11, 0
""")
    for q in range(8):
        p(f"buffer_load_dwordx4 v[{8+4*q}:{11+4*q}], v3, s[12:15], s20 offen {OPT['rd']}")
        if q < 7: p(f"s_add_u32 s20, s20, {PART_CU}")
    p(f"""
s_mul_i32 s21, s6, 235
s_lshr_b32 s21, s21, 13
s_mul_i32 s22, s21, 35
s_sub_u32 s22, s6, s22
s_and_b32 s23, s5, 15
s_mul_i32 s23, s23, {112*2560}
s_lshr_b32 s24, s5, 4
s_mul_i32 s24, s24, 1280
s_add_u32 s23, s23, s24
s_mov_b32 s16, s8
s_mov_b32 s17, s9
s_mov_b32 s18, {16*112*2560}
s_mov_b32 s19, 0x20000
v_and_b32 v4, 15, v2
v_mul_u32_u24 v4, 2560, v4
v_lshrrev_b32 v5, 4, v2
v_lshl_add_u32 v4, v5, 3, v4
""")
    for h in range(2):
        p(f"""
s_lshl_b32 s25, s22, 1
s_add_u32 s25, s25, {h}
s_mul_i32 s26, s25, 49
s_lshr_b32 s26, s26, 10
s_mul_i32 s27, s26, 21
s_sub_u32 s27, s25, s27
s_mul_i32 s28, s27, 43
s_lshr_b32 s28, s28, 7
s_mul_i32 s29, s28, 3
s_sub_u32 s29, s27, s29
s_mul_i32 s30, s26, 384
s_mul_i32 s31, s21, 96
s_add_u32 s30, s30, s31
s_lshl_b32 s29, s29, 5
s_add_u32 s30, s30, s29
s_lshl_b32 s31, s21, 5
s_add_u32 s31, s31, 1152
s_cmp_ge_u32 s25, 63
s_cselect_b32 s30, s31, s30
s_cselect_b32 s28, s27, s28
s_mul_i32 s28, s28, {16*2560}
s_add_u32 s30, s30, s28
s_add_u32 s{32+h}, s30, s23
""")
    for q in range(8):
        p(f"s_waitcnt vmcnt({7-q})")
        for i in range(4):
            r = 8 + 4 * q + i
            if q == 0:
                p(f"v_lshlrev_b32 v{40+2*i}, 16, v{r}")
                p(f"v_and_b32 v{41+2*i}, 0xffff0000, v{r}")
            else:
                p(f"v_lshlrev_b32 v48, 16, v{r}")
                p(f"v_and_b32 v49, 0xffff0000, v{r}")
                p(f"v_add_f32 v{40+2*i}, v{40+2*i}, v48")
                p(f"v_add_f32 v{41+2*i}, v{41+2*i}, v49")
    for i in range(4): p(f"v_cvt_pk_bf16_f32 v{50+i}, v{40+2*i}, v{41+2*i}")
    p("""
buffer_store_dwordx2 v[50:51], v4, s[16:19], s32 offen
buffer_store_dwordx2 v[52:53], v4, s[16:19], s33 offen
k2_end:
s_endpgm
""")
    return p

def desc(name, vg):
    return f""".amdhsa_kernel {name}
  .amdhsa_next_free_vgpr {vg}
  .amdhsa_next_free_sgpr 102
  .amdhsa_accum_offset {vg}
  .amdhsa_group_segment_fixed_size 0
  .amdhsa_kernarg_size 104
  .amdhsa_user_sgpr_count 2
  .amdhsa_user_sgpr_kernarg_segment_ptr 1
  .amdhsa_system_sgpr_workgroup_id_x 1
.end_amdhsa_kernel
"""

def main():
    for t in range(4480): assert (t * 59919) >> 23 == t // 140
    for t in range(140): assert (t * 235) >> 13 == t // 35
    for t in range(70): assert (t * 49) >> 10 == t // 21
    _, rec = build({})
    for it in range(4):
        a, rec2 = build(rec)
        if rec2 == rec: break
        rec = rec2
    else: raise SystemExit("no fixpoint")
    b = reduce_kernel()
    if OPT["novm"]: a.L[:] = [l for l in a.L if not l.startswith("buffer_load")]
    n1 = fix_hazards(a.L); n2 = fix_hazards(b.L)
    print("nops inserted", n1, n2, "instrs", len(a.L), len(b.L), file=sys.stderr)
    hdr = open("cdna_kernels/" + NAME + ".s.ref").read().split("; Override launch")[0]
    out = hdr
    out += f"; @launch kernel=attn_kernel grid=(256,1,1) block=(512,1,1) lds={LDS_BYTES}\n"
    out += f"; @launch kernel=reduce_kernel grid=(1120,1,1) block=(256,1,1) lds=0\n"
    out += '.amdgcn_target "amdgcn-amd-amdhsa--gfx950"\n.text\n'
    out += a.text() + b.text()
    out += '.section .rodata,"a"\n.p2align 6\n' + desc("attn_kernel", 256) + ".p2align 6\n" + desc("reduce_kernel", 56)
    open(sys.argv[1], "w").write(out)
main()
```

```python
import sys, math, struct, copy
sys.path.insert(0, "work")
from asmlib import *

NAME = "concat_heads__mha_block_cached__gqa_block_cached__near_ridge"
OPT = dict(kv="nt", w="", x="", wo="", st="", rd="", prof=0, prio0=0, prio1=0, touch=1, nox=0, now=0, nokv=0, nomf=0,
           novm=0, lead=4, bp="6.16.26.36.42", map=0, hack="", t1b=0, ps=5, kdel=0, x0=4, xt=0, dynp=0, nopark=0, gap=0, span=4, pa=0, pb=0, m=2, nlat=0, nonar=0, bar=3, kvfirst=1, w2=1, psplit=1, nb1=8, nb2=29, kl=12, tl=4, kvat=18, qst="", noq=0, noqst=0, pv=0, nobar=0, nolg=0, nord=0, norare=0, not1=0, noexp=0, nochk=0, nosm=0)
for a in sys.argv[2:]:
    k, val = a.split("=")
    OPT[k] = int(val) if val.lstrip("-").isdigit() else (val if k in ("bp", "hack") else val.replace("+", " ").replace("-", ""))
TILE = 12288
QO = 0
T1R = 43008
B2 = T1R + 32768
KVB = B2 + 36864
NS = 12
SPARE = KVB + NS * 4096
LDS_BYTES = SPARE + 2048
QPARK = 48 << 20
PART0 = 1 << 20
PART_CU = 4 * 35 * 1024
LEAD = OPT["lead"]
NX = 30
XB_ = [OPT["x0"] + 4 * ((k * 96) // NX) for k in range(NX)]
def f2u(f): return struct.unpack("<I", struct.pack("<f", f))[0]

sKd, sVd, sWd, sOd, sXd, sPd, sQd = 32, 36, 40, 44, 48, 76, 24
sWAVE, sB, sQUAD, sSLOT, sCTR, sW4 = 52, 53, 54, 55, 57, 56
sT1, sT2, sT3 = 62, 63, 61
sKSO, sVSO, sLW = 58, 59, 60
sWB, sOB, sXB, sXM, sSTR, sXF = 58, 59, 70, 71, 72, 73
sC, sBIT = 66, 68
sRET = 30
sTEAM, sWB2, sKSO2, sL1, sSLO, sSHI = 74, 75, 65, 64, 69, 72
PKV_ = 255
sRX, sRY, sRZ, sSP = 14, 17, 20, 23

def stamp(e, k, real=False):
    if not OPT["prof"]: return
    e(f"s_mem{'real' if real else ''}time s[100:101]")
    e("s_waitcnt lgkmcnt(0)")
    e(f"s_mov_b32 s{80+k}, s100")
def stamp_slot(e):
    if not OPT["prof"]: return
    e("s_memtime s[100:101]")
    e("s_waitcnt lgkmcnt(0)")
    for k in range(0, 7):
        e(f"s_cmp_eq_u32 s{sSLOT}, {k}")
        e(f"s_cselect_b32 s{82+k}, s100, s{82+k}")
def stamp_if(e, k, slot):
    if not OPT["prof"]: return
    e("s_memtime s[100:101]")
    e("s_waitcnt lgkmcnt(0)")
    e(f"s_cmp_eq_u32 s{sSLOT}, {slot}")
    e(f"s_cselect_b32 s{80+k}, s100, s{80+k}")
def dump_stamps(e, wsreg, base, nw):
    if not OPT["prof"]: return
    e(f"""
s_mul_i32 s100, s2, {nw}
s_add_u32 s100, s100, s{sWAVE}
s_lshl_b32 s100, s100, 6
s_add_u32 s100, s100, {base}
s_add_u32 s96, s{wsreg}, s100
s_addc_u32 s97, s{wsreg+1}, 0
s_mov_b32 s98, 64
s_mov_b32 s99, 0x20000
v_mov_b32 v1, 0
""")
    for k in range(16):
        e(f"v_mov_b32 v0, s{80+k}")
        e(f"buffer_store_dword v0, v1, s[96:99], 0 offen offset:{k*4}")
    e("s_waitcnt vmcnt(0)")

class Gen:
    def __init__(self, prog, needs):
        self.p = prog; self.needs = needs; self.rec = {}
        self.mute = 0
        self.vq = []; self.lq = []; self.pend = []; self.issued = {}
        self.nosim = 0
    def e(self, s):
        if not self.mute: self.p(s)
    def label(self, n):
        if not self.mute: self.p.label(n)
    def wait(self, kind, key, tags, drain_tags=()):
        q = self.vq if kind == "vm" else self.lq
        for t in tags:
            assert self.issued.pop(t, 0) > 0, (t, key)
        tags = list(tags) + list(drain_tags)
        idx = [i for i, t in enumerate(q) if t in tags]
        n = len(q) - 1 - max(idx) if idx else 999
        if n != 999: n = min(n, 63 if kind == "vm" else 15)
        k = (kind, key)
        self.rec[k] = min(self.rec.get(k, 999), n)
        val = self.needs.get(k, n)
        if val == 999: return
        self.e(f"s_waitcnt {'vmcnt' if kind == 'vm' else 'lgkmcnt'}({val})")
        del q[:len(q) - val if val < len(q) else 0]
    def wait_alt(self, key, tags, alt, cmp_txt, lab):
        q = self.vq
        for t in tags: assert self.issued.pop(t, 0) > 0, (t, key)
        idx = [i for i, t in enumerate(q) if t in tags]
        n = min(len(q) - 1 - max(idx), 63) if idx else 999
        k = ("vm", key, alt)
        self.rec[k] = min(self.rec.get(k, 999), n)
        va, vb = self.needs.get(("vm", key, False), 0), self.needs.get(("vm", key, True), 0)
        if vb != 999 and vb > va: self.e(f"s_waitcnt vmcnt({vb})")
        if vb > va:
            self.e(cmp_txt); self.e(f"s_cbranch_scc1 {lab}")
        val = min(va, vb) if not (alt and vb > va) else vb
        if min(va, vb) != 999: self.e(f"s_waitcnt vmcnt({min(va, vb)})")
        if vb > va: self.label(lab)
        if val != 999: del q[:len(q) - val if val < len(q) else 0]
    def vm(self, tag, text):
        self.e(text); self.vq.append(tag); self.issued[tag] = self.issued.get(tag, 0) + 1
    def ld(self, tag, text):
        self.e(text); self.lq.append(tag); self.issued[tag] = self.issued.get(tag, 0) + 1
    def drain(self, n=1):
        for _ in range(n):
            if self.pend: self.pend.pop(0)()
    def optional(self, taken, fn):
        if taken: fn()
        elif not self.mute:
            st = (list(self.vq), list(self.lq), dict(self.issued))
            fn()
            self.vq[:], self.lq[:] = st[0], st[1]; self.issued = st[2]

def mfma(e, d, a, b, c):
    if not OPT["nomf"]:
        e(f"v_mfma_f32_16x16x32_bf16 {v(d,4)}, {v(a,4)}, {v(b,4)}, {c if c == '0' else v(c,4)}")


KL = OPT["kl"]
N0 = max(u for u in range(300) if 4 * (u - KL) + 4 <= XB_[-1]) + 1
def lane_regs(e):
    e("""
v_mbcnt_lo_u32_b32 v2, -1, 0
v_mbcnt_hi_u32_b32 v2, -1, v2
v_and_b32 v3, 15, v2
v_lshrrev_b32 v4, 4, v2
v_lshrrev_b32 v5, 2, v2
v_and_b32 v6, 3, v5
v_and_b32 v7, 3, v2
v_lshrrev_b32 v8, 3, v2
v_and_b32 v9, 7, v2
""")
def kv_kind(a):
    a %= 32
    return "K" if (a == 0 or (a % 2 == 1 and a < 31)) else "V"
def kv_tile(a):
    u, a = divmod(a, 32)
    return u * 16 + (0 if a == 0 else 15 if a == 31 else (a + 1) // 2 if a % 2 == 1 else (a - 2) // 2)
def QAC(hh, rt, k): return ((hh * 7 + rt) * 3 + k) * 4
QW = [248, 249, 250]

def qp_phase(p, needs):
    g = Gen(p, needs); e = g.e
    AC = QAC
    def AF(par, hh, k): return 168 + par * 24 + (hh * 3 + k) * 4
    def BF(n): return 216 + 4 * (n % 4)
    RA = [[232, 233, 234], [235, 236, 237]]; XA = [238, 239]; PW = [243, 244, 245]; PX = 246
    JUNK = 247
    STG = [KVB, T1R]
    NB1, NB2 = OPT["nb1"], OPT["nb2"]
    def dma_w(i, hh):
        out = []
        for ii in range(3):
            def f(ii=ii):
                if ii == 0:
                    e(f"s_add_u32 m0, s{sLW}, {STG[i&1]+hh*2*TILE}")
                    e(f"s_add_u32 s{sT1}, s{sWB2 if hh else sWB}, {i*32*12288}")
                o = f"offset:{ii*1024} " if ii else ""
                g.vm(f"W{i}.{hh}", f"buffer_load_dwordx4 v{PW[ii]}, s[{sWd}:{sWd+3}], s{sT1} offen {o}{OPT['w']} lds")
            out.append(f)
        return out
    def dma_x(pp):
        out = []
        for q in range(2):
            def f(q=q):
                if q == 0: e(f"s_add_u32 m0, s{sXM}, {QO+(pp%3)*14336}")
                else:
                    e(f"s_add_u32 s{sT2}, s{sXM}, {QO+(pp%3)*14336+8192}")
                    e(f"s_cmp_ge_u32 s{sWAVE}, 6")
                    e(f"s_cselect_b32 m0, s{sXF}, s{sT2}")
                e(f"s_add_u32 s{sT2}, s{sXB}, {pp*128+q*81920}")
                g.vm(f"X{pp}", f"buffer_load_dwordx4 v{PX}, s[{sXd}:{sXd+3}], s{sT2} offen {OPT['x']} lds")
            out.append(f)
        return out
    def a_read(i, hh, n):
        k, hf = divmod(n, 2)
        g.ld(f"{i}a{hh}{k}", f"ds_read_b64_tr_b16 {v(AF(i&1,hh,k)+2*hf,2)}, v{RA[i&1][k]} offset:{hh*2*TILE+hf*1536}")
    def b_read(i, rt):
        g.ld(f"{i}b{rt}", f"ds_read_b128 {v(BF(7*i+rt),4)}, v{XA[i&1]} offset:{((i>>1)%3)*14336+rt*2048}")
    lane_regs(e)
    e(f"""
v_lshrrev_b32 v13, 1, v8
v_and_b32 v13, 3, v13
v_lshlrev_b32 v13, 1, v13
v_xor_b32 v13, v9, v13
v_lshlrev_b32 v13, 4, v13
v_mul_u32_u24 v14, 1280, v8
v_add_u32 v{PX}, v13, v14
v_mul_u32_u24 v14, 384, v8
v_add_u32 v{PKV_}, v13, v14
s_mul_i32 s{sXB}, s{sWAVE}, 10240
s_lshl_b32 s{sXM}, s{sWAVE}, 10
s_sub_u32 s{sXF}, s{sXM}, 6144
s_add_u32 s{sXF}, s{sXF}, {SPARE}
""")
    for f in dma_x(0): f()
    e(f"""
s_and_b32 s{sT1}, s{sW4}, 1
s_lshl_b32 s{sT1}, s{sT1}, 2
v_xor_b32 v16, s{sT1}, v9
s_mul_i32 s{sWB}, s{sW4}, {8*12288}
s_mul_i32 s{sT1}, s{sTEAM}, 384
s_add_u32 s{sWB2}, s{sWB}, 1152
s_add_u32 s{sWB}, s{sWB}, s{sT1}
s_sub_u32 s{sWB2}, s{sWB2}, s{sT1}
s_mul_i32 s{sT1}, s{sTEAM}, {TILE}
s_add_u32 s{sLW}, s{sLW}, s{sT1}
""")
    for q in range(3):
        e(f"""
v_add_u32 v10, {8*q}, v8
v_mul_u32_u24 v11, 43, v10
v_lshrrev_b32 v11, 7, v11
v_mul_u32_u24 v12, 3, v11
v_sub_u32 v12, v10, v12
v_lshrrev_b32 v13, 1, v11
v_and_b32 v14, 1, v13
v_xor_b32 v14, v16, v14
v_lshlrev_b32 v14, 4, v14
v_lshl_add_u32 v14, v12, 7, v14
v_mul_u32_u24 v15, 12288, v11
v_add_u32 v14, v14, v15
v_subrev_u32 v{PW[q]}, {q*1024}, v14
""")
    for f in dma_w(0, 0) + dma_w(0, 1): f()
    if OPT["touch"]:
        nsh = 16 if OPT["map"] == 0 else 8
        rows = 640 // nsh // 8
        e(f"""
s_and_b32 s{sT1}, s{sB}, {nsh-1}
s_lshl_b32 s{sT1}, s{sT1}, 3
s_add_u32 s{sT1}, s{sT1}, s{sWAVE}
s_mul_i32 s{sT1}, s{sT1}, {rows*12288}
v_mul_u32_u24 v10, 43, v2
v_lshrrev_b32 v10, 9, v10
v_mul_u32_u24 v11, 12, v10
v_sub_u32 v11, v2, v11
v_mul_u32_u24 v10, 12288, v10
v_lshl_add_u32 v10, v11, 7, v10
""")
        for r in range(rows // 5):
            g.vm("pf", f"buffer_load_dword v{JUNK}, v10, s[{sWd}:{sWd+3}], s{sT1} offen")
            e(f"s_add_u32 s{sT1}, s{sT1}, {5*12288}")
    if OPT["touch"] and OPT["xt"]:
        e(f"""
s_and_b32 s{sT1}, s{sQUAD}, 1
s_mul_i32 s{sT1}, s{sT1}, 71680
s_mul_i32 s{sT2}, s{sWAVE}, {70*128}
s_add_u32 s{sT1}, s{sT1}, s{sT2}
v_lshlrev_b32 v10, 7, v2
""")
        g.vm("pf", f"buffer_load_dword v{JUNK}, v10, s[{sXd}:{sXd+3}], s{sT1} offen")
        g.vm("pf", f"buffer_load_dword v{JUNK}, v10, s[{sXd}:{sXd+3}], s{sT1} offen offset:768")
    e(f"""
v_lshrrev_b32 v8, 1, v3
v_and_b32 v8, 3, v8
v_lshlrev_b32 v8, 1, v8
v_xor_b32 v8, v4, v8
v_lshlrev_b32 v8, 4, v8
v_lshl_add_u32 v9, v3, 7, v8
v_add_u32 v{XA[0]}, {QO}, v9
v_xor_b32 v{XA[1]}, 64, v{XA[0]}
v_lshl_add_u32 v8, v4, 3, v6
v_mul_u32_u24 v9, 384, v8
v_lshrrev_b32 v8, 1, v6
v_and_b32 v11, 1, v4
v_lshl_add_u32 v8, v11, 2, v8
v_xor_b32 v8, v7, v8
v_lshl_add_u32 v9, v8, 4, v9
v_lshlrev_b32 v12, 3, v11
v_lshl_add_u32 v12, v2, 4, v12
v_and_b32 v11, 1, v7
v_lshl_add_u32 v11, v11, 3, v9
s_mov_b32 s{sC}, {hex(f2u(192 ** -0.5 * math.log2(math.e)))}
s_mov_b32 s{sC+1}, s{sC}
""")
    for i in range(3):
        e(f"""
s_mul_i32 s{sT1}, s{sW4}, 3
s_add_u32 s{sT1}, s{sT1}, {i}
s_lshr_b32 s{sT2}, s{sT1}, 2
s_lshl_b32 s{sRY+i}, s{sT2}, 7
s_and_b32 s{sT3}, s{sT1}, 3
s_xor_b32 s{sT3}, s{sT3}, s{sW4}
s_lshl_b32 s{sRX+i}, s{sT3}, 5
s_and_b32 s{sT3}, s{sT1}, 2
s_lshl_b32 s{sT3}, s{sT3}, 5
s_and_b32 s{sT2}, s{sT1}, 1
s_lshl_b32 s{sT2}, s{sT2}, 3
v_xor_b32 v{QW[i]}, s{sT2}, v12
s_or_b32 s{sT3}, s{sT3}, s{sT2}
v_xor_b32 v13, s{sT3}, v11
s_lshr_b32 s{sT1}, s{sT1}, 1
s_mul_i32 s{sT1}, s{sT1}, 7168
v_add_u32 v{QW[i]}, s{sT1}, v{QW[i]}
s_mul_i32 s{sT1}, s{sTEAM}, {TILE}
s_add_u32 s{sT1}, s{sT1}, s{sRY+i}
v_add_u32 v13, s{sT1}, v13
v_add_u32 v{RA[1][i]}, {T1R}, v13
v_add_u32 v{RA[0][i]}, {KVB}, v13
""")
    g.wait("vm", "in", ["W0.0", "W0.1", "X0"])
    e("s_barrier")
    stamp(e, 14)
    a_read(0, 0, 0); a_read(0, 0, 1); b_read(0, 0); b_read(0, 1)
    for n in range(2, 6): a_read(0, 0, n)
    for n in range(6): a_read(0, 1, n)
    for rt in range(2, 4): b_read(0, rt)
    for f in dma_w(1, 0) + dma_w(1, 1) + dma_x(1): f()
    ORD = [(rt, 0, k) for rt in (0, 1) for k in range(3)] + [(rt, 1, k) for rt in (0, 1) for k in range(3)]
    ORD += [(rt, hh, k) for rt in range(2, 7) for hh in range(2) for k in range(3)]
    lastb = {rt: max(n for n, x in enumerate(ORD) if x[0] == rt) for rt in range(7)}
    A0 = [NB1 + 2 + 3 * x for x in range(6)]
    A1 = [NB2 + 1 + 2 * x for x in range(6)]
    def qcvt(n):
        rt, hh, k = ORD[n]
        a = AC(hh, rt, k)
        e(f"v_pk_mul_f32 {v(a,2)}, {v(a,2)}, s[{sC}:{sC+1}]")
        e(f"v_pk_mul_f32 {v(a+2,2)}, {v(a+2,2)}, s[{sC}:{sC+1}]")
        e(f"v_cvt_pk_bf16_f32 v{a}, v{a}, v{a+1}")
        e(f"v_cvt_pk_bf16_f32 v{a+1}, v{a+2}, v{a+3}")
    for i in range(20):
        seen = set()
        for n, (rt, hh, k) in enumerate(ORD):
            if n == NB1 and i < 19:
                g.wait("lg", f"r1{i}", [], drain_tags=[f"{i}a1{x}" for x in range(3)])
                g.wait("vm", f"s{i}", [f"W{i+1}.0"] + ([f"X{(i+1)//2}"] if i % 2 == 1 else []))
                e("s_barrier")
                if i + 2 < 20: g.pend += (dma_w(i + 2, 0) if i == 0 else []) + dma_w(i + 2, 1)
                if i % 2 == 0 and i // 2 + 2 < 10: g.pend += dma_x(i // 2 + 2)
            if n == NB2 and i < 19:
                g.wait("lg", f"r2{i}", [], drain_tags=[f"{i+1}a0{x}" for x in range(3)])
                g.wait("vm", f"t{i}", [f"W{i+1}.1"])
                e("s_barrier")
                if i + 3 < 20: g.pend += dma_w(i + 3, 0)
            if n == NB2 + 1 and i == 18:
                e(f"s_cmp_eq_u32 s{sTEAM}, 0")
                e("s_cbranch_scc1 qp_nokv")
                e(f"s_mul_i32 s{sKSO2}, s{sW4}, 3072")
                e(f"s_lshl_b32 s{sT3}, s{sW4}, 10")
                for u in range(N0 - 96):
                    a, bb = divmod(u, 3)
                    e(f"s_add_u32 m0, s{sT3}, {KVB + (u % NS) * 4096 - bb * 128}")
                    e(f"s_add_u32 s{sT1}, s{sKSO2}, {kv_tile(a) * TILE}")
                    srd = sKd if kv_kind(a) == "K" else sVd
                    e(f"buffer_load_dwordx4 v{PKV_}, s[{srd}:{srd+3}], s{sT1} offen offset:{bb*128} {OPT['kv']} lds")
                g.label("qp_nokv")
            tags = [t for t in (f"{i}b{rt}", f"{i}a{hh}{k}") if t not in seen]
            seen.update(tags)
            if tags: g.wait("lg", f"{i}m{n}", tags)
            mfma(e, AC(hh, rt, k), AF(i & 1, hh, k), BF(7 * i + rt), "0" if i == 0 else AC(hh, rt, k))
            if n == lastb[rt]:
                if rt + 4 < 7: b_read(i, rt + 4)
                elif i < 19: b_read(i + 1, rt - 3)
            if i < 19 and n in A0: a_read(i + 1, 0, A0.index(n))
            if i < 19 and n in A1: a_read(i + 1, 1, A1.index(n))
            if n % 2 == 1: g.drain(1)
            if i == 19 and n >= 4: qcvt(n - 4)
        assert not g.pend
    for n in range(38, 42): qcvt(n)
    stamp(e, 15)
    e("s_barrier")
    return g.rec

def t0_path(p, needs, nrt, tag):
    g = Gen(p, needs); e = g.e
    def ACC(rt, t): return rt * 48 + t * 4
    def Q(rt, j): return 96 + rt * 24 + j * 4
    def S(par, rt, kt=0): return 144 + par * 16 + rt * 8 + kt * 4
    def P(par, rt): return 176 + par * 8 + rt * 4
    def NEGM(rt): return 192 + rt * 4
    def LSUM(rt): return 200 + rt * 4
    def STG(rt, j): return 144 + (j * 2 + rt) * 4 if j < 5 else 192 + rt * 4
    ONES = 208
    FR0 = 212; NFR = 8
    def FR(a, f): return FR0 + ((a * 12 + f) % NFR) * 4
    KA = [244, 245]; VA = [246, 247, 248, 249]; QOA = 250
    TC = 251; T = [252, 253, 254, 255]
    def rd_l(a, f):
        base = ((3 * a + f // 4) % NS) * 4096; tg = f"A{a%32}f{f}"
        if kv_kind(a) == "K":
            j, kt = divmod(f, 2)
            return [lambda: g.ld(tg, f"ds_read_b128 {v(FR(a,f),4)}, v{KA[j&1]} offset:{base+kt*2048}")]
        return [lambda hf=hf: g.ld(tg, f"ds_read_b64_tr_b16 {v(FR(a,f)+2*hf,2)}, v{VA[f&3]} offset:{base+hf*2048}") for hf in range(2)]
    def run(x):
        if callable(x): x()
        else: e(x)
    def cost(x): return 2 if isinstance(x, str) and x.startswith(("v_exp", "v_rcp")) else 1
    def step(key, a, mfs, valu=(), last=False, extra=None, v0=0):
        valu = list(valu)
        ngap = sum(len(mfs(f, 0)) for f in range(v0, 12))
        tot = sum(cost(x) for x in valu); done = 0; gap = 0
        for f in range(12):
            pos = a * 12 + f
            if extra and f in extra: extra[f]()
            if pos in XB_: e("s_barrier")
            reads = rd_l(a, f + LEAD) if f + LEAD < 12 else ([] if last else rd_l(a + 1, f + LEAD - 12))
            if not OPT["w2"]: g.wait("lg", f"{key}{f}", [f"A{a}f{f}"])
            elif f % 2 == 0: g.wait("lg", f"{key}{f}", [f"A{a}f{f}", f"A{a}f{f+1}"])
            ms = mfs(f, FR(a, f))
            for i, m in enumerate(ms):
                m()
                if reads: reads.pop(0)()
                if i == len(ms) - 1:
                    while reads: reads.pop(0)()
                if f >= v0:
                    gap += 1
                    while valu and done + cost(valu[0]) / 2 <= tot * gap / ngap:
                        done += cost(valu[0]); run(valu.pop(0))
        for x in valu: run(x)
    def mf_qk(par, zero):
        def m(f, fr):
            j, kt = divmod(f, 2)
            return [lambda rt=rt: mfma(e, S(par, rt, kt), fr, Q(rt, j), ("0" if zero else NEGM(rt)) if j == 0 else S(par, rt, kt)) for rt in range(nrt)]
        return m
    def onorm_l(j):
        out = []
        for rt in range(nrt):
            a = ACC(rt, 2 * j)
            out += [f"v_pk_mul_f32 {v(a+i,2)}, {v(a+i,2)}, {v(T[2*rt],2)}" for i in range(0, 8, 2)]
            out += [f"v_cvt_pk_bf16_f32 v{STG(rt,j)+i}, v{a+2*i}, v{a+2*i+1}" for i in range(4)]
        return out
    def mf_pv(par, first, last=False):
        def m(f, fr):
            out = []
            if f == (0 if last else 5):
                out += [lambda rt=rt: mfma(e, LSUM(rt), ONES, P(par, rt), "0" if first else LSUM(rt)) for rt in range(nrt)]
            return out + [lambda rt=rt: mfma(e, ACC(rt, f), fr, P(par, rt), "0" if first else ACC(rt, f)) for rt in range(nrt)]
        return m
    def sm(par, lo=0, hi=None):
        grp = [(rt, i) for rt in range(nrt) for i in range(4)][lo:hi]
        seq = []
        for n, (rt, i) in enumerate(grp):
            a, b = T[(2 * n) % 4], T[(2 * n + 1) % 4]
            r = S(par, rt) + 2 * i
            seq += [f"v_exp_f32 v{a}, v{r}", f"v_exp_f32 v{b}, v{r+1}"]
            if n > 0: seq.append(prev)
            prev = f"v_cvt_pk_bf16_f32 v{P(par,rt)+i}, v{a}, v{b}"
        return seq + [prev] if grp else []
    def chk_l(par):
        p0 = P(par, 0)
        out = [f"v_or3_b32 v{TC}, v{p0}, v{p0+1}, v{p0+2}"]
        if nrt == 2:
            out += [f"v_or3_b32 v{TC}, v{TC}, v{p0+3}, v{p0+4}", f"v_or3_b32 v{TC}, v{TC}, v{p0+5}, v{p0+6}"]
        out += [f"v_bitop3_b32 v{TC}, v{TC}, v{p0+4*nrt-1}, s{sBIT} bitop3:0xa8", f"v_cmp_ne_u32 vcc, 0, v{TC}"]
        return out
    def chk_branch(par, key):
        e(f"s_cbranch_vccz t0_ok{key}_{tag}")
        if not OPT["norare"]: e(f"s_call_b64 s[{sRET}:{sRET+1}], t0_rare{par}_{tag}")
        g.label(f"t0_ok{key}_{tag}")
    def rowmax(par, rt, t, t2):
        r = S(par, rt)
        e(f"""
v_max3_f32 v{t}, v{r}, v{r+1}, v{r+2}
v_max3_f32 v{t}, v{t}, v{r+3}, v{r+4}
v_max3_f32 v{t}, v{t}, v{r+5}, v{r+6}
v_max_f32 v{t}, v{t}, v{r+7}
v_mov_b32 v{t2}, v{t}
v_permlane32_swap_b32 v{t2}, v{t}
v_max_f32 v{t}, v{t}, v{t2}
v_mov_b32 v{t2}, v{t}
v_permlane16_swap_b32 v{t2}, v{t}
v_max_f32 v{t}, v{t}, v{t2}
v_add_f32 v{t}, {hex(f2u(7.0))}, v{t}
""")
    for rt in range(7):
        for k in range(3): e(f"ds_write_b64 v{QW[k]}, {v(QAC(0,rt,k),2)} offset:{QO+rt*1024}")
    for k in range(3):
        e(f"""
s_mul_i32 s{sT1}, s{sW4}, 3
s_add_u32 s{sT1}, s{sT1}, {k}
s_lshr_b32 s{sT1}, s{sT1}, 1
s_lshl_b32 s{sT2}, s{sT1}, 10
s_sub_u32 s{sT2}, {B2}, s{sT2}
v_add_u32 v{240+k}, s{sT2}, v{QW[k]}
s_mul_i32 s{sT2}, s{sT1}, 6144
s_sub_u32 s{sT2}, {T1R}, s{sT2}
v_add_u32 v{243+k}, s{sT2}, v{QW[k]}
""")
    for rt in range(7):
        for k in range(3): e(f"ds_write_b64 v{(240 if rt < 6 else 243)+k}, {v(QAC(1,rt,k),2)} offset:{rt*1024 if rt < 6 else 0}")
    e("s_waitcnt lgkmcnt(0)")
    lane_regs(e)
    e(f"""
s_lshl_b32 s{sT1}, s{sWAVE}, 11
s_add_u32 s{sT1}, s{sT1}, {QO}
v_lshl_add_u32 v{QOA}, v2, 4, s{sT1}
v_lshrrev_b32 v8, 1, v3
v_and_b32 v8, 3, v8
v_lshlrev_b32 v8, 1, v8
v_xor_b32 v8, v4, v8
v_lshlrev_b32 v8, 4, v8
v_lshl_add_u32 v8, v3, 7, v8
v_add_u32 v{KA[0]}, {KVB}, v8
v_xor_b32 v{KA[1]}, 64, v{KA[0]}
v_lshrrev_b32 v8, 1, v5
v_and_b32 v8, 3, v8
v_lshlrev_b32 v8, 5, v8
v_lshl_add_u32 v8, v5, 7, v8
v_lshl_add_u32 v8, v7, 3, v8
v_add_u32 v{VA[0]}, {KVB}, v8
v_xor_b32 v{VA[1]}, 32, v{VA[0]}
v_xor_b32 v{VA[2]}, 64, v{VA[0]}
v_xor_b32 v{VA[3]}, 96, v{VA[0]}
s_mov_b32 s{sBIT}, 0x40004000
s_mov_b32 s{sSLOT}, 1
""")
    for i in range(4): e(f"v_mov_b32 v{ONES+i}, 0x3f803f80")
    H = 4 if (nrt == 2 and OPT["psplit"]) else (2 if OPT["psplit"] else 0)
    for unit in range(2):
        if unit >= 1: g.mute += 1
        g.label(f"t0_unit_{tag}")
        e("s_barrier")
        if not g.mute: stamp_slot(e)
        e(f"s_cmp_gt_u32 s{sSLOT}, 3")
        e(f"s_cbranch_scc1 t0_q3_{tag}")
        for j in range(6):
            for rt in range(nrt): e(f"ds_read_b128 {v(Q(rt,j),4)}, v{QOA} offset:{(j*7+rt)*1024}")
        e(f"s_cmp_lg_u32 s{sSLOT}, 1")
        e(f"s_cbranch_scc1 t0_w_{tag}")
        if nrt == 1:
            for j in range(6): e(f"ds_read_b128 {v(Q(1,j),4)}, v{QOA} offset:{T1R-6144+j*1024}")
        e(f"s_branch t0_noo_{tag}")
        g.label(f"t0_q3_{tag}")
        if nrt == 1:
            for i in range(24): e(f"v_mov_b32 v{Q(0,0)+i}, v{Q(1,0)+i}")
        else:
            e(f"v_add_u32 v{TC}, {B2}, v{QOA}")
            for j in range(6):
                for rt in range(nrt): e(f"ds_read_b128 {v(Q(rt,j),4)}, v{TC} offset:{(j*6+rt)*1024}")
        g.label(f"t0_w_{tag}")
        e("s_waitcnt lgkmcnt(0)")
        for j in range(6):
            for rt in range(nrt): e(f"ds_write_b128 v{QOA}, {v(STG(rt,j),4)} offset:{(j*7+rt)*1024}")
        e(f"s_cmp_eq_u32 s{sSLOT}, 5")
        e(f"s_cbranch_scc1 t0_exit_{tag}")
        g.label(f"t0_noo_{tag}")
        for f in range(LEAD):
            for x in rd_l(0, f): x()
        step("a0_", 0, mf_qk(0, True), extra={1: lambda: e("s_barrier")})
        for rt in range(nrt):
            rowmax(0, rt, T[0], T[1])
            for i in range(4): e(f"v_sub_f32 v{NEGM(rt)+i}, 0, v{T[0]}")
            for i in range(8): e(f"v_sub_f32 v{S(0,rt)+i}, v{S(0,rt)+i}, v{T[0]}")
        for t in range(15):
            step(f"q{t}_", 2 * t + 1, mf_qk((t + 1) & 1, False), valu=sm(t & 1, H if t else 0) + chk_l(t & 1))
            chk_branch(t & 1, f"q{t}")
            va = sm((t + 1) & 1, 0, H)
            if t == 14: va = sm(1) + chk_l(1)
            step(f"p{t}_", 2 * t + 2, mf_pv(t & 1, t == 0), valu=va, v0=1)
        chk_branch(1, "q15")
        rc = [f"v_rcp_f32 v{T[i]}, v{LSUM(i//2)}" for i in range(2 * nrt)]
        ex = {3: lambda: [e(x) for x in rc]}
        for j in range(4): ex[4 + 2 * j] = lambda j=j: [e(x) for x in onorm_l(j)]
        step("p15_", 31, mf_pv(1, False, True), last=True, extra=ex)
        for x in onorm_l(4) + onorm_l(5): e(x)
        e(f"""
s_add_u32 s{sSLOT}, s{sSLOT}, 1
s_branch t0_unit_{tag}
""")
        if unit >= 1: g.mute -= 1
    g.label(f"t0_exit_{tag}")
    e("s_waitcnt lgkmcnt(0)")
    e("s_barrier")
    stamp(e, 10); stamp(e, 11, real=True)
    dump_stamps(e, 28, 64 << 20, 8)
    e("s_endpgm")
    for par in range(2):
        g.label(f"t0_rare{par}_{tag}")
        for rt in range(nrt):
            t, t2 = TC, T[0]
            rowmax(par, rt, t, t2)
            e(f"v_max_f32 v{t}, 0, v{t}")
            for i in range(4): e(f"v_sub_f32 v{NEGM(rt)+i}, v{NEGM(rt)+i}, v{t}")
            for pp in range(2):
                for i in range(8): e(f"v_sub_f32 v{S(pp,rt)+i}, v{S(pp,rt)+i}, v{t}")
            e(f"v_exp_f32 v{t}, -v{t}")
            for i in range(4): e(f"v_mul_f32 v{LSUM(rt)+i}, v{LSUM(rt)+i}, v{t}")
            for i in range(48): e(f"v_mul_f32 v{ACC(rt,0)+i}, v{ACC(rt,0)+i}, v{t}")
        for x in sm(par): e(x)
        e(f"s_setpc_b64 s[{sRET}:{sRET+1}]")
    return g.rec

def t1_path(p, needs):
    g = Gen(p, needs); e = g.e
    def PK(tt): return 2 * tt
    def AC(k): return 140 + 4 * k
    def AF(s, i): return 196 + 8 * (s & 1) + 4 * i
    def BF(n): return 212 + 4 * (n % 6)
    def Q2(k): return PK(56) + 2 * k if k < 14 else 236 + 2 * (k - 14)
    RA = [250, 251]; OB = 252; PO = [253, 254]
    def dma_o(i):
        ps, j = divmod(i, 6)
        out = []
        for q in range(2):
            def f(q=q):
                if q == 0:
                    e(f"s_add_u32 m0, s{sLW}, {T1R+(i%4)*8192}")
                    e(f"s_add_u32 s{sT2}, s{sOB}, {j*32*1280+ps*256}")
                o = "offset:1024 " if q else ""
                g.vm(f"O{i}", f"buffer_load_dwordx4 v{PO[q]}, s[{sOd}:{sOd+3}], s{sT2} offen {o}{OPT['wo']} lds")
            out.append(f)
        return out
    def dma_sub(u):
        a, bb = divmod(u, 3)
        srd = sKd if kv_kind(a) == "K" else sVd
        def f():
            e(f"s_add_u32 m0, s{sL1}, {KVB + (u % NS) * 4096 - bb * 128}")
            e(f"s_add_u32 s{sT1}, s{sKSO2}, {kv_tile(a) * TILE}")
            off = f"offset:{bb*128} " if bb else ""
            g.vm(f"U{u % 96}", f"buffer_load_dwordx4 v{PKV_}, s[{srd}:{srd+3}], s{sT1} offen {off}{OPT['kv']} lds")
        return f
    st = dict(pub=0, iss=0)
    def kv_tags(k):
        upto = XB_[k + 1] if k < NX - 1 else 384
        n = -(-(upto + LEAD) // 4) if upto < 384 else 96
        tags = [f"U{u}" for u in range(st["pub"], n)]
        st["pub"] = max(st["pub"], n)
        return tags
    def kv_issue(k):
        out = []
        while 4 * (st["iss"] - KL) + 4 <= XB_[k]:
            out.append(dma_sub(st["iss"])); st["iss"] += 1
        return out
    def touch_o(t):
        nsh = 16 if OPT["map"] == 0 else 8
        per = 245760 // (4 * nsh)
        e(f"""
s_and_b32 s{sT1}, s{sB}, {nsh-1}
s_lshl_b32 s{sT1}, s{sT1}, 2
s_add_u32 s{sT1}, s{sT1}, s{sW4}
s_mul_i32 s{sT1}, s{sT1}, {per}
s_sub_u32 s{sT2}, s{sSLOT}, 1
s_mul_i32 s{sT2}, s{sT2}, 245760
s_add_u32 s{sT1}, s{sT1}, s{sT2}
s_mov_b32 m0, {SPARE}
v_lshrrev_b32 v{t}, 4, v{OB}
v_min_u32 v{t}, {per//128-1}, v{t}
v_lshlrev_b32 v{t}, 7, v{t}
""")
        g.vm("pf", f"buffer_load_dword v{t}, s[{sOd}:{sOd+3}], s{sT1} offen lds")
    BAR = OPT["bar"]
    dq = []; clock = [0]; pq = []
    def defer(at, ins):
        for x in ins: dq.append((at, x))
    def run_dq(n):
        while n > 0 and dq and dq[0][0] <= clock[0]:
            x = dq.pop(0)[1]
            if callable(x): x()
            else: e(x)
            n -= 1
    def a_read(i, n):
        k, hf = divmod(n, 2)
        g.ld(f"o{i}a{k}", f"ds_read_b64_tr_b16 {v(AF(i,k)+2*hf,2)}, v{RA[k]} offset:{(i%4)*8192+hf*4096}")
    def b_read(b):
        i, rt = divmod(b, 7)
        g.ld(f"o{i}b{rt}", f"ds_read_b128 {v(BF(b),4)}, v{OB} offset:{QO+(i%6*7+rt)*1024}")
    def unpack_l(dst, src):
        return [f"v_perm_b32 v{dst+x}, v{src+x//2}, v{src+x//2}, s{sSHI if x & 1 else sSLO}" for x in range(4)]
    def pack_l(dst, src):
        return [f"v_cvt_pk_bf16_f32 v{dst}, v{src}, v{src+1}", f"v_cvt_pk_bf16_f32 v{dst+1}, v{src+2}, v{src+3}"]
    def gstore(ps, s):
        e(f"s_cmp_lg_u32 s{sSLOT}, 5")
        e(f"s_cbranch_scc1 t1_nst{ps}")
        def body():
            for rt in range(7):
                o = (ps * 7 + rt) * 1024
                if o % 4096 == 0 or rt == 0: e(f"s_mov_b32 s{sT3}, {o - o % 4096}")
                g.vm("st", f"buffer_store_dwordx4 {v(PK(ps*14+rt*2),4)}, v{OB}, s[{sPd}:{sPd+3}], s{sT3} offen offset:{o%4096} {OPT['st']}")
        g.optional(s == 5, body)
        g.label(f"t1_nst{ps}")
    def tick(i, s):
        key = f"o{i}"
        waits = ([f"O{i+1}"] if i < 29 else []) + kv_tags(i)
        while pq: pq.pop(0)[1]()
        if waits: g.wait_alt(key, waits, s == 5, f"s_cmp_eq_u32 s{sSLOT}, 5", f"t1_wa{key}")
        e("s_barrier")
        io = []
        if i == 26: io.append(lambda: e(f"s_add_u32 s{sOB}, s{sOB}, 245760"))
        io += dma_o({26: 2, 27: 3, 28: 0, 29: 1}.get(i, i + 4))
        items = kv_issue(i) + io if OPT["kvfirst"] and i < 28 else io + kv_issue(i)
        for j, f in enumerate(items): pq.append((clock[0] + (j * OPT["span"]) // len(items), f))
    def ostep(i, s):
        key = f"o{i}"
        ps, j = divmod(i, 6)
        c0 = clock[0]
        if j == 5 and ps < 4:
            for n in range(14):
                defer(c0 + n + 4, pack_l(PK(ps * 14 + n), AC(n)) + unpack_l(AC(n), PK((ps + 1) * 14 + n)))
            defer(c0 + 19, [lambda: gstore(ps, s)])
        for n in range(14):
            rt, k = divmod(n, 2)
            if n == BAR and i < 29: tick(i, s)
            tags = ([f"{key}b{rt}"] if k == 0 else []) + ([f"{key}a{k}"] if rt == 0 else [])
            if tags: g.wait("lg", f"{key}m{n}", tags)
            mfma(e, AC(n), AF(i, k), BF(7 * i + rt), AC(n))
            if k == 1 and 7 * i + rt + 6 < 210: b_read(7 * i + rt + 6)
            if k == 0 and i < 29 and BAR < n <= BAR + 8: a_read(i + 1, (n - BAR - 1) // 2)
            while pq and pq[0][0] <= clock[0]: pq.pop(0)[1]()
            clock[0] += 1
            run_dq(6)
    def q_write(reg):
        for rt in range(7):
            for k in range(3): e(f"ds_write_b64 v{AC(0)+k}, {v(reg(rt,k),2)} offset:{QO+rt*1024}")
        e("s_waitcnt lgkmcnt(0)")
    def q_addr():
        t = AC(1)
        e(f"v_lshrrev_b32 v{t}, 5, v{OB}")
        e(f"v_and_b32 v{t}, 8, v{t}")
        e(f"v_add_u32 v{t}, v{t}, v{OB}")
        for k in range(3):
            e(f"""
s_mul_i32 s{sT1}, s{sW4}, 3
s_add_u32 s{sT1}, s{sT1}, {k}
s_lshr_b32 s{sT2}, s{sT1}, 1
s_mul_i32 s{sT2}, s{sT2}, 7168
s_and_b32 s{sT1}, s{sT1}, 1
s_lshl_b32 s{sT1}, s{sT1}, 3
v_xor_b32 v{AC(0)+k}, s{sT1}, v{t}
v_add_u32 v{AC(0)+k}, s{sT2}, v{AC(0)+k}
""")

    e(f"""
s_mul_i32 s{sOB}, s{sW4}, {8*1280}
s_lshl_b32 s{sLW}, s{sW4}, 11
s_lshl_b32 s{sL1}, s{sW4}, 10
s_mov_b32 s{sSLOT}, 1
s_mov_b32 s{sRX}, 0x01000c0c
s_mov_b32 s{sRX+1}, 0x03020c0c
""")
    for u in range(N0 - 96):
        g.vq.append(f"U{u}"); g.issued[f"U{u}"] = 1
    st.update(pub=0, iss=N0 - 96)
    g.wait("vm", "i_t0", kv_tags(-1))
    e("s_barrier")
    stamp_slot(e)
    e("s_barrier")
    for rt in range(7):
        for k in range(3): e(f"ds_write_b64 v{QW[k]}, {v(QAC(0,rt,k),2)} offset:{QO+rt*1024}")
    def setup():
        e("s_waitcnt lgkmcnt(0)")
        for k in range(21):
            for x in range(2): e(f"v_mov_b32 v{2*k+x}, v{QAC(1,k//3,k%3)+x}")
        for k in range(21):
            for x in range(2): e(f"v_mov_b32 v{Q2(k)+x}, v{2*k+x}")
        lane_regs(e)
        e(f"""
v_lshlrev_b32 v{OB}, 4, v2
v_lshlrev_b32 v10, 1, v4
v_xor_b32 v10, v3, v10
v_lshlrev_b32 v10, 4, v10
v_mul_u32_u24 v11, 1280, v4
v_add_u32 v{PO[0]}, v10, v11
v_xor_b32 v10, 128, v10
v_add_u32 v10, v10, v11
v_add_u32 v{PO[1]}, 4096, v10
s_lshl_b32 s{sT1}, s{sW4}, 1
v_and_b32 v10, 7, v5
v_xor_b32 v10, s{sT1}, v10
v_lshlrev_b32 v10, 5, v10
v_lshl_add_u32 v10, v5, 8, v10
v_lshl_add_u32 v10, v7, 3, v10
v_add_u32 v{RA[0]}, {T1R}, v10
v_xor_b32 v{RA[1]}, 32, v{RA[0]}
""")
    task = {0: setup}
    if OPT["touch"]: task[4] = lambda: touch_o(AF(0, 0))
    for k in range(NX):
        w = kv_tags(k)
        if w: g.wait("vm", f"i{k}", w)
        e("s_barrier")
        for f in kv_issue(k): f()
        if k in task: task[k]()
        if k >= 26:
            for f in dma_o({26: 2, 27: 3, 28: 0, 29: 1}[k]): f()
    for s in range(2, 6):
        if s != 2: g.mute += 1
        g.label("t1_slot")
        assert st["iss"] == N0
        st.update(pub=0, iss=N0 - 96)
        e(f"""
s_add_u32 s{sSLOT}, s{sSLOT}, 1
s_add_u32 s{sKSO2}, s{sKSO2}, 196608
s_cmp_eq_u32 s{sSLOT}, 2
s_cselect_b32 s{sSLO}, 0x0c0c0c0c, s{sRX}
s_cselect_b32 s{sSHI}, 0x0c0c0c0c, s{sRX+1}
""")
        g.wait("vm", "t0", kv_tags(-1))
        e("s_barrier")
        if not g.mute: stamp_slot(e)
        if OPT["touch"]: touch_o(AF(0, 0))
        for k in range(14):
            for x in unpack_l(AC(k), PK(k)): e(x)
        g.wait("vm", "o_in", ["O0"])
        e("s_barrier")
        stamp_if(e, 12, OPT["ps"])
        a_read(0, 0); a_read(0, 1); b_read(0); a_read(0, 2); a_read(0, 3)
        for n in range(1, 6): b_read(n)
        for i in range(30): ostep(i, s)
        stamp_if(e, 13, OPT["ps"])
        tick(29, s)
        while pq: pq.pop(0)[1]()
        e(f"s_cmp_lg_u32 s{sSLOT}, 2")
        e("s_cbranch_scc1 t1_noq2")
        for k in range(3): e(f"v_mov_b32 v{BF(0)+k}, v{AC(0)+k}")
        e(f"v_mov_b32 v{BF(0)+3}, v{AC(1)}")
        q_addr()
        q_write(lambda rt, k: Q2(rt * 3 + k))
        for k in range(3): e(f"v_mov_b32 v{AC(0)+k}, v{BF(0)+k}")
        e(f"v_mov_b32 v{AC(1)}, v{BF(0)+3}")
        g.label("t1_noq2")
        for n in range(14):
            for x in pack_l(PK(56 + n), AC(n)): e(x)
        gstore(4, s)
        assert not dq
        e(f"s_cmp_lg_u32 s{sSLOT}, 5")
        e("s_cbranch_scc1 t1_slot")
        if s != 2: g.mute -= 1
    e("s_waitcnt vmcnt(0)")
    stamp(e, 10); stamp(e, 11, real=True)
    dump_stamps(e, 28, 64 << 20, 8)
    g.label("t1_exit")
    e("s_endpgm")
    return g.rec

def build(needs):
    p = Prog()
    p(f"""
.globl attn_kernel
.p2align 8
.type attn_kernel,@function
attn_kernel:
s_cmp_ge_u32 s2, 256
s_cbranch_scc1 k1_end
s_load_dwordx16 s[4:19], s[0:1], 0
s_load_dwordx8 s[20:27], s[0:1], 64
s_load_dwordx2 s[28:29], s[0:1], 96
v_lshrrev_b32 v1, 6, v0
v_and_b32 v2, 63, v0
v_readfirstlane_b32 s{sWAVE}, v1
s_and_b32 s{sT1}, s2, 7
s_lshr_b32 s{sT2}, s2, 3
""")
    if OPT["map"] == 0:
        p(f"""
s_and_b32 s{sQUAD}, s{sT1}, 3
s_lshl_b32 s{sQUAD}, s{sQUAD}, 1
s_and_b32 s{sB}, s{sT2}, 1
s_add_u32 s{sQUAD}, s{sQUAD}, s{sB}
s_lshr_b32 s{sB}, s{sT2}, 1
""")
    else:
        p(f"""
s_and_b32 s{sQUAD}, s{sT1}, 1
s_lshl_b32 s{sQUAD}, s{sQUAD}, 2
s_and_b32 s{sB}, s{sT2}, 3
s_add_u32 s{sQUAD}, s{sQUAD}, s{sB}
s_and_b32 s{sB}, s{sT1}, 2
s_lshl_b32 s{sB}, s{sB}, 2
s_lshr_b32 s{sT2}, s{sT2}, 2
s_add_u32 s{sB}, s{sB}, s{sT2}
""")
    p(f"""
s_and_b32 s{sW4}, s{sWAVE}, 3
s_lshr_b32 s{sTEAM}, s{sWAVE}, 2
s_mul_i32 s{sLW}, s{sW4}, 3072
s_mov_b32 s{sKd+2}, {0 if OPT['nokv'] else 786432}
s_mov_b32 s{sKd+3}, 0x20000
s_mov_b32 s{sVd+2}, {0 if OPT['nokv'] else 786432}
s_mov_b32 s{sVd+3}, 0x20000
s_mov_b32 s{sWd+3}, 0x20000
s_mov_b32 s{sOd+2}, {0 if OPT['now'] else 983040}
s_mov_b32 s{sOd+3}, 0x20000
s_mov_b32 s{sXd+2}, {0 if OPT['nox'] else 143360}
s_mov_b32 s{sXd+3}, 0x20000
s_mov_b32 s{sPd+2}, {35840+QO}
s_mov_b32 s{sPd+3}, 0x20000
s_waitcnt lgkmcnt(0)
s_cmp_lt_u32 s{sT1}, 4
s_cselect_b64 s[4:5], s[4:5], s[14:15]
s_cselect_b64 s[6:7], s[6:7], s[16:17]
s_cselect_b64 s[8:9], s[8:9], s[18:19]
s_cselect_b64 s[10:11], s[10:11], s[20:21]
s_cselect_b64 s[12:13], s[12:13], s[22:23]
s_cselect_b32 s{sT3}, 0, 16
s_mul_i32 s{sT2}, s{sB}, 143360
s_add_u32 s{sXd}, s4, s{sT2}
s_addc_u32 s{sXd+1}, s5, 0
s_mul_i32 s{sT2}, s{sQUAD}, 1536
s_add_u32 s{sWd}, s10, s{sT2}
s_addc_u32 s{sWd+1}, s11, 0
s_sub_u32 s{sWd+2}, 7864320, s{sT2}
{'s_mov_b32 s%d, 0' % (sWd+2) if OPT['now'] else ''}
s_lshl_b32 s{sT1}, s{sB}, 3
s_add_u32 s{sT1}, s{sT1}, s{sQUAD}
s_mul_i32 s{sT2}, s{sT1}, 786432
s_add_u32 s{sKd}, s6, s{sT2}
s_addc_u32 s{sKd+1}, s7, 0
s_add_u32 s{sVd}, s8, s{sT2}
s_addc_u32 s{sVd+1}, s9, 0
s_mul_i32 s{sT2}, s{sQUAD}, 983040
s_add_u32 s{sOd}, s12, s{sT2}
s_addc_u32 s{sOd+1}, s13, 0
s_lshl_b32 s{sT3}, s{sT3}, 3
s_add_u32 s{sT1}, s{sT1}, s{sT3}
s_mul_i32 s{sT1}, s{sT1}, {PART_CU}
s_mul_i32 s{sT2}, s{sW4}, 35840
s_add_u32 s{sT1}, s{sT1}, s{sT2}
s_add_u32 s{sT1}, s{sT1}, {PART0-QO}
s_add_u32 s{sPd}, s28, s{sT1}
s_addc_u32 s{sPd+1}, s29, 0
""")
    stamp(p, 0); stamp(p, 1, real=True)
    rec = {}
    rec["qp"] = qp_phase(p, needs.get("qp", {}))
    p(f"""
s_cmp_ge_u32 s{sWAVE}, 4
s_cbranch_scc1 k1_t1
""")
    if OPT["prio0"]: p(f"s_setprio {OPT['prio0']}")
    p(f"""
s_cmp_eq_u32 s{sWAVE}, 3
s_cbranch_scc1 k1_light
""")
    rec["h"] = t0_path(p, needs.get("h", {}), 2, "h")
    p.label("k1_light")
    rec["l"] = t0_path(p, needs.get("l", {}), 1, "l")
    p.label("k1_t1")
    if OPT["not1"]: p("s_endpgm")
    if OPT["prio1"]: p(f"s_setprio {OPT['prio1']}")
    rec["t1"] = t1_path(p, needs.get("t1", {}))
    p("""
k1_end:
s_endpgm
""")
    return p, rec

def reduce_kernel():
    p = Prog()
    p(f"""
.globl reduce_kernel
.p2align 8
.type reduce_kernel,@function
reduce_kernel:
s_cmp_ge_u32 s2, 1120
s_cbranch_scc1 k2_end
s_load_dwordx2 s[8:9], s[0:1], 80
s_load_dwordx2 s[10:11], s[0:1], 96
v_lshrrev_b32 v1, 6, v0
v_and_b32 v2, 63, v0
v_readfirstlane_b32 s3, v1
s_lshl_b32 s4, s2, 2
s_add_u32 s4, s4, s3
s_mul_i32 s5, s4, 59919
s_lshr_b32 s5, s5, 23
s_mul_i32 s6, s5, 140
s_sub_u32 s6, s4, s6
s_mul_i32 s7, s5, {8*PART_CU}
s_add_u32 s7, s7, {PART0}
s_lshl_b32 s20, s6, 10
v_lshlrev_b32 v3, 4, v2
s_mov_b32 s14, {8*PART_CU}
s_mov_b32 s15, 0x20000
s_waitcnt lgkmcnt(0)
s_add_u32 s12, s10, s7
s_addc_u32 s13, s11, 0
""")
    for q in range(8):
        p(f"buffer_load_dwordx4 v[{8+4*q}:{11+4*q}], v3, s[12:15], s20 offen {OPT['rd']}")
        if q < 7: p(f"s_add_u32 s20, s20, {PART_CU}")
    p(f"""
s_mul_i32 s21, s6, 235
s_lshr_b32 s21, s21, 13
s_mul_i32 s22, s21, 35
s_sub_u32 s22, s6, s22
s_and_b32 s23, s5, 15
s_mul_i32 s23, s23, {112*2560}
s_lshr_b32 s24, s5, 4
s_mul_i32 s24, s24, 1280
s_add_u32 s23, s23, s24
s_mov_b32 s16, s8
s_mov_b32 s17, s9
s_mov_b32 s18, {16*112*2560}
s_mov_b32 s19, 0x20000
v_and_b32 v4, 15, v2
v_mul_u32_u24 v4, 2560, v4
v_lshrrev_b32 v5, 4, v2
v_lshl_add_u32 v4, v5, 3, v4
""")
    p(f"""
s_mul_i32 s26, s22, 37
s_lshr_b32 s26, s26, 8
s_mul_i32 s27, s26, 7
s_sub_u32 s27, s22, s27
s_lshl_b32 s30, s26, 8
s_lshl_b32 s31, s21, 6
s_add_u32 s30, s30, s31
s_mul_i32 s28, s27, {16*2560}
s_add_u32 s30, s30, s28
s_add_u32 s32, s30, s23
""")
    for q in range(8):
        p(f"s_waitcnt vmcnt({7-q})")
        for i in range(4):
            r = 8 + 4 * q + i
            if q == 0:
                p(f"v_lshlrev_b32 v{40+2*i}, 16, v{r}")
                p(f"v_and_b32 v{41+2*i}, 0xffff0000, v{r}")
            else:
                p(f"v_lshlrev_b32 v48, 16, v{r}")
                p(f"v_and_b32 v49, 0xffff0000, v{r}")
                p(f"v_add_f32 v{40+2*i}, v{40+2*i}, v48")
                p(f"v_add_f32 v{41+2*i}, v{41+2*i}, v49")
    for i in range(4): p(f"v_cvt_pk_bf16_f32 v{50+i}, v{40+2*i}, v{41+2*i}")
    p("""
buffer_store_dwordx2 v[50:51], v4, s[16:19], s32 offen
buffer_store_dwordx2 v[52:53], v4, s[16:19], s32 offen offset:32
k2_end:
s_endpgm
""")
    return p

def desc(name, vg):
    return f""".amdhsa_kernel {name}
  .amdhsa_next_free_vgpr {vg}
  .amdhsa_next_free_sgpr 102
  .amdhsa_accum_offset {vg}
  .amdhsa_group_segment_fixed_size 0
  .amdhsa_kernarg_size 104
  .amdhsa_user_sgpr_count 2
  .amdhsa_user_sgpr_kernarg_segment_ptr 1
  .amdhsa_system_sgpr_workgroup_id_x 1
.end_amdhsa_kernel
"""

def main():
    for t in range(4480): assert (t * 59919) >> 23 == t // 140
    for t in range(140): assert (t * 235) >> 13 == t // 35
    for t in range(35): assert (t * 37) >> 8 == t // 7
    _, rec = build({})
    for it in range(4):
        a, rec2 = build(rec)
        if rec2 == rec: break
        rec = rec2
    else: raise SystemExit("no fixpoint")
    b = reduce_kernel()
    if OPT["novm"]: a.L[:] = [l for l in a.L if not l.startswith("buffer_load")]
    if OPT["nobar"]: a.L[:] = [l for l in a.L if not l.startswith("s_barrier")]
    if OPT["nolg"]:
        out_ = []
        for i_, l in enumerate(a.L):
            if l.startswith("s_waitcnt lgkmcnt") and not a.L[i_-1].startswith(("s_mem", "s_load")) and i_ > 60: continue
            out_.append(l)
        a.L[:] = out_
    if OPT["nord"]: a.L[:] = [l for l in a.L if not l.startswith("ds_read")]
    if OPT["noexp"]: a.L[:] = [l.replace("v_exp_f32", "v_mov_b32") if l.startswith("v_exp_f32") and "-v" not in l else l for l in a.L]
    if OPT["nosm"]: a.L[:] = [l for l in a.L if not l.startswith(("v_exp_f32", "v_cvt_pk"))]
    if OPT["nochk"]: a.L[:] = [l for l in a.L if not l.startswith(("v_or3", "v_or_b32", "v_cmp_ne", "s_cbranch_vccz", "v_and_b32 v252"))]
    if OPT["prof"] == 2:
        out_ = []; L_ = a.L; inrole = False; i_ = 0
        while i_ < len(L_):
            l = L_[i_]
            if l.startswith(("t0_unit", "t1_slot")): inrole = True
            if l.startswith(("t0_exit", "t1_exit")): inrole = False
            if inrole and l == "s_barrier":
                j = len(out_)
                while j > 0 and (out_[j-1].startswith(("s_waitcnt vmcnt", "s_cmp_eq_u32 s55, 5", "s_cbranch_scc1 t1_wa")) or out_[j-1].startswith("t1_wa")): j -= 1
                blk = out_[j:]; del out_[j:]
                out_ += ["s_memtime s[4:5]"] + blk + ["s_memtime s[6:7]", "s_barrier", "s_memtime s[8:9]", "s_waitcnt lgkmcnt(0)",
                         "s_sub_u32 s4, s6, s4", "s_add_u32 s94, s94, s4", "s_sub_u32 s6, s8, s6", "s_add_u32 s95, s95, s6"]
            elif inrole and l.startswith("buffer_load") and l.endswith("lds"):
                out_ += ["s_memtime s[4:5]", l, "s_memtime s[6:7]", "s_waitcnt lgkmcnt(0)", "s_sub_u32 s4, s6, s4", "s_add_u32 s89, s89, s4"] if OPT["pv"] else [l]
            elif l.startswith(("k1_light:", "k1_t1:")) or l.startswith("s_cbranch_scc1 k1_light"):
                out_ += [l, "s_mov_b32 s94, 0", "s_mov_b32 s95, 0", "s_mov_b32 s89, 0"]
            else: out_.append(l)
            i_ += 1
        a.L[:] = out_
    if OPT["prof"] == 3:
        out_ = []; inrole = False; idx = 0
        for l in a.L:
            if l.startswith(("t0_unit", "t1_slot")): inrole = True; idx = 0
            if l.startswith(("t0_exit", "t1_exit")) or l.startswith("s_cbranch_scc1 t1_slot"): inrole = False
            if l.startswith("s_cselect_b32 s8") or l.startswith("s_cselect_b32 s9") or l.startswith("s_mov_b32 s9") and "s100" in l: continue
            if inrole and l == "s_barrier":
                k = idx - OPT["pb"]; idx += 1
                st_ = ["s_memtime s[100:101]", "s_waitcnt lgkmcnt(0)", f"s_cmp_eq_u32 s{sSLOT}, {OPT['ps']}", f"s_cselect_b32 s{80+k}, s100, s{80+k}"] if 0 <= k < 16 else []
                out_ += (st_ + [l]) if OPT["pa"] else ([l] + st_)
            else: out_.append(l)
        a.L[:] = out_
    if OPT["dynp"]:
        out_ = []; int1 = False
        for l in a.L:
            if l.startswith("k1_t1:"): int1 = True
            if int1 and l.startswith("buffer_load") and l.endswith("lds"):
                out_ += [f"s_setprio {OPT['dynp']}", l, f"s_setprio {OPT['prio1']}"]
            else: out_.append(l)
        a.L[:] = out_
    n1 = fix_hazards(a.L); n2 = fix_hazards(b.L)
    print("nops inserted", n1, n2, "instrs", len(a.L), len(b.L), file=sys.stderr)
    hdr = open("cdna_kernels/" + NAME + ".s.ref").read().split("; Override launch")[0]
    out = hdr
    out += f"; @launch kernel=attn_kernel grid=(256,1,1) block=(512,1,1) lds={LDS_BYTES}\n"
    out += f"; @launch kernel=reduce_kernel grid=(1120,1,1) block=(256,1,1) lds=0\n"
    out += '.amdgcn_target "amdgcn-amd-amdhsa--gfx950"\n.text\n'
    out += a.text() + b.text()
    out += '.section .rodata,"a"\n.p2align 6\n' + desc("attn_kernel", 256) + ".p2align 6\n" + desc("reduce_kernel", 56)
    open(sys.argv[1], "w").write(out)
main()
```

```python
import sys, math, struct, copy
sys.path.insert(0, "work")
from asmlib import *

NAME = "concat_heads__mha_block_cached__gqa_block_cached__near_ridge"
OPT = dict(kv="nt", w="", x="", wo="", st="", rd="", prof=0, prio0=0, prio1=0, touch=1, nox=0, now=0, nokv=0, nomf=0,
           novm=0, lead=4, bp="6.16.26.36.42", map=0, hack="", t1b=0, ps=5, kdel=0, x0=4, xt=0, dynp=0, nopark=0, gap=0, span=4, pa=0, pb=0, m=2, nlat=0, nonar=0, bar=3, kvfirst=1, w2=1, psplit=1, nb1=8, nb2=29, kl=12, tl=4, kvat=18, qst="", noq=0, noqst=0, pv=0, nobar=0, nolg=0, nord=0, norare=0, not1=0, noexp=0, nochk=0, nosm=0)
for a in sys.argv[2:]:
    k, val = a.split("=")
    OPT[k] = int(val) if val.lstrip("-").isdigit() else (val if k in ("bp", "hack") else val.replace("+", " ").replace("-", ""))
TILE = 12288
QO = 0
T1R = 43008
B2 = T1R + 32768
KVB = B2 + 36864
NS = 12
SPARE = KVB + NS * 4096
LDS_BYTES = SPARE + 2048
QPARK = 48 << 20
PART0 = 1 << 20
PART_CU = 4 * 35 * 1024
LEAD = OPT["lead"]
NX = 30
XB_ = [OPT["x0"] + 4 * ((k * 96) // NX) for k in range(NX)]
def f2u(f): return struct.unpack("<I", struct.pack("<f", f))[0]

sKd, sVd, sWd, sOd, sXd, sPd, sQd = 32, 36, 40, 44, 48, 76, 24
sWAVE, sB, sQUAD, sSLOT, sCTR, sW4 = 52, 53, 54, 55, 57, 56
sT1, sT2, sT3 = 62, 63, 61
sKSO, sVSO, sLW = 58, 59, 60
sWB, sOB, sXB, sXM, sSTR, sXF = 58, 59, 70, 71, 72, 73
sC, sBIT = 66, 68
sRET = 30
sTEAM, sWB2, sKSO2, sL1, sSLO, sSHI = 74, 75, 65, 64, 69, 72
PKV_ = 255
sRX, sRY, sRZ, sSP = 14, 17, 20, 23

def stamp(e, k, real=False):
    if not OPT["prof"]: return
    e(f"s_mem{'real' if real else ''}time s[100:101]")
    e("s_waitcnt lgkmcnt(0)")
    e(f"s_mov_b32 s{80+k}, s100")
def stamp_slot(e):
    if not OPT["prof"]: return
    e("s_memtime s[100:101]")
    e("s_waitcnt lgkmcnt(0)")
    for k in range(0, 7):
        e(f"s_cmp_eq_u32 s{sSLOT}, {k}")
        e(f"s_cselect_b32 s{82+k}, s100, s{82+k}")
def stamp_if(e, k, slot):
    if not OPT["prof"]: return
    e("s_memtime s[100:101]")
    e("s_waitcnt lgkmcnt(0)")
    e(f"s_cmp_eq_u32 s{sSLOT}, {slot}")
    e(f"s_cselect_b32 s{80+k}, s100, s{80+k}")
def dump_stamps(e, wsreg, base, nw):
    if not OPT["prof"]: return
    e(f"""
s_mul_i32 s100, s2, {nw}
s_add_u32 s100, s100, s{sWAVE}
s_lshl_b32 s100, s100, 6
s_add_u32 s100, s100, {base}
s_add_u32 s96, s{wsreg}, s100
s_addc_u32 s97, s{wsreg+1}, 0
s_mov_b32 s98, 64
s_mov_b32 s99, 0x20000
v_mov_b32 v1, 0
""")
    for k in range(16):
        e(f"v_mov_b32 v0, s{80+k}")
        e(f"buffer_store_dword v0, v1, s[96:99], 0 offen offset:{k*4}")
    e("s_waitcnt vmcnt(0)")

class Gen:
    def __init__(self, prog, needs):
        self.p = prog; self.needs = needs; self.rec = {}
        self.mute = 0
        self.vq = []; self.lq = []; self.pend = []; self.issued = {}
        self.nosim = 0
    def e(self, s):
        if not self.mute: self.p(s)
    def label(self, n):
        if not self.mute: self.p.label(n)
    def wait(self, kind, key, tags, drain_tags=()):
        q = self.vq if kind == "vm" else self.lq
        for t in tags:
            assert self.issued.pop(t, 0) > 0, (t, key)
        tags = list(tags) + list(drain_tags)
        idx = [i for i, t in enumerate(q) if t in tags]
        n = len(q) - 1 - max(idx) if idx else 999
        if n != 999: n = min(n, 63 if kind == "vm" else 15)
        k = (kind, key)
        self.rec[k] = min(self.rec.get(k, 999), n)
        val = self.needs.get(k, n)
        if val == 999: return
        self.e(f"s_waitcnt {'vmcnt' if kind == 'vm' else 'lgkmcnt'}({val})")
        del q[:len(q) - val if val < len(q) else 0]
    def wait_alt(self, key, tags, alt, cmp_txt, lab):
        q = self.vq
        for t in tags: assert self.issued.pop(t, 0) > 0, (t, key)
        idx = [i for i, t in enumerate(q) if t in tags]
        n = min(len(q) - 1 - max(idx), 63) if idx else 999
        k = ("vm", key, alt)
        self.rec[k] = min(self.rec.get(k, 999), n)
        va, vb = self.needs.get(("vm", key, False), 0), self.needs.get(("vm", key, True), 0)
        if vb != 999 and vb > va: self.e(f"s_waitcnt vmcnt({vb})")
        if vb > va:
            self.e(cmp_txt); self.e(f"s_cbranch_scc1 {lab}")
        val = min(va, vb) if not (alt and vb > va) else vb
        if min(va, vb) != 999: self.e(f"s_waitcnt vmcnt({min(va, vb)})")
        if vb > va: self.label(lab)
        if val != 999: del q[:len(q) - val if val < len(q) else 0]
    def vm(self, tag, text):
        self.e(text); self.vq.append(tag); self.issued[tag] = self.issued.get(tag, 0) + 1
    def ld(self, tag, text):
        self.e(text); self.lq.append(tag); self.issued[tag] = self.issued.get(tag, 0) + 1
    def drain(self, n=1):
        for _ in range(n):
            if self.pend: self.pend.pop(0)()
    def optional(self, taken, fn):
        if taken: fn()
        elif not self.mute:
            st = (list(self.vq), list(self.lq), dict(self.issued))
            fn()
            self.vq[:], self.lq[:] = st[0], st[1]; self.issued = st[2]

def mfma(e, d, a, b, c):
    if not OPT["nomf"]:
        e(f"v_mfma_f32_16x16x32_bf16 {v(d,4)}, {v(a,4)}, {v(b,4)}, {c if c == '0' else v(c,4)}")


KL = OPT["kl"]
N0 = max(u for u in range(300) if 4 * (u - KL) + 4 <= XB_[-1]) + 1
def lane_regs(e, b=2):
    e(f"""
v_mbcnt_lo_u32_b32 v{b}, -1, 0
v_mbcnt_hi_u32_b32 v{b}, -1, v{b}
v_and_b32 v{b+1}, 15, v{b}
v_lshrrev_b32 v{b+2}, 4, v{b}
v_lshrrev_b32 v{b+3}, 2, v{b}
v_and_b32 v{b+4}, 3, v{b+3}
v_and_b32 v{b+5}, 3, v{b}
v_lshrrev_b32 v{b+6}, 3, v{b}
v_and_b32 v{b+7}, 7, v{b}
""")
def kv_kind(a):
    a %= 32
    return "K" if (a == 0 or (a % 2 == 1 and a < 31)) else "V"
def kv_tile(a):
    u, a = divmod(a, 32)
    return u * 16 + (0 if a == 0 else 15 if a == 31 else (a + 1) // 2 if a % 2 == 1 else (a - 2) // 2)
def QAC(hh, rt, k): return ((hh * 7 + rt) * 3 + k) * 4
QW = [248, 249, 250]


class OpEngine:
    def __init__(self, g, PK, AC0, AF0, BF0, RA, OB, PO, ring, sM0, ringoff):
        self.g, self.e = g, g.e
        self.PK, self.AC0, self.AF0, self.BF0, self.RA, self.OB, self.PO = PK, AC0, AF0, BF0, RA, OB, PO
        self.ring, self.sM0, self.ro = ring, sM0, ringoff
        self.dq = []; self.pq = []; self.clock = 0
    def AC(self, k): return self.AC0 + 4 * k
    def AF(self, s, i): return self.AF0 + 8 * (s & 1) + 4 * i
    def BF(self, n): return self.BF0 + 4 * (n % 6)
    def slot(self, i): return ((i + self.ro) % 4) * 8192
    def addr_setup(self):
        e = self.e
        lane_regs(e, 232)
        L = 232
        e(f"""
v_lshlrev_b32 v{self.OB}, 4, v{L}
v_lshlrev_b32 v{L+8}, 1, v{L+2}
v_xor_b32 v{L+8}, v{L+1}, v{L+8}
v_lshlrev_b32 v{L+8}, 4, v{L+8}
v_mul_u32_u24 v{L+9}, 1280, v{L+2}
v_add_u32 v{self.PO[0]}, v{L+8}, v{L+9}
v_xor_b32 v{L+8}, 128, v{L+8}
v_add_u32 v{L+8}, v{L+8}, v{L+9}
v_add_u32 v{self.PO[1]}, 4096, v{L+8}
s_lshl_b32 s{sT1}, s{sW4}, 1
v_and_b32 v{L+8}, 7, v{L+3}
v_xor_b32 v{L+8}, s{sT1}, v{L+8}
v_lshlrev_b32 v{L+8}, 5, v{L+8}
v_lshl_add_u32 v{L+8}, v{L+3}, 8, v{L+8}
v_lshl_add_u32 v{L+8}, v{L+5}, 3, v{L+8}
v_add_u32 v{self.RA[0]}, {self.ring}, v{L+8}
v_xor_b32 v{self.RA[1]}, 32, v{self.RA[0]}
""")
    def dma(self, i):
        ps, j = divmod(i, 6)
        out = []
        for q in range(2):
            def f(q=q):
                if q == 0:
                    self.e(f"s_add_u32 m0, s{self.sM0}, {self.ring+self.slot(i)}")
                    self.e(f"s_add_u32 s{sT2}, s{sOB}, {j*32*1280+ps*256}")
                o = "offset:1024 " if q else ""
                self.g.vm(f"O{i}", f"buffer_load_dwordx4 v{self.PO[q]}, s[{sOd}:{sOd+3}], s{sT2} offen {o}{OPT['wo']} lds")
            out.append(f)
        return out
    def defer(self, at, ins):
        for x in ins: self.dq.append((at, x))
    def run_dq(self, n):
        while n > 0 and self.dq and self.dq[0][0] <= self.clock:
            x = self.dq.pop(0)[1]
            if callable(x): x()
            else: self.e(x)
            n -= 1
    def flush_pq(self):
        while self.pq: self.pq.pop(0)[1]()
    def a_read(self, i, n):
        k, hf = divmod(n, 2)
        self.g.ld(f"o{i}a{k}", f"ds_read_b64_tr_b16 {v(self.AF(i,k)+2*hf,2)}, v{self.RA[k]} offset:{self.slot(i)+hf*4096}")
    def b_read(self, b):
        i, rt = divmod(b, 7)
        self.g.ld(f"o{i}b{rt}", f"ds_read_b128 {v(self.BF(b),4)}, v{self.OB} offset:{QO+(i%6*7+rt)*1024}")
    def first_reads(self, i):
        self.a_read(i, 0); self.a_read(i, 1); self.b_read(7 * i); self.a_read(i, 2); self.a_read(i, 3)
        for n in range(1, 6): self.b_read(7 * i + n)
    def unpack_l(self, dst, src):
        return [f"v_perm_b32 v{dst+x}, v{src+x//2}, v{src+x//2}, s{sSHI if x & 1 else sSLO}" for x in range(4)]
    def pack_l(self, dst, src):
        return [f"v_cvt_pk_bf16_f32 v{dst}, v{src}, v{src+1}", f"v_cvt_pk_bf16_f32 v{dst+1}, v{src+2}, v{src+3}"]
    def store_l(self, ps, rt):
        o = (ps * 7 + rt) * 1024
        return [f"s_mov_b32 s{sT3}, {o - o % 4096}",
                lambda: self.g.vm("st", f"buffer_store_dwordx4 {v(self.PK(ps*14+rt*2),4)}, v{self.OB}, s[{sPd}:{sPd+3}], s{sT3} offen offset:{o%4096} {OPT['st']}")]
    def step(self, key, i, last, tick, store=False, hooks=None):
        g, e = self.g, self.e
        ps, j = divmod(i, 6)
        BAR = OPT["bar"]
        c0 = self.clock
        if store and i >= last - 3 and i < last:
            todo = [(q, rt) for q in range(store[0], ps) for rt in range(7)]
            k = i - (last - 3)
            mine = todo[k * len(todo) // 3:(k + 1) * len(todo) // 3]
            for n, (q, rt) in enumerate(mine): self.defer(c0 + (6 if k == 0 else 0) + n * (8 if k == 0 else 14) // len(mine), self.store_l(q, rt))
        if j == 5 and (i < last or store):
            for n in range(14):
                ins = self.pack_l(self.PK(ps * 14 + n), self.AC(n))
                if i < last: ins += self.unpack_l(self.AC(n), self.PK((ps + 1) * 14 + n))
                if store and n % 2 == 1 and i == last: ins += self.store_l(ps, n // 2)
                self.defer(c0 + n + 4, ins)
        for n in range(14):
            rt, k = divmod(n, 2)
            if n == BAR and i < last: tick(i)
            if hooks and n in hooks: hooks[n]()
            tags = ([f"o{i}b{rt}"] if k == 0 else []) + ([f"o{i}a{k}"] if rt == 0 else [])
            if tags: g.wait("lg", f"{key}{i}m{n}", tags)
            mfma(e, self.AC(n), self.AF(i, k), self.BF(7 * i + rt), self.AC(n))
            if k == 1 and 7 * i + rt + 6 < 7 * (last + 1): self.b_read(7 * i + rt + 6)
            if k == 0 and i < last and BAR < n <= BAR + 8: self.a_read(i + 1, (n - BAR - 1) // 2)
            while self.pq and self.pq[0][0] <= self.clock: self.pq.pop(0)[1]()
            self.clock += 1
            self.run_dq(7)
    def finish(self):
        self.flush_pq(); self.clock += 100; self.run_dq(1000)

def qp_phase(p, needs):
    g = Gen(p, needs); e = g.e
    AC = QAC
    def AF(par, hh, k): return 168 + par * 24 + (hh * 3 + k) * 4
    def BF(n): return 216 + 4 * (n % 4)
    RA = [[232, 233, 234], [235, 236, 237]]; XA = [238, 239]; PW = [243, 244, 245]; PX = 246
    JUNK = 247
    STG = [KVB, T1R]
    NB1, NB2 = OPT["nb1"], OPT["nb2"]
    def dma_w(i, hh):
        out = []
        for ii in range(3):
            def f(ii=ii):
                if ii == 0:
                    e(f"s_add_u32 m0, s{sLW}, {STG[i&1]+hh*2*TILE}")
                    e(f"s_add_u32 s{sT1}, s{sWB2 if hh else sWB}, {i*32*12288}")
                o = f"offset:{ii*1024} " if ii else ""
                g.vm(f"W{i}.{hh}", f"buffer_load_dwordx4 v{PW[ii]}, s[{sWd}:{sWd+3}], s{sT1} offen {o}{OPT['w']} lds")
            out.append(f)
        return out
    def dma_x(pp):
        out = []
        for q in range(2):
            def f(q=q):
                if q == 0: e(f"s_add_u32 m0, s{sXM}, {QO+(pp%3)*14336}")
                else:
                    e(f"s_add_u32 s{sT2}, s{sXM}, {QO+(pp%3)*14336+8192}")
                    e(f"s_cmp_ge_u32 s{sWAVE}, 6")
                    e(f"s_cselect_b32 m0, s{sXF}, s{sT2}")
                e(f"s_add_u32 s{sT2}, s{sXB}, {pp*128+q*81920}")
                g.vm(f"X{pp}", f"buffer_load_dwordx4 v{PX}, s[{sXd}:{sXd+3}], s{sT2} offen {OPT['x']} lds")
            out.append(f)
        return out
    def a_read(i, hh, n):
        k, hf = divmod(n, 2)
        g.ld(f"{i}a{hh}{k}", f"ds_read_b64_tr_b16 {v(AF(i&1,hh,k)+2*hf,2)}, v{RA[i&1][k]} offset:{hh*2*TILE+hf*1536}")
    def b_read(i, rt):
        g.ld(f"{i}b{rt}", f"ds_read_b128 {v(BF(7*i+rt),4)}, v{XA[i&1]} offset:{((i>>1)%3)*14336+rt*2048}")
    lane_regs(e)
    e(f"""
v_lshrrev_b32 v13, 1, v8
v_and_b32 v13, 3, v13
v_lshlrev_b32 v13, 1, v13
v_xor_b32 v13, v9, v13
v_lshlrev_b32 v13, 4, v13
v_mul_u32_u24 v14, 1280, v8
v_add_u32 v{PX}, v13, v14
v_mul_u32_u24 v14, 384, v8
v_add_u32 v{PKV_}, v13, v14
s_mul_i32 s{sXB}, s{sWAVE}, 10240
s_lshl_b32 s{sXM}, s{sWAVE}, 10
s_sub_u32 s{sXF}, s{sXM}, 6144
s_add_u32 s{sXF}, s{sXF}, {SPARE}
""")
    for f in dma_x(0): f()
    e(f"""
s_and_b32 s{sT1}, s{sW4}, 1
s_lshl_b32 s{sT1}, s{sT1}, 2
v_xor_b32 v16, s{sT1}, v9
s_mul_i32 s{sWB}, s{sW4}, {8*12288}
s_mul_i32 s{sT1}, s{sTEAM}, 384
s_add_u32 s{sWB2}, s{sWB}, 1152
s_add_u32 s{sWB}, s{sWB}, s{sT1}
s_sub_u32 s{sWB2}, s{sWB2}, s{sT1}
s_mul_i32 s{sT1}, s{sTEAM}, {TILE}
s_add_u32 s{sLW}, s{sLW}, s{sT1}
""")
    for q in range(3):
        e(f"""
v_add_u32 v10, {8*q}, v8
v_mul_u32_u24 v11, 43, v10
v_lshrrev_b32 v11, 7, v11
v_mul_u32_u24 v12, 3, v11
v_sub_u32 v12, v10, v12
v_lshrrev_b32 v13, 1, v11
v_and_b32 v14, 1, v13
v_xor_b32 v14, v16, v14
v_lshlrev_b32 v14, 4, v14
v_lshl_add_u32 v14, v12, 7, v14
v_mul_u32_u24 v15, 12288, v11
v_add_u32 v14, v14, v15
v_subrev_u32 v{PW[q]}, {q*1024}, v14
""")
    for f in dma_w(0, 0) + dma_w(0, 1): f()
    if OPT["touch"]:
        nsh = 16 if OPT["map"] == 0 else 8
        rows = 640 // nsh // 8
        e(f"""
s_and_b32 s{sT1}, s{sB}, {nsh-1}
s_lshl_b32 s{sT1}, s{sT1}, 3
s_add_u32 s{sT1}, s{sT1}, s{sWAVE}
s_mul_i32 s{sT1}, s{sT1}, {rows*12288}
v_mul_u32_u24 v10, 43, v2
v_lshrrev_b32 v10, 9, v10
v_mul_u32_u24 v11, 12, v10
v_sub_u32 v11, v2, v11
v_mul_u32_u24 v10, 12288, v10
v_lshl_add_u32 v10, v11, 7, v10
""")
        for r in range(rows // 5):
            g.vm("pf", f"buffer_load_dword v{JUNK}, v10, s[{sWd}:{sWd+3}], s{sT1} offen")
            e(f"s_add_u32 s{sT1}, s{sT1}, {5*12288}")
    if OPT["touch"] and OPT["xt"]:
        e(f"""
s_and_b32 s{sT1}, s{sQUAD}, 1
s_mul_i32 s{sT1}, s{sT1}, 71680
s_mul_i32 s{sT2}, s{sWAVE}, {70*128}
s_add_u32 s{sT1}, s{sT1}, s{sT2}
v_lshlrev_b32 v10, 7, v2
""")
        g.vm("pf", f"buffer_load_dword v{JUNK}, v10, s[{sXd}:{sXd+3}], s{sT1} offen")
        g.vm("pf", f"buffer_load_dword v{JUNK}, v10, s[{sXd}:{sXd+3}], s{sT1} offen offset:768")
    e(f"""
v_lshrrev_b32 v8, 1, v3
v_and_b32 v8, 3, v8
v_lshlrev_b32 v8, 1, v8
v_xor_b32 v8, v4, v8
v_lshlrev_b32 v8, 4, v8
v_lshl_add_u32 v9, v3, 7, v8
v_add_u32 v{XA[0]}, {QO}, v9
v_xor_b32 v{XA[1]}, 64, v{XA[0]}
v_lshl_add_u32 v8, v4, 3, v6
v_mul_u32_u24 v9, 384, v8
v_lshrrev_b32 v8, 1, v6
v_and_b32 v11, 1, v4
v_lshl_add_u32 v8, v11, 2, v8
v_xor_b32 v8, v7, v8
v_lshl_add_u32 v9, v8, 4, v9
v_lshlrev_b32 v12, 3, v11
v_lshl_add_u32 v12, v2, 4, v12
v_and_b32 v11, 1, v7
v_lshl_add_u32 v11, v11, 3, v9
s_mov_b32 s{sC}, {hex(f2u(192 ** -0.5 * math.log2(math.e)))}
s_mov_b32 s{sC+1}, s{sC}
""")
    for i in range(3):
        e(f"""
s_mul_i32 s{sT1}, s{sW4}, 3
s_add_u32 s{sT1}, s{sT1}, {i}
s_lshr_b32 s{sT2}, s{sT1}, 2
s_lshl_b32 s{sRY+i}, s{sT2}, 7
s_and_b32 s{sT3}, s{sT1}, 3
s_xor_b32 s{sT3}, s{sT3}, s{sW4}
s_lshl_b32 s{sRX+i}, s{sT3}, 5
s_and_b32 s{sT3}, s{sT1}, 2
s_lshl_b32 s{sT3}, s{sT3}, 5
s_and_b32 s{sT2}, s{sT1}, 1
s_lshl_b32 s{sT2}, s{sT2}, 3
v_xor_b32 v{QW[i]}, s{sT2}, v12
s_or_b32 s{sT3}, s{sT3}, s{sT2}
v_xor_b32 v13, s{sT3}, v11
s_lshr_b32 s{sT1}, s{sT1}, 1
s_mul_i32 s{sT1}, s{sT1}, 7168
v_add_u32 v{QW[i]}, s{sT1}, v{QW[i]}
s_mul_i32 s{sT1}, s{sTEAM}, {TILE}
s_add_u32 s{sT1}, s{sT1}, s{sRY+i}
v_add_u32 v13, s{sT1}, v13
v_add_u32 v{RA[1][i]}, {T1R}, v13
v_add_u32 v{RA[0][i]}, {KVB}, v13
""")
    g.wait("vm", "in", ["W0.0", "W0.1", "X0"])
    e("s_barrier")
    stamp(e, 14)
    a_read(0, 0, 0); a_read(0, 0, 1); b_read(0, 0); b_read(0, 1)
    for n in range(2, 6): a_read(0, 0, n)
    for n in range(6): a_read(0, 1, n)
    for rt in range(2, 4): b_read(0, rt)
    for f in dma_w(1, 0) + dma_w(1, 1) + dma_x(1): f()
    ORD = [(rt, 0, k) for rt in (0, 1) for k in range(3)] + [(rt, 1, k) for rt in (0, 1) for k in range(3)]
    ORD += [(rt, hh, k) for rt in range(2, 7) for hh in range(2) for k in range(3)]
    lastb = {rt: max(n for n, x in enumerate(ORD) if x[0] == rt) for rt in range(7)}
    A0 = [NB1 + 2 + 3 * x for x in range(6)]
    A1 = [NB2 + 1 + 2 * x for x in range(6)]
    def qcvt(n):
        rt, hh, k = ORD[n]
        a = AC(hh, rt, k)
        e(f"v_pk_mul_f32 {v(a,2)}, {v(a,2)}, s[{sC}:{sC+1}]")
        e(f"v_pk_mul_f32 {v(a+2,2)}, {v(a+2,2)}, s[{sC}:{sC+1}]")
        e(f"v_cvt_pk_bf16_f32 v{a}, v{a}, v{a+1}")
        e(f"v_cvt_pk_bf16_f32 v{a+1}, v{a+2}, v{a+3}")
    for i in range(20):
        seen = set()
        for n, (rt, hh, k) in enumerate(ORD):
            if n == NB1 and i < 19:
                g.wait("lg", f"r1{i}", [], drain_tags=[f"{i}a1{x}" for x in range(3)])
                g.wait("vm", f"s{i}", [f"W{i+1}.0"] + ([f"X{(i+1)//2}"] if i % 2 == 1 else []))
                e("s_barrier")
                if i + 2 < 20: g.pend += (dma_w(i + 2, 0) if i == 0 else []) + dma_w(i + 2, 1)
                if i % 2 == 0 and i // 2 + 2 < 10: g.pend += dma_x(i // 2 + 2)
            if n == NB2 and i < 19:
                g.wait("lg", f"r2{i}", [], drain_tags=[f"{i+1}a0{x}" for x in range(3)])
                g.wait("vm", f"t{i}", [f"W{i+1}.1"])
                e("s_barrier")
                if i + 3 < 20: g.pend += dma_w(i + 3, 0)
            if n == NB2 + 1 and i == 18:
                e(f"s_cmp_eq_u32 s{sTEAM}, 0")
                e("s_cbranch_scc1 qp_nokv")
                e(f"s_mul_i32 s{sKSO2}, s{sW4}, 3072")
                e(f"s_lshl_b32 s{sT3}, s{sW4}, 10")
                for u in range(N0 - 96):
                    a, bb = divmod(u, 3)
                    e(f"s_add_u32 m0, s{sT3}, {KVB + (u % NS) * 4096 - bb * 128}")
                    e(f"s_add_u32 s{sT1}, s{sKSO2}, {kv_tile(a) * TILE}")
                    srd = sKd if kv_kind(a) == "K" else sVd
                    e(f"buffer_load_dwordx4 v{PKV_}, s[{srd}:{srd+3}], s{sT1} offen offset:{bb*128} {OPT['kv']} lds")
                g.label("qp_nokv")
            tags = [t for t in (f"{i}b{rt}", f"{i}a{hh}{k}") if t not in seen]
            seen.update(tags)
            if tags: g.wait("lg", f"{i}m{n}", tags)
            mfma(e, AC(hh, rt, k), AF(i & 1, hh, k), BF(7 * i + rt), "0" if i == 0 else AC(hh, rt, k))
            if n == lastb[rt]:
                if rt + 4 < 7: b_read(i, rt + 4)
                elif i < 19: b_read(i + 1, rt - 3)
            if i < 19 and n in A0: a_read(i + 1, 0, A0.index(n))
            if i < 19 and n in A1: a_read(i + 1, 1, A1.index(n))
            if n % 2 == 1: g.drain(1)
            if i == 19 and n >= 4: qcvt(n - 4)
        assert not g.pend
    for n in range(38, 42): qcvt(n)
    stamp(e, 15)
    e("s_barrier")
    return g.rec

def t0_path(p, needs, nrt, tag):
    g = Gen(p, needs); e = g.e
    def ACC(rt, t): return rt * 48 + t * 4
    def Q(rt, j): return 96 + rt * 24 + j * 4
    def S(par, rt, kt=0): return 144 + par * 16 + rt * 8 + kt * 4
    def P(par, rt): return 176 + par * 8 + rt * 4
    def NEGM(rt): return 192 + rt * 4
    def LSUM(rt): return 200 + rt * 4
    def STG(rt, j): return 144 + (j * 2 + rt) * 4 if j < 5 else 192 + rt * 4
    ONES = 208
    FR0 = 212; NFR = 8
    def FR(a, f): return FR0 + ((a * 12 + f) % NFR) * 4
    KA = [244, 245]; VA = [246, 247, 248, 249]; QOA = 250
    TC = 251; T = [252, 253, 254, 255]
    def rd_l(a, f):
        base = ((3 * a + f // 4) % NS) * 4096; tg = f"A{a%32}f{f}"
        if kv_kind(a) == "K":
            j, kt = divmod(f, 2)
            return [lambda: g.ld(tg, f"ds_read_b128 {v(FR(a,f),4)}, v{KA[j&1]} offset:{base+kt*2048}")]
        return [lambda hf=hf: g.ld(tg, f"ds_read_b64_tr_b16 {v(FR(a,f)+2*hf,2)}, v{VA[f&3]} offset:{base+hf*2048}") for hf in range(2)]
    def run(x):
        if callable(x): x()
        else: e(x)
    def cost(x): return 2 if isinstance(x, str) and x.startswith(("v_exp", "v_rcp")) else 1
    def step(key, a, mfs, valu=(), last=False, extra=None, v0=0):
        valu = list(valu)
        ngap = sum(len(mfs(f, 0)) for f in range(v0, 12))
        tot = sum(cost(x) for x in valu); done = 0; gap = 0
        for f in range(12):
            pos = a * 12 + f
            if extra and f in extra: extra[f]()
            if pos in XB_: e("s_barrier")
            reads = rd_l(a, f + LEAD) if f + LEAD < 12 else ([] if last else rd_l(a + 1, f + LEAD - 12))
            if not OPT["w2"]: g.wait("lg", f"{key}{f}", [f"A{a}f{f}"])
            elif f % 2 == 0: g.wait("lg", f"{key}{f}", [f"A{a}f{f}", f"A{a}f{f+1}"])
            ms = mfs(f, FR(a, f))
            for i, m in enumerate(ms):
                m()
                if reads: reads.pop(0)()
                if i == len(ms) - 1:
                    while reads: reads.pop(0)()
                if f >= v0:
                    gap += 1
                    while valu and done + cost(valu[0]) / 2 <= tot * gap / ngap:
                        done += cost(valu[0]); run(valu.pop(0))
        for x in valu: run(x)
    def mf_qk(par, zero):
        def m(f, fr):
            j, kt = divmod(f, 2)
            return [lambda rt=rt: mfma(e, S(par, rt, kt), fr, Q(rt, j), ("0" if zero else NEGM(rt)) if j == 0 else S(par, rt, kt)) for rt in range(nrt)]
        return m
    def onorm_l(j):
        out = []
        for rt in range(nrt):
            a = ACC(rt, 2 * j)
            out += [f"v_pk_mul_f32 {v(a+i,2)}, {v(a+i,2)}, {v(T[2*rt],2)}" for i in range(0, 8, 2)]
            out += [f"v_cvt_pk_bf16_f32 v{STG(rt,j)+i}, v{a+2*i}, v{a+2*i+1}" for i in range(4)]
        return out
    def mf_pv(par, first, last=False):
        def m(f, fr):
            out = []
            if f == (0 if last else 5):
                out += [lambda rt=rt: mfma(e, LSUM(rt), ONES, P(par, rt), "0" if first else LSUM(rt)) for rt in range(nrt)]
            return out + [lambda rt=rt: mfma(e, ACC(rt, f), fr, P(par, rt), "0" if first else ACC(rt, f)) for rt in range(nrt)]
        return m
    def sm(par, lo=0, hi=None):
        grp = [(rt, i) for rt in range(nrt) for i in range(4)][lo:hi]
        seq = []
        for n, (rt, i) in enumerate(grp):
            a, b = T[(2 * n) % 4], T[(2 * n + 1) % 4]
            r = S(par, rt) + 2 * i
            seq += [f"v_exp_f32 v{a}, v{r}", f"v_exp_f32 v{b}, v{r+1}"]
            if n > 0: seq.append(prev)
            prev = f"v_cvt_pk_bf16_f32 v{P(par,rt)+i}, v{a}, v{b}"
        return seq + [prev] if grp else []
    def chk_l(par):
        p0 = P(par, 0)
        out = [f"v_or3_b32 v{TC}, v{p0}, v{p0+1}, v{p0+2}"]
        if nrt == 2:
            out += [f"v_or3_b32 v{TC}, v{TC}, v{p0+3}, v{p0+4}", f"v_or3_b32 v{TC}, v{TC}, v{p0+5}, v{p0+6}"]
        out += [f"v_bitop3_b32 v{TC}, v{TC}, v{p0+4*nrt-1}, s{sBIT} bitop3:0xa8", f"v_cmp_ne_u32 vcc, 0, v{TC}"]
        return out
    def chk_branch(par, key):
        e(f"s_cbranch_vccz t0_ok{key}_{tag}")
        if not OPT["norare"]: e(f"s_call_b64 s[{sRET}:{sRET+1}], t0_rare{par}_{tag}")
        g.label(f"t0_ok{key}_{tag}")
    def rowmax(par, rt, t, t2):
        r = S(par, rt)
        e(f"""
v_max3_f32 v{t}, v{r}, v{r+1}, v{r+2}
v_max3_f32 v{t}, v{t}, v{r+3}, v{r+4}
v_max3_f32 v{t}, v{t}, v{r+5}, v{r+6}
v_max_f32 v{t}, v{t}, v{r+7}
v_mov_b32 v{t2}, v{t}
v_permlane32_swap_b32 v{t2}, v{t}
v_max_f32 v{t}, v{t}, v{t2}
v_mov_b32 v{t2}, v{t}
v_permlane16_swap_b32 v{t2}, v{t}
v_max_f32 v{t}, v{t}, v{t2}
v_add_f32 v{t}, {hex(f2u(7.0))}, v{t}
""")
    for rt in range(7):
        for k in range(3): e(f"ds_write_b64 v{QW[k]}, {v(QAC(0,rt,k),2)} offset:{QO+rt*1024}")
    for k in range(3):
        e(f"""
s_mul_i32 s{sT1}, s{sW4}, 3
s_add_u32 s{sT1}, s{sT1}, {k}
s_lshr_b32 s{sT1}, s{sT1}, 1
s_lshl_b32 s{sT2}, s{sT1}, 10
s_sub_u32 s{sT2}, {B2}, s{sT2}
v_add_u32 v{240+k}, s{sT2}, v{QW[k]}
s_mul_i32 s{sT2}, s{sT1}, 6144
s_sub_u32 s{sT2}, {T1R}, s{sT2}
v_add_u32 v{243+k}, s{sT2}, v{QW[k]}
""")
    for rt in range(7):
        for k in range(3): e(f"ds_write_b64 v{(240 if rt < 6 else 243)+k}, {v(QAC(1,rt,k),2)} offset:{rt*1024 if rt < 6 else 0}")
    e("s_waitcnt lgkmcnt(0)")
    lane_regs(e)
    e(f"""
s_lshl_b32 s{sT1}, s{sWAVE}, 11
s_add_u32 s{sT1}, s{sT1}, {QO}
v_lshl_add_u32 v{QOA}, v2, 4, s{sT1}
v_lshrrev_b32 v8, 1, v3
v_and_b32 v8, 3, v8
v_lshlrev_b32 v8, 1, v8
v_xor_b32 v8, v4, v8
v_lshlrev_b32 v8, 4, v8
v_lshl_add_u32 v8, v3, 7, v8
v_add_u32 v{KA[0]}, {KVB}, v8
v_xor_b32 v{KA[1]}, 64, v{KA[0]}
v_lshrrev_b32 v8, 1, v5
v_and_b32 v8, 3, v8
v_lshlrev_b32 v8, 5, v8
v_lshl_add_u32 v8, v5, 7, v8
v_lshl_add_u32 v8, v7, 3, v8
v_add_u32 v{VA[0]}, {KVB}, v8
v_xor_b32 v{VA[1]}, 32, v{VA[0]}
v_xor_b32 v{VA[2]}, 64, v{VA[0]}
v_xor_b32 v{VA[3]}, 96, v{VA[0]}
s_mov_b32 s{sBIT}, 0x40004000
s_mov_b32 s{sSLOT}, 1
""")
    for i in range(4): e(f"v_mov_b32 v{ONES+i}, 0x3f803f80")
    H = 4 if (nrt == 2 and OPT["psplit"]) else (2 if OPT["psplit"] else 0)
    for unit in range(2):
        if unit >= 1: g.mute += 1
        g.label(f"t0_unit_{tag}")
        e("s_barrier")
        if not g.mute: stamp_slot(e)
        e(f"s_cmp_gt_u32 s{sSLOT}, 3")
        e(f"s_cbranch_scc1 t0_q3_{tag}")
        for j in range(6):
            for rt in range(nrt): e(f"ds_read_b128 {v(Q(rt,j),4)}, v{QOA} offset:{(j*7+rt)*1024}")
        e(f"s_cmp_lg_u32 s{sSLOT}, 1")
        e(f"s_cbranch_scc1 t0_w_{tag}")
        if nrt == 1:
            for j in range(6): e(f"ds_read_b128 {v(Q(1,j),4)}, v{QOA} offset:{T1R-6144+j*1024}")
        e(f"s_branch t0_noo_{tag}")
        g.label(f"t0_q3_{tag}")
        e(f"s_cmp_eq_u32 s{sSLOT}, 5")
        e(f"s_cbranch_scc1 t0_w_{tag}")
        if nrt == 1:
            for i in range(24): e(f"v_mov_b32 v{Q(0,0)+i}, v{Q(1,0)+i}")
        else:
            e(f"v_add_u32 v{TC}, {B2}, v{QOA}")
            for j in range(6):
                for rt in range(nrt): e(f"ds_read_b128 {v(Q(rt,j),4)}, v{TC} offset:{(j*6+rt)*1024}")
        g.label(f"t0_w_{tag}")
        e("s_waitcnt lgkmcnt(0)")
        for j in range(6):
            for rt in range(nrt): e(f"ds_write_b128 v{QOA}, {v(STG(rt,j),4)} offset:{(j*7+rt)*1024}")
        e(f"s_cmp_eq_u32 s{sSLOT}, 5")
        e(f"s_cbranch_scc1 t0_exit_{tag}")
        g.label(f"t0_noo_{tag}")
        for f in range(LEAD):
            for x in rd_l(0, f): x()
        step("a0_", 0, mf_qk(0, True), extra={1: lambda: e("s_barrier")})
        for rt in range(nrt):
            rowmax(0, rt, T[0], T[1])
            for i in range(4): e(f"v_sub_f32 v{NEGM(rt)+i}, 0, v{T[0]}")
            for i in range(8): e(f"v_sub_f32 v{S(0,rt)+i}, v{S(0,rt)+i}, v{T[0]}")
        for t in range(15):
            step(f"q{t}_", 2 * t + 1, mf_qk((t + 1) & 1, False), valu=sm(t & 1, H if t else 0) + chk_l(t & 1))
            chk_branch(t & 1, f"q{t}")
            va = sm((t + 1) & 1, 0, H)
            if t == 14: va = sm(1) + chk_l(1)
            step(f"p{t}_", 2 * t + 2, mf_pv(t & 1, t == 0), valu=va, v0=1)
        chk_branch(1, "q15")
        rc = [f"v_rcp_f32 v{T[i]}, v{LSUM(i//2)}" for i in range(2 * nrt)]
        ex = {3: lambda: [e(x) for x in rc]}
        for j in range(4): ex[4 + 2 * j] = lambda j=j: [e(x) for x in onorm_l(j)]
        step("p15_", 31, mf_pv(1, False, True), last=True, extra=ex)
        for x in onorm_l(4) + onorm_l(5): e(x)
        e(f"""
s_add_u32 s{sSLOT}, s{sSLOT}, 1
s_branch t0_unit_{tag}
""")
        if unit >= 1: g.mute -= 1
    g.label(f"t0_exit_{tag}")
    e("s_branch t0_final")
    for par in range(2):
        g.label(f"t0_rare{par}_{tag}")
        for rt in range(nrt):
            t, t2 = TC, T[0]
            rowmax(par, rt, t, t2)
            e(f"v_max_f32 v{t}, 0, v{t}")
            for i in range(4): e(f"v_sub_f32 v{NEGM(rt)+i}, v{NEGM(rt)+i}, v{t}")
            for pp in range(2):
                for i in range(8): e(f"v_sub_f32 v{S(pp,rt)+i}, v{S(pp,rt)+i}, v{t}")
            e(f"v_exp_f32 v{t}, -v{t}")
            for i in range(4): e(f"v_mul_f32 v{LSUM(rt)+i}, v{LSUM(rt)+i}, v{t}")
            for i in range(48): e(f"v_mul_f32 v{ACC(rt,0)+i}, v{ACC(rt,0)+i}, v{t}")
        for x in sm(par): e(x)
        e(f"s_setpc_b64 s[{sRET}:{sRET+1}]")
    return g.rec


def t0_final(p, needs):
    g = Gen(p, needs); e = g.e
    g.label("t0_final")
    op = OpEngine(g, lambda tt: 2 * (tt - 42), 56, 112, 128, [244, 245], 246, [247, 248], KVB, sLW, 2)
    op.addr_setup()
    e(f"""
s_mul_i32 s{sOB}, s{sW4}, {8*1280}
s_add_u32 s{sOB}, s{sOB}, {3*245760}
s_lshl_b32 s{sLW}, s{sW4}, 11
s_mov_b32 s{sSLO}, 0x01000c0c
s_mov_b32 s{sSHI}, 0x03020c0c
s_mul_i32 s{sT1}, s{sW4}, 7168
s_add_u32 s{sT1}, s{sT1}, {B2}
v_add_u32 v249, s{sT1}, v246
""")
    for i in range(18, 22):
        for f in op.dma(i): f()
    def pk_read(ps):
        for rt in range(7): g.ld("pk", f"ds_read_b128 {v(op.PK(ps*14+rt*2),4)}, v249 offset:{rt*1024}")
    pk_read(3)
    e("s_waitcnt lgkmcnt(0)"); g.lq[:] = []
    e("s_barrier")
    for k in range(14):
        for x in op.unpack_l(op.AC(k), op.PK(42 + k)): e(x)
    g.wait("vm", "in", ["O18"])
    e("s_barrier")
    op.first_reads(18)
    def tick(i):
        op.flush_pq()
        g.wait("vm", f"t{i}", [f"O{i+1}"])
        e("s_barrier")
        if i + 4 < 30:
            for j, f in enumerate(op.dma(i + 4)): op.pq.append((op.clock + j, f))
    for i in range(18, 30):
        op.step("f", i, 29, tick, store=[3], hooks={5: lambda: pk_read(4)} if i == 20 else None)
    op.finish()
    e("s_waitcnt vmcnt(0)")
    stamp(e, 10); stamp(e, 11, real=True)
    dump_stamps(e, 28, 64 << 20, 8)
    e("s_endpgm")
    return g.rec

def t1_path(p, needs):
    g = Gen(p, needs); e = g.e
    def PK(tt): return 2 * tt
    def Q2(k): return PK(56) + 2 * k if k < 14 else 236 + 2 * (k - 14)
    OB = 252
    op = OpEngine(g, PK, 140, 196, 212, [250, 251], OB, [253, 254], T1R, sLW, 0)
    AC, AF, BF = op.AC, op.AF, op.BF
    def dma_sub(u):
        a, bb = divmod(u, 3)
        srd = sKd if kv_kind(a) == "K" else sVd
        def f():
            e(f"s_add_u32 m0, s{sL1}, {KVB + (u % NS) * 4096 - bb * 128}")
            e(f"s_add_u32 s{sT1}, s{sKSO2}, {kv_tile(a) * TILE}")
            off = f"offset:{bb*128} " if bb else ""
            g.vm(f"U{u % 96}", f"buffer_load_dwordx4 v{PKV_}, s[{srd}:{srd+3}], s{sT1} offen {off}{OPT['kv']} lds")
        return f
    st = dict(pub=0, iss=0)
    def kv_tags(k):
        upto = XB_[k + 1] if k < NX - 1 else 384
        n = -(-(upto + LEAD) // 4) if upto < 384 else 96
        tags = [f"U{u}" for u in range(st["pub"], n)]
        st["pub"] = max(st["pub"], n)
        return tags
    def kv_issue(k):
        out = []
        while 4 * (st["iss"] - KL) + 4 <= XB_[k]:
            out.append(dma_sub(st["iss"])); st["iss"] += 1
        return out
    def touch_o(t):
        nsh = 16 if OPT["map"] == 0 else 8
        per = 245760 // (4 * nsh)
        e(f"""
s_and_b32 s{sT1}, s{sB}, {nsh-1}
s_lshl_b32 s{sT1}, s{sT1}, 2
s_add_u32 s{sT1}, s{sT1}, s{sW4}
s_mul_i32 s{sT1}, s{sT1}, {per}
s_sub_u32 s{sT2}, s{sSLOT}, 1
s_mul_i32 s{sT2}, s{sT2}, 245760
s_add_u32 s{sT1}, s{sT1}, s{sT2}
s_mov_b32 m0, {SPARE}
v_lshrrev_b32 v{t}, 4, v{OB}
v_min_u32 v{t}, {per//128-1}, v{t}
v_lshlrev_b32 v{t}, 7, v{t}
""")
        g.vm("pf", f"buffer_load_dword v{t}, s[{sOd}:{sOd+3}], s{sT1} offen lds")
    NEXT = {26: 2, 27: 3, 28: 0, 29: 1}
    def tick(i):
        waits = ([f"O{i+1}"] if i < 29 else []) + kv_tags(i)
        op.flush_pq()
        if waits: g.wait("vm", f"o{i}", waits)
        e("s_barrier")
        io = []
        if i == 26: io.append(lambda: e(f"s_add_u32 s{sOB}, s{sOB}, 245760"))
        io += op.dma(NEXT.get(i, i + 4))
        items = kv_issue(i) + io if OPT["kvfirst"] and i < 28 else io + kv_issue(i)
        for j, f in enumerate(items): op.pq.append((op.clock + (j * OPT["span"]) // len(items), f))
    def q_write(reg):
        for rt in range(7):
            for k in range(3): e(f"ds_write_b64 v{AC(0)+k}, {v(reg(rt,k),2)} offset:{QO+rt*1024}")
        e("s_waitcnt lgkmcnt(0)")
    def q_addr():
        t = AC(1)
        e(f"v_lshrrev_b32 v{t}, 5, v{OB}")
        e(f"v_and_b32 v{t}, 8, v{t}")
        e(f"v_add_u32 v{t}, v{t}, v{OB}")
        for k in range(3):
            e(f"""
s_mul_i32 s{sT1}, s{sW4}, 3
s_add_u32 s{sT1}, s{sT1}, {k}
s_lshr_b32 s{sT2}, s{sT1}, 1
s_mul_i32 s{sT2}, s{sT2}, 7168
s_and_b32 s{sT1}, s{sT1}, 1
s_lshl_b32 s{sT1}, s{sT1}, 3
v_xor_b32 v{AC(0)+k}, s{sT1}, v{t}
v_add_u32 v{AC(0)+k}, s{sT2}, v{AC(0)+k}
""")

    e(f"""
s_mul_i32 s{sOB}, s{sW4}, {8*1280}
s_lshl_b32 s{sLW}, s{sW4}, 11
s_lshl_b32 s{sL1}, s{sW4}, 10
s_mov_b32 s{sSLOT}, 1
s_mov_b32 s{sRX}, 0x01000c0c
s_mov_b32 s{sRX+1}, 0x03020c0c
""")
    for u in range(N0 - 96):
        g.vq.append(f"U{u}"); g.issued[f"U{u}"] = 1
    st.update(pub=0, iss=N0 - 96)
    g.wait("vm", "i_t0", kv_tags(-1))
    e("s_barrier")
    stamp_slot(e)
    e("s_barrier")
    for rt in range(7):
        for k in range(3): e(f"ds_write_b64 v{QW[k]}, {v(QAC(0,rt,k),2)} offset:{QO+rt*1024}")
    def setup():
        e("s_waitcnt lgkmcnt(0)")
        for k in range(21):
            for x in range(2): e(f"v_mov_b32 v{2*k+x}, v{QAC(1,k//3,k%3)+x}")
        for k in range(21):
            for x in range(2): e(f"v_mov_b32 v{Q2(k)+x}, v{2*k+x}")
    def setup0():
        e("s_waitcnt lgkmcnt(0)")
        op.addr_setup()
        setup()
    task = {0: setup0}
    if OPT["touch"]: task[4] = lambda: touch_o(AF(0, 0))
    for k in range(NX):
        w = kv_tags(k)
        if w: g.wait("vm", f"i{k}", w)
        e("s_barrier")
        for f in kv_issue(k): f()
        if k in task: task[k]()
        if k >= 26:
            for f in op.dma(NEXT[k]): f()
    for s in range(2, 5):
        if s != 2: g.mute += 1
        g.label("t1_slot")
        assert st["iss"] == N0
        st.update(pub=0, iss=N0 - 96)
        e(f"""
s_add_u32 s{sSLOT}, s{sSLOT}, 1
s_add_u32 s{sKSO2}, s{sKSO2}, 196608
s_cmp_eq_u32 s{sSLOT}, 2
s_cselect_b32 s{sSLO}, 0x0c0c0c0c, s{sRX}
s_cselect_b32 s{sSHI}, 0x0c0c0c0c, s{sRX+1}
""")
        g.wait("vm", "t0", kv_tags(-1))
        e("s_barrier")
        if not g.mute: stamp_slot(e)
        if OPT["touch"]: touch_o(AF(0, 0))
        for k in range(14):
            for x in op.unpack_l(AC(k), PK(k)): e(x)
        g.wait("vm", "o_in", ["O0"])
        e("s_barrier")
        stamp_if(e, 12, OPT["ps"])
        op.first_reads(0)
        for i in range(30): op.step("m", i, 29, tick)
        stamp_if(e, 13, OPT["ps"])
        tick(29)
        op.finish()
        e(f"s_cmp_lg_u32 s{sSLOT}, 2")
        e("s_cbranch_scc1 t1_noq2")
        for k in range(3): e(f"v_mov_b32 v{BF(0)+k}, v{AC(0)+k}")
        e(f"v_mov_b32 v{BF(0)+3}, v{AC(1)}")
        q_addr()
        q_write(lambda rt, k: Q2(rt * 3 + k))
        for k in range(3): e(f"v_mov_b32 v{AC(0)+k}, v{BF(0)+k}")
        e(f"v_mov_b32 v{AC(1)}, v{BF(0)+3}")
        g.label("t1_noq2")
        for n in range(14):
            for x in op.pack_l(PK(56 + n), AC(n)): e(x)
        e(f"s_cmp_lg_u32 s{sSLOT}, 4")
        e("s_cbranch_scc1 t1_slot")
        if s != 2: g.mute -= 1
    g.label("t1_last")
    e(f"""
s_mov_b32 s{sSLOT}, 5
s_mul_i32 s{sT1}, s{sW4}, 7168
s_add_u32 s{sT1}, s{sT1}, {B2}
v_add_u32 v249, s{sT1}, v{OB}
""")
    def pk_write(ps):
        for rt in range(7): g.ld("pk", f"ds_write_b128 v249, {v(PK(ps*14+rt*2),4)} offset:{rt*1024}")
    pk_write(3)
    for k in range(14):
        for x in op.unpack_l(AC(k), PK(k)): e(x)
    e("s_waitcnt vmcnt(0) lgkmcnt(0)"); g.vq[:] = []; g.lq[:] = []
    e("s_barrier")
    stamp_slot(e)
    e("s_barrier")
    stamp_if(e, 12, OPT["ps"])
    g.issued.pop("O0")
    op.first_reads(0)
    def tick5(i):
        op.flush_pq()
        if i == 2: g.wait("lg", "pkw", ["pk"])
        g.wait("vm", f"f{i}", [f"O{i+1}"])
        e("s_barrier")
        if i + 4 < 18:
            for j, f in enumerate(op.dma(i + 4)): op.pq.append((op.clock + j, f))
    g.issued.pop("pk")
    for i in range(18):
        op.step("f", i, 17, tick5, store=[0], hooks={5: lambda: pk_write(4)} if i == 1 else None)
    op.finish()
    stamp_if(e, 13, OPT["ps"])
    e("s_waitcnt vmcnt(0)")
    stamp(e, 10); stamp(e, 11, real=True)
    dump_stamps(e, 28, 64 << 20, 8)
    g.label("t1_exit")
    e("s_endpgm")
    return g.rec

def build(needs):
    p = Prog()
    p(f"""
.globl attn_kernel
.p2align 8
.type attn_kernel,@function
attn_kernel:
s_cmp_ge_u32 s2, 256
s_cbranch_scc1 k1_end
s_load_dwordx16 s[4:19], s[0:1], 0
s_load_dwordx8 s[20:27], s[0:1], 64
s_load_dwordx2 s[28:29], s[0:1], 96
v_lshrrev_b32 v1, 6, v0
v_and_b32 v2, 63, v0
v_readfirstlane_b32 s{sWAVE}, v1
s_and_b32 s{sT1}, s2, 7
s_lshr_b32 s{sT2}, s2, 3
""")
    if OPT["map"] == 0:
        p(f"""
s_and_b32 s{sQUAD}, s{sT1}, 3
s_lshl_b32 s{sQUAD}, s{sQUAD}, 1
s_and_b32 s{sB}, s{sT2}, 1
s_add_u32 s{sQUAD}, s{sQUAD}, s{sB}
s_lshr_b32 s{sB}, s{sT2}, 1
""")
    else:
        p(f"""
s_and_b32 s{sQUAD}, s{sT1}, 1
s_lshl_b32 s{sQUAD}, s{sQUAD}, 2
s_and_b32 s{sB}, s{sT2}, 3
s_add_u32 s{sQUAD}, s{sQUAD}, s{sB}
s_and_b32 s{sB}, s{sT1}, 2
s_lshl_b32 s{sB}, s{sB}, 2
s_lshr_b32 s{sT2}, s{sT2}, 2
s_add_u32 s{sB}, s{sB}, s{sT2}
""")
    p(f"""
s_and_b32 s{sW4}, s{sWAVE}, 3
s_lshr_b32 s{sTEAM}, s{sWAVE}, 2
s_mul_i32 s{sLW}, s{sW4}, 3072
s_mov_b32 s{sKd+2}, {0 if OPT['nokv'] else 786432}
s_mov_b32 s{sKd+3}, 0x20000
s_mov_b32 s{sVd+2}, {0 if OPT['nokv'] else 786432}
s_mov_b32 s{sVd+3}, 0x20000
s_mov_b32 s{sWd+3}, 0x20000
s_mov_b32 s{sOd+2}, {0 if OPT['now'] else 983040}
s_mov_b32 s{sOd+3}, 0x20000
s_mov_b32 s{sXd+2}, {0 if OPT['nox'] else 143360}
s_mov_b32 s{sXd+3}, 0x20000
s_mov_b32 s{sPd+2}, {35840+QO}
s_mov_b32 s{sPd+3}, 0x20000
s_waitcnt lgkmcnt(0)
s_cmp_lt_u32 s{sT1}, 4
s_cselect_b64 s[4:5], s[4:5], s[14:15]
s_cselect_b64 s[6:7], s[6:7], s[16:17]
s_cselect_b64 s[8:9], s[8:9], s[18:19]
s_cselect_b64 s[10:11], s[10:11], s[20:21]
s_cselect_b64 s[12:13], s[12:13], s[22:23]
s_cselect_b32 s{sT3}, 0, 16
s_mul_i32 s{sT2}, s{sB}, 143360
s_add_u32 s{sXd}, s4, s{sT2}
s_addc_u32 s{sXd+1}, s5, 0
s_mul_i32 s{sT2}, s{sQUAD}, 1536
s_add_u32 s{sWd}, s10, s{sT2}
s_addc_u32 s{sWd+1}, s11, 0
s_sub_u32 s{sWd+2}, 7864320, s{sT2}
{'s_mov_b32 s%d, 0' % (sWd+2) if OPT['now'] else ''}
s_lshl_b32 s{sT1}, s{sB}, 3
s_add_u32 s{sT1}, s{sT1}, s{sQUAD}
s_mul_i32 s{sT2}, s{sT1}, 786432
s_add_u32 s{sKd}, s6, s{sT2}
s_addc_u32 s{sKd+1}, s7, 0
s_add_u32 s{sVd}, s8, s{sT2}
s_addc_u32 s{sVd+1}, s9, 0
s_mul_i32 s{sT2}, s{sQUAD}, 983040
s_add_u32 s{sOd}, s12, s{sT2}
s_addc_u32 s{sOd+1}, s13, 0
s_lshl_b32 s{sT3}, s{sT3}, 3
s_add_u32 s{sT1}, s{sT1}, s{sT3}
s_mul_i32 s{sT1}, s{sT1}, {PART_CU}
s_mul_i32 s{sT2}, s{sW4}, 35840
s_add_u32 s{sT1}, s{sT1}, s{sT2}
s_add_u32 s{sT1}, s{sT1}, {PART0-QO}
s_add_u32 s{sPd}, s28, s{sT1}
s_addc_u32 s{sPd+1}, s29, 0
""")
    stamp(p, 0); stamp(p, 1, real=True)
    rec = {}
    rec["qp"] = qp_phase(p, needs.get("qp", {}))
    p(f"""
s_cmp_ge_u32 s{sWAVE}, 4
s_cbranch_scc1 k1_t1
""")
    if OPT["prio0"]: p(f"s_setprio {OPT['prio0']}")
    p(f"""
s_cmp_eq_u32 s{sWAVE}, 3
s_cbranch_scc1 k1_light
""")
    rec["h"] = t0_path(p, needs.get("h", {}), 2, "h")
    p.label("k1_light")
    rec["l"] = t0_path(p, needs.get("l", {}), 1, "l")
    rec["f"] = t0_final(p, needs.get("f", {}))
    p.label("k1_t1")
    if OPT["not1"]: p("s_endpgm")
    if OPT["prio1"]: p(f"s_setprio {OPT['prio1']}")
    rec["t1"] = t1_path(p, needs.get("t1", {}))
    p("""
k1_end:
s_endpgm
""")
    return p, rec

def reduce_kernel():
    p = Prog()
    p(f"""
.globl reduce_kernel
.p2align 8
.type reduce_kernel,@function
reduce_kernel:
s_cmp_ge_u32 s2, 1120
s_cbranch_scc1 k2_end
s_load_dwordx2 s[8:9], s[0:1], 80
s_load_dwordx2 s[10:11], s[0:1], 96
v_lshrrev_b32 v1, 6, v0
v_and_b32 v2, 63, v0
v_readfirstlane_b32 s3, v1
s_mul_i32 s5, s2, 1873
s_lshr_b32 s5, s5, 16
s_mul_i32 s6, s5, 35
s_sub_u32 s22, s2, s6
s_mul_i32 s6, s3, 35
s_add_u32 s6, s6, s22
s_mul_i32 s7, s5, {8*PART_CU}
s_add_u32 s7, s7, {PART0}
s_lshl_b32 s20, s6, 10
v_lshlrev_b32 v3, 4, v2
s_mov_b32 s14, {8*PART_CU}
s_mov_b32 s15, 0x20000
s_waitcnt lgkmcnt(0)
s_add_u32 s12, s10, s7
s_addc_u32 s13, s11, 0
""")
    for q in range(8):
        p(f"buffer_load_dwordx4 v[{8+4*q}:{11+4*q}], v3, s[12:15], s20 offen {OPT['rd']}")
        if q < 7: p(f"s_add_u32 s20, s20, {PART_CU}")
    p(f"""
s_and_b32 s23, s5, 15
s_mul_i32 s23, s23, {112*2560}
s_lshr_b32 s24, s5, 4
s_mul_i32 s24, s24, 1280
s_add_u32 s23, s23, s24
s_mov_b32 s16, s8
s_mov_b32 s17, s9
s_mov_b32 s18, {16*112*2560}
s_mov_b32 s19, 0x20000
s_mul_i32 s26, s22, 37
s_lshr_b32 s26, s26, 8
s_mul_i32 s27, s26, 7
s_sub_u32 s27, s22, s27
s_lshl_b32 s30, s26, 8
s_mul_i32 s28, s27, {16*2560}
s_add_u32 s30, s30, s28
s_mul_i32 s28, s3, {4*2560}
s_add_u32 s30, s30, s28
s_add_u32 s32, s30, s23
v_and_b32 v4, 15, v2
v_lshrrev_b32 v5, 4, v2
v_mul_u32_u24 v6, 272, v4
v_lshl_add_u32 v6, v5, 3, v6
s_lshl_b32 s28, s3, 6
v_add_u32 v6, s28, v6
s_mul_i32 s28, s3, {4*272}
v_mul_u32_u24 v7, 272, v5
v_lshl_add_u32 v7, v4, 4, v7
v_add_u32 v7, s28, v7
v_mul_u32_u24 v5, 2560, v5
v_lshl_add_u32 v4, v4, 4, v5
""")
    for q in range(8):
        p(f"s_waitcnt vmcnt({7-q})")
        for i in range(4):
            r = 8 + 4 * q + i
            if q == 0:
                p(f"v_lshlrev_b32 v{40+2*i}, 16, v{r}")
                p(f"v_and_b32 v{41+2*i}, 0xffff0000, v{r}")
            else:
                p(f"v_lshlrev_b32 v48, 16, v{r}")
                p(f"v_and_b32 v49, 0xffff0000, v{r}")
                p(f"v_add_f32 v{40+2*i}, v{40+2*i}, v48")
                p(f"v_add_f32 v{41+2*i}, v{41+2*i}, v49")
    for i in range(4): p(f"v_cvt_pk_bf16_f32 v{52+i}, v{40+2*i}, v{41+2*i}")
    p("""
ds_write_b64 v6, v[52:53]
ds_write_b64 v6, v[54:55] offset:32
s_waitcnt lgkmcnt(0)
s_barrier
ds_read_b128 v[52:55], v7
s_waitcnt lgkmcnt(0)
buffer_store_dwordx4 v[52:55], v4, s[16:19], s32 offen
k2_end:
s_endpgm
""")
    return p

def desc(name, vg):
    return f""".amdhsa_kernel {name}
  .amdhsa_next_free_vgpr {vg}
  .amdhsa_next_free_sgpr 102
  .amdhsa_accum_offset {vg}
  .amdhsa_group_segment_fixed_size 0
  .amdhsa_kernarg_size 104
  .amdhsa_user_sgpr_count 2
  .amdhsa_user_sgpr_kernarg_segment_ptr 1
  .amdhsa_system_sgpr_workgroup_id_x 1
.end_amdhsa_kernel
"""

def main():
    for t in range(1120): assert (t * 1873) >> 16 == t // 35
    for t in range(140): assert (t * 235) >> 13 == t // 35
    for t in range(35): assert (t * 37) >> 8 == t // 7
    _, rec = build({})
    for it in range(4):
        a, rec2 = build(rec)
        if rec2 == rec: break
        rec = rec2
    else: raise SystemExit("no fixpoint")
    b = reduce_kernel()
    if OPT["novm"]: a.L[:] = [l for l in a.L if not l.startswith("buffer_load")]
    if OPT["nobar"]: a.L[:] = [l for l in a.L if not l.startswith("s_barrier")]
    if OPT["nolg"]:
        out_ = []
        for i_, l in enumerate(a.L):
            if l.startswith("s_waitcnt lgkmcnt") and not a.L[i_-1].startswith(("s_mem", "s_load")) and i_ > 60: continue
            out_.append(l)
        a.L[:] = out_
    if OPT["nord"]: a.L[:] = [l for l in a.L if not l.startswith("ds_read")]
    if OPT["noexp"]: a.L[:] = [l.replace("v_exp_f32", "v_mov_b32") if l.startswith("v_exp_f32") and "-v" not in l else l for l in a.L]
    if OPT["nosm"]: a.L[:] = [l for l in a.L if not l.startswith(("v_exp_f32", "v_cvt_pk"))]
    if OPT["nochk"]: a.L[:] = [l for l in a.L if not l.startswith(("v_or3", "v_or_b32", "v_cmp_ne", "s_cbranch_vccz", "v_and_b32 v252"))]
    if OPT["prof"] == 2:
        out_ = []; L_ = a.L; inrole = False; i_ = 0
        while i_ < len(L_):
            l = L_[i_]
            if l.startswith(("t0_unit", "t1_slot")): inrole = True
            if l.startswith(("t0_exit", "t1_exit")): inrole = False
            if inrole and l == "s_barrier":
                j = len(out_)
                while j > 0 and (out_[j-1].startswith(("s_waitcnt vmcnt", "s_cmp_eq_u32 s55, 5", "s_cbranch_scc1 t1_wa")) or out_[j-1].startswith("t1_wa")): j -= 1
                blk = out_[j:]; del out_[j:]
                out_ += ["s_memtime s[4:5]"] + blk + ["s_memtime s[6:7]", "s_barrier", "s_memtime s[8:9]", "s_waitcnt lgkmcnt(0)",
                         "s_sub_u32 s4, s6, s4", "s_add_u32 s94, s94, s4", "s_sub_u32 s6, s8, s6", "s_add_u32 s95, s95, s6"]
            elif inrole and l.startswith("buffer_load") and l.endswith("lds"):
                out_ += ["s_memtime s[4:5]", l, "s_memtime s[6:7]", "s_waitcnt lgkmcnt(0)", "s_sub_u32 s4, s6, s4", "s_add_u32 s89, s89, s4"] if OPT["pv"] else [l]
            elif l.startswith(("k1_light:", "k1_t1:")) or l.startswith("s_cbranch_scc1 k1_light"):
                out_ += [l, "s_mov_b32 s94, 0", "s_mov_b32 s95, 0", "s_mov_b32 s89, 0"]
            else: out_.append(l)
            i_ += 1
        a.L[:] = out_
    if OPT["prof"] == 3:
        out_ = []; inrole = False; idx = 0
        for l in a.L:
            if l.startswith(("t0_unit", "t1_slot")): inrole = True; idx = 0
            if l.startswith(("t0_exit", "t1_exit")) or l.startswith("s_cbranch_scc1 t1_slot"): inrole = False
            if l.startswith("s_cselect_b32 s8") or l.startswith("s_cselect_b32 s9") or l.startswith("s_mov_b32 s9") and "s100" in l: continue
            if inrole and l == "s_barrier":
                k = idx - OPT["pb"]; idx += 1
                st_ = ["s_memtime s[100:101]", "s_waitcnt lgkmcnt(0)", f"s_cmp_eq_u32 s{sSLOT}, {OPT['ps']}", f"s_cselect_b32 s{80+k}, s100, s{80+k}"] if 0 <= k < 16 else []
                out_ += (st_ + [l]) if OPT["pa"] else ([l] + st_)
            else: out_.append(l)
        a.L[:] = out_
    if OPT["dynp"]:
        out_ = []; int1 = False
        for l in a.L:
            if l.startswith("k1_t1:"): int1 = True
            if int1 and l.startswith("buffer_load") and l.endswith("lds"):
                out_ += [f"s_setprio {OPT['dynp']}", l, f"s_setprio {OPT['prio1']}"]
            else: out_.append(l)
        a.L[:] = out_
    n1 = fix_hazards(a.L); n2 = fix_hazards(b.L)
    print("nops inserted", n1, n2, "instrs", len(a.L), len(b.L), file=sys.stderr)
    hdr = open("cdna_kernels/" + NAME + ".s.ref").read().split("; Override launch")[0]
    out = hdr
    out += f"; @launch kernel=attn_kernel grid=(256,1,1) block=(512,1,1) lds={LDS_BYTES}\n"
    out += f"; @launch kernel=reduce_kernel grid=(1120,1,1) block=(256,1,1) lds=4352\n"
    out += '.amdgcn_target "amdgcn-amd-amdhsa--gfx950"\n.text\n'
    out += a.text() + b.text()
    out += '.section .rodata,"a"\n.p2align 6\n' + desc("attn_kernel", 256) + ".p2align 6\n" + desc("reduce_kernel", 56)
    open(sys.argv[1], "w").write(out)
main()
```

```python
import sys, math, struct, copy
sys.path.insert(0, "work")
from asmlib import *

NAME = "concat_heads__mha_block_cached__gqa_block_cached__near_ridge"
OPT = dict(kv="nt", w="", x="", wo="", st="", rd="", prof=0, prio0=0, prio1=0, touch=1, nox=0, now=0, nokv=0, nomf=0,
           novm=0, lead=4, bp="6.16.26.36.42", map=0, hack="", t1b=0, ps=5, kdel=0, x0=4, xt=0, dynp=0, nopark=0, gap=0, span=4, pa=0, pb=0, m=2, nlat=0, nonar=0, bar=3, qd=5, rt=0, kvfirst=1, w2=1, psplit=1, nb1=8, nb2=29, kl=12, tl=4, kvat=18, qst="", noq=0, noqst=0, pv=0, nobar=0, nolg=0, nord=0, norare=0, not1=0, noexp=0, nochk=0, nosm=0)
for a in sys.argv[2:]:
    k, val = a.split("=")
    OPT[k] = int(val) if val.lstrip("-").isdigit() else (val if k in ("bp", "hack") else val.replace("+", " ").replace("-", ""))
TILE = 12288
QO = 0
T1R = 43008
B2 = T1R + 32768
KVB = B2 + 36864
NS = 12
SPARE = KVB + NS * 4096
LDS_BYTES = SPARE + 2048
QPARK = 48 << 20
PART0 = 1 << 20
PART_CU = 4 * 35 * 1024
LEAD = OPT["lead"]
NX = 30
XB_ = [OPT["x0"] + 4 * ((k * 96) // NX) for k in range(NX)]
def f2u(f): return struct.unpack("<I", struct.pack("<f", f))[0]

sKd, sVd, sWd, sOd, sXd, sPd, sQd = 32, 36, 40, 44, 48, 76, 24
sWAVE, sB, sQUAD, sSLOT, sCTR, sW4 = 52, 53, 54, 55, 57, 56
sT1, sT2, sT3 = 62, 63, 61
sKSO, sVSO, sLW = 58, 59, 60
sWB, sOB, sXB, sXM, sSTR, sXF = 58, 59, 70, 71, 72, 73
sC, sBIT = 66, 68
sRET = 30
sTEAM, sWB2, sKSO2, sL1, sSLO, sSHI = 74, 75, 65, 64, 69, 72
PKV_ = 255
sRX, sRY, sRZ, sSP = 14, 17, 20, 23

def stamp(e, k, real=False):
    if not OPT["prof"]: return
    e(f"s_mem{'real' if real else ''}time s[100:101]")
    e("s_waitcnt lgkmcnt(0)")
    e(f"s_mov_b32 s{80+k}, s100")
def stamp_slot(e):
    if not OPT["prof"]: return
    e("s_memrealtime s[100:101]" if OPT["rt"] else "s_memtime s[100:101]")
    e("s_waitcnt lgkmcnt(0)")
    for k in range(0, 7):
        e(f"s_cmp_eq_u32 s{sSLOT}, {k}")
        e(f"s_cselect_b32 s{82+k}, s100, s{82+k}")
def stamp_if(e, k, slot):
    if not OPT["prof"]: return
    e("s_memtime s[100:101]")
    e("s_waitcnt lgkmcnt(0)")
    e(f"s_cmp_eq_u32 s{sSLOT}, {slot}")
    e(f"s_cselect_b32 s{80+k}, s100, s{80+k}")
def dump_stamps(e, wsreg, base, nw):
    if not OPT["prof"]: return
    e(f"""
s_mul_i32 s100, s2, {nw}
s_add_u32 s100, s100, s{sWAVE}
s_lshl_b32 s100, s100, 6
s_add_u32 s100, s100, {base}
s_add_u32 s96, s{wsreg}, s100
s_addc_u32 s97, s{wsreg+1}, 0
s_mov_b32 s98, 64
s_mov_b32 s99, 0x20000
v_mov_b32 v1, 0
""")
    for k in range(16):
        e(f"v_mov_b32 v0, s{80+k}")
        e(f"buffer_store_dword v0, v1, s[96:99], 0 offen offset:{k*4}")
    e("s_waitcnt vmcnt(0)")

class Gen:
    def __init__(self, prog, needs):
        self.p = prog; self.needs = needs; self.rec = {}
        self.mute = 0
        self.vq = []; self.lq = []; self.pend = []; self.issued = {}
        self.nosim = 0
    def e(self, s):
        if not self.mute: self.p(s)
    def label(self, n):
        if not self.mute: self.p.label(n)
    def wait(self, kind, key, tags, drain_tags=()):
        q = self.vq if kind == "vm" else self.lq
        for t in tags:
            assert self.issued.pop(t, 0) > 0, (t, key)
        tags = list(tags) + list(drain_tags)
        idx = [i for i, t in enumerate(q) if t in tags]
        n = len(q) - 1 - max(idx) if idx else 999
        if n != 999: n = min(n, 63 if kind == "vm" else 15)
        k = (kind, key)
        self.rec[k] = min(self.rec.get(k, 999), n)
        val = self.needs.get(k, n)
        if val == 999: return
        self.e(f"s_waitcnt {'vmcnt' if kind == 'vm' else 'lgkmcnt'}({val})")
        del q[:len(q) - val if val < len(q) else 0]
    def wait_alt(self, key, tags, alt, cmp_txt, lab):
        q = self.vq
        for t in tags: assert self.issued.pop(t, 0) > 0, (t, key)
        idx = [i for i, t in enumerate(q) if t in tags]
        n = min(len(q) - 1 - max(idx), 63) if idx else 999
        k = ("vm", key, alt)
        self.rec[k] = min(self.rec.get(k, 999), n)
        va, vb = self.needs.get(("vm", key, False), 0), self.needs.get(("vm", key, True), 0)
        if vb != 999 and vb > va: self.e(f"s_waitcnt vmcnt({vb})")
        if vb > va:
            self.e(cmp_txt); self.e(f"s_cbranch_scc1 {lab}")
        val = min(va, vb) if not (alt and vb > va) else vb
        if min(va, vb) != 999: self.e(f"s_waitcnt vmcnt({min(va, vb)})")
        if vb > va: self.label(lab)
        if val != 999: del q[:len(q) - val if val < len(q) else 0]
    def vm(self, tag, text):
        self.e(text); self.vq.append(tag); self.issued[tag] = self.issued.get(tag, 0) + 1
    def ld(self, tag, text):
        self.e(text); self.lq.append(tag); self.issued[tag] = self.issued.get(tag, 0) + 1
    def drain(self, n=1):
        for _ in range(n):
            if self.pend: self.pend.pop(0)()
    def optional(self, taken, fn):
        if taken: fn()
        elif not self.mute:
            st = (list(self.vq), list(self.lq), dict(self.issued))
            fn()
            self.vq[:], self.lq[:] = st[0], st[1]; self.issued = st[2]

def mfma(e, d, a, b, c):
    if not OPT["nomf"]:
        e(f"v_mfma_f32_16x16x32_bf16 {v(d,4)}, {v(a,4)}, {v(b,4)}, {c if c == '0' else v(c,4)}")


KL = OPT["kl"]
N0 = max(u for u in range(300) if 4 * (u - KL) + 4 <= XB_[-1]) + 1
def lane_regs(e, b=2):
    e(f"""
v_mbcnt_lo_u32_b32 v{b}, -1, 0
v_mbcnt_hi_u32_b32 v{b}, -1, v{b}
v_and_b32 v{b+1}, 15, v{b}
v_lshrrev_b32 v{b+2}, 4, v{b}
v_lshrrev_b32 v{b+3}, 2, v{b}
v_and_b32 v{b+4}, 3, v{b+3}
v_and_b32 v{b+5}, 3, v{b}
v_lshrrev_b32 v{b+6}, 3, v{b}
v_and_b32 v{b+7}, 7, v{b}
""")
def kv_kind(a):
    a %= 32
    return "K" if (a == 0 or (a % 2 == 1 and a < 31)) else "V"
def kv_tile(a):
    u, a = divmod(a, 32)
    return u * 16 + (0 if a == 0 else 15 if a == 31 else (a + 1) // 2 if a % 2 == 1 else (a - 2) // 2)
def QAC(hh, rt, k): return ((hh * 7 + rt) * 3 + k) * 4
QW = [248, 249, 250]


class OpEngine:
    def __init__(self, g, PK, AC0, AF0, BF0, RA, OB, PO, ring, sM0, ringoff):
        self.g, self.e = g, g.e
        self.PK, self.AC0, self.AF0, self.BF0, self.RA, self.OB, self.PO = PK, AC0, AF0, BF0, RA, OB, PO
        self.ring, self.sM0, self.ro = ring, sM0, ringoff
        self.dq = []; self.pq = []; self.clock = 0
    def AC(self, k): return self.AC0 + 4 * k
    def AF(self, s, i): return self.AF0 + 8 * (s & 1) + 4 * i
    def BF(self, n): return self.BF0 + 4 * (n % 6)
    def slot(self, i): return ((i + self.ro) % 4) * 8192
    def addr_setup(self):
        e = self.e
        lane_regs(e, 232)
        L = 232
        e(f"""
v_lshlrev_b32 v{self.OB}, 4, v{L}
v_lshlrev_b32 v{L+8}, 1, v{L+2}
v_xor_b32 v{L+8}, v{L+1}, v{L+8}
v_lshlrev_b32 v{L+8}, 4, v{L+8}
v_mul_u32_u24 v{L+9}, 1280, v{L+2}
v_add_u32 v{self.PO[0]}, v{L+8}, v{L+9}
v_xor_b32 v{L+8}, 128, v{L+8}
v_add_u32 v{L+8}, v{L+8}, v{L+9}
v_add_u32 v{self.PO[1]}, 4096, v{L+8}
s_lshl_b32 s{sT1}, s{sW4}, 1
v_and_b32 v{L+8}, 7, v{L+3}
v_xor_b32 v{L+8}, s{sT1}, v{L+8}
v_lshlrev_b32 v{L+8}, 5, v{L+8}
v_lshl_add_u32 v{L+8}, v{L+3}, 8, v{L+8}
v_lshl_add_u32 v{L+8}, v{L+5}, 3, v{L+8}
v_add_u32 v{self.RA[0]}, {self.ring}, v{L+8}
v_xor_b32 v{self.RA[1]}, 32, v{self.RA[0]}
""")
    def dma(self, i):
        ps, j = divmod(i, 6)
        out = []
        for q in range(2):
            def f(q=q):
                if q == 0:
                    self.e(f"s_add_u32 m0, s{self.sM0}, {self.ring+self.slot(i)}")
                    self.e(f"s_add_u32 s{sT2}, s{sOB}, {j*32*1280+ps*256}")
                o = "offset:1024 " if q else ""
                self.g.vm(f"O{i}", f"buffer_load_dwordx4 v{self.PO[q]}, s[{sOd}:{sOd+3}], s{sT2} offen {o}{OPT['wo']} lds")
            out.append(f)
        return out
    def defer(self, at, ins):
        for x in ins: self.dq.append((at, x))
    def run_dq(self, n):
        while n > 0 and self.dq and self.dq[0][0] <= self.clock:
            x = self.dq.pop(0)[1]
            if callable(x): x()
            else: self.e(x)
            n -= 1
    def flush_pq(self):
        while self.pq: self.pq.pop(0)[1]()
    def a_read(self, i, n):
        k, hf = divmod(n, 2)
        self.g.ld(f"o{i}a{k}", f"ds_read_b64_tr_b16 {v(self.AF(i,k)+2*hf,2)}, v{self.RA[k]} offset:{self.slot(i)+hf*4096}")
    def b_read(self, b):
        i, rt = divmod(b, 7)
        self.g.ld(f"o{i}b{rt}", f"ds_read_b128 {v(self.BF(b),4)}, v{self.OB} offset:{QO+(i%6*7+rt)*1024}")
    def first_reads(self, i):
        self.a_read(i, 0); self.a_read(i, 1); self.b_read(7 * i); self.a_read(i, 2); self.a_read(i, 3)
        for n in range(1, 6): self.b_read(7 * i + n)
    def unpack_l(self, dst, src):
        return [f"v_perm_b32 v{dst+x}, v{src+x//2}, v{src+x//2}, s{sSHI if x & 1 else sSLO}" for x in range(4)]
    def pack_l(self, dst, src):
        return [f"v_cvt_pk_bf16_f32 v{dst}, v{src}, v{src+1}", f"v_cvt_pk_bf16_f32 v{dst+1}, v{src+2}, v{src+3}"]
    def store_l(self, ps, rt):
        o = (ps * 7 + rt) * 1024
        return [f"s_mov_b32 s{sT3}, {o - o % 4096}",
                lambda: self.g.vm("st", f"buffer_store_dwordx4 {v(self.PK(ps*14+rt*2),4)}, v{self.OB}, s[{sPd}:{sPd+3}], s{sT3} offen offset:{o%4096} {OPT['st']}")]
    def step(self, key, i, last, tick, store=False, hooks=None):
        g, e = self.g, self.e
        ps, j = divmod(i, 6)
        BAR = OPT["bar"]
        c0 = self.clock
        if store and i >= last - 3 and i < last:
            todo = [(q, rt) for q in range(store[0], ps) for rt in range(7)]
            k = i - (last - 3)
            mine = todo[k * len(todo) // 3:(k + 1) * len(todo) // 3]
            for n, (q, rt) in enumerate(mine): self.defer(c0 + (6 if k == 0 else 0) + n * (8 if k == 0 else 14) // len(mine), self.store_l(q, rt))
        if j == 5 and (i < last or store):
            for n in range(14):
                ins = self.pack_l(self.PK(ps * 14 + n), self.AC(n))
                if i < last: ins += self.unpack_l(self.AC(n), self.PK((ps + 1) * 14 + n))
                if store and n % 2 == 1 and i == last: ins += self.store_l(ps, n // 2)
                self.defer(c0 + n + 4, ins)
        for n in range(14):
            rt, k = divmod(n, 2)
            if n == BAR and i < last: tick(i)
            if hooks and n in hooks: hooks[n]()
            tags = ([f"o{i}b{rt}"] if k == 0 else []) + ([f"o{i}a{k}"] if rt == 0 else [])
            if tags: g.wait("lg", f"{key}{i}m{n}", tags)
            mfma(e, self.AC(n), self.AF(i, k), self.BF(7 * i + rt), self.AC(n))
            if k == 1 and 7 * i + rt + 6 < 7 * (last + 1): self.b_read(7 * i + rt + 6)
            if k == 0 and i < last and BAR < n <= BAR + 8: self.a_read(i + 1, (n - BAR - 1) // 2)
            while self.pq and self.pq[0][0] <= self.clock: self.pq.pop(0)[1]()
            self.clock += 1
            self.run_dq(7)
    def finish(self):
        self.flush_pq(); self.clock += 100; self.run_dq(1000)

def qp_phase(p, needs):
    g = Gen(p, needs); e = g.e
    AC = QAC
    def AF(par, hh, k): return 168 + par * 24 + (hh * 3 + k) * 4
    def BF(n): return 216 + 4 * (n % 4)
    RA = [[232, 233, 234], [235, 236, 237]]; XA = [238, 239]; PW = [243, 244, 245]; PX = 246
    JUNK = 247
    STG = [KVB, T1R]
    NB1, NB2 = OPT["nb1"], OPT["nb2"]
    def dma_w(i, hh):
        out = []
        for ii in range(3):
            def f(ii=ii):
                if ii == 0:
                    e(f"s_add_u32 m0, s{sLW}, {STG[i&1]+hh*2*TILE}")
                    e(f"s_add_u32 s{sT1}, s{sWB2 if hh else sWB}, {i*32*12288}")
                o = f"offset:{ii*1024} " if ii else ""
                g.vm(f"W{i}.{hh}", f"buffer_load_dwordx4 v{PW[ii]}, s[{sWd}:{sWd+3}], s{sT1} offen {o}{OPT['w']} lds")
            out.append(f)
        return out
    def dma_x(pp):
        out = []
        for q in range(2):
            def f(q=q):
                if q == 0: e(f"s_add_u32 m0, s{sXM}, {QO+(pp%3)*14336}")
                else:
                    e(f"s_add_u32 s{sT2}, s{sXM}, {QO+(pp%3)*14336+8192}")
                    e(f"s_cmp_ge_u32 s{sWAVE}, 6")
                    e(f"s_cselect_b32 m0, s{sXF}, s{sT2}")
                e(f"s_add_u32 s{sT2}, s{sXB}, {pp*128+q*81920}")
                g.vm(f"X{pp}", f"buffer_load_dwordx4 v{PX}, s[{sXd}:{sXd+3}], s{sT2} offen {OPT['x']} lds")
            out.append(f)
        return out
    def a_read(i, hh, n):
        k, hf = divmod(n, 2)
        g.ld(f"{i}a{hh}{k}", f"ds_read_b64_tr_b16 {v(AF(i&1,hh,k)+2*hf,2)}, v{RA[i&1][k]} offset:{hh*2*TILE+hf*1536}")
    def b_read(i, rt):
        g.ld(f"{i}b{rt}", f"ds_read_b128 {v(BF(7*i+rt),4)}, v{XA[i&1]} offset:{((i>>1)%3)*14336+rt*2048}")
    lane_regs(e)
    e(f"""
v_lshrrev_b32 v13, 1, v8
v_and_b32 v13, 3, v13
v_lshlrev_b32 v13, 1, v13
v_xor_b32 v13, v9, v13
v_lshlrev_b32 v13, 4, v13
v_mul_u32_u24 v14, 1280, v8
v_add_u32 v{PX}, v13, v14
v_mul_u32_u24 v14, 384, v8
v_add_u32 v{PKV_}, v13, v14
s_mul_i32 s{sXB}, s{sWAVE}, 10240
s_lshl_b32 s{sXM}, s{sWAVE}, 10
s_sub_u32 s{sXF}, s{sXM}, 6144
s_add_u32 s{sXF}, s{sXF}, {SPARE}
""")
    for f in dma_x(0): f()
    e(f"""
s_and_b32 s{sT1}, s{sW4}, 1
s_lshl_b32 s{sT1}, s{sT1}, 2
v_xor_b32 v16, s{sT1}, v9
s_mul_i32 s{sWB}, s{sW4}, {8*12288}
s_mul_i32 s{sT1}, s{sTEAM}, 384
s_add_u32 s{sWB2}, s{sWB}, 1152
s_add_u32 s{sWB}, s{sWB}, s{sT1}
s_sub_u32 s{sWB2}, s{sWB2}, s{sT1}
s_mul_i32 s{sT1}, s{sTEAM}, {TILE}
s_add_u32 s{sLW}, s{sLW}, s{sT1}
""")
    for q in range(3):
        e(f"""
v_add_u32 v10, {8*q}, v8
v_mul_u32_u24 v11, 43, v10
v_lshrrev_b32 v11, 7, v11
v_mul_u32_u24 v12, 3, v11
v_sub_u32 v12, v10, v12
v_lshrrev_b32 v13, 1, v11
v_and_b32 v14, 1, v13
v_xor_b32 v14, v16, v14
v_lshlrev_b32 v14, 4, v14
v_lshl_add_u32 v14, v12, 7, v14
v_mul_u32_u24 v15, 12288, v11
v_add_u32 v14, v14, v15
v_subrev_u32 v{PW[q]}, {q*1024}, v14
""")
    for f in dma_w(0, 0) + dma_w(0, 1): f()
    if OPT["touch"]:
        nsh = 16 if OPT["map"] == 0 else 8
        rows = 640 // nsh // 8
        e(f"""
s_and_b32 s{sT1}, s{sB}, {nsh-1}
s_lshl_b32 s{sT1}, s{sT1}, 3
s_add_u32 s{sT1}, s{sT1}, s{sWAVE}
s_mul_i32 s{sT1}, s{sT1}, {rows*12288}
v_mul_u32_u24 v10, 43, v2
v_lshrrev_b32 v10, 9, v10
v_mul_u32_u24 v11, 12, v10
v_sub_u32 v11, v2, v11
v_mul_u32_u24 v10, 12288, v10
v_lshl_add_u32 v10, v11, 7, v10
""")
        for r in range(rows // 5):
            g.vm("pf", f"buffer_load_dword v{JUNK}, v10, s[{sWd}:{sWd+3}], s{sT1} offen")
            e(f"s_add_u32 s{sT1}, s{sT1}, {5*12288}")
    if OPT["touch"] and OPT["xt"]:
        e(f"""
s_and_b32 s{sT1}, s{sQUAD}, 1
s_mul_i32 s{sT1}, s{sT1}, 71680
s_mul_i32 s{sT2}, s{sWAVE}, {70*128}
s_add_u32 s{sT1}, s{sT1}, s{sT2}
v_lshlrev_b32 v10, 7, v2
""")
        g.vm("pf", f"buffer_load_dword v{JUNK}, v10, s[{sXd}:{sXd+3}], s{sT1} offen")
        g.vm("pf", f"buffer_load_dword v{JUNK}, v10, s[{sXd}:{sXd+3}], s{sT1} offen offset:768")
    e(f"""
v_lshrrev_b32 v8, 1, v3
v_and_b32 v8, 3, v8
v_lshlrev_b32 v8, 1, v8
v_xor_b32 v8, v4, v8
v_lshlrev_b32 v8, 4, v8
v_lshl_add_u32 v9, v3, 7, v8
v_add_u32 v{XA[0]}, {QO}, v9
v_xor_b32 v{XA[1]}, 64, v{XA[0]}
v_lshl_add_u32 v8, v4, 3, v6
v_mul_u32_u24 v9, 384, v8
v_lshrrev_b32 v8, 1, v6
v_and_b32 v11, 1, v4
v_lshl_add_u32 v8, v11, 2, v8
v_xor_b32 v8, v7, v8
v_lshl_add_u32 v9, v8, 4, v9
v_lshlrev_b32 v12, 3, v11
v_lshl_add_u32 v12, v2, 4, v12
v_and_b32 v11, 1, v7
v_lshl_add_u32 v11, v11, 3, v9
s_mov_b32 s{sC}, {hex(f2u(192 ** -0.5 * math.log2(math.e)))}
s_mov_b32 s{sC+1}, s{sC}
""")
    for i in range(3):
        e(f"""
s_mul_i32 s{sT1}, s{sW4}, 3
s_add_u32 s{sT1}, s{sT1}, {i}
s_lshr_b32 s{sT2}, s{sT1}, 2
s_lshl_b32 s{sRY+i}, s{sT2}, 7
s_and_b32 s{sT3}, s{sT1}, 3
s_xor_b32 s{sT3}, s{sT3}, s{sW4}
s_lshl_b32 s{sRX+i}, s{sT3}, 5
s_and_b32 s{sT3}, s{sT1}, 2
s_lshl_b32 s{sT3}, s{sT3}, 5
s_and_b32 s{sT2}, s{sT1}, 1
s_lshl_b32 s{sT2}, s{sT2}, 3
v_xor_b32 v{QW[i]}, s{sT2}, v12
s_or_b32 s{sT3}, s{sT3}, s{sT2}
v_xor_b32 v13, s{sT3}, v11
s_lshr_b32 s{sT1}, s{sT1}, 1
s_mul_i32 s{sT1}, s{sT1}, 7168
v_add_u32 v{QW[i]}, s{sT1}, v{QW[i]}
s_mul_i32 s{sT1}, s{sTEAM}, {TILE}
s_add_u32 s{sT1}, s{sT1}, s{sRY+i}
v_add_u32 v13, s{sT1}, v13
v_add_u32 v{RA[1][i]}, {T1R}, v13
v_add_u32 v{RA[0][i]}, {KVB}, v13
""")
    g.wait("vm", "in", ["W0.0", "W0.1", "X0"])
    e("s_barrier")
    stamp(e, 14)
    a_read(0, 0, 0); a_read(0, 0, 1); b_read(0, 0); b_read(0, 1)
    for n in range(2, 6): a_read(0, 0, n)
    for n in range(6): a_read(0, 1, n)
    for rt in range(2, 4): b_read(0, rt)
    for f in dma_w(1, 0) + dma_w(1, 1) + dma_x(1): f()
    ORD = [(rt, 0, k) for rt in (0, 1) for k in range(3)] + [(rt, 1, k) for rt in (0, 1) for k in range(3)]
    ORD += [(rt, hh, k) for rt in range(2, 7) for hh in range(2) for k in range(3)]
    lastb = {rt: max(n for n, x in enumerate(ORD) if x[0] == rt) for rt in range(7)}
    A0 = [NB1 + 2 + 3 * x for x in range(6)]
    A1 = [NB2 + 1 + 2 * x for x in range(6)]
    def qcvt(n):
        rt, hh, k = ORD[n]
        a = AC(hh, rt, k)
        e(f"v_pk_mul_f32 {v(a,2)}, {v(a,2)}, s[{sC}:{sC+1}]")
        e(f"v_pk_mul_f32 {v(a+2,2)}, {v(a+2,2)}, s[{sC}:{sC+1}]")
        e(f"v_cvt_pk_bf16_f32 v{a}, v{a}, v{a+1}")
        e(f"v_cvt_pk_bf16_f32 v{a+1}, v{a+2}, v{a+3}")
    lastd = [0]
    for i in range(20):
        seen = set()
        for n, (rt, hh, k) in enumerate(ORD):
            if n == NB1 and i < 19:
                g.drain(9); lastd[0] = n - 9
                g.wait("lg", f"r1{i}", [], drain_tags=[f"{i}a1{x}" for x in range(3)])
                g.wait("vm", f"s{i}", [f"W{i+1}.0"] + ([f"X{(i+1)//2}"] if i % 2 == 1 else []))
                e("s_barrier")
                if i + 2 < 20: g.pend += (dma_w(i + 2, 0) if i == 0 else []) + dma_w(i + 2, 1)
                if i % 2 == 0 and i // 2 + 2 < 10: g.pend += dma_x(i // 2 + 2)
            if n == NB2 and i < 19:
                g.drain(9); lastd[0] = n - 9
                g.wait("lg", f"r2{i}", [], drain_tags=[f"{i+1}a0{x}" for x in range(3)])
                g.wait("vm", f"t{i}", [f"W{i+1}.1"])
                e("s_barrier")
                if i + 3 < 20: g.pend += dma_w(i + 3, 0)
            if n == NB2 + 1 and i == 18:
                e(f"s_cmp_eq_u32 s{sTEAM}, 0")
                e("s_cbranch_scc1 qp_nokv")
                e(f"s_mul_i32 s{sKSO2}, s{sW4}, 3072")
                e(f"s_lshl_b32 s{sT3}, s{sW4}, 10")
                for u in range(N0 - 96):
                    a, bb = divmod(u, 3)
                    e(f"s_add_u32 m0, s{sT3}, {KVB + (u % NS) * 4096 - bb * 128}")
                    e(f"s_add_u32 s{sT1}, s{sKSO2}, {kv_tile(a) * TILE}")
                    srd = sKd if kv_kind(a) == "K" else sVd
                    e(f"buffer_load_dwordx4 v{PKV_}, s[{srd}:{srd+3}], s{sT1} offen offset:{bb*128} {OPT['kv']} lds")
                g.label("qp_nokv")
            tags = [t for t in (f"{i}b{rt}", f"{i}a{hh}{k}") if t not in seen]
            seen.update(tags)
            if tags: g.wait("lg", f"{i}m{n}", tags)
            mfma(e, AC(hh, rt, k), AF(i & 1, hh, k), BF(7 * i + rt), "0" if i == 0 else AC(hh, rt, k))
            if n == lastb[rt]:
                if rt + 4 < 7: b_read(i, rt + 4)
                elif i < 19: b_read(i + 1, rt - 3)
            if i < 19 and n in A0: a_read(i + 1, 0, A0.index(n))
            if i < 19 and n in A1: a_read(i + 1, 1, A1.index(n))
            if g.pend and (n - lastd[0]) % 42 >= (OPT["qd"] if len(g.pend) <= 3 else OPT["qd"] - 2):
                g.drain(1); lastd[0] = n
            if i == 19 and n >= 4: qcvt(n - 4)
    for n in range(38, 42): qcvt(n)
    stamp(e, 15)
    e("s_barrier")
    return g.rec

def t0_path(p, needs, nrt, tag):
    g = Gen(p, needs); e = g.e
    def ACC(rt, t): return rt * 48 + t * 4
    def Q(rt, j): return 96 + rt * 24 + j * 4
    def S(par, rt, kt=0): return 144 + par * 16 + rt * 8 + kt * 4
    def P(par, rt): return 176 + par * 8 + rt * 4
    def NEGM(rt): return 192 + rt * 4
    def LSUM(rt): return 200 + rt * 4
    def STG(rt, j): return 144 + (j * 2 + rt) * 4 if j < 5 else 192 + rt * 4
    ONES = 208
    FR0 = 212; NFR = 8
    def FR(a, f): return FR0 + ((a * 12 + f) % NFR) * 4
    KA = [244, 245]; VA = [246, 247, 248, 249]; QOA = 250
    TC = 251; T = [252, 253, 254, 255]
    def rd_l(a, f):
        base = ((3 * a + f // 4) % NS) * 4096; tg = f"A{a%32}f{f}"
        if kv_kind(a) == "K":
            j, kt = divmod(f, 2)
            return [lambda: g.ld(tg, f"ds_read_b128 {v(FR(a,f),4)}, v{KA[j&1]} offset:{base+kt*2048}")]
        return [lambda hf=hf: g.ld(tg, f"ds_read_b64_tr_b16 {v(FR(a,f)+2*hf,2)}, v{VA[f&3]} offset:{base+hf*2048}") for hf in range(2)]
    def run(x):
        if callable(x): x()
        else: e(x)
    def cost(x): return 2 if isinstance(x, str) and x.startswith(("v_exp", "v_rcp")) else 1
    def step(key, a, mfs, valu=(), last=False, extra=None, v0=0):
        valu = list(valu)
        ngap = sum(len(mfs(f, 0)) for f in range(v0, 12))
        tot = sum(cost(x) for x in valu); done = 0; gap = 0
        for f in range(12):
            pos = a * 12 + f
            if extra and f in extra: extra[f]()
            if pos in XB_: e("s_barrier")
            reads = rd_l(a, f + LEAD) if f + LEAD < 12 else ([] if last else rd_l(a + 1, f + LEAD - 12))
            if not OPT["w2"]: g.wait("lg", f"{key}{f}", [f"A{a}f{f}"])
            elif f % 2 == 0: g.wait("lg", f"{key}{f}", [f"A{a}f{f}", f"A{a}f{f+1}"])
            ms = mfs(f, FR(a, f))
            for i, m in enumerate(ms):
                m()
                if reads: reads.pop(0)()
                if i == len(ms) - 1:
                    while reads: reads.pop(0)()
                if f >= v0:
                    gap += 1
                    while valu and done + cost(valu[0]) / 2 <= tot * gap / ngap:
                        done += cost(valu[0]); run(valu.pop(0))
        for x in valu: run(x)
    def mf_qk(par, zero):
        def m(f, fr):
            j, kt = divmod(f, 2)
            return [lambda rt=rt: mfma(e, S(par, rt, kt), fr, Q(rt, j), ("0" if zero else NEGM(rt)) if j == 0 else S(par, rt, kt)) for rt in range(nrt)]
        return m
    def onorm_l(j):
        out = []
        for rt in range(nrt):
            a = ACC(rt, 2 * j)
            out += [f"v_pk_mul_f32 {v(a+i,2)}, {v(a+i,2)}, {v(T[2*rt],2)}" for i in range(0, 8, 2)]
            out += [f"v_cvt_pk_bf16_f32 v{STG(rt,j)+i}, v{a+2*i}, v{a+2*i+1}" for i in range(4)]
        return out
    def mf_pv(par, first, last=False):
        def m(f, fr):
            out = []
            if f == (0 if last else 5):
                out += [lambda rt=rt: mfma(e, LSUM(rt), ONES, P(par, rt), "0" if first else LSUM(rt)) for rt in range(nrt)]
            return out + [lambda rt=rt: mfma(e, ACC(rt, f), fr, P(par, rt), "0" if first else ACC(rt, f)) for rt in range(nrt)]
        return m
    def sm(par, lo=0, hi=None):
        grp = [(rt, i) for rt in range(nrt) for i in range(4)][lo:hi]
        seq = []
        for n, (rt, i) in enumerate(grp):
            a, b = T[(2 * n) % 4], T[(2 * n + 1) % 4]
            r = S(par, rt) + 2 * i
            seq += [f"v_exp_f32 v{a}, v{r}", f"v_exp_f32 v{b}, v{r+1}"]
            if n > 0: seq.append(prev)
            prev = f"v_cvt_pk_bf16_f32 v{P(par,rt)+i}, v{a}, v{b}"
        return seq + [prev] if grp else []
    def chk_l(par):
        p0 = P(par, 0)
        out = [f"v_or3_b32 v{TC}, v{p0}, v{p0+1}, v{p0+2}"]
        if nrt == 2:
            out += [f"v_or3_b32 v{TC}, v{TC}, v{p0+3}, v{p0+4}", f"v_or3_b32 v{TC}, v{TC}, v{p0+5}, v{p0+6}"]
        out += [f"v_bitop3_b32 v{TC}, v{TC}, v{p0+4*nrt-1}, s{sBIT} bitop3:0xa8", f"v_cmp_ne_u32 vcc, 0, v{TC}"]
        return out
    def chk_branch(par, key):
        e(f"s_cbranch_vccz t0_ok{key}_{tag}")
        if not OPT["norare"]: e(f"s_call_b64 s[{sRET}:{sRET+1}], t0_rare{par}_{tag}")
        g.label(f"t0_ok{key}_{tag}")
    def rowmax(par, rt, t, t2):
        r = S(par, rt)
        e(f"""
v_max3_f32 v{t}, v{r}, v{r+1}, v{r+2}
v_max3_f32 v{t}, v{t}, v{r+3}, v{r+4}
v_max3_f32 v{t}, v{t}, v{r+5}, v{r+6}
v_max_f32 v{t}, v{t}, v{r+7}
v_mov_b32 v{t2}, v{t}
v_permlane32_swap_b32 v{t2}, v{t}
v_max_f32 v{t}, v{t}, v{t2}
v_mov_b32 v{t2}, v{t}
v_permlane16_swap_b32 v{t2}, v{t}
v_max_f32 v{t}, v{t}, v{t2}
v_add_f32 v{t}, {hex(f2u(7.0))}, v{t}
""")
    for rt in range(7):
        for k in range(3): e(f"ds_write_b64 v{QW[k]}, {v(QAC(0,rt,k),2)} offset:{QO+rt*1024}")
    for k in range(3):
        e(f"""
s_mul_i32 s{sT1}, s{sW4}, 3
s_add_u32 s{sT1}, s{sT1}, {k}
s_lshr_b32 s{sT1}, s{sT1}, 1
s_lshl_b32 s{sT2}, s{sT1}, 10
s_sub_u32 s{sT2}, {B2}, s{sT2}
v_add_u32 v{240+k}, s{sT2}, v{QW[k]}
s_mul_i32 s{sT2}, s{sT1}, 6144
s_sub_u32 s{sT2}, {T1R}, s{sT2}
v_add_u32 v{243+k}, s{sT2}, v{QW[k]}
""")
    for rt in range(7):
        for k in range(3): e(f"ds_write_b64 v{(240 if rt < 6 else 243)+k}, {v(QAC(1,rt,k),2)} offset:{rt*1024 if rt < 6 else 0}")
    e("s_waitcnt lgkmcnt(0)")
    lane_regs(e)
    e(f"""
s_lshl_b32 s{sT1}, s{sWAVE}, 11
s_add_u32 s{sT1}, s{sT1}, {QO}
v_lshl_add_u32 v{QOA}, v2, 4, s{sT1}
v_lshrrev_b32 v8, 1, v3
v_and_b32 v8, 3, v8
v_lshlrev_b32 v8, 1, v8
v_xor_b32 v8, v4, v8
v_lshlrev_b32 v8, 4, v8
v_lshl_add_u32 v8, v3, 7, v8
v_add_u32 v{KA[0]}, {KVB}, v8
v_xor_b32 v{KA[1]}, 64, v{KA[0]}
v_lshrrev_b32 v8, 1, v5
v_and_b32 v8, 3, v8
v_lshlrev_b32 v8, 5, v8
v_lshl_add_u32 v8, v5, 7, v8
v_lshl_add_u32 v8, v7, 3, v8
v_add_u32 v{VA[0]}, {KVB}, v8
v_xor_b32 v{VA[1]}, 32, v{VA[0]}
v_xor_b32 v{VA[2]}, 64, v{VA[0]}
v_xor_b32 v{VA[3]}, 96, v{VA[0]}
s_mov_b32 s{sBIT}, 0x40004000
s_mov_b32 s{sSLOT}, 1
""")
    for i in range(4): e(f"v_mov_b32 v{ONES+i}, 0x3f803f80")
    H = 4 if (nrt == 2 and OPT["psplit"]) else (2 if OPT["psplit"] else 0)
    for unit in range(2):
        if unit >= 1: g.mute += 1
        g.label(f"t0_unit_{tag}")
        e("s_barrier")
        if not g.mute: stamp_slot(e)
        e(f"s_cmp_gt_u32 s{sSLOT}, 3")
        e(f"s_cbranch_scc1 t0_q3_{tag}")
        for j in range(6):
            for rt in range(nrt): e(f"ds_read_b128 {v(Q(rt,j),4)}, v{QOA} offset:{(j*7+rt)*1024}")
        e(f"s_cmp_lg_u32 s{sSLOT}, 1")
        e(f"s_cbranch_scc1 t0_w_{tag}")
        if nrt == 1:
            for j in range(6): e(f"ds_read_b128 {v(Q(1,j),4)}, v{QOA} offset:{T1R-6144+j*1024}")
        e(f"s_branch t0_noo_{tag}")
        g.label(f"t0_q3_{tag}")
        e(f"s_cmp_eq_u32 s{sSLOT}, 5")
        e(f"s_cbranch_scc1 t0_w_{tag}")
        if nrt == 1:
            for i in range(24): e(f"v_mov_b32 v{Q(0,0)+i}, v{Q(1,0)+i}")
        else:
            e(f"v_add_u32 v{TC}, {B2}, v{QOA}")
            for j in range(6):
                for rt in range(nrt): e(f"ds_read_b128 {v(Q(rt,j),4)}, v{TC} offset:{(j*6+rt)*1024}")
        g.label(f"t0_w_{tag}")
        e("s_waitcnt lgkmcnt(0)")
        for j in range(6):
            for rt in range(nrt): e(f"ds_write_b128 v{QOA}, {v(STG(rt,j),4)} offset:{(j*7+rt)*1024}")
        e(f"s_cmp_eq_u32 s{sSLOT}, 5")
        e(f"s_cbranch_scc1 t0_exit_{tag}")
        g.label(f"t0_noo_{tag}")
        for f in range(LEAD):
            for x in rd_l(0, f): x()
        step("a0_", 0, mf_qk(0, True), extra={1: lambda: e("s_barrier")})
        for rt in range(nrt):
            rowmax(0, rt, T[0], T[1])
            for i in range(4): e(f"v_sub_f32 v{NEGM(rt)+i}, 0, v{T[0]}")
            for i in range(8): e(f"v_sub_f32 v{S(0,rt)+i}, v{S(0,rt)+i}, v{T[0]}")
        for t in range(15):
            step(f"q{t}_", 2 * t + 1, mf_qk((t + 1) & 1, False), valu=sm(t & 1, H if t else 0) + chk_l(t & 1))
            chk_branch(t & 1, f"q{t}")
            va = sm((t + 1) & 1, 0, H)
            if t == 14: va = sm(1) + chk_l(1)
            step(f"p{t}_", 2 * t + 2, mf_pv(t & 1, t == 0), valu=va, v0=1)
        chk_branch(1, "q15")
        rc = [f"v_rcp_f32 v{T[i]}, v{LSUM(i//2)}" for i in range(2 * nrt)]
        ex = {3: lambda: [e(x) for x in rc]}
        for j in range(4): ex[4 + 2 * j] = lambda j=j: [e(x) for x in onorm_l(j)]
        step("p15_", 31, mf_pv(1, False, True), last=True, extra=ex)
        for x in onorm_l(4) + onorm_l(5): e(x)
        e(f"""
s_add_u32 s{sSLOT}, s{sSLOT}, 1
s_branch t0_unit_{tag}
""")
        if unit >= 1: g.mute -= 1
    g.label(f"t0_exit_{tag}")
    e("s_branch t0_final")
    for par in range(2):
        g.label(f"t0_rare{par}_{tag}")
        for rt in range(nrt):
            t, t2 = TC, T[0]
            rowmax(par, rt, t, t2)
            e(f"v_max_f32 v{t}, 0, v{t}")
            for i in range(4): e(f"v_sub_f32 v{NEGM(rt)+i}, v{NEGM(rt)+i}, v{t}")
            for pp in range(2):
                for i in range(8): e(f"v_sub_f32 v{S(pp,rt)+i}, v{S(pp,rt)+i}, v{t}")
            e(f"v_exp_f32 v{t}, -v{t}")
            for i in range(4): e(f"v_mul_f32 v{LSUM(rt)+i}, v{LSUM(rt)+i}, v{t}")
            for i in range(48): e(f"v_mul_f32 v{ACC(rt,0)+i}, v{ACC(rt,0)+i}, v{t}")
        for x in sm(par): e(x)
        e(f"s_setpc_b64 s[{sRET}:{sRET+1}]")
    return g.rec


def t0_final(p, needs):
    g = Gen(p, needs); e = g.e
    g.label("t0_final")
    op = OpEngine(g, lambda tt: 2 * (tt - 42), 56, 112, 128, [244, 245], 246, [247, 248], KVB, sLW, 2)
    op.addr_setup()
    e(f"""
s_mul_i32 s{sOB}, s{sW4}, {8*1280}
s_add_u32 s{sOB}, s{sOB}, {3*245760}
s_lshl_b32 s{sLW}, s{sW4}, 11
s_mov_b32 s{sSLO}, 0x01000c0c
s_mov_b32 s{sSHI}, 0x03020c0c
s_mul_i32 s{sT1}, s{sW4}, 7168
s_add_u32 s{sT1}, s{sT1}, {B2}
v_add_u32 v249, s{sT1}, v246
""")
    for i in range(18, 22):
        for f in op.dma(i): f()
    def pk_read(ps):
        for rt in range(7): g.ld("pk", f"ds_read_b128 {v(op.PK(ps*14+rt*2),4)}, v249 offset:{rt*1024}")
    pk_read(3)
    e("s_waitcnt lgkmcnt(0)"); g.lq[:] = []
    e("s_barrier")
    for k in range(14):
        for x in op.unpack_l(op.AC(k), op.PK(42 + k)): e(x)
    g.wait("vm", "in", ["O18"])
    e("s_barrier")
    op.first_reads(18)
    def tick(i):
        op.flush_pq()
        g.wait("vm", f"t{i}", [f"O{i+1}"])
        e("s_barrier")
        if i + 4 < 30:
            for j, f in enumerate(op.dma(i + 4)): op.pq.append((op.clock + j, f))
    for i in range(18, 30):
        op.step("f", i, 29, tick, store=[3], hooks={5: lambda: pk_read(4)} if i == 20 else None)
    op.finish()
    e("s_waitcnt vmcnt(0)")
    stamp(e, 10); stamp(e, 11, real=True)
    dump_stamps(e, 28, 64 << 20, 8)
    e("s_endpgm")
    return g.rec

def t1_path(p, needs):
    g = Gen(p, needs); e = g.e
    def PK(tt): return 2 * tt
    def Q2(k): return PK(56) + 2 * k if k < 14 else 236 + 2 * (k - 14)
    OB = 252
    op = OpEngine(g, PK, 140, 196, 212, [250, 251], OB, [253, 254], T1R, sLW, 0)
    AC, AF, BF = op.AC, op.AF, op.BF
    def dma_sub(u):
        a, bb = divmod(u, 3)
        srd = sKd if kv_kind(a) == "K" else sVd
        def f():
            e(f"s_add_u32 m0, s{sL1}, {KVB + (u % NS) * 4096 - bb * 128}")
            e(f"s_add_u32 s{sT1}, s{sKSO2}, {kv_tile(a) * TILE}")
            off = f"offset:{bb*128} " if bb else ""
            g.vm(f"U{u % 96}", f"buffer_load_dwordx4 v{PKV_}, s[{srd}:{srd+3}], s{sT1} offen {off}{OPT['kv']} lds")
        return f
    st = dict(pub=0, iss=0)
    def kv_tags(k):
        upto = XB_[k + 1] if k < NX - 1 else 384
        n = -(-(upto + LEAD) // 4) if upto < 384 else 96
        tags = [f"U{u}" for u in range(st["pub"], n)]
        st["pub"] = max(st["pub"], n)
        return tags
    def kv_issue(k):
        out = []
        while 4 * (st["iss"] - KL) + 4 <= XB_[k]:
            out.append(dma_sub(st["iss"])); st["iss"] += 1
        return out
    def touch_o(t):
        nsh = 16 if OPT["map"] == 0 else 8
        per = 245760 // (4 * nsh)
        e(f"""
s_and_b32 s{sT1}, s{sB}, {nsh-1}
s_lshl_b32 s{sT1}, s{sT1}, 2
s_add_u32 s{sT1}, s{sT1}, s{sW4}
s_mul_i32 s{sT1}, s{sT1}, {per}
s_sub_u32 s{sT2}, s{sSLOT}, 1
s_mul_i32 s{sT2}, s{sT2}, 245760
s_add_u32 s{sT1}, s{sT1}, s{sT2}
s_mov_b32 m0, {SPARE}
v_lshrrev_b32 v{t}, 4, v{OB}
v_min_u32 v{t}, {per//128-1}, v{t}
v_lshlrev_b32 v{t}, 7, v{t}
""")
        g.vm("pf", f"buffer_load_dword v{t}, s[{sOd}:{sOd+3}], s{sT1} offen lds")
    NEXT = {26: 2, 27: 3, 28: 0, 29: 1}
    def tick(i):
        waits = ([f"O{i+1}"] if i < 29 else []) + kv_tags(i)
        op.flush_pq()
        if waits: g.wait("vm", f"o{i}", waits)
        e("s_barrier")
        io = []
        if i == 26: io.append(lambda: e(f"s_add_u32 s{sOB}, s{sOB}, 245760"))
        io += op.dma(NEXT.get(i, i + 4))
        items = kv_issue(i) + io if OPT["kvfirst"] and i < 28 else io + kv_issue(i)
        for j, f in enumerate(items): op.pq.append((op.clock + (j * OPT["span"]) // len(items), f))
    def q_write(reg):
        for rt in range(7):
            for k in range(3): e(f"ds_write_b64 v{AC(0)+k}, {v(reg(rt,k),2)} offset:{QO+rt*1024}")
        e("s_waitcnt lgkmcnt(0)")
    def q_addr():
        t = AC(1)
        e(f"v_lshrrev_b32 v{t}, 5, v{OB}")
        e(f"v_and_b32 v{t}, 8, v{t}")
        e(f"v_add_u32 v{t}, v{t}, v{OB}")
        for k in range(3):
            e(f"""
s_mul_i32 s{sT1}, s{sW4}, 3
s_add_u32 s{sT1}, s{sT1}, {k}
s_lshr_b32 s{sT2}, s{sT1}, 1
s_mul_i32 s{sT2}, s{sT2}, 7168
s_and_b32 s{sT1}, s{sT1}, 1
s_lshl_b32 s{sT1}, s{sT1}, 3
v_xor_b32 v{AC(0)+k}, s{sT1}, v{t}
v_add_u32 v{AC(0)+k}, s{sT2}, v{AC(0)+k}
""")

    e(f"""
s_mul_i32 s{sOB}, s{sW4}, {8*1280}
s_lshl_b32 s{sLW}, s{sW4}, 11
s_lshl_b32 s{sL1}, s{sW4}, 10
s_mov_b32 s{sSLOT}, 1
s_mov_b32 s{sRX}, 0x01000c0c
s_mov_b32 s{sRX+1}, 0x03020c0c
""")
    for u in range(N0 - 96):
        g.vq.append(f"U{u}"); g.issued[f"U{u}"] = 1
    st.update(pub=0, iss=N0 - 96)
    g.wait("vm", "i_t0", kv_tags(-1))
    e("s_barrier")
    stamp_slot(e)
    e("s_barrier")
    for rt in range(7):
        for k in range(3): e(f"ds_write_b64 v{QW[k]}, {v(QAC(0,rt,k),2)} offset:{QO+rt*1024}")
    def setup():
        e("s_waitcnt lgkmcnt(0)")
        for k in range(21):
            for x in range(2): e(f"v_mov_b32 v{2*k+x}, v{QAC(1,k//3,k%3)+x}")
        for k in range(21):
            for x in range(2): e(f"v_mov_b32 v{Q2(k)+x}, v{2*k+x}")
    def setup0():
        e("s_waitcnt lgkmcnt(0)")
        op.addr_setup()
        setup()
    task = {0: setup0}
    if OPT["touch"]: task[4] = lambda: touch_o(AF(0, 0))
    for k in range(NX):
        w = kv_tags(k)
        if w: g.wait("vm", f"i{k}", w)
        e("s_barrier")
        for f in kv_issue(k): f()
        if k in task: task[k]()
        if k >= 26:
            for f in op.dma(NEXT[k]): f()
    for s in range(2, 5):
        if s != 2: g.mute += 1
        g.label("t1_slot")
        assert st["iss"] == N0
        st.update(pub=0, iss=N0 - 96)
        e(f"""
s_add_u32 s{sSLOT}, s{sSLOT}, 1
s_add_u32 s{sKSO2}, s{sKSO2}, 196608
s_cmp_eq_u32 s{sSLOT}, 2
s_cselect_b32 s{sSLO}, 0x0c0c0c0c, s{sRX}
s_cselect_b32 s{sSHI}, 0x0c0c0c0c, s{sRX+1}
""")
        g.wait("vm", "t0", kv_tags(-1))
        e("s_barrier")
        if not g.mute: stamp_slot(e)
        if OPT["touch"]: touch_o(AF(0, 0))
        for k in range(14):
            for x in op.unpack_l(AC(k), PK(k)): e(x)
        g.wait("vm", "o_in", ["O0"])
        e("s_barrier")
        stamp_if(e, 12, OPT["ps"])
        op.first_reads(0)
        for i in range(30): op.step("m", i, 29, tick)
        stamp_if(e, 13, OPT["ps"])
        tick(29)
        op.finish()
        e(f"s_cmp_lg_u32 s{sSLOT}, 2")
        e("s_cbranch_scc1 t1_noq2")
        for k in range(3): e(f"v_mov_b32 v{BF(0)+k}, v{AC(0)+k}")
        e(f"v_mov_b32 v{BF(0)+3}, v{AC(1)}")
        q_addr()
        q_write(lambda rt, k: Q2(rt * 3 + k))
        for k in range(3): e(f"v_mov_b32 v{AC(0)+k}, v{BF(0)+k}")
        e(f"v_mov_b32 v{AC(1)}, v{BF(0)+3}")
        g.label("t1_noq2")
        for n in range(14):
            for x in op.pack_l(PK(56 + n), AC(n)): e(x)
        e(f"s_cmp_lg_u32 s{sSLOT}, 4")
        e("s_cbranch_scc1 t1_slot")
        if s != 2: g.mute -= 1
    g.label("t1_last")
    e(f"""
s_mov_b32 s{sSLOT}, 5
s_mul_i32 s{sT1}, s{sW4}, 7168
s_add_u32 s{sT1}, s{sT1}, {B2}
v_add_u32 v249, s{sT1}, v{OB}
""")
    def pk_write(ps):
        for rt in range(7): g.ld("pk", f"ds_write_b128 v249, {v(PK(ps*14+rt*2),4)} offset:{rt*1024}")
    pk_write(3)
    for k in range(14):
        for x in op.unpack_l(AC(k), PK(k)): e(x)
    e("s_waitcnt vmcnt(0) lgkmcnt(0)"); g.vq[:] = []; g.lq[:] = []
    e("s_barrier")
    stamp_slot(e)
    e("s_barrier")
    stamp_if(e, 12, OPT["ps"])
    g.issued.pop("O0")
    op.first_reads(0)
    def tick5(i):
        op.flush_pq()
        if i == 2: g.wait("lg", "pkw", ["pk"])
        g.wait("vm", f"f{i}", [f"O{i+1}"])
        e("s_barrier")
        if i + 4 < 18:
            for j, f in enumerate(op.dma(i + 4)): op.pq.append((op.clock + j, f))
    g.issued.pop("pk")
    for i in range(18):
        op.step("f", i, 17, tick5, store=[0], hooks={5: lambda: pk_write(4)} if i == 1 else None)
    op.finish()
    stamp_if(e, 13, OPT["ps"])
    e("s_waitcnt vmcnt(0)")
    stamp(e, 10); stamp(e, 11, real=True)
    dump_stamps(e, 28, 64 << 20, 8)
    g.label("t1_exit")
    e("s_endpgm")
    return g.rec

def build(needs):
    p = Prog()
    p(f"""
.globl attn_kernel
.p2align 8
.type attn_kernel,@function
attn_kernel:
s_cmp_ge_u32 s2, 256
s_cbranch_scc1 k1_end
s_load_dwordx16 s[4:19], s[0:1], 0
s_load_dwordx8 s[20:27], s[0:1], 64
s_load_dwordx2 s[28:29], s[0:1], 96
v_lshrrev_b32 v1, 6, v0
v_and_b32 v2, 63, v0
v_readfirstlane_b32 s{sWAVE}, v1
s_and_b32 s{sT1}, s2, 7
s_lshr_b32 s{sT2}, s2, 3
""")
    if OPT["map"] == 0:
        p(f"""
s_and_b32 s{sQUAD}, s{sT1}, 3
s_lshl_b32 s{sQUAD}, s{sQUAD}, 1
s_and_b32 s{sB}, s{sT2}, 1
s_add_u32 s{sQUAD}, s{sQUAD}, s{sB}
s_lshr_b32 s{sB}, s{sT2}, 1
""")
    else:
        p(f"""
s_and_b32 s{sQUAD}, s{sT1}, 1
s_lshl_b32 s{sQUAD}, s{sQUAD}, 2
s_and_b32 s{sB}, s{sT2}, 3
s_add_u32 s{sQUAD}, s{sQUAD}, s{sB}
s_and_b32 s{sB}, s{sT1}, 2
s_lshl_b32 s{sB}, s{sB}, 2
s_lshr_b32 s{sT2}, s{sT2}, 2
s_add_u32 s{sB}, s{sB}, s{sT2}
""")
    p(f"""
s_and_b32 s{sW4}, s{sWAVE}, 3
s_lshr_b32 s{sTEAM}, s{sWAVE}, 2
s_mul_i32 s{sLW}, s{sW4}, 3072
s_mov_b32 s{sKd+2}, {0 if OPT['nokv'] else 786432}
s_mov_b32 s{sKd+3}, 0x20000
s_mov_b32 s{sVd+2}, {0 if OPT['nokv'] else 786432}
s_mov_b32 s{sVd+3}, 0x20000
s_mov_b32 s{sWd+3}, 0x20000
s_mov_b32 s{sOd+2}, {0 if OPT['now'] else 983040}
s_mov_b32 s{sOd+3}, 0x20000
s_mov_b32 s{sXd+2}, {0 if OPT['nox'] else 143360}
s_mov_b32 s{sXd+3}, 0x20000
s_mov_b32 s{sPd+2}, {35840+QO}
s_mov_b32 s{sPd+3}, 0x20000
s_waitcnt lgkmcnt(0)
s_cmp_lt_u32 s{sT1}, 4
s_cselect_b64 s[4:5], s[4:5], s[14:15]
s_cselect_b64 s[6:7], s[6:7], s[16:17]
s_cselect_b64 s[8:9], s[8:9], s[18:19]
s_cselect_b64 s[10:11], s[10:11], s[20:21]
s_cselect_b64 s[12:13], s[12:13], s[22:23]
s_cselect_b32 s{sT3}, 0, 16
s_mul_i32 s{sT2}, s{sB}, 143360
s_add_u32 s{sXd}, s4, s{sT2}
s_addc_u32 s{sXd+1}, s5, 0
s_mul_i32 s{sT2}, s{sQUAD}, 1536
s_add_u32 s{sWd}, s10, s{sT2}
s_addc_u32 s{sWd+1}, s11, 0
s_sub_u32 s{sWd+2}, 7864320, s{sT2}
{'s_mov_b32 s%d, 0' % (sWd+2) if OPT['now'] else ''}
s_lshl_b32 s{sT1}, s{sB}, 3
s_add_u32 s{sT1}, s{sT1}, s{sQUAD}
s_mul_i32 s{sT2}, s{sT1}, 786432
s_add_u32 s{sKd}, s6, s{sT2}
s_addc_u32 s{sKd+1}, s7, 0
s_add_u32 s{sVd}, s8, s{sT2}
s_addc_u32 s{sVd+1}, s9, 0
s_mul_i32 s{sT2}, s{sQUAD}, 983040
s_add_u32 s{sOd}, s12, s{sT2}
s_addc_u32 s{sOd+1}, s13, 0
s_lshl_b32 s{sT3}, s{sT3}, 3
s_add_u32 s{sT1}, s{sT1}, s{sT3}
s_mul_i32 s{sT1}, s{sT1}, {PART_CU}
s_mul_i32 s{sT2}, s{sW4}, 35840
s_add_u32 s{sT1}, s{sT1}, s{sT2}
s_add_u32 s{sT1}, s{sT1}, {PART0-QO}
s_add_u32 s{sPd}, s28, s{sT1}
s_addc_u32 s{sPd+1}, s29, 0
""")
    stamp(p, 0); stamp(p, 1, real=True)
    rec = {}
    rec["qp"] = qp_phase(p, needs.get("qp", {}))
    p(f"""
s_cmp_ge_u32 s{sWAVE}, 4
s_cbranch_scc1 k1_t1
""")
    if OPT["prio0"]: p(f"s_setprio {OPT['prio0']}")
    p(f"""
s_cmp_eq_u32 s{sWAVE}, 3
s_cbranch_scc1 k1_light
""")
    rec["h"] = t0_path(p, needs.get("h", {}), 2, "h")
    p.label("k1_light")
    rec["l"] = t0_path(p, needs.get("l", {}), 1, "l")
    rec["f"] = t0_final(p, needs.get("f", {}))
    p.label("k1_t1")
    if OPT["not1"]: p("s_endpgm")
    if OPT["prio1"]: p(f"s_setprio {OPT['prio1']}")
    rec["t1"] = t1_path(p, needs.get("t1", {}))
    p("""
k1_end:
s_endpgm
""")
    return p, rec

def reduce_kernel():
    p = Prog()
    p(f"""
.globl reduce_kernel
.p2align 8
.type reduce_kernel,@function
reduce_kernel:
s_cmp_ge_u32 s2, 1120
s_cbranch_scc1 k2_end
s_load_dwordx2 s[8:9], s[0:1], 80
s_load_dwordx2 s[10:11], s[0:1], 96
v_lshrrev_b32 v1, 6, v0
v_and_b32 v2, 63, v0
v_readfirstlane_b32 s3, v1
s_mul_i32 s5, s2, 1873
s_lshr_b32 s5, s5, 16
s_mul_i32 s6, s5, 35
s_sub_u32 s22, s2, s6
s_mul_i32 s6, s3, 35
s_add_u32 s6, s6, s22
s_mul_i32 s7, s5, {8*PART_CU}
s_add_u32 s7, s7, {PART0}
s_lshl_b32 s20, s6, 10
v_lshlrev_b32 v3, 4, v2
s_mov_b32 s14, {8*PART_CU}
s_mov_b32 s15, 0x20000
s_waitcnt lgkmcnt(0)
s_add_u32 s12, s10, s7
s_addc_u32 s13, s11, 0
""")
    for q in range(8):
        p(f"buffer_load_dwordx4 v[{8+4*q}:{11+4*q}], v3, s[12:15], s20 offen {OPT['rd']}")
        if q < 7: p(f"s_add_u32 s20, s20, {PART_CU}")
    p(f"""
s_and_b32 s23, s5, 15
s_mul_i32 s23, s23, {112*2560}
s_lshr_b32 s24, s5, 4
s_mul_i32 s24, s24, 1280
s_add_u32 s23, s23, s24
s_mov_b32 s16, s8
s_mov_b32 s17, s9
s_mov_b32 s18, {16*112*2560}
s_mov_b32 s19, 0x20000
s_mul_i32 s26, s22, 37
s_lshr_b32 s26, s26, 8
s_mul_i32 s27, s26, 7
s_sub_u32 s27, s22, s27
s_lshl_b32 s30, s26, 8
s_mul_i32 s28, s27, {16*2560}
s_add_u32 s30, s30, s28
s_mul_i32 s28, s3, {4*2560}
s_add_u32 s30, s30, s28
s_add_u32 s32, s30, s23
v_and_b32 v4, 15, v2
v_lshrrev_b32 v5, 4, v2
v_mul_u32_u24 v6, 272, v4
v_lshl_add_u32 v6, v5, 3, v6
s_lshl_b32 s28, s3, 6
v_add_u32 v6, s28, v6
s_mul_i32 s28, s3, {4*272}
v_mul_u32_u24 v7, 272, v5
v_lshl_add_u32 v7, v4, 4, v7
v_add_u32 v7, s28, v7
v_mul_u32_u24 v5, 2560, v5
v_lshl_add_u32 v4, v4, 4, v5
""")
    for q in range(8):
        p(f"s_waitcnt vmcnt({7-q})")
        for i in range(4):
            r = 8 + 4 * q + i
            if q == 0:
                p(f"v_lshlrev_b32 v{40+2*i}, 16, v{r}")
                p(f"v_and_b32 v{41+2*i}, 0xffff0000, v{r}")
            else:
                p(f"v_lshlrev_b32 v48, 16, v{r}")
                p(f"v_and_b32 v49, 0xffff0000, v{r}")
                p(f"v_add_f32 v{40+2*i}, v{40+2*i}, v48")
                p(f"v_add_f32 v{41+2*i}, v{41+2*i}, v49")
    for i in range(4): p(f"v_cvt_pk_bf16_f32 v{52+i}, v{40+2*i}, v{41+2*i}")
    p("""
ds_write_b64 v6, v[52:53]
ds_write_b64 v6, v[54:55] offset:32
s_waitcnt lgkmcnt(0)
s_barrier
ds_read_b128 v[52:55], v7
s_waitcnt lgkmcnt(0)
buffer_store_dwordx4 v[52:55], v4, s[16:19], s32 offen
k2_end:
s_endpgm
""")
    return p

def desc(name, vg):
    return f""".amdhsa_kernel {name}
  .amdhsa_next_free_vgpr {vg}
  .amdhsa_next_free_sgpr 102
  .amdhsa_accum_offset {vg}
  .amdhsa_group_segment_fixed_size 0
  .amdhsa_kernarg_size 104
  .amdhsa_user_sgpr_count 2
  .amdhsa_user_sgpr_kernarg_segment_ptr 1
  .amdhsa_system_sgpr_workgroup_id_x 1
.end_amdhsa_kernel
"""

def main():
    for t in range(1120): assert (t * 1873) >> 16 == t // 35
    for t in range(140): assert (t * 235) >> 13 == t // 35
    for t in range(35): assert (t * 37) >> 8 == t // 7
    _, rec = build({})
    for it in range(4):
        a, rec2 = build(rec)
        if rec2 == rec: break
        rec = rec2
    else: raise SystemExit("no fixpoint")
    b = reduce_kernel()
    if OPT["novm"]: a.L[:] = [l for l in a.L if not l.startswith("buffer_load")]
    if OPT["nobar"]: a.L[:] = [l for l in a.L if not l.startswith("s_barrier")]
    if OPT["nolg"]:
        out_ = []
        for i_, l in enumerate(a.L):
            if l.startswith("s_waitcnt lgkmcnt") and not a.L[i_-1].startswith(("s_mem", "s_load")) and i_ > 60: continue
            out_.append(l)
        a.L[:] = out_
    if OPT["nord"]: a.L[:] = [l for l in a.L if not l.startswith("ds_read")]
    if OPT["noexp"]: a.L[:] = [l.replace("v_exp_f32", "v_mov_b32") if l.startswith("v_exp_f32") and "-v" not in l else l for l in a.L]
    if OPT["nosm"]: a.L[:] = [l for l in a.L if not l.startswith(("v_exp_f32", "v_cvt_pk"))]
    if OPT["nochk"]: a.L[:] = [l for l in a.L if not l.startswith(("v_or3", "v_or_b32", "v_cmp_ne", "s_cbranch_vccz", "v_and_b32 v252"))]
    if OPT["prof"] == 2:
        out_ = []; L_ = a.L; inrole = False; i_ = 0
        while i_ < len(L_):
            l = L_[i_]
            if l.startswith(("t0_unit", "t1_slot")): inrole = True
            if l.startswith(("t0_exit", "t1_exit")): inrole = False
            if inrole and l == "s_barrier":
                j = len(out_)
                while j > 0 and (out_[j-1].startswith(("s_waitcnt vmcnt", "s_cmp_eq_u32 s55, 5", "s_cbranch_scc1 t1_wa")) or out_[j-1].startswith("t1_wa")): j -= 1
                blk = out_[j:]; del out_[j:]
                out_ += ["s_memtime s[4:5]"] + blk + ["s_memtime s[6:7]", "s_barrier", "s_memtime s[8:9]", "s_waitcnt lgkmcnt(0)",
                         "s_sub_u32 s4, s6, s4", "s_add_u32 s94, s94, s4", "s_sub_u32 s6, s8, s6", "s_add_u32 s95, s95, s6"]
            elif inrole and l.startswith("buffer_load") and l.endswith("lds"):
                out_ += ["s_memtime s[4:5]", l, "s_memtime s[6:7]", "s_waitcnt lgkmcnt(0)", "s_sub_u32 s4, s6, s4", "s_add_u32 s89, s89, s4"] if OPT["pv"] else [l]
            elif l.startswith(("k1_light:", "k1_t1:")) or l.startswith("s_cbranch_scc1 k1_light"):
                out_ += [l, "s_mov_b32 s94, 0", "s_mov_b32 s95, 0", "s_mov_b32 s89, 0"]
            else: out_.append(l)
            i_ += 1
        a.L[:] = out_
    if OPT["prof"] == 3:
        out_ = []; inrole = False; idx = 0
        for l in a.L:
            if l.startswith(("t0_unit", "t1_slot")): inrole = True; idx = 0
            if l.startswith(("t0_exit", "t1_exit")) or l.startswith("s_cbranch_scc1 t1_slot"): inrole = False
            if l.startswith("s_cselect_b32 s8") or l.startswith("s_cselect_b32 s9") or l.startswith("s_mov_b32 s9") and "s100" in l: continue
            if inrole and l == "s_barrier":
                k = idx - OPT["pb"]; idx += 1
                st_ = ["s_memtime s[100:101]", "s_waitcnt lgkmcnt(0)", f"s_cmp_eq_u32 s{sSLOT}, {OPT['ps']}", f"s_cselect_b32 s{80+k}, s100, s{80+k}"] if 0 <= k < 16 else []
                out_ += (st_ + [l]) if OPT["pa"] else ([l] + st_)
            else: out_.append(l)
        a.L[:] = out_
    if OPT["dynp"]:
        out_ = []; int1 = False
        for l in a.L:
            if l.startswith("k1_t1:"): int1 = True
            if int1 and l.startswith("buffer_load") and l.endswith("lds"):
                out_ += [f"s_setprio {OPT['dynp']}", l, f"s_setprio {OPT['prio1']}"]
            else: out_.append(l)
        a.L[:] = out_
    n1 = fix_hazards(a.L); n2 = fix_hazards(b.L)
    print("nops inserted", n1, n2, "instrs", len(a.L), len(b.L), file=sys.stderr)
    hdr = open("cdna_kernels/" + NAME + ".s.ref").read().split("; Override launch")[0]
    out = hdr
    out += f"; @launch kernel=attn_kernel grid=(256,1,1) block=(512,1,1) lds={LDS_BYTES}\n"
    out += f"; @launch kernel=reduce_kernel grid=(1120,1,1) block=(256,1,1) lds=4352\n"
    out += '.amdgcn_target "amdgcn-amd-amdhsa--gfx950"\n.text\n'
    out += a.text() + b.text()
    out += '.section .rodata,"a"\n.p2align 6\n' + desc("attn_kernel", 256) + ".p2align 6\n" + desc("reduce_kernel", 56)
    open(sys.argv[1], "w").write(out)
main()
```

```python
import sys, math, struct, copy
sys.path.insert(0, "work")
from asmlib import *

NAME = "concat_heads__mha_block_cached__gqa_block_cached__near_ridge"
OPT = dict(kv="nt", w="nt", x="nt", wo="nt", st="sc1", rd="sc1", prof=0, prio0=0, prio1=0, touch=1, nox=0, now=0, nokv=0, nomf=0,
           novm=0, lead=4, bp="6.16.26.36.42", map=0, hack="", t1b=0, ps=5, kdel=0, x0=4, xt=0, dynp=0, nopark=0, gap=0, span=4, pa=0, pb=0, m=2, nlat=0, nonar=0, bar=3, qd=5, rt=0, tf="nt", tq="nt", pwo=10, spin=40000, vcap=0, vpost=0, now0=9, xa=0, burst=0, kpar=0, pwh=1, near=0, vwin=0, vw1=1, wo5="", nomfq=0, nomf1=0, nomf0=0, pwf="", kvfirst=1, w2=1, psplit=1, nb1=8, nb2=29, kl=12, tl=4, kvat=18, qst="sc1", noq=0, noqst=0, pv=0, nobar=0, nolg=0, nord=0, norare=0, not1=0, noexp=0, nochk=0, nosm=0)
for a in sys.argv[2:]:
    k, val = a.split("=")
    OPT[k] = int(val) if val.lstrip("-").isdigit() else (val if k in ("bp", "hack") else val.replace("+", " ").replace("-", ""))
TILE = 12288
QO = 0
T1R = 43008
B2 = T1R + 32768
KVB = B2 + 18432
NS = 16
SPARE = KVB + NS * 4096
LDS_BYTES = SPARE + 2048
QPARK = 48 << 20
FLAG0 = 0
PART0 = 1 << 20
PART_CU = 4 * 35 * 1024
LEAD = OPT["lead"]
NX = 30
XB_ = [OPT["x0"] + 4 * ((k * 96) // NX) for k in range(NX)]
def f2u(f): return struct.unpack("<I", struct.pack("<f", f))[0]

sKd, sVd, sWd, sOd, sXd, sPd, sQd = 32, 36, 40, 44, 48, 76, 24
sWAVE, sB, sQUAD, sSLOT, sCTR, sW4 = 52, 53, 54, 55, 57, 56
sT1, sT2, sT3 = 62, 63, 61
sKSO, sVSO, sLW = 58, 59, 60
sWB, sOB, sXB, sXM, sSTR, sXF = 58, 59, 70, 71, 72, 73
sC, sBIT = 66, 68
sRET = 30
sGRP = 3
sTEAM, sWB2, sKSO2, sL1, sSLO, sSHI = 74, 75, 65, 64, 69, 72
PKV_ = 255
sRX, sRY, sRZ, sSP = 14, 17, 20, 23

def stamp(e, k, real=False):
    if not OPT["prof"]: return
    e(f"s_mem{'real' if real else ''}time s[100:101]")
    e("s_waitcnt lgkmcnt(0)")
    e(f"s_mov_b32 s{80+k}, s100")
def stamp_slot(e):
    if not OPT["prof"]: return
    e("s_memrealtime s[100:101]" if OPT["rt"] else "s_memtime s[100:101]")
    e("s_waitcnt lgkmcnt(0)")
    for k in range(0, 7):
        e(f"s_cmp_eq_u32 s{sSLOT}, {k}")
        e(f"s_cselect_b32 s{82+k}, s100, s{82+k}")
def stamp_if(e, k, slot):
    if not OPT["prof"]: return
    e("s_memtime s[100:101]")
    e("s_waitcnt lgkmcnt(0)")
    e(f"s_cmp_eq_u32 s{sSLOT}, {slot}")
    e(f"s_cselect_b32 s{80+k}, s100, s{80+k}")
def dump_stamps(e, wsreg, base, nw):
    if not OPT["prof"]: return
    e(f"""
s_mul_i32 s100, s2, {nw}
s_add_u32 s100, s100, s{sWAVE}
s_lshl_b32 s100, s100, 6
s_add_u32 s100, s100, {base}
s_add_u32 s96, s{wsreg}, s100
s_addc_u32 s97, s{wsreg+1}, 0
s_mov_b32 s98, 64
s_mov_b32 s99, 0x20000
v_mov_b32 v1, 0
""")
    for k in range(16):
        e(f"v_mov_b32 v0, s{80+k}")
        e(f"buffer_store_dword v0, v1, s[96:99], 0 offen offset:{k*4}")
    e("s_waitcnt vmcnt(0)")

class Gen:
    def __init__(self, prog, needs):
        self.p = prog; self.needs = needs; self.rec = {}
        self.mute = 0
        self.vq = []; self.lq = []; self.pend = []; self.issued = {}
        self.nosim = 0
    def e(self, s):
        if not self.mute: self.p(s)
    def label(self, n):
        if not self.mute: self.p.label(n)
    def wait(self, kind, key, tags, drain_tags=()):
        q = self.vq if kind == "vm" else self.lq
        for t in tags:
            assert self.issued.pop(t, 0) > 0, (t, key)
        tags = list(tags) + list(drain_tags)
        idx = [i for i, t in enumerate(q) if t in tags]
        n = len(q) - 1 - max(idx) if idx else 999
        if n != 999: n = min(n, 63 if kind == "vm" else 15)
        k = (kind, key)
        self.rec[k] = min(self.rec.get(k, 999), n)
        val = self.needs.get(k, n)
        if val == 999: return
        self.e(f"s_waitcnt {'vmcnt' if kind == 'vm' else 'lgkmcnt'}({val})")
        del q[:len(q) - val if val < len(q) else 0]
    def wait_alt(self, key, tags, alt, cmp_txt, lab):
        q = self.vq
        for t in tags: assert self.issued.pop(t, 0) > 0, (t, key)
        idx = [i for i, t in enumerate(q) if t in tags]
        n = min(len(q) - 1 - max(idx), 63) if idx else 999
        k = ("vm", key, alt)
        self.rec[k] = min(self.rec.get(k, 999), n)
        va, vb = self.needs.get(("vm", key, False), 0), self.needs.get(("vm", key, True), 0)
        if vb != 999 and vb > va: self.e(f"s_waitcnt vmcnt({vb})")
        if vb > va:
            self.e(cmp_txt); self.e(f"s_cbranch_scc1 {lab}")
        val = min(va, vb) if not (alt and vb > va) else vb
        if min(va, vb) != 999: self.e(f"s_waitcnt vmcnt({min(va, vb)})")
        if vb > va: self.label(lab)
        if val != 999: del q[:len(q) - val if val < len(q) else 0]
    def vm(self, tag, text):
        self.e(text); self.vq.append(tag); self.issued[tag] = self.issued.get(tag, 0) + 1
    def ld(self, tag, text):
        self.e(text); self.lq.append(tag); self.issued[tag] = self.issued.get(tag, 0) + 1
    def drain(self, n=1):
        for _ in range(n):
            if self.pend: self.pend.pop(0)()
    def optional(self, taken, fn):
        if taken: fn()
        elif not self.mute:
            st = (list(self.vq), list(self.lq), dict(self.issued))
            fn()
            self.vq[:], self.lq[:] = st[0], st[1]; self.issued = st[2]

def mfma(e, d, a, b, c):
    if not OPT["nomf"]:
        e(f"v_mfma_f32_16x16x32_bf16 {v(d,4)}, {v(a,4)}, {v(b,4)}, {c if c == '0' else v(c,4)}")


KL = OPT["kl"]
KVT = [k for k in range(NX) if not OPT['burst'] or k % 2 == OPT['kpar']]
N0 = max(u for u in range(300) if 4 * (u - KL) + 4 <= XB_[KVT[-1]]) + 1
def lane_regs(e, b=2):
    e(f"""
v_mbcnt_lo_u32_b32 v{b}, -1, 0
v_mbcnt_hi_u32_b32 v{b}, -1, v{b}
v_and_b32 v{b+1}, 15, v{b}
v_lshrrev_b32 v{b+2}, 4, v{b}
v_lshrrev_b32 v{b+3}, 2, v{b}
v_and_b32 v{b+4}, 3, v{b+3}
v_and_b32 v{b+5}, 3, v{b}
v_lshrrev_b32 v{b+6}, 3, v{b}
v_and_b32 v{b+7}, 7, v{b}
""")
def kv_kind(a):
    a %= 32
    return "K" if (a == 0 or (a % 2 == 1 and a < 31)) else "V"
def kv_tile(a):
    u, a = divmod(a, 32)
    return u * 16 + (0 if a == 0 else 15 if a == 31 else (a + 1) // 2 if a % 2 == 1 else (a - 2) // 2)
def QAC(hh, rt, k): return ((hh * 7 + rt) * 3 + k) * 4
QW = [248, 249, 250]


class OpEngine:
    def __init__(self, g, PK, AC0, AF0, BF0, RA, OB, PO, ring, sM0, ringoff):
        self.g, self.e = g, g.e
        self.PK, self.AC0, self.AF0, self.BF0, self.RA, self.OB, self.PO = PK, AC0, AF0, BF0, RA, OB, PO
        self.ring, self.sM0, self.ro = ring, sM0, ringoff
        self.dq = []; self.pq = []; self.clock = 0; self.fl = OPT['wo']
    def AC(self, k): return self.AC0 + 4 * k
    def AF(self, s, i): return self.AF0 + 8 * (s & 1) + 4 * i
    def BF(self, n): return self.BF0 + 4 * (n % 6)
    def slot(self, i): return ((i + self.ro) % 4) * 8192
    def addr_setup(self):
        e = self.e
        lane_regs(e, 232)
        L = 232
        e(f"""
v_lshlrev_b32 v{self.OB}, 4, v{L}
v_lshlrev_b32 v{L+8}, 1, v{L+2}
v_xor_b32 v{L+8}, v{L+1}, v{L+8}
v_lshlrev_b32 v{L+8}, 4, v{L+8}
v_mul_u32_u24 v{L+9}, 1280, v{L+2}
v_add_u32 v{self.PO[0]}, v{L+8}, v{L+9}
v_xor_b32 v{L+8}, 128, v{L+8}
v_add_u32 v{L+8}, v{L+8}, v{L+9}
v_add_u32 v{self.PO[1]}, 4096, v{L+8}
s_lshl_b32 s{sT1}, s{sW4}, 1
v_and_b32 v{L+8}, 7, v{L+3}
v_xor_b32 v{L+8}, s{sT1}, v{L+8}
v_lshlrev_b32 v{L+8}, 5, v{L+8}
v_lshl_add_u32 v{L+8}, v{L+3}, 8, v{L+8}
v_lshl_add_u32 v{L+8}, v{L+5}, 3, v{L+8}
v_add_u32 v{self.RA[0]}, {self.ring}, v{L+8}
v_xor_b32 v{self.RA[1]}, 32, v{self.RA[0]}
""")
    def dma(self, i):
        ps, j = divmod(i, 6)
        out = []
        for q in range(2):
            def f(q=q):
                if q == 0:
                    self.e(f"s_add_u32 m0, s{self.sM0}, {self.ring+self.slot(i)}")
                    self.e(f"s_add_u32 s{sT2}, s{sOB}, {j*32*1280+ps*256}")
                o = "offset:1024 " if q else ""
                self.g.vm(f"O{i}", f"buffer_load_dwordx4 v{self.PO[q]}, s[{sOd}:{sOd+3}], s{sT2} offen {o}{self.fl} lds")
            out.append(f)
        return out
    def defer(self, at, ins):
        for x in ins: self.dq.append((at, x))
    def run_dq(self, n):
        while n > 0 and self.dq and self.dq[0][0] <= self.clock:
            x = self.dq.pop(0)[1]
            if callable(x): x()
            else: self.e(x)
            n -= 1
    def flush_pq(self):
        while self.pq: self.pq.pop(0)[1]()
    def a_read(self, i, n):
        k, hf = divmod(n, 2)
        self.g.ld(f"o{i}a{k}", f"ds_read_b64_tr_b16 {v(self.AF(i,k)+2*hf,2)}, v{self.RA[k]} offset:{self.slot(i)+hf*4096}")
    def b_read(self, b):
        i, rt = divmod(b, 7)
        self.g.ld(f"o{i}b{rt}", f"ds_read_b128 {v(self.BF(b),4)}, v{self.OB} offset:{QO+(i%6*7+rt)*1024}")
    def first_reads(self, i):
        self.a_read(i, 0); self.a_read(i, 1); self.b_read(7 * i); self.a_read(i, 2); self.a_read(i, 3)
        for n in range(1, 6): self.b_read(7 * i + n)
    def unpack_l(self, dst, src):
        return [f"v_perm_b32 v{dst+x}, v{src+x//2}, v{src+x//2}, s{sSHI if x & 1 else sSLO}" for x in range(4)]
    def pack_l(self, dst, src):
        return [f"v_cvt_pk_bf16_f32 v{dst}, v{src}, v{src+1}", f"v_cvt_pk_bf16_f32 v{dst+1}, v{src+2}, v{src+3}"]
    def store_l(self, ps, rt):
        o = (ps * 7 + rt) * 1024
        return [f"s_mov_b32 s{sT3}, {o - o % 4096}",
                lambda: self.g.vm("st", f"buffer_store_dwordx4 {v(self.PK(ps*14+rt*2),4)}, v{self.OB}, s[{sPd}:{sPd+3}], s{sT3} offen offset:{o%4096} {OPT['st']}")]
    def step(self, key, i, last, tick, store=False, hooks=None):
        g, e = self.g, self.e
        ps, j = divmod(i, 6)
        BAR = OPT["bar"]
        c0 = self.clock
        if store and i >= last - 3 and i < last:
            todo = [(q, rt) for q in range(store[0], ps) for rt in range(7)]
            k = i - (last - 3)
            mine = todo[k * len(todo) // 3:(k + 1) * len(todo) // 3]
            for n, (q, rt) in enumerate(mine): self.defer(c0 + (6 if k == 0 else 0) + n * (8 if k == 0 else 14) // len(mine), self.store_l(q, rt))
        if j == 5 and (i < last or store):
            for n in range(14):
                ins = self.pack_l(self.PK(ps * 14 + n), self.AC(n))
                if i < last: ins += self.unpack_l(self.AC(n), self.PK((ps + 1) * 14 + n))
                if store and n % 2 == 1 and i == last: ins += self.store_l(ps, n // 2)
                self.defer(c0 + n + 4, ins)
        for n in range(14):
            rt, k = divmod(n, 2)
            if n == BAR and i < last: tick(i)
            if hooks and n in hooks: hooks[n]()
            tags = ([f"o{i}b{rt}"] if k == 0 else []) + ([f"o{i}a{k}"] if rt == 0 else [])
            if tags: g.wait("lg", f"{key}{i}m{n}", tags)
            mfma(e, self.AC(n), self.AF(i, k), self.BF(7 * i + rt), self.AC(n))
            if k == 1 and 7 * i + rt + 6 < 7 * (last + 1): self.b_read(7 * i + rt + 6)
            if k == 0 and i < last and BAR < n <= BAR + 8: self.a_read(i + 1, (n - BAR - 1) // 2)
            while self.pq and self.pq[0][0] <= self.clock: self.pq.pop(0)[1]()
            self.clock += 1
            self.run_dq(7)
    def finish(self):
        self.flush_pq(); self.clock += 100; self.run_dq(1000)

def qp_phase(p, needs):
    g = Gen(p, needs); e = g.e
    AC = QAC
    def AF(par, hh, k): return 168 + par * 24 + (hh * 3 + k) * 4
    def BF(n): return 216 + 4 * (n % 4)
    RA = [[232, 233, 234], [235, 236, 237]]; XA = [238, 239]; PW = [243, 244, 245]; PX = 246
    JUNK = 247
    STG = [KVB, T1R]
    NB1, NB2 = OPT["nb1"], OPT["nb2"]
    def dma_w(i, hh):
        out = []
        for ii in range(3):
            def f(ii=ii):
                if ii == 0:
                    e(f"s_add_u32 m0, s{sLW}, {STG[i&1]+hh*2*TILE}")
                    e(f"s_add_u32 s{sT1}, s{sWB2 if hh else sWB}, {i*32*12288}")
                o = f"offset:{ii*1024} " if ii else ""
                g.vm(f"W{i}.{hh}", f"buffer_load_dwordx4 v{PW[ii]}, s[{sWd}:{sWd+3}], s{sT1} offen {o}{OPT['w']} lds")
            out.append(f)
        return out
    def dma_x(pp):
        out = []
        for q in range(2):
            def f(q=q):
                if q == 0: e(f"s_add_u32 m0, s{sXM}, {QO+(pp%3)*14336}")
                else:
                    e(f"s_add_u32 s{sT2}, s{sXM}, {QO+(pp%3)*14336+8192}")
                    e(f"s_cmp_ge_u32 s{sWAVE}, 6")
                    e(f"s_cselect_b32 m0, s{sXF}, s{sT2}")
                e(f"s_add_u32 s{sT2}, s{sXB}, {pp*128+q*81920}")
                g.vm(f"X{pp}", f"buffer_load_dwordx4 v{PX}, s[{sXd}:{sXd+3}], s{sT2} offen {OPT['x']} lds")
            out.append(f)
        return out
    def a_read(i, hh, n):
        k, hf = divmod(n, 2)
        g.ld(f"{i}a{hh}{k}", f"ds_read_b64_tr_b16 {v(AF(i&1,hh,k)+2*hf,2)}, v{RA[i&1][k]} offset:{hh*2*TILE+hf*1536}")
    def b_read(i, rt):
        g.ld(f"{i}b{rt}", f"ds_read_b128 {v(BF(7*i+rt),4)}, v{XA[i&1]} offset:{((i>>1)%3)*14336+rt*2048}")
    lane_regs(e)
    e(f"""
v_lshrrev_b32 v13, 1, v8
v_and_b32 v13, 3, v13
v_lshlrev_b32 v13, 1, v13
v_xor_b32 v13, v9, v13
v_lshlrev_b32 v13, 4, v13
v_mul_u32_u24 v14, 1280, v8
v_add_u32 v{PX}, v13, v14
v_mul_u32_u24 v14, 384, v8
v_add_u32 v{PKV_}, v13, v14
s_mul_i32 s{sXB}, s{sWAVE}, 10240
s_lshl_b32 s{sXM}, s{sWAVE}, 10
s_sub_u32 s{sXF}, s{sXM}, 6144
s_add_u32 s{sXF}, s{sXF}, {SPARE}
""")
    for f in dma_x(0): f()
    e(f"""
s_and_b32 s{sT1}, s{sW4}, 1
s_lshl_b32 s{sT1}, s{sT1}, 2
v_xor_b32 v16, s{sT1}, v9
s_mul_i32 s{sWB}, s{sW4}, {8*12288}
s_mul_i32 s{sT1}, s{sTEAM}, 384
s_add_u32 s{sWB2}, s{sWB}, 1152
s_add_u32 s{sWB}, s{sWB}, s{sT1}
s_sub_u32 s{sWB2}, s{sWB2}, s{sT1}
s_mul_i32 s{sT1}, s{sTEAM}, {TILE}
s_add_u32 s{sLW}, s{sLW}, s{sT1}
""")
    for q in range(3):
        e(f"""
v_add_u32 v10, {8*q}, v8
v_mul_u32_u24 v11, 43, v10
v_lshrrev_b32 v11, 7, v11
v_mul_u32_u24 v12, 3, v11
v_sub_u32 v12, v10, v12
v_lshrrev_b32 v13, 1, v11
v_and_b32 v14, 1, v13
v_xor_b32 v14, v16, v14
v_lshlrev_b32 v14, 4, v14
v_lshl_add_u32 v14, v12, 7, v14
v_mul_u32_u24 v15, 12288, v11
v_add_u32 v14, v14, v15
v_subrev_u32 v{PW[q]}, {q*1024}, v14
""")
    for f in dma_w(0, 0) + dma_w(0, 1): f()
    if OPT["touch"]:
        nsh = 16 if OPT["map"] == 0 else 8
        rows = 640 // nsh // 8
        e(f"""
s_and_b32 s{sT1}, s{sB}, {nsh-1}
s_lshl_b32 s{sT1}, s{sT1}, 3
s_add_u32 s{sT1}, s{sT1}, s{sWAVE}
s_mul_i32 s{sT1}, s{sT1}, {rows*12288}
v_mul_u32_u24 v10, 43, v2
v_lshrrev_b32 v10, 9, v10
v_mul_u32_u24 v11, 12, v10
v_sub_u32 v11, v2, v11
v_mul_u32_u24 v10, 12288, v10
v_lshl_add_u32 v10, v11, 7, v10
""")
        for r in range(rows // 5):
            g.vm("pf", f"buffer_load_dword v{JUNK}, v10, s[{sWd}:{sWd+3}], s{sT1} offen {OPT['tq']}")
            e(f"s_add_u32 s{sT1}, s{sT1}, {5*12288}")
    if OPT["touch"] and OPT["xt"]:
        e(f"""
s_and_b32 s{sT1}, s{sQUAD}, 1
s_mul_i32 s{sT1}, s{sT1}, 71680
s_mul_i32 s{sT2}, s{sWAVE}, {70*128}
s_add_u32 s{sT1}, s{sT1}, s{sT2}
v_lshlrev_b32 v10, 7, v2
""")
        g.vm("pf", f"buffer_load_dword v{JUNK}, v10, s[{sXd}:{sXd+3}], s{sT1} offen")
        g.vm("pf", f"buffer_load_dword v{JUNK}, v10, s[{sXd}:{sXd+3}], s{sT1} offen offset:768")
    e(f"""
v_lshrrev_b32 v8, 1, v3
v_and_b32 v8, 3, v8
v_lshlrev_b32 v8, 1, v8
v_xor_b32 v8, v4, v8
v_lshlrev_b32 v8, 4, v8
v_lshl_add_u32 v9, v3, 7, v8
v_add_u32 v{XA[0]}, {QO}, v9
v_xor_b32 v{XA[1]}, 64, v{XA[0]}
v_lshl_add_u32 v8, v4, 3, v6
v_mul_u32_u24 v9, 384, v8
v_lshrrev_b32 v8, 1, v6
v_and_b32 v11, 1, v4
v_lshl_add_u32 v8, v11, 2, v8
v_xor_b32 v8, v7, v8
v_lshl_add_u32 v9, v8, 4, v9
v_lshlrev_b32 v12, 3, v11
v_lshl_add_u32 v12, v2, 4, v12
v_and_b32 v11, 1, v7
v_lshl_add_u32 v11, v11, 3, v9
s_mov_b32 s{sC}, {hex(f2u(192 ** -0.5 * math.log2(math.e)))}
s_mov_b32 s{sC+1}, s{sC}
""")
    for i in range(3):
        e(f"""
s_mul_i32 s{sT1}, s{sW4}, 3
s_add_u32 s{sT1}, s{sT1}, {i}
s_lshr_b32 s{sT2}, s{sT1}, 2
s_lshl_b32 s{sRY+i}, s{sT2}, 7
s_and_b32 s{sT3}, s{sT1}, 3
s_xor_b32 s{sT3}, s{sT3}, s{sW4}
s_lshl_b32 s{sRX+i}, s{sT3}, 5
s_and_b32 s{sT3}, s{sT1}, 2
s_lshl_b32 s{sT3}, s{sT3}, 5
s_and_b32 s{sT2}, s{sT1}, 1
s_lshl_b32 s{sT2}, s{sT2}, 3
v_xor_b32 v{QW[i]}, s{sT2}, v12
s_or_b32 s{sT3}, s{sT3}, s{sT2}
v_xor_b32 v13, s{sT3}, v11
s_lshr_b32 s{sT1}, s{sT1}, 1
s_mul_i32 s{sT1}, s{sT1}, 7168
v_add_u32 v{QW[i]}, s{sT1}, v{QW[i]}
s_mul_i32 s{sT1}, s{sTEAM}, {TILE}
s_add_u32 s{sT1}, s{sT1}, s{sRY+i}
v_add_u32 v13, s{sT1}, v13
v_add_u32 v{RA[1][i]}, {T1R}, v13
v_add_u32 v{RA[0][i]}, {KVB}, v13
""")
    g.wait("vm", "in", ["W0.0", "W0.1", "X0"])
    e("s_barrier")
    stamp(e, 14)
    e(f"""
s_cmp_lg_u32 s{sWAVE}, 0
s_cbranch_scc1 k1_nocnt
s_mov_b32 s4, s26
s_mov_b32 s5, s27
s_mov_b32 s6, 256
s_mov_b32 s7, 0x20000
s_lshl_b32 s{sT1}, s{sGRP}, 2
v_mov_b32 v252, 0
v_mov_b32 v253, 1
s_mov_b64 exec, 1
buffer_atomic_add v253, v252, s[4:7], s{sT1} offen sc1
s_mov_b64 exec, -1
k1_nocnt:
""")
    a_read(0, 0, 0); a_read(0, 0, 1); b_read(0, 0); b_read(0, 1)
    for n in range(2, 6): a_read(0, 0, n)
    for n in range(6): a_read(0, 1, n)
    for rt in range(2, 4): b_read(0, rt)
    for f in dma_w(1, 0) + dma_w(1, 1) + dma_x(1): f()
    ORD = [(rt, 0, k) for rt in (0, 1) for k in range(3)] + [(rt, 1, k) for rt in (0, 1) for k in range(3)]
    ORD += [(rt, hh, k) for rt in range(2, 7) for hh in range(2) for k in range(3)]
    lastb = {rt: max(n for n, x in enumerate(ORD) if x[0] == rt) for rt in range(7)}
    A0 = [NB1 + 2 + 3 * x for x in range(6)]
    A1 = [NB2 + 1 + 2 * x for x in range(6)]
    def qcvt(n):
        rt, hh, k = ORD[n]
        a = AC(hh, rt, k)
        e(f"v_pk_mul_f32 {v(a,2)}, {v(a,2)}, s[{sC}:{sC+1}]")
        e(f"v_pk_mul_f32 {v(a+2,2)}, {v(a+2,2)}, s[{sC}:{sC+1}]")
        e(f"v_cvt_pk_bf16_f32 v{a}, v{a}, v{a+1}")
        e(f"v_cvt_pk_bf16_f32 v{a+1}, v{a+2}, v{a+3}")
    lastd = [0]
    for i in range(20):
        seen = set()
        for n, (rt, hh, k) in enumerate(ORD):
            if n == NB1 and i < 19:
                g.drain(9); lastd[0] = n - 9
                g.wait("lg", f"r1{i}", [], drain_tags=[f"{i}a1{x}" for x in range(3)])
                g.wait("vm", f"s{i}", [f"W{i+1}.0"] + ([f"X{(i+1)//2}"] if i % 2 == 1 else []))
                e("s_barrier")
                if i + 2 < 20: g.pend += (dma_w(i + 2, 0) if i == 0 else []) + dma_w(i + 2, 1)
                if i % 2 == 0 and i // 2 + 2 < 10: g.pend += dma_x(i // 2 + 2)
            if n == NB2 and i < 19:
                g.drain(9); lastd[0] = n - 9
                g.wait("lg", f"r2{i}", [], drain_tags=[f"{i+1}a0{x}" for x in range(3)])
                g.wait("vm", f"t{i}", [f"W{i+1}.1"])
                e("s_barrier")
                if i + 3 < 20: g.pend += dma_w(i + 3, 0)
            if OPT["pwo"] and n == 20 and i == OPT["pwo"]:
                nsh = 16 if OPT["map"] == 0 else 8
                per = 245760 * OPT["pwh"] // (8 * nsh)
                e(f"""
s_and_b32 s{sT3}, s{sB}, {nsh-1}
s_lshl_b32 s{sT3}, s{sT3}, 3
s_add_u32 s{sT3}, s{sT3}, s{sWAVE}
s_mul_i32 s{sT3}, s{sT3}, {per}
s_add_u32 s{sT3}, s{sT3}, {245760 * (4 - OPT["pwh"])}
v_mbcnt_lo_u32_b32 v251, -1, 0
v_mbcnt_hi_u32_b32 v251, -1, v251
v_min_u32 v251, {min(59, per // 128 - 1)}, v251
v_lshlrev_b32 v251, 7, v251
""")
                for r in range(max(1, per // 7680)):
                    g.vm("pf", f"buffer_load_dword v{JUNK}, v251, s[{sOd}:{sOd+3}], s{sT3} offen {OPT['pwf']}")
                    e(f"s_add_u32 s{sT3}, s{sT3}, 7680")
            if n == NB2 + 1 and i == 18:
                e(f"s_cmp_eq_u32 s{sTEAM}, 0")
                e("s_cbranch_scc1 qp_nokv")
                e(f"s_mul_i32 s{sKSO2}, s{sW4}, 3072")
                e(f"s_lshl_b32 s{sT3}, s{sW4}, 10")
                for u in range(N0 - 96):
                    a, bb = divmod(u, 3)
                    e(f"s_add_u32 m0, s{sT3}, {KVB + (u % NS) * 4096 - bb * 128}")
                    e(f"s_add_u32 s{sT1}, s{sKSO2}, {kv_tile(a) * TILE}")
                    srd = sKd if kv_kind(a) == "K" else sVd
                    e(f"buffer_load_dwordx4 v{PKV_}, s[{srd}:{srd+3}], s{sT1} offen offset:{bb*128} {OPT['kv']} lds")
                g.label("qp_nokv")
            tags = [t for t in (f"{i}b{rt}", f"{i}a{hh}{k}") if t not in seen]
            seen.update(tags)
            if tags: g.wait("lg", f"{i}m{n}", tags)
            mfma(e, AC(hh, rt, k), AF(i & 1, hh, k), BF(7 * i + rt), "0" if i == 0 else AC(hh, rt, k))
            if n == lastb[rt]:
                if rt + 4 < 7: b_read(i, rt + 4)
                elif i < 19: b_read(i + 1, rt - 3)
            if i < 19 and n in A0: a_read(i + 1, 0, A0.index(n))
            if i < 19 and n in A1: a_read(i + 1, 1, A1.index(n))
            if g.pend and (n - lastd[0]) % 42 >= (OPT["qd"] if len(g.pend) <= 3 else OPT["qd"] - 2):
                g.drain(1); lastd[0] = n
            if i == 19 and n >= 4: qcvt(n - 4)
    for n in range(38, 42): qcvt(n)
    stamp(e, 15)
    e("s_barrier")
    return g.rec

def t0_path(p, needs, nrt, tag):
    g = Gen(p, needs); e = g.e
    def ACC(rt, t): return rt * 48 + t * 4
    def Q(rt, j): return 96 + rt * 24 + j * 4
    def S(par, rt, kt=0): return 144 + par * 16 + rt * 8 + kt * 4
    def P(par, rt): return 176 + par * 8 + rt * 4
    def NEGM(rt): return 192 + rt * 4
    def LSUM(rt): return 200 + rt * 4
    def STG(rt, j): return 144 + (j * 2 + rt) * 4 if j < 5 else 192 + rt * 4
    ONES = 208
    FR0 = 212; NFR = 8
    def FR(a, f): return FR0 + ((a * 12 + f) % NFR) * 4
    KA = [244, 245]; VA = [246, 247, 248, 249]; QOA = 250
    TC = 251; T = [252, 253, 254, 255]
    HOLD = [48 + 4 * i for i in range(12)] + [156, 172, 180, 188, 196, 204]
    def rd_l(a, f):
        base = ((3 * a + f // 4) % NS) * 4096; tg = f"A{a%32}f{f}"
        if kv_kind(a) == "K":
            j, kt = divmod(f, 2)
            return [lambda: g.ld(tg, f"ds_read_b128 {v(FR(a,f),4)}, v{KA[j&1]} offset:{base+kt*2048}")]
        return [lambda hf=hf: g.ld(tg, f"ds_read_b64_tr_b16 {v(FR(a,f)+2*hf,2)}, v{VA[f&3]} offset:{base+hf*2048}") for hf in range(2)]
    def run(x):
        if callable(x): x()
        else: e(x)
    def cost(x): return 2 if isinstance(x, str) and x.startswith(("v_exp", "v_rcp")) else 1
    def step(key, a, mfs, valu=(), last=False, extra=None, v0=0):
        valu = list(valu)
        ngap = sum(len(mfs(f, 0)) for f in range(v0, 12))
        tot = sum(cost(x) for x in valu); done = 0; gap = 0
        for f in range(12):
            pos = a * 12 + f
            if extra and f in extra: extra[f]()
            if pos in XB_: e("s_barrier")
            reads = rd_l(a, f + LEAD) if f + LEAD < 12 else ([] if last else rd_l(a + 1, f + LEAD - 12))
            if not OPT["w2"]: g.wait("lg", f"{key}{f}", [f"A{a}f{f}"])
            elif f % 2 == 0: g.wait("lg", f"{key}{f}", [f"A{a}f{f}", f"A{a}f{f+1}"])
            ms = mfs(f, FR(a, f))
            for i, m in enumerate(ms):
                m()
                if reads: reads.pop(0)()
                if i == len(ms) - 1:
                    while reads: reads.pop(0)()
                if f >= v0:
                    gap += 1
                    while valu and done + cost(valu[0]) / 2 <= tot * gap / ngap:
                        done += cost(valu[0]); run(valu.pop(0))
        for x in valu: run(x)
    def mf_qk(par, zero):
        def m(f, fr):
            j, kt = divmod(f, 2)
            return [lambda rt=rt: mfma(e, S(par, rt, kt), fr, Q(rt, j), ("0" if zero else NEGM(rt)) if j == 0 else S(par, rt, kt)) for rt in range(nrt)]
        return m
    def onorm_l(j):
        out = []
        for rt in range(nrt):
            a = ACC(rt, 2 * j)
            out += [f"v_pk_mul_f32 {v(a+i,2)}, {v(a+i,2)}, {v(T[2*rt],2)}" for i in range(0, 8, 2)]
            out += [f"v_cvt_pk_bf16_f32 v{STG(rt,j)+i}, v{a+2*i}, v{a+2*i+1}" for i in range(4)]
        return out
    def mf_pv(par, first, last=False):
        def m(f, fr):
            out = []
            if f == (0 if last else 5):
                out += [lambda rt=rt: mfma(e, LSUM(rt), ONES, P(par, rt), "0" if first else LSUM(rt)) for rt in range(nrt)]
            return out + [lambda rt=rt: mfma(e, ACC(rt, f), fr, P(par, rt), "0" if first else ACC(rt, f)) for rt in range(nrt)]
        return m
    def sm(par, lo=0, hi=None):
        grp = [(rt, i) for rt in range(nrt) for i in range(4)][lo:hi]
        seq = []
        for n, (rt, i) in enumerate(grp):
            a, b = T[(2 * n) % 4], T[(2 * n + 1) % 4]
            r = S(par, rt) + 2 * i
            seq += [f"v_exp_f32 v{a}, v{r}", f"v_exp_f32 v{b}, v{r+1}"]
            if n > 0: seq.append(prev)
            prev = f"v_cvt_pk_bf16_f32 v{P(par,rt)+i}, v{a}, v{b}"
        return seq + [prev] if grp else []
    def chk_l(par):
        p0 = P(par, 0)
        out = [f"v_or3_b32 v{TC}, v{p0}, v{p0+1}, v{p0+2}"]
        if nrt == 2:
            out += [f"v_or3_b32 v{TC}, v{TC}, v{p0+3}, v{p0+4}", f"v_or3_b32 v{TC}, v{TC}, v{p0+5}, v{p0+6}"]
        out += [f"v_bitop3_b32 v{TC}, v{TC}, v{p0+4*nrt-1}, s{sBIT} bitop3:0xa8", f"v_cmp_ne_u32 vcc, 0, v{TC}"]
        return out
    def chk_branch(par, key):
        e(f"s_cbranch_vccz t0_ok{key}_{tag}")
        if not OPT["norare"]: e(f"s_call_b64 s[{sRET}:{sRET+1}], t0_rare{par}_{tag}")
        g.label(f"t0_ok{key}_{tag}")
    def rowmax(par, rt, t, t2):
        r = S(par, rt)
        e(f"""
v_max3_f32 v{t}, v{r}, v{r+1}, v{r+2}
v_max3_f32 v{t}, v{t}, v{r+3}, v{r+4}
v_max3_f32 v{t}, v{t}, v{r+5}, v{r+6}
v_max_f32 v{t}, v{t}, v{r+7}
v_mov_b32 v{t2}, v{t}
v_permlane32_swap_b32 v{t2}, v{t}
v_max_f32 v{t}, v{t}, v{t2}
v_mov_b32 v{t2}, v{t}
v_permlane16_swap_b32 v{t2}, v{t}
v_max_f32 v{t}, v{t}, v{t2}
v_add_f32 v{t}, {hex(f2u(7.0))}, v{t}
""")
    for rt in range(7):
        for k in range(3): e(f"ds_write_b64 v{QW[k]}, {v(QAC(0,rt,k),2)} offset:{QO+rt*1024}")
    for k in range(3):
        e(f"""
s_mul_i32 s{sT1}, s{sW4}, 3
s_add_u32 s{sT1}, s{sT1}, {k}
s_lshr_b32 s{sT1}, s{sT1}, 1
s_cmp_lt_u32 s{sT1}, 3
s_cselect_b32 s{sT3}, {B2 - (T1R + 6144 - 18432)}, 0
s_add_u32 s{sT3}, s{sT3}, {T1R + 6144 - 18432}
s_lshl_b32 s{sT2}, s{sT1}, 10
s_sub_u32 s{sT2}, s{sT3}, s{sT2}
v_add_u32 v{240+k}, s{sT2}, v{QW[k]}
s_mul_i32 s{sT2}, s{sT1}, 6144
s_sub_u32 s{sT2}, {T1R}, s{sT2}
v_add_u32 v{243+k}, s{sT2}, v{QW[k]}
""")
    for rt in range(7):
        for k in range(3): e(f"ds_write_b64 v{(240 if rt < 6 else 243)+k}, {v(QAC(1,rt,k),2)} offset:{rt*1024 if rt < 6 else 0}")
    e("s_waitcnt lgkmcnt(0)")
    lane_regs(e)
    e(f"""
s_lshl_b32 s{sT1}, s{sWAVE}, 11
s_add_u32 s{sT1}, s{sT1}, {QO}
v_lshl_add_u32 v{QOA}, v2, 4, s{sT1}
v_lshrrev_b32 v8, 1, v3
v_and_b32 v8, 3, v8
v_lshlrev_b32 v8, 1, v8
v_xor_b32 v8, v4, v8
v_lshlrev_b32 v8, 4, v8
v_lshl_add_u32 v8, v3, 7, v8
v_add_u32 v{KA[0]}, {KVB}, v8
v_xor_b32 v{KA[1]}, 64, v{KA[0]}
v_lshrrev_b32 v8, 1, v5
v_and_b32 v8, 3, v8
v_lshlrev_b32 v8, 5, v8
v_lshl_add_u32 v8, v5, 7, v8
v_lshl_add_u32 v8, v7, 3, v8
v_add_u32 v{VA[0]}, {KVB}, v8
v_xor_b32 v{VA[1]}, 32, v{VA[0]}
v_xor_b32 v{VA[2]}, 64, v{VA[0]}
v_xor_b32 v{VA[3]}, 96, v{VA[0]}
s_mov_b32 s{sBIT}, 0x40004000
s_mov_b32 s{sSLOT}, 1
""")
    for i in range(4): e(f"v_mov_b32 v{ONES+i}, 0x3f803f80")
    H = 4 if (nrt == 2 and OPT["psplit"]) else (2 if OPT["psplit"] else 0)
    for unit in range(2):
        if unit >= 1: g.mute += 1
        g.label(f"t0_unit_{tag}")
        e("s_barrier")
        if not g.mute: stamp_slot(e)
        e(f"s_cmp_gt_u32 s{sSLOT}, 3")
        e(f"s_cbranch_scc1 t0_q3_{tag}")
        for j in range(6):
            for rt in range(nrt): e(f"ds_read_b128 {v(Q(rt,j),4)}, v{QOA} offset:{(j*7+rt)*1024}")
        e(f"s_cmp_lg_u32 s{sSLOT}, 1")
        e(f"s_cbranch_scc1 t0_w_{tag}")
        if nrt == 1:
            for j in range(6): e(f"ds_read_b128 {v(Q(1,j),4)}, v{QOA} offset:{T1R-6144+j*1024}")
            for n in range(18): e(f"ds_read_b128 {v(HOLD[n],4)}, v{QOA} offset:{T1R+n*1024}")
        e(f"s_branch t0_noo_{tag}")
        g.label(f"t0_q3_{tag}")
        e(f"s_cmp_eq_u32 s{sSLOT}, 5")
        e(f"s_cbranch_scc1 t0_w_{tag}")
        if nrt == 1:
            for i in range(24): e(f"v_mov_b32 v{Q(0,0)+i}, v{Q(1,0)+i}")
        else:
            e(f"v_add_u32 v{TC}, {B2}, v{QOA}")
            for j in range(6):
                for rt in range(nrt):
                    if j < 3: e(f"ds_read_b128 {v(Q(rt,j),4)}, v{TC} offset:{(j*6+rt)*1024}")
                    else: e(f"ds_read_b128 {v(Q(rt,j),4)}, v{QOA} offset:{(j*7+rt)*1024}")
        g.label(f"t0_w_{tag}")
        e("s_waitcnt lgkmcnt(0)")
        for j in range(6):
            for rt in range(nrt): e(f"ds_write_b128 v{QOA}, {v(STG(rt,j),4)} offset:{(j*7+rt)*1024}")
        e(f"s_cmp_eq_u32 s{sSLOT}, 5")
        e(f"s_cbranch_scc1 t0_exit_{tag}")
        g.label(f"t0_noo_{tag}")
        for f in range(LEAD):
            for x in rd_l(0, f): x()
        step("a0_", 0, mf_qk(0, True), extra={1: lambda: e("s_barrier")})
        for rt in range(nrt):
            rowmax(0, rt, T[0], T[1])
            for i in range(4): e(f"v_sub_f32 v{NEGM(rt)+i}, 0, v{T[0]}")
            for i in range(8): e(f"v_sub_f32 v{S(0,rt)+i}, v{S(0,rt)+i}, v{T[0]}")
        for t in range(15):
            step(f"q{t}_", 2 * t + 1, mf_qk((t + 1) & 1, False), valu=sm(t & 1, H if t else 0) + chk_l(t & 1))
            chk_branch(t & 1, f"q{t}")
            va = sm((t + 1) & 1, 0, H)
            if t == 14: va = sm(1) + chk_l(1)
            step(f"p{t}_", 2 * t + 2, mf_pv(t & 1, t == 0), valu=va, v0=1)
        chk_branch(1, "q15")
        rc = [f"v_rcp_f32 v{T[i]}, v{LSUM(i//2)}" for i in range(2 * nrt)]
        ex = {3: lambda: [e(x) for x in rc]}
        for j in range(4): ex[4 + 2 * j] = lambda j=j: [e(x) for x in onorm_l(j)]
        step("p15_", 31, mf_pv(1, False, True), last=True, extra=ex)
        for x in onorm_l(4) + onorm_l(5): e(x)
        if nrt == 1:
            e(f"s_cmp_lg_u32 s{sSLOT}, 3")
            e("s_cbranch_scc1 t0_nohold")
            e(f"v_subrev_u32 v{TC}, 6144, v{QOA}")
            for n in range(18): e(f"ds_write_b128 v{TC}, {v(HOLD[n],4)} offset:{((3+n//6)*7+n%6)*1024}")
            e("s_waitcnt lgkmcnt(0)")
            g.label("t0_nohold")
        e(f"""
s_add_u32 s{sSLOT}, s{sSLOT}, 1
s_branch t0_unit_{tag}
""")
        if unit >= 1: g.mute -= 1
    g.label(f"t0_exit_{tag}")
    e("s_branch t0_final")
    for par in range(2):
        g.label(f"t0_rare{par}_{tag}")
        for rt in range(nrt):
            t, t2 = TC, T[0]
            rowmax(par, rt, t, t2)
            e(f"v_max_f32 v{t}, 0, v{t}")
            for i in range(4): e(f"v_sub_f32 v{NEGM(rt)+i}, v{NEGM(rt)+i}, v{t}")
            for pp in range(2):
                for i in range(8): e(f"v_sub_f32 v{S(pp,rt)+i}, v{S(pp,rt)+i}, v{t}")
            e(f"v_exp_f32 v{t}, -v{t}")
            for i in range(4): e(f"v_mul_f32 v{LSUM(rt)+i}, v{LSUM(rt)+i}, v{t}")
            for i in range(48): e(f"v_mul_f32 v{ACC(rt,0)+i}, v{ACC(rt,0)+i}, v{t}")
        for x in sm(par): e(x)
        e(f"s_setpc_b64 s[{sRET}:{sRET+1}]")
    return g.rec


def t0_final(p, needs):
    g = Gen(p, needs); e = g.e
    g.label("t0_final")
    op = OpEngine(g, lambda tt: 2 * (tt - 42), 56, 112, 128, [244, 245], 246, [247, 248], KVB, sLW, 2)
    op.fl = OPT["wo5"]
    op.addr_setup()
    e(f"""
s_mul_i32 s{sOB}, s{sW4}, {8*1280}
s_add_u32 s{sOB}, s{sOB}, {3*245760}
s_lshl_b32 s{sLW}, s{sW4}, 11
s_mov_b32 s{sSLO}, 0x01000c0c
s_mov_b32 s{sSHI}, 0x03020c0c
s_lshl_b32 s{sT1}, s{sW4}, 10
s_add_u32 s{sT1}, s{sT1}, {KVB + 32768}
v_add_u32 v249, s{sT1}, v246
""")
    for i in range(18, 22):
        for f in op.dma(i): f()
    def pk_read(ps):
        for rt in range(7): g.ld("pk", f"ds_read_b128 {v(op.PK(ps*14+rt*2),4)}, v249 offset:{rt*4096}")
    e("s_waitcnt lgkmcnt(0)"); g.lq[:] = []
    e("s_barrier")
    pk_read(3)
    e("s_waitcnt lgkmcnt(0)"); g.lq[:] = []
    for k in range(14):
        for x in op.unpack_l(op.AC(k), op.PK(42 + k)): e(x)
    g.wait("vm", "in", ["O18"])
    e("s_barrier")
    op.first_reads(18)
    def tick(i):
        op.flush_pq()
        g.wait("vm", f"t{i}", [f"O{i+1}"])
        e("s_barrier")
        if i + 4 < 30:
            for j, f in enumerate(op.dma(i + 4)): op.pq.append((op.clock + j, f))
    for i in range(18, 30):
        op.step("f", i, 29, tick, store=[3], hooks={5: lambda: pk_read(4)} if i == 20 else None)
    op.finish()
    for i in range(5): e("s_barrier")
    e("s_branch k1_final")
    return g.rec

def t1_path(p, needs):
    g = Gen(p, needs); e = g.e
    def PK(tt): return 2 * tt
    def Q2(k): return PK(56) + 2 * k if k < 14 else 236 + 2 * (k - 14)
    OB = 252
    op = OpEngine(g, PK, 140, 196, 212, [250, 251], OB, [253, 254], T1R, sLW, 0)
    AC, AF, BF = op.AC, op.AF, op.BF
    def dma_sub(u):
        a, bb = divmod(u, 3)
        srd = sKd if kv_kind(a) == "K" else sVd
        def f():
            e(f"s_add_u32 m0, s{sL1}, {KVB + (u % NS) * 4096 - bb * 128}")
            e(f"s_add_u32 s{sT1}, s{sKSO2}, {kv_tile(a) * TILE}")
            off = f"offset:{bb*128} " if bb else ""
            g.vm(f"U{u % 96}", f"buffer_load_dwordx4 v{PKV_}, s[{srd}:{srd+3}], s{sT1} offen {off}{OPT['kv']} lds")
        return f
    st = dict(pub=0, iss=0)
    def kv_tags(k):
        upto = XB_[k + 1] if k < NX - 1 else 384
        n = -(-(upto + LEAD) // 4) if upto < 384 else 96
        tags = [f"U{u}" for u in range(st["pub"], n)]
        st["pub"] = max(st["pub"], n)
        return tags
    def kv_issue(k):
        out = []
        while k in KVT and 4 * (st["iss"] - KL) + 4 <= XB_[k]:
            out.append(dma_sub(st["iss"])); st["iss"] += 1
        return out
    def touch_o(t):
        nsh = 16 if OPT["map"] == 0 else 8
        per = 245760 // (4 * nsh)
        e(f"""
s_and_b32 s{sT1}, s{sB}, {nsh-1}
s_lshl_b32 s{sT1}, s{sT1}, 2
s_add_u32 s{sT1}, s{sT1}, s{sW4}
s_mul_i32 s{sT1}, s{sT1}, {per}
s_sub_u32 s{sT2}, s{sSLOT}, 1
s_mul_i32 s{sT2}, s{sT2}, 245760
s_add_u32 s{sT1}, s{sT1}, s{sT2}
s_mov_b32 m0, {SPARE}
v_lshrrev_b32 v{t}, 4, v{OB}
v_min_u32 v{t}, {per//128-1}, v{t}
v_lshlrev_b32 v{t}, 7, v{t}
""")
        g.vm("pf", f"buffer_load_dword v{t}, s[{sOd}:{sOd+3}], s{sT1} offen {OPT['tf']} lds")
    NEXT = {26: 2, 27: 3, 28: 0, 29: 1}
    def tick(i):
        waits = ([f"O{i+1}"] if i < 29 else []) + kv_tags(i)
        op.flush_pq()
        if waits: g.wait("vm", f"o{i}", waits)
        if OPT["vcap"]: e(f"s_waitcnt vmcnt({OPT['vcap']})")
        e("s_barrier")
        io = []
        if not OPT["burst"]:
            if i == 26: io.append(lambda: e(f"s_add_u32 s{sOB}, s{sOB}, 245760"))
            io += op.dma(NEXT.get(i, i + 4))
        elif i % 2 == 1:
            if i == 27: io.append(lambda: e(f"s_add_u32 s{sOB}, s{sOB}, 245760"))
            io += op.dma(NEXT.get(i - 1, i + 3)) + op.dma(NEXT.get(i, i + 4))
        items = kv_issue(i) + io if OPT["kvfirst"] and i < 28 else io + kv_issue(i)
        if OPT["near"] and i == OPT["near"]: items.append(lambda: touch_o(AF(i + 1, 0) if False else 249))
        for f in items[:OPT["now0"]]: f()
        items = items[OPT["now0"]:]
        for j, f in enumerate(items): op.pq.append((op.clock + OPT["vpost"] + (j * OPT["span"]) // len(items), f))
    def q_write(reg):
        for rt in range(7):
            for k in range(3): e(f"ds_write_b64 v{AC(0)+k}, {v(reg(rt,k),2)} offset:{QO+rt*1024}")
        e("s_waitcnt lgkmcnt(0)")
    def q_addr():
        t = AC(1)
        e(f"v_lshrrev_b32 v{t}, 5, v{OB}")
        e(f"v_and_b32 v{t}, 8, v{t}")
        e(f"v_add_u32 v{t}, v{t}, v{OB}")
        for k in range(3):
            e(f"""
s_mul_i32 s{sT1}, s{sW4}, 3
s_add_u32 s{sT1}, s{sT1}, {k}
s_lshr_b32 s{sT2}, s{sT1}, 1
s_mul_i32 s{sT2}, s{sT2}, 7168
s_and_b32 s{sT1}, s{sT1}, 1
s_lshl_b32 s{sT1}, s{sT1}, 3
v_xor_b32 v{AC(0)+k}, s{sT1}, v{t}
v_add_u32 v{AC(0)+k}, s{sT2}, v{AC(0)+k}
""")

    e(f"""
s_mul_i32 s{sOB}, s{sW4}, {8*1280}
s_lshl_b32 s{sLW}, s{sW4}, 11
s_lshl_b32 s{sL1}, s{sW4}, 10
s_mov_b32 s{sSLOT}, 1
s_mov_b32 s{sRX}, 0x01000c0c
s_mov_b32 s{sRX+1}, 0x03020c0c
""")
    for u in range(N0 - 96):
        g.vq.append(f"U{u}"); g.issued[f"U{u}"] = 1
    st.update(pub=0, iss=N0 - 96)
    g.wait("vm", "i_t0", kv_tags(-1))
    e("s_barrier")
    stamp_slot(e)
    e("s_barrier")
    for rt in range(7):
        for k in range(3): e(f"ds_write_b64 v{QW[k]}, {v(QAC(0,rt,k),2)} offset:{QO+rt*1024}")
    def setup():
        e("s_waitcnt lgkmcnt(0)")
        for k in range(21):
            for x in range(2): e(f"v_mov_b32 v{2*k+x}, v{QAC(1,k//3,k%3)+x}")
        for k in range(21):
            for x in range(2): e(f"v_mov_b32 v{Q2(k)+x}, v{2*k+x}")
    def setup0():
        e("s_waitcnt lgkmcnt(0)")
        op.addr_setup()
        setup()
    task = {0: setup0}
    if OPT["touch"]: task[4] = lambda: touch_o(AF(0, 0))
    for k in range(NX):
        w = kv_tags(k)
        if w: g.wait("vm", f"i{k}", w)
        e("s_barrier")
        for f in kv_issue(k): f()
        if k in task: task[k]()
        if k >= 26:
            for f in op.dma(NEXT[k]): f()
    for s in range(2, 5):
        if s != 2: g.mute += 1
        g.label("t1_slot")
        assert st["iss"] == N0
        st.update(pub=0, iss=N0 - 96)
        e(f"""
s_add_u32 s{sSLOT}, s{sSLOT}, 1
s_add_u32 s{sKSO2}, s{sKSO2}, 196608
s_cmp_eq_u32 s{sSLOT}, 2
s_cselect_b32 s{sSLO}, 0x0c0c0c0c, s{sRX}
s_cselect_b32 s{sSHI}, 0x0c0c0c0c, s{sRX+1}
""")
        g.wait("vm", "t0", kv_tags(-1))
        e("s_barrier")
        if not g.mute: stamp_slot(e)
        if OPT["touch"] and not OPT["near"]: touch_o(AF(0, 0))
        for k in range(14):
            for x in op.unpack_l(AC(k), PK(k)): e(x)
        g.wait("vm", "o_in", ["O0"])
        e("s_barrier")
        stamp_if(e, 12, OPT["ps"])
        op.first_reads(0)
        for i in range(30): op.step("m", i, 29, tick)
        stamp_if(e, 13, OPT["ps"])
        tick(29)
        op.finish()
        e(f"s_cmp_lg_u32 s{sSLOT}, 2")
        e("s_cbranch_scc1 t1_noq2")
        for k in range(3): e(f"v_mov_b32 v{BF(0)+k}, v{AC(0)+k}")
        e(f"v_mov_b32 v{BF(0)+3}, v{AC(1)}")
        q_addr()
        q_write(lambda rt, k: Q2(rt * 3 + k))
        for k in range(3): e(f"v_mov_b32 v{AC(0)+k}, v{BF(0)+k}")
        e(f"v_mov_b32 v{AC(1)}, v{BF(0)+3}")
        g.label("t1_noq2")
        for n in range(14):
            for x in op.pack_l(PK(56 + n), AC(n)): e(x)
        e(f"s_cmp_lg_u32 s{sSLOT}, 4")
        e("s_cbranch_scc1 t1_slot")
        if s != 2: g.mute -= 1
    g.label("t1_last")
    op.fl = OPT["wo5"]
    e(f"""
s_mov_b32 s{sSLOT}, 5
s_lshl_b32 s{sT1}, s{sW4}, 10
s_add_u32 s{sT1}, s{sT1}, {KVB + 32768}
v_add_u32 v249, s{sT1}, v{OB}
""")
    def pk_write(ps):
        for rt in range(7): g.ld("pk", f"ds_write_b128 v249, {v(PK(ps*14+rt*2),4)} offset:{rt*4096}")
    for k in range(14):
        for x in op.unpack_l(AC(k), PK(k)): e(x)
    e("s_waitcnt vmcnt(0)"); g.vq[:] = []
    e("s_barrier")
    stamp_slot(e)
    pk_write(3)
    e("s_waitcnt lgkmcnt(0)"); g.lq[:] = []
    e("s_barrier")
    stamp_if(e, 12, OPT["ps"])
    g.issued.pop("O0")
    op.first_reads(0)
    def tick5(i):
        op.flush_pq()
        if i == 2: g.wait("lg", "pkw", ["pk"])
        g.wait("vm", f"f{i}", [f"O{i+1}"])
        e("s_barrier")
        if i + 4 < 18:
            for j, f in enumerate(op.dma(i + 4)): op.pq.append((op.clock + j, f))
    g.issued.pop("pk")
    for i in range(18):
        op.step("f", i, 17, tick5, store=[0], hooks={5: lambda: pk_write(4)} if i == 1 else None)
    op.finish()
    stamp_if(e, 13, OPT["ps"])
    g.label("t1_exit")
    return g.rec

def final_reduce(p):
    e = p
    sG, sMASK, sQ, sBL = 4, 5, 6, 7
    sD, sA, sOUT = 8, 32, 36
    e.label("k1_final")
    e(f"""
s_waitcnt vmcnt(0)
s_barrier
""")
    stamp(e, 9, real=bool(OPT["rt"]))
    e(f"""
s_and_b32 s{sG}, s2, 7
s_cmp_lt_u32 s{sG}, 4
s_cselect_b32 s{sG}, 0, 16
s_add_u32 s{sG}, s{sG}, s{sB}
v_mbcnt_lo_u32_b32 v2, -1, 0
v_mbcnt_hi_u32_b32 v2, -1, v2
s_cmp_gt_u32 s{sWAVE}, 1
s_cbranch_scc1 k1_fw
s_mov_b32 s{sD}, s26
s_mov_b32 s{sD+1}, s27
s_mov_b32 s{sD+2}, 256
s_mov_b32 s{sD+3}, 0x20000
s_lshl_b32 s{sT1}, s{sG}, 2
v_mov_b32 v3, 0
v_mov_b32 v4, 1
s_cmp_eq_u32 s{sWAVE}, 0
s_cbranch_scc1 k1_w0
s_mov_b64 exec, 1
buffer_atomic_add v4, v3, s[{sD}:{sD+3}], s{sT1} offen offset:128 sc0 sc1
s_waitcnt vmcnt(0)
v_readfirstlane_b32 s{sT2}, v4
s_and_b32 s{sT3}, s{sT2}, 0xff
s_lshr_b32 s{sT2}, s{sT2}, 8
s_cmp_eq_u32 s{sT3}, 7
s_cselect_b32 s{sT2}, s{sT2}, 0
v_mov_b32 v4, s{sT2}
ds_write_b32 v3, v4 offset:4
s_waitcnt lgkmcnt(0)
s_mov_b64 exec, -1
s_branch k1_fw
k1_w0:
s_lshl_b32 s{sMASK}, 1, s{sQUAD}
s_lshl_b32 s{sT2}, s{sG}, 10
s_add_u32 s{sT2}, s{sT2}, {FLAG0}
s_add_u32 s{sA}, s28, s{sT2}
s_addc_u32 s{sA+1}, s29, 0
s_mov_b32 s{sA+2}, 1024
s_mov_b32 s{sA+3}, 0x20000
s_lshl_b32 s{sT2}, s{sQUAD}, 7
s_mov_b64 exec, 1
buffer_store_dword v4, v3, s[{sA}:{sA+3}], s{sT2} offen sc1
s_mov_b64 exec, 0xff
v_lshlrev_b32 v5, 7, v2
s_mov_b32 s{sCTR}, 0
k1_poll:
buffer_load_dword v6, v3, s[{sD}:{sD+3}], s{sT1} offen sc1
buffer_load_dword v4, v5, s[{sA}:{sA+3}], 0 offen sc1
s_waitcnt vmcnt(1)
v_cmp_ne_u32 vcc, 8, v6
s_cbranch_vccnz k1_again
k1_poll2:
s_waitcnt vmcnt(0)
v_cmp_ne_u32 vcc, 1, v4
s_cbranch_vccz k1_go
s_add_u32 s{sCTR}, s{sCTR}, 1
s_cmp_lt_u32 s{sCTR}, {OPT['spin']}
s_cbranch_scc0 k1_late
buffer_load_dword v4, v5, s[{sA}:{sA+3}], 0 offen sc1
s_branch k1_poll2
k1_again:
s_waitcnt vmcnt(0)
s_add_u32 s{sCTR}, s{sCTR}, 1
s_cmp_lt_u32 s{sCTR}, {OPT['spin']}
s_cbranch_scc1 k1_poll
k1_late:
s_mov_b64 exec, 1
s_lshl_b32 s{sT2}, s{sMASK}, 8
v_mov_b32 v4, s{sT2}
buffer_atomic_or v4, v3, s[{sD}:{sD+3}], s{sT1} offen offset:128 sc0 sc1
s_waitcnt vmcnt(0)
v_readfirstlane_b32 s{sT2}, v4
s_and_b32 s{sT2}, s{sT2}, 0xff
s_cmp_eq_u32 s{sT2}, 8
s_cselect_b32 s{sMASK}, s{sMASK}, 0
k1_go:
s_mov_b64 exec, 1
v_mov_b32 v4, s{sMASK}
ds_write_b32 v3, v4
s_waitcnt lgkmcnt(0)
s_mov_b64 exec, -1
k1_fw:
s_mul_i32 s{sT1}, s{sG}, {8*PART_CU}
s_add_u32 s{sT1}, s{sT1}, {PART0}
s_add_u32 s{sA}, s28, s{sT1}
s_addc_u32 s{sA+1}, s29, 0
s_mov_b32 s{sA+2}, {8*PART_CU}
s_mov_b32 s{sA+3}, 0x20000
s_mul_i32 s{sT1}, s{sB}, {112*2560}
s_lshr_b32 s{sT2}, s{sG}, 4
s_mul_i32 s{sT2}, s{sT2}, 1280
s_add_u32 s{sT1}, s{sT1}, s{sT2}
s_add_u32 s{sOUT}, s24, s{sT1}
s_addc_u32 s{sOUT+1}, s25, 0
s_sub_u32 s{sOUT+2}, {112*2560}, s{sT2}
s_mov_b32 s{sOUT+3}, 0x20000
v_lshlrev_b32 v3, 4, v2
v_and_b32 v4, 15, v2
v_lshrrev_b32 v5, 4, v2
v_mul_u32_u24 v6, 272, v4
v_lshl_add_u32 v6, v5, 3, v6
s_mul_i32 s{sT2}, s{sTEAM}, {3*4352}
s_add_u32 s{sT2}, s{sT2}, 2048
s_lshl_b32 s{sT1}, s{sW4}, 6
s_add_u32 s{sT1}, s{sT1}, s{sT2}
v_add_u32 v6, s{sT1}, v6
s_mul_i32 s{sT1}, s{sW4}, {4*272}
s_add_u32 s{sT1}, s{sT1}, s{sT2}
v_mul_u32_u24 v7, 272, v5
v_lshl_add_u32 v7, v4, 4, v7
v_add_u32 v7, s{sT1}, v7
v_mul_u32_u24 v5, 2560, v5
v_lshl_add_u32 v4, v4, 4, v5
v_mov_b32 v5, 0
s_barrier
ds_read_b64 v[8:9], v5
s_waitcnt lgkmcnt(0)
v_or_b32 v5, v8, v9
v_readfirstlane_b32 s{sMASK}, v5
""")
    stamp(e, 8, real=bool(OPT["rt"]))
    e(f"""
k1_slice:
s_cmp_eq_u32 s{sMASK}, 0
s_cbranch_scc1 k1_done
s_ff1_i32_b32 s{sQ}, s{sMASK}
s_bitset0_b32 s{sMASK}, s{sQ}
s_lshl_b32 s{sBL}, s{sTEAM}, 3
s_add_u32 s{sBL}, s{sBL}, s{sQ}
""")
    for k in range(3):
        e(f"""
s_add_u32 s{sT1}, s{sBL}, {16*k}
s_mul_i32 s{sT2}, s{sW4}, 35
s_add_u32 s{sT2}, s{sT2}, s{sT1}
s_lshl_b32 s{sT2}, s{sT2}, 10
s_cmp_lt_u32 s{sT1}, 35
s_cselect_b32 s{sT2}, s{sT2}, {8*PART_CU}
""")
        for q in range(8):
            r = 8 + 32 * k + 4 * q
            e(f"buffer_load_dwordx4 {v(r,4)}, v3, s[{sA}:{sA+3}], s{sT2} offen {OPT['rd']}")
            if q < 7: e(f"s_add_u32 s{sT2}, s{sT2}, {PART_CU}")
        e(f"""
s_mul_i32 s{sT2}, s{sT1}, 37
s_lshr_b32 s{sT2}, s{sT2}, 8
s_mul_i32 s{sT3}, s{sT2}, 7
s_sub_u32 s{sT3}, s{sT1}, s{sT3}
s_lshl_b32 s{sT2}, s{sT2}, 8
s_mul_i32 s{sT3}, s{sT3}, {16*2560}
s_add_u32 s{sT2}, s{sT2}, s{sT3}
s_mul_i32 s{sT3}, s{sW4}, {4*2560}
s_add_u32 s{sT2}, s{sT2}, s{sT3}
s_cmp_lt_u32 s{sT1}, 35
s_cselect_b32 s{12+k}, s{sT2}, 0x1000000
""")
    for k in range(3):
        for q in range(8):
            e(f"s_waitcnt vmcnt({23-8*k-q})")
            for i in range(4):
                r = 8 + 32 * k + 4 * q + i
                if q == 0:
                    e(f"v_lshlrev_b32 v{104+2*i}, 16, v{r}")
                    e(f"v_and_b32 v{105+2*i}, 0xffff0000, v{r}")
                else:
                    e(f"v_lshlrev_b32 v112, 16, v{r}")
                    e(f"v_and_b32 v113, 0xffff0000, v{r}")
                    e(f"v_add_f32 v{104+2*i}, v{104+2*i}, v112")
                    e(f"v_add_f32 v{105+2*i}, v{105+2*i}, v113")
        for i in range(4): e(f"v_cvt_pk_bf16_f32 v{116+4*k+i}, v{104+2*i}, v{105+2*i}")
        e(f"ds_write_b64 v6, {v(116+4*k,2)} offset:{k*4352}")
        e(f"ds_write_b64 v6, {v(118+4*k,2)} offset:{k*4352+32}")
    e("s_waitcnt lgkmcnt(0)")
    e("s_barrier")
    for k in range(3): e(f"ds_read_b128 {v(128+4*k,4)}, v7 offset:{k*4352}")
    for k in range(3):
        e(f"s_waitcnt lgkmcnt({2-k})")
        e(f"buffer_store_dwordx4 {v(128+4*k,4)}, v4, s[{sOUT}:{sOUT+3}], s{12+k} offen")
    e("""
s_barrier
s_branch k1_slice
k1_done:
""")
    if OPT["prof"]: e("s_waitcnt vmcnt(0)")
    stamp(e, 10); stamp(e, 11, real=True)
    dump_stamps(e, 28, 64 << 20, 8)

def build(needs):
    p = Prog()
    p(f"""
.globl {NAME}_kernel
.p2align 8
.type {NAME}_kernel,@function
{NAME}_kernel:
s_cmp_ge_u32 s2, 256
s_cbranch_scc1 k1_end
s_load_dwordx16 s[4:19], s[0:1], 0
s_load_dwordx8 s[20:27], s[0:1], 64
s_load_dwordx2 s[28:29], s[0:1], 96
v_lshrrev_b32 v1, 6, v0
v_and_b32 v2, 63, v0
v_readfirstlane_b32 s{sWAVE}, v1
s_and_b32 s{sT1}, s2, 7
s_lshr_b32 s{sT2}, s2, 3
""")
    if OPT["map"] == 0:
        p(f"""
s_and_b32 s{sQUAD}, s{sT1}, 3
s_lshl_b32 s{sQUAD}, s{sQUAD}, 1
s_and_b32 s{sB}, s{sT2}, 1
s_add_u32 s{sQUAD}, s{sQUAD}, s{sB}
s_lshr_b32 s{sB}, s{sT2}, 1
""")
    else:
        p(f"""
s_and_b32 s{sQUAD}, s{sT1}, 1
s_lshl_b32 s{sQUAD}, s{sQUAD}, 2
s_and_b32 s{sB}, s{sT2}, 3
s_add_u32 s{sQUAD}, s{sQUAD}, s{sB}
s_and_b32 s{sB}, s{sT1}, 2
s_lshl_b32 s{sB}, s{sB}, 2
s_lshr_b32 s{sT2}, s{sT2}, 2
s_add_u32 s{sB}, s{sB}, s{sT2}
""")
    p(f"""
s_and_b32 s{sW4}, s{sWAVE}, 3
s_lshr_b32 s{sTEAM}, s{sWAVE}, 2
s_mul_i32 s{sLW}, s{sW4}, 3072
s_mov_b32 s{sKd+2}, {0 if OPT['nokv'] else 786432}
s_mov_b32 s{sKd+3}, 0x20000
s_mov_b32 s{sVd+2}, {0 if OPT['nokv'] else 786432}
s_mov_b32 s{sVd+3}, 0x20000
s_mov_b32 s{sWd+3}, 0x20000
s_mov_b32 s{sOd+2}, {0 if OPT['now'] else 983040}
s_mov_b32 s{sOd+3}, 0x20000
s_mov_b32 s{sXd+2}, {0 if OPT['nox'] else 143360}
s_mov_b32 s{sXd+3}, 0x20000
s_mov_b32 s{sPd+2}, {35840+QO}
s_mov_b32 s{sPd+3}, 0x20000
s_waitcnt lgkmcnt(0)
s_cmp_lt_u32 s{sT1}, 4
s_cselect_b64 s[4:5], s[4:5], s[14:15]
s_cselect_b64 s[6:7], s[6:7], s[16:17]
s_cselect_b64 s[8:9], s[8:9], s[18:19]
s_cselect_b64 s[10:11], s[10:11], s[20:21]
s_cselect_b64 s[12:13], s[12:13], s[22:23]
s_cselect_b32 s{sT3}, 0, 16
s_mul_i32 s{sT2}, s{sB}, 143360
s_add_u32 s{sXd}, s4, s{sT2}
s_addc_u32 s{sXd+1}, s5, 0
s_mul_i32 s{sT2}, s{sQUAD}, 1536
s_add_u32 s{sWd}, s10, s{sT2}
s_addc_u32 s{sWd+1}, s11, 0
s_sub_u32 s{sWd+2}, 7864320, s{sT2}
{'s_mov_b32 s%d, 0' % (sWd+2) if OPT['now'] else ''}
s_lshl_b32 s{sT1}, s{sB}, 3
s_add_u32 s{sT1}, s{sT1}, s{sQUAD}
s_mul_i32 s{sT2}, s{sT1}, 786432
s_add_u32 s{sKd}, s6, s{sT2}
s_addc_u32 s{sKd+1}, s7, 0
s_add_u32 s{sVd}, s8, s{sT2}
s_addc_u32 s{sVd+1}, s9, 0
s_mul_i32 s{sT2}, s{sQUAD}, 983040
s_add_u32 s{sOd}, s12, s{sT2}
s_addc_u32 s{sOd+1}, s13, 0
s_lshl_b32 s{sT3}, s{sT3}, 3
s_add_u32 s{sT1}, s{sT1}, s{sT3}
s_mul_i32 s{sT1}, s{sT1}, {PART_CU}
s_mul_i32 s{sT2}, s{sW4}, 35840
s_add_u32 s{sT1}, s{sT1}, s{sT2}
s_add_u32 s{sT1}, s{sT1}, {PART0-QO}
s_add_u32 s{sPd}, s28, s{sT1}
s_addc_u32 s{sPd+1}, s29, 0
""")
    stamp(p, 0); stamp(p, 1, real=True)
    p(f"""
s_cmp_lg_u32 s{sWAVE}, 0
s_cbranch_scc1 k1_noclr
s_and_b32 s{sT1}, s2, 7
s_cmp_lt_u32 s{sT1}, 4
s_cselect_b32 s{sT1}, 0, 16
s_add_u32 s{sGRP}, s{sT1}, s{sB}
s_lshl_b32 s{sT1}, s{sGRP}, 3
s_add_u32 s{sT1}, s{sT1}, s{sQUAD}
s_lshl_b32 s{sT1}, s{sT1}, 7
s_add_u32 s{sT1}, s{sT1}, {FLAG0}
s_add_u32 s4, s28, s{sT1}
s_addc_u32 s5, s29, 0
s_mov_b32 s6, 128
s_mov_b32 s7, 0x20000
v_mov_b32 v1, 0
s_mov_b64 exec, 1
buffer_store_dword v1, v1, s[4:7], 0 offen sc1
s_mov_b64 exec, -1
k1_noclr:
""")
    rec = {}
    rec["qp"] = qp_phase(p, needs.get("qp", {}))
    p(f"""
s_cmp_ge_u32 s{sWAVE}, 4
s_cbranch_scc1 k1_t1
""")
    if OPT["prio0"]: p(f"s_setprio {OPT['prio0']}")
    p(f"""
s_cmp_eq_u32 s{sWAVE}, 3
s_cbranch_scc1 k1_light
""")
    rec["h"] = t0_path(p, needs.get("h", {}), 2, "h")
    p.label("k1_light")
    rec["l"] = t0_path(p, needs.get("l", {}), 1, "l")
    rec["f"] = t0_final(p, needs.get("f", {}))
    p.label("k1_t1")
    if OPT["not1"]: p("s_endpgm")
    if OPT["prio1"]: p(f"s_setprio {OPT['prio1']}")
    rec["t1"] = t1_path(p, needs.get("t1", {}))
    final_reduce(p)
    p("""
k1_end:
s_endpgm
""")
    return p, rec

def reduce_kernel():
    p = Prog()
    p(f"""
.globl reduce_kernel
.p2align 8
.type reduce_kernel,@function
reduce_kernel:
s_cmp_ge_u32 s2, 1120
s_cbranch_scc1 k2_end
s_load_dwordx2 s[8:9], s[0:1], 80
s_load_dwordx2 s[10:11], s[0:1], 96
v_lshrrev_b32 v1, 6, v0
v_and_b32 v2, 63, v0
v_readfirstlane_b32 s3, v1
s_mul_i32 s5, s2, 1873
s_lshr_b32 s5, s5, 16
s_mul_i32 s6, s5, 35
s_sub_u32 s22, s2, s6
s_mul_i32 s6, s3, 35
s_add_u32 s6, s6, s22
s_mul_i32 s7, s5, {8*PART_CU}
s_add_u32 s7, s7, {PART0}
s_lshl_b32 s20, s6, 10
v_lshlrev_b32 v3, 4, v2
s_mov_b32 s14, {8*PART_CU}
s_mov_b32 s15, 0x20000
s_waitcnt lgkmcnt(0)
s_add_u32 s12, s10, s7
s_addc_u32 s13, s11, 0
""")
    for q in range(8):
        p(f"buffer_load_dwordx4 v[{8+4*q}:{11+4*q}], v3, s[12:15], s20 offen {OPT['rd']}")
        if q < 7: p(f"s_add_u32 s20, s20, {PART_CU}")
    p(f"""
s_and_b32 s23, s5, 15
s_mul_i32 s23, s23, {112*2560}
s_lshr_b32 s24, s5, 4
s_mul_i32 s24, s24, 1280
s_add_u32 s23, s23, s24
s_mov_b32 s16, s8
s_mov_b32 s17, s9
s_mov_b32 s18, {16*112*2560}
s_mov_b32 s19, 0x20000
s_mul_i32 s26, s22, 37
s_lshr_b32 s26, s26, 8
s_mul_i32 s27, s26, 7
s_sub_u32 s27, s22, s27
s_lshl_b32 s30, s26, 8
s_mul_i32 s28, s27, {16*2560}
s_add_u32 s30, s30, s28
s_mul_i32 s28, s3, {4*2560}
s_add_u32 s30, s30, s28
s_add_u32 s32, s30, s23
v_and_b32 v4, 15, v2
v_lshrrev_b32 v5, 4, v2
v_mul_u32_u24 v6, 272, v4
v_lshl_add_u32 v6, v5, 3, v6
s_lshl_b32 s28, s3, 6
v_add_u32 v6, s28, v6
s_mul_i32 s28, s3, {4*272}
v_mul_u32_u24 v7, 272, v5
v_lshl_add_u32 v7, v4, 4, v7
v_add_u32 v7, s28, v7
v_mul_u32_u24 v5, 2560, v5
v_lshl_add_u32 v4, v4, 4, v5
""")
    for q in range(8):
        p(f"s_waitcnt vmcnt({7-q})")
        for i in range(4):
            r = 8 + 4 * q + i
            if q == 0:
                p(f"v_lshlrev_b32 v{40+2*i}, 16, v{r}")
                p(f"v_and_b32 v{41+2*i}, 0xffff0000, v{r}")
            else:
                p(f"v_lshlrev_b32 v48, 16, v{r}")
                p(f"v_and_b32 v49, 0xffff0000, v{r}")
                p(f"v_add_f32 v{40+2*i}, v{40+2*i}, v48")
                p(f"v_add_f32 v{41+2*i}, v{41+2*i}, v49")
    for i in range(4): p(f"v_cvt_pk_bf16_f32 v{52+i}, v{40+2*i}, v{41+2*i}")
    p("""
ds_write_b64 v6, v[52:53]
ds_write_b64 v6, v[54:55] offset:32
s_waitcnt lgkmcnt(0)
s_barrier
ds_read_b128 v[52:55], v7
s_waitcnt lgkmcnt(0)
buffer_store_dwordx4 v[52:55], v4, s[16:19], s32 offen
k2_end:
s_endpgm
""")
    return p

def desc(name, vg):
    return f""".amdhsa_kernel {name}
  .amdhsa_next_free_vgpr {vg}
  .amdhsa_next_free_sgpr 102
  .amdhsa_accum_offset {vg}
  .amdhsa_group_segment_fixed_size 0
  .amdhsa_kernarg_size 104
  .amdhsa_user_sgpr_count 2
  .amdhsa_user_sgpr_kernarg_segment_ptr 1
  .amdhsa_system_sgpr_workgroup_id_x 1
.end_amdhsa_kernel
"""

def main():
    for t in range(1120): assert (t * 1873) >> 16 == t // 35
    for t in range(140): assert (t * 235) >> 13 == t // 35
    for t in range(35): assert (t * 37) >> 8 == t // 7
    _, rec = build({})
    for it in range(4):
        a, rec2 = build(rec)
        if rec2 == rec: break
        rec = rec2
    else: raise SystemExit("no fixpoint")
    b = reduce_kernel()
    if OPT["novm"]: a.L[:] = [l for l in a.L if not l.startswith("buffer_load")]
    if OPT["nobar"]: a.L[:] = [l for l in a.L if not l.startswith("s_barrier")]
    if OPT["nolg"]:
        out_ = []
        for i_, l in enumerate(a.L):
            if l.startswith("s_waitcnt lgkmcnt") and not a.L[i_-1].startswith(("s_mem", "s_load")) and i_ > 60: continue
            out_.append(l)
        a.L[:] = out_
    if OPT["nord"]: a.L[:] = [l for l in a.L if not l.startswith("ds_read")]
    if OPT["noexp"]: a.L[:] = [l.replace("v_exp_f32", "v_mov_b32") if l.startswith("v_exp_f32") and "-v" not in l else l for l in a.L]
    if OPT["nosm"]: a.L[:] = [l for l in a.L if not l.startswith(("v_exp_f32", "v_cvt_pk"))]
    if OPT["nochk"]: a.L[:] = [l for l in a.L if not l.startswith(("v_or3", "v_or_b32", "v_cmp_ne", "s_cbranch_vccz", "v_and_b32 v252"))]
    if OPT["prof"] == 2:
        out_ = []; L_ = a.L; inrole = False; i_ = 0
        while i_ < len(L_):
            l = L_[i_]
            if l.startswith(("t0_unit", "t1_slot")): inrole = True
            if l.startswith(("t0_exit", "t1_exit")): inrole = False
            if inrole and l == "s_barrier":
                j = len(out_)
                while j > 0 and (out_[j-1].startswith(("s_waitcnt vmcnt", "s_cmp_eq_u32 s55, 5", "s_cbranch_scc1 t1_wa")) or out_[j-1].startswith("t1_wa")): j -= 1
                blk = out_[j:]; del out_[j:]
                out_ += ["s_memtime s[4:5]"] + blk + ["s_memtime s[6:7]", "s_barrier", "s_memtime s[8:9]", "s_waitcnt lgkmcnt(0)",
                         "s_sub_u32 s4, s6, s4", "s_add_u32 s94, s94, s4", "s_sub_u32 s6, s8, s6", "s_add_u32 s95, s95, s6"]
            elif inrole and l.startswith("buffer_load") and l.endswith("lds"):
                out_ += ["s_memtime s[4:5]", l, "s_memtime s[6:7]", "s_waitcnt lgkmcnt(0)", "s_sub_u32 s4, s6, s4", "s_add_u32 s89, s89, s4"] if OPT["pv"] else [l]
            elif l.startswith(("k1_light:", "k1_t1:")) or l.startswith("s_cbranch_scc1 k1_light"):
                out_ += [l, "s_mov_b32 s94, 0", "s_mov_b32 s95, 0", "s_mov_b32 s89, 0"]
            else: out_.append(l)
            i_ += 1
        a.L[:] = out_
    if OPT["prof"] == 4:
        out_ = []; inrole = False; idx = 0
        L_ = [l for l in a.L if not (l.startswith(("s_cselect_b32 s8", "s_cselect_b32 s9")) or (l.startswith(("s_mov_b32 s8", "s_mov_b32 s9")) and "s100" in l))]
        def st_(k):
            return ["s_memtime s[100:101]", "s_waitcnt lgkmcnt(0)", f"s_cmp_eq_u32 s{sSLOT}, {OPT['ps']}", f"s_cselect_b32 s{80+k}, s100, s{80+k}"] if 0 <= k < 16 else []
        for i_, l in enumerate(L_):
            if l.startswith(("t0_unit", "t1_slot")): inrole = True; idx = 0
            if l.startswith(("t0_exit", "t1_last")): inrole = False
            k = (idx - OPT["pb"]) * 4
            if inrole and l == "s_barrier":
                x = out_.pop() if out_[-1].startswith("s_waitcnt vmcnt") else None
                out_ += st_(k - 2) + ([x] if x else []) + st_(k - 1) + [l] + st_(k); idx += 1
            elif inrole and l.startswith("buffer_load") and l.endswith("lds"):
                nxt = next(y for y in L_[i_+1:] if y == "s_barrier" or (y.startswith("buffer_load") and y.endswith("lds")))
                out_ += [l] + (st_(k - 3) if nxt == "s_barrier" else [])
            else: out_.append(l)
        a.L[:] = out_
    if OPT["prof"] == 3:
        out_ = []; inrole = False; idx = 0
        for l in a.L:
            if l.startswith(("t0_unit", "t1_slot")): inrole = True; idx = 0
            if l.startswith(("t0_exit", "t1_exit")) or l.startswith("s_cbranch_scc1 t1_slot"): inrole = False
            if l.startswith("s_cselect_b32 s8") or l.startswith("s_cselect_b32 s9") or l.startswith("s_mov_b32 s9") and "s100" in l: continue
            if inrole and l == "s_barrier":
                k = idx - OPT["pb"]; idx += 1
                st_ = ["s_memtime s[100:101]", "s_waitcnt lgkmcnt(0)", f"s_cmp_eq_u32 s{sSLOT}, {OPT['ps']}", f"s_cselect_b32 s{80+k}, s100, s{80+k}"] if 0 <= k < 16 else []
                out_ += (st_ + [l]) if OPT["pa"] else ([l] + st_)
            else: out_.append(l)
        a.L[:] = out_
    if OPT["nomfq"] or OPT["nomf1"] or OPT["nomf0"]:
        out_ = []; sec = "q"
        for l in a.L:
            if l.startswith("t0_unit"): sec = "0"
            if l.startswith("k1_t1:"): sec = "1"
            if l.startswith("v_mfma") and OPT["nomf" + sec]: continue
            out_.append(l)
        a.L[:] = out_
    if OPT["xa"]:
        out_ = []; sec = "q"; cnt = 0
        for l in a.L:
            if l.startswith("t0_unit_h"): sec = "h"
            if l.startswith("t0_unit_l"): sec = "l"
            if l.startswith("t0_final"): sec = "f"
            if l.startswith("k1_t1:"): sec = "1"
            if OPT["xa"] == 1 and sec in "hl" and l.startswith("v_mfma") and "v[208:211]" in l: continue
            if OPT["xa"] == 2 and sec == "l" and l.startswith(("v_mfma", "ds_read")): continue
            if OPT["xa"] == 3 and sec == "1" and l.startswith("ds_read_b128"): continue
            if OPT["xa"] == 4 and sec in "hl" and l.startswith("ds_read"):
                continue
            out_.append(l)
        a.L[:] = out_
    if OPT["vwin"]:
        out_ = []; on = False
        for l in a.L:
            if l.startswith("k1_t1:") and OPT["vw1"]: on = True
            if l.startswith("t1_slot:"): on = True
            if l.startswith("t1_last:"): on = False
            if on and l.startswith("buffer_load") and l.endswith("lds"): out_.append(f"s_waitcnt vmcnt({OPT['vwin']-1})")
            out_.append(l)
        a.L[:] = out_
    if OPT["dynp"]:
        out_ = []; int1 = False
        for l in a.L:
            if l.startswith("k1_t1:"): int1 = True
            if int1 and l.startswith("buffer_load") and l.endswith("lds"):
                out_ += [f"s_setprio {OPT['dynp']}", l, f"s_setprio {OPT['prio1']}"]
            else: out_.append(l)
        a.L[:] = out_
    n1 = fix_hazards(a.L); n2 = fix_hazards(b.L)
    print("nops inserted", n1, n2, "instrs", len(a.L), len(b.L), file=sys.stderr)
    hdr = open("cdna_kernels/" + NAME + ".s.ref").read().split("; Override launch")[0]
    out = hdr
    out += f"; @launch grid=(256,1,1) block=(512,1,1) lds={LDS_BYTES}\n"
    out += '.amdgcn_target "amdgcn-amd-amdhsa--gfx950"\n.text\n'
    out += a.text()
    out += '.section .rodata,"a"\n.p2align 6\n' + desc(NAME + "_kernel", 256)
    open(sys.argv[1], "w").write(out)
    import subprocess
    r = subprocess.run(["clang", "-x", "assembler", "-target", "amdgcn-amd-amdhsa", "-mcpu=gfx950", "-c", sys.argv[1], "-o", "chk.o"], capture_output=True, text=True)
    if r.returncode: print("ASSEMBLY FAILED", r.stderr[:600])
main()
```

```python
import sys, math, struct, copy
sys.path.insert(0, "work")
from asmlib import *

NAME = "concat_heads__mha_block_cached__gqa_block_cached__near_ridge"
OPT = dict(kv="nt", w="nt", x="nt", wo="nt", st="sc1", rd="sc1", prof=0, prio0=0, prio1=0, touch=1, nox=0, now=0, nokv=0, nomf=0,
           novm=0, lead=4, bp="6.16.26.36.42", map=0, hack="", t1b=0, ps=5, kdel=0, x0=4, xt=0, dynp=0, nopark=0, gap=0, span=4, pa=0, pb=0, m=2, nlat=0, nonar=0, bar=3, qd=5, rt=0, tf="nt", tq="nt", pwo=10, spin=40000, vcap=0, vpost=0, now0=9, xa=0, burst=0, kpar=0, pwh=1, near=0, vwin=9, cpf=1, fs=0, r5=6, early=3, qv=0, two=0, vw1=1, wo5="", nomfq=0, nomf1=0, nomf0=0, pwf="", kvfirst=1, w2=1, psplit=1, nb1=8, nb2=29, kl=16, tl=4, kvat=18, qst="sc1", noq=0, noqst=0, pv=0, nobar=0, nolg=0, nord=0, norare=0, not1=0, noexp=0, nochk=0, nosm=0)
for a in sys.argv[2:]:
    k, val = a.split("=")
    OPT[k] = int(val) if val.lstrip("-").isdigit() else (val if k in ("bp", "hack") else val.replace("+", " ").replace("-", ""))
TILE = 12288
QO = 0
T1R = 43008
B2 = T1R + 32768
KVB = B2 + 18432
NS = 16
SPARE = KVB + NS * 4096
LDS_BYTES = SPARE + 2048
QPARK = 48 << 20
FLAG0 = 0
PART0 = 1 << 20
PART_CU = 4 * 35 * 1024
LEAD = OPT["lead"]
NX = 30
XB_ = [OPT["x0"] + 4 * ((k * 96) // NX) for k in range(NX)]
def f2u(f): return struct.unpack("<I", struct.pack("<f", f))[0]

sKd, sVd, sWd, sOd, sXd, sPd, sQd = 32, 36, 40, 44, 48, 76, 24
sWAVE, sB, sQUAD, sSLOT, sCTR, sW4 = 52, 53, 54, 55, 57, 56
sT1, sT2, sT3 = 62, 63, 61
sKSO, sVSO, sLW = 58, 59, 60
sWB, sOB, sXB, sXM, sSTR, sXF = 58, 59, 70, 71, 72, 73
sC, sBIT = 66, 68
sRET = 30
sGRP = 3
sTEAM, sWB2, sKSO2, sL1, sSLO, sSHI = 74, 75, 65, 64, 69, 72
PKV_ = 255
sRX, sRY, sRZ, sSP = 14, 17, 20, 23

def stamp(e, k, real=False):
    if not OPT["prof"]: return
    e(f"s_mem{'real' if real else ''}time s[100:101]")
    e("s_waitcnt lgkmcnt(0)")
    e(f"s_mov_b32 s{80+k}, s100")
def stamp_slot(e):
    if not OPT["prof"]: return
    e("s_memrealtime s[100:101]" if OPT["rt"] else "s_memtime s[100:101]")
    e("s_waitcnt lgkmcnt(0)")
    for k in range(0, 7):
        e(f"s_cmp_eq_u32 s{sSLOT}, {k}")
        e(f"s_cselect_b32 s{82+k}, s100, s{82+k}")
def stamp_if(e, k, slot):
    if not OPT["prof"]: return
    e("s_memtime s[100:101]")
    e("s_waitcnt lgkmcnt(0)")
    e(f"s_cmp_eq_u32 s{sSLOT}, {slot}")
    e(f"s_cselect_b32 s{80+k}, s100, s{80+k}")
def dump_stamps(e, wsreg, base, nw):
    if not OPT["prof"]: return
    e(f"""
s_mul_i32 s100, s2, {nw}
s_add_u32 s100, s100, s{sWAVE}
s_lshl_b32 s100, s100, 6
s_add_u32 s100, s100, {base}
s_add_u32 s96, s{wsreg}, s100
s_addc_u32 s97, s{wsreg+1}, 0
s_mov_b32 s98, 64
s_mov_b32 s99, 0x20000
v_mov_b32 v1, 0
""")
    for k in range(16):
        e(f"v_mov_b32 v0, s{80+k}")
        e(f"buffer_store_dword v0, v1, s[96:99], 0 offen offset:{k*4}")
    e("s_waitcnt vmcnt(0)")

class Gen:
    def __init__(self, prog, needs):
        self.p = prog; self.needs = needs; self.rec = {}
        self.mute = 0
        self.vq = []; self.lq = []; self.pend = []; self.issued = {}
        self.nosim = 0
    def e(self, s):
        if not self.mute: self.p(s)
    def label(self, n):
        if not self.mute: self.p.label(n)
    def wait(self, kind, key, tags, drain_tags=()):
        q = self.vq if kind == "vm" else self.lq
        for t in tags:
            assert self.issued.pop(t, 0) > 0, (t, key)
        tags = list(tags) + list(drain_tags)
        idx = [i for i, t in enumerate(q) if t in tags]
        n = len(q) - 1 - max(idx) if idx else 999
        if n != 999: n = min(n, 63 if kind == "vm" else 15)
        k = (kind, key)
        self.rec[k] = min(self.rec.get(k, 999), n)
        val = self.needs.get(k, n)
        if val == 999: return
        self.e(f"s_waitcnt {'vmcnt' if kind == 'vm' else 'lgkmcnt'}({val})")
        del q[:len(q) - val if val < len(q) else 0]
    def wait_alt(self, key, tags, alt, cmp_txt, lab):
        q = self.vq
        for t in tags: assert self.issued.pop(t, 0) > 0, (t, key)
        idx = [i for i, t in enumerate(q) if t in tags]
        n = min(len(q) - 1 - max(idx), 63) if idx else 999
        k = ("vm", key, alt)
        self.rec[k] = min(self.rec.get(k, 999), n)
        va, vb = self.needs.get(("vm", key, False), 0), self.needs.get(("vm", key, True), 0)
        if vb != 999 and vb > va: self.e(f"s_waitcnt vmcnt({vb})")
        if vb > va:
            self.e(cmp_txt); self.e(f"s_cbranch_scc1 {lab}")
        val = min(va, vb) if not (alt and vb > va) else vb
        if min(va, vb) != 999: self.e(f"s_waitcnt vmcnt({min(va, vb)})")
        if vb > va: self.label(lab)
        if val != 999: del q[:len(q) - val if val < len(q) else 0]
    def vm(self, tag, text):
        self.e(text); self.vq.append(tag); self.issued[tag] = self.issued.get(tag, 0) + 1
    def ld(self, tag, text):
        self.e(text); self.lq.append(tag); self.issued[tag] = self.issued.get(tag, 0) + 1
    def drain(self, n=1):
        for _ in range(n):
            if self.pend: self.pend.pop(0)()
    def optional(self, taken, fn):
        if taken: fn()
        elif not self.mute:
            st = (list(self.vq), list(self.lq), dict(self.issued))
            fn()
            self.vq[:], self.lq[:] = st[0], st[1]; self.issued = st[2]

def mfma(e, d, a, b, c):
    if not OPT["nomf"]:
        e(f"v_mfma_f32_16x16x32_bf16 {v(d,4)}, {v(a,4)}, {v(b,4)}, {c if c == '0' else v(c,4)}")


KL = OPT["kl"]
KVT = [k for k in range(NX) if not OPT['burst'] or k % 2 == OPT['kpar']]
N0 = max(u for u in range(300) if 4 * (u - KL) + 4 <= XB_[KVT[-1]]) + 1
def lane_regs(e, b=2):
    e(f"""
v_mbcnt_lo_u32_b32 v{b}, -1, 0
v_mbcnt_hi_u32_b32 v{b}, -1, v{b}
v_and_b32 v{b+1}, 15, v{b}
v_lshrrev_b32 v{b+2}, 4, v{b}
v_lshrrev_b32 v{b+3}, 2, v{b}
v_and_b32 v{b+4}, 3, v{b+3}
v_and_b32 v{b+5}, 3, v{b}
v_lshrrev_b32 v{b+6}, 3, v{b}
v_and_b32 v{b+7}, 7, v{b}
""")
def kv_kind(a):
    a %= 32
    return "K" if (a == 0 or (a % 2 == 1 and a < 31)) else "V"
def kv_tile(a):
    u, a = divmod(a, 32)
    return u * 16 + (0 if a == 0 else 15 if a == 31 else (a + 1) // 2 if a % 2 == 1 else (a - 2) // 2)
def QAC(hh, rt, k): return ((hh * 7 + rt) * 3 + k) * 4
QW = [248, 249, 250]


class OpEngine:
    def __init__(self, g, PK, AC0, AF0, BF0, RA, OB, PO, ring, sM0, ringoff):
        self.g, self.e = g, g.e
        self.PK, self.AC0, self.AF0, self.BF0, self.RA, self.OB, self.PO = PK, AC0, AF0, BF0, RA, OB, PO
        self.ring, self.sM0, self.ro = ring, sM0, ringoff
        self.dq = []; self.pq = []; self.clock = 0; self.fl = OPT['wo']; self.nr = 4; self.early = 0
    def AC(self, k): return self.AC0 + 4 * k
    def AF(self, s, i): return self.AF0 + 8 * (s & 1) + 4 * i
    def BF(self, n): return self.BF0 + 4 * (n % 6)
    def slot(self, i): return ((i + self.ro) % self.nr) * 8192
    def addr_setup(self):
        e = self.e
        lane_regs(e, 232)
        L = 232
        e(f"""
v_lshlrev_b32 v{self.OB}, 4, v{L}
v_lshlrev_b32 v{L+8}, 1, v{L+2}
v_xor_b32 v{L+8}, v{L+1}, v{L+8}
v_lshlrev_b32 v{L+8}, 4, v{L+8}
v_mul_u32_u24 v{L+9}, 1280, v{L+2}
v_add_u32 v{self.PO[0]}, v{L+8}, v{L+9}
v_xor_b32 v{L+8}, 128, v{L+8}
v_add_u32 v{L+8}, v{L+8}, v{L+9}
v_add_u32 v{self.PO[1]}, 4096, v{L+8}
s_lshl_b32 s{sT1}, s{sW4}, 1
v_and_b32 v{L+8}, 7, v{L+3}
v_xor_b32 v{L+8}, s{sT1}, v{L+8}
v_lshlrev_b32 v{L+8}, 5, v{L+8}
v_lshl_add_u32 v{L+8}, v{L+3}, 8, v{L+8}
v_lshl_add_u32 v{L+8}, v{L+5}, 3, v{L+8}
v_add_u32 v{self.RA[0]}, {self.ring}, v{L+8}
v_xor_b32 v{self.RA[1]}, 32, v{self.RA[0]}
""")
    def dma(self, i):
        ps, j = divmod(i, 6)
        out = []
        for q in range(2):
            def f(q=q):
                if q == 0:
                    self.e(f"s_add_u32 m0, s{self.sM0}, {self.ring+self.slot(i)}")
                    self.e(f"s_add_u32 s{sT2}, s{sOB}, {j*32*1280+ps*256}")
                o = "offset:1024 " if q else ""
                self.g.vm(f"O{i}", f"buffer_load_dwordx4 v{self.PO[q]}, s[{sOd}:{sOd+3}], s{sT2} offen {o}{self.fl} lds")
            out.append(f)
        return out
    def defer(self, at, ins):
        for x in ins: self.dq.append((at, x))
    def run_dq(self, n):
        while n > 0 and self.dq and self.dq[0][0] <= self.clock:
            x = self.dq.pop(0)[1]
            if callable(x): x()
            else: self.e(x)
            n -= 1
    def flush_pq(self):
        while self.pq: self.pq.pop(0)[1]()
    def a_read(self, i, n):
        k, hf = divmod(n, 2)
        self.g.ld(f"o{i}a{k}", f"ds_read_b64_tr_b16 {v(self.AF(i,k)+2*hf,2)}, v{self.RA[k]} offset:{self.slot(i)+hf*4096}")
    def b_read(self, b):
        i, rt = divmod(b, 7)
        self.g.ld(f"o{i}b{rt}", f"ds_read_b128 {v(self.BF(b),4)}, v{self.OB} offset:{QO+(i%6*7+rt)*1024}")
    def first_reads(self, i):
        self.a_read(i, 0); self.a_read(i, 1); self.b_read(7 * i); self.a_read(i, 2); self.a_read(i, 3)
        for n in range(1, 6): self.b_read(7 * i + n)
    def unpack_l(self, dst, src):
        return [f"v_perm_b32 v{dst+x}, v{src+x//2}, v{src+x//2}, s{sSHI if x & 1 else sSLO}" for x in range(4)]
    def pack_l(self, dst, src):
        return [f"v_cvt_pk_bf16_f32 v{dst}, v{src}, v{src+1}", f"v_cvt_pk_bf16_f32 v{dst+1}, v{src+2}, v{src+3}"]
    def store_l(self, ps, rt):
        o = (ps * 7 + rt) * 1024
        return [f"s_mov_b32 s{sT3}, {o - o % 4096}",
                lambda: self.g.vm("st", f"buffer_store_dwordx4 {v(self.PK(ps*14+rt*2),4)}, v{self.OB}, s[{sPd}:{sPd+3}], s{sT3} offen offset:{o%4096} {OPT['st']}")]
    def step(self, key, i, last, tick, store=False, hooks=None):
        g, e = self.g, self.e
        ps, j = divmod(i, 6)
        BAR = OPT["bar"]
        c0 = self.clock
        if store and not self.early and i >= last - 3 and i < last:
            todo = [(q, rt) for q in range(store[0], ps) for rt in range(7)]
            k = i - (last - 3)
            mine = todo[k * len(todo) // 3:(k + 1) * len(todo) // 3]
            for n, (q, rt) in enumerate(mine): self.defer(c0 + (6 if k == 0 else 0) + n * (8 if k == 0 else 14) // len(mine), self.store_l(q, rt))
        if j == 5 and (i < last or store):
            for n in range(14):
                ins = self.pack_l(self.PK(ps * 14 + n), self.AC(n))
                if i < last: ins += self.unpack_l(self.AC(n), self.PK((ps + 1) * 14 + n))
                if store and n % 2 == 1 and (i == last or self.early): ins += self.store_l(ps, n // 2)
                self.defer(c0 + n + 4, ins)
        for n in range(14):
            rt, k = divmod(n, 2)
            if n == BAR and i < last: tick(i)
            if hooks and n in hooks: hooks[n]()
            tags = ([f"o{i}b{rt}"] if k == 0 else []) + ([f"o{i}a{k}"] if rt == 0 else [])
            if tags: g.wait("lg", f"{key}{i}m{n}", tags)
            mfma(e, self.AC(n), self.AF(i, k), self.BF(7 * i + rt), self.AC(n))
            if k == 1 and 7 * i + rt + 6 < 7 * (last + 1): self.b_read(7 * i + rt + 6)
            if k == 0 and i < last and BAR < n <= BAR + 8: self.a_read(i + 1, (n - BAR - 1) // 2)
            while self.pq and self.pq[0][0] <= self.clock: self.pq.pop(0)[1]()
            self.clock += 1
            self.run_dq(7)
    def finish(self):
        self.flush_pq(); self.clock += 100; self.run_dq(1000)

def qp_phase(p, needs):
    g = Gen(p, needs); e = g.e
    AC = QAC
    def AF(par, hh, k): return 168 + par * 24 + (hh * 3 + k) * 4
    def BF(n): return 216 + 4 * (n % 4)
    RA = [[232, 233, 234], [235, 236, 237]]; XA = [238, 239]; PW = [243, 244, 245]; PX = 246
    JUNK = 247
    STG = [KVB, T1R]
    NB1, NB2 = OPT["nb1"], OPT["nb2"]
    QV = OPT["qv"]
    HEAD = {(0, 0): 0, (0, 1): 3, (1, 0): 1, (1, 1): 2}
    def dma_w(i, hh):
        out = []
        for tm in (range(2) if QV else [None]):
            for ii in range(3):
                def f(ii=ii, tm=tm):
                    if ii == 0:
                        if QV:
                            e(f"s_add_u32 m0, s{sLW}, {STG[i&1]+hh*2*TILE+tm*TILE}")
                            e(f"s_add_u32 s{sT1}, s{sWB}, {i*32*12288+HEAD[tm,hh]*384}")
                        else:
                            e(f"s_add_u32 m0, s{sLW}, {STG[i&1]+hh*2*TILE}")
                            e(f"s_add_u32 s{sT1}, s{sWB2 if hh else sWB}, {i*32*12288}")
                    o = f"offset:{ii*1024} " if ii else ""
                    g.vm(f"W{i}.{hh}", f"buffer_load_dwordx4 v{PW[ii]}, s[{sWd}:{sWd+3}], s{sT1} offen {o}{OPT['w']} lds")
                out.append(f)
        return out
    def dma_x(pp):
        out = []
        nq = 4 if QV else 2
        for q in range(nq):
            def f(q=q):
                if q < nq - 1: e(f"s_add_u32 m0, s{sXM}, {QO+(pp%3)*14336+q*16384//nq}")
                else:
                    e(f"s_add_u32 s{sT2}, s{sXM}, {QO+(pp%3)*14336+q*16384//nq}")
                    e(f"s_cmp_ge_u32 s{sWAVE}, 6")
                    e(f"s_cselect_b32 m0, s{sXF}, s{sT2}")
                e(f"s_add_u32 s{sT2}, s{sXB}, {pp*128+q*163840//nq}")
                g.vm(f"X{pp}", f"buffer_load_dwordx4 v{PX}, s[{sXd}:{sXd+3}], s{sT2} offen {OPT['x']} lds")
            out.append(f)
        return out
    nlab = [0]
    def issue(fs):
        if not QV:
            g.pend += fs; return
        if not fs: return
        nlab[0] += 1
        e(f"s_cmp_eq_u32 s{sTEAM}, 0")
        e(f"s_cbranch_scc1 qp_i{nlab[0]}")
        for f in fs: f()
        g.label(f"qp_i{nlab[0]}")
    def a_read(i, hh, n):
        k, hf = divmod(n, 2)
        g.ld(f"{i}a{hh}{k}", f"ds_read_b64_tr_b16 {v(AF(i&1,hh,k)+2*hf,2)}, v{RA[i&1][k]} offset:{hh*2*TILE+hf*1536}")
    def b_read(i, rt):
        g.ld(f"{i}b{rt}", f"ds_read_b128 {v(BF(7*i+rt),4)}, v{XA[i&1]} offset:{((i>>1)%3)*14336+rt*2048}")
    lane_regs(e)
    e(f"""
v_lshrrev_b32 v13, 1, v8
v_and_b32 v13, 3, v13
v_lshlrev_b32 v13, 1, v13
v_xor_b32 v13, v9, v13
v_lshlrev_b32 v13, 4, v13
v_mul_u32_u24 v14, 1280, v8
v_add_u32 v{PX}, v13, v14
v_mul_u32_u24 v14, 384, v8
v_add_u32 v{PKV_}, v13, v14
s_mul_i32 s{sXB}, s{sW4 if QV else sWAVE}, 10240
s_lshl_b32 s{sXM}, s{sW4 if QV else sWAVE}, 10
s_sub_u32 s{sXF}, s{sXM}, {2048 if QV else 6144}
s_add_u32 s{sXF}, s{sXF}, {SPARE}
""")
    issue(dma_x(0)); g.drain(9)
    e(f"""
s_and_b32 s{sT1}, s{sW4}, 1
s_lshl_b32 s{sT1}, s{sT1}, 2
v_xor_b32 v16, s{sT1}, v9
s_mul_i32 s{sWB}, s{sW4}, {8*12288}
s_mul_i32 s{sT1}, s{sTEAM}, {0 if QV else 384}
s_add_u32 s{sWB2}, s{sWB}, 1152
s_add_u32 s{sWB}, s{sWB}, s{sT1}
s_sub_u32 s{sWB2}, s{sWB2}, s{sT1}
s_mul_i32 s{sT1}, s{sTEAM}, {0 if QV else TILE}
s_add_u32 s{sLW}, s{sLW}, s{sT1}
""")
    for q in range(3):
        e(f"""
v_add_u32 v10, {8*q}, v8
v_mul_u32_u24 v11, 43, v10
v_lshrrev_b32 v11, 7, v11
v_mul_u32_u24 v12, 3, v11
v_sub_u32 v12, v10, v12
v_lshrrev_b32 v13, 1, v11
v_and_b32 v14, 1, v13
v_xor_b32 v14, v16, v14
v_lshlrev_b32 v14, 4, v14
v_lshl_add_u32 v14, v12, 7, v14
v_mul_u32_u24 v15, 12288, v11
v_add_u32 v14, v14, v15
v_subrev_u32 v{PW[q]}, {q*1024}, v14
""")
    issue(dma_w(0, 0) + dma_w(0, 1)); g.drain(9)
    if OPT["touch"]:
        nsh = 16 if OPT["map"] == 0 else 8
        rows = 640 // nsh // 8
        e(f"""
s_and_b32 s{sT1}, s{sB}, {nsh-1}
s_lshl_b32 s{sT1}, s{sT1}, 3
s_add_u32 s{sT1}, s{sT1}, s{sWAVE}
s_mul_i32 s{sT1}, s{sT1}, {rows*12288}
v_mul_u32_u24 v10, 43, v2
v_lshrrev_b32 v10, 9, v10
v_mul_u32_u24 v11, 12, v10
v_sub_u32 v11, v2, v11
v_mul_u32_u24 v10, 12288, v10
v_lshl_add_u32 v10, v11, 7, v10
""")
        for r in range(rows // 5):
            g.vm("pf", f"buffer_load_dword v{JUNK}, v10, s[{sWd}:{sWd+3}], s{sT1} offen {OPT['tq']}")
            e(f"s_add_u32 s{sT1}, s{sT1}, {5*12288}")
    if OPT["touch"] and OPT["xt"]:
        e(f"""
s_and_b32 s{sT1}, s{sQUAD}, 1
s_mul_i32 s{sT1}, s{sT1}, 71680
s_mul_i32 s{sT2}, s{sWAVE}, {70*128}
s_add_u32 s{sT1}, s{sT1}, s{sT2}
v_lshlrev_b32 v10, 7, v2
""")
        g.vm("pf", f"buffer_load_dword v{JUNK}, v10, s[{sXd}:{sXd+3}], s{sT1} offen")
        g.vm("pf", f"buffer_load_dword v{JUNK}, v10, s[{sXd}:{sXd+3}], s{sT1} offen offset:768")
    e(f"""
v_lshrrev_b32 v8, 1, v3
v_and_b32 v8, 3, v8
v_lshlrev_b32 v8, 1, v8
v_xor_b32 v8, v4, v8
v_lshlrev_b32 v8, 4, v8
v_lshl_add_u32 v9, v3, 7, v8
v_add_u32 v{XA[0]}, {QO}, v9
v_xor_b32 v{XA[1]}, 64, v{XA[0]}
v_lshl_add_u32 v8, v4, 3, v6
v_mul_u32_u24 v9, 384, v8
v_lshrrev_b32 v8, 1, v6
v_and_b32 v11, 1, v4
v_lshl_add_u32 v8, v11, 2, v8
v_xor_b32 v8, v7, v8
v_lshl_add_u32 v9, v8, 4, v9
v_lshlrev_b32 v12, 3, v11
v_lshl_add_u32 v12, v2, 4, v12
v_and_b32 v11, 1, v7
v_lshl_add_u32 v11, v11, 3, v9
s_mov_b32 s{sC}, {hex(f2u(192 ** -0.5 * math.log2(math.e)))}
s_mov_b32 s{sC+1}, s{sC}
""")
    for i in range(3):
        e(f"""
s_mul_i32 s{sT1}, s{sW4}, 3
s_add_u32 s{sT1}, s{sT1}, {i}
s_lshr_b32 s{sT2}, s{sT1}, 2
s_lshl_b32 s{sRY+i}, s{sT2}, 7
s_and_b32 s{sT3}, s{sT1}, 3
s_xor_b32 s{sT3}, s{sT3}, s{sW4}
s_lshl_b32 s{sRX+i}, s{sT3}, 5
s_and_b32 s{sT3}, s{sT1}, 2
s_lshl_b32 s{sT3}, s{sT3}, 5
s_and_b32 s{sT2}, s{sT1}, 1
s_lshl_b32 s{sT2}, s{sT2}, 3
v_xor_b32 v{QW[i]}, s{sT2}, v12
s_or_b32 s{sT3}, s{sT3}, s{sT2}
v_xor_b32 v13, s{sT3}, v11
s_lshr_b32 s{sT1}, s{sT1}, 1
s_mul_i32 s{sT1}, s{sT1}, 7168
v_add_u32 v{QW[i]}, s{sT1}, v{QW[i]}
s_mul_i32 s{sT1}, s{sTEAM}, {TILE}
s_add_u32 s{sT1}, s{sT1}, s{sRY+i}
v_add_u32 v13, s{sT1}, v13
v_add_u32 v{RA[1][i]}, {T1R}, v13
v_add_u32 v{RA[0][i]}, {KVB}, v13
""")
    g.wait("vm", "in", ["W0.0", "W0.1", "X0"])
    e("s_barrier")
    stamp(e, 14)
    e(f"""
s_cmp_lg_u32 s{sWAVE}, 0
s_cbranch_scc1 k1_nocnt
s_mov_b32 s4, s26
s_mov_b32 s5, s27
s_mov_b32 s6, 256
s_mov_b32 s7, 0x20000
s_lshl_b32 s{sT1}, s{sGRP}, 2
v_mov_b32 v252, 0
v_mov_b32 v253, 1
s_mov_b64 exec, 1
buffer_atomic_add v253, v252, s[4:7], s{sT1} offen sc1
s_mov_b64 exec, -1
k1_nocnt:
""")
    a_read(0, 0, 0); a_read(0, 0, 1); b_read(0, 0); b_read(0, 1)
    for n in range(2, 6): a_read(0, 0, n)
    for n in range(6): a_read(0, 1, n)
    for rt in range(2, 4): b_read(0, rt)
    issue(dma_w(1, 0) + dma_w(1, 1) + dma_x(1)); g.drain(9)
    ORD = [(rt, 0, k) for rt in (0, 1) for k in range(3)] + [(rt, 1, k) for rt in (0, 1) for k in range(3)]
    ORD += [(rt, hh, k) for rt in range(2, 7) for hh in range(2) for k in range(3)]
    lastb = {rt: max(n for n, x in enumerate(ORD) if x[0] == rt) for rt in range(7)}
    A0 = [NB1 + 2 + 3 * x for x in range(6)]
    A1 = [NB2 + 1 + 2 * x for x in range(6)]
    def qcvt(n):
        rt, hh, k = ORD[n]
        a = AC(hh, rt, k)
        e(f"v_pk_mul_f32 {v(a,2)}, {v(a,2)}, s[{sC}:{sC+1}]")
        e(f"v_pk_mul_f32 {v(a+2,2)}, {v(a+2,2)}, s[{sC}:{sC+1}]")
        e(f"v_cvt_pk_bf16_f32 v{a}, v{a}, v{a+1}")
        e(f"v_cvt_pk_bf16_f32 v{a+1}, v{a+2}, v{a+3}")
    lastd = [0]
    for i in range(20):
        seen = set()
        for n, (rt, hh, k) in enumerate(ORD):
            if n == NB1 and i < 19:
                g.drain(9); lastd[0] = n - 9
                g.wait("lg", f"r1{i}", [], drain_tags=[f"{i}a1{x}" for x in range(3)])
                g.wait("vm", f"s{i}", [f"W{i+1}.0"] + ([f"X{(i+1)//2}"] if i % 2 == 1 else []))
                e("s_barrier")
                issue(((dma_w(i + 2, 0) if i == 0 else []) + dma_w(i + 2, 1) if i + 2 < 20 else []) + (dma_x(i // 2 + 2) if i % 2 == 0 and i // 2 + 2 < 10 else []))
            if n == NB2 and i < 19:
                g.drain(9); lastd[0] = n - 9
                g.wait("lg", f"r2{i}", [], drain_tags=[f"{i+1}a0{x}" for x in range(3)])
                g.wait("vm", f"t{i}", [f"W{i+1}.1"])
                e("s_barrier")
                if i + 3 < 20: issue(dma_w(i + 3, 0))
            if OPT["pwo"] and n == 20 and i == OPT["pwo"]:
                nsh = 16 if OPT["map"] == 0 else 8
                per = 245760 * OPT["pwh"] // (8 * nsh)
                e(f"""
s_and_b32 s{sT3}, s{sB}, {nsh-1}
s_lshl_b32 s{sT3}, s{sT3}, 3
s_add_u32 s{sT3}, s{sT3}, s{sWAVE}
s_mul_i32 s{sT3}, s{sT3}, {per}
s_add_u32 s{sT3}, s{sT3}, {245760 * (4 - OPT["pwh"])}
v_mbcnt_lo_u32_b32 v251, -1, 0
v_mbcnt_hi_u32_b32 v251, -1, v251
v_min_u32 v251, {min(59, per // 128 - 1)}, v251
v_lshlrev_b32 v251, 7, v251
""")
                for r in range(max(1, per // 7680)):
                    g.vm("pf", f"buffer_load_dword v{JUNK}, v251, s[{sOd}:{sOd+3}], s{sT3} offen {OPT['pwf']}")
                    e(f"s_add_u32 s{sT3}, s{sT3}, 7680")
            if n == NB2 + 1 and i == 18:
                e(f"s_cmp_eq_u32 s{sTEAM}, 0")
                e("s_cbranch_scc1 qp_nokv")
                e(f"s_mul_i32 s{sKSO2}, s{sW4}, 3072")
                e(f"s_lshl_b32 s{sT3}, s{sW4}, 10")
                for u in range(N0 - 96):
                    a, bb = divmod(u, 3)
                    e(f"s_add_u32 m0, s{sT3}, {KVB + (u % NS) * 4096 - bb * 128}")
                    e(f"s_add_u32 s{sT1}, s{sKSO2}, {kv_tile(a) * TILE}")
                    srd = sKd if kv_kind(a) == "K" else sVd
                    e(f"buffer_load_dwordx4 v{PKV_}, s[{srd}:{srd+3}], s{sT1} offen offset:{bb*128} {OPT['kv']} lds")
                g.label("qp_nokv")
            tags = [t for t in (f"{i}b{rt}", f"{i}a{hh}{k}") if t not in seen]
            seen.update(tags)
            if tags: g.wait("lg", f"{i}m{n}", tags)
            mfma(e, AC(hh, rt, k), AF(i & 1, hh, k), BF(7 * i + rt), "0" if i == 0 else AC(hh, rt, k))
            if n == lastb[rt]:
                if rt + 4 < 7: b_read(i, rt + 4)
                elif i < 19: b_read(i + 1, rt - 3)
            if i < 19 and n in A0: a_read(i + 1, 0, A0.index(n))
            if i < 19 and n in A1: a_read(i + 1, 1, A1.index(n))
            if g.pend and (n - lastd[0]) % 42 >= (OPT["qd"] if len(g.pend) <= 3 else OPT["qd"] - 2):
                g.drain(1); lastd[0] = n
            if i == 19 and n >= 4: qcvt(n - 4)
    for n in range(38, 42): qcvt(n)
    stamp(e, 15)
    e("s_barrier")
    return g.rec

def t0_path(p, needs, nrt, tag):
    g = Gen(p, needs); e = g.e
    def ACC(rt, t): return rt * 48 + t * 4
    def Q(rt, j): return 96 + rt * 24 + j * 4
    def S(par, rt, kt=0): return 144 + par * 16 + rt * 8 + kt * 4
    def P(par, rt): return 176 + par * 8 + rt * 4
    def NEGM(rt): return 192 + rt * 4
    def LSUM(rt): return 200 + rt * 4
    def STG(rt, j): return 144 + (j * 2 + rt) * 4 if j < 5 else 192 + rt * 4
    ONES = 208
    FR0 = 212; NFR = 8
    def FR(a, f): return FR0 + ((a * 12 + f) % NFR) * 4
    KA = [244, 245]; VA = [246, 247, 248, 249]; QOA = 250
    TC = 251; T = [252, 253, 254, 255]
    HOLD = [48 + 4 * i for i in range(12)] + [156, 172, 180, 188, 196, 204]
    def rd_l(a, f):
        base = ((3 * a + f // 4) % NS) * 4096; tg = f"A{a%32}f{f}"
        if kv_kind(a) == "K":
            j, kt = divmod(f, 2)
            return [lambda: g.ld(tg, f"ds_read_b128 {v(FR(a,f),4)}, v{KA[j&1]} offset:{base+kt*2048}")]
        return [lambda hf=hf: g.ld(tg, f"ds_read_b64_tr_b16 {v(FR(a,f)+2*hf,2)}, v{VA[f&3]} offset:{base+hf*2048}") for hf in range(2)]
    def run(x):
        if callable(x): x()
        else: e(x)
    def cost(x): return 2 if isinstance(x, str) and x.startswith(("v_exp", "v_rcp")) else 1
    def step(key, a, mfs, valu=(), last=False, extra=None, v0=0):
        valu = list(valu)
        ngap = sum(len(mfs(f, 0)) for f in range(v0, 12))
        tot = sum(cost(x) for x in valu); done = 0; gap = 0
        for f in range(12):
            pos = a * 12 + f
            if extra and f in extra: extra[f]()
            if pos in XB_: e("s_barrier")
            reads = rd_l(a, f + LEAD) if f + LEAD < 12 else ([] if last else rd_l(a + 1, f + LEAD - 12))
            if not OPT["w2"]: g.wait("lg", f"{key}{f}", [f"A{a}f{f}"])
            elif f % 2 == 0: g.wait("lg", f"{key}{f}", [f"A{a}f{f}", f"A{a}f{f+1}"])
            ms = mfs(f, FR(a, f))
            for i, m in enumerate(ms):
                m()
                if reads: reads.pop(0)()
                if i == len(ms) - 1:
                    while reads: reads.pop(0)()
                if f >= v0:
                    gap += 1
                    while valu and done + cost(valu[0]) / 2 <= tot * gap / ngap:
                        done += cost(valu[0]); run(valu.pop(0))
        for x in valu: run(x)
    def mf_qk(par, zero):
        def m(f, fr):
            j, kt = divmod(f, 2)
            return [lambda rt=rt: mfma(e, S(par, rt, kt), fr, Q(rt, j), ("0" if zero else NEGM(rt)) if j == 0 else S(par, rt, kt)) for rt in range(nrt)]
        return m
    def onorm_l(j):
        out = []
        for rt in range(nrt):
            a = ACC(rt, 2 * j)
            out += [f"v_pk_mul_f32 {v(a+i,2)}, {v(a+i,2)}, {v(T[2*rt],2)}" for i in range(0, 8, 2)]
            out += [f"v_cvt_pk_bf16_f32 v{STG(rt,j)+i}, v{a+2*i}, v{a+2*i+1}" for i in range(4)]
        return out
    def mf_pv(par, first, last=False):
        def m(f, fr):
            out = []
            if f == (0 if last else 5):
                out += [lambda rt=rt: mfma(e, LSUM(rt), ONES, P(par, rt), "0" if first else LSUM(rt)) for rt in range(nrt)]
            return out + [lambda rt=rt: mfma(e, ACC(rt, f), fr, P(par, rt), "0" if first else ACC(rt, f)) for rt in range(nrt)]
        return m
    def sm(par, lo=0, hi=None):
        grp = [(rt, i) for rt in range(nrt) for i in range(4)][lo:hi]
        seq = []
        for n, (rt, i) in enumerate(grp):
            a, b = T[(2 * n) % 4], T[(2 * n + 1) % 4]
            r = S(par, rt) + 2 * i
            seq += [f"v_exp_f32 v{a}, v{r}", f"v_exp_f32 v{b}, v{r+1}"]
            if n > 0: seq.append(prev)
            prev = f"v_cvt_pk_bf16_f32 v{P(par,rt)+i}, v{a}, v{b}"
        return seq + [prev] if grp else []
    def chk_l(par):
        p0 = P(par, 0)
        out = [f"v_or3_b32 v{TC}, v{p0}, v{p0+1}, v{p0+2}"]
        if nrt == 2:
            out += [f"v_or3_b32 v{TC}, v{TC}, v{p0+3}, v{p0+4}", f"v_or3_b32 v{TC}, v{TC}, v{p0+5}, v{p0+6}"]
        out += [f"v_bitop3_b32 v{TC}, v{TC}, v{p0+4*nrt-1}, s{sBIT} bitop3:0xa8", f"v_cmp_ne_u32 vcc, 0, v{TC}"]
        return out
    def chk_branch(par, key):
        e(f"s_cbranch_vccz t0_ok{key}_{tag}")
        if not OPT["norare"]: e(f"s_call_b64 s[{sRET}:{sRET+1}], t0_rare{par}_{tag}")
        g.label(f"t0_ok{key}_{tag}")
    def rowmax(par, rt, t, t2):
        r = S(par, rt)
        e(f"""
v_max3_f32 v{t}, v{r}, v{r+1}, v{r+2}
v_max3_f32 v{t}, v{t}, v{r+3}, v{r+4}
v_max3_f32 v{t}, v{t}, v{r+5}, v{r+6}
v_max_f32 v{t}, v{t}, v{r+7}
v_mov_b32 v{t2}, v{t}
v_permlane32_swap_b32 v{t2}, v{t}
v_max_f32 v{t}, v{t}, v{t2}
v_mov_b32 v{t2}, v{t}
v_permlane16_swap_b32 v{t2}, v{t}
v_max_f32 v{t}, v{t}, v{t2}
v_add_f32 v{t}, {hex(f2u(7.0))}, v{t}
""")
    for rt in range(7):
        for k in range(3): e(f"ds_write_b64 v{QW[k]}, {v(QAC(0,rt,k),2)} offset:{QO+rt*1024}")
    for k in range(3):
        e(f"""
s_mul_i32 s{sT1}, s{sW4}, 3
s_add_u32 s{sT1}, s{sT1}, {k}
s_lshr_b32 s{sT1}, s{sT1}, 1
s_cmp_lt_u32 s{sT1}, 3
s_cselect_b32 s{sT3}, {B2 - (T1R + 6144 - 18432)}, 0
s_add_u32 s{sT3}, s{sT3}, {T1R + 6144 - 18432}
s_lshl_b32 s{sT2}, s{sT1}, 10
s_sub_u32 s{sT2}, s{sT3}, s{sT2}
v_add_u32 v{240+k}, s{sT2}, v{QW[k]}
s_mul_i32 s{sT2}, s{sT1}, 6144
s_sub_u32 s{sT2}, {T1R}, s{sT2}
v_add_u32 v{243+k}, s{sT2}, v{QW[k]}
""")
    for rt in range(7):
        for k in range(3): e(f"ds_write_b64 v{(240 if rt < 6 else 243)+k}, {v(QAC(1,rt,k),2)} offset:{rt*1024 if rt < 6 else 0}")
    e("s_waitcnt lgkmcnt(0)")
    lane_regs(e)
    e(f"""
s_lshl_b32 s{sT1}, s{sWAVE}, 11
s_add_u32 s{sT1}, s{sT1}, {QO}
v_lshl_add_u32 v{QOA}, v2, 4, s{sT1}
v_lshrrev_b32 v8, 1, v3
v_and_b32 v8, 3, v8
v_lshlrev_b32 v8, 1, v8
v_xor_b32 v8, v4, v8
v_lshlrev_b32 v8, 4, v8
v_lshl_add_u32 v8, v3, 7, v8
v_add_u32 v{KA[0]}, {KVB}, v8
v_xor_b32 v{KA[1]}, 64, v{KA[0]}
v_lshrrev_b32 v8, 1, v5
v_and_b32 v8, 3, v8
v_lshlrev_b32 v8, 5, v8
v_lshl_add_u32 v8, v5, 7, v8
v_lshl_add_u32 v8, v7, 3, v8
v_add_u32 v{VA[0]}, {KVB}, v8
v_xor_b32 v{VA[1]}, 32, v{VA[0]}
v_xor_b32 v{VA[2]}, 64, v{VA[0]}
v_xor_b32 v{VA[3]}, 96, v{VA[0]}
s_mov_b32 s{sBIT}, 0x40004000
s_mov_b32 s{sSLOT}, 1
""")
    for i in range(4): e(f"v_mov_b32 v{ONES+i}, 0x3f803f80")
    H = 4 if (nrt == 2 and OPT["psplit"]) else (2 if OPT["psplit"] else 0)
    for unit in range(2):
        if unit >= 1: g.mute += 1
        g.label(f"t0_unit_{tag}")
        e("s_barrier")
        if not g.mute: stamp_slot(e)
        e(f"s_cmp_gt_u32 s{sSLOT}, 3")
        e(f"s_cbranch_scc1 t0_q3_{tag}")
        for j in range(6):
            for rt in range(nrt): e(f"ds_read_b128 {v(Q(rt,j),4)}, v{QOA} offset:{(j*7+rt)*1024}")
        e(f"s_cmp_lg_u32 s{sSLOT}, 1")
        e(f"s_cbranch_scc1 t0_w_{tag}")
        if nrt == 1:
            for j in range(6): e(f"ds_read_b128 {v(Q(1,j),4)}, v{QOA} offset:{T1R-6144+j*1024}")
            for n in range(18): e(f"ds_read_b128 {v(HOLD[n],4)}, v{QOA} offset:{T1R+n*1024}")
        e(f"s_branch t0_noo_{tag}")
        g.label(f"t0_q3_{tag}")
        e(f"s_cmp_eq_u32 s{sSLOT}, 5")
        e(f"s_cbranch_scc1 t0_w_{tag}")
        if nrt == 1:
            for i in range(24): e(f"v_mov_b32 v{Q(0,0)+i}, v{Q(1,0)+i}")
        else:
            e(f"v_add_u32 v{TC}, {B2}, v{QOA}")
            for j in range(6):
                for rt in range(nrt):
                    if j < 3: e(f"ds_read_b128 {v(Q(rt,j),4)}, v{TC} offset:{(j*6+rt)*1024}")
                    else: e(f"ds_read_b128 {v(Q(rt,j),4)}, v{QOA} offset:{(j*7+rt)*1024}")
        g.label(f"t0_w_{tag}")
        e("s_waitcnt lgkmcnt(0)")
        for j in range(6):
            for rt in range(nrt): e(f"ds_write_b128 v{QOA}, {v(STG(rt,j),4)} offset:{(j*7+rt)*1024}")
        e(f"s_cmp_eq_u32 s{sSLOT}, 5")
        e(f"s_cbranch_scc1 t0_exit_{tag}")
        g.label(f"t0_noo_{tag}")
        for f in range(LEAD):
            for x in rd_l(0, f): x()
        step("a0_", 0, mf_qk(0, True), extra={1: lambda: e("s_barrier")})
        for rt in range(nrt):
            rowmax(0, rt, T[0], T[1])
            for i in range(4): e(f"v_sub_f32 v{NEGM(rt)+i}, 0, v{T[0]}")
            for i in range(8): e(f"v_sub_f32 v{S(0,rt)+i}, v{S(0,rt)+i}, v{T[0]}")
        for t in range(15):
            step(f"q{t}_", 2 * t + 1, mf_qk((t + 1) & 1, False), valu=sm(t & 1, H if t else 0) + chk_l(t & 1))
            chk_branch(t & 1, f"q{t}")
            va = sm((t + 1) & 1, 0, H)
            if t == 14: va = sm(1) + chk_l(1)
            step(f"p{t}_", 2 * t + 2, mf_pv(t & 1, t == 0), valu=va, v0=1)
        chk_branch(1, "q15")
        rc = [f"v_rcp_f32 v{T[i]}, v{LSUM(i//2)}" for i in range(2 * nrt)]
        ex = {3: lambda: [e(x) for x in rc]}
        for j in range(4): ex[4 + 2 * j] = lambda j=j: [e(x) for x in onorm_l(j)]
        step("p15_", 31, mf_pv(1, False, True), last=True, extra=ex)
        for x in onorm_l(4) + onorm_l(5): e(x)
        if nrt == 1:
            e(f"s_cmp_lg_u32 s{sSLOT}, 3")
            e("s_cbranch_scc1 t0_nohold")
            e(f"v_subrev_u32 v{TC}, 6144, v{QOA}")
            for n in range(18): e(f"ds_write_b128 v{TC}, {v(HOLD[n],4)} offset:{((3+n//6)*7+n%6)*1024}")
            e("s_waitcnt lgkmcnt(0)")
            g.label("t0_nohold")
        e(f"""
s_add_u32 s{sSLOT}, s{sSLOT}, 1
s_branch t0_unit_{tag}
""")
        if unit >= 1: g.mute -= 1
    g.label(f"t0_exit_{tag}")
    e("s_branch t0_final")
    for par in range(2):
        g.label(f"t0_rare{par}_{tag}")
        for rt in range(nrt):
            t, t2 = TC, T[0]
            rowmax(par, rt, t, t2)
            e(f"v_max_f32 v{t}, 0, v{t}")
            for i in range(4): e(f"v_sub_f32 v{NEGM(rt)+i}, v{NEGM(rt)+i}, v{t}")
            for pp in range(2):
                for i in range(8): e(f"v_sub_f32 v{S(pp,rt)+i}, v{S(pp,rt)+i}, v{t}")
            e(f"v_exp_f32 v{t}, -v{t}")
            for i in range(4): e(f"v_mul_f32 v{LSUM(rt)+i}, v{LSUM(rt)+i}, v{t}")
            for i in range(48): e(f"v_mul_f32 v{ACC(rt,0)+i}, v{ACC(rt,0)+i}, v{t}")
        for x in sm(par): e(x)
        e(f"s_setpc_b64 s[{sRET}:{sRET+1}]")
    return g.rec


def t0_final(p, needs):
    g = Gen(p, needs); e = g.e
    g.label("t0_final")
    op = OpEngine(g, lambda tt: 2 * (tt - 42), 56, 112, 128, [244, 245], 246, [247, 248], KVB, sLW, 2)
    op.fl = OPT["wo5"]; op.early = OPT["early"] >> 1
    op.addr_setup()
    e(f"""
s_mul_i32 s{sOB}, s{sW4}, {8*1280}
s_add_u32 s{sOB}, s{sOB}, {3*245760}
s_lshl_b32 s{sLW}, s{sW4}, 11
s_mov_b32 s{sSLO}, 0x01000c0c
s_mov_b32 s{sSHI}, 0x03020c0c
s_lshl_b32 s{sT1}, s{sW4}, 10
s_add_u32 s{sT1}, s{sT1}, {KVB + 32768}
v_add_u32 v249, s{sT1}, v246
""")
    for i in range(18, 22):
        for f in op.dma(i): f()
    def pk_read(ps):
        for rt in range(7): g.ld("pk", f"ds_read_b128 {v(op.PK(ps*14+rt*2),4)}, v249 offset:{rt*4096}")
    e("s_waitcnt lgkmcnt(0)"); g.lq[:] = []
    e("s_barrier")
    pk_read(3)
    e("s_waitcnt lgkmcnt(0)"); g.lq[:] = []
    for k in range(14):
        for x in op.unpack_l(op.AC(k), op.PK(42 + k)): e(x)
    g.wait("vm", "in", ["O18"])
    e("s_barrier")
    op.first_reads(18)
    def tick(i):
        op.flush_pq()
        g.wait("vm", f"t{i}", [f"O{i+1}"])
        e("s_barrier")
        if i + 4 < 30:
            for f in op.dma(i + 4): f()
    for i in range(18, 30):
        op.step("f", i, 29, tick, store=[3], hooks={5: lambda: pk_read(4)} if i == 20 else None)
    op.finish()
    for i in range(5): e("s_barrier")
    e("s_branch k1_final")
    return g.rec

def t1_path(p, needs):
    g = Gen(p, needs); e = g.e
    def PK(tt): return 2 * tt
    def Q2(k): return PK(56) + 2 * k if k < 14 else 236 + 2 * (k - 14)
    OB = 252
    op = OpEngine(g, PK, 140, 196, 212, [250, 251], OB, [253, 254], T1R, sLW, 0)
    AC, AF, BF = op.AC, op.AF, op.BF
    def dma_sub(u):
        a, bb = divmod(u, 3)
        srd = sKd if kv_kind(a) == "K" else sVd
        def f():
            e(f"s_add_u32 m0, s{sL1}, {KVB + (u % NS) * 4096 - bb * 128}")
            e(f"s_add_u32 s{sT1}, s{sKSO2}, {kv_tile(a) * TILE}")
            off = f"offset:{bb*128} " if bb else ""
            g.vm(f"U{u % 96}", f"buffer_load_dwordx4 v{PKV_}, s[{srd}:{srd+3}], s{sT1} offen {off}{OPT['kv']} lds")
        return f
    st = dict(pub=0, iss=0)
    def kv_tags(k):
        upto = XB_[k + 1] if k < NX - 1 else 384
        n = -(-(upto + LEAD) // 4) if upto < 384 else 96
        tags = [f"U{u}" for u in range(st["pub"], n)]
        st["pub"] = max(st["pub"], n)
        return tags
    def kv_issue(k):
        out = []
        while k in KVT and 4 * (st["iss"] - KL) + 4 <= XB_[k]:
            out.append(dma_sub(st["iss"])); st["iss"] += 1
        return out
    def touch_o(t):
        nsh = 16 if OPT["map"] == 0 else 8
        per = 245760 // (4 * nsh)
        e(f"""
s_and_b32 s{sT1}, s{sB}, {nsh-1}
s_lshl_b32 s{sT1}, s{sT1}, 2
s_add_u32 s{sT1}, s{sT1}, s{sW4}
s_mul_i32 s{sT1}, s{sT1}, {per}
s_sub_u32 s{sT2}, s{sSLOT}, 1
s_mul_i32 s{sT2}, s{sT2}, 245760
s_add_u32 s{sT1}, s{sT1}, s{sT2}
s_mov_b32 m0, {SPARE}
v_lshrrev_b32 v{t}, 4, v{OB}
v_min_u32 v{t}, {per//128-1}, v{t}
v_lshlrev_b32 v{t}, 7, v{t}
""")
        g.vm("pf", f"buffer_load_dword v{t}, s[{sOd}:{sOd+3}], s{sT1} offen {OPT['tf']} lds")
    NEXT = {26: 2, 27: 3, 28: 0, 29: 1}
    def tick(i):
        waits = ([f"O{i+1}"] if i < 29 else []) + kv_tags(i)
        op.flush_pq()
        if waits: g.wait("vm", f"o{i}", waits)
        if OPT["vcap"]: e(f"s_waitcnt vmcnt({OPT['vcap']})")
        e("s_barrier")
        io = []
        if not OPT["burst"]:
            if i == 26: io.append(lambda: e(f"s_add_u32 s{sOB}, s{sOB}, 245760"))
            io += op.dma(NEXT.get(i, i + 4))
        elif i % 2 == 1:
            if i == 27: io.append(lambda: e(f"s_add_u32 s{sOB}, s{sOB}, 245760"))
            io += op.dma(NEXT.get(i - 1, i + 3)) + op.dma(NEXT.get(i, i + 4))
        items = kv_issue(i) + io if OPT["kvfirst"] and i < 28 else io + kv_issue(i)
        if OPT["near"] and i == OPT["near"]: items.append(lambda: touch_o(AF(i + 1, 0) if False else 249))
        for f in items[:OPT["now0"]]: f()
        items = items[OPT["now0"]:]
        for j, f in enumerate(items): op.pq.append((op.clock + OPT["vpost"] + (j * OPT["span"]) // len(items), f))
    def q_write(reg):
        for rt in range(7):
            for k in range(3): e(f"ds_write_b64 v{AC(0)+k}, {v(reg(rt,k),2)} offset:{QO+rt*1024}")
        e("s_waitcnt lgkmcnt(0)")
    def q_addr():
        t = AC(1)
        e(f"v_lshrrev_b32 v{t}, 5, v{OB}")
        e(f"v_and_b32 v{t}, 8, v{t}")
        e(f"v_add_u32 v{t}, v{t}, v{OB}")
        for k in range(3):
            e(f"""
s_mul_i32 s{sT1}, s{sW4}, 3
s_add_u32 s{sT1}, s{sT1}, {k}
s_lshr_b32 s{sT2}, s{sT1}, 1
s_mul_i32 s{sT2}, s{sT2}, 7168
s_and_b32 s{sT1}, s{sT1}, 1
s_lshl_b32 s{sT1}, s{sT1}, 3
v_xor_b32 v{AC(0)+k}, s{sT1}, v{t}
v_add_u32 v{AC(0)+k}, s{sT2}, v{AC(0)+k}
""")

    e(f"""
s_mul_i32 s{sOB}, s{sW4}, {8*1280}
s_lshl_b32 s{sLW}, s{sW4}, 11
s_lshl_b32 s{sL1}, s{sW4}, 10
s_mov_b32 s{sSLOT}, 1
s_mov_b32 s{sRX}, 0x01000c0c
s_mov_b32 s{sRX+1}, 0x03020c0c
""")
    for u in range(N0 - 96):
        g.vq.append(f"U{u}"); g.issued[f"U{u}"] = 1
    st.update(pub=0, iss=N0 - 96)
    g.wait("vm", "i_t0", kv_tags(-1))
    e("s_barrier")
    stamp_slot(e)
    e("s_barrier")
    for rt in range(7):
        for k in range(3): e(f"ds_write_b64 v{QW[k]}, {v(QAC(0,rt,k),2)} offset:{QO+rt*1024}")
    def setup():
        e("s_waitcnt lgkmcnt(0)")
        for k in range(21):
            for x in range(2): e(f"v_mov_b32 v{2*k+x}, v{QAC(1,k//3,k%3)+x}")
        for k in range(21):
            for x in range(2): e(f"v_mov_b32 v{Q2(k)+x}, v{2*k+x}")
    def setup0():
        e("s_waitcnt lgkmcnt(0)")
        op.addr_setup()
        setup()
    task = {0: setup0}
    if OPT["touch"]: task[4] = lambda: touch_o(AF(0, 0))
    for k in range(NX):
        w = kv_tags(k)
        if w: g.wait("vm", f"i{k}", w)
        e("s_barrier")
        for f in kv_issue(k): f()
        if k in task: task[k]()
        if k >= 26:
            for f in op.dma(NEXT[k]): f()
    for s in range(2, 5):
        if s != 2: g.mute += 1
        g.label("t1_slot")
        assert st["iss"] == N0
        st.update(pub=0, iss=N0 - 96)
        e(f"""
s_add_u32 s{sSLOT}, s{sSLOT}, 1
s_add_u32 s{sKSO2}, s{sKSO2}, 196608
s_cmp_eq_u32 s{sSLOT}, 2
s_cselect_b32 s{sSLO}, 0x0c0c0c0c, s{sRX}
s_cselect_b32 s{sSHI}, 0x0c0c0c0c, s{sRX+1}
""")
        g.wait("vm", "t0", kv_tags(-1))
        e("s_barrier")
        if not g.mute: stamp_slot(e)
        if OPT["touch"] and not OPT["near"]: touch_o(AF(0, 0))
        for k in range(14):
            for x in op.unpack_l(AC(k), PK(k)): e(x)
        g.wait("vm", "o_in", ["O0"])
        e("s_barrier")
        stamp_if(e, 12, OPT["ps"])
        op.first_reads(0)
        for i in range(30): op.step("m", i, 29, tick)
        stamp_if(e, 13, OPT["ps"])
        tick(29)
        op.finish()
        e(f"s_cmp_lg_u32 s{sSLOT}, 2")
        e("s_cbranch_scc1 t1_noq2")
        for k in range(3): e(f"v_mov_b32 v{BF(0)+k}, v{AC(0)+k}")
        e(f"v_mov_b32 v{BF(0)+3}, v{AC(1)}")
        q_addr()
        q_write(lambda rt, k: Q2(rt * 3 + k))
        for k in range(3): e(f"v_mov_b32 v{AC(0)+k}, v{BF(0)+k}")
        e(f"v_mov_b32 v{AC(1)}, v{BF(0)+3}")
        g.label("t1_noq2")
        for n in range(14):
            for x in op.pack_l(PK(56 + n), AC(n)): e(x)
        e(f"s_cmp_lg_u32 s{sSLOT}, 4")
        e("s_cbranch_scc1 t1_slot")
        if s != 2: g.mute -= 1
    g.label("t1_last")
    op.fl = OPT["wo5"]; op.nr = OPT["r5"]; op.early = OPT["early"] & 1
    R5 = op.nr
    e(f"""
s_mov_b32 s{sSLOT}, 5
s_lshl_b32 s{sT1}, s{sW4}, 10
s_add_u32 s{sT1}, s{sT1}, {KVB + 32768}
v_add_u32 v249, s{sT1}, v{OB}
""")
    def pk_write(ps):
        for rt in range(7): g.ld("pk", f"ds_write_b128 v249, {v(PK(ps*14+rt*2),4)} offset:{rt*4096}")
    for k in range(14):
        for x in op.unpack_l(AC(k), PK(k)): e(x)
    e("s_waitcnt vmcnt(0)"); g.vq[:] = []
    e("s_barrier")
    stamp_slot(e)
    for i in range(4, R5):
        for f in op.dma(i): f()
    pk_write(3)
    e("s_waitcnt lgkmcnt(0)"); g.lq[:] = []
    e("s_barrier")
    stamp_if(e, 12, OPT["ps"])
    g.issued.pop("O0")
    op.first_reads(0)
    def tick5(i):
        op.flush_pq()
        if i == 2: g.wait("lg", "pkw", ["pk"])
        g.wait("vm", f"f{i}", [f"O{i+1}"])
        e("s_barrier")
        if i + R5 < 18:
            for f in op.dma(i + R5): f()
    g.issued.pop("pk")
    for i in range(18):
        op.step("f", i, 17, tick5, store=[0], hooks={5: lambda: pk_write(4)} if i == 1 else None)
    op.finish()
    stamp_if(e, 13, OPT["ps"])
    g.label("t1_exit")
    return g.rec

def final_reduce(p):
    e = p
    sG, sMASK, sQ, sBL = 4, 5, 6, 7
    sD, sA, sOUT = 8, 32, 36
    e.label("k1_final")
    if OPT["two"]:
        if OPT["prof"]: e("s_waitcnt vmcnt(0)")
        stamp(e, 10); stamp(e, 11, real=True)
        dump_stamps(e, 28, 64 << 20, 8)
        return
    e(f"""
s_waitcnt vmcnt(0)
s_barrier
""")
    stamp(e, 9, real=bool(OPT["rt"]))
    e(f"""
s_and_b32 s{sG}, s2, 7
s_cmp_lt_u32 s{sG}, 4
s_cselect_b32 s{sG}, 0, 16
s_add_u32 s{sG}, s{sG}, s{sB}
v_mbcnt_lo_u32_b32 v2, -1, 0
v_mbcnt_hi_u32_b32 v2, -1, v2
s_cmp_gt_u32 s{sWAVE}, 1
s_cbranch_scc1 k1_fw
s_mov_b32 s{sD}, s26
s_mov_b32 s{sD+1}, s27
s_mov_b32 s{sD+2}, 256
s_mov_b32 s{sD+3}, 0x20000
s_lshl_b32 s{sT1}, s{sG}, 2
v_mov_b32 v3, 0
v_mov_b32 v4, 1
s_cmp_eq_u32 s{sWAVE}, 0
s_cbranch_scc1 k1_w0
s_mov_b64 exec, 1
buffer_atomic_add v4, v3, s[{sD}:{sD+3}], s{sT1} offen offset:128 sc0 sc1
s_waitcnt vmcnt(0)
v_readfirstlane_b32 s{sT2}, v4
s_and_b32 s{sT3}, s{sT2}, 0xff
s_lshr_b32 s{sT2}, s{sT2}, 8
s_cmp_eq_u32 s{sT3}, 7
s_cselect_b32 s{sT2}, s{sT2}, 0
v_mov_b32 v4, s{sT2}
ds_write_b32 v3, v4 offset:4
s_waitcnt lgkmcnt(0)
s_mov_b64 exec, -1
s_branch k1_fw
k1_w0:
s_lshl_b32 s{sMASK}, 1, s{sQUAD}
s_lshl_b32 s{sT2}, s{sG}, 10
s_add_u32 s{sT2}, s{sT2}, {FLAG0}
s_add_u32 s{sA}, s28, s{sT2}
s_addc_u32 s{sA+1}, s29, 0
s_mov_b32 s{sA+2}, 1024
s_mov_b32 s{sA+3}, 0x20000
s_lshl_b32 s{sT2}, s{sQUAD}, 7
s_mov_b64 exec, 1
buffer_store_dword v4, v3, s[{sA}:{sA+3}], s{sT2} offen sc1
s_mov_b64 exec, 0xff
v_lshlrev_b32 v5, 7, v2
s_mov_b32 s{sCTR}, 0
k1_poll:
buffer_load_dword v6, v3, s[{sD}:{sD+3}], s{sT1} offen sc1
buffer_load_dword v4, v5, s[{sA}:{sA+3}], 0 offen sc1
s_waitcnt vmcnt(1)
v_cmp_ne_u32 vcc, 8, v6
s_cbranch_vccnz k1_again
k1_poll2:
s_waitcnt vmcnt(0)
v_cmp_ne_u32 vcc, 1, v4
s_cbranch_vccz k1_go
s_add_u32 s{sCTR}, s{sCTR}, 1
s_cmp_lt_u32 s{sCTR}, {OPT['spin']}
s_cbranch_scc0 k1_late
buffer_load_dword v4, v5, s[{sA}:{sA+3}], 0 offen sc1
s_branch k1_poll2
k1_again:
s_waitcnt vmcnt(0)
s_add_u32 s{sCTR}, s{sCTR}, 1
s_cmp_lt_u32 s{sCTR}, {OPT['spin']}
s_cbranch_scc1 k1_poll
k1_late:
s_mov_b64 exec, 1
s_lshl_b32 s{sT2}, s{sMASK}, 8
v_mov_b32 v4, s{sT2}
buffer_atomic_or v4, v3, s[{sD}:{sD+3}], s{sT1} offen offset:128 sc0 sc1
s_waitcnt vmcnt(0)
v_readfirstlane_b32 s{sT2}, v4
s_and_b32 s{sT2}, s{sT2}, 0xff
s_cmp_eq_u32 s{sT2}, 8
s_cselect_b32 s{sMASK}, s{sMASK}, 0
k1_go:
s_mov_b64 exec, 1
v_mov_b32 v4, s{sMASK}
ds_write_b32 v3, v4
s_waitcnt lgkmcnt(0)
s_mov_b64 exec, -1
k1_fw:
s_mul_i32 s{sT1}, s{sG}, {8*PART_CU}
s_add_u32 s{sT1}, s{sT1}, {PART0}
s_add_u32 s{sA}, s28, s{sT1}
s_addc_u32 s{sA+1}, s29, 0
s_mov_b32 s{sA+2}, {8*PART_CU}
s_mov_b32 s{sA+3}, 0x20000
s_mul_i32 s{sT1}, s{sB}, {112*2560}
s_lshr_b32 s{sT2}, s{sG}, 4
s_mul_i32 s{sT2}, s{sT2}, 1280
s_add_u32 s{sT1}, s{sT1}, s{sT2}
s_add_u32 s{sOUT}, s24, s{sT1}
s_addc_u32 s{sOUT+1}, s25, 0
s_sub_u32 s{sOUT+2}, {112*2560}, s{sT2}
s_mov_b32 s{sOUT+3}, 0x20000
v_lshlrev_b32 v3, 4, v2
v_and_b32 v4, 15, v2
v_lshrrev_b32 v5, 4, v2
v_mul_u32_u24 v6, 272, v4
v_lshl_add_u32 v6, v5, 3, v6
s_mul_i32 s{sT2}, s{sTEAM}, {3*4352}
s_add_u32 s{sT2}, s{sT2}, 2048
s_lshl_b32 s{sT1}, s{sW4}, 6
s_add_u32 s{sT1}, s{sT1}, s{sT2}
v_add_u32 v6, s{sT1}, v6
s_mul_i32 s{sT1}, s{sW4}, {4*272}
s_add_u32 s{sT1}, s{sT1}, s{sT2}
v_mul_u32_u24 v7, 272, v5
v_lshl_add_u32 v7, v4, 4, v7
v_add_u32 v7, s{sT1}, v7
v_mul_u32_u24 v5, 2560, v5
v_lshl_add_u32 v4, v4, 4, v5
v_mov_b32 v5, 0
s_barrier
ds_read_b64 v[8:9], v5
s_waitcnt lgkmcnt(0)
v_or_b32 v5, v8, v9
v_readfirstlane_b32 s{sMASK}, v5
""")
    stamp(e, 8, real=bool(OPT["rt"]))
    e(f"""
k1_slice:
s_cmp_eq_u32 s{sMASK}, 0
s_cbranch_scc1 k1_done
s_ff1_i32_b32 s{sQ}, s{sMASK}
s_bitset0_b32 s{sMASK}, s{sQ}
s_lshl_b32 s{sBL}, s{sTEAM}, 3
s_add_u32 s{sBL}, s{sBL}, s{sQ}
""")
    for k in range(3):
        e(f"""
s_add_u32 s{sT1}, s{sBL}, {16*k}
s_mul_i32 s{sT2}, s{sW4}, 35
s_add_u32 s{sT2}, s{sT2}, s{sT1}
s_lshl_b32 s{sT2}, s{sT2}, 10
s_cmp_lt_u32 s{sT1}, 35
s_cselect_b32 s{sT2}, s{sT2}, {8*PART_CU}
""")
        for q in range(8):
            r = 8 + 32 * k + 4 * q
            e(f"buffer_load_dwordx4 {v(r,4)}, v3, s[{sA}:{sA+3}], s{sT2} offen {OPT['rd']}")
            if q < 7: e(f"s_add_u32 s{sT2}, s{sT2}, {PART_CU}")
        e(f"""
s_mul_i32 s{sT2}, s{sT1}, 37
s_lshr_b32 s{sT2}, s{sT2}, 8
s_mul_i32 s{sT3}, s{sT2}, 7
s_sub_u32 s{sT3}, s{sT1}, s{sT3}
s_lshl_b32 s{sT2}, s{sT2}, 8
s_mul_i32 s{sT3}, s{sT3}, {16*2560}
s_add_u32 s{sT2}, s{sT2}, s{sT3}
s_mul_i32 s{sT3}, s{sW4}, {4*2560}
s_add_u32 s{sT2}, s{sT2}, s{sT3}
s_cmp_lt_u32 s{sT1}, 35
s_cselect_b32 s{12+k}, s{sT2}, 0x1000000
""")
    for k in range(3):
        for q in range(8):
            e(f"s_waitcnt vmcnt({23-8*k-q})")
            if OPT["fs"] and (k, q) in ((0, 0), (0, 7), (2, 7)): stamp(e, {(0, 0): 12, (0, 7): 13, (2, 7): 14}[(k, q)], real=True)
            for i in range(4):
                r = 8 + 32 * k + 4 * q + i
                if q == 0:
                    e(f"v_lshlrev_b32 v{104+2*i}, 16, v{r}")
                    e(f"v_and_b32 v{105+2*i}, 0xffff0000, v{r}")
                else:
                    e(f"v_lshlrev_b32 v112, 16, v{r}")
                    e(f"v_and_b32 v113, 0xffff0000, v{r}")
                    e(f"v_add_f32 v{104+2*i}, v{104+2*i}, v112")
                    e(f"v_add_f32 v{105+2*i}, v{105+2*i}, v113")
        for i in range(4): e(f"v_cvt_pk_bf16_f32 v{116+4*k+i}, v{104+2*i}, v{105+2*i}")
        e(f"ds_write_b64 v6, {v(116+4*k,2)} offset:{k*4352}")
        e(f"ds_write_b64 v6, {v(118+4*k,2)} offset:{k*4352+32}")
    e("s_waitcnt lgkmcnt(0)")
    e("s_barrier")
    if OPT["fs"]: stamp(e, 15, real=True)
    for k in range(3): e(f"ds_read_b128 {v(128+4*k,4)}, v7 offset:{k*4352}")
    for k in range(3):
        e(f"s_waitcnt lgkmcnt({2-k})")
        e(f"buffer_store_dwordx4 {v(128+4*k,4)}, v4, s[{sOUT}:{sOUT+3}], s{12+k} offen")
    e("""
s_barrier
s_branch k1_slice
k1_done:
""")
    if OPT["prof"]: e("s_waitcnt vmcnt(0)")
    stamp(e, 10); stamp(e, 11, real=True)
    dump_stamps(e, 28, 64 << 20, 8)

def build(needs):
    p = Prog()
    p(f"""
.globl {NAME}_kernel
.p2align 8
.type {NAME}_kernel,@function
{NAME}_kernel:
s_cmp_ge_u32 s2, 256
s_cbranch_scc1 k1_end
s_load_dwordx16 s[4:19], s[0:1], 0
s_load_dwordx8 s[20:27], s[0:1], 64
s_load_dwordx2 s[28:29], s[0:1], 96
v_lshrrev_b32 v1, 6, v0
v_and_b32 v2, 63, v0
v_readfirstlane_b32 s{sWAVE}, v1
s_and_b32 s{sT1}, s2, 7
s_lshr_b32 s{sT2}, s2, 3
""")
    if OPT["map"] == 0:
        p(f"""
s_and_b32 s{sQUAD}, s{sT1}, 3
s_lshl_b32 s{sQUAD}, s{sQUAD}, 1
s_and_b32 s{sB}, s{sT2}, 1
s_add_u32 s{sQUAD}, s{sQUAD}, s{sB}
s_lshr_b32 s{sB}, s{sT2}, 1
""")
    else:
        p(f"""
s_and_b32 s{sQUAD}, s{sT1}, 1
s_lshl_b32 s{sQUAD}, s{sQUAD}, 2
s_and_b32 s{sB}, s{sT2}, 3
s_add_u32 s{sQUAD}, s{sQUAD}, s{sB}
s_and_b32 s{sB}, s{sT1}, 2
s_lshl_b32 s{sB}, s{sB}, 2
s_lshr_b32 s{sT2}, s{sT2}, 2
s_add_u32 s{sB}, s{sB}, s{sT2}
""")
    p(f"""
s_and_b32 s{sW4}, s{sWAVE}, 3
s_lshr_b32 s{sTEAM}, s{sWAVE}, 2
s_mul_i32 s{sLW}, s{sW4}, 3072
s_mov_b32 s{sKd+2}, {0 if OPT['nokv'] else 786432}
s_mov_b32 s{sKd+3}, 0x20000
s_mov_b32 s{sVd+2}, {0 if OPT['nokv'] else 786432}
s_mov_b32 s{sVd+3}, 0x20000
s_mov_b32 s{sWd+3}, 0x20000
s_mov_b32 s{sOd+2}, {0 if OPT['now'] else 983040}
s_mov_b32 s{sOd+3}, 0x20000
s_mov_b32 s{sXd+2}, {0 if OPT['nox'] else 143360}
s_mov_b32 s{sXd+3}, 0x20000
s_mov_b32 s{sPd+2}, {35840+QO}
s_mov_b32 s{sPd+3}, 0x20000
s_waitcnt lgkmcnt(0)
s_cmp_lt_u32 s{sT1}, 4
s_cselect_b64 s[4:5], s[4:5], s[14:15]
s_cselect_b64 s[6:7], s[6:7], s[16:17]
s_cselect_b64 s[8:9], s[8:9], s[18:19]
s_cselect_b64 s[10:11], s[10:11], s[20:21]
s_cselect_b64 s[12:13], s[12:13], s[22:23]
s_cselect_b32 s{sT3}, 0, 16
s_mul_i32 s{sT2}, s{sB}, 143360
s_add_u32 s{sXd}, s4, s{sT2}
s_addc_u32 s{sXd+1}, s5, 0
s_mul_i32 s{sT2}, s{sQUAD}, 1536
s_add_u32 s{sWd}, s10, s{sT2}
s_addc_u32 s{sWd+1}, s11, 0
s_sub_u32 s{sWd+2}, 7864320, s{sT2}
{'s_mov_b32 s%d, 0' % (sWd+2) if OPT['now'] else ''}
s_lshl_b32 s{sT1}, s{sB}, 3
s_add_u32 s{sT1}, s{sT1}, s{sQUAD}
s_mul_i32 s{sT2}, s{sT1}, 786432
s_add_u32 s{sKd}, s6, s{sT2}
s_addc_u32 s{sKd+1}, s7, 0
s_add_u32 s{sVd}, s8, s{sT2}
s_addc_u32 s{sVd+1}, s9, 0
s_mul_i32 s{sT2}, s{sQUAD}, 983040
s_add_u32 s{sOd}, s12, s{sT2}
s_addc_u32 s{sOd+1}, s13, 0
s_lshl_b32 s{sT3}, s{sT3}, 3
s_add_u32 s{sT1}, s{sT1}, s{sT3}
s_mul_i32 s{sT1}, s{sT1}, {PART_CU}
s_mul_i32 s{sT2}, s{sW4}, 35840
s_add_u32 s{sT1}, s{sT1}, s{sT2}
s_add_u32 s{sT1}, s{sT1}, {PART0-QO}
s_add_u32 s{sPd}, s28, s{sT1}
s_addc_u32 s{sPd+1}, s29, 0
""")
    stamp(p, 0); stamp(p, 1, real=True)
    p(f"""
s_cmp_lg_u32 s{sWAVE}, 0
s_cbranch_scc1 k1_noclr
s_and_b32 s{sT1}, s2, 7
s_cmp_lt_u32 s{sT1}, 4
s_cselect_b32 s{sT1}, 0, 16
s_add_u32 s{sGRP}, s{sT1}, s{sB}
s_lshl_b32 s{sT1}, s{sGRP}, 3
s_add_u32 s{sT1}, s{sT1}, s{sQUAD}
s_lshl_b32 s{sT1}, s{sT1}, 7
s_add_u32 s{sT1}, s{sT1}, {FLAG0}
s_add_u32 s4, s28, s{sT1}
s_addc_u32 s5, s29, 0
s_mov_b32 s6, 128
s_mov_b32 s7, 0x20000
v_mov_b32 v1, 0
s_mov_b64 exec, 1
buffer_store_dword v1, v1, s[4:7], 0 offen sc1
s_mov_b64 exec, -1
k1_noclr:
""")
    if OPT["cpf"]:
        p(f"""
s_cmp_lg_u32 s{sWAVE}, 7
s_cbranch_scc1 k1_nocpf
s_getpc_b64 s[4:5]
s_mov_b32 s6, k1_end-k1_nocpf
s_mov_b32 s7, 0x20000
s_lshr_b32 s{sT1}, s2, 3
s_and_b32 s{sT1}, s{sT1}, 31
s_lshl_b32 s{sT1}, s{sT1}, 7
v_and_b32 v1, 31, v0
v_lshlrev_b32 v1, 12, v1
buffer_load_dword v254, v1, s[4:7], s{sT1} offen
k1_nocpf:
""")
    rec = {}
    rec["qp"] = qp_phase(p, needs.get("qp", {}))
    p(f"""
s_cmp_ge_u32 s{sWAVE}, 4
s_cbranch_scc1 k1_t1
""")
    if OPT["prio0"]: p(f"s_setprio {OPT['prio0']}")
    p(f"""
s_cmp_eq_u32 s{sWAVE}, 3
s_cbranch_scc1 k1_light
""")
    rec["h"] = t0_path(p, needs.get("h", {}), 2, "h")
    p.label("k1_light")
    rec["l"] = t0_path(p, needs.get("l", {}), 1, "l")
    rec["f"] = t0_final(p, needs.get("f", {}))
    p.label("k1_t1")
    if OPT["not1"]: p("s_endpgm")
    if OPT["prio1"]: p(f"s_setprio {OPT['prio1']}")
    rec["t1"] = t1_path(p, needs.get("t1", {}))
    final_reduce(p)
    p("""
k1_end:
s_endpgm
""")
    return p, rec

def reduce_kernel():
    p = Prog()
    p(f"""
.globl reduce_kernel
.p2align 8
.type reduce_kernel,@function
reduce_kernel:
s_cmp_ge_u32 s2, 1120
s_cbranch_scc1 k2_end
s_load_dwordx2 s[8:9], s[0:1], 80
s_load_dwordx2 s[10:11], s[0:1], 96
v_lshrrev_b32 v1, 6, v0
v_and_b32 v2, 63, v0
v_readfirstlane_b32 s3, v1
s_mul_i32 s5, s2, 1873
s_lshr_b32 s5, s5, 16
s_mul_i32 s6, s5, 35
s_sub_u32 s22, s2, s6
s_mul_i32 s6, s3, 35
s_add_u32 s6, s6, s22
s_mul_i32 s7, s5, {8*PART_CU}
s_add_u32 s7, s7, {PART0}
s_lshl_b32 s20, s6, 10
v_lshlrev_b32 v3, 4, v2
s_mov_b32 s14, {8*PART_CU}
s_mov_b32 s15, 0x20000
s_waitcnt lgkmcnt(0)
s_add_u32 s12, s10, s7
s_addc_u32 s13, s11, 0
""")
    for q in range(8):
        p(f"buffer_load_dwordx4 v[{8+4*q}:{11+4*q}], v3, s[12:15], s20 offen {OPT['rd']}")
        if q < 7: p(f"s_add_u32 s20, s20, {PART_CU}")
    p(f"""
s_and_b32 s23, s5, 15
s_mul_i32 s23, s23, {112*2560}
s_lshr_b32 s24, s5, 4
s_mul_i32 s24, s24, 1280
s_add_u32 s23, s23, s24
s_mov_b32 s16, s8
s_mov_b32 s17, s9
s_mov_b32 s18, {16*112*2560}
s_mov_b32 s19, 0x20000
s_mul_i32 s26, s22, 37
s_lshr_b32 s26, s26, 8
s_mul_i32 s27, s26, 7
s_sub_u32 s27, s22, s27
s_lshl_b32 s30, s26, 8
s_mul_i32 s28, s27, {16*2560}
s_add_u32 s30, s30, s28
s_mul_i32 s28, s3, {4*2560}
s_add_u32 s30, s30, s28
s_add_u32 s32, s30, s23
v_and_b32 v4, 15, v2
v_lshrrev_b32 v5, 4, v2
v_mul_u32_u24 v6, 272, v4
v_lshl_add_u32 v6, v5, 3, v6
s_lshl_b32 s28, s3, 6
v_add_u32 v6, s28, v6
s_mul_i32 s28, s3, {4*272}
v_mul_u32_u24 v7, 272, v5
v_lshl_add_u32 v7, v4, 4, v7
v_add_u32 v7, s28, v7
v_mul_u32_u24 v5, 2560, v5
v_lshl_add_u32 v4, v4, 4, v5
""")
    for q in range(8):
        p(f"s_waitcnt vmcnt({7-q})")
        for i in range(4):
            r = 8 + 4 * q + i
            if q == 0:
                p(f"v_lshlrev_b32 v{40+2*i}, 16, v{r}")
                p(f"v_and_b32 v{41+2*i}, 0xffff0000, v{r}")
            else:
                p(f"v_lshlrev_b32 v48, 16, v{r}")
                p(f"v_and_b32 v49, 0xffff0000, v{r}")
                p(f"v_add_f32 v{40+2*i}, v{40+2*i}, v48")
                p(f"v_add_f32 v{41+2*i}, v{41+2*i}, v49")
    for i in range(4): p(f"v_cvt_pk_bf16_f32 v{52+i}, v{40+2*i}, v{41+2*i}")
    p("""
ds_write_b64 v6, v[52:53]
ds_write_b64 v6, v[54:55] offset:32
s_waitcnt lgkmcnt(0)
s_barrier
ds_read_b128 v[52:55], v7
s_waitcnt lgkmcnt(0)
buffer_store_dwordx4 v[52:55], v4, s[16:19], s32 offen
k2_end:
s_endpgm
""")
    return p

def desc(name, vg):
    return f""".amdhsa_kernel {name}
  .amdhsa_next_free_vgpr {vg}
  .amdhsa_next_free_sgpr 102
  .amdhsa_accum_offset {vg}
  .amdhsa_group_segment_fixed_size 0
  .amdhsa_kernarg_size 104
  .amdhsa_user_sgpr_count 2
  .amdhsa_user_sgpr_kernarg_segment_ptr 1
  .amdhsa_system_sgpr_workgroup_id_x 1
.end_amdhsa_kernel
"""

def main():
    for t in range(1120): assert (t * 1873) >> 16 == t // 35
    for t in range(140): assert (t * 235) >> 13 == t // 35
    for t in range(35): assert (t * 37) >> 8 == t // 7
    _, rec = build({})
    for it in range(4):
        a, rec2 = build(rec)
        if rec2 == rec: break
        rec = rec2
    else: raise SystemExit("no fixpoint")
    b = reduce_kernel()
    if OPT["novm"]: a.L[:] = [l for l in a.L if not l.startswith("buffer_load")]
    if OPT["nobar"]: a.L[:] = [l for l in a.L if not l.startswith("s_barrier")]
    if OPT["nolg"]:
        out_ = []
        for i_, l in enumerate(a.L):
            if l.startswith("s_waitcnt lgkmcnt") and not a.L[i_-1].startswith(("s_mem", "s_load")) and i_ > 60: continue
            out_.append(l)
        a.L[:] = out_
    if OPT["nord"]: a.L[:] = [l for l in a.L if not l.startswith("ds_read")]
    if OPT["noexp"]: a.L[:] = [l.replace("v_exp_f32", "v_mov_b32") if l.startswith("v_exp_f32") and "-v" not in l else l for l in a.L]
    if OPT["nosm"]: a.L[:] = [l for l in a.L if not l.startswith(("v_exp_f32", "v_cvt_pk"))]
    if OPT["nochk"]: a.L[:] = [l for l in a.L if not l.startswith(("v_or3", "v_or_b32", "v_cmp_ne", "s_cbranch_vccz", "v_and_b32 v252"))]
    if OPT["prof"] == 2:
        out_ = []; L_ = a.L; inrole = False; i_ = 0
        while i_ < len(L_):
            l = L_[i_]
            if l.startswith(("t0_unit", "t1_slot")): inrole = True
            if l.startswith(("t0_exit", "t1_exit")): inrole = False
            if inrole and l == "s_barrier":
                j = len(out_)
                while j > 0 and (out_[j-1].startswith(("s_waitcnt vmcnt", "s_cmp_eq_u32 s55, 5", "s_cbranch_scc1 t1_wa")) or out_[j-1].startswith("t1_wa")): j -= 1
                blk = out_[j:]; del out_[j:]
                out_ += ["s_memtime s[4:5]"] + blk + ["s_memtime s[6:7]", "s_barrier", "s_memtime s[8:9]", "s_waitcnt lgkmcnt(0)",
                         "s_sub_u32 s4, s6, s4", "s_add_u32 s94, s94, s4", "s_sub_u32 s6, s8, s6", "s_add_u32 s95, s95, s6"]
            elif inrole and l.startswith("buffer_load") and l.endswith("lds"):
                out_ += ["s_memtime s[4:5]", l, "s_memtime s[6:7]", "s_waitcnt lgkmcnt(0)", "s_sub_u32 s4, s6, s4", "s_add_u32 s89, s89, s4"] if OPT["pv"] else [l]
            elif l.startswith(("k1_light:", "k1_t1:")) or l.startswith("s_cbranch_scc1 k1_light"):
                out_ += [l, "s_mov_b32 s94, 0", "s_mov_b32 s95, 0", "s_mov_b32 s89, 0"]
            else: out_.append(l)
            i_ += 1
        a.L[:] = out_
    if OPT["prof"] == 4:
        out_ = []; inrole = False; idx = 0
        L_ = [l for l in a.L if not (l.startswith(("s_cselect_b32 s8", "s_cselect_b32 s9")) or (l.startswith(("s_mov_b32 s8", "s_mov_b32 s9")) and "s100" in l))]
        def st_(k):
            return ["s_memtime s[100:101]", "s_waitcnt lgkmcnt(0)", f"s_cmp_eq_u32 s{sSLOT}, {OPT['ps']}", f"s_cselect_b32 s{80+k}, s100, s{80+k}"] if 0 <= k < 16 else []
        for i_, l in enumerate(L_):
            if l.startswith(("t0_unit", "t1_slot")): inrole = True; idx = 0
            if l.startswith(("t0_exit", "t1_last")): inrole = False
            k = (idx - OPT["pb"]) * 4
            if inrole and l == "s_barrier":
                x = out_.pop() if out_[-1].startswith("s_waitcnt vmcnt") else None
                out_ += st_(k - 2) + ([x] if x else []) + st_(k - 1) + [l] + st_(k); idx += 1
            elif inrole and l.startswith("buffer_load") and l.endswith("lds"):
                nxt = next(y for y in L_[i_+1:] if y == "s_barrier" or (y.startswith("buffer_load") and y.endswith("lds")))
                out_ += [l] + (st_(k - 3) if nxt == "s_barrier" else [])
            else: out_.append(l)
        a.L[:] = out_
    if OPT["prof"] == 3:
        out_ = []; inrole = False; idx = 0
        for l in a.L:
            if l.startswith(("t0_unit", "t1_slot")): inrole = True; idx = 0
            if l.startswith(("t0_exit", "t1_exit")) or l.startswith("s_cbranch_scc1 t1_slot"): inrole = False
            if l.startswith("s_cselect_b32 s8") or l.startswith("s_cselect_b32 s9") or l.startswith("s_mov_b32 s9") and "s100" in l: continue
            if inrole and l == "s_barrier":
                k = idx - OPT["pb"]; idx += 1
                st_ = ["s_memtime s[100:101]", "s_waitcnt lgkmcnt(0)", f"s_cmp_eq_u32 s{sSLOT}, {OPT['ps']}", f"s_cselect_b32 s{80+k}, s100, s{80+k}"] if 0 <= k < 16 else []
                out_ += (st_ + [l]) if OPT["pa"] else ([l] + st_)
            else: out_.append(l)
        a.L[:] = out_
    if OPT["nomfq"] or OPT["nomf1"] or OPT["nomf0"]:
        out_ = []; sec = "q"
        for l in a.L:
            if l.startswith("t0_unit"): sec = "0"
            if l.startswith("k1_t1:"): sec = "1"
            if l.startswith("v_mfma") and OPT["nomf" + sec]: continue
            out_.append(l)
        a.L[:] = out_
    if OPT["xa"]:
        out_ = []; sec = "q"; cnt = 0
        for l in a.L:
            if l.startswith("t0_unit_h"): sec = "h"
            if l.startswith("t0_unit_l"): sec = "l"
            if l.startswith("t0_final"): sec = "f"
            if l.startswith("k1_t1:"): sec = "1"
            if OPT["xa"] == 1 and sec in "hl" and l.startswith("v_mfma") and "v[208:211]" in l: continue
            if OPT["xa"] == 2 and sec == "l" and l.startswith(("v_mfma", "ds_read")): continue
            if OPT["xa"] == 3 and sec == "1" and l.startswith("ds_read_b128"): continue
            if OPT["xa"] == 4 and sec in "hl" and l.startswith("ds_read"):
                continue
            out_.append(l)
        a.L[:] = out_
    if OPT["vwin"]:
        out_ = []; on = False
        for l in a.L:
            if l.startswith("k1_t1:") and OPT["vw1"]: on = True
            if l.startswith("t1_slot:"): on = True
            if l.startswith("t1_last:"): on = False
            if on and l.startswith("buffer_load") and l.endswith("lds"): out_.append(f"s_waitcnt vmcnt({OPT['vwin']-1})")
            out_.append(l)
        a.L[:] = out_
    if OPT["dynp"]:
        out_ = []; int1 = False
        for l in a.L:
            if l.startswith("k1_t1:"): int1 = True
            if int1 and l.startswith("buffer_load") and l.endswith("lds"):
                out_ += [f"s_setprio {OPT['dynp']}", l, f"s_setprio {OPT['prio1']}"]
            else: out_.append(l)
        a.L[:] = out_
    n1 = fix_hazards(a.L); n2 = fix_hazards(b.L)
    print("nops inserted", n1, n2, "instrs", len(a.L), len(b.L), file=sys.stderr)
    hdr = open("cdna_kernels/" + NAME + ".s.ref").read().split("; Override launch")[0]
    out = hdr
    if OPT["two"]:
        out += f"; @launch kernel={NAME}_kernel grid=(256,1,1) block=(512,1,1) lds={LDS_BYTES}\n"
        out += "; @launch kernel=reduce_kernel grid=(1120,1,1) block=(256,1,1) lds=4352\n"
    else:
        out += f"; @launch grid=(256,1,1) block=(512,1,1) lds={LDS_BYTES}\n"
    out += '.amdgcn_target "amdgcn-amd-amdhsa--gfx950"\n.text\n'
    out += a.text() + (b.text() if OPT["two"] else "")
    out += '.section .rodata,"a"\n.p2align 6\n' + desc(NAME + "_kernel", 256)
    if OPT["two"]: out += ".p2align 6\n" + desc("reduce_kernel", 56)
    open(sys.argv[1], "w").write(out)
    import subprocess
    r = subprocess.run(["clang", "-x", "assembler", "-target", "amdgcn-amd-amdhsa", "-mcpu=gfx950", "-c", sys.argv[1], "-o", "chk.o"], capture_output=True, text=True)
    if r.returncode: print("ASSEMBLY FAILED", r.stderr[:600])
main()
```

```python
import sys, math, struct, copy
sys.path.insert(0, "work")
from asmlib import *

NAME = "concat_heads__mha_block_cached__gqa_block_cached__near_ridge"
OPT = dict(kv="nt", w="", x="", wo="", st="sc1", rd="sc1", prof=0, prio0=0, prio1=0, touch=1, nox=0, now=0, nokv=0, nomf=0,
           novm=0, lead=4, bp="6.16.26.36.42", map=0, hack="", t1b=0, ps=5, kdel=0, x0=4, xt=0, dynp=0, nopark=0, gap=0, span=4, pa=0, pb=0, m=2, nlat=0, nonar=0, bar=3, qd=5, rt=0, tf="", tq="", pwo=0, tlb=0, spin=40000, vcap=0, vpost=0, now0=9, xa=0, burst=0, kpar=0, pwh=1, near=0, vwin=9, cpf=1, fs=0, r5=6, early=3, qv=0, two=0, vw1=1, wo5="", nomfq=0, nomf1=0, nomf0=0, pwf="", kvfirst=1, w2=1, psplit=1, nb1=8, nb2=29, kl=16, tl=4, kvat=18, qst="sc1", noq=0, noqst=0, pv=0, nobar=0, nolg=0, nord=0, norare=0, not1=0, noexp=0, nochk=0, nosm=0)
for a in sys.argv[2:]:
    k, val = a.split("=")
    OPT[k] = int(val) if val.lstrip("-").isdigit() else (val if k in ("bp", "hack") else val.replace("+", " ").replace("-", ""))
TILE = 12288
QO = 0
T1R = 43008
B2 = T1R + 32768
KVB = B2 + 18432
NS = 16
SPARE = KVB + NS * 4096
LDS_BYTES = SPARE + 2048
QPARK = 48 << 20
FLAG0 = 0
PART0 = 1 << 20
PART_CU = 4 * 35 * 1024
LEAD = OPT["lead"]
NX = 30
XB_ = [OPT["x0"] + 4 * ((k * 96) // NX) for k in range(NX)]
def f2u(f): return struct.unpack("<I", struct.pack("<f", f))[0]

sKd, sVd, sWd, sOd, sXd, sPd, sQd = 32, 36, 40, 44, 48, 76, 24
sWAVE, sB, sQUAD, sSLOT, sCTR, sW4 = 52, 53, 54, 55, 57, 56
sT1, sT2, sT3 = 62, 63, 61
sKSO, sVSO, sLW = 58, 59, 60
sWB, sOB, sXB, sXM, sSTR, sXF = 58, 59, 70, 71, 72, 73
sC, sBIT = 66, 68
sRET = 30
sGRP = 3
sTEAM, sWB2, sKSO2, sL1, sSLO, sSHI = 74, 75, 65, 64, 69, 72
PKV_ = 255
sRX, sRY, sRZ, sSP = 14, 17, 20, 23

def stamp(e, k, real=False):
    if not OPT["prof"]: return
    e(f"s_mem{'real' if real else ''}time s[100:101]")
    e("s_waitcnt lgkmcnt(0)")
    e(f"s_mov_b32 s{80+k}, s100")
def stamp_slot(e):
    if not OPT["prof"]: return
    e("s_memrealtime s[100:101]" if OPT["rt"] else "s_memtime s[100:101]")
    e("s_waitcnt lgkmcnt(0)")
    for k in range(0, 7):
        e(f"s_cmp_eq_u32 s{sSLOT}, {k}")
        e(f"s_cselect_b32 s{82+k}, s100, s{82+k}")
def stamp_if(e, k, slot):
    if not OPT["prof"]: return
    e("s_memtime s[100:101]")
    e("s_waitcnt lgkmcnt(0)")
    e(f"s_cmp_eq_u32 s{sSLOT}, {slot}")
    e(f"s_cselect_b32 s{80+k}, s100, s{80+k}")
def dump_stamps(e, wsreg, base, nw):
    if not OPT["prof"]: return
    e(f"""
s_mul_i32 s100, s2, {nw}
s_add_u32 s100, s100, s{sWAVE}
s_lshl_b32 s100, s100, 6
s_add_u32 s100, s100, {base}
s_add_u32 s96, s{wsreg}, s100
s_addc_u32 s97, s{wsreg+1}, 0
s_mov_b32 s98, 64
s_mov_b32 s99, 0x20000
v_mov_b32 v1, 0
""")
    for k in range(16):
        e(f"v_mov_b32 v0, s{80+k}")
        e(f"buffer_store_dword v0, v1, s[96:99], 0 offen offset:{k*4}")
    e("s_waitcnt vmcnt(0)")

class Gen:
    def __init__(self, prog, needs):
        self.p = prog; self.needs = needs; self.rec = {}
        self.mute = 0
        self.vq = []; self.lq = []; self.pend = []; self.issued = {}
        self.nosim = 0
    def e(self, s):
        if not self.mute: self.p(s)
    def label(self, n):
        if not self.mute: self.p.label(n)
    def wait(self, kind, key, tags, drain_tags=()):
        q = self.vq if kind == "vm" else self.lq
        for t in tags:
            assert self.issued.pop(t, 0) > 0, (t, key)
        tags = list(tags) + list(drain_tags)
        idx = [i for i, t in enumerate(q) if t in tags]
        n = len(q) - 1 - max(idx) if idx else 999
        if n != 999: n = min(n, 63 if kind == "vm" else 15)
        k = (kind, key)
        self.rec[k] = min(self.rec.get(k, 999), n)
        val = self.needs.get(k, n)
        if val == 999: return
        self.e(f"s_waitcnt {'vmcnt' if kind == 'vm' else 'lgkmcnt'}({val})")
        del q[:len(q) - val if val < len(q) else 0]
    def wait_alt(self, key, tags, alt, cmp_txt, lab):
        q = self.vq
        for t in tags: assert self.issued.pop(t, 0) > 0, (t, key)
        idx = [i for i, t in enumerate(q) if t in tags]
        n = min(len(q) - 1 - max(idx), 63) if idx else 999
        k = ("vm", key, alt)
        self.rec[k] = min(self.rec.get(k, 999), n)
        va, vb = self.needs.get(("vm", key, False), 0), self.needs.get(("vm", key, True), 0)
        if vb != 999 and vb > va: self.e(f"s_waitcnt vmcnt({vb})")
        if vb > va:
            self.e(cmp_txt); self.e(f"s_cbranch_scc1 {lab}")
        val = min(va, vb) if not (alt and vb > va) else vb
        if min(va, vb) != 999: self.e(f"s_waitcnt vmcnt({min(va, vb)})")
        if vb > va: self.label(lab)
        if val != 999: del q[:len(q) - val if val < len(q) else 0]
    def vm(self, tag, text):
        self.e(text); self.vq.append(tag); self.issued[tag] = self.issued.get(tag, 0) + 1
    def ld(self, tag, text):
        self.e(text); self.lq.append(tag); self.issued[tag] = self.issued.get(tag, 0) + 1
    def drain(self, n=1):
        for _ in range(n):
            if self.pend: self.pend.pop(0)()
    def optional(self, taken, fn):
        if taken: fn()
        elif not self.mute:
            st = (list(self.vq), list(self.lq), dict(self.issued))
            fn()
            self.vq[:], self.lq[:] = st[0], st[1]; self.issued = st[2]

def mfma(e, d, a, b, c):
    if not OPT["nomf"]:
        e(f"v_mfma_f32_16x16x32_bf16 {v(d,4)}, {v(a,4)}, {v(b,4)}, {c if c == '0' else v(c,4)}")


KL = OPT["kl"]
KVT = [k for k in range(NX) if not OPT['burst'] or k % 2 == OPT['kpar']]
N0 = max(u for u in range(300) if 4 * (u - KL) + 4 <= XB_[KVT[-1]]) + 1
def lane_regs(e, b=2):
    e(f"""
v_mbcnt_lo_u32_b32 v{b}, -1, 0
v_mbcnt_hi_u32_b32 v{b}, -1, v{b}
v_and_b32 v{b+1}, 15, v{b}
v_lshrrev_b32 v{b+2}, 4, v{b}
v_lshrrev_b32 v{b+3}, 2, v{b}
v_and_b32 v{b+4}, 3, v{b+3}
v_and_b32 v{b+5}, 3, v{b}
v_lshrrev_b32 v{b+6}, 3, v{b}
v_and_b32 v{b+7}, 7, v{b}
""")
def kv_kind(a):
    a %= 32
    return "K" if (a == 0 or (a % 2 == 1 and a < 31)) else "V"
def kv_tile(a):
    u, a = divmod(a, 32)
    return u * 16 + (0 if a == 0 else 15 if a == 31 else (a + 1) // 2 if a % 2 == 1 else (a - 2) // 2)
def QAC(hh, rt, k): return ((hh * 7 + rt) * 3 + k) * 4
QW = [248, 249, 250]


class OpEngine:
    def __init__(self, g, PK, AC0, AF0, BF0, RA, OB, PO, ring, sM0, ringoff):
        self.g, self.e = g, g.e
        self.PK, self.AC0, self.AF0, self.BF0, self.RA, self.OB, self.PO = PK, AC0, AF0, BF0, RA, OB, PO
        self.ring, self.sM0, self.ro = ring, sM0, ringoff
        self.dq = []; self.pq = []; self.clock = 0; self.fl = OPT['wo']; self.nr = 4; self.early = 0
    def AC(self, k): return self.AC0 + 4 * k
    def AF(self, s, i): return self.AF0 + 8 * (s & 1) + 4 * i
    def BF(self, n): return self.BF0 + 4 * (n % 6)
    def slot(self, i): return ((i + self.ro) % self.nr) * 8192
    def addr_setup(self):
        e = self.e
        lane_regs(e, 232)
        L = 232
        e(f"""
v_lshlrev_b32 v{self.OB}, 4, v{L}
v_lshlrev_b32 v{L+8}, 1, v{L+2}
v_xor_b32 v{L+8}, v{L+1}, v{L+8}
v_lshlrev_b32 v{L+8}, 4, v{L+8}
v_mul_u32_u24 v{L+9}, 1280, v{L+2}
v_add_u32 v{self.PO[0]}, v{L+8}, v{L+9}
v_xor_b32 v{L+8}, 128, v{L+8}
v_add_u32 v{L+8}, v{L+8}, v{L+9}
v_add_u32 v{self.PO[1]}, 4096, v{L+8}
s_lshl_b32 s{sT1}, s{sW4}, 1
v_and_b32 v{L+8}, 7, v{L+3}
v_xor_b32 v{L+8}, s{sT1}, v{L+8}
v_lshlrev_b32 v{L+8}, 5, v{L+8}
v_lshl_add_u32 v{L+8}, v{L+3}, 8, v{L+8}
v_lshl_add_u32 v{L+8}, v{L+5}, 3, v{L+8}
v_add_u32 v{self.RA[0]}, {self.ring}, v{L+8}
v_xor_b32 v{self.RA[1]}, 32, v{self.RA[0]}
""")
    def dma(self, i):
        ps, j = divmod(i, 6)
        out = []
        for q in range(2):
            def f(q=q):
                if q == 0:
                    self.e(f"s_add_u32 m0, s{self.sM0}, {self.ring+self.slot(i)}")
                    self.e(f"s_add_u32 s{sT2}, s{sOB}, {j*32*1280+ps*256}")
                o = "offset:1024 " if q else ""
                self.g.vm(f"O{i}", f"buffer_load_dwordx4 v{self.PO[q]}, s[{sOd}:{sOd+3}], s{sT2} offen {o}{self.fl} lds")
            out.append(f)
        return out
    def defer(self, at, ins):
        for x in ins: self.dq.append((at, x))
    def run_dq(self, n):
        while n > 0 and self.dq and self.dq[0][0] <= self.clock:
            x = self.dq.pop(0)[1]
            if callable(x): x()
            else: self.e(x)
            n -= 1
    def flush_pq(self):
        while self.pq: self.pq.pop(0)[1]()
    def a_read(self, i, n):
        k, hf = divmod(n, 2)
        self.g.ld(f"o{i}a{k}", f"ds_read_b64_tr_b16 {v(self.AF(i,k)+2*hf,2)}, v{self.RA[k]} offset:{self.slot(i)+hf*4096}")
    def b_read(self, b):
        i, rt = divmod(b, 7)
        self.g.ld(f"o{i}b{rt}", f"ds_read_b128 {v(self.BF(b),4)}, v{self.OB} offset:{QO+(i%6*7+rt)*1024}")
    def first_reads(self, i):
        self.a_read(i, 0); self.a_read(i, 1); self.b_read(7 * i); self.a_read(i, 2); self.a_read(i, 3)
        for n in range(1, 6): self.b_read(7 * i + n)
    def unpack_l(self, dst, src):
        return [f"v_perm_b32 v{dst+x}, v{src+x//2}, v{src+x//2}, s{sSHI if x & 1 else sSLO}" for x in range(4)]
    def pack_l(self, dst, src):
        return [f"v_cvt_pk_bf16_f32 v{dst}, v{src}, v{src+1}", f"v_cvt_pk_bf16_f32 v{dst+1}, v{src+2}, v{src+3}"]
    def store_l(self, ps, rt):
        o = (ps * 7 + rt) * 1024
        return [f"s_mov_b32 s{sT3}, {o - o % 4096}",
                lambda: self.g.vm("st", f"buffer_store_dwordx4 {v(self.PK(ps*14+rt*2),4)}, v{self.OB}, s[{sPd}:{sPd+3}], s{sT3} offen offset:{o%4096} {OPT['st']}")]
    def step(self, key, i, last, tick, store=False, hooks=None):
        g, e = self.g, self.e
        ps, j = divmod(i, 6)
        BAR = OPT["bar"]
        c0 = self.clock
        if store and not self.early and i >= last - 3 and i < last:
            todo = [(q, rt) for q in range(store[0], ps) for rt in range(7)]
            k = i - (last - 3)
            mine = todo[k * len(todo) // 3:(k + 1) * len(todo) // 3]
            for n, (q, rt) in enumerate(mine): self.defer(c0 + (6 if k == 0 else 0) + n * (8 if k == 0 else 14) // len(mine), self.store_l(q, rt))
        if j == 5 and (i < last or store):
            for n in range(14):
                ins = self.pack_l(self.PK(ps * 14 + n), self.AC(n))
                if i < last: ins += self.unpack_l(self.AC(n), self.PK((ps + 1) * 14 + n))
                if store and n % 2 == 1 and (i == last or self.early): ins += self.store_l(ps, n // 2)
                self.defer(c0 + n + 4, ins)
        for n in range(14):
            rt, k = divmod(n, 2)
            if n == BAR and i < last: tick(i)
            if hooks and n in hooks: hooks[n]()
            tags = ([f"o{i}b{rt}"] if k == 0 else []) + ([f"o{i}a{k}"] if rt == 0 else [])
            if tags: g.wait("lg", f"{key}{i}m{n}", tags)
            mfma(e, self.AC(n), self.AF(i, k), self.BF(7 * i + rt), self.AC(n))
            if k == 1 and 7 * i + rt + 6 < 7 * (last + 1): self.b_read(7 * i + rt + 6)
            if k == 0 and i < last and BAR < n <= BAR + 8: self.a_read(i + 1, (n - BAR - 1) // 2)
            while self.pq and self.pq[0][0] <= self.clock: self.pq.pop(0)[1]()
            self.clock += 1
            self.run_dq(7)
    def finish(self):
        self.flush_pq(); self.clock += 100; self.run_dq(1000)

def qp_phase(p, needs):
    g = Gen(p, needs); e = g.e
    AC = QAC
    def AF(par, hh, k): return 168 + par * 24 + (hh * 3 + k) * 4
    def BF(n): return 216 + 4 * (n % 4)
    RA = [[232, 233, 234], [235, 236, 237]]; XA = [238, 239]; PW = [243, 244, 245]; PX = 246
    JUNK = 247
    STG = [KVB, T1R]
    NB1, NB2 = OPT["nb1"], OPT["nb2"]
    QV = OPT["qv"]
    HEAD = {(0, 0): 0, (0, 1): 3, (1, 0): 1, (1, 1): 2}
    def dma_w(i, hh):
        out = []
        for tm in (range(2) if QV else [None]):
            for ii in range(3):
                def f(ii=ii, tm=tm):
                    if ii == 0:
                        if QV:
                            e(f"s_add_u32 m0, s{sLW}, {STG[i&1]+hh*2*TILE+tm*TILE}")
                            e(f"s_add_u32 s{sT1}, s{sWB}, {i*32*12288+HEAD[tm,hh]*384}")
                        else:
                            e(f"s_add_u32 m0, s{sLW}, {STG[i&1]+hh*2*TILE}")
                            e(f"s_add_u32 s{sT1}, s{sWB2 if hh else sWB}, {i*32*12288}")
                    o = f"offset:{ii*1024} " if ii else ""
                    g.vm(f"W{i}.{hh}", f"buffer_load_dwordx4 v{PW[ii]}, s[{sWd}:{sWd+3}], s{sT1} offen {o}{OPT['w']} lds")
                out.append(f)
        return out
    def dma_x(pp):
        out = []
        nq = 4 if QV else 2
        for q in range(nq):
            def f(q=q):
                if q < nq - 1: e(f"s_add_u32 m0, s{sXM}, {QO+(pp%3)*14336+q*16384//nq}")
                else:
                    e(f"s_add_u32 s{sT2}, s{sXM}, {QO+(pp%3)*14336+q*16384//nq}")
                    e(f"s_cmp_ge_u32 s{sWAVE}, 6")
                    e(f"s_cselect_b32 m0, s{sXF}, s{sT2}")
                e(f"s_add_u32 s{sT2}, s{sXB}, {pp*128+q*163840//nq}")
                g.vm(f"X{pp}", f"buffer_load_dwordx4 v{PX}, s[{sXd}:{sXd+3}], s{sT2} offen {OPT['x']} lds")
            out.append(f)
        return out
    nlab = [0]
    def issue(fs):
        if not QV:
            g.pend += fs; return
        if not fs: return
        nlab[0] += 1
        e(f"s_cmp_eq_u32 s{sTEAM}, 0")
        e(f"s_cbranch_scc1 qp_i{nlab[0]}")
        for f in fs: f()
        g.label(f"qp_i{nlab[0]}")
    def a_read(i, hh, n):
        k, hf = divmod(n, 2)
        g.ld(f"{i}a{hh}{k}", f"ds_read_b64_tr_b16 {v(AF(i&1,hh,k)+2*hf,2)}, v{RA[i&1][k]} offset:{hh*2*TILE+hf*1536}")
    def b_read(i, rt):
        g.ld(f"{i}b{rt}", f"ds_read_b128 {v(BF(7*i+rt),4)}, v{XA[i&1]} offset:{((i>>1)%3)*14336+rt*2048}")
    lane_regs(e)
    e(f"""
v_lshrrev_b32 v13, 1, v8
v_and_b32 v13, 3, v13
v_lshlrev_b32 v13, 1, v13
v_xor_b32 v13, v9, v13
v_lshlrev_b32 v13, 4, v13
v_mul_u32_u24 v14, 1280, v8
v_add_u32 v{PX}, v13, v14
v_mul_u32_u24 v14, 384, v8
v_add_u32 v{PKV_}, v13, v14
s_mul_i32 s{sXB}, s{sW4 if QV else sWAVE}, 10240
s_lshl_b32 s{sXM}, s{sW4 if QV else sWAVE}, 10
s_sub_u32 s{sXF}, s{sXM}, {2048 if QV else 6144}
s_add_u32 s{sXF}, s{sXF}, {SPARE}
""")
    issue(dma_x(0)); g.drain(9)
    e(f"""
s_and_b32 s{sT1}, s{sW4}, 1
s_lshl_b32 s{sT1}, s{sT1}, 2
v_xor_b32 v16, s{sT1}, v9
s_mul_i32 s{sWB}, s{sW4}, {8*12288}
s_mul_i32 s{sT1}, s{sTEAM}, {0 if QV else 384}
s_add_u32 s{sWB2}, s{sWB}, 1152
s_add_u32 s{sWB}, s{sWB}, s{sT1}
s_sub_u32 s{sWB2}, s{sWB2}, s{sT1}
s_mul_i32 s{sT1}, s{sTEAM}, {0 if QV else TILE}
s_add_u32 s{sLW}, s{sLW}, s{sT1}
""")
    for q in range(3):
        e(f"""
v_add_u32 v10, {8*q}, v8
v_mul_u32_u24 v11, 43, v10
v_lshrrev_b32 v11, 7, v11
v_mul_u32_u24 v12, 3, v11
v_sub_u32 v12, v10, v12
v_lshrrev_b32 v13, 1, v11
v_and_b32 v14, 1, v13
v_xor_b32 v14, v16, v14
v_lshlrev_b32 v14, 4, v14
v_lshl_add_u32 v14, v12, 7, v14
v_mul_u32_u24 v15, 12288, v11
v_add_u32 v14, v14, v15
v_subrev_u32 v{PW[q]}, {q*1024}, v14
""")
    issue(dma_w(0, 0) + dma_w(0, 1)); g.drain(9)
    if OPT["touch"]:
        nsh = 16 if OPT["map"] == 0 else 8
        rows = 640 // nsh // 8
        e(f"""
s_and_b32 s{sT1}, s{sB}, {nsh-1}
s_lshl_b32 s{sT1}, s{sT1}, 3
s_add_u32 s{sT1}, s{sT1}, s{sWAVE}
s_mul_i32 s{sT1}, s{sT1}, {rows*12288}
v_mul_u32_u24 v10, 43, v2
v_lshrrev_b32 v10, 9, v10
v_mul_u32_u24 v11, 12, v10
v_sub_u32 v11, v2, v11
v_mul_u32_u24 v10, 12288, v10
v_lshl_add_u32 v10, v11, 7, v10
""")
        for r in range(rows // 5):
            g.vm("pf", f"buffer_load_dword v{JUNK}, v10, s[{sWd}:{sWd+3}], s{sT1} offen {OPT['tq']}")
            e(f"s_add_u32 s{sT1}, s{sT1}, {5*12288}")
    if OPT["touch"] and OPT["xt"]:
        e(f"""
s_and_b32 s{sT1}, s{sQUAD}, 1
s_mul_i32 s{sT1}, s{sT1}, 71680
s_mul_i32 s{sT2}, s{sWAVE}, {70*128}
s_add_u32 s{sT1}, s{sT1}, s{sT2}
v_lshlrev_b32 v10, 7, v2
""")
        g.vm("pf", f"buffer_load_dword v{JUNK}, v10, s[{sXd}:{sXd+3}], s{sT1} offen")
        g.vm("pf", f"buffer_load_dword v{JUNK}, v10, s[{sXd}:{sXd+3}], s{sT1} offen offset:768")
    e(f"""
v_lshrrev_b32 v8, 1, v3
v_and_b32 v8, 3, v8
v_lshlrev_b32 v8, 1, v8
v_xor_b32 v8, v4, v8
v_lshlrev_b32 v8, 4, v8
v_lshl_add_u32 v9, v3, 7, v8
v_add_u32 v{XA[0]}, {QO}, v9
v_xor_b32 v{XA[1]}, 64, v{XA[0]}
v_lshl_add_u32 v8, v4, 3, v6
v_mul_u32_u24 v9, 384, v8
v_lshrrev_b32 v8, 1, v6
v_and_b32 v11, 1, v4
v_lshl_add_u32 v8, v11, 2, v8
v_xor_b32 v8, v7, v8
v_lshl_add_u32 v9, v8, 4, v9
v_lshlrev_b32 v12, 3, v11
v_lshl_add_u32 v12, v2, 4, v12
v_and_b32 v11, 1, v7
v_lshl_add_u32 v11, v11, 3, v9
s_mov_b32 s{sC}, {hex(f2u(192 ** -0.5 * math.log2(math.e)))}
s_mov_b32 s{sC+1}, s{sC}
""")
    for i in range(3):
        e(f"""
s_mul_i32 s{sT1}, s{sW4}, 3
s_add_u32 s{sT1}, s{sT1}, {i}
s_lshr_b32 s{sT2}, s{sT1}, 2
s_lshl_b32 s{sRY+i}, s{sT2}, 7
s_and_b32 s{sT3}, s{sT1}, 3
s_xor_b32 s{sT3}, s{sT3}, s{sW4}
s_lshl_b32 s{sRX+i}, s{sT3}, 5
s_and_b32 s{sT3}, s{sT1}, 2
s_lshl_b32 s{sT3}, s{sT3}, 5
s_and_b32 s{sT2}, s{sT1}, 1
s_lshl_b32 s{sT2}, s{sT2}, 3
v_xor_b32 v{QW[i]}, s{sT2}, v12
s_or_b32 s{sT3}, s{sT3}, s{sT2}
v_xor_b32 v13, s{sT3}, v11
s_lshr_b32 s{sT1}, s{sT1}, 1
s_mul_i32 s{sT1}, s{sT1}, 7168
v_add_u32 v{QW[i]}, s{sT1}, v{QW[i]}
s_mul_i32 s{sT1}, s{sTEAM}, {TILE}
s_add_u32 s{sT1}, s{sT1}, s{sRY+i}
v_add_u32 v13, s{sT1}, v13
v_add_u32 v{RA[1][i]}, {T1R}, v13
v_add_u32 v{RA[0][i]}, {KVB}, v13
""")
    g.wait("vm", "in", ["W0.0", "W0.1", "X0"])
    e("s_barrier")
    stamp(e, 14)
    e(f"""
s_cmp_lg_u32 s{sWAVE}, 0
s_cbranch_scc1 k1_nocnt
s_mov_b32 s4, s26
s_mov_b32 s5, s27
s_mov_b32 s6, 256
s_mov_b32 s7, 0x20000
s_lshl_b32 s{sT1}, s{sGRP}, 2
v_mov_b32 v252, 0
v_mov_b32 v253, 1
s_mov_b64 exec, 1
buffer_atomic_add v253, v252, s[4:7], s{sT1} offen sc1
s_mov_b64 exec, -1
k1_nocnt:
""")
    a_read(0, 0, 0); a_read(0, 0, 1); b_read(0, 0); b_read(0, 1)
    for n in range(2, 6): a_read(0, 0, n)
    for n in range(6): a_read(0, 1, n)
    for rt in range(2, 4): b_read(0, rt)
    issue(dma_w(1, 0) + dma_w(1, 1) + dma_x(1)); g.drain(9)
    ORD = [(rt, 0, k) for rt in (0, 1) for k in range(3)] + [(rt, 1, k) for rt in (0, 1) for k in range(3)]
    ORD += [(rt, hh, k) for rt in range(2, 7) for hh in range(2) for k in range(3)]
    lastb = {rt: max(n for n, x in enumerate(ORD) if x[0] == rt) for rt in range(7)}
    A0 = [NB1 + 2 + 3 * x for x in range(6)]
    A1 = [NB2 + 1 + 2 * x for x in range(6)]
    def qcvt(n):
        rt, hh, k = ORD[n]
        a = AC(hh, rt, k)
        e(f"v_pk_mul_f32 {v(a,2)}, {v(a,2)}, s[{sC}:{sC+1}]")
        e(f"v_pk_mul_f32 {v(a+2,2)}, {v(a+2,2)}, s[{sC}:{sC+1}]")
        e(f"v_cvt_pk_bf16_f32 v{a}, v{a}, v{a+1}")
        e(f"v_cvt_pk_bf16_f32 v{a+1}, v{a+2}, v{a+3}")
    lastd = [0]
    for i in range(20):
        seen = set()
        for n, (rt, hh, k) in enumerate(ORD):
            if n == NB1 and i < 19:
                g.drain(9); lastd[0] = n - 9
                g.wait("lg", f"r1{i}", [], drain_tags=[f"{i}a1{x}" for x in range(3)])
                g.wait("vm", f"s{i}", [f"W{i+1}.0"] + ([f"X{(i+1)//2}"] if i % 2 == 1 else []))
                e("s_barrier")
                issue(((dma_w(i + 2, 0) if i == 0 else []) + dma_w(i + 2, 1) if i + 2 < 20 else []) + (dma_x(i // 2 + 2) if i % 2 == 0 and i // 2 + 2 < 10 else []))
            if n == NB2 and i < 19:
                g.drain(9); lastd[0] = n - 9
                g.wait("lg", f"r2{i}", [], drain_tags=[f"{i+1}a0{x}" for x in range(3)])
                g.wait("vm", f"t{i}", [f"W{i+1}.1"])
                e("s_barrier")
                if i + 3 < 20: issue(dma_w(i + 3, 0))
            if OPT["pwo"] and n == 20 and i == OPT["pwo"]:
                nsh = 16 if OPT["map"] == 0 else 8
                per = 245760 * OPT["pwh"] // (8 * nsh)
                e(f"""
s_and_b32 s{sT3}, s{sB}, {nsh-1}
s_lshl_b32 s{sT3}, s{sT3}, 3
s_add_u32 s{sT3}, s{sT3}, s{sWAVE}
s_mul_i32 s{sT3}, s{sT3}, {per}
s_add_u32 s{sT3}, s{sT3}, {245760 * (4 - OPT["pwh"])}
v_mbcnt_lo_u32_b32 v251, -1, 0
v_mbcnt_hi_u32_b32 v251, -1, v251
v_min_u32 v251, {min(59, per // 128 - 1)}, v251
v_lshlrev_b32 v251, 7, v251
""")
                for r in range(max(1, per // 7680)):
                    g.vm("pf", f"buffer_load_dword v{JUNK}, v251, s[{sOd}:{sOd+3}], s{sT3} offen {OPT['pwf']}")
                    e(f"s_add_u32 s{sT3}, s{sT3}, 7680")
            if n == NB2 + 1 and i == 18:
                e(f"s_cmp_eq_u32 s{sTEAM}, 0")
                e("s_cbranch_scc1 qp_nokv")
                e(f"s_mul_i32 s{sKSO2}, s{sW4}, 3072")
                e(f"s_lshl_b32 s{sT3}, s{sW4}, 10")
                for u in range(N0 - 96):
                    a, bb = divmod(u, 3)
                    e(f"s_add_u32 m0, s{sT3}, {KVB + (u % NS) * 4096 - bb * 128}")
                    e(f"s_add_u32 s{sT1}, s{sKSO2}, {kv_tile(a) * TILE}")
                    srd = sKd if kv_kind(a) == "K" else sVd
                    e(f"buffer_load_dwordx4 v{PKV_}, s[{srd}:{srd+3}], s{sT1} offen offset:{bb*128} {OPT['kv']} lds")
                g.label("qp_nokv")
            tags = [t for t in (f"{i}b{rt}", f"{i}a{hh}{k}") if t not in seen]
            seen.update(tags)
            if tags: g.wait("lg", f"{i}m{n}", tags)
            mfma(e, AC(hh, rt, k), AF(i & 1, hh, k), BF(7 * i + rt), "0" if i == 0 else AC(hh, rt, k))
            if n == lastb[rt]:
                if rt + 4 < 7: b_read(i, rt + 4)
                elif i < 19: b_read(i + 1, rt - 3)
            if i < 19 and n in A0: a_read(i + 1, 0, A0.index(n))
            if i < 19 and n in A1: a_read(i + 1, 1, A1.index(n))
            if g.pend and (n - lastd[0]) % 42 >= (OPT["qd"] if len(g.pend) <= 3 else OPT["qd"] - 2):
                g.drain(1); lastd[0] = n
            if i == 19 and n >= 4: qcvt(n - 4)
    for n in range(38, 42): qcvt(n)
    stamp(e, 15)
    e("s_barrier")
    return g.rec

def t0_path(p, needs, nrt, tag):
    g = Gen(p, needs); e = g.e
    def ACC(rt, t): return rt * 48 + t * 4
    def Q(rt, j): return 96 + rt * 24 + j * 4
    def S(par, rt, kt=0): return 144 + par * 16 + rt * 8 + kt * 4
    def P(par, rt): return 176 + par * 8 + rt * 4
    def NEGM(rt): return 192 + rt * 4
    def LSUM(rt): return 200 + rt * 4
    def STG(rt, j): return 144 + (j * 2 + rt) * 4 if j < 5 else 192 + rt * 4
    ONES = 208
    FR0 = 212; NFR = 8
    def FR(a, f): return FR0 + ((a * 12 + f) % NFR) * 4
    KA = [244, 245]; VA = [246, 247, 248, 249]; QOA = 250
    TC = 251; T = [252, 253, 254, 255]
    HOLD = [48 + 4 * i for i in range(12)] + [156, 172, 180, 188, 196, 204]
    def rd_l(a, f):
        base = ((3 * a + f // 4) % NS) * 4096; tg = f"A{a%32}f{f}"
        if kv_kind(a) == "K":
            j, kt = divmod(f, 2)
            return [lambda: g.ld(tg, f"ds_read_b128 {v(FR(a,f),4)}, v{KA[j&1]} offset:{base+kt*2048}")]
        return [lambda hf=hf: g.ld(tg, f"ds_read_b64_tr_b16 {v(FR(a,f)+2*hf,2)}, v{VA[f&3]} offset:{base+hf*2048}") for hf in range(2)]
    def run(x):
        if callable(x): x()
        else: e(x)
    def cost(x): return 2 if isinstance(x, str) and x.startswith(("v_exp", "v_rcp")) else 1
    def step(key, a, mfs, valu=(), last=False, extra=None, v0=0):
        valu = list(valu)
        ngap = sum(len(mfs(f, 0)) for f in range(v0, 12))
        tot = sum(cost(x) for x in valu); done = 0; gap = 0
        for f in range(12):
            pos = a * 12 + f
            if extra and f in extra: extra[f]()
            if pos in XB_: e("s_barrier")
            reads = rd_l(a, f + LEAD) if f + LEAD < 12 else ([] if last else rd_l(a + 1, f + LEAD - 12))
            if not OPT["w2"]: g.wait("lg", f"{key}{f}", [f"A{a}f{f}"])
            elif f % 2 == 0: g.wait("lg", f"{key}{f}", [f"A{a}f{f}", f"A{a}f{f+1}"])
            ms = mfs(f, FR(a, f))
            for i, m in enumerate(ms):
                m()
                if reads: reads.pop(0)()
                if i == len(ms) - 1:
                    while reads: reads.pop(0)()
                if f >= v0:
                    gap += 1
                    while valu and done + cost(valu[0]) / 2 <= tot * gap / ngap:
                        done += cost(valu[0]); run(valu.pop(0))
        for x in valu: run(x)
    def mf_qk(par, zero):
        def m(f, fr):
            j, kt = divmod(f, 2)
            return [lambda rt=rt: mfma(e, S(par, rt, kt), fr, Q(rt, j), ("0" if zero else NEGM(rt)) if j == 0 else S(par, rt, kt)) for rt in range(nrt)]
        return m
    def onorm_l(j):
        out = []
        for rt in range(nrt):
            a = ACC(rt, 2 * j)
            out += [f"v_pk_mul_f32 {v(a+i,2)}, {v(a+i,2)}, {v(T[2*rt],2)}" for i in range(0, 8, 2)]
            out += [f"v_cvt_pk_bf16_f32 v{STG(rt,j)+i}, v{a+2*i}, v{a+2*i+1}" for i in range(4)]
        return out
    def mf_pv(par, first, last=False):
        def m(f, fr):
            out = []
            if f == (0 if last else 5):
                out += [lambda rt=rt: mfma(e, LSUM(rt), ONES, P(par, rt), "0" if first else LSUM(rt)) for rt in range(nrt)]
            return out + [lambda rt=rt: mfma(e, ACC(rt, f), fr, P(par, rt), "0" if first else ACC(rt, f)) for rt in range(nrt)]
        return m
    def sm(par, lo=0, hi=None):
        grp = [(rt, i) for rt in range(nrt) for i in range(4)][lo:hi]
        seq = []
        for n, (rt, i) in enumerate(grp):
            a, b = T[(2 * n) % 4], T[(2 * n + 1) % 4]
            r = S(par, rt) + 2 * i
            seq += [f"v_exp_f32 v{a}, v{r}", f"v_exp_f32 v{b}, v{r+1}"]
            if n > 0: seq.append(prev)
            prev = f"v_cvt_pk_bf16_f32 v{P(par,rt)+i}, v{a}, v{b}"
        return seq + [prev] if grp else []
    def chk_l(par):
        p0 = P(par, 0)
        out = [f"v_or3_b32 v{TC}, v{p0}, v{p0+1}, v{p0+2}"]
        if nrt == 2:
            out += [f"v_or3_b32 v{TC}, v{TC}, v{p0+3}, v{p0+4}", f"v_or3_b32 v{TC}, v{TC}, v{p0+5}, v{p0+6}"]
        out += [f"v_bitop3_b32 v{TC}, v{TC}, v{p0+4*nrt-1}, s{sBIT} bitop3:0xa8", f"v_cmp_ne_u32 vcc, 0, v{TC}"]
        return out
    def chk_branch(par, key):
        e(f"s_cbranch_vccz t0_ok{key}_{tag}")
        if not OPT["norare"]: e(f"s_call_b64 s[{sRET}:{sRET+1}], t0_rare{par}_{tag}")
        g.label(f"t0_ok{key}_{tag}")
    def rowmax(par, rt, t, t2):
        r = S(par, rt)
        e(f"""
v_max3_f32 v{t}, v{r}, v{r+1}, v{r+2}
v_max3_f32 v{t}, v{t}, v{r+3}, v{r+4}
v_max3_f32 v{t}, v{t}, v{r+5}, v{r+6}
v_max_f32 v{t}, v{t}, v{r+7}
v_mov_b32 v{t2}, v{t}
v_permlane32_swap_b32 v{t2}, v{t}
v_max_f32 v{t}, v{t}, v{t2}
v_mov_b32 v{t2}, v{t}
v_permlane16_swap_b32 v{t2}, v{t}
v_max_f32 v{t}, v{t}, v{t2}
v_add_f32 v{t}, {hex(f2u(7.0))}, v{t}
""")
    for rt in range(7):
        for k in range(3): e(f"ds_write_b64 v{QW[k]}, {v(QAC(0,rt,k),2)} offset:{QO+rt*1024}")
    for k in range(3):
        e(f"""
s_mul_i32 s{sT1}, s{sW4}, 3
s_add_u32 s{sT1}, s{sT1}, {k}
s_lshr_b32 s{sT1}, s{sT1}, 1
s_cmp_lt_u32 s{sT1}, 3
s_cselect_b32 s{sT3}, {B2 - (T1R + 6144 - 18432)}, 0
s_add_u32 s{sT3}, s{sT3}, {T1R + 6144 - 18432}
s_lshl_b32 s{sT2}, s{sT1}, 10
s_sub_u32 s{sT2}, s{sT3}, s{sT2}
v_add_u32 v{240+k}, s{sT2}, v{QW[k]}
s_mul_i32 s{sT2}, s{sT1}, 6144
s_sub_u32 s{sT2}, {T1R}, s{sT2}
v_add_u32 v{243+k}, s{sT2}, v{QW[k]}
""")
    for rt in range(7):
        for k in range(3): e(f"ds_write_b64 v{(240 if rt < 6 else 243)+k}, {v(QAC(1,rt,k),2)} offset:{rt*1024 if rt < 6 else 0}")
    e("s_waitcnt lgkmcnt(0)")
    lane_regs(e)
    e(f"""
s_lshl_b32 s{sT1}, s{sWAVE}, 11
s_add_u32 s{sT1}, s{sT1}, {QO}
v_lshl_add_u32 v{QOA}, v2, 4, s{sT1}
v_lshrrev_b32 v8, 1, v3
v_and_b32 v8, 3, v8
v_lshlrev_b32 v8, 1, v8
v_xor_b32 v8, v4, v8
v_lshlrev_b32 v8, 4, v8
v_lshl_add_u32 v8, v3, 7, v8
v_add_u32 v{KA[0]}, {KVB}, v8
v_xor_b32 v{KA[1]}, 64, v{KA[0]}
v_lshrrev_b32 v8, 1, v5
v_and_b32 v8, 3, v8
v_lshlrev_b32 v8, 5, v8
v_lshl_add_u32 v8, v5, 7, v8
v_lshl_add_u32 v8, v7, 3, v8
v_add_u32 v{VA[0]}, {KVB}, v8
v_xor_b32 v{VA[1]}, 32, v{VA[0]}
v_xor_b32 v{VA[2]}, 64, v{VA[0]}
v_xor_b32 v{VA[3]}, 96, v{VA[0]}
s_mov_b32 s{sBIT}, 0x40004000
s_mov_b32 s{sSLOT}, 1
""")
    for i in range(4): e(f"v_mov_b32 v{ONES+i}, 0x3f803f80")
    H = 4 if (nrt == 2 and OPT["psplit"]) else (2 if OPT["psplit"] else 0)
    for unit in range(2):
        if unit >= 1: g.mute += 1
        g.label(f"t0_unit_{tag}")
        e("s_barrier")
        if not g.mute: stamp_slot(e)
        e(f"s_cmp_gt_u32 s{sSLOT}, 3")
        e(f"s_cbranch_scc1 t0_q3_{tag}")
        for j in range(6):
            for rt in range(nrt): e(f"ds_read_b128 {v(Q(rt,j),4)}, v{QOA} offset:{(j*7+rt)*1024}")
        e(f"s_cmp_lg_u32 s{sSLOT}, 1")
        e(f"s_cbranch_scc1 t0_w_{tag}")
        if nrt == 1:
            for j in range(6): e(f"ds_read_b128 {v(Q(1,j),4)}, v{QOA} offset:{T1R-6144+j*1024}")
            for n in range(18): e(f"ds_read_b128 {v(HOLD[n],4)}, v{QOA} offset:{T1R+n*1024}")
        e(f"s_branch t0_noo_{tag}")
        g.label(f"t0_q3_{tag}")
        e(f"s_cmp_eq_u32 s{sSLOT}, 5")
        e(f"s_cbranch_scc1 t0_w_{tag}")
        if nrt == 1:
            for i in range(24): e(f"v_mov_b32 v{Q(0,0)+i}, v{Q(1,0)+i}")
        else:
            e(f"v_add_u32 v{TC}, {B2}, v{QOA}")
            for j in range(6):
                for rt in range(nrt):
                    if j < 3: e(f"ds_read_b128 {v(Q(rt,j),4)}, v{TC} offset:{(j*6+rt)*1024}")
                    else: e(f"ds_read_b128 {v(Q(rt,j),4)}, v{QOA} offset:{(j*7+rt)*1024}")
        g.label(f"t0_w_{tag}")
        e("s_waitcnt lgkmcnt(0)")
        for j in range(6):
            for rt in range(nrt): e(f"ds_write_b128 v{QOA}, {v(STG(rt,j),4)} offset:{(j*7+rt)*1024}")
        e(f"s_cmp_eq_u32 s{sSLOT}, 5")
        e(f"s_cbranch_scc1 t0_exit_{tag}")
        g.label(f"t0_noo_{tag}")
        for f in range(LEAD):
            for x in rd_l(0, f): x()
        step("a0_", 0, mf_qk(0, True), extra={1: lambda: e("s_barrier")})
        for rt in range(nrt):
            rowmax(0, rt, T[0], T[1])
            for i in range(4): e(f"v_sub_f32 v{NEGM(rt)+i}, 0, v{T[0]}")
            for i in range(8): e(f"v_sub_f32 v{S(0,rt)+i}, v{S(0,rt)+i}, v{T[0]}")
        for t in range(15):
            step(f"q{t}_", 2 * t + 1, mf_qk((t + 1) & 1, False), valu=sm(t & 1, H if t else 0) + chk_l(t & 1))
            chk_branch(t & 1, f"q{t}")
            va = sm((t + 1) & 1, 0, H)
            if t == 14: va = sm(1) + chk_l(1)
            step(f"p{t}_", 2 * t + 2, mf_pv(t & 1, t == 0), valu=va, v0=1)
        chk_branch(1, "q15")
        rc = [f"v_rcp_f32 v{T[i]}, v{LSUM(i//2)}" for i in range(2 * nrt)]
        ex = {3: lambda: [e(x) for x in rc]}
        for j in range(4): ex[4 + 2 * j] = lambda j=j: [e(x) for x in onorm_l(j)]
        step("p15_", 31, mf_pv(1, False, True), last=True, extra=ex)
        for x in onorm_l(4) + onorm_l(5): e(x)
        if nrt == 1:
            e(f"s_cmp_lg_u32 s{sSLOT}, 3")
            e("s_cbranch_scc1 t0_nohold")
            e(f"v_subrev_u32 v{TC}, 6144, v{QOA}")
            for n in range(18): e(f"ds_write_b128 v{TC}, {v(HOLD[n],4)} offset:{((3+n//6)*7+n%6)*1024}")
            e("s_waitcnt lgkmcnt(0)")
            g.label("t0_nohold")
        e(f"""
s_add_u32 s{sSLOT}, s{sSLOT}, 1
s_branch t0_unit_{tag}
""")
        if unit >= 1: g.mute -= 1
    g.label(f"t0_exit_{tag}")
    e("s_branch t0_final")
    for par in range(2):
        g.label(f"t0_rare{par}_{tag}")
        for rt in range(nrt):
            t, t2 = TC, T[0]
            rowmax(par, rt, t, t2)
            e(f"v_max_f32 v{t}, 0, v{t}")
            for i in range(4): e(f"v_sub_f32 v{NEGM(rt)+i}, v{NEGM(rt)+i}, v{t}")
            for pp in range(2):
                for i in range(8): e(f"v_sub_f32 v{S(pp,rt)+i}, v{S(pp,rt)+i}, v{t}")
            e(f"v_exp_f32 v{t}, -v{t}")
            for i in range(4): e(f"v_mul_f32 v{LSUM(rt)+i}, v{LSUM(rt)+i}, v{t}")
            for i in range(48): e(f"v_mul_f32 v{ACC(rt,0)+i}, v{ACC(rt,0)+i}, v{t}")
        for x in sm(par): e(x)
        e(f"s_setpc_b64 s[{sRET}:{sRET+1}]")
    return g.rec


def t0_final(p, needs):
    g = Gen(p, needs); e = g.e
    g.label("t0_final")
    op = OpEngine(g, lambda tt: 2 * (tt - 42), 56, 112, 128, [244, 245], 246, [247, 248], KVB, sLW, 2)
    op.fl = OPT["wo5"]; op.early = OPT["early"] >> 1
    op.addr_setup()
    e(f"""
s_mul_i32 s{sOB}, s{sW4}, {8*1280}
s_add_u32 s{sOB}, s{sOB}, {3*245760}
s_lshl_b32 s{sLW}, s{sW4}, 11
s_mov_b32 s{sSLO}, 0x01000c0c
s_mov_b32 s{sSHI}, 0x03020c0c
s_lshl_b32 s{sT1}, s{sW4}, 10
s_add_u32 s{sT1}, s{sT1}, {KVB + 32768}
v_add_u32 v249, s{sT1}, v246
""")
    for i in range(18, 22):
        for f in op.dma(i): f()
    def pk_read(ps):
        for rt in range(7): g.ld("pk", f"ds_read_b128 {v(op.PK(ps*14+rt*2),4)}, v249 offset:{rt*4096}")
    e("s_waitcnt lgkmcnt(0)"); g.lq[:] = []
    e("s_barrier")
    pk_read(3)
    e("s_waitcnt lgkmcnt(0)"); g.lq[:] = []
    for k in range(14):
        for x in op.unpack_l(op.AC(k), op.PK(42 + k)): e(x)
    g.wait("vm", "in", ["O18"])
    e("s_barrier")
    op.first_reads(18)
    def tick(i):
        op.flush_pq()
        g.wait("vm", f"t{i}", [f"O{i+1}"])
        e("s_barrier")
        if i + 4 < 30:
            for f in op.dma(i + 4): f()
    for i in range(18, 30):
        op.step("f", i, 29, tick, store=[3], hooks={5: lambda: pk_read(4)} if i == 20 else None)
    op.finish()
    for i in range(5): e("s_barrier")
    e("s_branch k1_final")
    return g.rec

def t1_path(p, needs):
    g = Gen(p, needs); e = g.e
    def PK(tt): return 2 * tt
    def Q2(k): return PK(56) + 2 * k if k < 14 else 236 + 2 * (k - 14)
    OB = 252
    op = OpEngine(g, PK, 140, 196, 212, [250, 251], OB, [253, 254], T1R, sLW, 0)
    AC, AF, BF = op.AC, op.AF, op.BF
    def dma_sub(u):
        a, bb = divmod(u, 3)
        srd = sKd if kv_kind(a) == "K" else sVd
        def f():
            e(f"s_add_u32 m0, s{sL1}, {KVB + (u % NS) * 4096 - bb * 128}")
            e(f"s_add_u32 s{sT1}, s{sKSO2}, {kv_tile(a) * TILE}")
            off = f"offset:{bb*128} " if bb else ""
            g.vm(f"U{u % 96}", f"buffer_load_dwordx4 v{PKV_}, s[{srd}:{srd+3}], s{sT1} offen {off}{OPT['kv']} lds")
        return f
    st = dict(pub=0, iss=0)
    def kv_tags(k):
        upto = XB_[k + 1] if k < NX - 1 else 384
        n = -(-(upto + LEAD) // 4) if upto < 384 else 96
        tags = [f"U{u}" for u in range(st["pub"], n)]
        st["pub"] = max(st["pub"], n)
        return tags
    def kv_issue(k):
        out = []
        while k in KVT and 4 * (st["iss"] - KL) + 4 <= XB_[k]:
            out.append(dma_sub(st["iss"])); st["iss"] += 1
        return out
    def touch_o(t):
        nsh = 16 if OPT["map"] == 0 else 8
        per = 245760 // (4 * nsh)
        e(f"""
s_and_b32 s{sT1}, s{sB}, {nsh-1}
s_lshl_b32 s{sT1}, s{sT1}, 2
s_add_u32 s{sT1}, s{sT1}, s{sW4}
s_mul_i32 s{sT1}, s{sT1}, {per}
s_sub_u32 s{sT2}, s{sSLOT}, 1
s_mul_i32 s{sT2}, s{sT2}, 245760
s_add_u32 s{sT1}, s{sT1}, s{sT2}
s_mov_b32 m0, {SPARE}
v_lshrrev_b32 v{t}, 4, v{OB}
v_min_u32 v{t}, {per//128-1}, v{t}
v_lshlrev_b32 v{t}, 7, v{t}
""")
        g.vm("pf", f"buffer_load_dword v{t}, s[{sOd}:{sOd+3}], s{sT1} offen {OPT['tf']} lds")
    NEXT = {26: 2, 27: 3, 28: 0, 29: 1}
    def tick(i):
        waits = ([f"O{i+1}"] if i < 29 else []) + kv_tags(i)
        op.flush_pq()
        if waits: g.wait("vm", f"o{i}", waits)
        if OPT["vcap"]: e(f"s_waitcnt vmcnt({OPT['vcap']})")
        e("s_barrier")
        io = []
        if not OPT["burst"]:
            if i == 26: io.append(lambda: e(f"s_add_u32 s{sOB}, s{sOB}, 245760"))
            io += op.dma(NEXT.get(i, i + 4))
        elif i % 2 == 1:
            if i == 27: io.append(lambda: e(f"s_add_u32 s{sOB}, s{sOB}, 245760"))
            io += op.dma(NEXT.get(i - 1, i + 3)) + op.dma(NEXT.get(i, i + 4))
        items = kv_issue(i) + io if OPT["kvfirst"] and i < 28 else io + kv_issue(i)
        if OPT["near"] and i == OPT["near"]: items.append(lambda: touch_o(AF(i + 1, 0) if False else 249))
        for f in items[:OPT["now0"]]: f()
        items = items[OPT["now0"]:]
        for j, f in enumerate(items): op.pq.append((op.clock + OPT["vpost"] + (j * OPT["span"]) // len(items), f))
    def q_write(reg):
        for rt in range(7):
            for k in range(3): e(f"ds_write_b64 v{AC(0)+k}, {v(reg(rt,k),2)} offset:{QO+rt*1024}")
        e("s_waitcnt lgkmcnt(0)")
    def q_addr():
        t = AC(1)
        e(f"v_lshrrev_b32 v{t}, 5, v{OB}")
        e(f"v_and_b32 v{t}, 8, v{t}")
        e(f"v_add_u32 v{t}, v{t}, v{OB}")
        for k in range(3):
            e(f"""
s_mul_i32 s{sT1}, s{sW4}, 3
s_add_u32 s{sT1}, s{sT1}, {k}
s_lshr_b32 s{sT2}, s{sT1}, 1
s_mul_i32 s{sT2}, s{sT2}, 7168
s_and_b32 s{sT1}, s{sT1}, 1
s_lshl_b32 s{sT1}, s{sT1}, 3
v_xor_b32 v{AC(0)+k}, s{sT1}, v{t}
v_add_u32 v{AC(0)+k}, s{sT2}, v{AC(0)+k}
""")

    e(f"""
s_mul_i32 s{sOB}, s{sW4}, {8*1280}
s_lshl_b32 s{sLW}, s{sW4}, 11
s_lshl_b32 s{sL1}, s{sW4}, 10
s_mov_b32 s{sSLOT}, 1
s_mov_b32 s{sRX}, 0x01000c0c
s_mov_b32 s{sRX+1}, 0x03020c0c
""")
    for u in range(N0 - 96):
        g.vq.append(f"U{u}"); g.issued[f"U{u}"] = 1
    st.update(pub=0, iss=N0 - 96)
    g.wait("vm", "i_t0", kv_tags(-1))
    e("s_barrier")
    stamp_slot(e)
    e("s_barrier")
    for rt in range(7):
        for k in range(3): e(f"ds_write_b64 v{QW[k]}, {v(QAC(0,rt,k),2)} offset:{QO+rt*1024}")
    def setup():
        e("s_waitcnt lgkmcnt(0)")
        for k in range(21):
            for x in range(2): e(f"v_mov_b32 v{2*k+x}, v{QAC(1,k//3,k%3)+x}")
        for k in range(21):
            for x in range(2): e(f"v_mov_b32 v{Q2(k)+x}, v{2*k+x}")
    def setup0():
        e("s_waitcnt lgkmcnt(0)")
        op.addr_setup()
        setup()
    task = {0: setup0}
    if OPT["touch"]: task[4] = lambda: touch_o(AF(0, 0))
    for k in range(NX):
        w = kv_tags(k)
        if w: g.wait("vm", f"i{k}", w)
        e("s_barrier")
        for f in kv_issue(k): f()
        if k in task: task[k]()
        if k >= 26:
            for f in op.dma(NEXT[k]): f()
    for s in range(2, 5):
        if s != 2: g.mute += 1
        g.label("t1_slot")
        assert st["iss"] == N0
        st.update(pub=0, iss=N0 - 96)
        e(f"""
s_add_u32 s{sSLOT}, s{sSLOT}, 1
s_add_u32 s{sKSO2}, s{sKSO2}, 196608
s_cmp_eq_u32 s{sSLOT}, 2
s_cselect_b32 s{sSLO}, 0x0c0c0c0c, s{sRX}
s_cselect_b32 s{sSHI}, 0x0c0c0c0c, s{sRX+1}
""")
        g.wait("vm", "t0", kv_tags(-1))
        e("s_barrier")
        if not g.mute: stamp_slot(e)
        if OPT["touch"] and not OPT["near"]: touch_o(AF(0, 0))
        for k in range(14):
            for x in op.unpack_l(AC(k), PK(k)): e(x)
        g.wait("vm", "o_in", ["O0"])
        e("s_barrier")
        stamp_if(e, 12, OPT["ps"])
        op.first_reads(0)
        for i in range(30): op.step("m", i, 29, tick)
        stamp_if(e, 13, OPT["ps"])
        tick(29)
        op.finish()
        e(f"s_cmp_lg_u32 s{sSLOT}, 2")
        e("s_cbranch_scc1 t1_noq2")
        for k in range(3): e(f"v_mov_b32 v{BF(0)+k}, v{AC(0)+k}")
        e(f"v_mov_b32 v{BF(0)+3}, v{AC(1)}")
        q_addr()
        q_write(lambda rt, k: Q2(rt * 3 + k))
        for k in range(3): e(f"v_mov_b32 v{AC(0)+k}, v{BF(0)+k}")
        e(f"v_mov_b32 v{AC(1)}, v{BF(0)+3}")
        g.label("t1_noq2")
        for n in range(14):
            for x in op.pack_l(PK(56 + n), AC(n)): e(x)
        e(f"s_cmp_lg_u32 s{sSLOT}, 4")
        e("s_cbranch_scc1 t1_slot")
        if s != 2: g.mute -= 1
    g.label("t1_last")
    op.fl = OPT["wo5"]; op.nr = OPT["r5"]; op.early = OPT["early"] & 1
    R5 = op.nr
    e(f"""
s_mov_b32 s{sSLOT}, 5
s_lshl_b32 s{sT1}, s{sW4}, 10
s_add_u32 s{sT1}, s{sT1}, {KVB + 32768}
v_add_u32 v249, s{sT1}, v{OB}
""")
    def pk_write(ps):
        for rt in range(7): g.ld("pk", f"ds_write_b128 v249, {v(PK(ps*14+rt*2),4)} offset:{rt*4096}")
    for k in range(14):
        for x in op.unpack_l(AC(k), PK(k)): e(x)
    e("s_waitcnt vmcnt(0)"); g.vq[:] = []
    e("s_barrier")
    stamp_slot(e)
    for i in range(4, R5):
        for f in op.dma(i): f()
    pk_write(3)
    e("s_waitcnt lgkmcnt(0)"); g.lq[:] = []
    e("s_barrier")
    stamp_if(e, 12, OPT["ps"])
    g.issued.pop("O0")
    op.first_reads(0)
    def tick5(i):
        op.flush_pq()
        if i == 2: g.wait("lg", "pkw", ["pk"])
        g.wait("vm", f"f{i}", [f"O{i+1}"])
        e("s_barrier")
        if i + R5 < 18:
            for f in op.dma(i + R5): f()
    g.issued.pop("pk")
    for i in range(18):
        op.step("f", i, 17, tick5, store=[0], hooks={5: lambda: pk_write(4)} if i == 1 else None)
    op.finish()
    stamp_if(e, 13, OPT["ps"])
    g.label("t1_exit")
    return g.rec

def final_reduce(p):
    e = p
    sG, sMASK, sQ, sBL = 4, 5, 6, 7
    sD, sA, sOUT = 8, 32, 36
    e.label("k1_final")
    if OPT["two"]:
        if OPT["prof"]: e("s_waitcnt vmcnt(0)")
        stamp(e, 10); stamp(e, 11, real=True)
        dump_stamps(e, 28, 64 << 20, 8)
        return
    e(f"""
s_waitcnt vmcnt(0)
s_barrier
""")
    stamp(e, 9, real=bool(OPT["rt"]))
    e(f"""
s_and_b32 s{sG}, s2, 7
s_cmp_lt_u32 s{sG}, 4
s_cselect_b32 s{sG}, 0, 16
s_add_u32 s{sG}, s{sG}, s{sB}
v_mbcnt_lo_u32_b32 v2, -1, 0
v_mbcnt_hi_u32_b32 v2, -1, v2
s_cmp_gt_u32 s{sWAVE}, 1
s_cbranch_scc1 k1_fw
s_mov_b32 s{sD}, s26
s_mov_b32 s{sD+1}, s27
s_mov_b32 s{sD+2}, 256
s_mov_b32 s{sD+3}, 0x20000
s_lshl_b32 s{sT1}, s{sG}, 2
v_mov_b32 v3, 0
v_mov_b32 v4, 1
s_cmp_eq_u32 s{sWAVE}, 0
s_cbranch_scc1 k1_w0
s_mov_b64 exec, 1
buffer_atomic_add v4, v3, s[{sD}:{sD+3}], s{sT1} offen offset:128 sc0 sc1
s_waitcnt vmcnt(0)
v_readfirstlane_b32 s{sT2}, v4
s_and_b32 s{sT3}, s{sT2}, 0xff
s_lshr_b32 s{sT2}, s{sT2}, 8
s_cmp_eq_u32 s{sT3}, 7
s_cselect_b32 s{sT2}, s{sT2}, 0
v_mov_b32 v4, s{sT2}
ds_write_b32 v3, v4 offset:4
s_waitcnt lgkmcnt(0)
s_mov_b64 exec, -1
s_branch k1_fw
k1_w0:
s_lshl_b32 s{sMASK}, 1, s{sQUAD}
s_lshl_b32 s{sT2}, s{sG}, 10
s_add_u32 s{sT2}, s{sT2}, {FLAG0}
s_add_u32 s{sA}, s28, s{sT2}
s_addc_u32 s{sA+1}, s29, 0
s_mov_b32 s{sA+2}, 1024
s_mov_b32 s{sA+3}, 0x20000
s_lshl_b32 s{sT2}, s{sQUAD}, 7
s_mov_b64 exec, 1
buffer_store_dword v4, v3, s[{sA}:{sA+3}], s{sT2} offen sc1
s_mov_b64 exec, 0xff
v_lshlrev_b32 v5, 7, v2
s_mov_b32 s{sCTR}, 0
k1_poll:
buffer_load_dword v6, v3, s[{sD}:{sD+3}], s{sT1} offen sc1
buffer_load_dword v4, v5, s[{sA}:{sA+3}], 0 offen sc1
s_waitcnt vmcnt(1)
v_cmp_ne_u32 vcc, 8, v6
s_cbranch_vccnz k1_again
k1_poll2:
s_waitcnt vmcnt(0)
v_cmp_ne_u32 vcc, 1, v4
s_cbranch_vccz k1_go
s_add_u32 s{sCTR}, s{sCTR}, 1
s_cmp_lt_u32 s{sCTR}, {OPT['spin']}
s_cbranch_scc0 k1_late
buffer_load_dword v4, v5, s[{sA}:{sA+3}], 0 offen sc1
s_branch k1_poll2
k1_again:
s_waitcnt vmcnt(0)
s_add_u32 s{sCTR}, s{sCTR}, 1
s_cmp_lt_u32 s{sCTR}, {OPT['spin']}
s_cbranch_scc1 k1_poll
k1_late:
s_mov_b64 exec, 1
s_lshl_b32 s{sT2}, s{sMASK}, 8
v_mov_b32 v4, s{sT2}
buffer_atomic_or v4, v3, s[{sD}:{sD+3}], s{sT1} offen offset:128 sc0 sc1
s_waitcnt vmcnt(0)
v_readfirstlane_b32 s{sT2}, v4
s_and_b32 s{sT2}, s{sT2}, 0xff
s_cmp_eq_u32 s{sT2}, 8
s_cselect_b32 s{sMASK}, s{sMASK}, 0
k1_go:
s_mov_b64 exec, 1
v_mov_b32 v4, s{sMASK}
ds_write_b32 v3, v4
s_waitcnt lgkmcnt(0)
s_mov_b64 exec, -1
k1_fw:
s_mul_i32 s{sT1}, s{sG}, {8*PART_CU}
s_add_u32 s{sT1}, s{sT1}, {PART0}
s_add_u32 s{sA}, s28, s{sT1}
s_addc_u32 s{sA+1}, s29, 0
s_mov_b32 s{sA+2}, {8*PART_CU}
s_mov_b32 s{sA+3}, 0x20000
s_mul_i32 s{sT1}, s{sB}, {112*2560}
s_lshr_b32 s{sT2}, s{sG}, 4
s_mul_i32 s{sT2}, s{sT2}, 1280
s_add_u32 s{sT1}, s{sT1}, s{sT2}
s_add_u32 s{sOUT}, s24, s{sT1}
s_addc_u32 s{sOUT+1}, s25, 0
s_sub_u32 s{sOUT+2}, {112*2560}, s{sT2}
s_mov_b32 s{sOUT+3}, 0x20000
v_lshlrev_b32 v3, 4, v2
v_and_b32 v4, 15, v2
v_lshrrev_b32 v5, 4, v2
v_mul_u32_u24 v6, 272, v4
v_lshl_add_u32 v6, v5, 3, v6
s_mul_i32 s{sT2}, s{sTEAM}, {3*4352}
s_add_u32 s{sT2}, s{sT2}, 2048
s_lshl_b32 s{sT1}, s{sW4}, 6
s_add_u32 s{sT1}, s{sT1}, s{sT2}
v_add_u32 v6, s{sT1}, v6
s_mul_i32 s{sT1}, s{sW4}, {4*272}
s_add_u32 s{sT1}, s{sT1}, s{sT2}
v_mul_u32_u24 v7, 272, v5
v_lshl_add_u32 v7, v4, 4, v7
v_add_u32 v7, s{sT1}, v7
v_mul_u32_u24 v5, 2560, v5
v_lshl_add_u32 v4, v4, 4, v5
v_mov_b32 v5, 0
s_barrier
ds_read_b64 v[8:9], v5
s_waitcnt lgkmcnt(0)
v_or_b32 v5, v8, v9
v_readfirstlane_b32 s{sMASK}, v5
""")
    stamp(e, 8, real=bool(OPT["rt"]))
    e(f"""
k1_slice:
s_cmp_eq_u32 s{sMASK}, 0
s_cbranch_scc1 k1_done
s_ff1_i32_b32 s{sQ}, s{sMASK}
s_bitset0_b32 s{sMASK}, s{sQ}
s_lshl_b32 s{sBL}, s{sTEAM}, 3
s_add_u32 s{sBL}, s{sBL}, s{sQ}
""")
    for k in range(3):
        e(f"""
s_add_u32 s{sT1}, s{sBL}, {16*k}
s_mul_i32 s{sT2}, s{sW4}, 35
s_add_u32 s{sT2}, s{sT2}, s{sT1}
s_lshl_b32 s{sT2}, s{sT2}, 10
s_cmp_lt_u32 s{sT1}, 35
s_cselect_b32 s{sT2}, s{sT2}, {8*PART_CU}
""")
        for q in range(8):
            r = 8 + 32 * k + 4 * q
            e(f"buffer_load_dwordx4 {v(r,4)}, v3, s[{sA}:{sA+3}], s{sT2} offen {OPT['rd']}")
            if q < 7: e(f"s_add_u32 s{sT2}, s{sT2}, {PART_CU}")
        e(f"""
s_mul_i32 s{sT2}, s{sT1}, 37
s_lshr_b32 s{sT2}, s{sT2}, 8
s_mul_i32 s{sT3}, s{sT2}, 7
s_sub_u32 s{sT3}, s{sT1}, s{sT3}
s_lshl_b32 s{sT2}, s{sT2}, 8
s_mul_i32 s{sT3}, s{sT3}, {16*2560}
s_add_u32 s{sT2}, s{sT2}, s{sT3}
s_mul_i32 s{sT3}, s{sW4}, {4*2560}
s_add_u32 s{sT2}, s{sT2}, s{sT3}
s_cmp_lt_u32 s{sT1}, 35
s_cselect_b32 s{12+k}, s{sT2}, 0x1000000
""")
    for k in range(3):
        for q in range(8):
            e(f"s_waitcnt vmcnt({23-8*k-q})")
            if OPT["fs"] and (k, q) in ((0, 0), (0, 7), (2, 7)): stamp(e, {(0, 0): 12, (0, 7): 13, (2, 7): 14}[(k, q)], real=True)
            for i in range(4):
                r = 8 + 32 * k + 4 * q + i
                if q == 0:
                    e(f"v_lshlrev_b32 v{104+2*i}, 16, v{r}")
                    e(f"v_and_b32 v{105+2*i}, 0xffff0000, v{r}")
                else:
                    e(f"v_lshlrev_b32 v112, 16, v{r}")
                    e(f"v_and_b32 v113, 0xffff0000, v{r}")
                    e(f"v_add_f32 v{104+2*i}, v{104+2*i}, v112")
                    e(f"v_add_f32 v{105+2*i}, v{105+2*i}, v113")
        for i in range(4): e(f"v_cvt_pk_bf16_f32 v{116+4*k+i}, v{104+2*i}, v{105+2*i}")
        e(f"ds_write_b64 v6, {v(116+4*k,2)} offset:{k*4352}")
        e(f"ds_write_b64 v6, {v(118+4*k,2)} offset:{k*4352+32}")
    e("s_waitcnt lgkmcnt(0)")
    e("s_barrier")
    if OPT["fs"]: stamp(e, 15, real=True)
    for k in range(3): e(f"ds_read_b128 {v(128+4*k,4)}, v7 offset:{k*4352}")
    for k in range(3):
        e(f"s_waitcnt lgkmcnt({2-k})")
        e(f"buffer_store_dwordx4 {v(128+4*k,4)}, v4, s[{sOUT}:{sOUT+3}], s{12+k} offen")
    e("""
s_barrier
s_branch k1_slice
k1_done:
""")
    if OPT["prof"]: e("s_waitcnt vmcnt(0)")
    stamp(e, 10); stamp(e, 11, real=True)
    dump_stamps(e, 28, 64 << 20, 8)

def build(needs):
    p = Prog()
    p(f"""
.globl {NAME}_kernel
.p2align 8
.type {NAME}_kernel,@function
{NAME}_kernel:
s_cmp_ge_u32 s2, 256
s_cbranch_scc1 k1_end
s_load_dwordx16 s[4:19], s[0:1], 0
s_load_dwordx8 s[20:27], s[0:1], 64
s_load_dwordx2 s[28:29], s[0:1], 96
v_lshrrev_b32 v1, 6, v0
v_and_b32 v2, 63, v0
v_readfirstlane_b32 s{sWAVE}, v1
s_and_b32 s{sT1}, s2, 7
s_lshr_b32 s{sT2}, s2, 3
""")
    if OPT["map"] == 0:
        p(f"""
s_and_b32 s{sQUAD}, s{sT1}, 3
s_lshl_b32 s{sQUAD}, s{sQUAD}, 1
s_and_b32 s{sB}, s{sT2}, 1
s_add_u32 s{sQUAD}, s{sQUAD}, s{sB}
s_lshr_b32 s{sB}, s{sT2}, 1
""")
    else:
        p(f"""
s_and_b32 s{sQUAD}, s{sT1}, 1
s_lshl_b32 s{sQUAD}, s{sQUAD}, 2
s_and_b32 s{sB}, s{sT2}, 3
s_add_u32 s{sQUAD}, s{sQUAD}, s{sB}
s_and_b32 s{sB}, s{sT1}, 2
s_lshl_b32 s{sB}, s{sB}, 2
s_lshr_b32 s{sT2}, s{sT2}, 2
s_add_u32 s{sB}, s{sB}, s{sT2}
""")
    p(f"""
s_and_b32 s{sW4}, s{sWAVE}, 3
s_lshr_b32 s{sTEAM}, s{sWAVE}, 2
s_mul_i32 s{sLW}, s{sW4}, 3072
s_mov_b32 s{sKd+2}, {0 if OPT['nokv'] else 786432}
s_mov_b32 s{sKd+3}, 0x20000
s_mov_b32 s{sVd+2}, {0 if OPT['nokv'] else 786432}
s_mov_b32 s{sVd+3}, 0x20000
s_mov_b32 s{sWd+3}, 0x20000
s_mov_b32 s{sOd+2}, {0 if OPT['now'] else 983040}
s_mov_b32 s{sOd+3}, 0x20000
s_mov_b32 s{sXd+2}, {0 if OPT['nox'] else 143360}
s_mov_b32 s{sXd+3}, 0x20000
s_mov_b32 s{sPd+2}, {35840+QO}
s_mov_b32 s{sPd+3}, 0x20000
s_waitcnt lgkmcnt(0)
s_cmp_lt_u32 s{sT1}, 4
s_cselect_b64 s[4:5], s[4:5], s[14:15]
s_cselect_b64 s[6:7], s[6:7], s[16:17]
s_cselect_b64 s[8:9], s[8:9], s[18:19]
s_cselect_b64 s[10:11], s[10:11], s[20:21]
s_cselect_b64 s[12:13], s[12:13], s[22:23]
s_cselect_b32 s{sT3}, 0, 16
s_mul_i32 s{sT2}, s{sB}, 143360
s_add_u32 s{sXd}, s4, s{sT2}
s_addc_u32 s{sXd+1}, s5, 0
s_mul_i32 s{sT2}, s{sQUAD}, 1536
s_add_u32 s{sWd}, s10, s{sT2}
s_addc_u32 s{sWd+1}, s11, 0
s_sub_u32 s{sWd+2}, 7864320, s{sT2}
{'s_mov_b32 s%d, 0' % (sWd+2) if OPT['now'] else ''}
s_lshl_b32 s{sT1}, s{sB}, 3
s_add_u32 s{sT1}, s{sT1}, s{sQUAD}
s_mul_i32 s{sT2}, s{sT1}, 786432
s_add_u32 s{sKd}, s6, s{sT2}
s_addc_u32 s{sKd+1}, s7, 0
s_add_u32 s{sVd}, s8, s{sT2}
s_addc_u32 s{sVd+1}, s9, 0
s_mul_i32 s{sT2}, s{sQUAD}, 983040
s_add_u32 s{sOd}, s12, s{sT2}
s_addc_u32 s{sOd+1}, s13, 0
s_lshl_b32 s{sT3}, s{sT3}, 3
s_add_u32 s{sT1}, s{sT1}, s{sT3}
s_mul_i32 s{sT1}, s{sT1}, {PART_CU}
s_mul_i32 s{sT2}, s{sW4}, 35840
s_add_u32 s{sT1}, s{sT1}, s{sT2}
s_add_u32 s{sT1}, s{sT1}, {PART0-QO}
s_add_u32 s{sPd}, s28, s{sT1}
s_addc_u32 s{sPd+1}, s29, 0
""")
    stamp(p, 0); stamp(p, 1, real=True)
    p(f"""
s_cmp_lg_u32 s{sWAVE}, 0
s_cbranch_scc1 k1_noclr
s_and_b32 s{sT1}, s2, 7
s_cmp_lt_u32 s{sT1}, 4
s_cselect_b32 s{sT1}, 0, 16
s_add_u32 s{sGRP}, s{sT1}, s{sB}
s_lshl_b32 s{sT1}, s{sGRP}, 3
s_add_u32 s{sT1}, s{sT1}, s{sQUAD}
s_lshl_b32 s{sT1}, s{sT1}, 7
s_add_u32 s{sT1}, s{sT1}, {FLAG0}
s_add_u32 s4, s28, s{sT1}
s_addc_u32 s5, s29, 0
s_mov_b32 s6, 128
s_mov_b32 s7, 0x20000
v_mov_b32 v1, 0
s_mov_b64 exec, 1
buffer_store_dword v1, v1, s[4:7], 0 offen sc1
s_mov_b64 exec, -1
k1_noclr:
""")
    if OPT["cpf"]:
        p(f"""
s_cmp_lg_u32 s{sWAVE}, 7
s_cbranch_scc1 k1_nocpf
s_getpc_b64 s[4:5]
s_mov_b32 s6, k1_end-k1_nocpf
s_mov_b32 s7, 0x20000
s_lshr_b32 s{sT1}, s2, 3
s_and_b32 s{sT1}, s{sT1}, 31
s_lshl_b32 s{sT1}, s{sT1}, 7
v_and_b32 v1, 31, v0
v_lshlrev_b32 v1, 12, v1
buffer_load_dword v254, v1, s[4:7], s{sT1} offen
k1_nocpf:
""")
    if OPT["tlb"]:
        p(f"""
v_and_b32 v1, 3, v0
v_lshlrev_b32 v1, 18, v1
v_min_u32 v1, {786432-128}, v1
s_cmp_lg_u32 s{sWAVE}, 1
s_cbranch_scc1 k1_t1a
buffer_load_dword v254, v1, s[{sKd}:{sKd+3}], 0 offen nt
k1_t1a:
s_cmp_lg_u32 s{sWAVE}, 2
s_cbranch_scc1 k1_t1b
buffer_load_dword v254, v1, s[{sVd}:{sVd+3}], 0 offen nt
k1_t1b:
s_cmp_lg_u32 s{sWAVE}, 3
s_cbranch_scc1 k1_t1c
buffer_load_dword v254, v1, s[{sOd}:{sOd+3}], 0 offen nt
k1_t1c:
s_cmp_lg_u32 s{sWAVE}, 4
s_cbranch_scc1 k1_t1d
s_and_b32 s{sT1}, s2, 7
s_cmp_lt_u32 s{sT1}, 4
s_cselect_b32 s{sT1}, 0, 16
s_add_u32 s{sT1}, s{sT1}, s{sB}
s_mul_i32 s{sT1}, s{sT1}, {8*PART_CU}
s_add_u32 s{sT1}, s{sT1}, {PART0}
s_add_u32 s4, s28, s{sT1}
s_addc_u32 s5, s29, 0
s_mov_b32 s6, {8*PART_CU}
s_mov_b32 s7, 0x20000
v_and_b32 v1, 7, v0
v_mul_u32_u24 v1, {PART_CU}, v1
buffer_load_dword v254, v1, s[4:7], 0 offen nt sc1
k1_t1d:
s_cmp_lg_u32 s{sWAVE}, 5
s_cbranch_scc1 k1_t1e
s_mul_i32 s{sT1}, s{sB}, {112*2560}
s_add_u32 s4, s24, s{sT1}
s_addc_u32 s5, s25, 0
s_mov_b32 s6, {112*2560}
s_mov_b32 s7, 0x20000
v_and_b32 v1, 1, v0
v_mul_u32_u24 v1, {112*2560-128}, v1
buffer_load_dword v254, v1, s[4:7], 0 offen nt sc1
k1_t1e:
""")
    rec = {}
    rec["qp"] = qp_phase(p, needs.get("qp", {}))
    p(f"""
s_cmp_ge_u32 s{sWAVE}, 4
s_cbranch_scc1 k1_t1
""")
    if OPT["prio0"]: p(f"s_setprio {OPT['prio0']}")
    p(f"""
s_cmp_eq_u32 s{sWAVE}, 3
s_cbranch_scc1 k1_light
""")
    rec["h"] = t0_path(p, needs.get("h", {}), 2, "h")
    p.label("k1_light")
    rec["l"] = t0_path(p, needs.get("l", {}), 1, "l")
    rec["f"] = t0_final(p, needs.get("f", {}))
    p.label("k1_t1")
    if OPT["not1"]: p("s_endpgm")
    if OPT["prio1"]: p(f"s_setprio {OPT['prio1']}")
    rec["t1"] = t1_path(p, needs.get("t1", {}))
    final_reduce(p)
    p("""
k1_end:
s_endpgm
""")
    return p, rec

def reduce_kernel():
    p = Prog()
    p(f"""
.globl reduce_kernel
.p2align 8
.type reduce_kernel,@function
reduce_kernel:
s_cmp_ge_u32 s2, 1120
s_cbranch_scc1 k2_end
s_load_dwordx2 s[8:9], s[0:1], 80
s_load_dwordx2 s[10:11], s[0:1], 96
v_lshrrev_b32 v1, 6, v0
v_and_b32 v2, 63, v0
v_readfirstlane_b32 s3, v1
s_mul_i32 s5, s2, 1873
s_lshr_b32 s5, s5, 16
s_mul_i32 s6, s5, 35
s_sub_u32 s22, s2, s6
s_mul_i32 s6, s3, 35
s_add_u32 s6, s6, s22
s_mul_i32 s7, s5, {8*PART_CU}
s_add_u32 s7, s7, {PART0}
s_lshl_b32 s20, s6, 10
v_lshlrev_b32 v3, 4, v2
s_mov_b32 s14, {8*PART_CU}
s_mov_b32 s15, 0x20000
s_waitcnt lgkmcnt(0)
s_add_u32 s12, s10, s7
s_addc_u32 s13, s11, 0
""")
    for q in range(8):
        p(f"buffer_load_dwordx4 v[{8+4*q}:{11+4*q}], v3, s[12:15], s20 offen {OPT['rd']}")
        if q < 7: p(f"s_add_u32 s20, s20, {PART_CU}")
    p(f"""
s_and_b32 s23, s5, 15
s_mul_i32 s23, s23, {112*2560}
s_lshr_b32 s24, s5, 4
s_mul_i32 s24, s24, 1280
s_add_u32 s23, s23, s24
s_mov_b32 s16, s8
s_mov_b32 s17, s9
s_mov_b32 s18, {16*112*2560}
s_mov_b32 s19, 0x20000
s_mul_i32 s26, s22, 37
s_lshr_b32 s26, s26, 8
s_mul_i32 s27, s26, 7
s_sub_u32 s27, s22, s27
s_lshl_b32 s30, s26, 8
s_mul_i32 s28, s27, {16*2560}
s_add_u32 s30, s30, s28
s_mul_i32 s28, s3, {4*2560}
s_add_u32 s30, s30, s28
s_add_u32 s32, s30, s23
v_and_b32 v4, 15, v2
v_lshrrev_b32 v5, 4, v2
v_mul_u32_u24 v6, 272, v4
v_lshl_add_u32 v6, v5, 3, v6
s_lshl_b32 s28, s3, 6
v_add_u32 v6, s28, v6
s_mul_i32 s28, s3, {4*272}
v_mul_u32_u24 v7, 272, v5
v_lshl_add_u32 v7, v4, 4, v7
v_add_u32 v7, s28, v7
v_mul_u32_u24 v5, 2560, v5
v_lshl_add_u32 v4, v4, 4, v5
""")
    for q in range(8):
        p(f"s_waitcnt vmcnt({7-q})")
        for i in range(4):
            r = 8 + 4 * q + i
            if q == 0:
                p(f"v_lshlrev_b32 v{40+2*i}, 16, v{r}")
                p(f"v_and_b32 v{41+2*i}, 0xffff0000, v{r}")
            else:
                p(f"v_lshlrev_b32 v48, 16, v{r}")
                p(f"v_and_b32 v49, 0xffff0000, v{r}")
                p(f"v_add_f32 v{40+2*i}, v{40+2*i}, v48")
                p(f"v_add_f32 v{41+2*i}, v{41+2*i}, v49")
    for i in range(4): p(f"v_cvt_pk_bf16_f32 v{52+i}, v{40+2*i}, v{41+2*i}")
    p("""
ds_write_b64 v6, v[52:53]
ds_write_b64 v6, v[54:55] offset:32
s_waitcnt lgkmcnt(0)
s_barrier
ds_read_b128 v[52:55], v7
s_waitcnt lgkmcnt(0)
buffer_store_dwordx4 v[52:55], v4, s[16:19], s32 offen
k2_end:
s_endpgm
""")
    return p

def desc(name, vg):
    return f""".amdhsa_kernel {name}
  .amdhsa_next_free_vgpr {vg}
  .amdhsa_next_free_sgpr 102
  .amdhsa_accum_offset {vg}
  .amdhsa_group_segment_fixed_size 0
  .amdhsa_kernarg_size 104
  .amdhsa_user_sgpr_count 2
  .amdhsa_user_sgpr_kernarg_segment_ptr 1
  .amdhsa_system_sgpr_workgroup_id_x 1
.end_amdhsa_kernel
"""

def main():
    for t in range(1120): assert (t * 1873) >> 16 == t // 35
    for t in range(140): assert (t * 235) >> 13 == t // 35
    for t in range(35): assert (t * 37) >> 8 == t // 7
    _, rec = build({})
    for it in range(4):
        a, rec2 = build(rec)
        if rec2 == rec: break
        rec = rec2
    else: raise SystemExit("no fixpoint")
    b = reduce_kernel()
    if OPT["novm"]: a.L[:] = [l for l in a.L if not l.startswith("buffer_load")]
    if OPT["nobar"]: a.L[:] = [l for l in a.L if not l.startswith("s_barrier")]
    if OPT["nolg"]:
        out_ = []
        for i_, l in enumerate(a.L):
            if l.startswith("s_waitcnt lgkmcnt") and not a.L[i_-1].startswith(("s_mem", "s_load")) and i_ > 60: continue
            out_.append(l)
        a.L[:] = out_
    if OPT["nord"]: a.L[:] = [l for l in a.L if not l.startswith("ds_read")]
    if OPT["noexp"]: a.L[:] = [l.replace("v_exp_f32", "v_mov_b32") if l.startswith("v_exp_f32") and "-v" not in l else l for l in a.L]
    if OPT["nosm"]: a.L[:] = [l for l in a.L if not l.startswith(("v_exp_f32", "v_cvt_pk"))]
    if OPT["nochk"]: a.L[:] = [l for l in a.L if not l.startswith(("v_or3", "v_or_b32", "v_cmp_ne", "s_cbranch_vccz", "v_and_b32 v252"))]
    if OPT["prof"] == 2:
        out_ = []; L_ = a.L; inrole = False; i_ = 0
        while i_ < len(L_):
            l = L_[i_]
            if l.startswith(("t0_unit", "t1_slot")): inrole = True
            if l.startswith(("t0_exit", "t1_exit")): inrole = False
            if inrole and l == "s_barrier":
                j = len(out_)
                while j > 0 and (out_[j-1].startswith(("s_waitcnt vmcnt", "s_cmp_eq_u32 s55, 5", "s_cbranch_scc1 t1_wa")) or out_[j-1].startswith("t1_wa")): j -= 1
                blk = out_[j:]; del out_[j:]
                out_ += ["s_memtime s[4:5]"] + blk + ["s_memtime s[6:7]", "s_barrier", "s_memtime s[8:9]", "s_waitcnt lgkmcnt(0)",
                         "s_sub_u32 s4, s6, s4", "s_add_u32 s94, s94, s4", "s_sub_u32 s6, s8, s6", "s_add_u32 s95, s95, s6"]
            elif inrole and l.startswith("buffer_load") and l.endswith("lds"):
                out_ += ["s_memtime s[4:5]", l, "s_memtime s[6:7]", "s_waitcnt lgkmcnt(0)", "s_sub_u32 s4, s6, s4", "s_add_u32 s89, s89, s4"] if OPT["pv"] else [l]
            elif l.startswith(("k1_light:", "k1_t1:")) or l.startswith("s_cbranch_scc1 k1_light"):
                out_ += [l, "s_mov_b32 s94, 0", "s_mov_b32 s95, 0", "s_mov_b32 s89, 0"]
            else: out_.append(l)
            i_ += 1
        a.L[:] = out_
    if OPT["prof"] == 4:
        out_ = []; inrole = False; idx = 0
        L_ = [l for l in a.L if not (l.startswith(("s_cselect_b32 s8", "s_cselect_b32 s9")) or (l.startswith(("s_mov_b32 s8", "s_mov_b32 s9")) and "s100" in l))]
        def st_(k):
            return ["s_memtime s[100:101]", "s_waitcnt lgkmcnt(0)", f"s_cmp_eq_u32 s{sSLOT}, {OPT['ps']}", f"s_cselect_b32 s{80+k}, s100, s{80+k}"] if 0 <= k < 16 else []
        for i_, l in enumerate(L_):
            if l.startswith(("t0_unit", "t1_slot")): inrole = True; idx = 0
            if l.startswith(("t0_exit", "t1_last")): inrole = False
            k = (idx - OPT["pb"]) * 4
            if inrole and l == "s_barrier":
                x = out_.pop() if out_[-1].startswith("s_waitcnt vmcnt") else None
                out_ += st_(k - 2) + ([x] if x else []) + st_(k - 1) + [l] + st_(k); idx += 1
            elif inrole and l.startswith("buffer_load") and l.endswith("lds"):
                nxt = next(y for y in L_[i_+1:] if y == "s_barrier" or (y.startswith("buffer_load") and y.endswith("lds")))
                out_ += [l] + (st_(k - 3) if nxt == "s_barrier" else [])
            else: out_.append(l)
        a.L[:] = out_
    if OPT["prof"] == 3:
        out_ = []; inrole = False; idx = 0
        for l in a.L:
            if l.startswith(("t0_unit", "t1_slot")): inrole = True; idx = 0
            if l.startswith(("t0_exit", "t1_exit")) or l.startswith("s_cbranch_scc1 t1_slot"): inrole = False
            if l.startswith("s_cselect_b32 s8") or l.startswith("s_cselect_b32 s9") or l.startswith("s_mov_b32 s9") and "s100" in l: continue
            if inrole and l == "s_barrier":
                k = idx - OPT["pb"]; idx += 1
                st_ = ["s_memtime s[100:101]", "s_waitcnt lgkmcnt(0)", f"s_cmp_eq_u32 s{sSLOT}, {OPT['ps']}", f"s_cselect_b32 s{80+k}, s100, s{80+k}"] if 0 <= k < 16 else []
                out_ += (st_ + [l]) if OPT["pa"] else ([l] + st_)
            else: out_.append(l)
        a.L[:] = out_
    if OPT["nomfq"] or OPT["nomf1"] or OPT["nomf0"]:
        out_ = []; sec = "q"
        for l in a.L:
            if l.startswith("t0_unit"): sec = "0"
            if l.startswith("k1_t1:"): sec = "1"
            if l.startswith("v_mfma") and OPT["nomf" + sec]: continue
            out_.append(l)
        a.L[:] = out_
    if OPT["xa"]:
        out_ = []; sec = "q"; cnt = 0
        for l in a.L:
            if l.startswith("t0_unit_h"): sec = "h"
            if l.startswith("t0_unit_l"): sec = "l"
            if l.startswith("t0_final"): sec = "f"
            if l.startswith("k1_t1:"): sec = "1"
            if OPT["xa"] == 1 and sec in "hl" and l.startswith("v_mfma") and "v[208:211]" in l: continue
            if OPT["xa"] == 2 and sec == "l" and l.startswith(("v_mfma", "ds_read")): continue
            if OPT["xa"] == 3 and sec == "1" and l.startswith("ds_read_b128"): continue
            if OPT["xa"] == 4 and sec in "hl" and l.startswith("ds_read"):
                continue
            out_.append(l)
        a.L[:] = out_
    if OPT["vwin"]:
        out_ = []; on = False
        for l in a.L:
            if l.startswith("k1_t1:") and OPT["vw1"]: on = True
            if l.startswith("t1_slot:"): on = True
            if l.startswith("t1_last:"): on = False
            if on and l.startswith("buffer_load") and l.endswith("lds"): out_.append(f"s_waitcnt vmcnt({OPT['vwin']-1})")
            out_.append(l)
        a.L[:] = out_
    if OPT["dynp"]:
        out_ = []; int1 = False
        for l in a.L:
            if l.startswith("k1_t1:"): int1 = True
            if int1 and l.startswith("buffer_load") and l.endswith("lds"):
                out_ += [f"s_setprio {OPT['dynp']}", l, f"s_setprio {OPT['prio1']}"]
            else: out_.append(l)
        a.L[:] = out_
    n1 = fix_hazards(a.L); n2 = fix_hazards(b.L)
    print("nops inserted", n1, n2, "instrs", len(a.L), len(b.L), file=sys.stderr)
    hdr = open("cdna_kernels/" + NAME + ".s.ref").read().split("; Override launch")[0]
    out = hdr
    if OPT["two"]:
        out += f"; @launch kernel={NAME}_kernel grid=(256,1,1) block=(512,1,1) lds={LDS_BYTES}\n"
        out += "; @launch kernel=reduce_kernel grid=(1120,1,1) block=(256,1,1) lds=4352\n"
    else:
        out += f"; @launch grid=(256,1,1) block=(512,1,1) lds={LDS_BYTES}\n"
    out += '.amdgcn_target "amdgcn-amd-amdhsa--gfx950"\n.text\n'
    out += a.text() + (b.text() if OPT["two"] else "")
    out += '.section .rodata,"a"\n.p2align 6\n' + desc(NAME + "_kernel", 256)
    if OPT["two"]: out += ".p2align 6\n" + desc("reduce_kernel", 56)
    open(sys.argv[1], "w").write(out)
    import subprocess
    r = subprocess.run(["clang", "-x", "assembler", "-target", "amdgcn-amd-amdhsa", "-mcpu=gfx950", "-c", sys.argv[1], "-o", "chk.o"], capture_output=True, text=True)
    if r.returncode: print("ASSEMBLY FAILED", r.stderr[:600])
main()
```

```python
import sys, math, struct, copy
sys.path.insert(0, "work")
from asmlib import *

NAME = "concat_heads__mha_block_cached__gqa_block_cached__near_ridge"
OPT = dict(kv="nt", w="", x="", wo="", st="sc1", rd="sc1", prof=0, prio0=0, prio1=0, touch=1, nox=0, now=0, nokv=0, nomf=0,
           novm=0, lead=4, bp="6.16.26.36.42", map=0, hack="", t1b=0, ps=5, kdel=0, x0=4, xt=0, dynp=0, nopark=0, gap=0, span=4, pa=0, pb=0, m=2, nlat=0, nonar=0, bar=3, qd=5, rt=0, tf="", tq="", pwo=0, tlb=0, stl=0, stn=1, spin=40000, vcap=0, vpost=0, now0=9, xa=0, burst=0, kpar=0, pwh=1, near=0, vwin=9, cpf=1, fs=0, r5=6, early=3, qv=0, two=0, vw1=1, wo5="", nomfq=0, nomf1=0, nomf0=0, pwf="", kvfirst=1, w2=1, psplit=1, nb1=8, nb2=29, kl=16, tl=4, kvat=18, qst="sc1", noq=0, noqst=0, pv=0, nobar=0, nolg=0, nord=0, norare=0, not1=0, noexp=0, nochk=0, nosm=0)
for a in sys.argv[2:]:
    k, val = a.split("=")
    OPT[k] = int(val) if val.lstrip("-").isdigit() else (val if k in ("bp", "hack") else val.replace("+", " ").replace("-", ""))
TILE = 12288
QO = 0
T1R = 43008
B2 = T1R + 32768
KVB = B2 + 18432
NS = 16
SPARE = KVB + NS * 4096
LDS_BYTES = SPARE + 2048
QPARK = 48 << 20
FLAG0 = 0
PART0 = 1 << 20
PART_CU = 4 * 35 * 1024
LEAD = OPT["lead"]
NX = 30
XB_ = [OPT["x0"] + 4 * ((k * 96) // NX) for k in range(NX)]
def f2u(f): return struct.unpack("<I", struct.pack("<f", f))[0]

sKd, sVd, sWd, sOd, sXd, sPd, sQd = 32, 36, 40, 44, 48, 76, 24
sWAVE, sB, sQUAD, sSLOT, sCTR, sW4 = 52, 53, 54, 55, 57, 56
sT1, sT2, sT3 = 62, 63, 61
sKSO, sVSO, sLW = 58, 59, 60
sWB, sOB, sXB, sXM, sSTR, sXF = 58, 59, 70, 71, 72, 73
sC, sBIT = 66, 68
sRET = 30
sGRP = 3
sTEAM, sWB2, sKSO2, sL1, sSLO, sSHI = 74, 75, 65, 64, 69, 72
PKV_ = 255
sRX, sRY, sRZ, sSP = 14, 17, 20, 23

def stamp(e, k, real=False):
    if not OPT["prof"]: return
    e(f"s_mem{'real' if real else ''}time s[100:101]")
    e("s_waitcnt lgkmcnt(0)")
    e(f"s_mov_b32 s{80+k}, s100")
def stamp_slot(e):
    if not OPT["prof"]: return
    e("s_memrealtime s[100:101]" if OPT["rt"] else "s_memtime s[100:101]")
    e("s_waitcnt lgkmcnt(0)")
    for k in range(0, 7):
        e(f"s_cmp_eq_u32 s{sSLOT}, {k}")
        e(f"s_cselect_b32 s{82+k}, s100, s{82+k}")
def stamp_if(e, k, slot):
    if not OPT["prof"]: return
    e("s_memtime s[100:101]")
    e("s_waitcnt lgkmcnt(0)")
    e(f"s_cmp_eq_u32 s{sSLOT}, {slot}")
    e(f"s_cselect_b32 s{80+k}, s100, s{80+k}")
def dump_stamps(e, wsreg, base, nw):
    if not OPT["prof"]: return
    e(f"""
s_mul_i32 s100, s2, {nw}
s_add_u32 s100, s100, s{sWAVE}
s_lshl_b32 s100, s100, 6
s_add_u32 s100, s100, {base}
s_add_u32 s96, s{wsreg}, s100
s_addc_u32 s97, s{wsreg+1}, 0
s_mov_b32 s98, 64
s_mov_b32 s99, 0x20000
v_mov_b32 v1, 0
""")
    for k in range(16):
        e(f"v_mov_b32 v0, s{80+k}")
        e(f"buffer_store_dword v0, v1, s[96:99], 0 offen offset:{k*4}")
    e("s_waitcnt vmcnt(0)")

class Gen:
    def __init__(self, prog, needs):
        self.p = prog; self.needs = needs; self.rec = {}
        self.mute = 0
        self.vq = []; self.lq = []; self.pend = []; self.issued = {}
        self.nosim = 0
    def e(self, s):
        if not self.mute: self.p(s)
    def label(self, n):
        if not self.mute: self.p.label(n)
    def wait(self, kind, key, tags, drain_tags=()):
        q = self.vq if kind == "vm" else self.lq
        for t in tags:
            assert self.issued.pop(t, 0) > 0, (t, key)
        tags = list(tags) + list(drain_tags)
        idx = [i for i, t in enumerate(q) if t in tags]
        n = len(q) - 1 - max(idx) if idx else 999
        if n != 999: n = min(n, 63 if kind == "vm" else 15)
        k = (kind, key)
        self.rec[k] = min(self.rec.get(k, 999), n)
        val = self.needs.get(k, n)
        if val == 999: return
        self.e(f"s_waitcnt {'vmcnt' if kind == 'vm' else 'lgkmcnt'}({val})")
        del q[:len(q) - val if val < len(q) else 0]
    def wait_alt(self, key, tags, alt, cmp_txt, lab):
        q = self.vq
        for t in tags: assert self.issued.pop(t, 0) > 0, (t, key)
        idx = [i for i, t in enumerate(q) if t in tags]
        n = min(len(q) - 1 - max(idx), 63) if idx else 999
        k = ("vm", key, alt)
        self.rec[k] = min(self.rec.get(k, 999), n)
        va, vb = self.needs.get(("vm", key, False), 0), self.needs.get(("vm", key, True), 0)
        if vb != 999 and vb > va: self.e(f"s_waitcnt vmcnt({vb})")
        if vb > va:
            self.e(cmp_txt); self.e(f"s_cbranch_scc1 {lab}")
        val = min(va, vb) if not (alt and vb > va) else vb
        if min(va, vb) != 999: self.e(f"s_waitcnt vmcnt({min(va, vb)})")
        if vb > va: self.label(lab)
        if val != 999: del q[:len(q) - val if val < len(q) else 0]
    def vm(self, tag, text):
        self.e(text); self.vq.append(tag); self.issued[tag] = self.issued.get(tag, 0) + 1
    def ld(self, tag, text):
        self.e(text); self.lq.append(tag); self.issued[tag] = self.issued.get(tag, 0) + 1
    def drain(self, n=1):
        for _ in range(n):
            if self.pend: self.pend.pop(0)()
    def optional(self, taken, fn):
        if taken: fn()
        elif not self.mute:
            st = (list(self.vq), list(self.lq), dict(self.issued))
            fn()
            self.vq[:], self.lq[:] = st[0], st[1]; self.issued = st[2]

def mfma(e, d, a, b, c):
    if not OPT["nomf"]:
        e(f"v_mfma_f32_16x16x32_bf16 {v(d,4)}, {v(a,4)}, {v(b,4)}, {c if c == '0' else v(c,4)}")


KL = OPT["kl"]
KVT = [k for k in range(NX) if not OPT['burst'] or k % 2 == OPT['kpar']]
N0 = max(u for u in range(300) if 4 * (u - KL) + 4 <= XB_[KVT[-1]]) + 1
def lane_regs(e, b=2):
    e(f"""
v_mbcnt_lo_u32_b32 v{b}, -1, 0
v_mbcnt_hi_u32_b32 v{b}, -1, v{b}
v_and_b32 v{b+1}, 15, v{b}
v_lshrrev_b32 v{b+2}, 4, v{b}
v_lshrrev_b32 v{b+3}, 2, v{b}
v_and_b32 v{b+4}, 3, v{b+3}
v_and_b32 v{b+5}, 3, v{b}
v_lshrrev_b32 v{b+6}, 3, v{b}
v_and_b32 v{b+7}, 7, v{b}
""")
def kv_kind(a):
    a %= 32
    return "K" if (a == 0 or (a % 2 == 1 and a < 31)) else "V"
def kv_tile(a):
    u, a = divmod(a, 32)
    return u * 16 + (0 if a == 0 else 15 if a == 31 else (a + 1) // 2 if a % 2 == 1 else (a - 2) // 2)
def QAC(hh, rt, k): return ((hh * 7 + rt) * 3 + k) * 4
QW = [248, 249, 250]


class OpEngine:
    def __init__(self, g, PK, AC0, AF0, BF0, RA, OB, PO, ring, sM0, ringoff):
        self.g, self.e = g, g.e
        self.PK, self.AC0, self.AF0, self.BF0, self.RA, self.OB, self.PO = PK, AC0, AF0, BF0, RA, OB, PO
        self.ring, self.sM0, self.ro = ring, sM0, ringoff
        self.dq = []; self.pq = []; self.clock = 0; self.fl = OPT['wo']; self.nr = 4; self.early = 0
    def AC(self, k): return self.AC0 + 4 * k
    def AF(self, s, i): return self.AF0 + 8 * (s & 1) + 4 * i
    def BF(self, n): return self.BF0 + 4 * (n % 6)
    def slot(self, i): return ((i + self.ro) % self.nr) * 8192
    def addr_setup(self):
        e = self.e
        lane_regs(e, 232)
        L = 232
        e(f"""
v_lshlrev_b32 v{self.OB}, 4, v{L}
v_lshlrev_b32 v{L+8}, 1, v{L+2}
v_xor_b32 v{L+8}, v{L+1}, v{L+8}
v_lshlrev_b32 v{L+8}, 4, v{L+8}
v_mul_u32_u24 v{L+9}, 1280, v{L+2}
v_add_u32 v{self.PO[0]}, v{L+8}, v{L+9}
v_xor_b32 v{L+8}, 128, v{L+8}
v_add_u32 v{L+8}, v{L+8}, v{L+9}
v_add_u32 v{self.PO[1]}, 4096, v{L+8}
s_lshl_b32 s{sT1}, s{sW4}, 1
v_and_b32 v{L+8}, 7, v{L+3}
v_xor_b32 v{L+8}, s{sT1}, v{L+8}
v_lshlrev_b32 v{L+8}, 5, v{L+8}
v_lshl_add_u32 v{L+8}, v{L+3}, 8, v{L+8}
v_lshl_add_u32 v{L+8}, v{L+5}, 3, v{L+8}
v_add_u32 v{self.RA[0]}, {self.ring}, v{L+8}
v_xor_b32 v{self.RA[1]}, 32, v{self.RA[0]}
""")
    def dma(self, i):
        ps, j = divmod(i, 6)
        out = []
        for q in range(2):
            def f(q=q):
                if q == 0:
                    self.e(f"s_add_u32 m0, s{self.sM0}, {self.ring+self.slot(i)}")
                    self.e(f"s_add_u32 s{sT2}, s{sOB}, {j*32*1280+ps*256}")
                o = "offset:1024 " if q else ""
                self.g.vm(f"O{i}", f"buffer_load_dwordx4 v{self.PO[q]}, s[{sOd}:{sOd+3}], s{sT2} offen {o}{self.fl} lds")
            out.append(f)
        return out
    def defer(self, at, ins):
        for x in ins: self.dq.append((at, x))
    def run_dq(self, n):
        while n > 0 and self.dq and self.dq[0][0] <= self.clock:
            x = self.dq.pop(0)[1]
            if callable(x): x()
            else: self.e(x)
            n -= 1
    def flush_pq(self):
        while self.pq: self.pq.pop(0)[1]()
    def a_read(self, i, n):
        k, hf = divmod(n, 2)
        self.g.ld(f"o{i}a{k}", f"ds_read_b64_tr_b16 {v(self.AF(i,k)+2*hf,2)}, v{self.RA[k]} offset:{self.slot(i)+hf*4096}")
    def b_read(self, b):
        i, rt = divmod(b, 7)
        self.g.ld(f"o{i}b{rt}", f"ds_read_b128 {v(self.BF(b),4)}, v{self.OB} offset:{QO+(i%6*7+rt)*1024}")
    def first_reads(self, i):
        self.a_read(i, 0); self.a_read(i, 1); self.b_read(7 * i); self.a_read(i, 2); self.a_read(i, 3)
        for n in range(1, 6): self.b_read(7 * i + n)
    def unpack_l(self, dst, src):
        return [f"v_perm_b32 v{dst+x}, v{src+x//2}, v{src+x//2}, s{sSHI if x & 1 else sSLO}" for x in range(4)]
    def pack_l(self, dst, src):
        return [f"v_cvt_pk_bf16_f32 v{dst}, v{src}, v{src+1}", f"v_cvt_pk_bf16_f32 v{dst+1}, v{src+2}, v{src+3}"]
    def store_l(self, ps, rt):
        o = (ps * 7 + rt) * 1024
        return [f"s_mov_b32 s{sT3}, {o - o % 4096}",
                lambda: self.g.vm("st", f"buffer_store_dwordx4 {v(self.PK(ps*14+rt*2),4)}, v{self.OB}, s[{sPd}:{sPd+3}], s{sT3} offen offset:{o%4096} {OPT['st']}")]
    def step(self, key, i, last, tick, store=False, hooks=None):
        g, e = self.g, self.e
        ps, j = divmod(i, 6)
        BAR = OPT["bar"]
        c0 = self.clock
        if store and not self.early and i >= last - 3 and i < last:
            todo = [(q, rt) for q in range(store[0], ps) for rt in range(7)]
            k = i - (last - 3)
            mine = todo[k * len(todo) // 3:(k + 1) * len(todo) // 3]
            for n, (q, rt) in enumerate(mine): self.defer(c0 + (6 if k == 0 else 0) + n * (8 if k == 0 else 14) // len(mine), self.store_l(q, rt))
        if j == 5 and (i < last or store):
            for n in range(14):
                ins = self.pack_l(self.PK(ps * 14 + n), self.AC(n))
                if i < last: ins += self.unpack_l(self.AC(n), self.PK((ps + 1) * 14 + n))
                if store and n % 2 == 1 and (i == last or self.early): ins += self.store_l(ps, n // 2)
                self.defer(c0 + n + 4, ins)
        for n in range(14):
            rt, k = divmod(n, 2)
            if n == BAR and i < last: tick(i)
            if hooks and n in hooks: hooks[n]()
            tags = ([f"o{i}b{rt}"] if k == 0 else []) + ([f"o{i}a{k}"] if rt == 0 else [])
            if tags: g.wait("lg", f"{key}{i}m{n}", tags)
            mfma(e, self.AC(n), self.AF(i, k), self.BF(7 * i + rt), self.AC(n))
            if k == 1 and 7 * i + rt + 6 < 7 * (last + 1): self.b_read(7 * i + rt + 6)
            if k == 0 and i < last and BAR < n <= BAR + 8: self.a_read(i + 1, (n - BAR - 1) // 2)
            while self.pq and self.pq[0][0] <= self.clock: self.pq.pop(0)[1]()
            self.clock += 1
            self.run_dq(7)
    def finish(self):
        self.flush_pq(); self.clock += 100; self.run_dq(1000)

def qp_phase(p, needs):
    g = Gen(p, needs); e = g.e
    AC = QAC
    def AF(par, hh, k): return 168 + par * 24 + (hh * 3 + k) * 4
    def BF(n): return 216 + 4 * (n % 4)
    RA = [[232, 233, 234], [235, 236, 237]]; XA = [238, 239]; PW = [243, 244, 245]; PX = 246
    JUNK = 247
    STG = [KVB, T1R]
    NB1, NB2 = OPT["nb1"], OPT["nb2"]
    QV = OPT["qv"]
    HEAD = {(0, 0): 0, (0, 1): 3, (1, 0): 1, (1, 1): 2}
    def dma_w(i, hh):
        out = []
        for tm in (range(2) if QV else [None]):
            for ii in range(3):
                def f(ii=ii, tm=tm):
                    if ii == 0:
                        if QV:
                            e(f"s_add_u32 m0, s{sLW}, {STG[i&1]+hh*2*TILE+tm*TILE}")
                            e(f"s_add_u32 s{sT1}, s{sWB}, {i*32*12288+HEAD[tm,hh]*384}")
                        else:
                            e(f"s_add_u32 m0, s{sLW}, {STG[i&1]+hh*2*TILE}")
                            e(f"s_add_u32 s{sT1}, s{sWB2 if hh else sWB}, {i*32*12288}")
                    o = f"offset:{ii*1024} " if ii else ""
                    g.vm(f"W{i}.{hh}", f"buffer_load_dwordx4 v{PW[ii]}, s[{sWd}:{sWd+3}], s{sT1} offen {o}{OPT['w']} lds")
                out.append(f)
        return out
    def dma_x(pp):
        out = []
        nq = 4 if QV else 2
        for q in range(nq):
            def f(q=q):
                if q < nq - 1: e(f"s_add_u32 m0, s{sXM}, {QO+(pp%3)*14336+q*16384//nq}")
                else:
                    e(f"s_add_u32 s{sT2}, s{sXM}, {QO+(pp%3)*14336+q*16384//nq}")
                    e(f"s_cmp_ge_u32 s{sWAVE}, 6")
                    e(f"s_cselect_b32 m0, s{sXF}, s{sT2}")
                e(f"s_add_u32 s{sT2}, s{sXB}, {pp*128+q*163840//nq}")
                g.vm(f"X{pp}", f"buffer_load_dwordx4 v{PX}, s[{sXd}:{sXd+3}], s{sT2} offen {OPT['x']} lds")
            out.append(f)
        return out
    nlab = [0]
    def issue(fs):
        if not QV:
            g.pend += fs; return
        if not fs: return
        nlab[0] += 1
        e(f"s_cmp_eq_u32 s{sTEAM}, 0")
        e(f"s_cbranch_scc1 qp_i{nlab[0]}")
        for f in fs: f()
        g.label(f"qp_i{nlab[0]}")
    def a_read(i, hh, n):
        k, hf = divmod(n, 2)
        g.ld(f"{i}a{hh}{k}", f"ds_read_b64_tr_b16 {v(AF(i&1,hh,k)+2*hf,2)}, v{RA[i&1][k]} offset:{hh*2*TILE+hf*1536}")
    def b_read(i, rt):
        g.ld(f"{i}b{rt}", f"ds_read_b128 {v(BF(7*i+rt),4)}, v{XA[i&1]} offset:{((i>>1)%3)*14336+rt*2048}")
    lane_regs(e)
    e(f"""
v_lshrrev_b32 v13, 1, v8
v_and_b32 v13, 3, v13
v_lshlrev_b32 v13, 1, v13
v_xor_b32 v13, v9, v13
v_lshlrev_b32 v13, 4, v13
v_mul_u32_u24 v14, 1280, v8
v_add_u32 v{PX}, v13, v14
v_mul_u32_u24 v14, 384, v8
v_add_u32 v{PKV_}, v13, v14
s_mul_i32 s{sXB}, s{sW4 if QV else sWAVE}, 10240
s_lshl_b32 s{sXM}, s{sW4 if QV else sWAVE}, 10
s_sub_u32 s{sXF}, s{sXM}, {2048 if QV else 6144}
s_add_u32 s{sXF}, s{sXF}, {SPARE}
""")
    issue(dma_x(0)); g.drain(9)
    e(f"""
s_and_b32 s{sT1}, s{sW4}, 1
s_lshl_b32 s{sT1}, s{sT1}, 2
v_xor_b32 v16, s{sT1}, v9
s_mul_i32 s{sWB}, s{sW4}, {8*12288}
s_mul_i32 s{sT1}, s{sTEAM}, {0 if QV else 384}
s_add_u32 s{sWB2}, s{sWB}, 1152
s_add_u32 s{sWB}, s{sWB}, s{sT1}
s_sub_u32 s{sWB2}, s{sWB2}, s{sT1}
s_mul_i32 s{sT1}, s{sTEAM}, {0 if QV else TILE}
s_add_u32 s{sLW}, s{sLW}, s{sT1}
""")
    for q in range(3):
        e(f"""
v_add_u32 v10, {8*q}, v8
v_mul_u32_u24 v11, 43, v10
v_lshrrev_b32 v11, 7, v11
v_mul_u32_u24 v12, 3, v11
v_sub_u32 v12, v10, v12
v_lshrrev_b32 v13, 1, v11
v_and_b32 v14, 1, v13
v_xor_b32 v14, v16, v14
v_lshlrev_b32 v14, 4, v14
v_lshl_add_u32 v14, v12, 7, v14
v_mul_u32_u24 v15, 12288, v11
v_add_u32 v14, v14, v15
v_subrev_u32 v{PW[q]}, {q*1024}, v14
""")
    issue(dma_w(0, 0) + dma_w(0, 1)); g.drain(9)
    if OPT["touch"]:
        nsh = 16 if OPT["map"] == 0 else 8
        rows = 640 // nsh // 8
        e(f"""
s_and_b32 s{sT1}, s{sB}, {nsh-1}
s_lshl_b32 s{sT1}, s{sT1}, 3
s_add_u32 s{sT1}, s{sT1}, s{sWAVE}
s_mul_i32 s{sT1}, s{sT1}, {rows*12288}
v_mul_u32_u24 v10, 43, v2
v_lshrrev_b32 v10, 9, v10
v_mul_u32_u24 v11, 12, v10
v_sub_u32 v11, v2, v11
v_mul_u32_u24 v10, 12288, v10
v_lshl_add_u32 v10, v11, 7, v10
""")
        for r in range(rows // 5):
            g.vm("pf", f"buffer_load_dword v{JUNK}, v10, s[{sWd}:{sWd+3}], s{sT1} offen {OPT['tq']}")
            e(f"s_add_u32 s{sT1}, s{sT1}, {5*12288}")
    if OPT["touch"] and OPT["xt"]:
        e(f"""
s_and_b32 s{sT1}, s{sQUAD}, 1
s_mul_i32 s{sT1}, s{sT1}, 71680
s_mul_i32 s{sT2}, s{sWAVE}, {70*128}
s_add_u32 s{sT1}, s{sT1}, s{sT2}
v_lshlrev_b32 v10, 7, v2
""")
        g.vm("pf", f"buffer_load_dword v{JUNK}, v10, s[{sXd}:{sXd+3}], s{sT1} offen")
        g.vm("pf", f"buffer_load_dword v{JUNK}, v10, s[{sXd}:{sXd+3}], s{sT1} offen offset:768")
    e(f"""
v_lshrrev_b32 v8, 1, v3
v_and_b32 v8, 3, v8
v_lshlrev_b32 v8, 1, v8
v_xor_b32 v8, v4, v8
v_lshlrev_b32 v8, 4, v8
v_lshl_add_u32 v9, v3, 7, v8
v_add_u32 v{XA[0]}, {QO}, v9
v_xor_b32 v{XA[1]}, 64, v{XA[0]}
v_lshl_add_u32 v8, v4, 3, v6
v_mul_u32_u24 v9, 384, v8
v_lshrrev_b32 v8, 1, v6
v_and_b32 v11, 1, v4
v_lshl_add_u32 v8, v11, 2, v8
v_xor_b32 v8, v7, v8
v_lshl_add_u32 v9, v8, 4, v9
v_lshlrev_b32 v12, 3, v11
v_lshl_add_u32 v12, v2, 4, v12
v_and_b32 v11, 1, v7
v_lshl_add_u32 v11, v11, 3, v9
s_mov_b32 s{sC}, {hex(f2u(192 ** -0.5 * math.log2(math.e)))}
s_mov_b32 s{sC+1}, s{sC}
""")
    for i in range(3):
        e(f"""
s_mul_i32 s{sT1}, s{sW4}, 3
s_add_u32 s{sT1}, s{sT1}, {i}
s_lshr_b32 s{sT2}, s{sT1}, 2
s_lshl_b32 s{sRY+i}, s{sT2}, 7
s_and_b32 s{sT3}, s{sT1}, 3
s_xor_b32 s{sT3}, s{sT3}, s{sW4}
s_lshl_b32 s{sRX+i}, s{sT3}, 5
s_and_b32 s{sT3}, s{sT1}, 2
s_lshl_b32 s{sT3}, s{sT3}, 5
s_and_b32 s{sT2}, s{sT1}, 1
s_lshl_b32 s{sT2}, s{sT2}, 3
v_xor_b32 v{QW[i]}, s{sT2}, v12
s_or_b32 s{sT3}, s{sT3}, s{sT2}
v_xor_b32 v13, s{sT3}, v11
s_lshr_b32 s{sT1}, s{sT1}, 1
s_mul_i32 s{sT1}, s{sT1}, 7168
v_add_u32 v{QW[i]}, s{sT1}, v{QW[i]}
s_mul_i32 s{sT1}, s{sTEAM}, {TILE}
s_add_u32 s{sT1}, s{sT1}, s{sRY+i}
v_add_u32 v13, s{sT1}, v13
v_add_u32 v{RA[1][i]}, {T1R}, v13
v_add_u32 v{RA[0][i]}, {KVB}, v13
""")
    g.wait("vm", "in", ["W0.0", "W0.1", "X0"])
    e("s_barrier")
    stamp(e, 14)
    e(f"""
s_cmp_lg_u32 s{sWAVE}, 0
s_cbranch_scc1 k1_nocnt
s_mov_b32 s4, s26
s_mov_b32 s5, s27
s_mov_b32 s6, 256
s_mov_b32 s7, 0x20000
s_lshl_b32 s{sT1}, s{sGRP}, 2
v_mov_b32 v252, 0
v_mov_b32 v253, 1
s_mov_b64 exec, 1
buffer_atomic_add v253, v252, s[4:7], s{sT1} offen sc1
s_mov_b64 exec, -1
k1_nocnt:
""")
    a_read(0, 0, 0); a_read(0, 0, 1); b_read(0, 0); b_read(0, 1)
    for n in range(2, 6): a_read(0, 0, n)
    for n in range(6): a_read(0, 1, n)
    for rt in range(2, 4): b_read(0, rt)
    issue(dma_w(1, 0) + dma_w(1, 1) + dma_x(1)); g.drain(9)
    ORD = [(rt, 0, k) for rt in (0, 1) for k in range(3)] + [(rt, 1, k) for rt in (0, 1) for k in range(3)]
    ORD += [(rt, hh, k) for rt in range(2, 7) for hh in range(2) for k in range(3)]
    lastb = {rt: max(n for n, x in enumerate(ORD) if x[0] == rt) for rt in range(7)}
    A0 = [NB1 + 2 + 3 * x for x in range(6)]
    A1 = [NB2 + 1 + 2 * x for x in range(6)]
    def qcvt(n):
        rt, hh, k = ORD[n]
        a = AC(hh, rt, k)
        e(f"v_pk_mul_f32 {v(a,2)}, {v(a,2)}, s[{sC}:{sC+1}]")
        e(f"v_pk_mul_f32 {v(a+2,2)}, {v(a+2,2)}, s[{sC}:{sC+1}]")
        e(f"v_cvt_pk_bf16_f32 v{a}, v{a}, v{a+1}")
        e(f"v_cvt_pk_bf16_f32 v{a+1}, v{a+2}, v{a+3}")
    lastd = [0]
    for i in range(20):
        seen = set()
        for n, (rt, hh, k) in enumerate(ORD):
            if n == NB1 and i < 19:
                g.drain(9); lastd[0] = n - 9
                g.wait("lg", f"r1{i}", [], drain_tags=[f"{i}a1{x}" for x in range(3)])
                g.wait("vm", f"s{i}", [f"W{i+1}.0"] + ([f"X{(i+1)//2}"] if i % 2 == 1 else []))
                e("s_barrier")
                issue(((dma_w(i + 2, 0) if i == 0 else []) + dma_w(i + 2, 1) if i + 2 < 20 else []) + (dma_x(i // 2 + 2) if i % 2 == 0 and i // 2 + 2 < 10 else []))
            if n == NB2 and i < 19:
                g.drain(9); lastd[0] = n - 9
                g.wait("lg", f"r2{i}", [], drain_tags=[f"{i+1}a0{x}" for x in range(3)])
                g.wait("vm", f"t{i}", [f"W{i+1}.1"])
                e("s_barrier")
                if i + 3 < 20: issue(dma_w(i + 3, 0))
            if OPT["stl"] and n == NB1 + 1 and i in range(OPT["stl"], OPT["stl"] + 2 * OPT["stn"], 2):
                r = (i - OPT["stl"]) // 2
                e(f"""
s_lshr_b32 s{sT3}, s{sWAVE}, 1
s_cmp_eq_u32 s{sT3}, 0
s_cselect_b64 s[4:5], s[{sKd}:{sKd+1}], s[{sVd}:{sVd+1}]
s_cmp_eq_u32 s{sT3}, 2
s_cselect_b64 s[4:5], s[{sOd}:{sOd+1}], s[4:5]
s_and_b32 s{sT3}, s{sWAVE}, 1
s_mul_i32 s6, s{sT3}, {786432 // 2}
s_add_u32 s6, s6, {r * (786432 // 2 // OPT["stn"]) + (786432 // 2 // OPT["stn"]) - 64}
s_cmp_eq_u32 s{sWAVE}, 6
s_cselect_b64 s[4:5], s[{sPd}:{sPd+1}], s[4:5]
s_cselect_b32 s6, 0, s6
s_cmp_eq_u32 s{sWAVE}, 7
s_cselect_b64 s[4:5], s[24:25], s[4:5]
s_mul_i32 s{sT3}, s{sB}, {112*2560}
s_cselect_b32 s6, s{sT3}, s6
s_load_dword s99, s[4:5], s6
""")
            if OPT["pwo"] and n == 20 and i == OPT["pwo"]:
                nsh = 16 if OPT["map"] == 0 else 8
                per = 245760 * OPT["pwh"] // (8 * nsh)
                e(f"""
s_and_b32 s{sT3}, s{sB}, {nsh-1}
s_lshl_b32 s{sT3}, s{sT3}, 3
s_add_u32 s{sT3}, s{sT3}, s{sWAVE}
s_mul_i32 s{sT3}, s{sT3}, {per}
s_add_u32 s{sT3}, s{sT3}, {245760 * (4 - OPT["pwh"])}
v_mbcnt_lo_u32_b32 v251, -1, 0
v_mbcnt_hi_u32_b32 v251, -1, v251
v_min_u32 v251, {min(59, per // 128 - 1)}, v251
v_lshlrev_b32 v251, 7, v251
""")
                for r in range(max(1, per // 7680)):
                    g.vm("pf", f"buffer_load_dword v{JUNK}, v251, s[{sOd}:{sOd+3}], s{sT3} offen {OPT['pwf']}")
                    e(f"s_add_u32 s{sT3}, s{sT3}, 7680")
            if n == NB2 + 1 and i == 18:
                e(f"s_cmp_eq_u32 s{sTEAM}, 0")
                e("s_cbranch_scc1 qp_nokv")
                e(f"s_mul_i32 s{sKSO2}, s{sW4}, 3072")
                e(f"s_lshl_b32 s{sT3}, s{sW4}, 10")
                for u in range(N0 - 96):
                    a, bb = divmod(u, 3)
                    e(f"s_add_u32 m0, s{sT3}, {KVB + (u % NS) * 4096 - bb * 128}")
                    e(f"s_add_u32 s{sT1}, s{sKSO2}, {kv_tile(a) * TILE}")
                    srd = sKd if kv_kind(a) == "K" else sVd
                    e(f"buffer_load_dwordx4 v{PKV_}, s[{srd}:{srd+3}], s{sT1} offen offset:{bb*128} {OPT['kv']} lds")
                g.label("qp_nokv")
            tags = [t for t in (f"{i}b{rt}", f"{i}a{hh}{k}") if t not in seen]
            seen.update(tags)
            if tags: g.wait("lg", f"{i}m{n}", tags)
            mfma(e, AC(hh, rt, k), AF(i & 1, hh, k), BF(7 * i + rt), "0" if i == 0 else AC(hh, rt, k))
            if n == lastb[rt]:
                if rt + 4 < 7: b_read(i, rt + 4)
                elif i < 19: b_read(i + 1, rt - 3)
            if i < 19 and n in A0: a_read(i + 1, 0, A0.index(n))
            if i < 19 and n in A1: a_read(i + 1, 1, A1.index(n))
            if g.pend and (n - lastd[0]) % 42 >= (OPT["qd"] if len(g.pend) <= 3 else OPT["qd"] - 2):
                g.drain(1); lastd[0] = n
            if i == 19 and n >= 4: qcvt(n - 4)
    for n in range(38, 42): qcvt(n)
    stamp(e, 15)
    e("s_barrier")
    return g.rec

def t0_path(p, needs, nrt, tag):
    g = Gen(p, needs); e = g.e
    def ACC(rt, t): return rt * 48 + t * 4
    def Q(rt, j): return 96 + rt * 24 + j * 4
    def S(par, rt, kt=0): return 144 + par * 16 + rt * 8 + kt * 4
    def P(par, rt): return 176 + par * 8 + rt * 4
    def NEGM(rt): return 192 + rt * 4
    def LSUM(rt): return 200 + rt * 4
    def STG(rt, j): return 144 + (j * 2 + rt) * 4 if j < 5 else 192 + rt * 4
    ONES = 208
    FR0 = 212; NFR = 8
    def FR(a, f): return FR0 + ((a * 12 + f) % NFR) * 4
    KA = [244, 245]; VA = [246, 247, 248, 249]; QOA = 250
    TC = 251; T = [252, 253, 254, 255]
    HOLD = [48 + 4 * i for i in range(12)] + [156, 172, 180, 188, 196, 204]
    def rd_l(a, f):
        base = ((3 * a + f // 4) % NS) * 4096; tg = f"A{a%32}f{f}"
        if kv_kind(a) == "K":
            j, kt = divmod(f, 2)
            return [lambda: g.ld(tg, f"ds_read_b128 {v(FR(a,f),4)}, v{KA[j&1]} offset:{base+kt*2048}")]
        return [lambda hf=hf: g.ld(tg, f"ds_read_b64_tr_b16 {v(FR(a,f)+2*hf,2)}, v{VA[f&3]} offset:{base+hf*2048}") for hf in range(2)]
    def run(x):
        if callable(x): x()
        else: e(x)
    def cost(x): return 2 if isinstance(x, str) and x.startswith(("v_exp", "v_rcp")) else 1
    def step(key, a, mfs, valu=(), last=False, extra=None, v0=0):
        valu = list(valu)
        ngap = sum(len(mfs(f, 0)) for f in range(v0, 12))
        tot = sum(cost(x) for x in valu); done = 0; gap = 0
        for f in range(12):
            pos = a * 12 + f
            if extra and f in extra: extra[f]()
            if pos in XB_: e("s_barrier")
            reads = rd_l(a, f + LEAD) if f + LEAD < 12 else ([] if last else rd_l(a + 1, f + LEAD - 12))
            if not OPT["w2"]: g.wait("lg", f"{key}{f}", [f"A{a}f{f}"])
            elif f % 2 == 0: g.wait("lg", f"{key}{f}", [f"A{a}f{f}", f"A{a}f{f+1}"])
            ms = mfs(f, FR(a, f))
            for i, m in enumerate(ms):
                m()
                if reads: reads.pop(0)()
                if i == len(ms) - 1:
                    while reads: reads.pop(0)()
                if f >= v0:
                    gap += 1
                    while valu and done + cost(valu[0]) / 2 <= tot * gap / ngap:
                        done += cost(valu[0]); run(valu.pop(0))
        for x in valu: run(x)
    def mf_qk(par, zero):
        def m(f, fr):
            j, kt = divmod(f, 2)
            return [lambda rt=rt: mfma(e, S(par, rt, kt), fr, Q(rt, j), ("0" if zero else NEGM(rt)) if j == 0 else S(par, rt, kt)) for rt in range(nrt)]
        return m
    def onorm_l(j):
        out = []
        for rt in range(nrt):
            a = ACC(rt, 2 * j)
            out += [f"v_pk_mul_f32 {v(a+i,2)}, {v(a+i,2)}, {v(T[2*rt],2)}" for i in range(0, 8, 2)]
            out += [f"v_cvt_pk_bf16_f32 v{STG(rt,j)+i}, v{a+2*i}, v{a+2*i+1}" for i in range(4)]
        return out
    def mf_pv(par, first, last=False):
        def m(f, fr):
            out = []
            if f == (0 if last else 5):
                out += [lambda rt=rt: mfma(e, LSUM(rt), ONES, P(par, rt), "0" if first else LSUM(rt)) for rt in range(nrt)]
            return out + [lambda rt=rt: mfma(e, ACC(rt, f), fr, P(par, rt), "0" if first else ACC(rt, f)) for rt in range(nrt)]
        return m
    def sm(par, lo=0, hi=None):
        grp = [(rt, i) for rt in range(nrt) for i in range(4)][lo:hi]
        seq = []
        for n, (rt, i) in enumerate(grp):
            a, b = T[(2 * n) % 4], T[(2 * n + 1) % 4]
            r = S(par, rt) + 2 * i
            seq += [f"v_exp_f32 v{a}, v{r}", f"v_exp_f32 v{b}, v{r+1}"]
            if n > 0: seq.append(prev)
            prev = f"v_cvt_pk_bf16_f32 v{P(par,rt)+i}, v{a}, v{b}"
        return seq + [prev] if grp else []
    def chk_l(par):
        p0 = P(par, 0)
        out = [f"v_or3_b32 v{TC}, v{p0}, v{p0+1}, v{p0+2}"]
        if nrt == 2:
            out += [f"v_or3_b32 v{TC}, v{TC}, v{p0+3}, v{p0+4}", f"v_or3_b32 v{TC}, v{TC}, v{p0+5}, v{p0+6}"]
        out += [f"v_bitop3_b32 v{TC}, v{TC}, v{p0+4*nrt-1}, s{sBIT} bitop3:0xa8", f"v_cmp_ne_u32 vcc, 0, v{TC}"]
        return out
    def chk_branch(par, key):
        e(f"s_cbranch_vccz t0_ok{key}_{tag}")
        if not OPT["norare"]: e(f"s_call_b64 s[{sRET}:{sRET+1}], t0_rare{par}_{tag}")
        g.label(f"t0_ok{key}_{tag}")
    def rowmax(par, rt, t, t2):
        r = S(par, rt)
        e(f"""
v_max3_f32 v{t}, v{r}, v{r+1}, v{r+2}
v_max3_f32 v{t}, v{t}, v{r+3}, v{r+4}
v_max3_f32 v{t}, v{t}, v{r+5}, v{r+6}
v_max_f32 v{t}, v{t}, v{r+7}
v_mov_b32 v{t2}, v{t}
v_permlane32_swap_b32 v{t2}, v{t}
v_max_f32 v{t}, v{t}, v{t2}
v_mov_b32 v{t2}, v{t}
v_permlane16_swap_b32 v{t2}, v{t}
v_max_f32 v{t}, v{t}, v{t2}
v_add_f32 v{t}, {hex(f2u(7.0))}, v{t}
""")
    for rt in range(7):
        for k in range(3): e(f"ds_write_b64 v{QW[k]}, {v(QAC(0,rt,k),2)} offset:{QO+rt*1024}")
    for k in range(3):
        e(f"""
s_mul_i32 s{sT1}, s{sW4}, 3
s_add_u32 s{sT1}, s{sT1}, {k}
s_lshr_b32 s{sT1}, s{sT1}, 1
s_cmp_lt_u32 s{sT1}, 3
s_cselect_b32 s{sT3}, {B2 - (T1R + 6144 - 18432)}, 0
s_add_u32 s{sT3}, s{sT3}, {T1R + 6144 - 18432}
s_lshl_b32 s{sT2}, s{sT1}, 10
s_sub_u32 s{sT2}, s{sT3}, s{sT2}
v_add_u32 v{240+k}, s{sT2}, v{QW[k]}
s_mul_i32 s{sT2}, s{sT1}, 6144
s_sub_u32 s{sT2}, {T1R}, s{sT2}
v_add_u32 v{243+k}, s{sT2}, v{QW[k]}
""")
    for rt in range(7):
        for k in range(3): e(f"ds_write_b64 v{(240 if rt < 6 else 243)+k}, {v(QAC(1,rt,k),2)} offset:{rt*1024 if rt < 6 else 0}")
    e("s_waitcnt lgkmcnt(0)")
    lane_regs(e)
    e(f"""
s_lshl_b32 s{sT1}, s{sWAVE}, 11
s_add_u32 s{sT1}, s{sT1}, {QO}
v_lshl_add_u32 v{QOA}, v2, 4, s{sT1}
v_lshrrev_b32 v8, 1, v3
v_and_b32 v8, 3, v8
v_lshlrev_b32 v8, 1, v8
v_xor_b32 v8, v4, v8
v_lshlrev_b32 v8, 4, v8
v_lshl_add_u32 v8, v3, 7, v8
v_add_u32 v{KA[0]}, {KVB}, v8
v_xor_b32 v{KA[1]}, 64, v{KA[0]}
v_lshrrev_b32 v8, 1, v5
v_and_b32 v8, 3, v8
v_lshlrev_b32 v8, 5, v8
v_lshl_add_u32 v8, v5, 7, v8
v_lshl_add_u32 v8, v7, 3, v8
v_add_u32 v{VA[0]}, {KVB}, v8
v_xor_b32 v{VA[1]}, 32, v{VA[0]}
v_xor_b32 v{VA[2]}, 64, v{VA[0]}
v_xor_b32 v{VA[3]}, 96, v{VA[0]}
s_mov_b32 s{sBIT}, 0x40004000
s_mov_b32 s{sSLOT}, 1
""")
    for i in range(4): e(f"v_mov_b32 v{ONES+i}, 0x3f803f80")
    H = 4 if (nrt == 2 and OPT["psplit"]) else (2 if OPT["psplit"] else 0)
    for unit in range(2):
        if unit >= 1: g.mute += 1
        g.label(f"t0_unit_{tag}")
        e("s_barrier")
        if not g.mute: stamp_slot(e)
        e(f"s_cmp_gt_u32 s{sSLOT}, 3")
        e(f"s_cbranch_scc1 t0_q3_{tag}")
        for j in range(6):
            for rt in range(nrt): e(f"ds_read_b128 {v(Q(rt,j),4)}, v{QOA} offset:{(j*7+rt)*1024}")
        e(f"s_cmp_lg_u32 s{sSLOT}, 1")
        e(f"s_cbranch_scc1 t0_w_{tag}")
        if nrt == 1:
            for j in range(6): e(f"ds_read_b128 {v(Q(1,j),4)}, v{QOA} offset:{T1R-6144+j*1024}")
            for n in range(18): e(f"ds_read_b128 {v(HOLD[n],4)}, v{QOA} offset:{T1R+n*1024}")
        e(f"s_branch t0_noo_{tag}")
        g.label(f"t0_q3_{tag}")
        e(f"s_cmp_eq_u32 s{sSLOT}, 5")
        e(f"s_cbranch_scc1 t0_w_{tag}")
        if nrt == 1:
            for i in range(24): e(f"v_mov_b32 v{Q(0,0)+i}, v{Q(1,0)+i}")
        else:
            e(f"v_add_u32 v{TC}, {B2}, v{QOA}")
            for j in range(6):
                for rt in range(nrt):
                    if j < 3: e(f"ds_read_b128 {v(Q(rt,j),4)}, v{TC} offset:{(j*6+rt)*1024}")
                    else: e(f"ds_read_b128 {v(Q(rt,j),4)}, v{QOA} offset:{(j*7+rt)*1024}")
        g.label(f"t0_w_{tag}")
        e("s_waitcnt lgkmcnt(0)")
        for j in range(6):
            for rt in range(nrt): e(f"ds_write_b128 v{QOA}, {v(STG(rt,j),4)} offset:{(j*7+rt)*1024}")
        e(f"s_cmp_eq_u32 s{sSLOT}, 5")
        e(f"s_cbranch_scc1 t0_exit_{tag}")
        g.label(f"t0_noo_{tag}")
        for f in range(LEAD):
            for x in rd_l(0, f): x()
        step("a0_", 0, mf_qk(0, True), extra={1: lambda: e("s_barrier")})
        for rt in range(nrt):
            rowmax(0, rt, T[0], T[1])
            for i in range(4): e(f"v_sub_f32 v{NEGM(rt)+i}, 0, v{T[0]}")
            for i in range(8): e(f"v_sub_f32 v{S(0,rt)+i}, v{S(0,rt)+i}, v{T[0]}")
        for t in range(15):
            step(f"q{t}_", 2 * t + 1, mf_qk((t + 1) & 1, False), valu=sm(t & 1, H if t else 0) + chk_l(t & 1))
            chk_branch(t & 1, f"q{t}")
            va = sm((t + 1) & 1, 0, H)
            if t == 14: va = sm(1) + chk_l(1)
            step(f"p{t}_", 2 * t + 2, mf_pv(t & 1, t == 0), valu=va, v0=1)
        chk_branch(1, "q15")
        rc = [f"v_rcp_f32 v{T[i]}, v{LSUM(i//2)}" for i in range(2 * nrt)]
        ex = {3: lambda: [e(x) for x in rc]}
        for j in range(4): ex[4 + 2 * j] = lambda j=j: [e(x) for x in onorm_l(j)]
        step("p15_", 31, mf_pv(1, False, True), last=True, extra=ex)
        for x in onorm_l(4) + onorm_l(5): e(x)
        if nrt == 1:
            e(f"s_cmp_lg_u32 s{sSLOT}, 3")
            e("s_cbranch_scc1 t0_nohold")
            e(f"v_subrev_u32 v{TC}, 6144, v{QOA}")
            for n in range(18): e(f"ds_write_b128 v{TC}, {v(HOLD[n],4)} offset:{((3+n//6)*7+n%6)*1024}")
            e("s_waitcnt lgkmcnt(0)")
            g.label("t0_nohold")
        e(f"""
s_add_u32 s{sSLOT}, s{sSLOT}, 1
s_branch t0_unit_{tag}
""")
        if unit >= 1: g.mute -= 1
    g.label(f"t0_exit_{tag}")
    e("s_branch t0_final")
    for par in range(2):
        g.label(f"t0_rare{par}_{tag}")
        for rt in range(nrt):
            t, t2 = TC, T[0]
            rowmax(par, rt, t, t2)
            e(f"v_max_f32 v{t}, 0, v{t}")
            for i in range(4): e(f"v_sub_f32 v{NEGM(rt)+i}, v{NEGM(rt)+i}, v{t}")
            for pp in range(2):
                for i in range(8): e(f"v_sub_f32 v{S(pp,rt)+i}, v{S(pp,rt)+i}, v{t}")
            e(f"v_exp_f32 v{t}, -v{t}")
            for i in range(4): e(f"v_mul_f32 v{LSUM(rt)+i}, v{LSUM(rt)+i}, v{t}")
            for i in range(48): e(f"v_mul_f32 v{ACC(rt,0)+i}, v{ACC(rt,0)+i}, v{t}")
        for x in sm(par): e(x)
        e(f"s_setpc_b64 s[{sRET}:{sRET+1}]")
    return g.rec


def t0_final(p, needs):
    g = Gen(p, needs); e = g.e
    g.label("t0_final")
    op = OpEngine(g, lambda tt: 2 * (tt - 42), 56, 112, 128, [244, 245], 246, [247, 248], KVB, sLW, 2)
    op.fl = OPT["wo5"]; op.early = OPT["early"] >> 1
    op.addr_setup()
    e(f"""
s_mul_i32 s{sOB}, s{sW4}, {8*1280}
s_add_u32 s{sOB}, s{sOB}, {3*245760}
s_lshl_b32 s{sLW}, s{sW4}, 11
s_mov_b32 s{sSLO}, 0x01000c0c
s_mov_b32 s{sSHI}, 0x03020c0c
s_lshl_b32 s{sT1}, s{sW4}, 10
s_add_u32 s{sT1}, s{sT1}, {KVB + 32768}
v_add_u32 v249, s{sT1}, v246
""")
    for i in range(18, 22):
        for f in op.dma(i): f()
    def pk_read(ps):
        for rt in range(7): g.ld("pk", f"ds_read_b128 {v(op.PK(ps*14+rt*2),4)}, v249 offset:{rt*4096}")
    e("s_waitcnt lgkmcnt(0)"); g.lq[:] = []
    e("s_barrier")
    pk_read(3)
    e("s_waitcnt lgkmcnt(0)"); g.lq[:] = []
    for k in range(14):
        for x in op.unpack_l(op.AC(k), op.PK(42 + k)): e(x)
    g.wait("vm", "in", ["O18"])
    e("s_barrier")
    op.first_reads(18)
    def tick(i):
        op.flush_pq()
        g.wait("vm", f"t{i}", [f"O{i+1}"])
        e("s_barrier")
        if i + 4 < 30:
            for f in op.dma(i + 4): f()
    for i in range(18, 30):
        op.step("f", i, 29, tick, store=[3], hooks={5: lambda: pk_read(4)} if i == 20 else None)
    op.finish()
    for i in range(5): e("s_barrier")
    e("s_branch k1_final")
    return g.rec

def t1_path(p, needs):
    g = Gen(p, needs); e = g.e
    def PK(tt): return 2 * tt
    def Q2(k): return PK(56) + 2 * k if k < 14 else 236 + 2 * (k - 14)
    OB = 252
    op = OpEngine(g, PK, 140, 196, 212, [250, 251], OB, [253, 254], T1R, sLW, 0)
    AC, AF, BF = op.AC, op.AF, op.BF
    def dma_sub(u):
        a, bb = divmod(u, 3)
        srd = sKd if kv_kind(a) == "K" else sVd
        def f():
            e(f"s_add_u32 m0, s{sL1}, {KVB + (u % NS) * 4096 - bb * 128}")
            e(f"s_add_u32 s{sT1}, s{sKSO2}, {kv_tile(a) * TILE}")
            off = f"offset:{bb*128} " if bb else ""
            g.vm(f"U{u % 96}", f"buffer_load_dwordx4 v{PKV_}, s[{srd}:{srd+3}], s{sT1} offen {off}{OPT['kv']} lds")
        return f
    st = dict(pub=0, iss=0)
    def kv_tags(k):
        upto = XB_[k + 1] if k < NX - 1 else 384
        n = -(-(upto + LEAD) // 4) if upto < 384 else 96
        tags = [f"U{u}" for u in range(st["pub"], n)]
        st["pub"] = max(st["pub"], n)
        return tags
    def kv_issue(k):
        out = []
        while k in KVT and 4 * (st["iss"] - KL) + 4 <= XB_[k]:
            out.append(dma_sub(st["iss"])); st["iss"] += 1
        return out
    def touch_o(t):
        nsh = 16 if OPT["map"] == 0 else 8
        per = 245760 // (4 * nsh)
        e(f"""
s_and_b32 s{sT1}, s{sB}, {nsh-1}
s_lshl_b32 s{sT1}, s{sT1}, 2
s_add_u32 s{sT1}, s{sT1}, s{sW4}
s_mul_i32 s{sT1}, s{sT1}, {per}
s_sub_u32 s{sT2}, s{sSLOT}, 1
s_mul_i32 s{sT2}, s{sT2}, 245760
s_add_u32 s{sT1}, s{sT1}, s{sT2}
s_mov_b32 m0, {SPARE}
v_lshrrev_b32 v{t}, 4, v{OB}
v_min_u32 v{t}, {per//128-1}, v{t}
v_lshlrev_b32 v{t}, 7, v{t}
""")
        g.vm("pf", f"buffer_load_dword v{t}, s[{sOd}:{sOd+3}], s{sT1} offen {OPT['tf']} lds")
    NEXT = {26: 2, 27: 3, 28: 0, 29: 1}
    def tick(i):
        waits = ([f"O{i+1}"] if i < 29 else []) + kv_tags(i)
        op.flush_pq()
        if waits: g.wait("vm", f"o{i}", waits)
        if OPT["vcap"]: e(f"s_waitcnt vmcnt({OPT['vcap']})")
        e("s_barrier")
        io = []
        if not OPT["burst"]:
            if i == 26: io.append(lambda: e(f"s_add_u32 s{sOB}, s{sOB}, 245760"))
            io += op.dma(NEXT.get(i, i + 4))
        elif i % 2 == 1:
            if i == 27: io.append(lambda: e(f"s_add_u32 s{sOB}, s{sOB}, 245760"))
            io += op.dma(NEXT.get(i - 1, i + 3)) + op.dma(NEXT.get(i, i + 4))
        items = kv_issue(i) + io if OPT["kvfirst"] and i < 28 else io + kv_issue(i)
        if OPT["near"] and i == OPT["near"]: items.append(lambda: touch_o(AF(i + 1, 0) if False else 249))
        for f in items[:OPT["now0"]]: f()
        items = items[OPT["now0"]:]
        for j, f in enumerate(items): op.pq.append((op.clock + OPT["vpost"] + (j * OPT["span"]) // len(items), f))
    def q_write(reg):
        for rt in range(7):
            for k in range(3): e(f"ds_write_b64 v{AC(0)+k}, {v(reg(rt,k),2)} offset:{QO+rt*1024}")
        e("s_waitcnt lgkmcnt(0)")
    def q_addr():
        t = AC(1)
        e(f"v_lshrrev_b32 v{t}, 5, v{OB}")
        e(f"v_and_b32 v{t}, 8, v{t}")
        e(f"v_add_u32 v{t}, v{t}, v{OB}")
        for k in range(3):
            e(f"""
s_mul_i32 s{sT1}, s{sW4}, 3
s_add_u32 s{sT1}, s{sT1}, {k}
s_lshr_b32 s{sT2}, s{sT1}, 1
s_mul_i32 s{sT2}, s{sT2}, 7168
s_and_b32 s{sT1}, s{sT1}, 1
s_lshl_b32 s{sT1}, s{sT1}, 3
v_xor_b32 v{AC(0)+k}, s{sT1}, v{t}
v_add_u32 v{AC(0)+k}, s{sT2}, v{AC(0)+k}
""")

    e(f"""
s_mul_i32 s{sOB}, s{sW4}, {8*1280}
s_lshl_b32 s{sLW}, s{sW4}, 11
s_lshl_b32 s{sL1}, s{sW4}, 10
s_mov_b32 s{sSLOT}, 1
s_mov_b32 s{sRX}, 0x01000c0c
s_mov_b32 s{sRX+1}, 0x03020c0c
""")
    for u in range(N0 - 96):
        g.vq.append(f"U{u}"); g.issued[f"U{u}"] = 1
    st.update(pub=0, iss=N0 - 96)
    g.wait("vm", "i_t0", kv_tags(-1))
    e("s_barrier")
    stamp_slot(e)
    e("s_barrier")
    for rt in range(7):
        for k in range(3): e(f"ds_write_b64 v{QW[k]}, {v(QAC(0,rt,k),2)} offset:{QO+rt*1024}")
    def setup():
        e("s_waitcnt lgkmcnt(0)")
        for k in range(21):
            for x in range(2): e(f"v_mov_b32 v{2*k+x}, v{QAC(1,k//3,k%3)+x}")
        for k in range(21):
            for x in range(2): e(f"v_mov_b32 v{Q2(k)+x}, v{2*k+x}")
    def setup0():
        e("s_waitcnt lgkmcnt(0)")
        op.addr_setup()
        setup()
    task = {0: setup0}
    if OPT["touch"]: task[4] = lambda: touch_o(AF(0, 0))
    for k in range(NX):
        w = kv_tags(k)
        if w: g.wait("vm", f"i{k}", w)
        e("s_barrier")
        for f in kv_issue(k): f()
        if k in task: task[k]()
        if k >= 26:
            for f in op.dma(NEXT[k]): f()
    for s in range(2, 5):
        if s != 2: g.mute += 1
        g.label("t1_slot")
        assert st["iss"] == N0
        st.update(pub=0, iss=N0 - 96)
        e(f"""
s_add_u32 s{sSLOT}, s{sSLOT}, 1
s_add_u32 s{sKSO2}, s{sKSO2}, 196608
s_cmp_eq_u32 s{sSLOT}, 2
s_cselect_b32 s{sSLO}, 0x0c0c0c0c, s{sRX}
s_cselect_b32 s{sSHI}, 0x0c0c0c0c, s{sRX+1}
""")
        g.wait("vm", "t0", kv_tags(-1))
        e("s_barrier")
        if not g.mute: stamp_slot(e)
        if OPT["touch"] and not OPT["near"]: touch_o(AF(0, 0))
        for k in range(14):
            for x in op.unpack_l(AC(k), PK(k)): e(x)
        g.wait("vm", "o_in", ["O0"])
        e("s_barrier")
        stamp_if(e, 12, OPT["ps"])
        op.first_reads(0)
        for i in range(30): op.step("m", i, 29, tick)
        stamp_if(e, 13, OPT["ps"])
        tick(29)
        op.finish()
        e(f"s_cmp_lg_u32 s{sSLOT}, 2")
        e("s_cbranch_scc1 t1_noq2")
        for k in range(3): e(f"v_mov_b32 v{BF(0)+k}, v{AC(0)+k}")
        e(f"v_mov_b32 v{BF(0)+3}, v{AC(1)}")
        q_addr()
        q_write(lambda rt, k: Q2(rt * 3 + k))
        for k in range(3): e(f"v_mov_b32 v{AC(0)+k}, v{BF(0)+k}")
        e(f"v_mov_b32 v{AC(1)}, v{BF(0)+3}")
        g.label("t1_noq2")
        for n in range(14):
            for x in op.pack_l(PK(56 + n), AC(n)): e(x)
        e(f"s_cmp_lg_u32 s{sSLOT}, 4")
        e("s_cbranch_scc1 t1_slot")
        if s != 2: g.mute -= 1
    g.label("t1_last")
    op.fl = OPT["wo5"]; op.nr = OPT["r5"]; op.early = OPT["early"] & 1
    R5 = op.nr
    e(f"""
s_mov_b32 s{sSLOT}, 5
s_lshl_b32 s{sT1}, s{sW4}, 10
s_add_u32 s{sT1}, s{sT1}, {KVB + 32768}
v_add_u32 v249, s{sT1}, v{OB}
""")
    def pk_write(ps):
        for rt in range(7): g.ld("pk", f"ds_write_b128 v249, {v(PK(ps*14+rt*2),4)} offset:{rt*4096}")
    for k in range(14):
        for x in op.unpack_l(AC(k), PK(k)): e(x)
    e("s_waitcnt vmcnt(0)"); g.vq[:] = []
    e("s_barrier")
    stamp_slot(e)
    for i in range(4, R5):
        for f in op.dma(i): f()
    pk_write(3)
    e("s_waitcnt lgkmcnt(0)"); g.lq[:] = []
    e("s_barrier")
    stamp_if(e, 12, OPT["ps"])
    g.issued.pop("O0")
    op.first_reads(0)
    def tick5(i):
        op.flush_pq()
        if i == 2: g.wait("lg", "pkw", ["pk"])
        g.wait("vm", f"f{i}", [f"O{i+1}"])
        e("s_barrier")
        if i + R5 < 18:
            for f in op.dma(i + R5): f()
    g.issued.pop("pk")
    for i in range(18):
        op.step("f", i, 17, tick5, store=[0], hooks={5: lambda: pk_write(4)} if i == 1 else None)
    op.finish()
    stamp_if(e, 13, OPT["ps"])
    g.label("t1_exit")
    return g.rec

def final_reduce(p):
    e = p
    sG, sMASK, sQ, sBL = 4, 5, 6, 7
    sD, sA, sOUT = 8, 32, 36
    e.label("k1_final")
    if OPT["two"]:
        if OPT["prof"]: e("s_waitcnt vmcnt(0)")
        stamp(e, 10); stamp(e, 11, real=True)
        dump_stamps(e, 28, 64 << 20, 8)
        return
    e(f"""
s_waitcnt vmcnt(0)
s_barrier
""")
    stamp(e, 9, real=bool(OPT["rt"]))
    e(f"""
s_and_b32 s{sG}, s2, 7
s_cmp_lt_u32 s{sG}, 4
s_cselect_b32 s{sG}, 0, 16
s_add_u32 s{sG}, s{sG}, s{sB}
v_mbcnt_lo_u32_b32 v2, -1, 0
v_mbcnt_hi_u32_b32 v2, -1, v2
s_cmp_gt_u32 s{sWAVE}, 1
s_cbranch_scc1 k1_fw
s_mov_b32 s{sD}, s26
s_mov_b32 s{sD+1}, s27
s_mov_b32 s{sD+2}, 256
s_mov_b32 s{sD+3}, 0x20000
s_lshl_b32 s{sT1}, s{sG}, 2
v_mov_b32 v3, 0
v_mov_b32 v4, 1
s_cmp_eq_u32 s{sWAVE}, 0
s_cbranch_scc1 k1_w0
s_mov_b64 exec, 1
buffer_atomic_add v4, v3, s[{sD}:{sD+3}], s{sT1} offen offset:128 sc0 sc1
s_waitcnt vmcnt(0)
v_readfirstlane_b32 s{sT2}, v4
s_and_b32 s{sT3}, s{sT2}, 0xff
s_lshr_b32 s{sT2}, s{sT2}, 8
s_cmp_eq_u32 s{sT3}, 7
s_cselect_b32 s{sT2}, s{sT2}, 0
v_mov_b32 v4, s{sT2}
ds_write_b32 v3, v4 offset:4
s_waitcnt lgkmcnt(0)
s_mov_b64 exec, -1
s_branch k1_fw
k1_w0:
s_lshl_b32 s{sMASK}, 1, s{sQUAD}
s_lshl_b32 s{sT2}, s{sG}, 10
s_add_u32 s{sT2}, s{sT2}, {FLAG0}
s_add_u32 s{sA}, s28, s{sT2}
s_addc_u32 s{sA+1}, s29, 0
s_mov_b32 s{sA+2}, 1024
s_mov_b32 s{sA+3}, 0x20000
s_lshl_b32 s{sT2}, s{sQUAD}, 7
s_mov_b64 exec, 1
buffer_store_dword v4, v3, s[{sA}:{sA+3}], s{sT2} offen sc1
s_mov_b64 exec, 0xff
v_lshlrev_b32 v5, 7, v2
s_mov_b32 s{sCTR}, 0
k1_poll:
buffer_load_dword v6, v3, s[{sD}:{sD+3}], s{sT1} offen sc1
buffer_load_dword v4, v5, s[{sA}:{sA+3}], 0 offen sc1
s_waitcnt vmcnt(1)
v_cmp_ne_u32 vcc, 8, v6
s_cbranch_vccnz k1_again
k1_poll2:
s_waitcnt vmcnt(0)
v_cmp_ne_u32 vcc, 1, v4
s_cbranch_vccz k1_go
s_add_u32 s{sCTR}, s{sCTR}, 1
s_cmp_lt_u32 s{sCTR}, {OPT['spin']}
s_cbranch_scc0 k1_late
buffer_load_dword v4, v5, s[{sA}:{sA+3}], 0 offen sc1
s_branch k1_poll2
k1_again:
s_waitcnt vmcnt(0)
s_add_u32 s{sCTR}, s{sCTR}, 1
s_cmp_lt_u32 s{sCTR}, {OPT['spin']}
s_cbranch_scc1 k1_poll
k1_late:
s_mov_b64 exec, 1
s_lshl_b32 s{sT2}, s{sMASK}, 8
v_mov_b32 v4, s{sT2}
buffer_atomic_or v4, v3, s[{sD}:{sD+3}], s{sT1} offen offset:128 sc0 sc1
s_waitcnt vmcnt(0)
v_readfirstlane_b32 s{sT2}, v4
s_and_b32 s{sT2}, s{sT2}, 0xff
s_cmp_eq_u32 s{sT2}, 8
s_cselect_b32 s{sMASK}, s{sMASK}, 0
k1_go:
s_mov_b64 exec, 1
v_mov_b32 v4, s{sMASK}
ds_write_b32 v3, v4
s_waitcnt lgkmcnt(0)
s_mov_b64 exec, -1
k1_fw:
s_mul_i32 s{sT1}, s{sG}, {8*PART_CU}
s_add_u32 s{sT1}, s{sT1}, {PART0}
s_add_u32 s{sA}, s28, s{sT1}
s_addc_u32 s{sA+1}, s29, 0
s_mov_b32 s{sA+2}, {8*PART_CU}
s_mov_b32 s{sA+3}, 0x20000
s_mul_i32 s{sT1}, s{sB}, {112*2560}
s_lshr_b32 s{sT2}, s{sG}, 4
s_mul_i32 s{sT2}, s{sT2}, 1280
s_add_u32 s{sT1}, s{sT1}, s{sT2}
s_add_u32 s{sOUT}, s24, s{sT1}
s_addc_u32 s{sOUT+1}, s25, 0
s_sub_u32 s{sOUT+2}, {112*2560}, s{sT2}
s_mov_b32 s{sOUT+3}, 0x20000
v_lshlrev_b32 v3, 4, v2
v_and_b32 v4, 15, v2
v_lshrrev_b32 v5, 4, v2
v_mul_u32_u24 v6, 272, v4
v_lshl_add_u32 v6, v5, 3, v6
s_mul_i32 s{sT2}, s{sTEAM}, {3*4352}
s_add_u32 s{sT2}, s{sT2}, 2048
s_lshl_b32 s{sT1}, s{sW4}, 6
s_add_u32 s{sT1}, s{sT1}, s{sT2}
v_add_u32 v6, s{sT1}, v6
s_mul_i32 s{sT1}, s{sW4}, {4*272}
s_add_u32 s{sT1}, s{sT1}, s{sT2}
v_mul_u32_u24 v7, 272, v5
v_lshl_add_u32 v7, v4, 4, v7
v_add_u32 v7, s{sT1}, v7
v_mul_u32_u24 v5, 2560, v5
v_lshl_add_u32 v4, v4, 4, v5
v_mov_b32 v5, 0
s_barrier
ds_read_b64 v[8:9], v5
s_waitcnt lgkmcnt(0)
v_or_b32 v5, v8, v9
v_readfirstlane_b32 s{sMASK}, v5
""")
    stamp(e, 8, real=bool(OPT["rt"]))
    e(f"""
k1_slice:
s_cmp_eq_u32 s{sMASK}, 0
s_cbranch_scc1 k1_done
s_ff1_i32_b32 s{sQ}, s{sMASK}
s_bitset0_b32 s{sMASK}, s{sQ}
s_lshl_b32 s{sBL}, s{sTEAM}, 3
s_add_u32 s{sBL}, s{sBL}, s{sQ}
""")
    for k in range(3):
        e(f"""
s_add_u32 s{sT1}, s{sBL}, {16*k}
s_mul_i32 s{sT2}, s{sW4}, 35
s_add_u32 s{sT2}, s{sT2}, s{sT1}
s_lshl_b32 s{sT2}, s{sT2}, 10
s_cmp_lt_u32 s{sT1}, 35
s_cselect_b32 s{sT2}, s{sT2}, {8*PART_CU}
""")
        for q in range(8):
            r = 8 + 32 * k + 4 * q
            e(f"buffer_load_dwordx4 {v(r,4)}, v3, s[{sA}:{sA+3}], s{sT2} offen {OPT['rd']}")
            if q < 7: e(f"s_add_u32 s{sT2}, s{sT2}, {PART_CU}")
        e(f"""
s_mul_i32 s{sT2}, s{sT1}, 37
s_lshr_b32 s{sT2}, s{sT2}, 8
s_mul_i32 s{sT3}, s{sT2}, 7
s_sub_u32 s{sT3}, s{sT1}, s{sT3}
s_lshl_b32 s{sT2}, s{sT2}, 8
s_mul_i32 s{sT3}, s{sT3}, {16*2560}
s_add_u32 s{sT2}, s{sT2}, s{sT3}
s_mul_i32 s{sT3}, s{sW4}, {4*2560}
s_add_u32 s{sT2}, s{sT2}, s{sT3}
s_cmp_lt_u32 s{sT1}, 35
s_cselect_b32 s{12+k}, s{sT2}, 0x1000000
""")
    for k in range(3):
        for q in range(8):
            e(f"s_waitcnt vmcnt({23-8*k-q})")
            if OPT["fs"] and (k, q) in ((0, 0), (0, 7), (2, 7)): stamp(e, {(0, 0): 12, (0, 7): 13, (2, 7): 14}[(k, q)], real=True)
            for i in range(4):
                r = 8 + 32 * k + 4 * q + i
                if q == 0:
                    e(f"v_lshlrev_b32 v{104+2*i}, 16, v{r}")
                    e(f"v_and_b32 v{105+2*i}, 0xffff0000, v{r}")
                else:
                    e(f"v_lshlrev_b32 v112, 16, v{r}")
                    e(f"v_and_b32 v113, 0xffff0000, v{r}")
                    e(f"v_add_f32 v{104+2*i}, v{104+2*i}, v112")
                    e(f"v_add_f32 v{105+2*i}, v{105+2*i}, v113")
        for i in range(4): e(f"v_cvt_pk_bf16_f32 v{116+4*k+i}, v{104+2*i}, v{105+2*i}")
        e(f"ds_write_b64 v6, {v(116+4*k,2)} offset:{k*4352}")
        e(f"ds_write_b64 v6, {v(118+4*k,2)} offset:{k*4352+32}")
    e("s_waitcnt lgkmcnt(0)")
    e("s_barrier")
    if OPT["fs"]: stamp(e, 15, real=True)
    for k in range(3): e(f"ds_read_b128 {v(128+4*k,4)}, v7 offset:{k*4352}")
    for k in range(3):
        e(f"s_waitcnt lgkmcnt({2-k})")
        e(f"buffer_store_dwordx4 {v(128+4*k,4)}, v4, s[{sOUT}:{sOUT+3}], s{12+k} offen")
    e("""
s_barrier
s_branch k1_slice
k1_done:
""")
    if OPT["prof"]: e("s_waitcnt vmcnt(0)")
    stamp(e, 10); stamp(e, 11, real=True)
    dump_stamps(e, 28, 64 << 20, 8)

def build(needs):
    p = Prog()
    p(f"""
.globl {NAME}_kernel
.p2align 8
.type {NAME}_kernel,@function
{NAME}_kernel:
s_cmp_ge_u32 s2, 256
s_cbranch_scc1 k1_end
s_load_dwordx16 s[4:19], s[0:1], 0
s_load_dwordx8 s[20:27], s[0:1], 64
s_load_dwordx2 s[28:29], s[0:1], 96
v_lshrrev_b32 v1, 6, v0
v_and_b32 v2, 63, v0
v_readfirstlane_b32 s{sWAVE}, v1
s_and_b32 s{sT1}, s2, 7
s_lshr_b32 s{sT2}, s2, 3
""")
    if OPT["map"] == 0:
        p(f"""
s_and_b32 s{sQUAD}, s{sT1}, 3
s_lshl_b32 s{sQUAD}, s{sQUAD}, 1
s_and_b32 s{sB}, s{sT2}, 1
s_add_u32 s{sQUAD}, s{sQUAD}, s{sB}
s_lshr_b32 s{sB}, s{sT2}, 1
""")
    else:
        p(f"""
s_and_b32 s{sQUAD}, s{sT1}, 1
s_lshl_b32 s{sQUAD}, s{sQUAD}, 2
s_and_b32 s{sB}, s{sT2}, 3
s_add_u32 s{sQUAD}, s{sQUAD}, s{sB}
s_and_b32 s{sB}, s{sT1}, 2
s_lshl_b32 s{sB}, s{sB}, 2
s_lshr_b32 s{sT2}, s{sT2}, 2
s_add_u32 s{sB}, s{sB}, s{sT2}
""")
    p(f"""
s_and_b32 s{sW4}, s{sWAVE}, 3
s_lshr_b32 s{sTEAM}, s{sWAVE}, 2
s_mul_i32 s{sLW}, s{sW4}, 3072
s_mov_b32 s{sKd+2}, {0 if OPT['nokv'] else 786432}
s_mov_b32 s{sKd+3}, 0x20000
s_mov_b32 s{sVd+2}, {0 if OPT['nokv'] else 786432}
s_mov_b32 s{sVd+3}, 0x20000
s_mov_b32 s{sWd+3}, 0x20000
s_mov_b32 s{sOd+2}, {0 if OPT['now'] else 983040}
s_mov_b32 s{sOd+3}, 0x20000
s_mov_b32 s{sXd+2}, {0 if OPT['nox'] else 143360}
s_mov_b32 s{sXd+3}, 0x20000
s_mov_b32 s{sPd+2}, {35840+QO}
s_mov_b32 s{sPd+3}, 0x20000
s_waitcnt lgkmcnt(0)
s_cmp_lt_u32 s{sT1}, 4
s_cselect_b64 s[4:5], s[4:5], s[14:15]
s_cselect_b64 s[6:7], s[6:7], s[16:17]
s_cselect_b64 s[8:9], s[8:9], s[18:19]
s_cselect_b64 s[10:11], s[10:11], s[20:21]
s_cselect_b64 s[12:13], s[12:13], s[22:23]
s_cselect_b32 s{sT3}, 0, 16
s_mul_i32 s{sT2}, s{sB}, 143360
s_add_u32 s{sXd}, s4, s{sT2}
s_addc_u32 s{sXd+1}, s5, 0
s_mul_i32 s{sT2}, s{sQUAD}, 1536
s_add_u32 s{sWd}, s10, s{sT2}
s_addc_u32 s{sWd+1}, s11, 0
s_sub_u32 s{sWd+2}, 7864320, s{sT2}
{'s_mov_b32 s%d, 0' % (sWd+2) if OPT['now'] else ''}
s_lshl_b32 s{sT1}, s{sB}, 3
s_add_u32 s{sT1}, s{sT1}, s{sQUAD}
s_mul_i32 s{sT2}, s{sT1}, 786432
s_add_u32 s{sKd}, s6, s{sT2}
s_addc_u32 s{sKd+1}, s7, 0
s_add_u32 s{sVd}, s8, s{sT2}
s_addc_u32 s{sVd+1}, s9, 0
s_mul_i32 s{sT2}, s{sQUAD}, 983040
s_add_u32 s{sOd}, s12, s{sT2}
s_addc_u32 s{sOd+1}, s13, 0
s_lshl_b32 s{sT3}, s{sT3}, 3
s_add_u32 s{sT1}, s{sT1}, s{sT3}
s_mul_i32 s{sT1}, s{sT1}, {PART_CU}
s_mul_i32 s{sT2}, s{sW4}, 35840
s_add_u32 s{sT1}, s{sT1}, s{sT2}
s_add_u32 s{sT1}, s{sT1}, {PART0-QO}
s_add_u32 s{sPd}, s28, s{sT1}
s_addc_u32 s{sPd+1}, s29, 0
""")
    stamp(p, 0); stamp(p, 1, real=True)
    p(f"""
s_cmp_lg_u32 s{sWAVE}, 0
s_cbranch_scc1 k1_noclr
s_and_b32 s{sT1}, s2, 7
s_cmp_lt_u32 s{sT1}, 4
s_cselect_b32 s{sT1}, 0, 16
s_add_u32 s{sGRP}, s{sT1}, s{sB}
s_lshl_b32 s{sT1}, s{sGRP}, 3
s_add_u32 s{sT1}, s{sT1}, s{sQUAD}
s_lshl_b32 s{sT1}, s{sT1}, 7
s_add_u32 s{sT1}, s{sT1}, {FLAG0}
s_add_u32 s4, s28, s{sT1}
s_addc_u32 s5, s29, 0
s_mov_b32 s6, 128
s_mov_b32 s7, 0x20000
v_mov_b32 v1, 0
s_mov_b64 exec, 1
buffer_store_dword v1, v1, s[4:7], 0 offen sc1
s_mov_b64 exec, -1
k1_noclr:
""")
    if OPT["cpf"]:
        p(f"""
s_cmp_lg_u32 s{sWAVE}, 7
s_cbranch_scc1 k1_nocpf
s_getpc_b64 s[4:5]
s_mov_b32 s6, k1_end-k1_nocpf
s_mov_b32 s7, 0x20000
s_lshr_b32 s{sT1}, s2, 3
s_and_b32 s{sT1}, s{sT1}, 31
s_lshl_b32 s{sT1}, s{sT1}, 7
v_and_b32 v1, 31, v0
v_lshlrev_b32 v1, 12, v1
buffer_load_dword v254, v1, s[4:7], s{sT1} offen
k1_nocpf:
""")
    if OPT["tlb"]:
        p(f"""
v_and_b32 v1, 3, v0
v_lshlrev_b32 v1, 18, v1
v_min_u32 v1, {786432-128}, v1
s_cmp_lg_u32 s{sWAVE}, 1
s_cbranch_scc1 k1_t1a
buffer_load_dword v254, v1, s[{sKd}:{sKd+3}], 0 offen nt
k1_t1a:
s_cmp_lg_u32 s{sWAVE}, 2
s_cbranch_scc1 k1_t1b
buffer_load_dword v254, v1, s[{sVd}:{sVd+3}], 0 offen nt
k1_t1b:
s_cmp_lg_u32 s{sWAVE}, 3
s_cbranch_scc1 k1_t1c
buffer_load_dword v254, v1, s[{sOd}:{sOd+3}], 0 offen nt
k1_t1c:
s_cmp_lg_u32 s{sWAVE}, 4
s_cbranch_scc1 k1_t1d
s_and_b32 s{sT1}, s2, 7
s_cmp_lt_u32 s{sT1}, 4
s_cselect_b32 s{sT1}, 0, 16
s_add_u32 s{sT1}, s{sT1}, s{sB}
s_mul_i32 s{sT1}, s{sT1}, {8*PART_CU}
s_add_u32 s{sT1}, s{sT1}, {PART0}
s_add_u32 s4, s28, s{sT1}
s_addc_u32 s5, s29, 0
s_mov_b32 s6, {8*PART_CU}
s_mov_b32 s7, 0x20000
v_and_b32 v1, 7, v0
v_mul_u32_u24 v1, {PART_CU}, v1
buffer_load_dword v254, v1, s[4:7], 0 offen nt sc1
k1_t1d:
s_cmp_lg_u32 s{sWAVE}, 5
s_cbranch_scc1 k1_t1e
s_mul_i32 s{sT1}, s{sB}, {112*2560}
s_add_u32 s4, s24, s{sT1}
s_addc_u32 s5, s25, 0
s_mov_b32 s6, {112*2560}
s_mov_b32 s7, 0x20000
v_and_b32 v1, 1, v0
v_mul_u32_u24 v1, {112*2560-128}, v1
buffer_load_dword v254, v1, s[4:7], 0 offen nt sc1
k1_t1e:
""")
    rec = {}
    rec["qp"] = qp_phase(p, needs.get("qp", {}))
    p(f"""
s_cmp_ge_u32 s{sWAVE}, 4
s_cbranch_scc1 k1_t1
""")
    if OPT["prio0"]: p(f"s_setprio {OPT['prio0']}")
    p(f"""
s_cmp_eq_u32 s{sWAVE}, 3
s_cbranch_scc1 k1_light
""")
    rec["h"] = t0_path(p, needs.get("h", {}), 2, "h")
    p.label("k1_light")
    rec["l"] = t0_path(p, needs.get("l", {}), 1, "l")
    rec["f"] = t0_final(p, needs.get("f", {}))
    p.label("k1_t1")
    if OPT["not1"]: p("s_endpgm")
    if OPT["prio1"]: p(f"s_setprio {OPT['prio1']}")
    rec["t1"] = t1_path(p, needs.get("t1", {}))
    final_reduce(p)
    p("""
k1_end:
s_endpgm
""")
    return p, rec

def reduce_kernel():
    p = Prog()
    p(f"""
.globl reduce_kernel
.p2align 8
.type reduce_kernel,@function
reduce_kernel:
s_cmp_ge_u32 s2, 1120
s_cbranch_scc1 k2_end
s_load_dwordx2 s[8:9], s[0:1], 80
s_load_dwordx2 s[10:11], s[0:1], 96
v_lshrrev_b32 v1, 6, v0
v_and_b32 v2, 63, v0
v_readfirstlane_b32 s3, v1
s_mul_i32 s5, s2, 1873
s_lshr_b32 s5, s5, 16
s_mul_i32 s6, s5, 35
s_sub_u32 s22, s2, s6
s_mul_i32 s6, s3, 35
s_add_u32 s6, s6, s22
s_mul_i32 s7, s5, {8*PART_CU}
s_add_u32 s7, s7, {PART0}
s_lshl_b32 s20, s6, 10
v_lshlrev_b32 v3, 4, v2
s_mov_b32 s14, {8*PART_CU}
s_mov_b32 s15, 0x20000
s_waitcnt lgkmcnt(0)
s_add_u32 s12, s10, s7
s_addc_u32 s13, s11, 0
""")
    for q in range(8):
        p(f"buffer_load_dwordx4 v[{8+4*q}:{11+4*q}], v3, s[12:15], s20 offen {OPT['rd']}")
        if q < 7: p(f"s_add_u32 s20, s20, {PART_CU}")
    p(f"""
s_and_b32 s23, s5, 15
s_mul_i32 s23, s23, {112*2560}
s_lshr_b32 s24, s5, 4
s_mul_i32 s24, s24, 1280
s_add_u32 s23, s23, s24
s_mov_b32 s16, s8
s_mov_b32 s17, s9
s_mov_b32 s18, {16*112*2560}
s_mov_b32 s19, 0x20000
s_mul_i32 s26, s22, 37
s_lshr_b32 s26, s26, 8
s_mul_i32 s27, s26, 7
s_sub_u32 s27, s22, s27
s_lshl_b32 s30, s26, 8
s_mul_i32 s28, s27, {16*2560}
s_add_u32 s30, s30, s28
s_mul_i32 s28, s3, {4*2560}
s_add_u32 s30, s30, s28
s_add_u32 s32, s30, s23
v_and_b32 v4, 15, v2
v_lshrrev_b32 v5, 4, v2
v_mul_u32_u24 v6, 272, v4
v_lshl_add_u32 v6, v5, 3, v6
s_lshl_b32 s28, s3, 6
v_add_u32 v6, s28, v6
s_mul_i32 s28, s3, {4*272}
v_mul_u32_u24 v7, 272, v5
v_lshl_add_u32 v7, v4, 4, v7
v_add_u32 v7, s28, v7
v_mul_u32_u24 v5, 2560, v5
v_lshl_add_u32 v4, v4, 4, v5
""")
    for q in range(8):
        p(f"s_waitcnt vmcnt({7-q})")
        for i in range(4):
            r = 8 + 4 * q + i
            if q == 0:
                p(f"v_lshlrev_b32 v{40+2*i}, 16, v{r}")
                p(f"v_and_b32 v{41+2*i}, 0xffff0000, v{r}")
            else:
                p(f"v_lshlrev_b32 v48, 16, v{r}")
                p(f"v_and_b32 v49, 0xffff0000, v{r}")
                p(f"v_add_f32 v{40+2*i}, v{40+2*i}, v48")
                p(f"v_add_f32 v{41+2*i}, v{41+2*i}, v49")
    for i in range(4): p(f"v_cvt_pk_bf16_f32 v{52+i}, v{40+2*i}, v{41+2*i}")
    p("""
ds_write_b64 v6, v[52:53]
ds_write_b64 v6, v[54:55] offset:32
s_waitcnt lgkmcnt(0)
s_barrier
ds_read_b128 v[52:55], v7
s_waitcnt lgkmcnt(0)
buffer_store_dwordx4 v[52:55], v4, s[16:19], s32 offen
k2_end:
s_endpgm
""")
    return p

def desc(name, vg):
    return f""".amdhsa_kernel {name}
  .amdhsa_next_free_vgpr {vg}
  .amdhsa_next_free_sgpr 102
  .amdhsa_accum_offset {vg}
  .amdhsa_group_segment_fixed_size 0
  .amdhsa_kernarg_size 104
  .amdhsa_user_sgpr_count 2
  .amdhsa_user_sgpr_kernarg_segment_ptr 1
  .amdhsa_system_sgpr_workgroup_id_x 1
.end_amdhsa_kernel
"""

def main():
    for t in range(1120): assert (t * 1873) >> 16 == t // 35
    for t in range(140): assert (t * 235) >> 13 == t // 35
    for t in range(35): assert (t * 37) >> 8 == t // 7
    _, rec = build({})
    for it in range(4):
        a, rec2 = build(rec)
        if rec2 == rec: break
        rec = rec2
    else: raise SystemExit("no fixpoint")
    b = reduce_kernel()
    if OPT["novm"]: a.L[:] = [l for l in a.L if not l.startswith("buffer_load")]
    if OPT["nobar"]: a.L[:] = [l for l in a.L if not l.startswith("s_barrier")]
    if OPT["nolg"]:
        out_ = []
        for i_, l in enumerate(a.L):
            if l.startswith("s_waitcnt lgkmcnt") and not a.L[i_-1].startswith(("s_mem", "s_load")) and i_ > 60: continue
            out_.append(l)
        a.L[:] = out_
    if OPT["nord"]: a.L[:] = [l for l in a.L if not l.startswith("ds_read")]
    if OPT["noexp"]: a.L[:] = [l.replace("v_exp_f32", "v_mov_b32") if l.startswith("v_exp_f32") and "-v" not in l else l for l in a.L]
    if OPT["nosm"]: a.L[:] = [l for l in a.L if not l.startswith(("v_exp_f32", "v_cvt_pk"))]
    if OPT["nochk"]: a.L[:] = [l for l in a.L if not l.startswith(("v_or3", "v_or_b32", "v_cmp_ne", "s_cbranch_vccz", "v_and_b32 v252"))]
    if OPT["prof"] == 2:
        out_ = []; L_ = a.L; inrole = False; i_ = 0
        while i_ < len(L_):
            l = L_[i_]
            if l.startswith(("t0_unit", "t1_slot")): inrole = True
            if l.startswith(("t0_exit", "t1_exit")): inrole = False
            if inrole and l == "s_barrier":
                j = len(out_)
                while j > 0 and (out_[j-1].startswith(("s_waitcnt vmcnt", "s_cmp_eq_u32 s55, 5", "s_cbranch_scc1 t1_wa")) or out_[j-1].startswith("t1_wa")): j -= 1
                blk = out_[j:]; del out_[j:]
                out_ += ["s_memtime s[4:5]"] + blk + ["s_memtime s[6:7]", "s_barrier", "s_memtime s[8:9]", "s_waitcnt lgkmcnt(0)",
                         "s_sub_u32 s4, s6, s4", "s_add_u32 s94, s94, s4", "s_sub_u32 s6, s8, s6", "s_add_u32 s95, s95, s6"]
            elif inrole and l.startswith("buffer_load") and l.endswith("lds"):
                out_ += ["s_memtime s[4:5]", l, "s_memtime s[6:7]", "s_waitcnt lgkmcnt(0)", "s_sub_u32 s4, s6, s4", "s_add_u32 s89, s89, s4"] if OPT["pv"] else [l]
            elif l.startswith(("k1_light:", "k1_t1:")) or l.startswith("s_cbranch_scc1 k1_light"):
                out_ += [l, "s_mov_b32 s94, 0", "s_mov_b32 s95, 0", "s_mov_b32 s89, 0"]
            else: out_.append(l)
            i_ += 1
        a.L[:] = out_
    if OPT["prof"] == 4:
        out_ = []; inrole = False; idx = 0
        L_ = [l for l in a.L if not (l.startswith(("s_cselect_b32 s8", "s_cselect_b32 s9")) or (l.startswith(("s_mov_b32 s8", "s_mov_b32 s9")) and "s100" in l))]
        def st_(k):
            return ["s_memtime s[100:101]", "s_waitcnt lgkmcnt(0)", f"s_cmp_eq_u32 s{sSLOT}, {OPT['ps']}", f"s_cselect_b32 s{80+k}, s100, s{80+k}"] if 0 <= k < 16 else []
        for i_, l in enumerate(L_):
            if l.startswith(("t0_unit", "t1_slot")): inrole = True; idx = 0
            if l.startswith(("t0_exit", "t1_last")): inrole = False
            k = (idx - OPT["pb"]) * 4
            if inrole and l == "s_barrier":
                x = out_.pop() if out_[-1].startswith("s_waitcnt vmcnt") else None
                out_ += st_(k - 2) + ([x] if x else []) + st_(k - 1) + [l] + st_(k); idx += 1
            elif inrole and l.startswith("buffer_load") and l.endswith("lds"):
                nxt = next(y for y in L_[i_+1:] if y == "s_barrier" or (y.startswith("buffer_load") and y.endswith("lds")))
                out_ += [l] + (st_(k - 3) if nxt == "s_barrier" else [])
            else: out_.append(l)
        a.L[:] = out_
    if OPT["prof"] == 3:
        out_ = []; inrole = False; idx = 0
        for l in a.L:
            if l.startswith(("t0_unit", "t1_slot")): inrole = True; idx = 0
            if l.startswith(("t0_exit", "t1_exit")) or l.startswith("s_cbranch_scc1 t1_slot"): inrole = False
            if l.startswith("s_cselect_b32 s8") or l.startswith("s_cselect_b32 s9") or l.startswith("s_mov_b32 s9") and "s100" in l: continue
            if inrole and l == "s_barrier":
                k = idx - OPT["pb"]; idx += 1
                st_ = ["s_memtime s[100:101]", "s_waitcnt lgkmcnt(0)", f"s_cmp_eq_u32 s{sSLOT}, {OPT['ps']}", f"s_cselect_b32 s{80+k}, s100, s{80+k}"] if 0 <= k < 16 else []
                out_ += (st_ + [l]) if OPT["pa"] else ([l] + st_)
            else: out_.append(l)
        a.L[:] = out_
    if OPT["nomfq"] or OPT["nomf1"] or OPT["nomf0"]:
        out_ = []; sec = "q"
        for l in a.L:
            if l.startswith("t0_unit"): sec = "0"
            if l.startswith("k1_t1:"): sec = "1"
            if l.startswith("v_mfma") and OPT["nomf" + sec]: continue
            out_.append(l)
        a.L[:] = out_
    if OPT["xa"]:
        out_ = []; sec = "q"; cnt = 0
        for l in a.L:
            if l.startswith("t0_unit_h"): sec = "h"
            if l.startswith("t0_unit_l"): sec = "l"
            if l.startswith("t0_final"): sec = "f"
            if l.startswith("k1_t1:"): sec = "1"
            if OPT["xa"] == 1 and sec in "hl" and l.startswith("v_mfma") and "v[208:211]" in l: continue
            if OPT["xa"] == 2 and sec == "l" and l.startswith(("v_mfma", "ds_read")): continue
            if OPT["xa"] == 3 and sec == "1" and l.startswith("ds_read_b128"): continue
            if OPT["xa"] == 4 and sec in "hl" and l.startswith("ds_read"):
                continue
            out_.append(l)
        a.L[:] = out_
    if OPT["vwin"]:
        out_ = []; on = False
        for l in a.L:
            if l.startswith("k1_t1:") and OPT["vw1"]: on = True
            if l.startswith("t1_slot:"): on = True
            if l.startswith("t1_last:"): on = False
            if on and l.startswith("buffer_load") and l.endswith("lds"): out_.append(f"s_waitcnt vmcnt({OPT['vwin']-1})")
            out_.append(l)
        a.L[:] = out_
    if OPT["dynp"]:
        out_ = []; int1 = False
        for l in a.L:
            if l.startswith("k1_t1:"): int1 = True
            if int1 and l.startswith("buffer_load") and l.endswith("lds"):
                out_ += [f"s_setprio {OPT['dynp']}", l, f"s_setprio {OPT['prio1']}"]
            else: out_.append(l)
        a.L[:] = out_
    n1 = fix_hazards(a.L); n2 = fix_hazards(b.L)
    print("nops inserted", n1, n2, "instrs", len(a.L), len(b.L), file=sys.stderr)
    hdr = open("cdna_kernels/" + NAME + ".s.ref").read().split("; Override launch")[0]
    out = hdr
    if OPT["two"]:
        out += f"; @launch kernel={NAME}_kernel grid=(256,1,1) block=(512,1,1) lds={LDS_BYTES}\n"
        out += "; @launch kernel=reduce_kernel grid=(1120,1,1) block=(256,1,1) lds=4352\n"
    else:
        out += f"; @launch grid=(256,1,1) block=(512,1,1) lds={LDS_BYTES}\n"
    out += '.amdgcn_target "amdgcn-amd-amdhsa--gfx950"\n.text\n'
    out += a.text() + (b.text() if OPT["two"] else "")
    out += '.section .rodata,"a"\n.p2align 6\n' + desc(NAME + "_kernel", 256)
    if OPT["two"]: out += ".p2align 6\n" + desc("reduce_kernel", 56)
    open(sys.argv[1], "w").write(out)
    import subprocess
    r = subprocess.run(["clang", "-x", "assembler", "-target", "amdgcn-amd-amdhsa", "-mcpu=gfx950", "-c", sys.argv[1], "-o", "chk.o"], capture_output=True, text=True)
    if r.returncode: print("ASSEMBLY FAILED", r.stderr[:600])
main()
```

```python
import sys, math, struct, copy
sys.path.insert(0, "work")
from asmlib import *

NAME = "concat_heads__mha_block_cached__gqa_block_cached__near_ridge"
OPT = dict(kv="nt", w="", x="", wo="", st="sc1", rd="sc1", prof=0, prio0=0, prio1=0, touch=1, nox=0, now=0, nokv=0, nomf=0,
           novm=0, lead=4, bp="6.16.26.36.42", map=0, hack="", t1b=0, ps=5, kdel=0, x0=4, xt=0, dynp=0, nopark=0, gap=0, span=4, pa=0, pb=0, m=2, nlat=0, nonar=0, bar=3, qd=5, rt=0, tf="", tq="", pwo=0, tlb=0, stl=0, dd=0, stn=1, spin=40000, vcap=0, vpost=0, now0=9, xa=0, burst=0, kpar=0, pwh=1, near=0, vwin=9, cpf=1, fs=0, r5=6, early=3, qv=0, two=0, vw1=1, wo5="", nomfq=0, nomf1=0, nomf0=0, pwf="", kvfirst=1, w2=1, psplit=1, nb1=8, nb2=29, kl=16, tl=4, kvat=18, qst="sc1", noq=0, noqst=0, pv=0, nobar=0, nolg=0, nord=0, norare=0, not1=0, noexp=0, nochk=0, nosm=0)
for a in sys.argv[2:]:
    k, val = a.split("=")
    OPT[k] = int(val) if val.lstrip("-").isdigit() else (val if k in ("bp", "hack") else val.replace("+", " ").replace("-", ""))
TILE = 12288
QO = 0
T1R = 43008
B2 = T1R + 32768
KVB = B2 + 18432
NS = 16
SPARE = KVB + NS * 4096
LDS_BYTES = SPARE + 2048
QPARK = 48 << 20
FLAG0 = 0
PART0 = 1 << 20
PART_CU = 4 * 35 * 1024
LEAD = OPT["lead"]
NX = 30
XB_ = [OPT["x0"] + 4 * ((k * 96) // NX) for k in range(NX)]
def f2u(f): return struct.unpack("<I", struct.pack("<f", f))[0]

sKd, sVd, sWd, sOd, sXd, sPd, sQd = 32, 36, 40, 44, 48, 76, 24
sWAVE, sB, sQUAD, sSLOT, sCTR, sW4 = 52, 53, 54, 55, 57, 56
sT1, sT2, sT3 = 62, 63, 61
sKSO, sVSO, sLW = 58, 59, 60
sWB, sOB, sXB, sXM, sSTR, sXF = 58, 59, 70, 71, 72, 73
sC, sBIT = 66, 68
sRET = 30
sGRP = 3
sTEAM, sWB2, sKSO2, sL1, sSLO, sSHI = 74, 75, 65, 64, 69, 72
PKV_ = 255
sRX, sRY, sRZ, sSP = 14, 17, 20, 23

def stamp(e, k, real=False):
    if not OPT["prof"]: return
    e(f"s_mem{'real' if real else ''}time s[100:101]")
    e("s_waitcnt lgkmcnt(0)")
    e(f"s_mov_b32 s{80+k}, s100")
def stamp_slot(e):
    if not OPT["prof"]: return
    e("s_memrealtime s[100:101]" if OPT["rt"] else "s_memtime s[100:101]")
    e("s_waitcnt lgkmcnt(0)")
    for k in range(0, 7):
        e(f"s_cmp_eq_u32 s{sSLOT}, {k}")
        e(f"s_cselect_b32 s{82+k}, s100, s{82+k}")
def stamp_if(e, k, slot):
    if not OPT["prof"]: return
    e("s_memtime s[100:101]")
    e("s_waitcnt lgkmcnt(0)")
    e(f"s_cmp_eq_u32 s{sSLOT}, {slot}")
    e(f"s_cselect_b32 s{80+k}, s100, s{80+k}")
def dump_stamps(e, wsreg, base, nw):
    if not OPT["prof"]: return
    if OPT["dd"]:
        e(f"""
s_cmp_lg_u32 s2, {OPT['dd']}
s_cbranch_scc1 k1_end
s_cmp_lg_u32 s{sWAVE}, 4
s_cbranch_scc1 k1_end
s_mov_b32 s96, s26
s_mov_b32 s97, s27
s_mov_b32 s98, 64
s_mov_b32 s99, 0x20000
v_mov_b32 v1, 0
""")
        for k in range(16):
            e(f"s_sub_u32 s100, s{80+k}, s{80 if k == 10 else 81}")
            e("v_mov_b32 v0, s100")
            e(f"buffer_store_dword v0, v1, s[96:99], 0 offen offset:{k*4}")
        e("s_waitcnt vmcnt(0)")
        return
    e(f"""
s_mul_i32 s100, s2, {nw}
s_add_u32 s100, s100, s{sWAVE}
s_lshl_b32 s100, s100, 6
s_add_u32 s100, s100, {base}
s_add_u32 s96, s{wsreg}, s100
s_addc_u32 s97, s{wsreg+1}, 0
s_mov_b32 s98, 64
s_mov_b32 s99, 0x20000
v_mov_b32 v1, 0
""")
    for k in range(16):
        e(f"v_mov_b32 v0, s{80+k}")
        e(f"buffer_store_dword v0, v1, s[96:99], 0 offen offset:{k*4}")
    e("s_waitcnt vmcnt(0)")

class Gen:
    def __init__(self, prog, needs):
        self.p = prog; self.needs = needs; self.rec = {}
        self.mute = 0
        self.vq = []; self.lq = []; self.pend = []; self.issued = {}
        self.nosim = 0
    def e(self, s):
        if not self.mute: self.p(s)
    def label(self, n):
        if not self.mute: self.p.label(n)
    def wait(self, kind, key, tags, drain_tags=()):
        q = self.vq if kind == "vm" else self.lq
        for t in tags:
            assert self.issued.pop(t, 0) > 0, (t, key)
        tags = list(tags) + list(drain_tags)
        idx = [i for i, t in enumerate(q) if t in tags]
        n = len(q) - 1 - max(idx) if idx else 999
        if n != 999: n = min(n, 63 if kind == "vm" else 15)
        k = (kind, key)
        self.rec[k] = min(self.rec.get(k, 999), n)
        val = self.needs.get(k, n)
        if val == 999: return
        self.e(f"s_waitcnt {'vmcnt' if kind == 'vm' else 'lgkmcnt'}({val})")
        del q[:len(q) - val if val < len(q) else 0]
    def wait_alt(self, key, tags, alt, cmp_txt, lab):
        q = self.vq
        for t in tags: assert self.issued.pop(t, 0) > 0, (t, key)
        idx = [i for i, t in enumerate(q) if t in tags]
        n = min(len(q) - 1 - max(idx), 63) if idx else 999
        k = ("vm", key, alt)
        self.rec[k] = min(self.rec.get(k, 999), n)
        va, vb = self.needs.get(("vm", key, False), 0), self.needs.get(("vm", key, True), 0)
        if vb != 999 and vb > va: self.e(f"s_waitcnt vmcnt({vb})")
        if vb > va:
            self.e(cmp_txt); self.e(f"s_cbranch_scc1 {lab}")
        val = min(va, vb) if not (alt and vb > va) else vb
        if min(va, vb) != 999: self.e(f"s_waitcnt vmcnt({min(va, vb)})")
        if vb > va: self.label(lab)
        if val != 999: del q[:len(q) - val if val < len(q) else 0]
    def vm(self, tag, text):
        self.e(text); self.vq.append(tag); self.issued[tag] = self.issued.get(tag, 0) + 1
    def ld(self, tag, text):
        self.e(text); self.lq.append(tag); self.issued[tag] = self.issued.get(tag, 0) + 1
    def drain(self, n=1):
        for _ in range(n):
            if self.pend: self.pend.pop(0)()
    def optional(self, taken, fn):
        if taken: fn()
        elif not self.mute:
            st = (list(self.vq), list(self.lq), dict(self.issued))
            fn()
            self.vq[:], self.lq[:] = st[0], st[1]; self.issued = st[2]

def mfma(e, d, a, b, c):
    if not OPT["nomf"]:
        e(f"v_mfma_f32_16x16x32_bf16 {v(d,4)}, {v(a,4)}, {v(b,4)}, {c if c == '0' else v(c,4)}")


KL = OPT["kl"]
KVT = [k for k in range(NX) if not OPT['burst'] or k % 2 == OPT['kpar']]
N0 = max(u for u in range(300) if 4 * (u - KL) + 4 <= XB_[KVT[-1]]) + 1
def lane_regs(e, b=2):
    e(f"""
v_mbcnt_lo_u32_b32 v{b}, -1, 0
v_mbcnt_hi_u32_b32 v{b}, -1, v{b}
v_and_b32 v{b+1}, 15, v{b}
v_lshrrev_b32 v{b+2}, 4, v{b}
v_lshrrev_b32 v{b+3}, 2, v{b}
v_and_b32 v{b+4}, 3, v{b+3}
v_and_b32 v{b+5}, 3, v{b}
v_lshrrev_b32 v{b+6}, 3, v{b}
v_and_b32 v{b+7}, 7, v{b}
""")
def kv_kind(a):
    a %= 32
    return "K" if (a == 0 or (a % 2 == 1 and a < 31)) else "V"
def kv_tile(a):
    u, a = divmod(a, 32)
    return u * 16 + (0 if a == 0 else 15 if a == 31 else (a + 1) // 2 if a % 2 == 1 else (a - 2) // 2)
def QAC(hh, rt, k): return ((hh * 7 + rt) * 3 + k) * 4
QW = [248, 249, 250]


class OpEngine:
    def __init__(self, g, PK, AC0, AF0, BF0, RA, OB, PO, ring, sM0, ringoff):
        self.g, self.e = g, g.e
        self.PK, self.AC0, self.AF0, self.BF0, self.RA, self.OB, self.PO = PK, AC0, AF0, BF0, RA, OB, PO
        self.ring, self.sM0, self.ro = ring, sM0, ringoff
        self.dq = []; self.pq = []; self.clock = 0; self.fl = OPT['wo']; self.nr = 4; self.early = 0
    def AC(self, k): return self.AC0 + 4 * k
    def AF(self, s, i): return self.AF0 + 8 * (s & 1) + 4 * i
    def BF(self, n): return self.BF0 + 4 * (n % 6)
    def slot(self, i): return ((i + self.ro) % self.nr) * 8192
    def addr_setup(self):
        e = self.e
        lane_regs(e, 232)
        L = 232
        e(f"""
v_lshlrev_b32 v{self.OB}, 4, v{L}
v_lshlrev_b32 v{L+8}, 1, v{L+2}
v_xor_b32 v{L+8}, v{L+1}, v{L+8}
v_lshlrev_b32 v{L+8}, 4, v{L+8}
v_mul_u32_u24 v{L+9}, 1280, v{L+2}
v_add_u32 v{self.PO[0]}, v{L+8}, v{L+9}
v_xor_b32 v{L+8}, 128, v{L+8}
v_add_u32 v{L+8}, v{L+8}, v{L+9}
v_add_u32 v{self.PO[1]}, 4096, v{L+8}
s_lshl_b32 s{sT1}, s{sW4}, 1
v_and_b32 v{L+8}, 7, v{L+3}
v_xor_b32 v{L+8}, s{sT1}, v{L+8}
v_lshlrev_b32 v{L+8}, 5, v{L+8}
v_lshl_add_u32 v{L+8}, v{L+3}, 8, v{L+8}
v_lshl_add_u32 v{L+8}, v{L+5}, 3, v{L+8}
v_add_u32 v{self.RA[0]}, {self.ring}, v{L+8}
v_xor_b32 v{self.RA[1]}, 32, v{self.RA[0]}
""")
    def dma(self, i):
        ps, j = divmod(i, 6)
        out = []
        for q in range(2):
            def f(q=q):
                if q == 0:
                    self.e(f"s_add_u32 m0, s{self.sM0}, {self.ring+self.slot(i)}")
                    self.e(f"s_add_u32 s{sT2}, s{sOB}, {j*32*1280+ps*256}")
                o = "offset:1024 " if q else ""
                self.g.vm(f"O{i}", f"buffer_load_dwordx4 v{self.PO[q]}, s[{sOd}:{sOd+3}], s{sT2} offen {o}{self.fl} lds")
            out.append(f)
        return out
    def defer(self, at, ins):
        for x in ins: self.dq.append((at, x))
    def run_dq(self, n):
        while n > 0 and self.dq and self.dq[0][0] <= self.clock:
            x = self.dq.pop(0)[1]
            if callable(x): x()
            else: self.e(x)
            n -= 1
    def flush_pq(self):
        while self.pq: self.pq.pop(0)[1]()
    def a_read(self, i, n):
        k, hf = divmod(n, 2)
        self.g.ld(f"o{i}a{k}", f"ds_read_b64_tr_b16 {v(self.AF(i,k)+2*hf,2)}, v{self.RA[k]} offset:{self.slot(i)+hf*4096}")
    def b_read(self, b):
        i, rt = divmod(b, 7)
        self.g.ld(f"o{i}b{rt}", f"ds_read_b128 {v(self.BF(b),4)}, v{self.OB} offset:{QO+(i%6*7+rt)*1024}")
    def first_reads(self, i):
        self.a_read(i, 0); self.a_read(i, 1); self.b_read(7 * i); self.a_read(i, 2); self.a_read(i, 3)
        for n in range(1, 6): self.b_read(7 * i + n)
    def unpack_l(self, dst, src):
        return [f"v_perm_b32 v{dst+x}, v{src+x//2}, v{src+x//2}, s{sSHI if x & 1 else sSLO}" for x in range(4)]
    def pack_l(self, dst, src):
        return [f"v_cvt_pk_bf16_f32 v{dst}, v{src}, v{src+1}", f"v_cvt_pk_bf16_f32 v{dst+1}, v{src+2}, v{src+3}"]
    def store_l(self, ps, rt):
        o = (ps * 7 + rt) * 1024
        return [f"s_mov_b32 s{sT3}, {o - o % 4096}",
                lambda: self.g.vm("st", f"buffer_store_dwordx4 {v(self.PK(ps*14+rt*2),4)}, v{self.OB}, s[{sPd}:{sPd+3}], s{sT3} offen offset:{o%4096} {OPT['st']}")]
    def step(self, key, i, last, tick, store=False, hooks=None):
        g, e = self.g, self.e
        ps, j = divmod(i, 6)
        BAR = OPT["bar"]
        c0 = self.clock
        if store and not self.early and i >= last - 3 and i < last:
            todo = [(q, rt) for q in range(store[0], ps) for rt in range(7)]
            k = i - (last - 3)
            mine = todo[k * len(todo) // 3:(k + 1) * len(todo) // 3]
            for n, (q, rt) in enumerate(mine): self.defer(c0 + (6 if k == 0 else 0) + n * (8 if k == 0 else 14) // len(mine), self.store_l(q, rt))
        if j == 5 and (i < last or store):
            for n in range(14):
                ins = self.pack_l(self.PK(ps * 14 + n), self.AC(n))
                if i < last: ins += self.unpack_l(self.AC(n), self.PK((ps + 1) * 14 + n))
                if store and n % 2 == 1 and (i == last or self.early): ins += self.store_l(ps, n // 2)
                self.defer(c0 + n + 4, ins)
        for n in range(14):
            rt, k = divmod(n, 2)
            if n == BAR and i < last: tick(i)
            if hooks and n in hooks: hooks[n]()
            tags = ([f"o{i}b{rt}"] if k == 0 else []) + ([f"o{i}a{k}"] if rt == 0 else [])
            if tags: g.wait("lg", f"{key}{i}m{n}", tags)
            mfma(e, self.AC(n), self.AF(i, k), self.BF(7 * i + rt), self.AC(n))
            if k == 1 and 7 * i + rt + 6 < 7 * (last + 1): self.b_read(7 * i + rt + 6)
            if k == 0 and i < last and BAR < n <= BAR + 8: self.a_read(i + 1, (n - BAR - 1) // 2)
            while self.pq and self.pq[0][0] <= self.clock: self.pq.pop(0)[1]()
            self.clock += 1
            self.run_dq(7)
    def finish(self):
        self.flush_pq(); self.clock += 100; self.run_dq(1000)

def qp_phase(p, needs):
    g = Gen(p, needs); e = g.e
    AC = QAC
    def AF(par, hh, k): return 168 + par * 24 + (hh * 3 + k) * 4
    def BF(n): return 216 + 4 * (n % 4)
    RA = [[232, 233, 234], [235, 236, 237]]; XA = [238, 239]; PW = [243, 244, 245]; PX = 246
    JUNK = 247
    STG = [KVB, T1R]
    NB1, NB2 = OPT["nb1"], OPT["nb2"]
    QV = OPT["qv"]
    HEAD = {(0, 0): 0, (0, 1): 3, (1, 0): 1, (1, 1): 2}
    def dma_w(i, hh):
        out = []
        for tm in (range(2) if QV else [None]):
            for ii in range(3):
                def f(ii=ii, tm=tm):
                    if ii == 0:
                        if QV:
                            e(f"s_add_u32 m0, s{sLW}, {STG[i&1]+hh*2*TILE+tm*TILE}")
                            e(f"s_add_u32 s{sT1}, s{sWB}, {i*32*12288+HEAD[tm,hh]*384}")
                        else:
                            e(f"s_add_u32 m0, s{sLW}, {STG[i&1]+hh*2*TILE}")
                            e(f"s_add_u32 s{sT1}, s{sWB2 if hh else sWB}, {i*32*12288}")
                    o = f"offset:{ii*1024} " if ii else ""
                    g.vm(f"W{i}.{hh}", f"buffer_load_dwordx4 v{PW[ii]}, s[{sWd}:{sWd+3}], s{sT1} offen {o}{OPT['w']} lds")
                out.append(f)
        return out
    def dma_x(pp):
        out = []
        nq = 4 if QV else 2
        for q in range(nq):
            def f(q=q):
                if q < nq - 1: e(f"s_add_u32 m0, s{sXM}, {QO+(pp%3)*14336+q*16384//nq}")
                else:
                    e(f"s_add_u32 s{sT2}, s{sXM}, {QO+(pp%3)*14336+q*16384//nq}")
                    e(f"s_cmp_ge_u32 s{sWAVE}, 6")
                    e(f"s_cselect_b32 m0, s{sXF}, s{sT2}")
                e(f"s_add_u32 s{sT2}, s{sXB}, {pp*128+q*163840//nq}")
                g.vm(f"X{pp}", f"buffer_load_dwordx4 v{PX}, s[{sXd}:{sXd+3}], s{sT2} offen {OPT['x']} lds")
            out.append(f)
        return out
    nlab = [0]
    def issue(fs):
        if not QV:
            g.pend += fs; return
        if not fs: return
        nlab[0] += 1
        e(f"s_cmp_eq_u32 s{sTEAM}, 0")
        e(f"s_cbranch_scc1 qp_i{nlab[0]}")
        for f in fs: f()
        g.label(f"qp_i{nlab[0]}")
    def a_read(i, hh, n):
        k, hf = divmod(n, 2)
        g.ld(f"{i}a{hh}{k}", f"ds_read_b64_tr_b16 {v(AF(i&1,hh,k)+2*hf,2)}, v{RA[i&1][k]} offset:{hh*2*TILE+hf*1536}")
    def b_read(i, rt):
        g.ld(f"{i}b{rt}", f"ds_read_b128 {v(BF(7*i+rt),4)}, v{XA[i&1]} offset:{((i>>1)%3)*14336+rt*2048}")
    lane_regs(e)
    e(f"""
v_lshrrev_b32 v13, 1, v8
v_and_b32 v13, 3, v13
v_lshlrev_b32 v13, 1, v13
v_xor_b32 v13, v9, v13
v_lshlrev_b32 v13, 4, v13
v_mul_u32_u24 v14, 1280, v8
v_add_u32 v{PX}, v13, v14
v_mul_u32_u24 v14, 384, v8
v_add_u32 v{PKV_}, v13, v14
s_mul_i32 s{sXB}, s{sW4 if QV else sWAVE}, 10240
s_lshl_b32 s{sXM}, s{sW4 if QV else sWAVE}, 10
s_sub_u32 s{sXF}, s{sXM}, {2048 if QV else 6144}
s_add_u32 s{sXF}, s{sXF}, {SPARE}
""")
    issue(dma_x(0)); g.drain(9)
    e(f"""
s_and_b32 s{sT1}, s{sW4}, 1
s_lshl_b32 s{sT1}, s{sT1}, 2
v_xor_b32 v16, s{sT1}, v9
s_mul_i32 s{sWB}, s{sW4}, {8*12288}
s_mul_i32 s{sT1}, s{sTEAM}, {0 if QV else 384}
s_add_u32 s{sWB2}, s{sWB}, 1152
s_add_u32 s{sWB}, s{sWB}, s{sT1}
s_sub_u32 s{sWB2}, s{sWB2}, s{sT1}
s_mul_i32 s{sT1}, s{sTEAM}, {0 if QV else TILE}
s_add_u32 s{sLW}, s{sLW}, s{sT1}
""")
    for q in range(3):
        e(f"""
v_add_u32 v10, {8*q}, v8
v_mul_u32_u24 v11, 43, v10
v_lshrrev_b32 v11, 7, v11
v_mul_u32_u24 v12, 3, v11
v_sub_u32 v12, v10, v12
v_lshrrev_b32 v13, 1, v11
v_and_b32 v14, 1, v13
v_xor_b32 v14, v16, v14
v_lshlrev_b32 v14, 4, v14
v_lshl_add_u32 v14, v12, 7, v14
v_mul_u32_u24 v15, 12288, v11
v_add_u32 v14, v14, v15
v_subrev_u32 v{PW[q]}, {q*1024}, v14
""")
    issue(dma_w(0, 0) + dma_w(0, 1)); g.drain(9)
    if OPT["touch"]:
        nsh = 16 if OPT["map"] == 0 else 8
        rows = 640 // nsh // 8
        e(f"""
s_and_b32 s{sT1}, s{sB}, {nsh-1}
s_lshl_b32 s{sT1}, s{sT1}, 3
s_add_u32 s{sT1}, s{sT1}, s{sWAVE}
s_mul_i32 s{sT1}, s{sT1}, {rows*12288}
v_mul_u32_u24 v10, 43, v2
v_lshrrev_b32 v10, 9, v10
v_mul_u32_u24 v11, 12, v10
v_sub_u32 v11, v2, v11
v_mul_u32_u24 v10, 12288, v10
v_lshl_add_u32 v10, v11, 7, v10
""")
        for r in range(rows // 5):
            g.vm("pf", f"buffer_load_dword v{JUNK}, v10, s[{sWd}:{sWd+3}], s{sT1} offen {OPT['tq']}")
            e(f"s_add_u32 s{sT1}, s{sT1}, {5*12288}")
    if OPT["touch"] and OPT["xt"]:
        e(f"""
s_and_b32 s{sT1}, s{sQUAD}, 1
s_mul_i32 s{sT1}, s{sT1}, 71680
s_mul_i32 s{sT2}, s{sWAVE}, {70*128}
s_add_u32 s{sT1}, s{sT1}, s{sT2}
v_lshlrev_b32 v10, 7, v2
""")
        g.vm("pf", f"buffer_load_dword v{JUNK}, v10, s[{sXd}:{sXd+3}], s{sT1} offen")
        g.vm("pf", f"buffer_load_dword v{JUNK}, v10, s[{sXd}:{sXd+3}], s{sT1} offen offset:768")
    e(f"""
v_lshrrev_b32 v8, 1, v3
v_and_b32 v8, 3, v8
v_lshlrev_b32 v8, 1, v8
v_xor_b32 v8, v4, v8
v_lshlrev_b32 v8, 4, v8
v_lshl_add_u32 v9, v3, 7, v8
v_add_u32 v{XA[0]}, {QO}, v9
v_xor_b32 v{XA[1]}, 64, v{XA[0]}
v_lshl_add_u32 v8, v4, 3, v6
v_mul_u32_u24 v9, 384, v8
v_lshrrev_b32 v8, 1, v6
v_and_b32 v11, 1, v4
v_lshl_add_u32 v8, v11, 2, v8
v_xor_b32 v8, v7, v8
v_lshl_add_u32 v9, v8, 4, v9
v_lshlrev_b32 v12, 3, v11
v_lshl_add_u32 v12, v2, 4, v12
v_and_b32 v11, 1, v7
v_lshl_add_u32 v11, v11, 3, v9
s_mov_b32 s{sC}, {hex(f2u(192 ** -0.5 * math.log2(math.e)))}
s_mov_b32 s{sC+1}, s{sC}
""")
    for i in range(3):
        e(f"""
s_mul_i32 s{sT1}, s{sW4}, 3
s_add_u32 s{sT1}, s{sT1}, {i}
s_lshr_b32 s{sT2}, s{sT1}, 2
s_lshl_b32 s{sRY+i}, s{sT2}, 7
s_and_b32 s{sT3}, s{sT1}, 3
s_xor_b32 s{sT3}, s{sT3}, s{sW4}
s_lshl_b32 s{sRX+i}, s{sT3}, 5
s_and_b32 s{sT3}, s{sT1}, 2
s_lshl_b32 s{sT3}, s{sT3}, 5
s_and_b32 s{sT2}, s{sT1}, 1
s_lshl_b32 s{sT2}, s{sT2}, 3
v_xor_b32 v{QW[i]}, s{sT2}, v12
s_or_b32 s{sT3}, s{sT3}, s{sT2}
v_xor_b32 v13, s{sT3}, v11
s_lshr_b32 s{sT1}, s{sT1}, 1
s_mul_i32 s{sT1}, s{sT1}, 7168
v_add_u32 v{QW[i]}, s{sT1}, v{QW[i]}
s_mul_i32 s{sT1}, s{sTEAM}, {TILE}
s_add_u32 s{sT1}, s{sT1}, s{sRY+i}
v_add_u32 v13, s{sT1}, v13
v_add_u32 v{RA[1][i]}, {T1R}, v13
v_add_u32 v{RA[0][i]}, {KVB}, v13
""")
    g.wait("vm", "in", ["W0.0", "W0.1", "X0"])
    e("s_barrier")
    stamp(e, 14, real=bool(OPT["rt"]))
    e(f"""
s_cmp_lg_u32 s{sWAVE}, 0
s_cbranch_scc1 k1_nocnt
s_mov_b32 s4, s26
s_mov_b32 s5, s27
s_mov_b32 s6, 256
s_mov_b32 s7, 0x20000
s_lshl_b32 s{sT1}, s{sGRP}, 2
v_mov_b32 v252, 0
v_mov_b32 v253, 0x10000
s_mov_b64 exec, 1
buffer_atomic_add v253, v252, s[4:7], s{sT1} offen offset:128 sc1
s_mov_b64 exec, -1
k1_nocnt:
""")
    a_read(0, 0, 0); a_read(0, 0, 1); b_read(0, 0); b_read(0, 1)
    for n in range(2, 6): a_read(0, 0, n)
    for n in range(6): a_read(0, 1, n)
    for rt in range(2, 4): b_read(0, rt)
    issue(dma_w(1, 0) + dma_w(1, 1) + dma_x(1)); g.drain(9)
    ORD = [(rt, 0, k) for rt in (0, 1) for k in range(3)] + [(rt, 1, k) for rt in (0, 1) for k in range(3)]
    ORD += [(rt, hh, k) for rt in range(2, 7) for hh in range(2) for k in range(3)]
    lastb = {rt: max(n for n, x in enumerate(ORD) if x[0] == rt) for rt in range(7)}
    A0 = [NB1 + 2 + 3 * x for x in range(6)]
    A1 = [NB2 + 1 + 2 * x for x in range(6)]
    def qcvt(n):
        rt, hh, k = ORD[n]
        a = AC(hh, rt, k)
        e(f"v_pk_mul_f32 {v(a,2)}, {v(a,2)}, s[{sC}:{sC+1}]")
        e(f"v_pk_mul_f32 {v(a+2,2)}, {v(a+2,2)}, s[{sC}:{sC+1}]")
        e(f"v_cvt_pk_bf16_f32 v{a}, v{a}, v{a+1}")
        e(f"v_cvt_pk_bf16_f32 v{a+1}, v{a+2}, v{a+3}")
    lastd = [0]
    for i in range(20):
        seen = set()
        for n, (rt, hh, k) in enumerate(ORD):
            if n == NB1 and i < 19:
                g.drain(9); lastd[0] = n - 9
                g.wait("lg", f"r1{i}", [], drain_tags=[f"{i}a1{x}" for x in range(3)])
                g.wait("vm", f"s{i}", [f"W{i+1}.0"] + ([f"X{(i+1)//2}"] if i % 2 == 1 else []))
                e("s_barrier")
                issue(((dma_w(i + 2, 0) if i == 0 else []) + dma_w(i + 2, 1) if i + 2 < 20 else []) + (dma_x(i // 2 + 2) if i % 2 == 0 and i // 2 + 2 < 10 else []))
            if n == NB2 and i < 19:
                g.drain(9); lastd[0] = n - 9
                g.wait("lg", f"r2{i}", [], drain_tags=[f"{i+1}a0{x}" for x in range(3)])
                g.wait("vm", f"t{i}", [f"W{i+1}.1"])
                e("s_barrier")
                if i + 3 < 20: issue(dma_w(i + 3, 0))
            if OPT["stl"] and n == NB1 + 1 and i in range(OPT["stl"], OPT["stl"] + 2 * OPT["stn"], 2):
                r = (i - OPT["stl"]) // 2
                e(f"""
s_lshr_b32 s{sT3}, s{sWAVE}, 1
s_cmp_eq_u32 s{sT3}, 0
s_cselect_b64 s[4:5], s[{sKd}:{sKd+1}], s[{sVd}:{sVd+1}]
s_cmp_eq_u32 s{sT3}, 2
s_cselect_b64 s[4:5], s[{sOd}:{sOd+1}], s[4:5]
s_and_b32 s{sT3}, s{sWAVE}, 1
s_mul_i32 s6, s{sT3}, {786432 // 2}
s_add_u32 s6, s6, {r * (786432 // 2 // OPT["stn"]) + (786432 // 2 // OPT["stn"]) - 64}
s_cmp_eq_u32 s{sWAVE}, 6
s_cselect_b64 s[4:5], s[{sPd}:{sPd+1}], s[4:5]
s_cselect_b32 s6, 0, s6
s_cmp_eq_u32 s{sWAVE}, 7
s_cselect_b64 s[4:5], s[24:25], s[4:5]
s_mul_i32 s{sT3}, s{sB}, {112*2560}
s_cselect_b32 s6, s{sT3}, s6
s_load_dword s99, s[4:5], s6
""")
            if OPT["pwo"] and n == 20 and i == OPT["pwo"]:
                nsh = 16 if OPT["map"] == 0 else 8
                per = 245760 * OPT["pwh"] // (8 * nsh)
                e(f"""
s_and_b32 s{sT3}, s{sB}, {nsh-1}
s_lshl_b32 s{sT3}, s{sT3}, 3
s_add_u32 s{sT3}, s{sT3}, s{sWAVE}
s_mul_i32 s{sT3}, s{sT3}, {per}
s_add_u32 s{sT3}, s{sT3}, {245760 * (4 - OPT["pwh"])}
v_mbcnt_lo_u32_b32 v251, -1, 0
v_mbcnt_hi_u32_b32 v251, -1, v251
v_min_u32 v251, {min(59, per // 128 - 1)}, v251
v_lshlrev_b32 v251, 7, v251
""")
                for r in range(max(1, per // 7680)):
                    g.vm("pf", f"buffer_load_dword v{JUNK}, v251, s[{sOd}:{sOd+3}], s{sT3} offen {OPT['pwf']}")
                    e(f"s_add_u32 s{sT3}, s{sT3}, 7680")
            if n == NB2 + 1 and i == 18:
                e(f"s_cmp_eq_u32 s{sTEAM}, 0")
                e("s_cbranch_scc1 qp_nokv")
                e(f"s_mul_i32 s{sKSO2}, s{sW4}, 3072")
                e(f"s_lshl_b32 s{sT3}, s{sW4}, 10")
                for u in range(N0 - 96):
                    a, bb = divmod(u, 3)
                    e(f"s_add_u32 m0, s{sT3}, {KVB + (u % NS) * 4096 - bb * 128}")
                    e(f"s_add_u32 s{sT1}, s{sKSO2}, {kv_tile(a) * TILE}")
                    srd = sKd if kv_kind(a) == "K" else sVd
                    e(f"buffer_load_dwordx4 v{PKV_}, s[{srd}:{srd+3}], s{sT1} offen offset:{bb*128} {OPT['kv']} lds")
                g.label("qp_nokv")
            tags = [t for t in (f"{i}b{rt}", f"{i}a{hh}{k}") if t not in seen]
            seen.update(tags)
            if tags: g.wait("lg", f"{i}m{n}", tags)
            mfma(e, AC(hh, rt, k), AF(i & 1, hh, k), BF(7 * i + rt), "0" if i == 0 else AC(hh, rt, k))
            if n == lastb[rt]:
                if rt + 4 < 7: b_read(i, rt + 4)
                elif i < 19: b_read(i + 1, rt - 3)
            if i < 19 and n in A0: a_read(i + 1, 0, A0.index(n))
            if i < 19 and n in A1: a_read(i + 1, 1, A1.index(n))
            if g.pend and (n - lastd[0]) % 42 >= (OPT["qd"] if len(g.pend) <= 3 else OPT["qd"] - 2):
                g.drain(1); lastd[0] = n
            if i == 19 and n >= 4: qcvt(n - 4)
    for n in range(38, 42): qcvt(n)
    stamp(e, 15, real=bool(OPT["rt"]))
    e("s_barrier")
    return g.rec

def t0_path(p, needs, nrt, tag):
    g = Gen(p, needs); e = g.e
    def ACC(rt, t): return rt * 48 + t * 4
    def Q(rt, j): return 96 + rt * 24 + j * 4
    def S(par, rt, kt=0): return 144 + par * 16 + rt * 8 + kt * 4
    def P(par, rt): return 176 + par * 8 + rt * 4
    def NEGM(rt): return 192 + rt * 4
    def LSUM(rt): return 200 + rt * 4
    def STG(rt, j): return 144 + (j * 2 + rt) * 4 if j < 5 else 192 + rt * 4
    ONES = 208
    FR0 = 212; NFR = 8
    def FR(a, f): return FR0 + ((a * 12 + f) % NFR) * 4
    KA = [244, 245]; VA = [246, 247, 248, 249]; QOA = 250
    TC = 251; T = [252, 253, 254, 255]
    HOLD = [48 + 4 * i for i in range(12)] + [156, 172, 180, 188, 196, 204]
    def rd_l(a, f):
        base = ((3 * a + f // 4) % NS) * 4096; tg = f"A{a%32}f{f}"
        if kv_kind(a) == "K":
            j, kt = divmod(f, 2)
            return [lambda: g.ld(tg, f"ds_read_b128 {v(FR(a,f),4)}, v{KA[j&1]} offset:{base+kt*2048}")]
        return [lambda hf=hf: g.ld(tg, f"ds_read_b64_tr_b16 {v(FR(a,f)+2*hf,2)}, v{VA[f&3]} offset:{base+hf*2048}") for hf in range(2)]
    def run(x):
        if callable(x): x()
        else: e(x)
    def cost(x): return 2 if isinstance(x, str) and x.startswith(("v_exp", "v_rcp")) else 1
    def step(key, a, mfs, valu=(), last=False, extra=None, v0=0):
        valu = list(valu)
        ngap = sum(len(mfs(f, 0)) for f in range(v0, 12))
        tot = sum(cost(x) for x in valu); done = 0; gap = 0
        for f in range(12):
            pos = a * 12 + f
            if extra and f in extra: extra[f]()
            if pos in XB_: e("s_barrier")
            reads = rd_l(a, f + LEAD) if f + LEAD < 12 else ([] if last else rd_l(a + 1, f + LEAD - 12))
            if not OPT["w2"]: g.wait("lg", f"{key}{f}", [f"A{a}f{f}"])
            elif f % 2 == 0: g.wait("lg", f"{key}{f}", [f"A{a}f{f}", f"A{a}f{f+1}"])
            ms = mfs(f, FR(a, f))
            for i, m in enumerate(ms):
                m()
                if reads: reads.pop(0)()
                if i == len(ms) - 1:
                    while reads: reads.pop(0)()
                if f >= v0:
                    gap += 1
                    while valu and done + cost(valu[0]) / 2 <= tot * gap / ngap:
                        done += cost(valu[0]); run(valu.pop(0))
        for x in valu: run(x)
    def mf_qk(par, zero):
        def m(f, fr):
            j, kt = divmod(f, 2)
            return [lambda rt=rt: mfma(e, S(par, rt, kt), fr, Q(rt, j), ("0" if zero else NEGM(rt)) if j == 0 else S(par, rt, kt)) for rt in range(nrt)]
        return m
    def onorm_l(j):
        out = []
        for rt in range(nrt):
            a = ACC(rt, 2 * j)
            out += [f"v_pk_mul_f32 {v(a+i,2)}, {v(a+i,2)}, {v(T[2*rt],2)}" for i in range(0, 8, 2)]
            out += [f"v_cvt_pk_bf16_f32 v{STG(rt,j)+i}, v{a+2*i}, v{a+2*i+1}" for i in range(4)]
        return out
    def mf_pv(par, first, last=False):
        def m(f, fr):
            out = []
            if f == (0 if last else 5):
                out += [lambda rt=rt: mfma(e, LSUM(rt), ONES, P(par, rt), "0" if first else LSUM(rt)) for rt in range(nrt)]
            return out + [lambda rt=rt: mfma(e, ACC(rt, f), fr, P(par, rt), "0" if first else ACC(rt, f)) for rt in range(nrt)]
        return m
    def sm(par, lo=0, hi=None):
        grp = [(rt, i) for rt in range(nrt) for i in range(4)][lo:hi]
        seq = []
        for n, (rt, i) in enumerate(grp):
            a, b = T[(2 * n) % 4], T[(2 * n + 1) % 4]
            r = S(par, rt) + 2 * i
            seq += [f"v_exp_f32 v{a}, v{r}", f"v_exp_f32 v{b}, v{r+1}"]
            if n > 0: seq.append(prev)
            prev = f"v_cvt_pk_bf16_f32 v{P(par,rt)+i}, v{a}, v{b}"
        return seq + [prev] if grp else []
    def chk_l(par):
        p0 = P(par, 0)
        out = [f"v_or3_b32 v{TC}, v{p0}, v{p0+1}, v{p0+2}"]
        if nrt == 2:
            out += [f"v_or3_b32 v{TC}, v{TC}, v{p0+3}, v{p0+4}", f"v_or3_b32 v{TC}, v{TC}, v{p0+5}, v{p0+6}"]
        out += [f"v_bitop3_b32 v{TC}, v{TC}, v{p0+4*nrt-1}, s{sBIT} bitop3:0xa8", f"v_cmp_ne_u32 vcc, 0, v{TC}"]
        return out
    def chk_branch(par, key):
        e(f"s_cbranch_vccz t0_ok{key}_{tag}")
        if not OPT["norare"]: e(f"s_call_b64 s[{sRET}:{sRET+1}], t0_rare{par}_{tag}")
        g.label(f"t0_ok{key}_{tag}")
    def rowmax(par, rt, t, t2):
        r = S(par, rt)
        e(f"""
v_max3_f32 v{t}, v{r}, v{r+1}, v{r+2}
v_max3_f32 v{t}, v{t}, v{r+3}, v{r+4}
v_max3_f32 v{t}, v{t}, v{r+5}, v{r+6}
v_max_f32 v{t}, v{t}, v{r+7}
v_mov_b32 v{t2}, v{t}
v_permlane32_swap_b32 v{t2}, v{t}
v_max_f32 v{t}, v{t}, v{t2}
v_mov_b32 v{t2}, v{t}
v_permlane16_swap_b32 v{t2}, v{t}
v_max_f32 v{t}, v{t}, v{t2}
v_add_f32 v{t}, {hex(f2u(7.0))}, v{t}
""")
    for rt in range(7):
        for k in range(3): e(f"ds_write_b64 v{QW[k]}, {v(QAC(0,rt,k),2)} offset:{QO+rt*1024}")
    for k in range(3):
        e(f"""
s_mul_i32 s{sT1}, s{sW4}, 3
s_add_u32 s{sT1}, s{sT1}, {k}
s_lshr_b32 s{sT1}, s{sT1}, 1
s_cmp_lt_u32 s{sT1}, 3
s_cselect_b32 s{sT3}, {B2 - (T1R + 6144 - 18432)}, 0
s_add_u32 s{sT3}, s{sT3}, {T1R + 6144 - 18432}
s_lshl_b32 s{sT2}, s{sT1}, 10
s_sub_u32 s{sT2}, s{sT3}, s{sT2}
v_add_u32 v{240+k}, s{sT2}, v{QW[k]}
s_mul_i32 s{sT2}, s{sT1}, 6144
s_sub_u32 s{sT2}, {T1R}, s{sT2}
v_add_u32 v{243+k}, s{sT2}, v{QW[k]}
""")
    for rt in range(7):
        for k in range(3): e(f"ds_write_b64 v{(240 if rt < 6 else 243)+k}, {v(QAC(1,rt,k),2)} offset:{rt*1024 if rt < 6 else 0}")
    e("s_waitcnt lgkmcnt(0)")
    lane_regs(e)
    e(f"""
s_lshl_b32 s{sT1}, s{sWAVE}, 11
s_add_u32 s{sT1}, s{sT1}, {QO}
v_lshl_add_u32 v{QOA}, v2, 4, s{sT1}
v_lshrrev_b32 v8, 1, v3
v_and_b32 v8, 3, v8
v_lshlrev_b32 v8, 1, v8
v_xor_b32 v8, v4, v8
v_lshlrev_b32 v8, 4, v8
v_lshl_add_u32 v8, v3, 7, v8
v_add_u32 v{KA[0]}, {KVB}, v8
v_xor_b32 v{KA[1]}, 64, v{KA[0]}
v_lshrrev_b32 v8, 1, v5
v_and_b32 v8, 3, v8
v_lshlrev_b32 v8, 5, v8
v_lshl_add_u32 v8, v5, 7, v8
v_lshl_add_u32 v8, v7, 3, v8
v_add_u32 v{VA[0]}, {KVB}, v8
v_xor_b32 v{VA[1]}, 32, v{VA[0]}
v_xor_b32 v{VA[2]}, 64, v{VA[0]}
v_xor_b32 v{VA[3]}, 96, v{VA[0]}
s_mov_b32 s{sBIT}, 0x40004000
s_mov_b32 s{sSLOT}, 1
""")
    for i in range(4): e(f"v_mov_b32 v{ONES+i}, 0x3f803f80")
    H = 4 if (nrt == 2 and OPT["psplit"]) else (2 if OPT["psplit"] else 0)
    for unit in range(2):
        if unit >= 1: g.mute += 1
        g.label(f"t0_unit_{tag}")
        e("s_barrier")
        if not g.mute: stamp_slot(e)
        e(f"s_cmp_gt_u32 s{sSLOT}, 3")
        e(f"s_cbranch_scc1 t0_q3_{tag}")
        for j in range(6):
            for rt in range(nrt): e(f"ds_read_b128 {v(Q(rt,j),4)}, v{QOA} offset:{(j*7+rt)*1024}")
        e(f"s_cmp_lg_u32 s{sSLOT}, 1")
        e(f"s_cbranch_scc1 t0_w_{tag}")
        if nrt == 1:
            for j in range(6): e(f"ds_read_b128 {v(Q(1,j),4)}, v{QOA} offset:{T1R-6144+j*1024}")
            for n in range(18): e(f"ds_read_b128 {v(HOLD[n],4)}, v{QOA} offset:{T1R+n*1024}")
        e(f"s_branch t0_noo_{tag}")
        g.label(f"t0_q3_{tag}")
        e(f"s_cmp_eq_u32 s{sSLOT}, 5")
        e(f"s_cbranch_scc1 t0_w_{tag}")
        if nrt == 1:
            for i in range(24): e(f"v_mov_b32 v{Q(0,0)+i}, v{Q(1,0)+i}")
        else:
            e(f"v_add_u32 v{TC}, {B2}, v{QOA}")
            for j in range(6):
                for rt in range(nrt):
                    if j < 3: e(f"ds_read_b128 {v(Q(rt,j),4)}, v{TC} offset:{(j*6+rt)*1024}")
                    else: e(f"ds_read_b128 {v(Q(rt,j),4)}, v{QOA} offset:{(j*7+rt)*1024}")
        g.label(f"t0_w_{tag}")
        e("s_waitcnt lgkmcnt(0)")
        for j in range(6):
            for rt in range(nrt): e(f"ds_write_b128 v{QOA}, {v(STG(rt,j),4)} offset:{(j*7+rt)*1024}")
        e(f"s_cmp_eq_u32 s{sSLOT}, 5")
        e(f"s_cbranch_scc1 t0_exit_{tag}")
        g.label(f"t0_noo_{tag}")
        for f in range(LEAD):
            for x in rd_l(0, f): x()
        step("a0_", 0, mf_qk(0, True), extra={1: lambda: e("s_barrier")})
        for rt in range(nrt):
            rowmax(0, rt, T[0], T[1])
            for i in range(4): e(f"v_sub_f32 v{NEGM(rt)+i}, 0, v{T[0]}")
            for i in range(8): e(f"v_sub_f32 v{S(0,rt)+i}, v{S(0,rt)+i}, v{T[0]}")
        for t in range(15):
            step(f"q{t}_", 2 * t + 1, mf_qk((t + 1) & 1, False), valu=sm(t & 1, H if t else 0) + chk_l(t & 1))
            chk_branch(t & 1, f"q{t}")
            va = sm((t + 1) & 1, 0, H)
            if t == 14: va = sm(1) + chk_l(1)
            step(f"p{t}_", 2 * t + 2, mf_pv(t & 1, t == 0), valu=va, v0=1)
        chk_branch(1, "q15")
        rc = [f"v_rcp_f32 v{T[i]}, v{LSUM(i//2)}" for i in range(2 * nrt)]
        ex = {3: lambda: [e(x) for x in rc]}
        for j in range(4): ex[4 + 2 * j] = lambda j=j: [e(x) for x in onorm_l(j)]
        step("p15_", 31, mf_pv(1, False, True), last=True, extra=ex)
        for x in onorm_l(4) + onorm_l(5): e(x)
        if nrt == 1:
            e(f"s_cmp_lg_u32 s{sSLOT}, 3")
            e("s_cbranch_scc1 t0_nohold")
            e(f"v_subrev_u32 v{TC}, 6144, v{QOA}")
            for n in range(18): e(f"ds_write_b128 v{TC}, {v(HOLD[n],4)} offset:{((3+n//6)*7+n%6)*1024}")
            e("s_waitcnt lgkmcnt(0)")
            g.label("t0_nohold")
        e(f"""
s_add_u32 s{sSLOT}, s{sSLOT}, 1
s_branch t0_unit_{tag}
""")
        if unit >= 1: g.mute -= 1
    g.label(f"t0_exit_{tag}")
    e("s_branch t0_final")
    for par in range(2):
        g.label(f"t0_rare{par}_{tag}")
        for rt in range(nrt):
            t, t2 = TC, T[0]
            rowmax(par, rt, t, t2)
            e(f"v_max_f32 v{t}, 0, v{t}")
            for i in range(4): e(f"v_sub_f32 v{NEGM(rt)+i}, v{NEGM(rt)+i}, v{t}")
            for pp in range(2):
                for i in range(8): e(f"v_sub_f32 v{S(pp,rt)+i}, v{S(pp,rt)+i}, v{t}")
            e(f"v_exp_f32 v{t}, -v{t}")
            for i in range(4): e(f"v_mul_f32 v{LSUM(rt)+i}, v{LSUM(rt)+i}, v{t}")
            for i in range(48): e(f"v_mul_f32 v{ACC(rt,0)+i}, v{ACC(rt,0)+i}, v{t}")
        for x in sm(par): e(x)
        e(f"s_setpc_b64 s[{sRET}:{sRET+1}]")
    return g.rec


def t0_final(p, needs):
    g = Gen(p, needs); e = g.e
    g.label("t0_final")
    op = OpEngine(g, lambda tt: 2 * (tt - 42), 56, 112, 128, [244, 245], 246, [247, 248], KVB, sLW, 2)
    op.fl = OPT["wo5"]; op.early = OPT["early"] >> 1
    op.addr_setup()
    e(f"""
s_mul_i32 s{sOB}, s{sW4}, {8*1280}
s_add_u32 s{sOB}, s{sOB}, {3*245760}
s_lshl_b32 s{sLW}, s{sW4}, 11
s_mov_b32 s{sSLO}, 0x01000c0c
s_mov_b32 s{sSHI}, 0x03020c0c
s_lshl_b32 s{sT1}, s{sW4}, 10
s_add_u32 s{sT1}, s{sT1}, {KVB + 32768}
v_add_u32 v249, s{sT1}, v246
""")
    for i in range(18, 22):
        for f in op.dma(i): f()
    def pk_read(ps):
        for rt in range(7): g.ld("pk", f"ds_read_b128 {v(op.PK(ps*14+rt*2),4)}, v249 offset:{rt*4096}")
    e("s_waitcnt lgkmcnt(0)"); g.lq[:] = []
    e("s_barrier")
    pk_read(3)
    e("s_waitcnt lgkmcnt(0)"); g.lq[:] = []
    for k in range(14):
        for x in op.unpack_l(op.AC(k), op.PK(42 + k)): e(x)
    g.wait("vm", "in", ["O18"])
    e("s_barrier")
    op.first_reads(18)
    def tick(i):
        op.flush_pq()
        g.wait("vm", f"t{i}", [f"O{i+1}"])
        e("s_barrier")
        if i + 4 < 30:
            for f in op.dma(i + 4): f()
    for i in range(18, 30):
        op.step("f", i, 29, tick, store=[3], hooks={5: lambda: pk_read(4)} if i == 20 else None)
    op.finish()
    for i in range(5): e("s_barrier")
    e("s_branch k1_final")
    return g.rec

def t1_path(p, needs):
    g = Gen(p, needs); e = g.e
    def PK(tt): return 2 * tt
    def Q2(k): return PK(56) + 2 * k if k < 14 else 236 + 2 * (k - 14)
    OB = 252
    op = OpEngine(g, PK, 140, 196, 212, [250, 251], OB, [253, 254], T1R, sLW, 0)
    AC, AF, BF = op.AC, op.AF, op.BF
    def dma_sub(u):
        a, bb = divmod(u, 3)
        srd = sKd if kv_kind(a) == "K" else sVd
        def f():
            e(f"s_add_u32 m0, s{sL1}, {KVB + (u % NS) * 4096 - bb * 128}")
            e(f"s_add_u32 s{sT1}, s{sKSO2}, {kv_tile(a) * TILE}")
            off = f"offset:{bb*128} " if bb else ""
            g.vm(f"U{u % 96}", f"buffer_load_dwordx4 v{PKV_}, s[{srd}:{srd+3}], s{sT1} offen {off}{OPT['kv']} lds")
        return f
    st = dict(pub=0, iss=0)
    def kv_tags(k):
        upto = XB_[k + 1] if k < NX - 1 else 384
        n = -(-(upto + LEAD) // 4) if upto < 384 else 96
        tags = [f"U{u}" for u in range(st["pub"], n)]
        st["pub"] = max(st["pub"], n)
        return tags
    def kv_issue(k):
        out = []
        while k in KVT and 4 * (st["iss"] - KL) + 4 <= XB_[k]:
            out.append(dma_sub(st["iss"])); st["iss"] += 1
        return out
    def touch_o(t):
        nsh = 16 if OPT["map"] == 0 else 8
        per = 245760 // (4 * nsh)
        e(f"""
s_and_b32 s{sT1}, s{sB}, {nsh-1}
s_lshl_b32 s{sT1}, s{sT1}, 2
s_add_u32 s{sT1}, s{sT1}, s{sW4}
s_mul_i32 s{sT1}, s{sT1}, {per}
s_sub_u32 s{sT2}, s{sSLOT}, 1
s_mul_i32 s{sT2}, s{sT2}, 245760
s_add_u32 s{sT1}, s{sT1}, s{sT2}
s_mov_b32 m0, {SPARE}
v_lshrrev_b32 v{t}, 4, v{OB}
v_min_u32 v{t}, {per//128-1}, v{t}
v_lshlrev_b32 v{t}, 7, v{t}
""")
        g.vm("pf", f"buffer_load_dword v{t}, s[{sOd}:{sOd+3}], s{sT1} offen {OPT['tf']} lds")
    NEXT = {26: 2, 27: 3, 28: 0, 29: 1}
    def tick(i):
        waits = ([f"O{i+1}"] if i < 29 else []) + kv_tags(i)
        op.flush_pq()
        if waits: g.wait("vm", f"o{i}", waits)
        if OPT["vcap"]: e(f"s_waitcnt vmcnt({OPT['vcap']})")
        e("s_barrier")
        io = []
        if not OPT["burst"]:
            if i == 26: io.append(lambda: e(f"s_add_u32 s{sOB}, s{sOB}, 245760"))
            io += op.dma(NEXT.get(i, i + 4))
        elif i % 2 == 1:
            if i == 27: io.append(lambda: e(f"s_add_u32 s{sOB}, s{sOB}, 245760"))
            io += op.dma(NEXT.get(i - 1, i + 3)) + op.dma(NEXT.get(i, i + 4))
        items = kv_issue(i) + io if OPT["kvfirst"] and i < 28 else io + kv_issue(i)
        if OPT["near"] and i == OPT["near"]: items.append(lambda: touch_o(AF(i + 1, 0) if False else 249))
        for f in items[:OPT["now0"]]: f()
        items = items[OPT["now0"]:]
        for j, f in enumerate(items): op.pq.append((op.clock + OPT["vpost"] + (j * OPT["span"]) // len(items), f))
    def q_write(reg):
        for rt in range(7):
            for k in range(3): e(f"ds_write_b64 v{AC(0)+k}, {v(reg(rt,k),2)} offset:{QO+rt*1024}")
        e("s_waitcnt lgkmcnt(0)")
    def q_addr():
        t = AC(1)
        e(f"v_lshrrev_b32 v{t}, 5, v{OB}")
        e(f"v_and_b32 v{t}, 8, v{t}")
        e(f"v_add_u32 v{t}, v{t}, v{OB}")
        for k in range(3):
            e(f"""
s_mul_i32 s{sT1}, s{sW4}, 3
s_add_u32 s{sT1}, s{sT1}, {k}
s_lshr_b32 s{sT2}, s{sT1}, 1
s_mul_i32 s{sT2}, s{sT2}, 7168
s_and_b32 s{sT1}, s{sT1}, 1
s_lshl_b32 s{sT1}, s{sT1}, 3
v_xor_b32 v{AC(0)+k}, s{sT1}, v{t}
v_add_u32 v{AC(0)+k}, s{sT2}, v{AC(0)+k}
""")

    e(f"""
s_mul_i32 s{sOB}, s{sW4}, {8*1280}
s_lshl_b32 s{sLW}, s{sW4}, 11
s_lshl_b32 s{sL1}, s{sW4}, 10
s_mov_b32 s{sSLOT}, 1
s_mov_b32 s{sRX}, 0x01000c0c
s_mov_b32 s{sRX+1}, 0x03020c0c
""")
    for u in range(N0 - 96):
        g.vq.append(f"U{u}"); g.issued[f"U{u}"] = 1
    st.update(pub=0, iss=N0 - 96)
    g.wait("vm", "i_t0", kv_tags(-1))
    e("s_barrier")
    stamp_slot(e)
    e("s_barrier")
    for rt in range(7):
        for k in range(3): e(f"ds_write_b64 v{QW[k]}, {v(QAC(0,rt,k),2)} offset:{QO+rt*1024}")
    def setup():
        e("s_waitcnt lgkmcnt(0)")
        for k in range(21):
            for x in range(2): e(f"v_mov_b32 v{2*k+x}, v{QAC(1,k//3,k%3)+x}")
        for k in range(21):
            for x in range(2): e(f"v_mov_b32 v{Q2(k)+x}, v{2*k+x}")
    def setup0():
        e("s_waitcnt lgkmcnt(0)")
        op.addr_setup()
        setup()
    task = {0: setup0}
    if OPT["touch"]: task[4] = lambda: touch_o(AF(0, 0))
    for k in range(NX):
        w = kv_tags(k)
        if w: g.wait("vm", f"i{k}", w)
        e("s_barrier")
        for f in kv_issue(k): f()
        if k in task: task[k]()
        if k >= 26:
            for f in op.dma(NEXT[k]): f()
    for s in range(2, 5):
        if s != 2: g.mute += 1
        g.label("t1_slot")
        assert st["iss"] == N0
        st.update(pub=0, iss=N0 - 96)
        e(f"""
s_add_u32 s{sSLOT}, s{sSLOT}, 1
s_add_u32 s{sKSO2}, s{sKSO2}, 196608
s_cmp_eq_u32 s{sSLOT}, 2
s_cselect_b32 s{sSLO}, 0x0c0c0c0c, s{sRX}
s_cselect_b32 s{sSHI}, 0x0c0c0c0c, s{sRX+1}
""")
        g.wait("vm", "t0", kv_tags(-1))
        e("s_barrier")
        if not g.mute: stamp_slot(e)
        if OPT["touch"] and not OPT["near"]: touch_o(AF(0, 0))
        for k in range(14):
            for x in op.unpack_l(AC(k), PK(k)): e(x)
        g.wait("vm", "o_in", ["O0"])
        e("s_barrier")
        stamp_if(e, 12, OPT["ps"])
        op.first_reads(0)
        for i in range(30): op.step("m", i, 29, tick)
        stamp_if(e, 13, OPT["ps"])
        tick(29)
        op.finish()
        e(f"s_cmp_lg_u32 s{sSLOT}, 2")
        e("s_cbranch_scc1 t1_noq2")
        for k in range(3): e(f"v_mov_b32 v{BF(0)+k}, v{AC(0)+k}")
        e(f"v_mov_b32 v{BF(0)+3}, v{AC(1)}")
        q_addr()
        q_write(lambda rt, k: Q2(rt * 3 + k))
        for k in range(3): e(f"v_mov_b32 v{AC(0)+k}, v{BF(0)+k}")
        e(f"v_mov_b32 v{AC(1)}, v{BF(0)+3}")
        g.label("t1_noq2")
        for n in range(14):
            for x in op.pack_l(PK(56 + n), AC(n)): e(x)
        e(f"s_cmp_lg_u32 s{sSLOT}, 4")
        e("s_cbranch_scc1 t1_slot")
        if s != 2: g.mute -= 1
    g.label("t1_last")
    op.fl = OPT["wo5"]; op.nr = OPT["r5"]; op.early = OPT["early"] & 1
    R5 = op.nr
    e(f"""
s_mov_b32 s{sSLOT}, 5
s_lshl_b32 s{sT1}, s{sW4}, 10
s_add_u32 s{sT1}, s{sT1}, {KVB + 32768}
v_add_u32 v249, s{sT1}, v{OB}
""")
    def pk_write(ps):
        for rt in range(7): g.ld("pk", f"ds_write_b128 v249, {v(PK(ps*14+rt*2),4)} offset:{rt*4096}")
    for k in range(14):
        for x in op.unpack_l(AC(k), PK(k)): e(x)
    e("s_waitcnt vmcnt(0)"); g.vq[:] = []
    e("s_barrier")
    stamp_slot(e)
    for i in range(4, R5):
        for f in op.dma(i): f()
    pk_write(3)
    e("s_waitcnt lgkmcnt(0)"); g.lq[:] = []
    e("s_barrier")
    stamp_if(e, 12, OPT["ps"])
    g.issued.pop("O0")
    op.first_reads(0)
    def tick5(i):
        op.flush_pq()
        if i == 2: g.wait("lg", "pkw", ["pk"])
        g.wait("vm", f"f{i}", [f"O{i+1}"])
        e("s_barrier")
        if i + R5 < 18:
            for f in op.dma(i + R5): f()
    g.issued.pop("pk")
    for i in range(18):
        op.step("f", i, 17, tick5, store=[0], hooks={5: lambda: pk_write(4)} if i == 1 else None)
    op.finish()
    stamp_if(e, 13, OPT["ps"])
    g.label("t1_exit")
    return g.rec

def final_reduce(p):
    e = p
    sG, sMASK, sQ, sBL = 4, 5, 6, 7
    sD, sA, sOUT = 8, 32, 36
    e.label("k1_final")
    if OPT["two"]:
        if OPT["prof"]: e("s_waitcnt vmcnt(0)")
        stamp(e, 10); stamp(e, 11, real=True)
        dump_stamps(e, 28, 64 << 20, 8)
        return
    e(f"""
s_waitcnt vmcnt(0)
s_barrier
""")
    stamp(e, 9, real=bool(OPT["rt"]))
    e(f"""
s_and_b32 s{sG}, s2, 7
s_cmp_lt_u32 s{sG}, 4
s_cselect_b32 s{sG}, 0, 16
s_add_u32 s{sG}, s{sG}, s{sB}
v_mbcnt_lo_u32_b32 v2, -1, 0
v_mbcnt_hi_u32_b32 v2, -1, v2
s_cmp_gt_u32 s{sWAVE}, 1
s_cbranch_scc1 k1_fw
s_mov_b32 s{sD}, s26
s_mov_b32 s{sD+1}, s27
s_mov_b32 s{sD+2}, 256
s_mov_b32 s{sD+3}, 0x20000
s_lshl_b32 s{sT1}, s{sG}, 2
v_mov_b32 v3, 0
v_mov_b32 v4, 1
s_cmp_eq_u32 s{sWAVE}, 0
s_cbranch_scc1 k1_w0
s_mov_b64 exec, 1
buffer_atomic_add v4, v3, s[{sD}:{sD+3}], s{sT1} offen offset:128 sc0 sc1
s_waitcnt vmcnt(0)
v_readfirstlane_b32 s{sT2}, v4
s_and_b32 s{sT3}, s{sT2}, 0xff
s_bfe_u32 s{sT2}, s{sT2}, 0x80008
s_cmp_eq_u32 s{sT3}, 7
s_cselect_b32 s{sT2}, s{sT2}, 0
v_mov_b32 v4, s{sT2}
ds_write_b32 v3, v4 offset:4
s_waitcnt lgkmcnt(0)
s_mov_b64 exec, -1
s_branch k1_fw
k1_w0:
s_lshl_b32 s{sMASK}, 1, s{sQUAD}
s_lshl_b32 s{sT2}, s{sG}, 10
s_add_u32 s{sT2}, s{sT2}, {FLAG0}
s_add_u32 s{sA}, s28, s{sT2}
s_addc_u32 s{sA+1}, s29, 0
s_mov_b32 s{sA+2}, 1024
s_mov_b32 s{sA+3}, 0x20000
s_lshl_b32 s{sT2}, s{sQUAD}, 7
s_mov_b64 exec, 1
buffer_store_dword v4, v3, s[{sA}:{sA+3}], s{sT2} offen sc1
s_mov_b64 exec, 0xff
v_lshlrev_b32 v5, 7, v2
s_mov_b32 s{sCTR}, 0
k1_poll:
buffer_load_dword v6, v3, s[{sD}:{sD+3}], s{sT1} offen offset:128 sc1
buffer_load_dword v4, v5, s[{sA}:{sA+3}], 0 offen sc1
s_waitcnt vmcnt(1)
v_lshrrev_b32 v6, 16, v6
v_cmp_ne_u32 vcc, 8, v6
s_cbranch_vccnz k1_again
k1_poll2:
s_waitcnt vmcnt(0)
v_cmp_ne_u32 vcc, 1, v4
s_cbranch_vccz k1_go
s_add_u32 s{sCTR}, s{sCTR}, 1
s_cmp_lt_u32 s{sCTR}, {OPT['spin']}
s_cbranch_scc0 k1_late
buffer_load_dword v4, v5, s[{sA}:{sA+3}], 0 offen sc1
s_branch k1_poll2
k1_again:
s_waitcnt vmcnt(0)
s_add_u32 s{sCTR}, s{sCTR}, 1
s_cmp_lt_u32 s{sCTR}, {OPT['spin']}
s_cbranch_scc1 k1_poll
k1_late:
s_mov_b64 exec, 1
s_lshl_b32 s{sT2}, s{sMASK}, 8
v_mov_b32 v4, s{sT2}
buffer_atomic_or v4, v3, s[{sD}:{sD+3}], s{sT1} offen offset:128 sc0 sc1
s_waitcnt vmcnt(0)
v_readfirstlane_b32 s{sT2}, v4
s_and_b32 s{sT2}, s{sT2}, 0xff
s_cmp_eq_u32 s{sT2}, 8
s_cselect_b32 s{sMASK}, s{sMASK}, 0
k1_go:
s_mov_b64 exec, 1
v_mov_b32 v4, s{sMASK}
ds_write_b32 v3, v4
s_waitcnt lgkmcnt(0)
s_mov_b64 exec, -1
k1_fw:
s_mul_i32 s{sT1}, s{sG}, {8*PART_CU}
s_add_u32 s{sT1}, s{sT1}, {PART0}
s_add_u32 s{sA}, s28, s{sT1}
s_addc_u32 s{sA+1}, s29, 0
s_mov_b32 s{sA+2}, {8*PART_CU}
s_mov_b32 s{sA+3}, 0x20000
s_mul_i32 s{sT1}, s{sB}, {112*2560}
s_lshr_b32 s{sT2}, s{sG}, 4
s_mul_i32 s{sT2}, s{sT2}, 1280
s_add_u32 s{sT1}, s{sT1}, s{sT2}
s_add_u32 s{sOUT}, s24, s{sT1}
s_addc_u32 s{sOUT+1}, s25, 0
s_sub_u32 s{sOUT+2}, {112*2560}, s{sT2}
s_mov_b32 s{sOUT+3}, 0x20000
v_lshlrev_b32 v3, 4, v2
v_and_b32 v4, 15, v2
v_lshrrev_b32 v5, 4, v2
v_mul_u32_u24 v6, 272, v4
v_lshl_add_u32 v6, v5, 3, v6
s_mul_i32 s{sT2}, s{sTEAM}, {3*4352}
s_add_u32 s{sT2}, s{sT2}, 2048
s_lshl_b32 s{sT1}, s{sW4}, 6
s_add_u32 s{sT1}, s{sT1}, s{sT2}
v_add_u32 v6, s{sT1}, v6
s_mul_i32 s{sT1}, s{sW4}, {4*272}
s_add_u32 s{sT1}, s{sT1}, s{sT2}
v_mul_u32_u24 v7, 272, v5
v_lshl_add_u32 v7, v4, 4, v7
v_add_u32 v7, s{sT1}, v7
v_mul_u32_u24 v5, 2560, v5
v_lshl_add_u32 v4, v4, 4, v5
v_mov_b32 v5, 0
s_barrier
ds_read_b64 v[8:9], v5
s_waitcnt lgkmcnt(0)
v_or_b32 v5, v8, v9
v_readfirstlane_b32 s{sMASK}, v5
""")
    stamp(e, 8, real=bool(OPT["rt"]))
    e(f"""
k1_slice:
s_cmp_eq_u32 s{sMASK}, 0
s_cbranch_scc1 k1_done
s_ff1_i32_b32 s{sQ}, s{sMASK}
s_bitset0_b32 s{sMASK}, s{sQ}
s_lshl_b32 s{sBL}, s{sTEAM}, 3
s_add_u32 s{sBL}, s{sBL}, s{sQ}
""")
    for k in range(3):
        e(f"""
s_add_u32 s{sT1}, s{sBL}, {16*k}
s_mul_i32 s{sT2}, s{sW4}, 35
s_add_u32 s{sT2}, s{sT2}, s{sT1}
s_lshl_b32 s{sT2}, s{sT2}, 10
s_cmp_lt_u32 s{sT1}, 35
s_cselect_b32 s{sT2}, s{sT2}, {8*PART_CU}
""")
        for q in range(8):
            r = 8 + 32 * k + 4 * q
            e(f"buffer_load_dwordx4 {v(r,4)}, v3, s[{sA}:{sA+3}], s{sT2} offen {OPT['rd']}")
            if q < 7: e(f"s_add_u32 s{sT2}, s{sT2}, {PART_CU}")
        e(f"""
s_mul_i32 s{sT2}, s{sT1}, 37
s_lshr_b32 s{sT2}, s{sT2}, 8
s_mul_i32 s{sT3}, s{sT2}, 7
s_sub_u32 s{sT3}, s{sT1}, s{sT3}
s_lshl_b32 s{sT2}, s{sT2}, 8
s_mul_i32 s{sT3}, s{sT3}, {16*2560}
s_add_u32 s{sT2}, s{sT2}, s{sT3}
s_mul_i32 s{sT3}, s{sW4}, {4*2560}
s_add_u32 s{sT2}, s{sT2}, s{sT3}
s_cmp_lt_u32 s{sT1}, 35
s_cselect_b32 s{12+k}, s{sT2}, 0x1000000
""")
    for k in range(3):
        for q in range(8):
            e(f"s_waitcnt vmcnt({23-8*k-q})")
            if OPT["fs"] and (k, q) in ((0, 0), (0, 7), (2, 7)): stamp(e, {(0, 0): 12, (0, 7): 13, (2, 7): 14}[(k, q)], real=True)
            for i in range(4):
                r = 8 + 32 * k + 4 * q + i
                if q == 0:
                    e(f"v_lshlrev_b32 v{104+2*i}, 16, v{r}")
                    e(f"v_and_b32 v{105+2*i}, 0xffff0000, v{r}")
                else:
                    e(f"v_lshlrev_b32 v112, 16, v{r}")
                    e(f"v_and_b32 v113, 0xffff0000, v{r}")
                    e(f"v_add_f32 v{104+2*i}, v{104+2*i}, v112")
                    e(f"v_add_f32 v{105+2*i}, v{105+2*i}, v113")
        for i in range(4): e(f"v_cvt_pk_bf16_f32 v{116+4*k+i}, v{104+2*i}, v{105+2*i}")
        e(f"ds_write_b64 v6, {v(116+4*k,2)} offset:{k*4352}")
        e(f"ds_write_b64 v6, {v(118+4*k,2)} offset:{k*4352+32}")
    e("s_waitcnt lgkmcnt(0)")
    e("s_barrier")
    if OPT["fs"]: stamp(e, 15, real=True)
    for k in range(3): e(f"ds_read_b128 {v(128+4*k,4)}, v7 offset:{k*4352}")
    for k in range(3):
        e(f"s_waitcnt lgkmcnt({2-k})")
        e(f"buffer_store_dwordx4 {v(128+4*k,4)}, v4, s[{sOUT}:{sOUT+3}], s{12+k} offen")
    e("""
s_barrier
s_branch k1_slice
k1_done:
""")
    if OPT["prof"]: e("s_waitcnt vmcnt(0)")
    stamp(e, 10); stamp(e, 11, real=True)
    dump_stamps(e, 28, 64 << 20, 8)

def build(needs):
    p = Prog()
    p(f"""
.globl {NAME}_kernel
.p2align 8
.type {NAME}_kernel,@function
{NAME}_kernel:
s_cmp_ge_u32 s2, 256
s_cbranch_scc1 k1_end
s_load_dwordx16 s[4:19], s[0:1], 0
s_load_dwordx8 s[20:27], s[0:1], 64
s_load_dwordx2 s[28:29], s[0:1], 96
v_lshrrev_b32 v1, 6, v0
v_and_b32 v2, 63, v0
v_readfirstlane_b32 s{sWAVE}, v1
s_and_b32 s{sT1}, s2, 7
s_lshr_b32 s{sT2}, s2, 3
""")
    if OPT["map"] == 0:
        p(f"""
s_and_b32 s{sQUAD}, s{sT1}, 3
s_lshl_b32 s{sQUAD}, s{sQUAD}, 1
s_and_b32 s{sB}, s{sT2}, 1
s_add_u32 s{sQUAD}, s{sQUAD}, s{sB}
s_lshr_b32 s{sB}, s{sT2}, 1
""")
    else:
        p(f"""
s_and_b32 s{sQUAD}, s{sT1}, 1
s_lshl_b32 s{sQUAD}, s{sQUAD}, 2
s_and_b32 s{sB}, s{sT2}, 3
s_add_u32 s{sQUAD}, s{sQUAD}, s{sB}
s_and_b32 s{sB}, s{sT1}, 2
s_lshl_b32 s{sB}, s{sB}, 2
s_lshr_b32 s{sT2}, s{sT2}, 2
s_add_u32 s{sB}, s{sB}, s{sT2}
""")
    p(f"""
s_and_b32 s{sW4}, s{sWAVE}, 3
s_lshr_b32 s{sTEAM}, s{sWAVE}, 2
s_mul_i32 s{sLW}, s{sW4}, 3072
s_mov_b32 s{sKd+2}, {0 if OPT['nokv'] else 786432}
s_mov_b32 s{sKd+3}, 0x20000
s_mov_b32 s{sVd+2}, {0 if OPT['nokv'] else 786432}
s_mov_b32 s{sVd+3}, 0x20000
s_mov_b32 s{sWd+3}, 0x20000
s_mov_b32 s{sOd+2}, {0 if OPT['now'] else 983040}
s_mov_b32 s{sOd+3}, 0x20000
s_mov_b32 s{sXd+2}, {0 if OPT['nox'] else 143360}
s_mov_b32 s{sXd+3}, 0x20000
s_mov_b32 s{sPd+2}, {35840+QO}
s_mov_b32 s{sPd+3}, 0x20000
s_waitcnt lgkmcnt(0)
s_cmp_lt_u32 s{sT1}, 4
s_cselect_b64 s[4:5], s[4:5], s[14:15]
s_cselect_b64 s[6:7], s[6:7], s[16:17]
s_cselect_b64 s[8:9], s[8:9], s[18:19]
s_cselect_b64 s[10:11], s[10:11], s[20:21]
s_cselect_b64 s[12:13], s[12:13], s[22:23]
s_cselect_b32 s{sT3}, 0, 16
s_mul_i32 s{sT2}, s{sB}, 143360
s_add_u32 s{sXd}, s4, s{sT2}
s_addc_u32 s{sXd+1}, s5, 0
s_mul_i32 s{sT2}, s{sQUAD}, 1536
s_add_u32 s{sWd}, s10, s{sT2}
s_addc_u32 s{sWd+1}, s11, 0
s_sub_u32 s{sWd+2}, 7864320, s{sT2}
{'s_mov_b32 s%d, 0' % (sWd+2) if OPT['now'] else ''}
s_lshl_b32 s{sT1}, s{sB}, 3
s_add_u32 s{sT1}, s{sT1}, s{sQUAD}
s_mul_i32 s{sT2}, s{sT1}, 786432
s_add_u32 s{sKd}, s6, s{sT2}
s_addc_u32 s{sKd+1}, s7, 0
s_add_u32 s{sVd}, s8, s{sT2}
s_addc_u32 s{sVd+1}, s9, 0
s_mul_i32 s{sT2}, s{sQUAD}, 983040
s_add_u32 s{sOd}, s12, s{sT2}
s_addc_u32 s{sOd+1}, s13, 0
s_lshl_b32 s{sT3}, s{sT3}, 3
s_add_u32 s{sT1}, s{sT1}, s{sT3}
s_mul_i32 s{sT1}, s{sT1}, {PART_CU}
s_mul_i32 s{sT2}, s{sW4}, 35840
s_add_u32 s{sT1}, s{sT1}, s{sT2}
s_add_u32 s{sT1}, s{sT1}, {PART0-QO}
s_add_u32 s{sPd}, s28, s{sT1}
s_addc_u32 s{sPd+1}, s29, 0
""")
    stamp(p, 0); stamp(p, 1, real=True)
    p(f"""
s_cmp_lg_u32 s{sWAVE}, 0
s_cbranch_scc1 k1_noclr
s_and_b32 s{sT1}, s2, 7
s_cmp_lt_u32 s{sT1}, 4
s_cselect_b32 s{sT1}, 0, 16
s_add_u32 s{sGRP}, s{sT1}, s{sB}
s_lshl_b32 s{sT1}, s{sGRP}, 3
s_add_u32 s{sT1}, s{sT1}, s{sQUAD}
s_lshl_b32 s{sT1}, s{sT1}, 7
s_add_u32 s{sT1}, s{sT1}, {FLAG0}
s_add_u32 s4, s28, s{sT1}
s_addc_u32 s5, s29, 0
s_mov_b32 s6, 128
s_mov_b32 s7, 0x20000
v_mov_b32 v1, 0
s_mov_b64 exec, 1
buffer_store_dword v1, v1, s[4:7], 0 offen sc1
s_mov_b64 exec, -1
k1_noclr:
""")
    if OPT["cpf"]:
        p(f"""
s_cmp_lg_u32 s{sWAVE}, 7
s_cbranch_scc1 k1_nocpf
s_getpc_b64 s[4:5]
s_mov_b32 s6, k1_end-k1_nocpf
s_mov_b32 s7, 0x20000
s_lshr_b32 s{sT1}, s2, 3
s_and_b32 s{sT1}, s{sT1}, 31
s_lshl_b32 s{sT1}, s{sT1}, 7
v_and_b32 v1, 31, v0
v_lshlrev_b32 v1, 12, v1
buffer_load_dword v254, v1, s[4:7], s{sT1} offen
k1_nocpf:
""")
    if OPT["tlb"]:
        p(f"""
v_and_b32 v1, 3, v0
v_lshlrev_b32 v1, 18, v1
v_min_u32 v1, {786432-128}, v1
s_cmp_lg_u32 s{sWAVE}, 1
s_cbranch_scc1 k1_t1a
buffer_load_dword v254, v1, s[{sKd}:{sKd+3}], 0 offen nt
k1_t1a:
s_cmp_lg_u32 s{sWAVE}, 2
s_cbranch_scc1 k1_t1b
buffer_load_dword v254, v1, s[{sVd}:{sVd+3}], 0 offen nt
k1_t1b:
s_cmp_lg_u32 s{sWAVE}, 3
s_cbranch_scc1 k1_t1c
buffer_load_dword v254, v1, s[{sOd}:{sOd+3}], 0 offen nt
k1_t1c:
s_cmp_lg_u32 s{sWAVE}, 4
s_cbranch_scc1 k1_t1d
s_and_b32 s{sT1}, s2, 7
s_cmp_lt_u32 s{sT1}, 4
s_cselect_b32 s{sT1}, 0, 16
s_add_u32 s{sT1}, s{sT1}, s{sB}
s_mul_i32 s{sT1}, s{sT1}, {8*PART_CU}
s_add_u32 s{sT1}, s{sT1}, {PART0}
s_add_u32 s4, s28, s{sT1}
s_addc_u32 s5, s29, 0
s_mov_b32 s6, {8*PART_CU}
s_mov_b32 s7, 0x20000
v_and_b32 v1, 7, v0
v_mul_u32_u24 v1, {PART_CU}, v1
buffer_load_dword v254, v1, s[4:7], 0 offen nt sc1
k1_t1d:
s_cmp_lg_u32 s{sWAVE}, 5
s_cbranch_scc1 k1_t1e
s_mul_i32 s{sT1}, s{sB}, {112*2560}
s_add_u32 s4, s24, s{sT1}
s_addc_u32 s5, s25, 0
s_mov_b32 s6, {112*2560}
s_mov_b32 s7, 0x20000
v_and_b32 v1, 1, v0
v_mul_u32_u24 v1, {112*2560-128}, v1
buffer_load_dword v254, v1, s[4:7], 0 offen nt sc1
k1_t1e:
""")
    rec = {}
    rec["qp"] = qp_phase(p, needs.get("qp", {}))
    p(f"""
s_cmp_ge_u32 s{sWAVE}, 4
s_cbranch_scc1 k1_t1
""")
    if OPT["prio0"]: p(f"s_setprio {OPT['prio0']}")
    p(f"""
s_cmp_eq_u32 s{sWAVE}, 3
s_cbranch_scc1 k1_light
""")
    rec["h"] = t0_path(p, needs.get("h", {}), 2, "h")
    p.label("k1_light")
    rec["l"] = t0_path(p, needs.get("l", {}), 1, "l")
    rec["f"] = t0_final(p, needs.get("f", {}))
    p.label("k1_t1")
    if OPT["not1"]: p("s_endpgm")
    if OPT["prio1"]: p(f"s_setprio {OPT['prio1']}")
    rec["t1"] = t1_path(p, needs.get("t1", {}))
    final_reduce(p)
    p("""
k1_end:
s_endpgm
""")
    return p, rec

def reduce_kernel():
    p = Prog()
    p(f"""
.globl reduce_kernel
.p2align 8
.type reduce_kernel,@function
reduce_kernel:
s_cmp_ge_u32 s2, 1120
s_cbranch_scc1 k2_end
s_load_dwordx2 s[8:9], s[0:1], 80
s_load_dwordx2 s[10:11], s[0:1], 96
v_lshrrev_b32 v1, 6, v0
v_and_b32 v2, 63, v0
v_readfirstlane_b32 s3, v1
s_mul_i32 s5, s2, 1873
s_lshr_b32 s5, s5, 16
s_mul_i32 s6, s5, 35
s_sub_u32 s22, s2, s6
s_mul_i32 s6, s3, 35
s_add_u32 s6, s6, s22
s_mul_i32 s7, s5, {8*PART_CU}
s_add_u32 s7, s7, {PART0}
s_lshl_b32 s20, s6, 10
v_lshlrev_b32 v3, 4, v2
s_mov_b32 s14, {8*PART_CU}
s_mov_b32 s15, 0x20000
s_waitcnt lgkmcnt(0)
s_add_u32 s12, s10, s7
s_addc_u32 s13, s11, 0
""")
    for q in range(8):
        p(f"buffer_load_dwordx4 v[{8+4*q}:{11+4*q}], v3, s[12:15], s20 offen {OPT['rd']}")
        if q < 7: p(f"s_add_u32 s20, s20, {PART_CU}")
    p(f"""
s_and_b32 s23, s5, 15
s_mul_i32 s23, s23, {112*2560}
s_lshr_b32 s24, s5, 4
s_mul_i32 s24, s24, 1280
s_add_u32 s23, s23, s24
s_mov_b32 s16, s8
s_mov_b32 s17, s9
s_mov_b32 s18, {16*112*2560}
s_mov_b32 s19, 0x20000
s_mul_i32 s26, s22, 37
s_lshr_b32 s26, s26, 8
s_mul_i32 s27, s26, 7
s_sub_u32 s27, s22, s27
s_lshl_b32 s30, s26, 8
s_mul_i32 s28, s27, {16*2560}
s_add_u32 s30, s30, s28
s_mul_i32 s28, s3, {4*2560}
s_add_u32 s30, s30, s28
s_add_u32 s32, s30, s23
v_and_b32 v4, 15, v2
v_lshrrev_b32 v5, 4, v2
v_mul_u32_u24 v6, 272, v4
v_lshl_add_u32 v6, v5, 3, v6
s_lshl_b32 s28, s3, 6
v_add_u32 v6, s28, v6
s_mul_i32 s28, s3, {4*272}
v_mul_u32_u24 v7, 272, v5
v_lshl_add_u32 v7, v4, 4, v7
v_add_u32 v7, s28, v7
v_mul_u32_u24 v5, 2560, v5
v_lshl_add_u32 v4, v4, 4, v5
""")
    for q in range(8):
        p(f"s_waitcnt vmcnt({7-q})")
        for i in range(4):
            r = 8 + 4 * q + i
            if q == 0:
                p(f"v_lshlrev_b32 v{40+2*i}, 16, v{r}")
                p(f"v_and_b32 v{41+2*i}, 0xffff0000, v{r}")
            else:
                p(f"v_lshlrev_b32 v48, 16, v{r}")
                p(f"v_and_b32 v49, 0xffff0000, v{r}")
                p(f"v_add_f32 v{40+2*i}, v{40+2*i}, v48")
                p(f"v_add_f32 v{41+2*i}, v{41+2*i}, v49")
    for i in range(4): p(f"v_cvt_pk_bf16_f32 v{52+i}, v{40+2*i}, v{41+2*i}")
    p("""
ds_write_b64 v6, v[52:53]
ds_write_b64 v6, v[54:55] offset:32
s_waitcnt lgkmcnt(0)
s_barrier
ds_read_b128 v[52:55], v7
s_waitcnt lgkmcnt(0)
buffer_store_dwordx4 v[52:55], v4, s[16:19], s32 offen
k2_end:
s_endpgm
""")
    return p

def desc(name, vg):
    return f""".amdhsa_kernel {name}
  .amdhsa_next_free_vgpr {vg}
  .amdhsa_next_free_sgpr 102
  .amdhsa_accum_offset {vg}
  .amdhsa_group_segment_fixed_size 0
  .amdhsa_kernarg_size 104
  .amdhsa_user_sgpr_count 2
  .amdhsa_user_sgpr_kernarg_segment_ptr 1
  .amdhsa_system_sgpr_workgroup_id_x 1
.end_amdhsa_kernel
"""

def main():
    for t in range(1120): assert (t * 1873) >> 16 == t // 35
    for t in range(140): assert (t * 235) >> 13 == t // 35
    for t in range(35): assert (t * 37) >> 8 == t // 7
    _, rec = build({})
    for it in range(4):
        a, rec2 = build(rec)
        if rec2 == rec: break
        rec = rec2
    else: raise SystemExit("no fixpoint")
    b = reduce_kernel()
    if OPT["novm"]: a.L[:] = [l for l in a.L if not l.startswith("buffer_load")]
    if OPT["nobar"]: a.L[:] = [l for l in a.L if not l.startswith("s_barrier")]
    if OPT["nolg"]:
        out_ = []
        for i_, l in enumerate(a.L):
            if l.startswith("s_waitcnt lgkmcnt") and not a.L[i_-1].startswith(("s_mem", "s_load")) and i_ > 60: continue
            out_.append(l)
        a.L[:] = out_
    if OPT["nord"]: a.L[:] = [l for l in a.L if not l.startswith("ds_read")]
    if OPT["noexp"]: a.L[:] = [l.replace("v_exp_f32", "v_mov_b32") if l.startswith("v_exp_f32") and "-v" not in l else l for l in a.L]
    if OPT["nosm"]: a.L[:] = [l for l in a.L if not l.startswith(("v_exp_f32", "v_cvt_pk"))]
    if OPT["nochk"]: a.L[:] = [l for l in a.L if not l.startswith(("v_or3", "v_or_b32", "v_cmp_ne", "s_cbranch_vccz", "v_and_b32 v252"))]
    if OPT["prof"] == 2:
        out_ = []; L_ = a.L; inrole = False; i_ = 0
        while i_ < len(L_):
            l = L_[i_]
            if l.startswith(("t0_unit", "t1_slot")): inrole = True
            if l.startswith(("t0_exit", "t1_exit")): inrole = False
            if inrole and l == "s_barrier":
                j = len(out_)
                while j > 0 and (out_[j-1].startswith(("s_waitcnt vmcnt", "s_cmp_eq_u32 s55, 5", "s_cbranch_scc1 t1_wa")) or out_[j-1].startswith("t1_wa")): j -= 1
                blk = out_[j:]; del out_[j:]
                out_ += ["s_memtime s[4:5]"] + blk + ["s_memtime s[6:7]", "s_barrier", "s_memtime s[8:9]", "s_waitcnt lgkmcnt(0)",
                         "s_sub_u32 s4, s6, s4", "s_add_u32 s94, s94, s4", "s_sub_u32 s6, s8, s6", "s_add_u32 s95, s95, s6"]
            elif inrole and l.startswith("buffer_load") and l.endswith("lds"):
                out_ += ["s_memtime s[4:5]", l, "s_memtime s[6:7]", "s_waitcnt lgkmcnt(0)", "s_sub_u32 s4, s6, s4", "s_add_u32 s89, s89, s4"] if OPT["pv"] else [l]
            elif l.startswith(("k1_light:", "k1_t1:")) or l.startswith("s_cbranch_scc1 k1_light"):
                out_ += [l, "s_mov_b32 s94, 0", "s_mov_b32 s95, 0", "s_mov_b32 s89, 0"]
            else: out_.append(l)
            i_ += 1
        a.L[:] = out_
    if OPT["prof"] == 4:
        out_ = []; inrole = False; idx = 0
        L_ = [l for l in a.L if not (l.startswith(("s_cselect_b32 s8", "s_cselect_b32 s9")) or (l.startswith(("s_mov_b32 s8", "s_mov_b32 s9")) and "s100" in l))]
        def st_(k):
            return ["s_memtime s[100:101]", "s_waitcnt lgkmcnt(0)", f"s_cmp_eq_u32 s{sSLOT}, {OPT['ps']}", f"s_cselect_b32 s{80+k}, s100, s{80+k}"] if 0 <= k < 16 else []
        for i_, l in enumerate(L_):
            if l.startswith(("t0_unit", "t1_slot")): inrole = True; idx = 0
            if l.startswith(("t0_exit", "t1_last")): inrole = False
            k = (idx - OPT["pb"]) * 4
            if inrole and l == "s_barrier":
                x = out_.pop() if out_[-1].startswith("s_waitcnt vmcnt") else None
                out_ += st_(k - 2) + ([x] if x else []) + st_(k - 1) + [l] + st_(k); idx += 1
            elif inrole and l.startswith("buffer_load") and l.endswith("lds"):
                nxt = next(y for y in L_[i_+1:] if y == "s_barrier" or (y.startswith("buffer_load") and y.endswith("lds")))
                out_ += [l] + (st_(k - 3) if nxt == "s_barrier" else [])
            else: out_.append(l)
        a.L[:] = out_
    if OPT["prof"] == 3:
        out_ = []; inrole = False; idx = 0
        for l in a.L:
            if l.startswith(("t0_unit", "t1_slot")): inrole = True; idx = 0
            if l.startswith(("t0_exit", "t1_exit")) or l.startswith("s_cbranch_scc1 t1_slot"): inrole = False
            if l.startswith("s_cselect_b32 s8") or l.startswith("s_cselect_b32 s9") or l.startswith("s_mov_b32 s9") and "s100" in l: continue
            if inrole and l == "s_barrier":
                k = idx - OPT["pb"]; idx += 1
                st_ = ["s_memtime s[100:101]", "s_waitcnt lgkmcnt(0)", f"s_cmp_eq_u32 s{sSLOT}, {OPT['ps']}", f"s_cselect_b32 s{80+k}, s100, s{80+k}"] if 0 <= k < 16 else []
                out_ += (st_ + [l]) if OPT["pa"] else ([l] + st_)
            else: out_.append(l)
        a.L[:] = out_
    if OPT["nomfq"] or OPT["nomf1"] or OPT["nomf0"]:
        out_ = []; sec = "q"
        for l in a.L:
            if l.startswith("t0_unit"): sec = "0"
            if l.startswith("k1_t1:"): sec = "1"
            if l.startswith("v_mfma") and OPT["nomf" + sec]: continue
            out_.append(l)
        a.L[:] = out_
    if OPT["xa"]:
        out_ = []; sec = "q"; cnt = 0
        for l in a.L:
            if l.startswith("t0_unit_h"): sec = "h"
            if l.startswith("t0_unit_l"): sec = "l"
            if l.startswith("t0_final"): sec = "f"
            if l.startswith("k1_t1:"): sec = "1"
            if OPT["xa"] == 1 and sec in "hl" and l.startswith("v_mfma") and "v[208:211]" in l: continue
            if OPT["xa"] == 2 and sec == "l" and l.startswith(("v_mfma", "ds_read")): continue
            if OPT["xa"] == 3 and sec == "1" and l.startswith("ds_read_b128"): continue
            if OPT["xa"] == 4 and sec in "hl" and l.startswith("ds_read"):
                continue
            out_.append(l)
        a.L[:] = out_
    if OPT["vwin"]:
        out_ = []; on = False
        for l in a.L:
            if l.startswith("k1_t1:") and OPT["vw1"]: on = True
            if l.startswith("t1_slot:"): on = True
            if l.startswith("t1_last:"): on = False
            if on and l.startswith("buffer_load") and l.endswith("lds"): out_.append(f"s_waitcnt vmcnt({OPT['vwin']-1})")
            out_.append(l)
        a.L[:] = out_
    if OPT["dynp"]:
        out_ = []; int1 = False
        for l in a.L:
            if l.startswith("k1_t1:"): int1 = True
            if int1 and l.startswith("buffer_load") and l.endswith("lds"):
                out_ += [f"s_setprio {OPT['dynp']}", l, f"s_setprio {OPT['prio1']}"]
            else: out_.append(l)
        a.L[:] = out_
    n1 = fix_hazards(a.L); n2 = fix_hazards(b.L)
    print("nops inserted", n1, n2, "instrs", len(a.L), len(b.L), file=sys.stderr)
    hdr = open("cdna_kernels/" + NAME + ".s.ref").read().split("; Override launch")[0]
    out = hdr
    if OPT["two"]:
        out += f"; @launch kernel={NAME}_kernel grid=(256,1,1) block=(512,1,1) lds={LDS_BYTES}\n"
        out += "; @launch kernel=reduce_kernel grid=(1120,1,1) block=(256,1,1) lds=4352\n"
    else:
        out += f"; @launch grid=(256,1,1) block=(512,1,1) lds={LDS_BYTES}\n"
    out += '.amdgcn_target "amdgcn-amd-amdhsa--gfx950"\n.text\n'
    out += a.text() + (b.text() if OPT["two"] else "")
    out += '.section .rodata,"a"\n.p2align 6\n' + desc(NAME + "_kernel", 256)
    if OPT["two"]: out += ".p2align 6\n" + desc("reduce_kernel", 56)
    open(sys.argv[1], "w").write(out)
    import subprocess
    r = subprocess.run(["clang", "-x", "assembler", "-target", "amdgcn-amd-amdhsa", "-mcpu=gfx950", "-c", sys.argv[1], "-o", "chk.o"], capture_output=True, text=True)
    if r.returncode: print("ASSEMBLY FAILED", r.stderr[:600])
main()
```

```python
import sys, math, struct, copy
sys.path.insert(0, "work")
from asmlib import *

NAME = "concat_heads__mha_block_cached__gqa_block_cached__near_ridge"
OPT = dict(kv="nt", w="", x="", wo="", st="sc1", rd="sc1", prof=0, prio0=0, prio1=0, touch=1, nox=0, now=0, nokv=0, nomf=0,
           novm=0, lead=4, bp="6.16.26.36.42", map=0, hack="", t1b=0, ps=5, kdel=0, x0=4, xt=0, dynp=0, nopark=0, gap=0, span=4, pa=0, pb=0, m=2, nlat=0, nonar=0, bar=3, qd=5, rt=0, tf="", tq="", pwo=0, tlb=0, stl=0, dd=0, stn=1, spin=40000, vcap=0, vpost=0, now0=9, xa=0, burst=0, kpar=0, pwh=1, near=0, vwin=9, cpf=1, fs=0, r5=6, early=3, qv=0, two=0, vw1=1, wo5="", nomfq=0, nomf1=0, nomf0=0, pwf="", kvfirst=1, w2=1, psplit=1, nb1=8, nb2=29, kl=16, tl=4, kvat=18, qst="sc1", noq=0, noqst=0, pv=0, nobar=0, nolg=0, nord=0, norare=0, not1=0, noexp=0, nochk=0, nosm=0)
for a in sys.argv[2:]:
    k, val = a.split("=")
    OPT[k] = int(val) if val.lstrip("-").isdigit() else (val if k in ("bp", "hack") else val.replace("+", " ").replace("-", ""))
TILE = 12288
QO = 0
T1R = 43008
B2 = T1R + 32768
KVB = B2 + 18432
NS = 16
SPARE = KVB + NS * 4096
LDS_BYTES = SPARE + 2048
QPARK = 48 << 20
FLAG0 = 0
PART0 = 1 << 20
PART_CU = 4 * 35 * 1024
LEAD = OPT["lead"]
NX = 30
XB_ = [OPT["x0"] + 4 * ((k * 96) // NX) for k in range(NX)]
def f2u(f): return struct.unpack("<I", struct.pack("<f", f))[0]

sKd, sVd, sWd, sOd, sXd, sPd, sQd = 32, 36, 40, 44, 48, 76, 24
sWAVE, sB, sQUAD, sSLOT, sCTR, sW4 = 52, 53, 54, 55, 57, 56
sT1, sT2, sT3 = 62, 63, 61
sKSO, sVSO, sLW = 58, 59, 60
sWB, sOB, sXB, sXM, sSTR, sXF = 58, 59, 70, 71, 72, 73
sC, sBIT = 66, 68
sRET = 30
sGRP = 3
sTEAM, sWB2, sKSO2, sL1, sSLO, sSHI = 74, 75, 65, 64, 69, 72
PKV_ = 255
sRX, sRY, sRZ, sSP = 14, 17, 20, 23

def stamp(e, k, real=False):
    if not OPT["prof"]: return
    e(f"s_mem{'real' if real else ''}time s[100:101]")
    e("s_waitcnt lgkmcnt(0)")
    e(f"s_mov_b32 s{80+k}, s100")
def stamp_slot(e):
    if not OPT["prof"]: return
    e("s_memrealtime s[100:101]" if OPT["rt"] else "s_memtime s[100:101]")
    e("s_waitcnt lgkmcnt(0)")
    for k in range(0, 7):
        e(f"s_cmp_eq_u32 s{sSLOT}, {k}")
        e(f"s_cselect_b32 s{82+k}, s100, s{82+k}")
def stamp_if(e, k, slot):
    if not OPT["prof"]: return
    e("s_memtime s[100:101]")
    e("s_waitcnt lgkmcnt(0)")
    e(f"s_cmp_eq_u32 s{sSLOT}, {slot}")
    e(f"s_cselect_b32 s{80+k}, s100, s{80+k}")
def dump_stamps(e, wsreg, base, nw):
    if not OPT["prof"]: return
    if OPT["dd"]:
        e(f"""
s_cmp_lg_u32 s2, {OPT['dd']}
s_cbranch_scc1 k1_end
s_cmp_lg_u32 s{sWAVE}, 4
s_cbranch_scc1 k1_end
s_mov_b32 s96, s26
s_mov_b32 s97, s27
s_mov_b32 s98, 64
s_mov_b32 s99, 0x20000
v_mov_b32 v1, 0
""")
        for k in range(16):
            e(f"s_sub_u32 s100, s{80+k}, s{80 if k == 10 else 81}")
            e("v_mov_b32 v0, s100")
            e(f"buffer_store_dword v0, v1, s[96:99], 0 offen offset:{k*4}")
        e("s_waitcnt vmcnt(0)")
        return
    e(f"""
s_mul_i32 s100, s2, {nw}
s_add_u32 s100, s100, s{sWAVE}
s_lshl_b32 s100, s100, 6
s_add_u32 s100, s100, {base}
s_add_u32 s96, s{wsreg}, s100
s_addc_u32 s97, s{wsreg+1}, 0
s_mov_b32 s98, 64
s_mov_b32 s99, 0x20000
v_mov_b32 v1, 0
""")
    for k in range(16):
        e(f"v_mov_b32 v0, s{80+k}")
        e(f"buffer_store_dword v0, v1, s[96:99], 0 offen offset:{k*4}")
    e("s_waitcnt vmcnt(0)")

class Gen:
    def __init__(self, prog, needs):
        self.p = prog; self.needs = needs; self.rec = {}
        self.mute = 0
        self.vq = []; self.lq = []; self.pend = []; self.issued = {}
        self.nosim = 0
    def e(self, s):
        if not self.mute: self.p(s)
    def label(self, n):
        if not self.mute: self.p.label(n)
    def wait(self, kind, key, tags, drain_tags=()):
        q = self.vq if kind == "vm" else self.lq
        for t in tags:
            assert self.issued.pop(t, 0) > 0, (t, key)
        tags = list(tags) + list(drain_tags)
        idx = [i for i, t in enumerate(q) if t in tags]
        n = len(q) - 1 - max(idx) if idx else 999
        if n != 999: n = min(n, 63 if kind == "vm" else 15)
        k = (kind, key)
        self.rec[k] = min(self.rec.get(k, 999), n)
        val = self.needs.get(k, n)
        if val == 999: return
        self.e(f"s_waitcnt {'vmcnt' if kind == 'vm' else 'lgkmcnt'}({val})")
        del q[:len(q) - val if val < len(q) else 0]
    def wait_alt(self, key, tags, alt, cmp_txt, lab):
        q = self.vq
        for t in tags: assert self.issued.pop(t, 0) > 0, (t, key)
        idx = [i for i, t in enumerate(q) if t in tags]
        n = min(len(q) - 1 - max(idx), 63) if idx else 999
        k = ("vm", key, alt)
        self.rec[k] = min(self.rec.get(k, 999), n)
        va, vb = self.needs.get(("vm", key, False), 0), self.needs.get(("vm", key, True), 0)
        if vb != 999 and vb > va: self.e(f"s_waitcnt vmcnt({vb})")
        if vb > va:
            self.e(cmp_txt); self.e(f"s_cbranch_scc1 {lab}")
        val = min(va, vb) if not (alt and vb > va) else vb
        if min(va, vb) != 999: self.e(f"s_waitcnt vmcnt({min(va, vb)})")
        if vb > va: self.label(lab)
        if val != 999: del q[:len(q) - val if val < len(q) else 0]
    def vm(self, tag, text):
        self.e(text); self.vq.append(tag); self.issued[tag] = self.issued.get(tag, 0) + 1
    def ld(self, tag, text):
        self.e(text); self.lq.append(tag); self.issued[tag] = self.issued.get(tag, 0) + 1
    def drain(self, n=1):
        for _ in range(n):
            if self.pend: self.pend.pop(0)()
    def optional(self, taken, fn):
        if taken: fn()
        elif not self.mute:
            st = (list(self.vq), list(self.lq), dict(self.issued))
            fn()
            self.vq[:], self.lq[:] = st[0], st[1]; self.issued = st[2]

def mfma(e, d, a, b, c):
    if not OPT["nomf"]:
        e(f"v_mfma_f32_16x16x32_bf16 {v(d,4)}, {v(a,4)}, {v(b,4)}, {c if c == '0' else v(c,4)}")


KL = OPT["kl"]
KVT = [k for k in range(NX) if not OPT['burst'] or k % 2 == OPT['kpar']]
N0 = max(u for u in range(300) if 4 * (u - KL) + 4 <= XB_[KVT[-1]]) + 1
def lane_regs(e, b=2):
    e(f"""
v_mbcnt_lo_u32_b32 v{b}, -1, 0
v_mbcnt_hi_u32_b32 v{b}, -1, v{b}
v_and_b32 v{b+1}, 15, v{b}
v_lshrrev_b32 v{b+2}, 4, v{b}
v_lshrrev_b32 v{b+3}, 2, v{b}
v_and_b32 v{b+4}, 3, v{b+3}
v_and_b32 v{b+5}, 3, v{b}
v_lshrrev_b32 v{b+6}, 3, v{b}
v_and_b32 v{b+7}, 7, v{b}
""")
def kv_kind(a):
    a %= 32
    return "K" if (a == 0 or (a % 2 == 1 and a < 31)) else "V"
def kv_tile(a):
    u, a = divmod(a, 32)
    return u * 16 + (0 if a == 0 else 15 if a == 31 else (a + 1) // 2 if a % 2 == 1 else (a - 2) // 2)
def QAC(hh, rt, k): return ((hh * 7 + rt) * 3 + k) * 4
QW = [248, 249, 250]


class OpEngine:
    def __init__(self, g, PK, AC0, AF0, BF0, RA, OB, PO, ring, sM0, ringoff):
        self.g, self.e = g, g.e
        self.PK, self.AC0, self.AF0, self.BF0, self.RA, self.OB, self.PO = PK, AC0, AF0, BF0, RA, OB, PO
        self.ring, self.sM0, self.ro = ring, sM0, ringoff
        self.dq = []; self.pq = []; self.clock = 0; self.fl = OPT['wo']; self.nr = 4; self.early = 0
    def AC(self, k): return self.AC0 + 4 * k
    def AF(self, s, i): return self.AF0 + 8 * (s & 1) + 4 * i
    def BF(self, n): return self.BF0 + 4 * (n % 6)
    def slot(self, i): return ((i + self.ro) % self.nr) * 8192
    def addr_setup(self):
        e = self.e
        lane_regs(e, 232)
        L = 232
        e(f"""
v_lshlrev_b32 v{self.OB}, 4, v{L}
v_lshlrev_b32 v{L+8}, 1, v{L+2}
v_xor_b32 v{L+8}, v{L+1}, v{L+8}
v_lshlrev_b32 v{L+8}, 4, v{L+8}
v_mul_u32_u24 v{L+9}, 1280, v{L+2}
v_add_u32 v{self.PO[0]}, v{L+8}, v{L+9}
v_xor_b32 v{L+8}, 128, v{L+8}
v_add_u32 v{L+8}, v{L+8}, v{L+9}
v_add_u32 v{self.PO[1]}, 4096, v{L+8}
s_lshl_b32 s{sT1}, s{sW4}, 1
v_and_b32 v{L+8}, 7, v{L+3}
v_xor_b32 v{L+8}, s{sT1}, v{L+8}
v_lshlrev_b32 v{L+8}, 5, v{L+8}
v_lshl_add_u32 v{L+8}, v{L+3}, 8, v{L+8}
v_lshl_add_u32 v{L+8}, v{L+5}, 3, v{L+8}
v_add_u32 v{self.RA[0]}, {self.ring}, v{L+8}
v_xor_b32 v{self.RA[1]}, 32, v{self.RA[0]}
""")
    def dma(self, i):
        ps, j = divmod(i, 6)
        out = []
        for q in range(2):
            def f(q=q):
                if q == 0:
                    self.e(f"s_add_u32 m0, s{self.sM0}, {self.ring+self.slot(i)}")
                    self.e(f"s_add_u32 s{sT2}, s{sOB}, {j*32*1280+ps*256}")
                o = "offset:1024 " if q else ""
                self.g.vm(f"O{i}", f"buffer_load_dwordx4 v{self.PO[q]}, s[{sOd}:{sOd+3}], s{sT2} offen {o}{self.fl} lds")
            out.append(f)
        return out
    def defer(self, at, ins):
        for x in ins: self.dq.append((at, x))
    def run_dq(self, n):
        while n > 0 and self.dq and self.dq[0][0] <= self.clock:
            x = self.dq.pop(0)[1]
            if callable(x): x()
            else: self.e(x)
            n -= 1
    def flush_pq(self):
        while self.pq: self.pq.pop(0)[1]()
    def a_read(self, i, n):
        k, hf = divmod(n, 2)
        self.g.ld(f"o{i}a{k}", f"ds_read_b64_tr_b16 {v(self.AF(i,k)+2*hf,2)}, v{self.RA[k]} offset:{self.slot(i)+hf*4096}")
    def b_read(self, b):
        i, rt = divmod(b, 7)
        self.g.ld(f"o{i}b{rt}", f"ds_read_b128 {v(self.BF(b),4)}, v{self.OB} offset:{QO+(i%6*7+rt)*1024}")
    def first_reads(self, i):
        self.a_read(i, 0); self.a_read(i, 1); self.b_read(7 * i); self.a_read(i, 2); self.a_read(i, 3)
        for n in range(1, 6): self.b_read(7 * i + n)
    def unpack_l(self, dst, src):
        return [f"v_perm_b32 v{dst+x}, v{src+x//2}, v{src+x//2}, s{sSHI if x & 1 else sSLO}" for x in range(4)]
    def pack_l(self, dst, src):
        return [f"v_cvt_pk_bf16_f32 v{dst}, v{src}, v{src+1}", f"v_cvt_pk_bf16_f32 v{dst+1}, v{src+2}, v{src+3}"]
    def store_l(self, ps, rt):
        o = (ps * 7 + rt) * 1024
        return [f"s_mov_b32 s{sT3}, {o - o % 4096}",
                lambda: self.g.vm("st", f"buffer_store_dwordx4 {v(self.PK(ps*14+rt*2),4)}, v{self.OB}, s[{sPd}:{sPd+3}], s{sT3} offen offset:{o%4096} {OPT['st']}")]
    def step(self, key, i, last, tick, store=False, hooks=None):
        g, e = self.g, self.e
        ps, j = divmod(i, 6)
        BAR = OPT["bar"]
        c0 = self.clock
        if store and not self.early and i >= last - 3 and i < last:
            todo = [(q, rt) for q in range(store[0], ps) for rt in range(7)]
            k = i - (last - 3)
            mine = todo[k * len(todo) // 3:(k + 1) * len(todo) // 3]
            for n, (q, rt) in enumerate(mine): self.defer(c0 + (6 if k == 0 else 0) + n * (8 if k == 0 else 14) // len(mine), self.store_l(q, rt))
        if j == 5 and (i < last or store):
            for n in range(14):
                ins = self.pack_l(self.PK(ps * 14 + n), self.AC(n))
                if i < last: ins += self.unpack_l(self.AC(n), self.PK((ps + 1) * 14 + n))
                if store and n % 2 == 1 and (i == last or self.early): ins += self.store_l(ps, n // 2)
                self.defer(c0 + n + 4, ins)
        for n in range(14):
            rt, k = divmod(n, 2)
            if n == BAR and i < last: tick(i)
            if hooks and n in hooks: hooks[n]()
            tags = ([f"o{i}b{rt}"] if k == 0 else []) + ([f"o{i}a{k}"] if rt == 0 else [])
            if tags: g.wait("lg", f"{key}{i}m{n}", tags)
            mfma(e, self.AC(n), self.AF(i, k), self.BF(7 * i + rt), self.AC(n))
            if k == 1 and 7 * i + rt + 6 < 7 * (last + 1): self.b_read(7 * i + rt + 6)
            if k == 0 and i < last and BAR < n <= BAR + 8: self.a_read(i + 1, (n - BAR - 1) // 2)
            while self.pq and self.pq[0][0] <= self.clock: self.pq.pop(0)[1]()
            self.clock += 1
            self.run_dq(7)
    def finish(self):
        self.flush_pq(); self.clock += 100; self.run_dq(1000)

def qp_phase(p, needs):
    g = Gen(p, needs); e = g.e
    AC = QAC
    def AF(par, hh, k): return 168 + par * 24 + (hh * 3 + k) * 4
    def BF(n): return 216 + 4 * (n % 4)
    RA = [[232, 233, 234], [235, 236, 237]]; XA = [238, 239]; PW = [243, 244, 245]; PX = 246
    JUNK = 247
    STG = [KVB, T1R]
    NB1, NB2 = OPT["nb1"], OPT["nb2"]
    QV = OPT["qv"]
    HEAD = {(0, 0): 0, (0, 1): 3, (1, 0): 1, (1, 1): 2}
    def dma_w(i, hh):
        out = []
        for tm in (range(2) if QV else [None]):
            for ii in range(3):
                def f(ii=ii, tm=tm):
                    if ii == 0:
                        if QV:
                            e(f"s_add_u32 m0, s{sLW}, {STG[i&1]+hh*2*TILE+tm*TILE}")
                            e(f"s_add_u32 s{sT1}, s{sWB}, {i*32*12288+HEAD[tm,hh]*384}")
                        else:
                            e(f"s_add_u32 m0, s{sLW}, {STG[i&1]+hh*2*TILE}")
                            e(f"s_add_u32 s{sT1}, s{sWB2 if hh else sWB}, {i*32*12288}")
                    o = f"offset:{ii*1024} " if ii else ""
                    g.vm(f"W{i}.{hh}", f"buffer_load_dwordx4 v{PW[ii]}, s[{sWd}:{sWd+3}], s{sT1} offen {o}{OPT['w']} lds")
                out.append(f)
        return out
    def dma_x(pp):
        out = []
        nq = 4 if QV else 2
        for q in range(nq):
            def f(q=q):
                if q < nq - 1: e(f"s_add_u32 m0, s{sXM}, {QO+(pp%3)*14336+q*16384//nq}")
                else:
                    e(f"s_add_u32 s{sT2}, s{sXM}, {QO+(pp%3)*14336+q*16384//nq}")
                    e(f"s_cmp_ge_u32 s{sWAVE}, 6")
                    e(f"s_cselect_b32 m0, s{sXF}, s{sT2}")
                e(f"s_add_u32 s{sT2}, s{sXB}, {pp*128+q*163840//nq}")
                g.vm(f"X{pp}", f"buffer_load_dwordx4 v{PX}, s[{sXd}:{sXd+3}], s{sT2} offen {OPT['x']} lds")
            out.append(f)
        return out
    nlab = [0]
    def issue(fs):
        if not QV:
            g.pend += fs; return
        if not fs: return
        nlab[0] += 1
        e(f"s_cmp_eq_u32 s{sTEAM}, 0")
        e(f"s_cbranch_scc1 qp_i{nlab[0]}")
        for f in fs: f()
        g.label(f"qp_i{nlab[0]}")
    def a_read(i, hh, n):
        k, hf = divmod(n, 2)
        g.ld(f"{i}a{hh}{k}", f"ds_read_b64_tr_b16 {v(AF(i&1,hh,k)+2*hf,2)}, v{RA[i&1][k]} offset:{hh*2*TILE+hf*1536}")
    def b_read(i, rt):
        g.ld(f"{i}b{rt}", f"ds_read_b128 {v(BF(7*i+rt),4)}, v{XA[i&1]} offset:{((i>>1)%3)*14336+rt*2048}")
    lane_regs(e)
    e(f"""
v_lshrrev_b32 v13, 1, v8
v_and_b32 v13, 3, v13
v_lshlrev_b32 v13, 1, v13
v_xor_b32 v13, v9, v13
v_lshlrev_b32 v13, 4, v13
v_mul_u32_u24 v14, 1280, v8
v_add_u32 v{PX}, v13, v14
v_mul_u32_u24 v14, 384, v8
v_add_u32 v{PKV_}, v13, v14
s_mul_i32 s{sXB}, s{sW4 if QV else sWAVE}, 10240
s_lshl_b32 s{sXM}, s{sW4 if QV else sWAVE}, 10
s_sub_u32 s{sXF}, s{sXM}, {2048 if QV else 6144}
s_add_u32 s{sXF}, s{sXF}, {SPARE}
""")
    issue(dma_x(0)); g.drain(9)
    e(f"""
s_and_b32 s{sT1}, s{sW4}, 1
s_lshl_b32 s{sT1}, s{sT1}, 2
v_xor_b32 v16, s{sT1}, v9
s_mul_i32 s{sWB}, s{sW4}, {8*12288}
s_mul_i32 s{sT1}, s{sTEAM}, {0 if QV else 384}
s_add_u32 s{sWB2}, s{sWB}, 1152
s_add_u32 s{sWB}, s{sWB}, s{sT1}
s_sub_u32 s{sWB2}, s{sWB2}, s{sT1}
s_mul_i32 s{sT1}, s{sTEAM}, {0 if QV else TILE}
s_add_u32 s{sLW}, s{sLW}, s{sT1}
""")
    for q in range(3):
        e(f"""
v_add_u32 v10, {8*q}, v8
v_mul_u32_u24 v11, 43, v10
v_lshrrev_b32 v11, 7, v11
v_mul_u32_u24 v12, 3, v11
v_sub_u32 v12, v10, v12
v_lshrrev_b32 v13, 1, v11
v_and_b32 v14, 1, v13
v_xor_b32 v14, v16, v14
v_lshlrev_b32 v14, 4, v14
v_lshl_add_u32 v14, v12, 7, v14
v_mul_u32_u24 v15, 12288, v11
v_add_u32 v14, v14, v15
v_subrev_u32 v{PW[q]}, {q*1024}, v14
""")
    issue(dma_w(0, 0) + dma_w(0, 1)); g.drain(9)
    if OPT["touch"]:
        nsh = 16 if OPT["map"] == 0 else 8
        rows = 640 // nsh // 8
        e(f"""
s_and_b32 s{sT1}, s{sB}, {nsh-1}
s_lshl_b32 s{sT1}, s{sT1}, 3
s_add_u32 s{sT1}, s{sT1}, s{sWAVE}
s_mul_i32 s{sT1}, s{sT1}, {rows*12288}
v_mul_u32_u24 v10, 43, v2
v_lshrrev_b32 v10, 9, v10
v_mul_u32_u24 v11, 12, v10
v_sub_u32 v11, v2, v11
v_mul_u32_u24 v10, 12288, v10
v_lshl_add_u32 v10, v11, 7, v10
""")
        for r in range(rows // 5):
            g.vm("pf", f"buffer_load_dword v{JUNK}, v10, s[{sWd}:{sWd+3}], s{sT1} offen {OPT['tq']}")
            e(f"s_add_u32 s{sT1}, s{sT1}, {5*12288}")
    if OPT["touch"] and OPT["xt"]:
        e(f"""
s_and_b32 s{sT1}, s{sQUAD}, 1
s_mul_i32 s{sT1}, s{sT1}, 71680
s_mul_i32 s{sT2}, s{sWAVE}, {70*128}
s_add_u32 s{sT1}, s{sT1}, s{sT2}
v_lshlrev_b32 v10, 7, v2
""")
        g.vm("pf", f"buffer_load_dword v{JUNK}, v10, s[{sXd}:{sXd+3}], s{sT1} offen")
        g.vm("pf", f"buffer_load_dword v{JUNK}, v10, s[{sXd}:{sXd+3}], s{sT1} offen offset:768")
    e(f"""
v_lshrrev_b32 v8, 1, v3
v_and_b32 v8, 3, v8
v_lshlrev_b32 v8, 1, v8
v_xor_b32 v8, v4, v8
v_lshlrev_b32 v8, 4, v8
v_lshl_add_u32 v9, v3, 7, v8
v_add_u32 v{XA[0]}, {QO}, v9
v_xor_b32 v{XA[1]}, 64, v{XA[0]}
v_lshl_add_u32 v8, v4, 3, v6
v_mul_u32_u24 v9, 384, v8
v_lshrrev_b32 v8, 1, v6
v_and_b32 v11, 1, v4
v_lshl_add_u32 v8, v11, 2, v8
v_xor_b32 v8, v7, v8
v_lshl_add_u32 v9, v8, 4, v9
v_lshlrev_b32 v12, 3, v11
v_lshl_add_u32 v12, v2, 4, v12
v_and_b32 v11, 1, v7
v_lshl_add_u32 v11, v11, 3, v9
s_mov_b32 s{sC}, {hex(f2u(192 ** -0.5 * math.log2(math.e)))}
s_mov_b32 s{sC+1}, s{sC}
""")
    for i in range(3):
        e(f"""
s_mul_i32 s{sT1}, s{sW4}, 3
s_add_u32 s{sT1}, s{sT1}, {i}
s_lshr_b32 s{sT2}, s{sT1}, 2
s_lshl_b32 s{sRY+i}, s{sT2}, 7
s_and_b32 s{sT3}, s{sT1}, 3
s_xor_b32 s{sT3}, s{sT3}, s{sW4}
s_lshl_b32 s{sRX+i}, s{sT3}, 5
s_and_b32 s{sT3}, s{sT1}, 2
s_lshl_b32 s{sT3}, s{sT3}, 5
s_and_b32 s{sT2}, s{sT1}, 1
s_lshl_b32 s{sT2}, s{sT2}, 3
v_xor_b32 v{QW[i]}, s{sT2}, v12
s_or_b32 s{sT3}, s{sT3}, s{sT2}
v_xor_b32 v13, s{sT3}, v11
s_lshr_b32 s{sT1}, s{sT1}, 1
s_mul_i32 s{sT1}, s{sT1}, 7168
v_add_u32 v{QW[i]}, s{sT1}, v{QW[i]}
s_mul_i32 s{sT1}, s{sTEAM}, {TILE}
s_add_u32 s{sT1}, s{sT1}, s{sRY+i}
v_add_u32 v13, s{sT1}, v13
v_add_u32 v{RA[1][i]}, {T1R}, v13
v_add_u32 v{RA[0][i]}, {KVB}, v13
""")
    g.wait("vm", "in", ["W0.0", "W0.1", "X0"])
    e("s_barrier")
    stamp(e, 14, real=bool(OPT["rt"]))
    e(f"""
s_cmp_lg_u32 s{sWAVE}, 0
s_cbranch_scc1 k1_nocnt
s_mov_b32 s4, s26
s_mov_b32 s5, s27
s_mov_b32 s6, 256
s_mov_b32 s7, 0x20000
s_lshl_b32 s{sT1}, s{sGRP}, 2
v_mov_b32 v252, 0
v_mov_b32 v253, 1
s_mov_b64 exec, 1
buffer_atomic_add v253, v252, s[4:7], s{sT1} offen sc1
s_mov_b64 exec, -1
k1_nocnt:
""")
    a_read(0, 0, 0); a_read(0, 0, 1); b_read(0, 0); b_read(0, 1)
    for n in range(2, 6): a_read(0, 0, n)
    for n in range(6): a_read(0, 1, n)
    for rt in range(2, 4): b_read(0, rt)
    issue(dma_w(1, 0) + dma_w(1, 1) + dma_x(1)); g.drain(9)
    ORD = [(rt, 0, k) for rt in (0, 1) for k in range(3)] + [(rt, 1, k) for rt in (0, 1) for k in range(3)]
    ORD += [(rt, hh, k) for rt in range(2, 7) for hh in range(2) for k in range(3)]
    lastb = {rt: max(n for n, x in enumerate(ORD) if x[0] == rt) for rt in range(7)}
    A0 = [NB1 + 2 + 3 * x for x in range(6)]
    A1 = [NB2 + 1 + 2 * x for x in range(6)]
    def qcvt(n):
        rt, hh, k = ORD[n]
        a = AC(hh, rt, k)
        e(f"v_pk_mul_f32 {v(a,2)}, {v(a,2)}, s[{sC}:{sC+1}]")
        e(f"v_pk_mul_f32 {v(a+2,2)}, {v(a+2,2)}, s[{sC}:{sC+1}]")
        e(f"v_cvt_pk_bf16_f32 v{a}, v{a}, v{a+1}")
        e(f"v_cvt_pk_bf16_f32 v{a+1}, v{a+2}, v{a+3}")
    lastd = [0]
    for i in range(20):
        seen = set()
        for n, (rt, hh, k) in enumerate(ORD):
            if n == NB1 and i < 19:
                g.drain(9); lastd[0] = n - 9
                g.wait("lg", f"r1{i}", [], drain_tags=[f"{i}a1{x}" for x in range(3)])
                g.wait("vm", f"s{i}", [f"W{i+1}.0"] + ([f"X{(i+1)//2}"] if i % 2 == 1 else []))
                e("s_barrier")
                issue(((dma_w(i + 2, 0) if i == 0 else []) + dma_w(i + 2, 1) if i + 2 < 20 else []) + (dma_x(i // 2 + 2) if i % 2 == 0 and i // 2 + 2 < 10 else []))
            if n == NB2 and i < 19:
                g.drain(9); lastd[0] = n - 9
                g.wait("lg", f"r2{i}", [], drain_tags=[f"{i+1}a0{x}" for x in range(3)])
                g.wait("vm", f"t{i}", [f"W{i+1}.1"])
                e("s_barrier")
                if i + 3 < 20: issue(dma_w(i + 3, 0))
            if OPT["stl"] and n == NB1 + 1 and i in range(OPT["stl"], OPT["stl"] + 2 * OPT["stn"], 2):
                r = (i - OPT["stl"]) // 2
                e(f"""
s_lshr_b32 s{sT3}, s{sWAVE}, 1
s_cmp_eq_u32 s{sT3}, 0
s_cselect_b64 s[4:5], s[{sKd}:{sKd+1}], s[{sVd}:{sVd+1}]
s_cmp_eq_u32 s{sT3}, 2
s_cselect_b64 s[4:5], s[{sOd}:{sOd+1}], s[4:5]
s_and_b32 s{sT3}, s{sWAVE}, 1
s_mul_i32 s6, s{sT3}, {786432 // 2}
s_add_u32 s6, s6, {r * (786432 // 2 // OPT["stn"]) + (786432 // 2 // OPT["stn"]) - 64}
s_cmp_eq_u32 s{sWAVE}, 6
s_cselect_b64 s[4:5], s[{sPd}:{sPd+1}], s[4:5]
s_cselect_b32 s6, 0, s6
s_cmp_eq_u32 s{sWAVE}, 7
s_cselect_b64 s[4:5], s[24:25], s[4:5]
s_mul_i32 s{sT3}, s{sB}, {112*2560}
s_cselect_b32 s6, s{sT3}, s6
s_load_dword s99, s[4:5], s6
""")
            if OPT["pwo"] and n == 20 and i == OPT["pwo"]:
                nsh = 16 if OPT["map"] == 0 else 8
                per = 245760 * OPT["pwh"] // (8 * nsh)
                e(f"""
s_and_b32 s{sT3}, s{sB}, {nsh-1}
s_lshl_b32 s{sT3}, s{sT3}, 3
s_add_u32 s{sT3}, s{sT3}, s{sWAVE}
s_mul_i32 s{sT3}, s{sT3}, {per}
s_add_u32 s{sT3}, s{sT3}, {245760 * (4 - OPT["pwh"])}
v_mbcnt_lo_u32_b32 v251, -1, 0
v_mbcnt_hi_u32_b32 v251, -1, v251
v_min_u32 v251, {min(59, per // 128 - 1)}, v251
v_lshlrev_b32 v251, 7, v251
""")
                for r in range(max(1, per // 7680)):
                    g.vm("pf", f"buffer_load_dword v{JUNK}, v251, s[{sOd}:{sOd+3}], s{sT3} offen {OPT['pwf']}")
                    e(f"s_add_u32 s{sT3}, s{sT3}, 7680")
            if n == NB2 + 1 and i == 18:
                e(f"s_cmp_eq_u32 s{sTEAM}, 0")
                e("s_cbranch_scc1 qp_nokv")
                e(f"s_mul_i32 s{sKSO2}, s{sW4}, 3072")
                e(f"s_lshl_b32 s{sT3}, s{sW4}, 10")
                for u in range(N0 - 96):
                    a, bb = divmod(u, 3)
                    e(f"s_add_u32 m0, s{sT3}, {KVB + (u % NS) * 4096 - bb * 128}")
                    e(f"s_add_u32 s{sT1}, s{sKSO2}, {kv_tile(a) * TILE}")
                    srd = sKd if kv_kind(a) == "K" else sVd
                    e(f"buffer_load_dwordx4 v{PKV_}, s[{srd}:{srd+3}], s{sT1} offen offset:{bb*128} {OPT['kv']} lds")
                g.label("qp_nokv")
            tags = [t for t in (f"{i}b{rt}", f"{i}a{hh}{k}") if t not in seen]
            seen.update(tags)
            if tags: g.wait("lg", f"{i}m{n}", tags)
            mfma(e, AC(hh, rt, k), AF(i & 1, hh, k), BF(7 * i + rt), "0" if i == 0 else AC(hh, rt, k))
            if n == lastb[rt]:
                if rt + 4 < 7: b_read(i, rt + 4)
                elif i < 19: b_read(i + 1, rt - 3)
            if i < 19 and n in A0: a_read(i + 1, 0, A0.index(n))
            if i < 19 and n in A1: a_read(i + 1, 1, A1.index(n))
            if g.pend and (n - lastd[0]) % 42 >= (OPT["qd"] if len(g.pend) <= 3 else OPT["qd"] - 2):
                g.drain(1); lastd[0] = n
            if i == 19 and n >= 4: qcvt(n - 4)
    for n in range(38, 42): qcvt(n)
    stamp(e, 15, real=bool(OPT["rt"]))
    e("s_barrier")
    return g.rec

def t0_path(p, needs, nrt, tag):
    g = Gen(p, needs); e = g.e
    def ACC(rt, t): return rt * 48 + t * 4
    def Q(rt, j): return 96 + rt * 24 + j * 4
    def S(par, rt, kt=0): return 144 + par * 16 + rt * 8 + kt * 4
    def P(par, rt): return 176 + par * 8 + rt * 4
    def NEGM(rt): return 192 + rt * 4
    def LSUM(rt): return 200 + rt * 4
    def STG(rt, j): return 144 + (j * 2 + rt) * 4 if j < 5 else 192 + rt * 4
    ONES = 208
    FR0 = 212; NFR = 8
    def FR(a, f): return FR0 + ((a * 12 + f) % NFR) * 4
    KA = [244, 245]; VA = [246, 247, 248, 249]; QOA = 250
    TC = 251; T = [252, 253, 254, 255]
    HOLD = [48 + 4 * i for i in range(12)] + [156, 172, 180, 188, 196, 204]
    def rd_l(a, f):
        base = ((3 * a + f // 4) % NS) * 4096; tg = f"A{a%32}f{f}"
        if kv_kind(a) == "K":
            j, kt = divmod(f, 2)
            return [lambda: g.ld(tg, f"ds_read_b128 {v(FR(a,f),4)}, v{KA[j&1]} offset:{base+kt*2048}")]
        return [lambda hf=hf: g.ld(tg, f"ds_read_b64_tr_b16 {v(FR(a,f)+2*hf,2)}, v{VA[f&3]} offset:{base+hf*2048}") for hf in range(2)]
    def run(x):
        if callable(x): x()
        else: e(x)
    def cost(x): return 2 if isinstance(x, str) and x.startswith(("v_exp", "v_rcp")) else 1
    def step(key, a, mfs, valu=(), last=False, extra=None, v0=0):
        valu = list(valu)
        ngap = sum(len(mfs(f, 0)) for f in range(v0, 12))
        tot = sum(cost(x) for x in valu); done = 0; gap = 0
        for f in range(12):
            pos = a * 12 + f
            if extra and f in extra: extra[f]()
            if pos in XB_: e("s_barrier")
            reads = rd_l(a, f + LEAD) if f + LEAD < 12 else ([] if last else rd_l(a + 1, f + LEAD - 12))
            if not OPT["w2"]: g.wait("lg", f"{key}{f}", [f"A{a}f{f}"])
            elif f % 2 == 0: g.wait("lg", f"{key}{f}", [f"A{a}f{f}", f"A{a}f{f+1}"])
            ms = mfs(f, FR(a, f))
            for i, m in enumerate(ms):
                m()
                if reads: reads.pop(0)()
                if i == len(ms) - 1:
                    while reads: reads.pop(0)()
                if f >= v0:
                    gap += 1
                    while valu and done + cost(valu[0]) / 2 <= tot * gap / ngap:
                        done += cost(valu[0]); run(valu.pop(0))
        for x in valu: run(x)
    def mf_qk(par, zero):
        def m(f, fr):
            j, kt = divmod(f, 2)
            return [lambda rt=rt: mfma(e, S(par, rt, kt), fr, Q(rt, j), ("0" if zero else NEGM(rt)) if j == 0 else S(par, rt, kt)) for rt in range(nrt)]
        return m
    def onorm_l(j):
        out = []
        for rt in range(nrt):
            a = ACC(rt, 2 * j)
            out += [f"v_pk_mul_f32 {v(a+i,2)}, {v(a+i,2)}, {v(T[2*rt],2)}" for i in range(0, 8, 2)]
            out += [f"v_cvt_pk_bf16_f32 v{STG(rt,j)+i}, v{a+2*i}, v{a+2*i+1}" for i in range(4)]
        return out
    def mf_pv(par, first, last=False):
        def m(f, fr):
            out = []
            if f == (0 if last else 5):
                out += [lambda rt=rt: mfma(e, LSUM(rt), ONES, P(par, rt), "0" if first else LSUM(rt)) for rt in range(nrt)]
            return out + [lambda rt=rt: mfma(e, ACC(rt, f), fr, P(par, rt), "0" if first else ACC(rt, f)) for rt in range(nrt)]
        return m
    def sm(par, lo=0, hi=None):
        grp = [(rt, i) for rt in range(nrt) for i in range(4)][lo:hi]
        seq = []
        for n, (rt, i) in enumerate(grp):
            a, b = T[(2 * n) % 4], T[(2 * n + 1) % 4]
            r = S(par, rt) + 2 * i
            seq += [f"v_exp_f32 v{a}, v{r}", f"v_exp_f32 v{b}, v{r+1}"]
            if n > 0: seq.append(prev)
            prev = f"v_cvt_pk_bf16_f32 v{P(par,rt)+i}, v{a}, v{b}"
        return seq + [prev] if grp else []
    def chk_l(par):
        p0 = P(par, 0)
        out = [f"v_or3_b32 v{TC}, v{p0}, v{p0+1}, v{p0+2}"]
        if nrt == 2:
            out += [f"v_or3_b32 v{TC}, v{TC}, v{p0+3}, v{p0+4}", f"v_or3_b32 v{TC}, v{TC}, v{p0+5}, v{p0+6}"]
        out += [f"v_bitop3_b32 v{TC}, v{TC}, v{p0+4*nrt-1}, s{sBIT} bitop3:0xa8", f"v_cmp_ne_u32 vcc, 0, v{TC}"]
        return out
    def chk_branch(par, key):
        e(f"s_cbranch_vccz t0_ok{key}_{tag}")
        if not OPT["norare"]: e(f"s_call_b64 s[{sRET}:{sRET+1}], t0_rare{par}_{tag}")
        g.label(f"t0_ok{key}_{tag}")
    def rowmax(par, rt, t, t2):
        r = S(par, rt)
        e(f"""
v_max3_f32 v{t}, v{r}, v{r+1}, v{r+2}
v_max3_f32 v{t}, v{t}, v{r+3}, v{r+4}
v_max3_f32 v{t}, v{t}, v{r+5}, v{r+6}
v_max_f32 v{t}, v{t}, v{r+7}
v_mov_b32 v{t2}, v{t}
v_permlane32_swap_b32 v{t2}, v{t}
v_max_f32 v{t}, v{t}, v{t2}
v_mov_b32 v{t2}, v{t}
v_permlane16_swap_b32 v{t2}, v{t}
v_max_f32 v{t}, v{t}, v{t2}
v_add_f32 v{t}, {hex(f2u(7.0))}, v{t}
""")
    for rt in range(7):
        for k in range(3): e(f"ds_write_b64 v{QW[k]}, {v(QAC(0,rt,k),2)} offset:{QO+rt*1024}")
    for k in range(3):
        e(f"""
s_mul_i32 s{sT1}, s{sW4}, 3
s_add_u32 s{sT1}, s{sT1}, {k}
s_lshr_b32 s{sT1}, s{sT1}, 1
s_cmp_lt_u32 s{sT1}, 3
s_cselect_b32 s{sT3}, {B2 - (T1R + 6144 - 18432)}, 0
s_add_u32 s{sT3}, s{sT3}, {T1R + 6144 - 18432}
s_lshl_b32 s{sT2}, s{sT1}, 10
s_sub_u32 s{sT2}, s{sT3}, s{sT2}
v_add_u32 v{240+k}, s{sT2}, v{QW[k]}
s_mul_i32 s{sT2}, s{sT1}, 6144
s_sub_u32 s{sT2}, {T1R}, s{sT2}
v_add_u32 v{243+k}, s{sT2}, v{QW[k]}
""")
    for rt in range(7):
        for k in range(3): e(f"ds_write_b64 v{(240 if rt < 6 else 243)+k}, {v(QAC(1,rt,k),2)} offset:{rt*1024 if rt < 6 else 0}")
    e("s_waitcnt lgkmcnt(0)")
    lane_regs(e)
    e(f"""
s_lshl_b32 s{sT1}, s{sWAVE}, 11
s_add_u32 s{sT1}, s{sT1}, {QO}
v_lshl_add_u32 v{QOA}, v2, 4, s{sT1}
v_lshrrev_b32 v8, 1, v3
v_and_b32 v8, 3, v8
v_lshlrev_b32 v8, 1, v8
v_xor_b32 v8, v4, v8
v_lshlrev_b32 v8, 4, v8
v_lshl_add_u32 v8, v3, 7, v8
v_add_u32 v{KA[0]}, {KVB}, v8
v_xor_b32 v{KA[1]}, 64, v{KA[0]}
v_lshrrev_b32 v8, 1, v5
v_and_b32 v8, 3, v8
v_lshlrev_b32 v8, 5, v8
v_lshl_add_u32 v8, v5, 7, v8
v_lshl_add_u32 v8, v7, 3, v8
v_add_u32 v{VA[0]}, {KVB}, v8
v_xor_b32 v{VA[1]}, 32, v{VA[0]}
v_xor_b32 v{VA[2]}, 64, v{VA[0]}
v_xor_b32 v{VA[3]}, 96, v{VA[0]}
s_mov_b32 s{sBIT}, 0x40004000
s_mov_b32 s{sSLOT}, 1
""")
    for i in range(4): e(f"v_mov_b32 v{ONES+i}, 0x3f803f80")
    H = 4 if (nrt == 2 and OPT["psplit"]) else (2 if OPT["psplit"] else 0)
    for unit in range(2):
        if unit >= 1: g.mute += 1
        g.label(f"t0_unit_{tag}")
        e("s_barrier")
        if not g.mute: stamp_slot(e)
        e(f"s_cmp_gt_u32 s{sSLOT}, 3")
        e(f"s_cbranch_scc1 t0_q3_{tag}")
        for j in range(6):
            for rt in range(nrt): e(f"ds_read_b128 {v(Q(rt,j),4)}, v{QOA} offset:{(j*7+rt)*1024}")
        e(f"s_cmp_lg_u32 s{sSLOT}, 1")
        e(f"s_cbranch_scc1 t0_w_{tag}")
        if nrt == 1:
            for j in range(6): e(f"ds_read_b128 {v(Q(1,j),4)}, v{QOA} offset:{T1R-6144+j*1024}")
            for n in range(18): e(f"ds_read_b128 {v(HOLD[n],4)}, v{QOA} offset:{T1R+n*1024}")
        e(f"s_branch t0_noo_{tag}")
        g.label(f"t0_q3_{tag}")
        e(f"s_cmp_eq_u32 s{sSLOT}, 5")
        e(f"s_cbranch_scc1 t0_w_{tag}")
        if nrt == 1:
            for i in range(24): e(f"v_mov_b32 v{Q(0,0)+i}, v{Q(1,0)+i}")
        else:
            e(f"v_add_u32 v{TC}, {B2}, v{QOA}")
            for j in range(6):
                for rt in range(nrt):
                    if j < 3: e(f"ds_read_b128 {v(Q(rt,j),4)}, v{TC} offset:{(j*6+rt)*1024}")
                    else: e(f"ds_read_b128 {v(Q(rt,j),4)}, v{QOA} offset:{(j*7+rt)*1024}")
        g.label(f"t0_w_{tag}")
        e("s_waitcnt lgkmcnt(0)")
        for j in range(6):
            for rt in range(nrt): e(f"ds_write_b128 v{QOA}, {v(STG(rt,j),4)} offset:{(j*7+rt)*1024}")
        e(f"s_cmp_eq_u32 s{sSLOT}, 5")
        e(f"s_cbranch_scc1 t0_exit_{tag}")
        g.label(f"t0_noo_{tag}")
        for f in range(LEAD):
            for x in rd_l(0, f): x()
        step("a0_", 0, mf_qk(0, True), extra={1: lambda: e("s_barrier")})
        for rt in range(nrt):
            rowmax(0, rt, T[0], T[1])
            for i in range(4): e(f"v_sub_f32 v{NEGM(rt)+i}, 0, v{T[0]}")
            for i in range(8): e(f"v_sub_f32 v{S(0,rt)+i}, v{S(0,rt)+i}, v{T[0]}")
        for t in range(15):
            step(f"q{t}_", 2 * t + 1, mf_qk((t + 1) & 1, False), valu=sm(t & 1, H if t else 0) + chk_l(t & 1))
            chk_branch(t & 1, f"q{t}")
            va = sm((t + 1) & 1, 0, H)
            if t == 14: va = sm(1) + chk_l(1)
            step(f"p{t}_", 2 * t + 2, mf_pv(t & 1, t == 0), valu=va, v0=1)
        chk_branch(1, "q15")
        rc = [f"v_rcp_f32 v{T[i]}, v{LSUM(i//2)}" for i in range(2 * nrt)]
        ex = {3: lambda: [e(x) for x in rc]}
        for j in range(4): ex[4 + 2 * j] = lambda j=j: [e(x) for x in onorm_l(j)]
        step("p15_", 31, mf_pv(1, False, True), last=True, extra=ex)
        for x in onorm_l(4) + onorm_l(5): e(x)
        if nrt == 1:
            e(f"s_cmp_lg_u32 s{sSLOT}, 3")
            e("s_cbranch_scc1 t0_nohold")
            e(f"v_subrev_u32 v{TC}, 6144, v{QOA}")
            for n in range(18): e(f"ds_write_b128 v{TC}, {v(HOLD[n],4)} offset:{((3+n//6)*7+n%6)*1024}")
            e("s_waitcnt lgkmcnt(0)")
            g.label("t0_nohold")
        e(f"""
s_add_u32 s{sSLOT}, s{sSLOT}, 1
s_branch t0_unit_{tag}
""")
        if unit >= 1: g.mute -= 1
    g.label(f"t0_exit_{tag}")
    e("s_branch t0_final")
    for par in range(2):
        g.label(f"t0_rare{par}_{tag}")
        for rt in range(nrt):
            t, t2 = TC, T[0]
            rowmax(par, rt, t, t2)
            e(f"v_max_f32 v{t}, 0, v{t}")
            for i in range(4): e(f"v_sub_f32 v{NEGM(rt)+i}, v{NEGM(rt)+i}, v{t}")
            for pp in range(2):
                for i in range(8): e(f"v_sub_f32 v{S(pp,rt)+i}, v{S(pp,rt)+i}, v{t}")
            e(f"v_exp_f32 v{t}, -v{t}")
            for i in range(4): e(f"v_mul_f32 v{LSUM(rt)+i}, v{LSUM(rt)+i}, v{t}")
            for i in range(48): e(f"v_mul_f32 v{ACC(rt,0)+i}, v{ACC(rt,0)+i}, v{t}")
        for x in sm(par): e(x)
        e(f"s_setpc_b64 s[{sRET}:{sRET+1}]")
    return g.rec


def t0_final(p, needs):
    g = Gen(p, needs); e = g.e
    g.label("t0_final")
    op = OpEngine(g, lambda tt: 2 * (tt - 42), 56, 112, 128, [244, 245], 246, [247, 248], KVB, sLW, 2)
    op.fl = OPT["wo5"]; op.early = OPT["early"] >> 1
    op.addr_setup()
    e(f"""
s_mul_i32 s{sOB}, s{sW4}, {8*1280}
s_add_u32 s{sOB}, s{sOB}, {3*245760}
s_lshl_b32 s{sLW}, s{sW4}, 11
s_mov_b32 s{sSLO}, 0x01000c0c
s_mov_b32 s{sSHI}, 0x03020c0c
s_lshl_b32 s{sT1}, s{sW4}, 10
s_add_u32 s{sT1}, s{sT1}, {KVB + 32768}
v_add_u32 v249, s{sT1}, v246
""")
    for i in range(18, 22):
        for f in op.dma(i): f()
    def pk_read(ps):
        for rt in range(7): g.ld("pk", f"ds_read_b128 {v(op.PK(ps*14+rt*2),4)}, v249 offset:{rt*4096}")
    e("s_waitcnt lgkmcnt(0)"); g.lq[:] = []
    e("s_barrier")
    pk_read(3)
    e("s_waitcnt lgkmcnt(0)"); g.lq[:] = []
    for k in range(14):
        for x in op.unpack_l(op.AC(k), op.PK(42 + k)): e(x)
    g.wait("vm", "in", ["O18"])
    e("s_barrier")
    op.first_reads(18)
    def tick(i):
        op.flush_pq()
        g.wait("vm", f"t{i}", [f"O{i+1}"])
        e("s_barrier")
        if i + 4 < 30:
            for f in op.dma(i + 4): f()
    for i in range(18, 30):
        op.step("f", i, 29, tick, store=[3], hooks={5: lambda: pk_read(4)} if i == 20 else None)
    op.finish()
    for i in range(5): e("s_barrier")
    e("s_branch k1_final")
    return g.rec

def t1_path(p, needs):
    g = Gen(p, needs); e = g.e
    def PK(tt): return 2 * tt
    def Q2(k): return PK(56) + 2 * k if k < 14 else 236 + 2 * (k - 14)
    OB = 252
    op = OpEngine(g, PK, 140, 196, 212, [250, 251], OB, [253, 254], T1R, sLW, 0)
    AC, AF, BF = op.AC, op.AF, op.BF
    def dma_sub(u):
        a, bb = divmod(u, 3)
        srd = sKd if kv_kind(a) == "K" else sVd
        def f():
            e(f"s_add_u32 m0, s{sL1}, {KVB + (u % NS) * 4096 - bb * 128}")
            e(f"s_add_u32 s{sT1}, s{sKSO2}, {kv_tile(a) * TILE}")
            off = f"offset:{bb*128} " if bb else ""
            g.vm(f"U{u % 96}", f"buffer_load_dwordx4 v{PKV_}, s[{srd}:{srd+3}], s{sT1} offen {off}{OPT['kv']} lds")
        return f
    st = dict(pub=0, iss=0)
    def kv_tags(k):
        upto = XB_[k + 1] if k < NX - 1 else 384
        n = -(-(upto + LEAD) // 4) if upto < 384 else 96
        tags = [f"U{u}" for u in range(st["pub"], n)]
        st["pub"] = max(st["pub"], n)
        return tags
    def kv_issue(k):
        out = []
        while k in KVT and 4 * (st["iss"] - KL) + 4 <= XB_[k]:
            out.append(dma_sub(st["iss"])); st["iss"] += 1
        return out
    def touch_o(t):
        nsh = 16 if OPT["map"] == 0 else 8
        per = 245760 // (4 * nsh)
        e(f"""
s_and_b32 s{sT1}, s{sB}, {nsh-1}
s_lshl_b32 s{sT1}, s{sT1}, 2
s_add_u32 s{sT1}, s{sT1}, s{sW4}
s_mul_i32 s{sT1}, s{sT1}, {per}
s_sub_u32 s{sT2}, s{sSLOT}, 1
s_mul_i32 s{sT2}, s{sT2}, 245760
s_add_u32 s{sT1}, s{sT1}, s{sT2}
s_mov_b32 m0, {SPARE}
v_lshrrev_b32 v{t}, 4, v{OB}
v_min_u32 v{t}, {per//128-1}, v{t}
v_lshlrev_b32 v{t}, 7, v{t}
""")
        g.vm("pf", f"buffer_load_dword v{t}, s[{sOd}:{sOd+3}], s{sT1} offen {OPT['tf']} lds")
    NEXT = {26: 2, 27: 3, 28: 0, 29: 1}
    def tick(i):
        waits = ([f"O{i+1}"] if i < 29 else []) + kv_tags(i)
        op.flush_pq()
        if waits: g.wait("vm", f"o{i}", waits)
        if OPT["vcap"]: e(f"s_waitcnt vmcnt({OPT['vcap']})")
        e("s_barrier")
        io = []
        if not OPT["burst"]:
            if i == 26: io.append(lambda: e(f"s_add_u32 s{sOB}, s{sOB}, 245760"))
            io += op.dma(NEXT.get(i, i + 4))
        elif i % 2 == 1:
            if i == 27: io.append(lambda: e(f"s_add_u32 s{sOB}, s{sOB}, 245760"))
            io += op.dma(NEXT.get(i - 1, i + 3)) + op.dma(NEXT.get(i, i + 4))
        items = kv_issue(i) + io if OPT["kvfirst"] and i < 28 else io + kv_issue(i)
        if OPT["near"] and i == OPT["near"]: items.append(lambda: touch_o(AF(i + 1, 0) if False else 249))
        for f in items[:OPT["now0"]]: f()
        items = items[OPT["now0"]:]
        for j, f in enumerate(items): op.pq.append((op.clock + OPT["vpost"] + (j * OPT["span"]) // len(items), f))
    def q_write(reg):
        for rt in range(7):
            for k in range(3): e(f"ds_write_b64 v{AC(0)+k}, {v(reg(rt,k),2)} offset:{QO+rt*1024}")
        e("s_waitcnt lgkmcnt(0)")
    def q_addr():
        t = AC(1)
        e(f"v_lshrrev_b32 v{t}, 5, v{OB}")
        e(f"v_and_b32 v{t}, 8, v{t}")
        e(f"v_add_u32 v{t}, v{t}, v{OB}")
        for k in range(3):
            e(f"""
s_mul_i32 s{sT1}, s{sW4}, 3
s_add_u32 s{sT1}, s{sT1}, {k}
s_lshr_b32 s{sT2}, s{sT1}, 1
s_mul_i32 s{sT2}, s{sT2}, 7168
s_and_b32 s{sT1}, s{sT1}, 1
s_lshl_b32 s{sT1}, s{sT1}, 3
v_xor_b32 v{AC(0)+k}, s{sT1}, v{t}
v_add_u32 v{AC(0)+k}, s{sT2}, v{AC(0)+k}
""")

    e(f"""
s_mul_i32 s{sOB}, s{sW4}, {8*1280}
s_lshl_b32 s{sLW}, s{sW4}, 11
s_lshl_b32 s{sL1}, s{sW4}, 10
s_mov_b32 s{sSLOT}, 1
s_mov_b32 s{sRX}, 0x01000c0c
s_mov_b32 s{sRX+1}, 0x03020c0c
""")
    for u in range(N0 - 96):
        g.vq.append(f"U{u}"); g.issued[f"U{u}"] = 1
    st.update(pub=0, iss=N0 - 96)
    g.wait("vm", "i_t0", kv_tags(-1))
    e("s_barrier")
    stamp_slot(e)
    e("s_barrier")
    for rt in range(7):
        for k in range(3): e(f"ds_write_b64 v{QW[k]}, {v(QAC(0,rt,k),2)} offset:{QO+rt*1024}")
    def setup():
        e("s_waitcnt lgkmcnt(0)")
        for k in range(21):
            for x in range(2): e(f"v_mov_b32 v{2*k+x}, v{QAC(1,k//3,k%3)+x}")
        for k in range(21):
            for x in range(2): e(f"v_mov_b32 v{Q2(k)+x}, v{2*k+x}")
    def setup0():
        e("s_waitcnt lgkmcnt(0)")
        op.addr_setup()
        setup()
    task = {0: setup0}
    if OPT["touch"]: task[4] = lambda: touch_o(AF(0, 0))
    for k in range(NX):
        w = kv_tags(k)
        if w: g.wait("vm", f"i{k}", w)
        e("s_barrier")
        for f in kv_issue(k): f()
        if k in task: task[k]()
        if k >= 26:
            for f in op.dma(NEXT[k]): f()
    for s in range(2, 5):
        if s != 2: g.mute += 1
        g.label("t1_slot")
        assert st["iss"] == N0
        st.update(pub=0, iss=N0 - 96)
        e(f"""
s_add_u32 s{sSLOT}, s{sSLOT}, 1
s_add_u32 s{sKSO2}, s{sKSO2}, 196608
s_cmp_eq_u32 s{sSLOT}, 2
s_cselect_b32 s{sSLO}, 0x0c0c0c0c, s{sRX}
s_cselect_b32 s{sSHI}, 0x0c0c0c0c, s{sRX+1}
""")
        g.wait("vm", "t0", kv_tags(-1))
        e("s_barrier")
        if not g.mute: stamp_slot(e)
        if OPT["touch"] and not OPT["near"]: touch_o(AF(0, 0))
        for k in range(14):
            for x in op.unpack_l(AC(k), PK(k)): e(x)
        g.wait("vm", "o_in", ["O0"])
        e("s_barrier")
        stamp_if(e, 12, OPT["ps"])
        op.first_reads(0)
        for i in range(30): op.step("m", i, 29, tick)
        stamp_if(e, 13, OPT["ps"])
        tick(29)
        op.finish()
        e(f"s_cmp_lg_u32 s{sSLOT}, 2")
        e("s_cbranch_scc1 t1_noq2")
        for k in range(3): e(f"v_mov_b32 v{BF(0)+k}, v{AC(0)+k}")
        e(f"v_mov_b32 v{BF(0)+3}, v{AC(1)}")
        q_addr()
        q_write(lambda rt, k: Q2(rt * 3 + k))
        for k in range(3): e(f"v_mov_b32 v{AC(0)+k}, v{BF(0)+k}")
        e(f"v_mov_b32 v{AC(1)}, v{BF(0)+3}")
        g.label("t1_noq2")
        for n in range(14):
            for x in op.pack_l(PK(56 + n), AC(n)): e(x)
        e(f"s_cmp_lg_u32 s{sSLOT}, 4")
        e("s_cbranch_scc1 t1_slot")
        if s != 2: g.mute -= 1
    g.label("t1_last")
    op.fl = OPT["wo5"]; op.nr = OPT["r5"]; op.early = OPT["early"] & 1
    R5 = op.nr
    e(f"""
s_mov_b32 s{sSLOT}, 5
s_lshl_b32 s{sT1}, s{sW4}, 10
s_add_u32 s{sT1}, s{sT1}, {KVB + 32768}
v_add_u32 v249, s{sT1}, v{OB}
""")
    def pk_write(ps):
        for rt in range(7): g.ld("pk", f"ds_write_b128 v249, {v(PK(ps*14+rt*2),4)} offset:{rt*4096}")
    for k in range(14):
        for x in op.unpack_l(AC(k), PK(k)): e(x)
    e("s_waitcnt vmcnt(0)"); g.vq[:] = []
    e("s_barrier")
    stamp_slot(e)
    for i in range(4, R5):
        for f in op.dma(i): f()
    pk_write(3)
    e("s_waitcnt lgkmcnt(0)"); g.lq[:] = []
    e("s_barrier")
    stamp_if(e, 12, OPT["ps"])
    g.issued.pop("O0")
    op.first_reads(0)
    def tick5(i):
        op.flush_pq()
        if i == 2: g.wait("lg", "pkw", ["pk"])
        g.wait("vm", f"f{i}", [f"O{i+1}"])
        e("s_barrier")
        if i + R5 < 18:
            for f in op.dma(i + R5): f()
    g.issued.pop("pk")
    for i in range(18):
        op.step("f", i, 17, tick5, store=[0], hooks={5: lambda: pk_write(4)} if i == 1 else None)
    op.finish()
    stamp_if(e, 13, OPT["ps"])
    g.label("t1_exit")
    return g.rec

def final_reduce(p):
    e = p
    sG, sMASK, sQ, sBL = 4, 5, 6, 7
    sD, sA, sOUT = 8, 32, 36
    e.label("k1_final")
    if OPT["two"]:
        if OPT["prof"]: e("s_waitcnt vmcnt(0)")
        stamp(e, 10); stamp(e, 11, real=True)
        dump_stamps(e, 28, 64 << 20, 8)
        return
    e(f"""
s_waitcnt vmcnt(0)
s_barrier
""")
    stamp(e, 9, real=bool(OPT["rt"]))
    e(f"""
s_and_b32 s{sG}, s2, 7
s_cmp_lt_u32 s{sG}, 4
s_cselect_b32 s{sG}, 0, 16
s_add_u32 s{sG}, s{sG}, s{sB}
v_mbcnt_lo_u32_b32 v2, -1, 0
v_mbcnt_hi_u32_b32 v2, -1, v2
s_cmp_gt_u32 s{sWAVE}, 1
s_cbranch_scc1 k1_fw
s_mov_b32 s{sD}, s26
s_mov_b32 s{sD+1}, s27
s_mov_b32 s{sD+2}, 256
s_mov_b32 s{sD+3}, 0x20000
s_lshl_b32 s{sT1}, s{sG}, 2
v_mov_b32 v3, 0
v_mov_b32 v4, 1
s_cmp_eq_u32 s{sWAVE}, 0
s_cbranch_scc1 k1_w0
s_mov_b64 exec, 1
buffer_atomic_add v4, v3, s[{sD}:{sD+3}], s{sT1} offen offset:128 sc0 sc1
s_waitcnt vmcnt(0)
v_readfirstlane_b32 s{sT2}, v4
s_and_b32 s{sT3}, s{sT2}, 0xff
s_bfe_u32 s{sT2}, s{sT2}, 0x80008
s_cmp_eq_u32 s{sT3}, 7
s_cselect_b32 s{sT2}, s{sT2}, 0
v_mov_b32 v4, s{sT2}
ds_write_b32 v3, v4 offset:4
s_waitcnt lgkmcnt(0)
s_mov_b64 exec, -1
s_branch k1_fw
k1_w0:
s_lshl_b32 s{sMASK}, 1, s{sQUAD}
s_lshl_b32 s{sT2}, s{sG}, 10
s_add_u32 s{sT2}, s{sT2}, {FLAG0}
s_add_u32 s{sA}, s28, s{sT2}
s_addc_u32 s{sA+1}, s29, 0
s_mov_b32 s{sA+2}, 1024
s_mov_b32 s{sA+3}, 0x20000
s_lshl_b32 s{sT2}, s{sQUAD}, 7
s_mov_b64 exec, 1
buffer_store_dword v4, v3, s[{sA}:{sA+3}], s{sT2} offen sc1
s_mov_b64 exec, 0xff
v_lshlrev_b32 v5, 7, v2
s_mov_b32 s{sCTR}, 0
k1_poll:
buffer_load_dword v6, v3, s[{sD}:{sD+3}], s{sT1} offen sc1
buffer_load_dword v4, v5, s[{sA}:{sA+3}], 0 offen sc1
s_waitcnt vmcnt(1)
v_cmp_ne_u32 vcc, 8, v6
s_cbranch_vccnz k1_again
k1_poll2:
s_waitcnt vmcnt(0)
v_cmp_ne_u32 vcc, 1, v4
s_cbranch_vccz k1_go
s_add_u32 s{sCTR}, s{sCTR}, 1
s_cmp_lt_u32 s{sCTR}, {OPT['spin']}
s_cbranch_scc0 k1_late
buffer_load_dword v4, v5, s[{sA}:{sA+3}], 0 offen sc1
s_branch k1_poll2
k1_again:
s_waitcnt vmcnt(0)
s_add_u32 s{sCTR}, s{sCTR}, 1
s_cmp_lt_u32 s{sCTR}, {OPT['spin']}
s_cbranch_scc1 k1_poll
k1_late:
s_mov_b64 exec, 1
s_lshl_b32 s{sT2}, s{sMASK}, 8
v_mov_b32 v4, s{sT2}
buffer_atomic_or v4, v3, s[{sD}:{sD+3}], s{sT1} offen offset:128 sc0 sc1
s_waitcnt vmcnt(0)
v_readfirstlane_b32 s{sT2}, v4
s_and_b32 s{sT2}, s{sT2}, 0xff
s_cmp_eq_u32 s{sT2}, 8
s_cselect_b32 s{sMASK}, s{sMASK}, 0
k1_go:
s_mov_b64 exec, 1
v_mov_b32 v4, s{sMASK}
ds_write_b32 v3, v4
s_waitcnt lgkmcnt(0)
s_mov_b64 exec, -1
k1_fw:
s_mul_i32 s{sT1}, s{sG}, {8*PART_CU}
s_add_u32 s{sT1}, s{sT1}, {PART0}
s_add_u32 s{sA}, s28, s{sT1}
s_addc_u32 s{sA+1}, s29, 0
s_mov_b32 s{sA+2}, {8*PART_CU}
s_mov_b32 s{sA+3}, 0x20000
s_mul_i32 s{sT1}, s{sB}, {112*2560}
s_lshr_b32 s{sT2}, s{sG}, 4
s_mul_i32 s{sT2}, s{sT2}, 1280
s_add_u32 s{sT1}, s{sT1}, s{sT2}
s_add_u32 s{sOUT}, s24, s{sT1}
s_addc_u32 s{sOUT+1}, s25, 0
s_sub_u32 s{sOUT+2}, {112*2560}, s{sT2}
s_mov_b32 s{sOUT+3}, 0x20000
v_lshlrev_b32 v3, 4, v2
v_and_b32 v4, 15, v2
v_lshrrev_b32 v5, 4, v2
v_mul_u32_u24 v6, 272, v4
v_lshl_add_u32 v6, v5, 3, v6
s_mul_i32 s{sT2}, s{sTEAM}, {3*4352}
s_add_u32 s{sT2}, s{sT2}, 2048
s_lshl_b32 s{sT1}, s{sW4}, 6
s_add_u32 s{sT1}, s{sT1}, s{sT2}
v_add_u32 v6, s{sT1}, v6
s_mul_i32 s{sT1}, s{sW4}, {4*272}
s_add_u32 s{sT1}, s{sT1}, s{sT2}
v_mul_u32_u24 v7, 272, v5
v_lshl_add_u32 v7, v4, 4, v7
v_add_u32 v7, s{sT1}, v7
v_mul_u32_u24 v5, 2560, v5
v_lshl_add_u32 v4, v4, 4, v5
v_mov_b32 v5, 0
s_barrier
ds_read_b64 v[8:9], v5
s_waitcnt lgkmcnt(0)
v_or_b32 v5, v8, v9
v_readfirstlane_b32 s{sMASK}, v5
""")
    stamp(e, 8, real=bool(OPT["rt"]))
    e(f"""
k1_slice:
s_cmp_eq_u32 s{sMASK}, 0
s_cbranch_scc1 k1_done
s_ff1_i32_b32 s{sQ}, s{sMASK}
s_bitset0_b32 s{sMASK}, s{sQ}
s_lshl_b32 s{sBL}, s{sTEAM}, 3
s_add_u32 s{sBL}, s{sBL}, s{sQ}
""")
    for k in range(3):
        e(f"""
s_add_u32 s{sT1}, s{sBL}, {16*k}
s_mul_i32 s{sT2}, s{sW4}, 35
s_add_u32 s{sT2}, s{sT2}, s{sT1}
s_lshl_b32 s{sT2}, s{sT2}, 10
s_cmp_lt_u32 s{sT1}, 35
s_cselect_b32 s{sT2}, s{sT2}, {8*PART_CU}
""")
        for q in range(8):
            r = 8 + 32 * k + 4 * q
            e(f"buffer_load_dwordx4 {v(r,4)}, v3, s[{sA}:{sA+3}], s{sT2} offen {OPT['rd']}")
            if q < 7: e(f"s_add_u32 s{sT2}, s{sT2}, {PART_CU}")
        e(f"""
s_mul_i32 s{sT2}, s{sT1}, 37
s_lshr_b32 s{sT2}, s{sT2}, 8
s_mul_i32 s{sT3}, s{sT2}, 7
s_sub_u32 s{sT3}, s{sT1}, s{sT3}
s_lshl_b32 s{sT2}, s{sT2}, 8
s_mul_i32 s{sT3}, s{sT3}, {16*2560}
s_add_u32 s{sT2}, s{sT2}, s{sT3}
s_mul_i32 s{sT3}, s{sW4}, {4*2560}
s_add_u32 s{sT2}, s{sT2}, s{sT3}
s_cmp_lt_u32 s{sT1}, 35
s_cselect_b32 s{12+k}, s{sT2}, 0x1000000
""")
    for k in range(3):
        for q in range(8):
            e(f"s_waitcnt vmcnt({23-8*k-q})")
            if OPT["fs"] and (k, q) in ((0, 0), (0, 7), (2, 7)): stamp(e, {(0, 0): 12, (0, 7): 13, (2, 7): 14}[(k, q)], real=True)
            for i in range(4):
                r = 8 + 32 * k + 4 * q + i
                if q == 0:
                    e(f"v_lshlrev_b32 v{104+2*i}, 16, v{r}")
                    e(f"v_and_b32 v{105+2*i}, 0xffff0000, v{r}")
                else:
                    e(f"v_lshlrev_b32 v112, 16, v{r}")
                    e(f"v_and_b32 v113, 0xffff0000, v{r}")
                    e(f"v_add_f32 v{104+2*i}, v{104+2*i}, v112")
                    e(f"v_add_f32 v{105+2*i}, v{105+2*i}, v113")
        for i in range(4): e(f"v_cvt_pk_bf16_f32 v{116+4*k+i}, v{104+2*i}, v{105+2*i}")
        e(f"ds_write_b64 v6, {v(116+4*k,2)} offset:{k*4352}")
        e(f"ds_write_b64 v6, {v(118+4*k,2)} offset:{k*4352+32}")
    e("s_waitcnt lgkmcnt(0)")
    e("s_barrier")
    if OPT["fs"]: stamp(e, 15, real=True)
    for k in range(3): e(f"ds_read_b128 {v(128+4*k,4)}, v7 offset:{k*4352}")
    for k in range(3):
        e(f"s_waitcnt lgkmcnt({2-k})")
        e(f"buffer_store_dwordx4 {v(128+4*k,4)}, v4, s[{sOUT}:{sOUT+3}], s{12+k} offen")
    e("""
s_barrier
s_branch k1_slice
k1_done:
""")
    if OPT["prof"]: e("s_waitcnt vmcnt(0)")
    stamp(e, 10); stamp(e, 11, real=True)
    dump_stamps(e, 28, 64 << 20, 8)

def build(needs):
    p = Prog()
    p(f"""
.globl {NAME}_kernel
.p2align 8
.type {NAME}_kernel,@function
{NAME}_kernel:
s_cmp_ge_u32 s2, 256
s_cbranch_scc1 k1_end
s_load_dwordx16 s[4:19], s[0:1], 0
s_load_dwordx8 s[20:27], s[0:1], 64
s_load_dwordx2 s[28:29], s[0:1], 96
v_lshrrev_b32 v1, 6, v0
v_and_b32 v2, 63, v0
v_readfirstlane_b32 s{sWAVE}, v1
s_and_b32 s{sT1}, s2, 7
s_lshr_b32 s{sT2}, s2, 3
""")
    if OPT["map"] == 0:
        p(f"""
s_and_b32 s{sQUAD}, s{sT1}, 3
s_lshl_b32 s{sQUAD}, s{sQUAD}, 1
s_and_b32 s{sB}, s{sT2}, 1
s_add_u32 s{sQUAD}, s{sQUAD}, s{sB}
s_lshr_b32 s{sB}, s{sT2}, 1
""")
    else:
        p(f"""
s_and_b32 s{sQUAD}, s{sT1}, 1
s_lshl_b32 s{sQUAD}, s{sQUAD}, 2
s_and_b32 s{sB}, s{sT2}, 3
s_add_u32 s{sQUAD}, s{sQUAD}, s{sB}
s_and_b32 s{sB}, s{sT1}, 2
s_lshl_b32 s{sB}, s{sB}, 2
s_lshr_b32 s{sT2}, s{sT2}, 2
s_add_u32 s{sB}, s{sB}, s{sT2}
""")
    p(f"""
s_and_b32 s{sW4}, s{sWAVE}, 3
s_lshr_b32 s{sTEAM}, s{sWAVE}, 2
s_mul_i32 s{sLW}, s{sW4}, 3072
s_mov_b32 s{sKd+2}, {0 if OPT['nokv'] else 786432}
s_mov_b32 s{sKd+3}, 0x20000
s_mov_b32 s{sVd+2}, {0 if OPT['nokv'] else 786432}
s_mov_b32 s{sVd+3}, 0x20000
s_mov_b32 s{sWd+3}, 0x20000
s_mov_b32 s{sOd+2}, {0 if OPT['now'] else 983040}
s_mov_b32 s{sOd+3}, 0x20000
s_mov_b32 s{sXd+2}, {0 if OPT['nox'] else 143360}
s_mov_b32 s{sXd+3}, 0x20000
s_mov_b32 s{sPd+2}, {35840+QO}
s_mov_b32 s{sPd+3}, 0x20000
s_waitcnt lgkmcnt(0)
s_cmp_lt_u32 s{sT1}, 4
s_cselect_b64 s[4:5], s[4:5], s[14:15]
s_cselect_b64 s[6:7], s[6:7], s[16:17]
s_cselect_b64 s[8:9], s[8:9], s[18:19]
s_cselect_b64 s[10:11], s[10:11], s[20:21]
s_cselect_b64 s[12:13], s[12:13], s[22:23]
s_cselect_b32 s{sT3}, 0, 16
s_mul_i32 s{sT2}, s{sB}, 143360
s_add_u32 s{sXd}, s4, s{sT2}
s_addc_u32 s{sXd+1}, s5, 0
s_mul_i32 s{sT2}, s{sQUAD}, 1536
s_add_u32 s{sWd}, s10, s{sT2}
s_addc_u32 s{sWd+1}, s11, 0
s_sub_u32 s{sWd+2}, 7864320, s{sT2}
{'s_mov_b32 s%d, 0' % (sWd+2) if OPT['now'] else ''}
s_lshl_b32 s{sT1}, s{sB}, 3
s_add_u32 s{sT1}, s{sT1}, s{sQUAD}
s_mul_i32 s{sT2}, s{sT1}, 786432
s_add_u32 s{sKd}, s6, s{sT2}
s_addc_u32 s{sKd+1}, s7, 0
s_add_u32 s{sVd}, s8, s{sT2}
s_addc_u32 s{sVd+1}, s9, 0
s_mul_i32 s{sT2}, s{sQUAD}, 983040
s_add_u32 s{sOd}, s12, s{sT2}
s_addc_u32 s{sOd+1}, s13, 0
s_lshl_b32 s{sT3}, s{sT3}, 3
s_add_u32 s{sT1}, s{sT1}, s{sT3}
s_mul_i32 s{sT1}, s{sT1}, {PART_CU}
s_mul_i32 s{sT2}, s{sW4}, 35840
s_add_u32 s{sT1}, s{sT1}, s{sT2}
s_add_u32 s{sT1}, s{sT1}, {PART0-QO}
s_add_u32 s{sPd}, s28, s{sT1}
s_addc_u32 s{sPd+1}, s29, 0
""")
    stamp(p, 0); stamp(p, 1, real=True)
    p(f"""
s_cmp_lg_u32 s{sWAVE}, 0
s_cbranch_scc1 k1_noclr
s_and_b32 s{sT1}, s2, 7
s_cmp_lt_u32 s{sT1}, 4
s_cselect_b32 s{sT1}, 0, 16
s_add_u32 s{sGRP}, s{sT1}, s{sB}
s_lshl_b32 s{sT1}, s{sGRP}, 3
s_add_u32 s{sT1}, s{sT1}, s{sQUAD}
s_lshl_b32 s{sT1}, s{sT1}, 7
s_add_u32 s{sT1}, s{sT1}, {FLAG0}
s_add_u32 s4, s28, s{sT1}
s_addc_u32 s5, s29, 0
s_mov_b32 s6, 128
s_mov_b32 s7, 0x20000
v_mov_b32 v1, 0
s_mov_b64 exec, 1
buffer_store_dword v1, v1, s[4:7], 0 offen sc1
s_mov_b64 exec, -1
k1_noclr:
""")
    if OPT["cpf"]:
        p(f"""
s_cmp_lg_u32 s{sWAVE}, 7
s_cbranch_scc1 k1_nocpf
s_getpc_b64 s[4:5]
s_mov_b32 s6, k1_end-k1_nocpf
s_mov_b32 s7, 0x20000
s_lshr_b32 s{sT1}, s2, 3
s_and_b32 s{sT1}, s{sT1}, 31
s_lshl_b32 s{sT1}, s{sT1}, 7
v_and_b32 v1, 31, v0
v_lshlrev_b32 v1, 12, v1
buffer_load_dword v254, v1, s[4:7], s{sT1} offen
k1_nocpf:
""")
    if OPT["tlb"]:
        p(f"""
v_and_b32 v1, 3, v0
v_lshlrev_b32 v1, 18, v1
v_min_u32 v1, {786432-128}, v1
s_cmp_lg_u32 s{sWAVE}, 1
s_cbranch_scc1 k1_t1a
buffer_load_dword v254, v1, s[{sKd}:{sKd+3}], 0 offen nt
k1_t1a:
s_cmp_lg_u32 s{sWAVE}, 2
s_cbranch_scc1 k1_t1b
buffer_load_dword v254, v1, s[{sVd}:{sVd+3}], 0 offen nt
k1_t1b:
s_cmp_lg_u32 s{sWAVE}, 3
s_cbranch_scc1 k1_t1c
buffer_load_dword v254, v1, s[{sOd}:{sOd+3}], 0 offen nt
k1_t1c:
s_cmp_lg_u32 s{sWAVE}, 4
s_cbranch_scc1 k1_t1d
s_and_b32 s{sT1}, s2, 7
s_cmp_lt_u32 s{sT1}, 4
s_cselect_b32 s{sT1}, 0, 16
s_add_u32 s{sT1}, s{sT1}, s{sB}
s_mul_i32 s{sT1}, s{sT1}, {8*PART_CU}
s_add_u32 s{sT1}, s{sT1}, {PART0}
s_add_u32 s4, s28, s{sT1}
s_addc_u32 s5, s29, 0
s_mov_b32 s6, {8*PART_CU}
s_mov_b32 s7, 0x20000
v_and_b32 v1, 7, v0
v_mul_u32_u24 v1, {PART_CU}, v1
buffer_load_dword v254, v1, s[4:7], 0 offen nt sc1
k1_t1d:
s_cmp_lg_u32 s{sWAVE}, 5
s_cbranch_scc1 k1_t1e
s_mul_i32 s{sT1}, s{sB}, {112*2560}
s_add_u32 s4, s24, s{sT1}
s_addc_u32 s5, s25, 0
s_mov_b32 s6, {112*2560}
s_mov_b32 s7, 0x20000
v_and_b32 v1, 1, v0
v_mul_u32_u24 v1, {112*2560-128}, v1
buffer_load_dword v254, v1, s[4:7], 0 offen nt sc1
k1_t1e:
""")
    rec = {}
    rec["qp"] = qp_phase(p, needs.get("qp", {}))
    p(f"""
s_cmp_ge_u32 s{sWAVE}, 4
s_cbranch_scc1 k1_t1
""")
    if OPT["prio0"]: p(f"s_setprio {OPT['prio0']}")
    p(f"""
s_cmp_eq_u32 s{sWAVE}, 3
s_cbranch_scc1 k1_light
""")
    rec["h"] = t0_path(p, needs.get("h", {}), 2, "h")
    p.label("k1_light")
    rec["l"] = t0_path(p, needs.get("l", {}), 1, "l")
    rec["f"] = t0_final(p, needs.get("f", {}))
    p.label("k1_t1")
    if OPT["not1"]: p("s_endpgm")
    if OPT["prio1"]: p(f"s_setprio {OPT['prio1']}")
    rec["t1"] = t1_path(p, needs.get("t1", {}))
    final_reduce(p)
    p("""
k1_end:
s_endpgm
""")
    return p, rec

def reduce_kernel():
    p = Prog()
    p(f"""
.globl reduce_kernel
.p2align 8
.type reduce_kernel,@function
reduce_kernel:
s_cmp_ge_u32 s2, 1120
s_cbranch_scc1 k2_end
s_load_dwordx2 s[8:9], s[0:1], 80
s_load_dwordx2 s[10:11], s[0:1], 96
v_lshrrev_b32 v1, 6, v0
v_and_b32 v2, 63, v0
v_readfirstlane_b32 s3, v1
s_mul_i32 s5, s2, 1873
s_lshr_b32 s5, s5, 16
s_mul_i32 s6, s5, 35
s_sub_u32 s22, s2, s6
s_mul_i32 s6, s3, 35
s_add_u32 s6, s6, s22
s_mul_i32 s7, s5, {8*PART_CU}
s_add_u32 s7, s7, {PART0}
s_lshl_b32 s20, s6, 10
v_lshlrev_b32 v3, 4, v2
s_mov_b32 s14, {8*PART_CU}
s_mov_b32 s15, 0x20000
s_waitcnt lgkmcnt(0)
s_add_u32 s12, s10, s7
s_addc_u32 s13, s11, 0
""")
    for q in range(8):
        p(f"buffer_load_dwordx4 v[{8+4*q}:{11+4*q}], v3, s[12:15], s20 offen {OPT['rd']}")
        if q < 7: p(f"s_add_u32 s20, s20, {PART_CU}")
    p(f"""
s_and_b32 s23, s5, 15
s_mul_i32 s23, s23, {112*2560}
s_lshr_b32 s24, s5, 4
s_mul_i32 s24, s24, 1280
s_add_u32 s23, s23, s24
s_mov_b32 s16, s8
s_mov_b32 s17, s9
s_mov_b32 s18, {16*112*2560}
s_mov_b32 s19, 0x20000
s_mul_i32 s26, s22, 37
s_lshr_b32 s26, s26, 8
s_mul_i32 s27, s26, 7
s_sub_u32 s27, s22, s27
s_lshl_b32 s30, s26, 8
s_mul_i32 s28, s27, {16*2560}
s_add_u32 s30, s30, s28
s_mul_i32 s28, s3, {4*2560}
s_add_u32 s30, s30, s28
s_add_u32 s32, s30, s23
v_and_b32 v4, 15, v2
v_lshrrev_b32 v5, 4, v2
v_mul_u32_u24 v6, 272, v4
v_lshl_add_u32 v6, v5, 3, v6
s_lshl_b32 s28, s3, 6
v_add_u32 v6, s28, v6
s_mul_i32 s28, s3, {4*272}
v_mul_u32_u24 v7, 272, v5
v_lshl_add_u32 v7, v4, 4, v7
v_add_u32 v7, s28, v7
v_mul_u32_u24 v5, 2560, v5
v_lshl_add_u32 v4, v4, 4, v5
""")
    for q in range(8):
        p(f"s_waitcnt vmcnt({7-q})")
        for i in range(4):
            r = 8 + 4 * q + i
            if q == 0:
                p(f"v_lshlrev_b32 v{40+2*i}, 16, v{r}")
                p(f"v_and_b32 v{41+2*i}, 0xffff0000, v{r}")
            else:
                p(f"v_lshlrev_b32 v48, 16, v{r}")
                p(f"v_and_b32 v49, 0xffff0000, v{r}")
                p(f"v_add_f32 v{40+2*i}, v{40+2*i}, v48")
                p(f"v_add_f32 v{41+2*i}, v{41+2*i}, v49")
    for i in range(4): p(f"v_cvt_pk_bf16_f32 v{52+i}, v{40+2*i}, v{41+2*i}")
    p("""
ds_write_b64 v6, v[52:53]
ds_write_b64 v6, v[54:55] offset:32
s_waitcnt lgkmcnt(0)
s_barrier
ds_read_b128 v[52:55], v7
s_waitcnt lgkmcnt(0)
buffer_store_dwordx4 v[52:55], v4, s[16:19], s32 offen
k2_end:
s_endpgm
""")
    return p

def desc(name, vg):
    return f""".amdhsa_kernel {name}
  .amdhsa_next_free_vgpr {vg}
  .amdhsa_next_free_sgpr 102
  .amdhsa_accum_offset {vg}
  .amdhsa_group_segment_fixed_size 0
  .amdhsa_kernarg_size 104
  .amdhsa_user_sgpr_count 2
  .amdhsa_user_sgpr_kernarg_segment_ptr 1
  .amdhsa_system_sgpr_workgroup_id_x 1
.end_amdhsa_kernel
"""

def main():
    for t in range(1120): assert (t * 1873) >> 16 == t // 35
    for t in range(140): assert (t * 235) >> 13 == t // 35
    for t in range(35): assert (t * 37) >> 8 == t // 7
    _, rec = build({})
    for it in range(4):
        a, rec2 = build(rec)
        if rec2 == rec: break
        rec = rec2
    else: raise SystemExit("no fixpoint")
    b = reduce_kernel()
    if OPT["novm"]: a.L[:] = [l for l in a.L if not l.startswith("buffer_load")]
    if OPT["nobar"]: a.L[:] = [l for l in a.L if not l.startswith("s_barrier")]
    if OPT["nolg"]:
        out_ = []
        for i_, l in enumerate(a.L):
            if l.startswith("s_waitcnt lgkmcnt") and not a.L[i_-1].startswith(("s_mem", "s_load")) and i_ > 60: continue
            out_.append(l)
        a.L[:] = out_
    if OPT["nord"]: a.L[:] = [l for l in a.L if not l.startswith("ds_read")]
    if OPT["noexp"]: a.L[:] = [l.replace("v_exp_f32", "v_mov_b32") if l.startswith("v_exp_f32") and "-v" not in l else l for l in a.L]
    if OPT["nosm"]: a.L[:] = [l for l in a.L if not l.startswith(("v_exp_f32", "v_cvt_pk"))]
    if OPT["nochk"]: a.L[:] = [l for l in a.L if not l.startswith(("v_or3", "v_or_b32", "v_cmp_ne", "s_cbranch_vccz", "v_and_b32 v252"))]
    if OPT["prof"] == 2:
        out_ = []; L_ = a.L; inrole = False; i_ = 0
        while i_ < len(L_):
            l = L_[i_]
            if l.startswith(("t0_unit", "t1_slot")): inrole = True
            if l.startswith(("t0_exit", "t1_exit")): inrole = False
            if inrole and l == "s_barrier":
                j = len(out_)
                while j > 0 and (out_[j-1].startswith(("s_waitcnt vmcnt", "s_cmp_eq_u32 s55, 5", "s_cbranch_scc1 t1_wa")) or out_[j-1].startswith("t1_wa")): j -= 1
                blk = out_[j:]; del out_[j:]
                out_ += ["s_memtime s[4:5]"] + blk + ["s_memtime s[6:7]", "s_barrier", "s_memtime s[8:9]", "s_waitcnt lgkmcnt(0)",
                         "s_sub_u32 s4, s6, s4", "s_add_u32 s94, s94, s4", "s_sub_u32 s6, s8, s6", "s_add_u32 s95, s95, s6"]
            elif inrole and l.startswith("buffer_load") and l.endswith("lds"):
                out_ += ["s_memtime s[4:5]", l, "s_memtime s[6:7]", "s_waitcnt lgkmcnt(0)", "s_sub_u32 s4, s6, s4", "s_add_u32 s89, s89, s4"] if OPT["pv"] else [l]
            elif l.startswith(("k1_light:", "k1_t1:")) or l.startswith("s_cbranch_scc1 k1_light"):
                out_ += [l, "s_mov_b32 s94, 0", "s_mov_b32 s95, 0", "s_mov_b32 s89, 0"]
            else: out_.append(l)
            i_ += 1
        a.L[:] = out_
    if OPT["prof"] == 4:
        out_ = []; inrole = False; idx = 0
        L_ = [l for l in a.L if not (l.startswith(("s_cselect_b32 s8", "s_cselect_b32 s9")) or (l.startswith(("s_mov_b32 s8", "s_mov_b32 s9")) and "s100" in l))]
        def st_(k):
            return ["s_memtime s[100:101]", "s_waitcnt lgkmcnt(0)", f"s_cmp_eq_u32 s{sSLOT}, {OPT['ps']}", f"s_cselect_b32 s{80+k}, s100, s{80+k}"] if 0 <= k < 16 else []
        for i_, l in enumerate(L_):
            if l.startswith(("t0_unit", "t1_slot")): inrole = True; idx = 0
            if l.startswith(("t0_exit", "t1_last")): inrole = False
            k = (idx - OPT["pb"]) * 4
            if inrole and l == "s_barrier":
                x = out_.pop() if out_[-1].startswith("s_waitcnt vmcnt") else None
                out_ += st_(k - 2) + ([x] if x else []) + st_(k - 1) + [l] + st_(k); idx += 1
            elif inrole and l.startswith("buffer_load") and l.endswith("lds"):
                nxt = next(y for y in L_[i_+1:] if y == "s_barrier" or (y.startswith("buffer_load") and y.endswith("lds")))
                out_ += [l] + (st_(k - 3) if nxt == "s_barrier" else [])
            else: out_.append(l)
        a.L[:] = out_
    if OPT["prof"] == 3:
        out_ = []; inrole = False; idx = 0
        for l in a.L:
            if l.startswith(("t0_unit", "t1_slot")): inrole = True; idx = 0
            if l.startswith(("t0_exit", "t1_exit")) or l.startswith("s_cbranch_scc1 t1_slot"): inrole = False
            if l.startswith("s_cselect_b32 s8") or l.startswith("s_cselect_b32 s9") or l.startswith("s_mov_b32 s9") and "s100" in l: continue
            if inrole and l == "s_barrier":
                k = idx - OPT["pb"]; idx += 1
                st_ = ["s_memtime s[100:101]", "s_waitcnt lgkmcnt(0)", f"s_cmp_eq_u32 s{sSLOT}, {OPT['ps']}", f"s_cselect_b32 s{80+k}, s100, s{80+k}"] if 0 <= k < 16 else []
                out_ += (st_ + [l]) if OPT["pa"] else ([l] + st_)
            else: out_.append(l)
        a.L[:] = out_
    if OPT["nomfq"] or OPT["nomf1"] or OPT["nomf0"]:
        out_ = []; sec = "q"
        for l in a.L:
            if l.startswith("t0_unit"): sec = "0"
            if l.startswith("k1_t1:"): sec = "1"
            if l.startswith("v_mfma") and OPT["nomf" + sec]: continue
            out_.append(l)
        a.L[:] = out_
    if OPT["xa"]:
        out_ = []; sec = "q"; cnt = 0
        for l in a.L:
            if l.startswith("t0_unit_h"): sec = "h"
            if l.startswith("t0_unit_l"): sec = "l"
            if l.startswith("t0_final"): sec = "f"
            if l.startswith("k1_t1:"): sec = "1"
            if OPT["xa"] == 1 and sec in "hl" and l.startswith("v_mfma") and "v[208:211]" in l: continue
            if OPT["xa"] == 2 and sec == "l" and l.startswith(("v_mfma", "ds_read")): continue
            if OPT["xa"] == 3 and sec == "1" and l.startswith("ds_read_b128"): continue
            if OPT["xa"] == 4 and sec in "hl" and l.startswith("ds_read"):
                continue
            out_.append(l)
        a.L[:] = out_
    if OPT["vwin"]:
        out_ = []; on = False
        for l in a.L:
            if l.startswith("k1_t1:") and OPT["vw1"]: on = True
            if l.startswith("t1_slot:"): on = True
            if l.startswith("t1_last:"): on = False
            if on and l.startswith("buffer_load") and l.endswith("lds"): out_.append(f"s_waitcnt vmcnt({OPT['vwin']-1})")
            out_.append(l)
        a.L[:] = out_
    if OPT["dynp"]:
        out_ = []; int1 = False
        for l in a.L:
            if l.startswith("k1_t1:"): int1 = True
            if int1 and l.startswith("buffer_load") and l.endswith("lds"):
                out_ += [f"s_setprio {OPT['dynp']}", l, f"s_setprio {OPT['prio1']}"]
            else: out_.append(l)
        a.L[:] = out_
    n1 = fix_hazards(a.L); n2 = fix_hazards(b.L)
    print("nops inserted", n1, n2, "instrs", len(a.L), len(b.L), file=sys.stderr)
    hdr = open("cdna_kernels/" + NAME + ".s.ref").read().split("; Override launch")[0]
    out = hdr
    if OPT["two"]:
        out += f"; @launch kernel={NAME}_kernel grid=(256,1,1) block=(512,1,1) lds={LDS_BYTES}\n"
        out += "; @launch kernel=reduce_kernel grid=(1120,1,1) block=(256,1,1) lds=4352\n"
    else:
        out += f"; @launch grid=(256,1,1) block=(512,1,1) lds={LDS_BYTES}\n"
    out += '.amdgcn_target "amdgcn-amd-amdhsa--gfx950"\n.text\n'
    out += a.text() + (b.text() if OPT["two"] else "")
    out += '.section .rodata,"a"\n.p2align 6\n' + desc(NAME + "_kernel", 256)
    if OPT["two"]: out += ".p2align 6\n" + desc("reduce_kernel", 56)
    open(sys.argv[1], "w").write(out)
    import subprocess
    r = subprocess.run(["clang", "-x", "assembler", "-target", "amdgcn-amd-amdhsa", "-mcpu=gfx950", "-c", sys.argv[1], "-o", "chk.o"], capture_output=True, text=True)
    if r.returncode: print("ASSEMBLY FAILED", r.stderr[:600])
main()
```

```python
import sys, math, struct, copy
sys.path.insert(0, "work")
from asmlib import *

NAME = "concat_heads__mha_block_cached__gqa_block_cached__near_ridge"
OPT = dict(kv="nt", w="", x="", wo="", st="sc1", rd="sc1", prof=0, prio0=0, prio1=0, touch=1, nox=0, now=0, nokv=0, nomf=0,
           novm=0, lead=4, bp="6.16.26.36.42", map=0, hack="", t1b=0, ps=5, kdel=0, x0=4, xt=0, dynp=0, nopark=0, gap=0, span=4, pa=0, pb=0, m=2, nlat=0, nonar=0, bar=3, qd=5, rt=0, tf="", tq="", pwo=0, tlb=0, stl=0, dd=0, kw=0, stn=1, spin=40000, vcap=0, vpost=0, now0=9, xa=0, burst=0, kpar=0, pwh=1, near=0, vwin=9, cpf=1, fs=0, r5=6, early=3, qv=0, two=0, vw1=1, wo5="", nomfq=0, nomf1=0, nomf0=0, pwf="", kvfirst=1, w2=1, psplit=1, nb1=8, nb2=29, kl=16, tl=4, kvat=18, qst="sc1", noq=0, noqst=0, pv=0, nobar=0, nolg=0, nord=0, norare=0, not1=0, noexp=0, nochk=0, nosm=0)
for a in sys.argv[2:]:
    k, val = a.split("=")
    OPT[k] = int(val) if val.lstrip("-").isdigit() else (val if k in ("bp", "hack") else val.replace("+", " ").replace("-", ""))
TILE = 12288
QO = 0
T1R = 43008
B2 = T1R + 32768
KVB = B2 + 18432
NS = 16
SPARE = KVB + NS * 4096
LDS_BYTES = SPARE + 2048
QPARK = 48 << 20
FLAG0 = 0
PART0 = 1 << 20
PART_CU = 4 * 35 * 1024
LEAD = OPT["lead"]
NX = 30
XB_ = [OPT["x0"] + 4 * ((k * 96) // NX) for k in range(NX)]
def f2u(f): return struct.unpack("<I", struct.pack("<f", f))[0]

sKd, sVd, sWd, sOd, sXd, sPd, sQd = 32, 36, 40, 44, 48, 76, 24
sWAVE, sB, sQUAD, sSLOT, sCTR, sW4 = 52, 53, 54, 55, 57, 56
sT1, sT2, sT3 = 62, 63, 61
sKSO, sVSO, sLW = 58, 59, 60
sWB, sOB, sXB, sXM, sSTR, sXF = 58, 59, 70, 71, 72, 73
sC, sBIT = 66, 68
sRET = 30
sGRP = 3
sTEAM, sWB2, sKSO2, sL1, sSLO, sSHI = 74, 75, 65, 64, 69, 72
PKV_ = 255
sRX, sRY, sRZ, sSP = 14, 17, 20, 23

def stamp(e, k, real=False):
    if not OPT["prof"]: return
    e(f"s_mem{'real' if real else ''}time s[100:101]")
    e("s_waitcnt lgkmcnt(0)")
    e(f"s_mov_b32 s{80+k}, s100")
def stamp_slot(e):
    if not OPT["prof"]: return
    e("s_memrealtime s[100:101]" if OPT["rt"] else "s_memtime s[100:101]")
    e("s_waitcnt lgkmcnt(0)")
    for k in range(0, 7):
        e(f"s_cmp_eq_u32 s{sSLOT}, {k}")
        e(f"s_cselect_b32 s{82+k}, s100, s{82+k}")
def stamp_if(e, k, slot):
    if not OPT["prof"]: return
    e("s_memtime s[100:101]")
    e("s_waitcnt lgkmcnt(0)")
    e(f"s_cmp_eq_u32 s{sSLOT}, {slot}")
    e(f"s_cselect_b32 s{80+k}, s100, s{80+k}")
def dump_stamps(e, wsreg, base, nw):
    if not OPT["prof"]: return
    if OPT["dd"]:
        e(f"""
s_cmp_lg_u32 s2, {OPT['dd']}
s_cbranch_scc1 k1_end
s_cmp_lg_u32 s{sWAVE}, 4
s_cbranch_scc1 k1_end
s_mov_b32 s96, s26
s_mov_b32 s97, s27
s_mov_b32 s98, 64
s_mov_b32 s99, 0x20000
v_mov_b32 v1, 0
""")
        for k in range(16):
            e(f"s_sub_u32 s100, s{80+k}, s{80 if k == 10 else 81}")
            e("v_mov_b32 v0, s100")
            e(f"buffer_store_dword v0, v1, s[96:99], 0 offen offset:{k*4}")
        e("s_waitcnt vmcnt(0)")
        return
    e(f"""
s_mul_i32 s100, s2, {nw}
s_add_u32 s100, s100, s{sWAVE}
s_lshl_b32 s100, s100, 6
s_add_u32 s100, s100, {base}
s_add_u32 s96, s{wsreg}, s100
s_addc_u32 s97, s{wsreg+1}, 0
s_mov_b32 s98, 64
s_mov_b32 s99, 0x20000
v_mov_b32 v1, 0
""")
    for k in range(16):
        e(f"v_mov_b32 v0, s{80+k}")
        e(f"buffer_store_dword v0, v1, s[96:99], 0 offen offset:{k*4}")
    e("s_waitcnt vmcnt(0)")

class Gen:
    def __init__(self, prog, needs):
        self.p = prog; self.needs = needs; self.rec = {}
        self.mute = 0
        self.vq = []; self.lq = []; self.pend = []; self.issued = {}
        self.nosim = 0
    def e(self, s):
        if not self.mute: self.p(s)
    def label(self, n):
        if not self.mute: self.p.label(n)
    def wait(self, kind, key, tags, drain_tags=()):
        q = self.vq if kind == "vm" else self.lq
        for t in tags:
            assert self.issued.pop(t, 0) > 0, (t, key)
        tags = list(tags) + list(drain_tags)
        idx = [i for i, t in enumerate(q) if t in tags]
        n = len(q) - 1 - max(idx) if idx else 999
        if n != 999: n = min(n, 63 if kind == "vm" else 15)
        k = (kind, key)
        self.rec[k] = min(self.rec.get(k, 999), n)
        val = self.needs.get(k, n)
        if val == 999: return
        self.e(f"s_waitcnt {'vmcnt' if kind == 'vm' else 'lgkmcnt'}({val})")
        del q[:len(q) - val if val < len(q) else 0]
    def wait_alt(self, key, tags, alt, cmp_txt, lab):
        q = self.vq
        for t in tags: assert self.issued.pop(t, 0) > 0, (t, key)
        idx = [i for i, t in enumerate(q) if t in tags]
        n = min(len(q) - 1 - max(idx), 63) if idx else 999
        k = ("vm", key, alt)
        self.rec[k] = min(self.rec.get(k, 999), n)
        va, vb = self.needs.get(("vm", key, False), 0), self.needs.get(("vm", key, True), 0)
        if vb != 999 and vb > va: self.e(f"s_waitcnt vmcnt({vb})")
        if vb > va:
            self.e(cmp_txt); self.e(f"s_cbranch_scc1 {lab}")
        val = min(va, vb) if not (alt and vb > va) else vb
        if min(va, vb) != 999: self.e(f"s_waitcnt vmcnt({min(va, vb)})")
        if vb > va: self.label(lab)
        if val != 999: del q[:len(q) - val if val < len(q) else 0]
    def vm(self, tag, text):
        self.e(text); self.vq.append(tag); self.issued[tag] = self.issued.get(tag, 0) + 1
    def ld(self, tag, text):
        self.e(text); self.lq.append(tag); self.issued[tag] = self.issued.get(tag, 0) + 1
    def drain(self, n=1):
        for _ in range(n):
            if self.pend: self.pend.pop(0)()
    def optional(self, taken, fn):
        if taken: fn()
        elif not self.mute:
            st = (list(self.vq), list(self.lq), dict(self.issued))
            fn()
            self.vq[:], self.lq[:] = st[0], st[1]; self.issued = st[2]

def mfma(e, d, a, b, c):
    if not OPT["nomf"]:
        e(f"v_mfma_f32_16x16x32_bf16 {v(d,4)}, {v(a,4)}, {v(b,4)}, {c if c == '0' else v(c,4)}")


KL = OPT["kl"]
KVT = [k for k in range(NX) if not OPT['burst'] or k % 2 == OPT['kpar']]
N0 = max(u for u in range(300) if 4 * (u - KL) + 4 <= XB_[KVT[-1]]) + 1
def lane_regs(e, b=2):
    e(f"""
v_mbcnt_lo_u32_b32 v{b}, -1, 0
v_mbcnt_hi_u32_b32 v{b}, -1, v{b}
v_and_b32 v{b+1}, 15, v{b}
v_lshrrev_b32 v{b+2}, 4, v{b}
v_lshrrev_b32 v{b+3}, 2, v{b}
v_and_b32 v{b+4}, 3, v{b+3}
v_and_b32 v{b+5}, 3, v{b}
v_lshrrev_b32 v{b+6}, 3, v{b}
v_and_b32 v{b+7}, 7, v{b}
""")
def kv_kind(a):
    a %= 32
    return "K" if (a == 0 or (a % 2 == 1 and a < 31)) else "V"
def kv_tile(a):
    u, a = divmod(a, 32)
    return u * 16 + (0 if a == 0 else 15 if a == 31 else (a + 1) // 2 if a % 2 == 1 else (a - 2) // 2)
def QAC(hh, rt, k): return ((hh * 7 + rt) * 3 + k) * 4
QW = [248, 249, 250]


class OpEngine:
    def __init__(self, g, PK, AC0, AF0, BF0, RA, OB, PO, ring, sM0, ringoff):
        self.g, self.e = g, g.e
        self.PK, self.AC0, self.AF0, self.BF0, self.RA, self.OB, self.PO = PK, AC0, AF0, BF0, RA, OB, PO
        self.ring, self.sM0, self.ro = ring, sM0, ringoff
        self.dq = []; self.pq = []; self.clock = 0; self.fl = OPT['wo']; self.nr = 4; self.early = 0
    def AC(self, k): return self.AC0 + 4 * k
    def AF(self, s, i): return self.AF0 + 8 * (s & 1) + 4 * i
    def BF(self, n): return self.BF0 + 4 * (n % 6)
    def slot(self, i): return ((i + self.ro) % self.nr) * 8192
    def addr_setup(self):
        e = self.e
        lane_regs(e, 232)
        L = 232
        e(f"""
v_lshlrev_b32 v{self.OB}, 4, v{L}
v_lshlrev_b32 v{L+8}, 1, v{L+2}
v_xor_b32 v{L+8}, v{L+1}, v{L+8}
v_lshlrev_b32 v{L+8}, 4, v{L+8}
v_mul_u32_u24 v{L+9}, 1280, v{L+2}
v_add_u32 v{self.PO[0]}, v{L+8}, v{L+9}
v_xor_b32 v{L+8}, 128, v{L+8}
v_add_u32 v{L+8}, v{L+8}, v{L+9}
v_add_u32 v{self.PO[1]}, 4096, v{L+8}
s_lshl_b32 s{sT1}, s{sW4}, 1
v_and_b32 v{L+8}, 7, v{L+3}
v_xor_b32 v{L+8}, s{sT1}, v{L+8}
v_lshlrev_b32 v{L+8}, 5, v{L+8}
v_lshl_add_u32 v{L+8}, v{L+3}, 8, v{L+8}
v_lshl_add_u32 v{L+8}, v{L+5}, 3, v{L+8}
v_add_u32 v{self.RA[0]}, {self.ring}, v{L+8}
v_xor_b32 v{self.RA[1]}, 32, v{self.RA[0]}
""")
    def dma(self, i):
        ps, j = divmod(i, 6)
        out = []
        for q in range(2):
            def f(q=q):
                if q == 0:
                    self.e(f"s_add_u32 m0, s{self.sM0}, {self.ring+self.slot(i)}")
                    self.e(f"s_add_u32 s{sT2}, s{sOB}, {j*32*1280+ps*256}")
                o = "offset:1024 " if q else ""
                self.g.vm(f"O{i}", f"buffer_load_dwordx4 v{self.PO[q]}, s[{sOd}:{sOd+3}], s{sT2} offen {o}{self.fl} lds")
            out.append(f)
        return out
    def defer(self, at, ins):
        for x in ins: self.dq.append((at, x))
    def run_dq(self, n):
        while n > 0 and self.dq and self.dq[0][0] <= self.clock:
            x = self.dq.pop(0)[1]
            if callable(x): x()
            else: self.e(x)
            n -= 1
    def flush_pq(self):
        while self.pq: self.pq.pop(0)[1]()
    def a_read(self, i, n):
        k, hf = divmod(n, 2)
        self.g.ld(f"o{i}a{k}", f"ds_read_b64_tr_b16 {v(self.AF(i,k)+2*hf,2)}, v{self.RA[k]} offset:{self.slot(i)+hf*4096}")
    def b_read(self, b):
        i, rt = divmod(b, 7)
        self.g.ld(f"o{i}b{rt}", f"ds_read_b128 {v(self.BF(b),4)}, v{self.OB} offset:{QO+(i%6*7+rt)*1024}")
    def first_reads(self, i):
        self.a_read(i, 0); self.a_read(i, 1); self.b_read(7 * i); self.a_read(i, 2); self.a_read(i, 3)
        for n in range(1, 6): self.b_read(7 * i + n)
    def unpack_l(self, dst, src):
        return [f"v_perm_b32 v{dst+x}, v{src+x//2}, v{src+x//2}, s{sSHI if x & 1 else sSLO}" for x in range(4)]
    def pack_l(self, dst, src):
        return [f"v_cvt_pk_bf16_f32 v{dst}, v{src}, v{src+1}", f"v_cvt_pk_bf16_f32 v{dst+1}, v{src+2}, v{src+3}"]
    def store_l(self, ps, rt):
        o = (ps * 7 + rt) * 1024
        return [f"s_mov_b32 s{sT3}, {o - o % 4096}",
                lambda: self.g.vm("st", f"buffer_store_dwordx4 {v(self.PK(ps*14+rt*2),4)}, v{self.OB}, s[{sPd}:{sPd+3}], s{sT3} offen offset:{o%4096} {OPT['st']}")]
    def step(self, key, i, last, tick, store=False, hooks=None):
        g, e = self.g, self.e
        ps, j = divmod(i, 6)
        BAR = OPT["bar"]
        c0 = self.clock
        if store and not self.early and i >= last - 3 and i < last:
            todo = [(q, rt) for q in range(store[0], ps) for rt in range(7)]
            k = i - (last - 3)
            mine = todo[k * len(todo) // 3:(k + 1) * len(todo) // 3]
            for n, (q, rt) in enumerate(mine): self.defer(c0 + (6 if k == 0 else 0) + n * (8 if k == 0 else 14) // len(mine), self.store_l(q, rt))
        if j == 5 and (i < last or store):
            for n in range(14):
                ins = self.pack_l(self.PK(ps * 14 + n), self.AC(n))
                if i < last: ins += self.unpack_l(self.AC(n), self.PK((ps + 1) * 14 + n))
                if store and n % 2 == 1 and (i == last or self.early): ins += self.store_l(ps, n // 2)
                self.defer(c0 + n + 4, ins)
        for n in range(14):
            rt, k = divmod(n, 2)
            if n == BAR and i < last: tick(i)
            if hooks and n in hooks: hooks[n]()
            tags = ([f"o{i}b{rt}"] if k == 0 else []) + ([f"o{i}a{k}"] if rt == 0 else [])
            if tags: g.wait("lg", f"{key}{i}m{n}", tags)
            mfma(e, self.AC(n), self.AF(i, k), self.BF(7 * i + rt), self.AC(n))
            if k == 1 and 7 * i + rt + 6 < 7 * (last + 1): self.b_read(7 * i + rt + 6)
            if k == 0 and i < last and BAR < n <= BAR + 8: self.a_read(i + 1, (n - BAR - 1) // 2)
            while self.pq and self.pq[0][0] <= self.clock: self.pq.pop(0)[1]()
            self.clock += 1
            self.run_dq(7)
    def finish(self):
        self.flush_pq(); self.clock += 100; self.run_dq(1000)

def qp_phase(p, needs):
    g = Gen(p, needs); e = g.e
    AC = QAC
    def AF(par, hh, k): return 168 + par * 24 + (hh * 3 + k) * 4
    def BF(n): return 216 + 4 * (n % 4)
    RA = [[232, 233, 234], [235, 236, 237]]; XA = [238, 239]; PW = [243, 244, 245]; PX = 246
    JUNK = 247
    STG = [KVB, T1R]
    NB1, NB2 = OPT["nb1"], OPT["nb2"]
    QV = OPT["qv"]
    HEAD = {(0, 0): 0, (0, 1): 3, (1, 0): 1, (1, 1): 2}
    def dma_w(i, hh):
        out = []
        for tm in (range(2) if QV else [None]):
            for ii in range(3):
                def f(ii=ii, tm=tm):
                    if ii == 0:
                        if QV:
                            e(f"s_add_u32 m0, s{sLW}, {STG[i&1]+hh*2*TILE+tm*TILE}")
                            e(f"s_add_u32 s{sT1}, s{sWB}, {i*32*12288+HEAD[tm,hh]*384}")
                        else:
                            e(f"s_add_u32 m0, s{sLW}, {STG[i&1]+hh*2*TILE}")
                            e(f"s_add_u32 s{sT1}, s{sWB2 if hh else sWB}, {i*32*12288}")
                    o = f"offset:{ii*1024} " if ii else ""
                    g.vm(f"W{i}.{hh}", f"buffer_load_dwordx4 v{PW[ii]}, s[{sWd}:{sWd+3}], s{sT1} offen {o}{OPT['w']} lds")
                out.append(f)
        return out
    def dma_x(pp):
        out = []
        nq = 4 if QV else 2
        for q in range(nq):
            def f(q=q):
                if q < nq - 1: e(f"s_add_u32 m0, s{sXM}, {QO+(pp%3)*14336+q*16384//nq}")
                else:
                    e(f"s_add_u32 s{sT2}, s{sXM}, {QO+(pp%3)*14336+q*16384//nq}")
                    e(f"s_cmp_ge_u32 s{sWAVE}, 6")
                    e(f"s_cselect_b32 m0, s{sXF}, s{sT2}")
                e(f"s_add_u32 s{sT2}, s{sXB}, {pp*128+q*163840//nq}")
                g.vm(f"X{pp}", f"buffer_load_dwordx4 v{PX}, s[{sXd}:{sXd+3}], s{sT2} offen {OPT['x']} lds")
            out.append(f)
        return out
    nlab = [0]
    def issue(fs):
        if not QV:
            g.pend += fs; return
        if not fs: return
        nlab[0] += 1
        e(f"s_cmp_eq_u32 s{sTEAM}, 0")
        e(f"s_cbranch_scc1 qp_i{nlab[0]}")
        for f in fs: f()
        g.label(f"qp_i{nlab[0]}")
    def a_read(i, hh, n):
        k, hf = divmod(n, 2)
        g.ld(f"{i}a{hh}{k}", f"ds_read_b64_tr_b16 {v(AF(i&1,hh,k)+2*hf,2)}, v{RA[i&1][k]} offset:{hh*2*TILE+hf*1536}")
    def b_read(i, rt):
        g.ld(f"{i}b{rt}", f"ds_read_b128 {v(BF(7*i+rt),4)}, v{XA[i&1]} offset:{((i>>1)%3)*14336+rt*2048}")
    lane_regs(e)
    e(f"""
v_lshrrev_b32 v13, 1, v8
v_and_b32 v13, 3, v13
v_lshlrev_b32 v13, 1, v13
v_xor_b32 v13, v9, v13
v_lshlrev_b32 v13, 4, v13
v_mul_u32_u24 v14, 1280, v8
v_add_u32 v{PX}, v13, v14
v_mul_u32_u24 v14, 384, v8
v_add_u32 v{PKV_}, v13, v14
s_mul_i32 s{sXB}, s{sW4 if QV else sWAVE}, 10240
s_lshl_b32 s{sXM}, s{sW4 if QV else sWAVE}, 10
s_sub_u32 s{sXF}, s{sXM}, {2048 if QV else 6144}
s_add_u32 s{sXF}, s{sXF}, {SPARE}
""")
    issue(dma_x(0)); g.drain(9)
    e(f"""
s_and_b32 s{sT1}, s{sW4}, 1
s_lshl_b32 s{sT1}, s{sT1}, 2
v_xor_b32 v16, s{sT1}, v9
s_mul_i32 s{sWB}, s{sW4}, {8*12288}
s_mul_i32 s{sT1}, s{sTEAM}, {0 if QV else 384}
s_add_u32 s{sWB2}, s{sWB}, 1152
s_add_u32 s{sWB}, s{sWB}, s{sT1}
s_sub_u32 s{sWB2}, s{sWB2}, s{sT1}
s_mul_i32 s{sT1}, s{sTEAM}, {0 if QV else TILE}
s_add_u32 s{sLW}, s{sLW}, s{sT1}
""")
    for q in range(3):
        e(f"""
v_add_u32 v10, {8*q}, v8
v_mul_u32_u24 v11, 43, v10
v_lshrrev_b32 v11, 7, v11
v_mul_u32_u24 v12, 3, v11
v_sub_u32 v12, v10, v12
v_lshrrev_b32 v13, 1, v11
v_and_b32 v14, 1, v13
v_xor_b32 v14, v16, v14
v_lshlrev_b32 v14, 4, v14
v_lshl_add_u32 v14, v12, 7, v14
v_mul_u32_u24 v15, 12288, v11
v_add_u32 v14, v14, v15
v_subrev_u32 v{PW[q]}, {q*1024}, v14
""")
    issue(dma_w(0, 0) + dma_w(0, 1)); g.drain(9)
    if OPT["touch"]:
        nsh = 16 if OPT["map"] == 0 else 8
        rows = 640 // nsh // 8
        e(f"""
s_and_b32 s{sT1}, s{sB}, {nsh-1}
s_lshl_b32 s{sT1}, s{sT1}, 3
s_add_u32 s{sT1}, s{sT1}, s{sWAVE}
s_mul_i32 s{sT1}, s{sT1}, {rows*12288}
v_mul_u32_u24 v10, 43, v2
v_lshrrev_b32 v10, 9, v10
v_mul_u32_u24 v11, 12, v10
v_sub_u32 v11, v2, v11
v_mul_u32_u24 v10, 12288, v10
v_lshl_add_u32 v10, v11, 7, v10
""")
        for r in range(rows // 5):
            g.vm("pf", f"buffer_load_dword v{JUNK}, v10, s[{sWd}:{sWd+3}], s{sT1} offen {OPT['tq']}")
            e(f"s_add_u32 s{sT1}, s{sT1}, {5*12288}")
    if OPT["touch"] and OPT["xt"]:
        e(f"""
s_and_b32 s{sT1}, s{sQUAD}, 1
s_mul_i32 s{sT1}, s{sT1}, 71680
s_mul_i32 s{sT2}, s{sWAVE}, {70*128}
s_add_u32 s{sT1}, s{sT1}, s{sT2}
v_lshlrev_b32 v10, 7, v2
""")
        g.vm("pf", f"buffer_load_dword v{JUNK}, v10, s[{sXd}:{sXd+3}], s{sT1} offen")
        g.vm("pf", f"buffer_load_dword v{JUNK}, v10, s[{sXd}:{sXd+3}], s{sT1} offen offset:768")
    e(f"""
v_lshrrev_b32 v8, 1, v3
v_and_b32 v8, 3, v8
v_lshlrev_b32 v8, 1, v8
v_xor_b32 v8, v4, v8
v_lshlrev_b32 v8, 4, v8
v_lshl_add_u32 v9, v3, 7, v8
v_add_u32 v{XA[0]}, {QO}, v9
v_xor_b32 v{XA[1]}, 64, v{XA[0]}
v_lshl_add_u32 v8, v4, 3, v6
v_mul_u32_u24 v9, 384, v8
v_lshrrev_b32 v8, 1, v6
v_and_b32 v11, 1, v4
v_lshl_add_u32 v8, v11, 2, v8
v_xor_b32 v8, v7, v8
v_lshl_add_u32 v9, v8, 4, v9
v_lshlrev_b32 v12, 3, v11
v_lshl_add_u32 v12, v2, 4, v12
v_and_b32 v11, 1, v7
v_lshl_add_u32 v11, v11, 3, v9
s_mov_b32 s{sC}, {hex(f2u(192 ** -0.5 * math.log2(math.e)))}
s_mov_b32 s{sC+1}, s{sC}
""")
    for i in range(3):
        e(f"""
s_mul_i32 s{sT1}, s{sW4}, 3
s_add_u32 s{sT1}, s{sT1}, {i}
s_lshr_b32 s{sT2}, s{sT1}, 2
s_lshl_b32 s{sRY+i}, s{sT2}, 7
s_and_b32 s{sT3}, s{sT1}, 3
s_xor_b32 s{sT3}, s{sT3}, s{sW4}
s_lshl_b32 s{sRX+i}, s{sT3}, 5
s_and_b32 s{sT3}, s{sT1}, 2
s_lshl_b32 s{sT3}, s{sT3}, 5
s_and_b32 s{sT2}, s{sT1}, 1
s_lshl_b32 s{sT2}, s{sT2}, 3
v_xor_b32 v{QW[i]}, s{sT2}, v12
s_or_b32 s{sT3}, s{sT3}, s{sT2}
v_xor_b32 v13, s{sT3}, v11
s_lshr_b32 s{sT1}, s{sT1}, 1
s_mul_i32 s{sT1}, s{sT1}, 7168
v_add_u32 v{QW[i]}, s{sT1}, v{QW[i]}
s_mul_i32 s{sT1}, s{sTEAM}, {TILE}
s_add_u32 s{sT1}, s{sT1}, s{sRY+i}
v_add_u32 v13, s{sT1}, v13
v_add_u32 v{RA[1][i]}, {T1R}, v13
v_add_u32 v{RA[0][i]}, {KVB}, v13
""")
    g.wait("vm", "in", ["W0.0", "W0.1", "X0"])
    e("s_barrier")
    stamp(e, 14, real=bool(OPT["rt"]))
    e(f"""
s_cmp_lg_u32 s{sWAVE}, 0
s_cbranch_scc1 k1_nocnt
s_mov_b32 s4, s26
s_mov_b32 s5, s27
s_mov_b32 s6, 256
s_mov_b32 s7, 0x20000
s_lshl_b32 s{sT1}, s{sGRP}, 2
v_mov_b32 v252, 0
v_mov_b32 v253, 1
s_mov_b64 exec, 1
buffer_atomic_add v253, v252, s[4:7], s{sT1} offen sc1
s_mov_b64 exec, -1
k1_nocnt:
""")
    a_read(0, 0, 0); a_read(0, 0, 1); b_read(0, 0); b_read(0, 1)
    for n in range(2, 6): a_read(0, 0, n)
    for n in range(6): a_read(0, 1, n)
    for rt in range(2, 4): b_read(0, rt)
    issue(dma_w(1, 0) + dma_w(1, 1) + dma_x(1)); g.drain(9)
    ORD = [(rt, 0, k) for rt in (0, 1) for k in range(3)] + [(rt, 1, k) for rt in (0, 1) for k in range(3)]
    ORD += [(rt, hh, k) for rt in range(2, 7) for hh in range(2) for k in range(3)]
    lastb = {rt: max(n for n, x in enumerate(ORD) if x[0] == rt) for rt in range(7)}
    A0 = [NB1 + 2 + 3 * x for x in range(6)]
    A1 = [NB2 + 1 + 2 * x for x in range(6)]
    def qcvt(n):
        rt, hh, k = ORD[n]
        a = AC(hh, rt, k)
        e(f"v_pk_mul_f32 {v(a,2)}, {v(a,2)}, s[{sC}:{sC+1}]")
        e(f"v_pk_mul_f32 {v(a+2,2)}, {v(a+2,2)}, s[{sC}:{sC+1}]")
        e(f"v_cvt_pk_bf16_f32 v{a}, v{a}, v{a+1}")
        e(f"v_cvt_pk_bf16_f32 v{a+1}, v{a+2}, v{a+3}")
    lastd = [0]
    for i in range(20):
        seen = set()
        for n, (rt, hh, k) in enumerate(ORD):
            if n == NB1 and i < 19:
                g.drain(9); lastd[0] = n - 9
                g.wait("lg", f"r1{i}", [], drain_tags=[f"{i}a1{x}" for x in range(3)])
                g.wait("vm", f"s{i}", [f"W{i+1}.0"] + ([f"X{(i+1)//2}"] if i % 2 == 1 else []))
                e("s_barrier")
                issue(((dma_w(i + 2, 0) if i == 0 else []) + dma_w(i + 2, 1) if i + 2 < 20 else []) + (dma_x(i // 2 + 2) if i % 2 == 0 and i // 2 + 2 < 10 else []))
            if n == NB2 and i < 19:
                g.drain(9); lastd[0] = n - 9
                g.wait("lg", f"r2{i}", [], drain_tags=[f"{i+1}a0{x}" for x in range(3)])
                g.wait("vm", f"t{i}", [f"W{i+1}.1"])
                e("s_barrier")
                if i + 3 < 20: issue(dma_w(i + 3, 0))
            if OPT["stl"] and n == NB1 + 1 and i in range(OPT["stl"], OPT["stl"] + 2 * OPT["stn"], 2):
                r = (i - OPT["stl"]) // 2
                e(f"""
s_lshr_b32 s{sT3}, s{sWAVE}, 1
s_cmp_eq_u32 s{sT3}, 0
s_cselect_b64 s[4:5], s[{sKd}:{sKd+1}], s[{sVd}:{sVd+1}]
s_cmp_eq_u32 s{sT3}, 2
s_cselect_b64 s[4:5], s[{sOd}:{sOd+1}], s[4:5]
s_and_b32 s{sT3}, s{sWAVE}, 1
s_mul_i32 s6, s{sT3}, {786432 // 2}
s_add_u32 s6, s6, {r * (786432 // 2 // OPT["stn"]) + (786432 // 2 // OPT["stn"]) - 64}
s_cmp_eq_u32 s{sWAVE}, 6
s_cselect_b64 s[4:5], s[{sPd}:{sPd+1}], s[4:5]
s_cselect_b32 s6, 0, s6
s_cmp_eq_u32 s{sWAVE}, 7
s_cselect_b64 s[4:5], s[24:25], s[4:5]
s_mul_i32 s{sT3}, s{sB}, {112*2560}
s_cselect_b32 s6, s{sT3}, s6
s_load_dword s99, s[4:5], s6
""")
            if OPT["pwo"] and n == 20 and i == OPT["pwo"]:
                nsh = 16 if OPT["map"] == 0 else 8
                per = 245760 * OPT["pwh"] // (8 * nsh)
                e(f"""
s_and_b32 s{sT3}, s{sB}, {nsh-1}
s_lshl_b32 s{sT3}, s{sT3}, 3
s_add_u32 s{sT3}, s{sT3}, s{sWAVE}
s_mul_i32 s{sT3}, s{sT3}, {per}
s_add_u32 s{sT3}, s{sT3}, {245760 * (4 - OPT["pwh"])}
v_mbcnt_lo_u32_b32 v251, -1, 0
v_mbcnt_hi_u32_b32 v251, -1, v251
v_min_u32 v251, {min(59, per // 128 - 1)}, v251
v_lshlrev_b32 v251, 7, v251
""")
                for r in range(max(1, per // 7680)):
                    g.vm("pf", f"buffer_load_dword v{JUNK}, v251, s[{sOd}:{sOd+3}], s{sT3} offen {OPT['pwf']}")
                    e(f"s_add_u32 s{sT3}, s{sT3}, 7680")
            if n == NB2 + 1 and i == 18:
                e(f"s_cmp_eq_u32 s{sTEAM}, 0")
                e("s_cbranch_scc1 qp_nokv")
                e(f"s_mul_i32 s{sKSO2}, s{sW4}, 3072")
                e(f"s_lshl_b32 s{sT3}, s{sW4}, 10")
                for u in range(N0 - 96):
                    a, bb = divmod(u, 3)
                    e(f"s_add_u32 m0, s{sT3}, {KVB + (u % NS) * 4096 - bb * 128}")
                    e(f"s_add_u32 s{sT1}, s{sKSO2}, {kv_tile(a) * TILE}")
                    srd = sKd if kv_kind(a) == "K" else sVd
                    e(f"buffer_load_dwordx4 v{PKV_}, s[{srd}:{srd+3}], s{sT1} offen offset:{bb*128} {OPT['kv']} lds")
                g.label("qp_nokv")
            tags = [t for t in (f"{i}b{rt}", f"{i}a{hh}{k}") if t not in seen]
            seen.update(tags)
            if tags: g.wait("lg", f"{i}m{n}", tags)
            mfma(e, AC(hh, rt, k), AF(i & 1, hh, k), BF(7 * i + rt), "0" if i == 0 else AC(hh, rt, k))
            if n == lastb[rt]:
                if rt + 4 < 7: b_read(i, rt + 4)
                elif i < 19: b_read(i + 1, rt - 3)
            if i < 19 and n in A0: a_read(i + 1, 0, A0.index(n))
            if i < 19 and n in A1: a_read(i + 1, 1, A1.index(n))
            if g.pend and (n - lastd[0]) % 42 >= (OPT["qd"] if len(g.pend) <= 3 else OPT["qd"] - 2):
                g.drain(1); lastd[0] = n
            if i == 19 and n >= 4: qcvt(n - 4)
    for n in range(38, 42): qcvt(n)
    stamp(e, 15, real=bool(OPT["rt"]))
    e("s_barrier")
    return g.rec

def t0_path(p, needs, nrt, tag):
    g = Gen(p, needs); e = g.e
    def ACC(rt, t): return rt * 48 + t * 4
    def Q(rt, j): return 96 + rt * 24 + j * 4
    def S(par, rt, kt=0): return 144 + par * 16 + rt * 8 + kt * 4
    def P(par, rt): return 176 + par * 8 + rt * 4
    def NEGM(rt): return 192 + rt * 4
    def LSUM(rt): return 200 + rt * 4
    def STG(rt, j): return 144 + (j * 2 + rt) * 4 if j < 5 else 192 + rt * 4
    ONES = 208
    FR0 = 212; NFR = 8
    def FR(a, f): return FR0 + ((a * 12 + f) % NFR) * 4
    KA = [244, 245]; VA = [246, 247, 248, 249]; QOA = 250
    TC = 251; T = [252, 253, 254, 255]
    HOLD = [48 + 4 * i for i in range(12)] + [156, 172, 180, 188, 196, 204]
    def rd_l(a, f):
        base = ((3 * a + f // 4) % NS) * 4096; tg = f"A{a%32}f{f}"
        if kv_kind(a) == "K":
            j, kt = divmod(f, 2)
            return [lambda: g.ld(tg, f"ds_read_b128 {v(FR(a,f),4)}, v{KA[j&1]} offset:{base+kt*2048}")]
        return [lambda hf=hf: g.ld(tg, f"ds_read_b64_tr_b16 {v(FR(a,f)+2*hf,2)}, v{VA[f&3]} offset:{base+hf*2048}") for hf in range(2)]
    def run(x):
        if callable(x): x()
        else: e(x)
    def cost(x): return 2 if isinstance(x, str) and x.startswith(("v_exp", "v_rcp")) else 1
    def step(key, a, mfs, valu=(), last=False, extra=None, v0=0):
        valu = list(valu)
        ngap = sum(len(mfs(f, 0)) for f in range(v0, 12))
        tot = sum(cost(x) for x in valu); done = 0; gap = 0
        for f in range(12):
            pos = a * 12 + f
            if extra and f in extra: extra[f]()
            if pos in XB_: e("s_barrier")
            reads = rd_l(a, f + LEAD) if f + LEAD < 12 else ([] if last else rd_l(a + 1, f + LEAD - 12))
            if not OPT["w2"]: g.wait("lg", f"{key}{f}", [f"A{a}f{f}"])
            elif f % 2 == 0: g.wait("lg", f"{key}{f}", [f"A{a}f{f}", f"A{a}f{f+1}"])
            ms = mfs(f, FR(a, f))
            for i, m in enumerate(ms):
                m()
                if reads: reads.pop(0)()
                if i == len(ms) - 1:
                    while reads: reads.pop(0)()
                if f >= v0:
                    gap += 1
                    while valu and done + cost(valu[0]) / 2 <= tot * gap / ngap:
                        done += cost(valu[0]); run(valu.pop(0))
        for x in valu: run(x)
    def mf_qk(par, zero):
        def m(f, fr):
            j, kt = divmod(f, 2)
            return [lambda rt=rt: mfma(e, S(par, rt, kt), fr, Q(rt, j), ("0" if zero else NEGM(rt)) if j == 0 else S(par, rt, kt)) for rt in range(nrt)]
        return m
    def onorm_l(j):
        out = []
        for rt in range(nrt):
            a = ACC(rt, 2 * j)
            out += [f"v_pk_mul_f32 {v(a+i,2)}, {v(a+i,2)}, {v(T[2*rt],2)}" for i in range(0, 8, 2)]
            out += [f"v_cvt_pk_bf16_f32 v{STG(rt,j)+i}, v{a+2*i}, v{a+2*i+1}" for i in range(4)]
        return out
    def mf_pv(par, first, last=False):
        def m(f, fr):
            out = []
            if f == (0 if last else 5):
                out += [lambda rt=rt: mfma(e, LSUM(rt), ONES, P(par, rt), "0" if first else LSUM(rt)) for rt in range(nrt)]
            return out + [lambda rt=rt: mfma(e, ACC(rt, f), fr, P(par, rt), "0" if first else ACC(rt, f)) for rt in range(nrt)]
        return m
    def sm(par, lo=0, hi=None):
        grp = [(rt, i) for rt in range(nrt) for i in range(4)][lo:hi]
        seq = []
        for n, (rt, i) in enumerate(grp):
            a, b = T[(2 * n) % 4], T[(2 * n + 1) % 4]
            r = S(par, rt) + 2 * i
            seq += [f"v_exp_f32 v{a}, v{r}", f"v_exp_f32 v{b}, v{r+1}"]
            if n > 0: seq.append(prev)
            prev = f"v_cvt_pk_bf16_f32 v{P(par,rt)+i}, v{a}, v{b}"
        return seq + [prev] if grp else []
    def chk_l(par):
        p0 = P(par, 0)
        out = [f"v_or3_b32 v{TC}, v{p0}, v{p0+1}, v{p0+2}"]
        if nrt == 2:
            out += [f"v_or3_b32 v{TC}, v{TC}, v{p0+3}, v{p0+4}", f"v_or3_b32 v{TC}, v{TC}, v{p0+5}, v{p0+6}"]
        out += [f"v_bitop3_b32 v{TC}, v{TC}, v{p0+4*nrt-1}, s{sBIT} bitop3:0xa8", f"v_cmp_ne_u32 vcc, 0, v{TC}"]
        return out
    def chk_branch(par, key):
        e(f"s_cbranch_vccz t0_ok{key}_{tag}")
        if not OPT["norare"]: e(f"s_call_b64 s[{sRET}:{sRET+1}], t0_rare{par}_{tag}")
        g.label(f"t0_ok{key}_{tag}")
    def rowmax(par, rt, t, t2):
        r = S(par, rt)
        e(f"""
v_max3_f32 v{t}, v{r}, v{r+1}, v{r+2}
v_max3_f32 v{t}, v{t}, v{r+3}, v{r+4}
v_max3_f32 v{t}, v{t}, v{r+5}, v{r+6}
v_max_f32 v{t}, v{t}, v{r+7}
v_mov_b32 v{t2}, v{t}
v_permlane32_swap_b32 v{t2}, v{t}
v_max_f32 v{t}, v{t}, v{t2}
v_mov_b32 v{t2}, v{t}
v_permlane16_swap_b32 v{t2}, v{t}
v_max_f32 v{t}, v{t}, v{t2}
v_add_f32 v{t}, {hex(f2u(7.0))}, v{t}
""")
    for rt in range(7):
        for k in range(3): e(f"ds_write_b64 v{QW[k]}, {v(QAC(0,rt,k),2)} offset:{QO+rt*1024}")
    for k in range(3):
        e(f"""
s_mul_i32 s{sT1}, s{sW4}, 3
s_add_u32 s{sT1}, s{sT1}, {k}
s_lshr_b32 s{sT1}, s{sT1}, 1
s_cmp_lt_u32 s{sT1}, 3
s_cselect_b32 s{sT3}, {B2 - (T1R + 6144 - 18432)}, 0
s_add_u32 s{sT3}, s{sT3}, {T1R + 6144 - 18432}
s_lshl_b32 s{sT2}, s{sT1}, 10
s_sub_u32 s{sT2}, s{sT3}, s{sT2}
v_add_u32 v{240+k}, s{sT2}, v{QW[k]}
s_mul_i32 s{sT2}, s{sT1}, 6144
s_sub_u32 s{sT2}, {T1R}, s{sT2}
v_add_u32 v{243+k}, s{sT2}, v{QW[k]}
""")
    for rt in range(7):
        for k in range(3): e(f"ds_write_b64 v{(240 if rt < 6 else 243)+k}, {v(QAC(1,rt,k),2)} offset:{rt*1024 if rt < 6 else 0}")
    e("s_waitcnt lgkmcnt(0)")
    lane_regs(e)
    e(f"""
s_lshl_b32 s{sT1}, s{sWAVE}, 11
s_add_u32 s{sT1}, s{sT1}, {QO}
v_lshl_add_u32 v{QOA}, v2, 4, s{sT1}
v_lshrrev_b32 v8, 1, v3
v_and_b32 v8, 3, v8
v_lshlrev_b32 v8, 1, v8
v_xor_b32 v8, v4, v8
v_lshlrev_b32 v8, 4, v8
v_lshl_add_u32 v8, v3, 7, v8
v_add_u32 v{KA[0]}, {KVB}, v8
v_xor_b32 v{KA[1]}, 64, v{KA[0]}
v_lshrrev_b32 v8, 1, v5
v_and_b32 v8, 3, v8
v_lshlrev_b32 v8, 5, v8
v_lshl_add_u32 v8, v5, 7, v8
v_lshl_add_u32 v8, v7, 3, v8
v_add_u32 v{VA[0]}, {KVB}, v8
v_xor_b32 v{VA[1]}, 32, v{VA[0]}
v_xor_b32 v{VA[2]}, 64, v{VA[0]}
v_xor_b32 v{VA[3]}, 96, v{VA[0]}
s_mov_b32 s{sBIT}, 0x40004000
s_mov_b32 s{sSLOT}, 1
""")
    for i in range(4): e(f"v_mov_b32 v{ONES+i}, 0x3f803f80")
    H = 4 if (nrt == 2 and OPT["psplit"]) else (2 if OPT["psplit"] else 0)
    for unit in range(2):
        if unit >= 1: g.mute += 1
        g.label(f"t0_unit_{tag}")
        e("s_barrier")
        if not g.mute: stamp_slot(e)
        e(f"s_cmp_gt_u32 s{sSLOT}, 3")
        e(f"s_cbranch_scc1 t0_q3_{tag}")
        for j in range(6):
            for rt in range(nrt): e(f"ds_read_b128 {v(Q(rt,j),4)}, v{QOA} offset:{(j*7+rt)*1024}")
        e(f"s_cmp_lg_u32 s{sSLOT}, 1")
        e(f"s_cbranch_scc1 t0_w_{tag}")
        if nrt == 1:
            for j in range(6): e(f"ds_read_b128 {v(Q(1,j),4)}, v{QOA} offset:{T1R-6144+j*1024}")
            for n in range(18): e(f"ds_read_b128 {v(HOLD[n],4)}, v{QOA} offset:{T1R+n*1024}")
        e(f"s_branch t0_noo_{tag}")
        g.label(f"t0_q3_{tag}")
        e(f"s_cmp_eq_u32 s{sSLOT}, 5")
        e(f"s_cbranch_scc1 t0_w_{tag}")
        if nrt == 1:
            for i in range(24): e(f"v_mov_b32 v{Q(0,0)+i}, v{Q(1,0)+i}")
        else:
            e(f"v_add_u32 v{TC}, {B2}, v{QOA}")
            for j in range(6):
                for rt in range(nrt):
                    if j < 3: e(f"ds_read_b128 {v(Q(rt,j),4)}, v{TC} offset:{(j*6+rt)*1024}")
                    else: e(f"ds_read_b128 {v(Q(rt,j),4)}, v{QOA} offset:{(j*7+rt)*1024}")
        g.label(f"t0_w_{tag}")
        e("s_waitcnt lgkmcnt(0)")
        for j in range(6):
            for rt in range(nrt): e(f"ds_write_b128 v{QOA}, {v(STG(rt,j),4)} offset:{(j*7+rt)*1024}")
        e(f"s_cmp_eq_u32 s{sSLOT}, 5")
        e(f"s_cbranch_scc1 t0_exit_{tag}")
        g.label(f"t0_noo_{tag}")
        for f in range(LEAD):
            for x in rd_l(0, f): x()
        step("a0_", 0, mf_qk(0, True), extra={1: lambda: e("s_barrier")})
        for rt in range(nrt):
            rowmax(0, rt, T[0], T[1])
            for i in range(4): e(f"v_sub_f32 v{NEGM(rt)+i}, 0, v{T[0]}")
            for i in range(8): e(f"v_sub_f32 v{S(0,rt)+i}, v{S(0,rt)+i}, v{T[0]}")
        for t in range(15):
            step(f"q{t}_", 2 * t + 1, mf_qk((t + 1) & 1, False), valu=sm(t & 1, H if t else 0) + chk_l(t & 1))
            chk_branch(t & 1, f"q{t}")
            va = sm((t + 1) & 1, 0, H)
            if t == 14: va = sm(1) + chk_l(1)
            step(f"p{t}_", 2 * t + 2, mf_pv(t & 1, t == 0), valu=va, v0=1)
        chk_branch(1, "q15")
        rc = [f"v_rcp_f32 v{T[i]}, v{LSUM(i//2)}" for i in range(2 * nrt)]
        ex = {3: lambda: [e(x) for x in rc]}
        for j in range(4): ex[4 + 2 * j] = lambda j=j: [e(x) for x in onorm_l(j)]
        step("p15_", 31, mf_pv(1, False, True), last=True, extra=ex)
        for x in onorm_l(4) + onorm_l(5): e(x)
        if nrt == 1:
            e(f"s_cmp_lg_u32 s{sSLOT}, 3")
            e("s_cbranch_scc1 t0_nohold")
            e(f"v_subrev_u32 v{TC}, 6144, v{QOA}")
            for n in range(18): e(f"ds_write_b128 v{TC}, {v(HOLD[n],4)} offset:{((3+n//6)*7+n%6)*1024}")
            e("s_waitcnt lgkmcnt(0)")
            g.label("t0_nohold")
        e(f"""
s_add_u32 s{sSLOT}, s{sSLOT}, 1
s_branch t0_unit_{tag}
""")
        if unit >= 1: g.mute -= 1
    g.label(f"t0_exit_{tag}")
    e("s_branch t0_final")
    for par in range(2):
        g.label(f"t0_rare{par}_{tag}")
        for rt in range(nrt):
            t, t2 = TC, T[0]
            rowmax(par, rt, t, t2)
            e(f"v_max_f32 v{t}, 0, v{t}")
            for i in range(4): e(f"v_sub_f32 v{NEGM(rt)+i}, v{NEGM(rt)+i}, v{t}")
            for pp in range(2):
                for i in range(8): e(f"v_sub_f32 v{S(pp,rt)+i}, v{S(pp,rt)+i}, v{t}")
            e(f"v_exp_f32 v{t}, -v{t}")
            for i in range(4): e(f"v_mul_f32 v{LSUM(rt)+i}, v{LSUM(rt)+i}, v{t}")
            for i in range(48): e(f"v_mul_f32 v{ACC(rt,0)+i}, v{ACC(rt,0)+i}, v{t}")
        for x in sm(par): e(x)
        e(f"s_setpc_b64 s[{sRET}:{sRET+1}]")
    return g.rec


def t0_final(p, needs):
    g = Gen(p, needs); e = g.e
    g.label("t0_final")
    op = OpEngine(g, lambda tt: 2 * (tt - 42), 56, 112, 128, [244, 245], 246, [247, 248], KVB, sLW, 2)
    op.fl = OPT["wo5"]; op.early = OPT["early"] >> 1
    op.addr_setup()
    e(f"""
s_mul_i32 s{sOB}, s{sW4}, {8*1280}
s_add_u32 s{sOB}, s{sOB}, {3*245760}
s_lshl_b32 s{sLW}, s{sW4}, 11
s_mov_b32 s{sSLO}, 0x01000c0c
s_mov_b32 s{sSHI}, 0x03020c0c
s_lshl_b32 s{sT1}, s{sW4}, 10
s_add_u32 s{sT1}, s{sT1}, {KVB + 32768}
v_add_u32 v249, s{sT1}, v246
""")
    for i in range(18, 22):
        for f in op.dma(i): f()
    def pk_read(ps):
        for rt in range(7): g.ld("pk", f"ds_read_b128 {v(op.PK(ps*14+rt*2),4)}, v249 offset:{rt*4096}")
    e("s_waitcnt lgkmcnt(0)"); g.lq[:] = []
    e("s_barrier")
    pk_read(3)
    e("s_waitcnt lgkmcnt(0)"); g.lq[:] = []
    for k in range(14):
        for x in op.unpack_l(op.AC(k), op.PK(42 + k)): e(x)
    g.wait("vm", "in", ["O18"])
    e("s_barrier")
    op.first_reads(18)
    def tick(i):
        op.flush_pq()
        g.wait("vm", f"t{i}", [f"O{i+1}"])
        e("s_barrier")
        if i + 4 < 30:
            for f in op.dma(i + 4): f()
    for i in range(18, 30):
        op.step("f", i, 29, tick, store=[3], hooks={5: lambda: pk_read(4)} if i == 20 else None)
    op.finish()
    for i in range(5): e("s_barrier")
    e("s_branch k1_final")
    return g.rec

def t1_path(p, needs):
    g = Gen(p, needs); e = g.e
    def PK(tt): return 2 * tt
    def Q2(k): return PK(56) + 2 * k if k < 14 else 236 + 2 * (k - 14)
    OB = 252
    op = OpEngine(g, PK, 140, 196, 212, [250, 251], OB, [253, 254], T1R, sLW, 0)
    AC, AF, BF = op.AC, op.AF, op.BF
    def dma_sub(u):
        a, bb = divmod(u, 3)
        srd = sKd if kv_kind(a) == "K" else sVd
        def f():
            if OPT["kw"] and st.get("mixed"):
                idx = [i for i, t in enumerate(g.vq) if t.startswith("U")]
                n = len(g.vq) - 1 - idx[-OPT["kw"]] if len(idx) >= OPT["kw"] else 999
                k = ("vm", f"kw{u}")
                g.rec[k] = min(g.rec.get(k, 999), n)
                val = g.needs.get(k, n)
                if val != 999:
                    e(f"s_waitcnt vmcnt({val})")
                    del g.vq[:len(g.vq) - val if val < len(g.vq) else 0]
            e(f"s_add_u32 m0, s{sL1}, {KVB + (u % NS) * 4096 - bb * 128}")
            e(f"s_add_u32 s{sT1}, s{sKSO2}, {kv_tile(a) * TILE}")
            off = f"offset:{bb*128} " if bb else ""
            g.vm(f"U{u % 96}", f"buffer_load_dwordx4 v{PKV_}, s[{srd}:{srd+3}], s{sT1} offen {off}{OPT['kv']} lds")
        return f
    st = dict(pub=0, iss=0)
    def kv_tags(k):
        upto = XB_[k + 1] if k < NX - 1 else 384
        n = -(-(upto + LEAD) // 4) if upto < 384 else 96
        tags = [f"U{u}" for u in range(st["pub"], n)]
        st["pub"] = max(st["pub"], n)
        return tags
    def kv_issue(k):
        out = []
        while k in KVT and 4 * (st["iss"] - KL) + 4 <= XB_[k]:
            out.append(dma_sub(st["iss"])); st["iss"] += 1
        return out
    def touch_o(t):
        nsh = 16 if OPT["map"] == 0 else 8
        per = 245760 // (4 * nsh)
        e(f"""
s_and_b32 s{sT1}, s{sB}, {nsh-1}
s_lshl_b32 s{sT1}, s{sT1}, 2
s_add_u32 s{sT1}, s{sT1}, s{sW4}
s_mul_i32 s{sT1}, s{sT1}, {per}
s_sub_u32 s{sT2}, s{sSLOT}, 1
s_mul_i32 s{sT2}, s{sT2}, 245760
s_add_u32 s{sT1}, s{sT1}, s{sT2}
s_mov_b32 m0, {SPARE}
v_lshrrev_b32 v{t}, 4, v{OB}
v_min_u32 v{t}, {per//128-1}, v{t}
v_lshlrev_b32 v{t}, 7, v{t}
""")
        g.vm("pf", f"buffer_load_dword v{t}, s[{sOd}:{sOd+3}], s{sT1} offen {OPT['tf']} lds")
    NEXT = {26: 2, 27: 3, 28: 0, 29: 1}
    def tick(i):
        waits = ([f"O{i+1}"] if i < 29 else []) + kv_tags(i)
        op.flush_pq()
        if waits: g.wait("vm", f"o{i}", waits)
        if OPT["vcap"]: e(f"s_waitcnt vmcnt({OPT['vcap']})")
        e("s_barrier")
        io = []
        if not OPT["burst"]:
            if i == 26: io.append(lambda: e(f"s_add_u32 s{sOB}, s{sOB}, 245760"))
            io += op.dma(NEXT.get(i, i + 4))
        elif i % 2 == 1:
            if i == 27: io.append(lambda: e(f"s_add_u32 s{sOB}, s{sOB}, 245760"))
            io += op.dma(NEXT.get(i - 1, i + 3)) + op.dma(NEXT.get(i, i + 4))
        items = kv_issue(i) + io if OPT["kvfirst"] and i < 28 else io + kv_issue(i)
        if OPT["near"] and i == OPT["near"]: items.append(lambda: touch_o(AF(i + 1, 0) if False else 249))
        for f in items[:OPT["now0"]]: f()
        items = items[OPT["now0"]:]
        for j, f in enumerate(items): op.pq.append((op.clock + OPT["vpost"] + (j * OPT["span"]) // len(items), f))
    def q_write(reg):
        for rt in range(7):
            for k in range(3): e(f"ds_write_b64 v{AC(0)+k}, {v(reg(rt,k),2)} offset:{QO+rt*1024}")
        e("s_waitcnt lgkmcnt(0)")
    def q_addr():
        t = AC(1)
        e(f"v_lshrrev_b32 v{t}, 5, v{OB}")
        e(f"v_and_b32 v{t}, 8, v{t}")
        e(f"v_add_u32 v{t}, v{t}, v{OB}")
        for k in range(3):
            e(f"""
s_mul_i32 s{sT1}, s{sW4}, 3
s_add_u32 s{sT1}, s{sT1}, {k}
s_lshr_b32 s{sT2}, s{sT1}, 1
s_mul_i32 s{sT2}, s{sT2}, 7168
s_and_b32 s{sT1}, s{sT1}, 1
s_lshl_b32 s{sT1}, s{sT1}, 3
v_xor_b32 v{AC(0)+k}, s{sT1}, v{t}
v_add_u32 v{AC(0)+k}, s{sT2}, v{AC(0)+k}
""")

    e(f"""
s_mul_i32 s{sOB}, s{sW4}, {8*1280}
s_lshl_b32 s{sLW}, s{sW4}, 11
s_lshl_b32 s{sL1}, s{sW4}, 10
s_mov_b32 s{sSLOT}, 1
s_mov_b32 s{sRX}, 0x01000c0c
s_mov_b32 s{sRX+1}, 0x03020c0c
""")
    for u in range(N0 - 96):
        g.vq.append(f"U{u}"); g.issued[f"U{u}"] = 1
    st.update(pub=0, iss=N0 - 96)
    g.wait("vm", "i_t0", kv_tags(-1))
    e("s_barrier")
    stamp_slot(e)
    e("s_barrier")
    for rt in range(7):
        for k in range(3): e(f"ds_write_b64 v{QW[k]}, {v(QAC(0,rt,k),2)} offset:{QO+rt*1024}")
    def setup():
        e("s_waitcnt lgkmcnt(0)")
        for k in range(21):
            for x in range(2): e(f"v_mov_b32 v{2*k+x}, v{QAC(1,k//3,k%3)+x}")
        for k in range(21):
            for x in range(2): e(f"v_mov_b32 v{Q2(k)+x}, v{2*k+x}")
    def setup0():
        e("s_waitcnt lgkmcnt(0)")
        op.addr_setup()
        setup()
    task = {0: setup0}
    if OPT["touch"]: task[4] = lambda: touch_o(AF(0, 0))
    for k in range(NX):
        w = kv_tags(k)
        if w: g.wait("vm", f"i{k}", w)
        e("s_barrier")
        for f in kv_issue(k): f()
        if k in task: task[k]()
        if k >= 26:
            for f in op.dma(NEXT[k]): f()
    for s in range(2, 5):
        if s != 2: g.mute += 1
        g.label("t1_slot")
        assert st["iss"] == N0
        st.update(pub=0, iss=N0 - 96, mixed=1)
        e(f"""
s_add_u32 s{sSLOT}, s{sSLOT}, 1
s_add_u32 s{sKSO2}, s{sKSO2}, 196608
s_cmp_eq_u32 s{sSLOT}, 2
s_cselect_b32 s{sSLO}, 0x0c0c0c0c, s{sRX}
s_cselect_b32 s{sSHI}, 0x0c0c0c0c, s{sRX+1}
""")
        g.wait("vm", "t0", kv_tags(-1))
        e("s_barrier")
        if not g.mute: stamp_slot(e)
        if OPT["touch"] and not OPT["near"]: touch_o(AF(0, 0))
        for k in range(14):
            for x in op.unpack_l(AC(k), PK(k)): e(x)
        g.wait("vm", "o_in", ["O0"])
        e("s_barrier")
        stamp_if(e, 12, OPT["ps"])
        op.first_reads(0)
        for i in range(30): op.step("m", i, 29, tick)
        stamp_if(e, 13, OPT["ps"])
        tick(29)
        op.finish()
        e(f"s_cmp_lg_u32 s{sSLOT}, 2")
        e("s_cbranch_scc1 t1_noq2")
        for k in range(3): e(f"v_mov_b32 v{BF(0)+k}, v{AC(0)+k}")
        e(f"v_mov_b32 v{BF(0)+3}, v{AC(1)}")
        q_addr()
        q_write(lambda rt, k: Q2(rt * 3 + k))
        for k in range(3): e(f"v_mov_b32 v{AC(0)+k}, v{BF(0)+k}")
        e(f"v_mov_b32 v{AC(1)}, v{BF(0)+3}")
        g.label("t1_noq2")
        for n in range(14):
            for x in op.pack_l(PK(56 + n), AC(n)): e(x)
        e(f"s_cmp_lg_u32 s{sSLOT}, 4")
        e("s_cbranch_scc1 t1_slot")
        if s != 2: g.mute -= 1
    g.label("t1_last")
    op.fl = OPT["wo5"]; op.nr = OPT["r5"]; op.early = OPT["early"] & 1
    R5 = op.nr
    e(f"""
s_mov_b32 s{sSLOT}, 5
s_lshl_b32 s{sT1}, s{sW4}, 10
s_add_u32 s{sT1}, s{sT1}, {KVB + 32768}
v_add_u32 v249, s{sT1}, v{OB}
""")
    def pk_write(ps):
        for rt in range(7): g.ld("pk", f"ds_write_b128 v249, {v(PK(ps*14+rt*2),4)} offset:{rt*4096}")
    for k in range(14):
        for x in op.unpack_l(AC(k), PK(k)): e(x)
    e("s_waitcnt vmcnt(0)"); g.vq[:] = []
    e("s_barrier")
    stamp_slot(e)
    for i in range(4, R5):
        for f in op.dma(i): f()
    pk_write(3)
    e("s_waitcnt lgkmcnt(0)"); g.lq[:] = []
    e("s_barrier")
    stamp_if(e, 12, OPT["ps"])
    g.issued.pop("O0")
    op.first_reads(0)
    def tick5(i):
        op.flush_pq()
        if i == 2: g.wait("lg", "pkw", ["pk"])
        g.wait("vm", f"f{i}", [f"O{i+1}"])
        e("s_barrier")
        if i + R5 < 18:
            for f in op.dma(i + R5): f()
    g.issued.pop("pk")
    for i in range(18):
        op.step("f", i, 17, tick5, store=[0], hooks={5: lambda: pk_write(4)} if i == 1 else None)
    op.finish()
    stamp_if(e, 13, OPT["ps"])
    g.label("t1_exit")
    return g.rec

def final_reduce(p):
    e = p
    sG, sMASK, sQ, sBL = 4, 5, 6, 7
    sD, sA, sOUT = 8, 32, 36
    e.label("k1_final")
    if OPT["two"]:
        if OPT["prof"]: e("s_waitcnt vmcnt(0)")
        stamp(e, 10); stamp(e, 11, real=True)
        dump_stamps(e, 28, 64 << 20, 8)
        return
    e(f"""
s_waitcnt vmcnt(0)
s_barrier
""")
    stamp(e, 9, real=bool(OPT["rt"]))
    e(f"""
s_and_b32 s{sG}, s2, 7
s_cmp_lt_u32 s{sG}, 4
s_cselect_b32 s{sG}, 0, 16
s_add_u32 s{sG}, s{sG}, s{sB}
v_mbcnt_lo_u32_b32 v2, -1, 0
v_mbcnt_hi_u32_b32 v2, -1, v2
s_cmp_gt_u32 s{sWAVE}, 1
s_cbranch_scc1 k1_fw
s_mov_b32 s{sD}, s26
s_mov_b32 s{sD+1}, s27
s_mov_b32 s{sD+2}, 256
s_mov_b32 s{sD+3}, 0x20000
s_lshl_b32 s{sT1}, s{sG}, 2
v_mov_b32 v3, 0
v_mov_b32 v4, 1
s_cmp_eq_u32 s{sWAVE}, 0
s_cbranch_scc1 k1_w0
s_mov_b64 exec, 1
buffer_atomic_add v4, v3, s[{sD}:{sD+3}], s{sT1} offen offset:128 sc0 sc1
s_waitcnt vmcnt(0)
v_readfirstlane_b32 s{sT2}, v4
s_and_b32 s{sT3}, s{sT2}, 0xff
s_bfe_u32 s{sT2}, s{sT2}, 0x80008
s_cmp_eq_u32 s{sT3}, 7
s_cselect_b32 s{sT2}, s{sT2}, 0
v_mov_b32 v4, s{sT2}
ds_write_b32 v3, v4 offset:4
s_waitcnt lgkmcnt(0)
s_mov_b64 exec, -1
s_branch k1_fw
k1_w0:
s_lshl_b32 s{sMASK}, 1, s{sQUAD}
s_lshl_b32 s{sT2}, s{sG}, 10
s_add_u32 s{sT2}, s{sT2}, {FLAG0}
s_add_u32 s{sA}, s28, s{sT2}
s_addc_u32 s{sA+1}, s29, 0
s_mov_b32 s{sA+2}, 1024
s_mov_b32 s{sA+3}, 0x20000
s_lshl_b32 s{sT2}, s{sQUAD}, 7
s_mov_b64 exec, 1
buffer_store_dword v4, v3, s[{sA}:{sA+3}], s{sT2} offen sc1
s_mov_b64 exec, 0xff
v_lshlrev_b32 v5, 7, v2
s_mov_b32 s{sCTR}, 0
k1_poll:
buffer_load_dword v6, v3, s[{sD}:{sD+3}], s{sT1} offen sc1
buffer_load_dword v4, v5, s[{sA}:{sA+3}], 0 offen sc1
s_waitcnt vmcnt(1)
v_cmp_ne_u32 vcc, 8, v6
s_cbranch_vccnz k1_again
k1_poll2:
s_waitcnt vmcnt(0)
v_cmp_ne_u32 vcc, 1, v4
s_cbranch_vccz k1_go
s_add_u32 s{sCTR}, s{sCTR}, 1
s_cmp_lt_u32 s{sCTR}, {OPT['spin']}
s_cbranch_scc0 k1_late
buffer_load_dword v4, v5, s[{sA}:{sA+3}], 0 offen sc1
s_branch k1_poll2
k1_again:
s_waitcnt vmcnt(0)
s_add_u32 s{sCTR}, s{sCTR}, 1
s_cmp_lt_u32 s{sCTR}, {OPT['spin']}
s_cbranch_scc1 k1_poll
k1_late:
s_mov_b64 exec, 1
s_lshl_b32 s{sT2}, s{sMASK}, 8
v_mov_b32 v4, s{sT2}
buffer_atomic_or v4, v3, s[{sD}:{sD+3}], s{sT1} offen offset:128 sc0 sc1
s_waitcnt vmcnt(0)
v_readfirstlane_b32 s{sT2}, v4
s_and_b32 s{sT2}, s{sT2}, 0xff
s_cmp_eq_u32 s{sT2}, 8
s_cselect_b32 s{sMASK}, s{sMASK}, 0
k1_go:
s_mov_b64 exec, 1
v_mov_b32 v4, s{sMASK}
ds_write_b32 v3, v4
s_waitcnt lgkmcnt(0)
s_mov_b64 exec, -1
k1_fw:
s_mul_i32 s{sT1}, s{sG}, {8*PART_CU}
s_add_u32 s{sT1}, s{sT1}, {PART0}
s_add_u32 s{sA}, s28, s{sT1}
s_addc_u32 s{sA+1}, s29, 0
s_mov_b32 s{sA+2}, {8*PART_CU}
s_mov_b32 s{sA+3}, 0x20000
s_mul_i32 s{sT1}, s{sB}, {112*2560}
s_lshr_b32 s{sT2}, s{sG}, 4
s_mul_i32 s{sT2}, s{sT2}, 1280
s_add_u32 s{sT1}, s{sT1}, s{sT2}
s_add_u32 s{sOUT}, s24, s{sT1}
s_addc_u32 s{sOUT+1}, s25, 0
s_sub_u32 s{sOUT+2}, {112*2560}, s{sT2}
s_mov_b32 s{sOUT+3}, 0x20000
v_lshlrev_b32 v3, 4, v2
v_and_b32 v4, 15, v2
v_lshrrev_b32 v5, 4, v2
v_mul_u32_u24 v6, 272, v4
v_lshl_add_u32 v6, v5, 3, v6
s_mul_i32 s{sT2}, s{sTEAM}, {3*4352}
s_add_u32 s{sT2}, s{sT2}, 2048
s_lshl_b32 s{sT1}, s{sW4}, 6
s_add_u32 s{sT1}, s{sT1}, s{sT2}
v_add_u32 v6, s{sT1}, v6
s_mul_i32 s{sT1}, s{sW4}, {4*272}
s_add_u32 s{sT1}, s{sT1}, s{sT2}
v_mul_u32_u24 v7, 272, v5
v_lshl_add_u32 v7, v4, 4, v7
v_add_u32 v7, s{sT1}, v7
v_mul_u32_u24 v5, 2560, v5
v_lshl_add_u32 v4, v4, 4, v5
v_mov_b32 v5, 0
s_barrier
ds_read_b64 v[8:9], v5
s_waitcnt lgkmcnt(0)
v_or_b32 v5, v8, v9
v_readfirstlane_b32 s{sMASK}, v5
""")
    stamp(e, 8, real=bool(OPT["rt"]))
    e(f"""
k1_slice:
s_cmp_eq_u32 s{sMASK}, 0
s_cbranch_scc1 k1_done
s_ff1_i32_b32 s{sQ}, s{sMASK}
s_bitset0_b32 s{sMASK}, s{sQ}
s_lshl_b32 s{sBL}, s{sTEAM}, 3
s_add_u32 s{sBL}, s{sBL}, s{sQ}
""")
    for k in range(3):
        e(f"""
s_add_u32 s{sT1}, s{sBL}, {16*k}
s_mul_i32 s{sT2}, s{sW4}, 35
s_add_u32 s{sT2}, s{sT2}, s{sT1}
s_lshl_b32 s{sT2}, s{sT2}, 10
s_cmp_lt_u32 s{sT1}, 35
s_cselect_b32 s{sT2}, s{sT2}, {8*PART_CU}
""")
        for q in range(8):
            r = 8 + 32 * k + 4 * q
            e(f"buffer_load_dwordx4 {v(r,4)}, v3, s[{sA}:{sA+3}], s{sT2} offen {OPT['rd']}")
            if q < 7: e(f"s_add_u32 s{sT2}, s{sT2}, {PART_CU}")
        e(f"""
s_mul_i32 s{sT2}, s{sT1}, 37
s_lshr_b32 s{sT2}, s{sT2}, 8
s_mul_i32 s{sT3}, s{sT2}, 7
s_sub_u32 s{sT3}, s{sT1}, s{sT3}
s_lshl_b32 s{sT2}, s{sT2}, 8
s_mul_i32 s{sT3}, s{sT3}, {16*2560}
s_add_u32 s{sT2}, s{sT2}, s{sT3}
s_mul_i32 s{sT3}, s{sW4}, {4*2560}
s_add_u32 s{sT2}, s{sT2}, s{sT3}
s_cmp_lt_u32 s{sT1}, 35
s_cselect_b32 s{12+k}, s{sT2}, 0x1000000
""")
    for k in range(3):
        for q in range(8):
            e(f"s_waitcnt vmcnt({23-8*k-q})")
            if OPT["fs"] and (k, q) in ((0, 0), (0, 7), (2, 7)): stamp(e, {(0, 0): 12, (0, 7): 13, (2, 7): 14}[(k, q)], real=True)
            for i in range(4):
                r = 8 + 32 * k + 4 * q + i
                if q == 0:
                    e(f"v_lshlrev_b32 v{104+2*i}, 16, v{r}")
                    e(f"v_and_b32 v{105+2*i}, 0xffff0000, v{r}")
                else:
                    e(f"v_lshlrev_b32 v112, 16, v{r}")
                    e(f"v_and_b32 v113, 0xffff0000, v{r}")
                    e(f"v_add_f32 v{104+2*i}, v{104+2*i}, v112")
                    e(f"v_add_f32 v{105+2*i}, v{105+2*i}, v113")
        for i in range(4): e(f"v_cvt_pk_bf16_f32 v{116+4*k+i}, v{104+2*i}, v{105+2*i}")
        e(f"ds_write_b64 v6, {v(116+4*k,2)} offset:{k*4352}")
        e(f"ds_write_b64 v6, {v(118+4*k,2)} offset:{k*4352+32}")
    e("s_waitcnt lgkmcnt(0)")
    e("s_barrier")
    if OPT["fs"]: stamp(e, 15, real=True)
    for k in range(3): e(f"ds_read_b128 {v(128+4*k,4)}, v7 offset:{k*4352}")
    for k in range(3):
        e(f"s_waitcnt lgkmcnt({2-k})")
        e(f"buffer_store_dwordx4 {v(128+4*k,4)}, v4, s[{sOUT}:{sOUT+3}], s{12+k} offen")
    e("""
s_barrier
s_branch k1_slice
k1_done:
""")
    if OPT["prof"]: e("s_waitcnt vmcnt(0)")
    stamp(e, 10); stamp(e, 11, real=True)
    dump_stamps(e, 28, 64 << 20, 8)

def build(needs):
    p = Prog()
    p(f"""
.globl {NAME}_kernel
.p2align 8
.type {NAME}_kernel,@function
{NAME}_kernel:
s_cmp_ge_u32 s2, 256
s_cbranch_scc1 k1_end
s_load_dwordx16 s[4:19], s[0:1], 0
s_load_dwordx8 s[20:27], s[0:1], 64
s_load_dwordx2 s[28:29], s[0:1], 96
v_lshrrev_b32 v1, 6, v0
v_and_b32 v2, 63, v0
v_readfirstlane_b32 s{sWAVE}, v1
s_and_b32 s{sT1}, s2, 7
s_lshr_b32 s{sT2}, s2, 3
""")
    if OPT["map"] == 0:
        p(f"""
s_and_b32 s{sQUAD}, s{sT1}, 3
s_lshl_b32 s{sQUAD}, s{sQUAD}, 1
s_and_b32 s{sB}, s{sT2}, 1
s_add_u32 s{sQUAD}, s{sQUAD}, s{sB}
s_lshr_b32 s{sB}, s{sT2}, 1
""")
    else:
        p(f"""
s_and_b32 s{sQUAD}, s{sT1}, 1
s_lshl_b32 s{sQUAD}, s{sQUAD}, 2
s_and_b32 s{sB}, s{sT2}, 3
s_add_u32 s{sQUAD}, s{sQUAD}, s{sB}
s_and_b32 s{sB}, s{sT1}, 2
s_lshl_b32 s{sB}, s{sB}, 2
s_lshr_b32 s{sT2}, s{sT2}, 2
s_add_u32 s{sB}, s{sB}, s{sT2}
""")
    p(f"""
s_and_b32 s{sW4}, s{sWAVE}, 3
s_lshr_b32 s{sTEAM}, s{sWAVE}, 2
s_mul_i32 s{sLW}, s{sW4}, 3072
s_mov_b32 s{sKd+2}, {0 if OPT['nokv'] else 786432}
s_mov_b32 s{sKd+3}, 0x20000
s_mov_b32 s{sVd+2}, {0 if OPT['nokv'] else 786432}
s_mov_b32 s{sVd+3}, 0x20000
s_mov_b32 s{sWd+3}, 0x20000
s_mov_b32 s{sOd+2}, {0 if OPT['now'] else 983040}
s_mov_b32 s{sOd+3}, 0x20000
s_mov_b32 s{sXd+2}, {0 if OPT['nox'] else 143360}
s_mov_b32 s{sXd+3}, 0x20000
s_mov_b32 s{sPd+2}, {35840+QO}
s_mov_b32 s{sPd+3}, 0x20000
s_waitcnt lgkmcnt(0)
s_cmp_lt_u32 s{sT1}, 4
s_cselect_b64 s[4:5], s[4:5], s[14:15]
s_cselect_b64 s[6:7], s[6:7], s[16:17]
s_cselect_b64 s[8:9], s[8:9], s[18:19]
s_cselect_b64 s[10:11], s[10:11], s[20:21]
s_cselect_b64 s[12:13], s[12:13], s[22:23]
s_cselect_b32 s{sT3}, 0, 16
s_mul_i32 s{sT2}, s{sB}, 143360
s_add_u32 s{sXd}, s4, s{sT2}
s_addc_u32 s{sXd+1}, s5, 0
s_mul_i32 s{sT2}, s{sQUAD}, 1536
s_add_u32 s{sWd}, s10, s{sT2}
s_addc_u32 s{sWd+1}, s11, 0
s_sub_u32 s{sWd+2}, 7864320, s{sT2}
{'s_mov_b32 s%d, 0' % (sWd+2) if OPT['now'] else ''}
s_lshl_b32 s{sT1}, s{sB}, 3
s_add_u32 s{sT1}, s{sT1}, s{sQUAD}
s_mul_i32 s{sT2}, s{sT1}, 786432
s_add_u32 s{sKd}, s6, s{sT2}
s_addc_u32 s{sKd+1}, s7, 0
s_add_u32 s{sVd}, s8, s{sT2}
s_addc_u32 s{sVd+1}, s9, 0
s_mul_i32 s{sT2}, s{sQUAD}, 983040
s_add_u32 s{sOd}, s12, s{sT2}
s_addc_u32 s{sOd+1}, s13, 0
s_lshl_b32 s{sT3}, s{sT3}, 3
s_add_u32 s{sT1}, s{sT1}, s{sT3}
s_mul_i32 s{sT1}, s{sT1}, {PART_CU}
s_mul_i32 s{sT2}, s{sW4}, 35840
s_add_u32 s{sT1}, s{sT1}, s{sT2}
s_add_u32 s{sT1}, s{sT1}, {PART0-QO}
s_add_u32 s{sPd}, s28, s{sT1}
s_addc_u32 s{sPd+1}, s29, 0
""")
    stamp(p, 0); stamp(p, 1, real=True)
    p(f"""
s_cmp_lg_u32 s{sWAVE}, 0
s_cbranch_scc1 k1_noclr
s_and_b32 s{sT1}, s2, 7
s_cmp_lt_u32 s{sT1}, 4
s_cselect_b32 s{sT1}, 0, 16
s_add_u32 s{sGRP}, s{sT1}, s{sB}
s_lshl_b32 s{sT1}, s{sGRP}, 3
s_add_u32 s{sT1}, s{sT1}, s{sQUAD}
s_lshl_b32 s{sT1}, s{sT1}, 7
s_add_u32 s{sT1}, s{sT1}, {FLAG0}
s_add_u32 s4, s28, s{sT1}
s_addc_u32 s5, s29, 0
s_mov_b32 s6, 128
s_mov_b32 s7, 0x20000
v_mov_b32 v1, 0
s_mov_b64 exec, 1
buffer_store_dword v1, v1, s[4:7], 0 offen sc1
s_mov_b64 exec, -1
k1_noclr:
""")
    if OPT["cpf"]:
        p(f"""
s_cmp_lg_u32 s{sWAVE}, 7
s_cbranch_scc1 k1_nocpf
s_getpc_b64 s[4:5]
s_mov_b32 s6, k1_end-k1_nocpf
s_mov_b32 s7, 0x20000
s_lshr_b32 s{sT1}, s2, 3
s_and_b32 s{sT1}, s{sT1}, 31
s_lshl_b32 s{sT1}, s{sT1}, 7
v_and_b32 v1, 31, v0
v_lshlrev_b32 v1, 12, v1
buffer_load_dword v254, v1, s[4:7], s{sT1} offen
k1_nocpf:
""")
    if OPT["tlb"]:
        p(f"""
v_and_b32 v1, 3, v0
v_lshlrev_b32 v1, 18, v1
v_min_u32 v1, {786432-128}, v1
s_cmp_lg_u32 s{sWAVE}, 1
s_cbranch_scc1 k1_t1a
buffer_load_dword v254, v1, s[{sKd}:{sKd+3}], 0 offen nt
k1_t1a:
s_cmp_lg_u32 s{sWAVE}, 2
s_cbranch_scc1 k1_t1b
buffer_load_dword v254, v1, s[{sVd}:{sVd+3}], 0 offen nt
k1_t1b:
s_cmp_lg_u32 s{sWAVE}, 3
s_cbranch_scc1 k1_t1c
buffer_load_dword v254, v1, s[{sOd}:{sOd+3}], 0 offen nt
k1_t1c:
s_cmp_lg_u32 s{sWAVE}, 4
s_cbranch_scc1 k1_t1d
s_and_b32 s{sT1}, s2, 7
s_cmp_lt_u32 s{sT1}, 4
s_cselect_b32 s{sT1}, 0, 16
s_add_u32 s{sT1}, s{sT1}, s{sB}
s_mul_i32 s{sT1}, s{sT1}, {8*PART_CU}
s_add_u32 s{sT1}, s{sT1}, {PART0}
s_add_u32 s4, s28, s{sT1}
s_addc_u32 s5, s29, 0
s_mov_b32 s6, {8*PART_CU}
s_mov_b32 s7, 0x20000
v_and_b32 v1, 7, v0
v_mul_u32_u24 v1, {PART_CU}, v1
buffer_load_dword v254, v1, s[4:7], 0 offen nt sc1
k1_t1d:
s_cmp_lg_u32 s{sWAVE}, 5
s_cbranch_scc1 k1_t1e
s_mul_i32 s{sT1}, s{sB}, {112*2560}
s_add_u32 s4, s24, s{sT1}
s_addc_u32 s5, s25, 0
s_mov_b32 s6, {112*2560}
s_mov_b32 s7, 0x20000
v_and_b32 v1, 1, v0
v_mul_u32_u24 v1, {112*2560-128}, v1
buffer_load_dword v254, v1, s[4:7], 0 offen nt sc1
k1_t1e:
""")
    rec = {}
    rec["qp"] = qp_phase(p, needs.get("qp", {}))
    p(f"""
s_cmp_ge_u32 s{sWAVE}, 4
s_cbranch_scc1 k1_t1
""")
    if OPT["prio0"]: p(f"s_setprio {OPT['prio0']}")
    p(f"""
s_cmp_eq_u32 s{sWAVE}, 3
s_cbranch_scc1 k1_light
""")
    rec["h"] = t0_path(p, needs.get("h", {}), 2, "h")
    p.label("k1_light")
    rec["l"] = t0_path(p, needs.get("l", {}), 1, "l")
    rec["f"] = t0_final(p, needs.get("f", {}))
    p.label("k1_t1")
    if OPT["not1"]: p("s_endpgm")
    if OPT["prio1"]: p(f"s_setprio {OPT['prio1']}")
    rec["t1"] = t1_path(p, needs.get("t1", {}))
    final_reduce(p)
    p("""
k1_end:
s_endpgm
""")
    return p, rec

def reduce_kernel():
    p = Prog()
    p(f"""
.globl reduce_kernel
.p2align 8
.type reduce_kernel,@function
reduce_kernel:
s_cmp_ge_u32 s2, 1120
s_cbranch_scc1 k2_end
s_load_dwordx2 s[8:9], s[0:1], 80
s_load_dwordx2 s[10:11], s[0:1], 96
v_lshrrev_b32 v1, 6, v0
v_and_b32 v2, 63, v0
v_readfirstlane_b32 s3, v1
s_mul_i32 s5, s2, 1873
s_lshr_b32 s5, s5, 16
s_mul_i32 s6, s5, 35
s_sub_u32 s22, s2, s6
s_mul_i32 s6, s3, 35
s_add_u32 s6, s6, s22
s_mul_i32 s7, s5, {8*PART_CU}
s_add_u32 s7, s7, {PART0}
s_lshl_b32 s20, s6, 10
v_lshlrev_b32 v3, 4, v2
s_mov_b32 s14, {8*PART_CU}
s_mov_b32 s15, 0x20000
s_waitcnt lgkmcnt(0)
s_add_u32 s12, s10, s7
s_addc_u32 s13, s11, 0
""")
    for q in range(8):
        p(f"buffer_load_dwordx4 v[{8+4*q}:{11+4*q}], v3, s[12:15], s20 offen {OPT['rd']}")
        if q < 7: p(f"s_add_u32 s20, s20, {PART_CU}")
    p(f"""
s_and_b32 s23, s5, 15
s_mul_i32 s23, s23, {112*2560}
s_lshr_b32 s24, s5, 4
s_mul_i32 s24, s24, 1280
s_add_u32 s23, s23, s24
s_mov_b32 s16, s8
s_mov_b32 s17, s9
s_mov_b32 s18, {16*112*2560}
s_mov_b32 s19, 0x20000
s_mul_i32 s26, s22, 37
s_lshr_b32 s26, s26, 8
s_mul_i32 s27, s26, 7
s_sub_u32 s27, s22, s27
s_lshl_b32 s30, s26, 8
s_mul_i32 s28, s27, {16*2560}
s_add_u32 s30, s30, s28
s_mul_i32 s28, s3, {4*2560}
s_add_u32 s30, s30, s28
s_add_u32 s32, s30, s23
v_and_b32 v4, 15, v2
v_lshrrev_b32 v5, 4, v2
v_mul_u32_u24 v6, 272, v4
v_lshl_add_u32 v6, v5, 3, v6
s_lshl_b32 s28, s3, 6
v_add_u32 v6, s28, v6
s_mul_i32 s28, s3, {4*272}
v_mul_u32_u24 v7, 272, v5
v_lshl_add_u32 v7, v4, 4, v7
v_add_u32 v7, s28, v7
v_mul_u32_u24 v5, 2560, v5
v_lshl_add_u32 v4, v4, 4, v5
""")
    for q in range(8):
        p(f"s_waitcnt vmcnt({7-q})")
        for i in range(4):
            r = 8 + 4 * q + i
            if q == 0:
                p(f"v_lshlrev_b32 v{40+2*i}, 16, v{r}")
                p(f"v_and_b32 v{41+2*i}, 0xffff0000, v{r}")
            else:
                p(f"v_lshlrev_b32 v48, 16, v{r}")
                p(f"v_and_b32 v49, 0xffff0000, v{r}")
                p(f"v_add_f32 v{40+2*i}, v{40+2*i}, v48")
                p(f"v_add_f32 v{41+2*i}, v{41+2*i}, v49")
    for i in range(4): p(f"v_cvt_pk_bf16_f32 v{52+i}, v{40+2*i}, v{41+2*i}")
    p("""
ds_write_b64 v6, v[52:53]
ds_write_b64 v6, v[54:55] offset:32
s_waitcnt lgkmcnt(0)
s_barrier
ds_read_b128 v[52:55], v7
s_waitcnt lgkmcnt(0)
buffer_store_dwordx4 v[52:55], v4, s[16:19], s32 offen
k2_end:
s_endpgm
""")
    return p

def desc(name, vg):
    return f""".amdhsa_kernel {name}
  .amdhsa_next_free_vgpr {vg}
  .amdhsa_next_free_sgpr 102
  .amdhsa_accum_offset {vg}
  .amdhsa_group_segment_fixed_size 0
  .amdhsa_kernarg_size 104
  .amdhsa_user_sgpr_count 2
  .amdhsa_user_sgpr_kernarg_segment_ptr 1
  .amdhsa_system_sgpr_workgroup_id_x 1
.end_amdhsa_kernel
"""

def main():
    for t in range(1120): assert (t * 1873) >> 16 == t // 35
    for t in range(140): assert (t * 235) >> 13 == t // 35
    for t in range(35): assert (t * 37) >> 8 == t // 7
    _, rec = build({})
    for it in range(4):
        a, rec2 = build(rec)
        if rec2 == rec: break
        rec = rec2
    else: raise SystemExit("no fixpoint")
    b = reduce_kernel()
    if OPT["novm"]: a.L[:] = [l for l in a.L if not l.startswith("buffer_load")]
    if OPT["nobar"]: a.L[:] = [l for l in a.L if not l.startswith("s_barrier")]
    if OPT["nolg"]:
        out_ = []
        for i_, l in enumerate(a.L):
            if l.startswith("s_waitcnt lgkmcnt") and not a.L[i_-1].startswith(("s_mem", "s_load")) and i_ > 60: continue
            out_.append(l)
        a.L[:] = out_
    if OPT["nord"]: a.L[:] = [l for l in a.L if not l.startswith("ds_read")]
    if OPT["noexp"]: a.L[:] = [l.replace("v_exp_f32", "v_mov_b32") if l.startswith("v_exp_f32") and "-v" not in l else l for l in a.L]
    if OPT["nosm"]: a.L[:] = [l for l in a.L if not l.startswith(("v_exp_f32", "v_cvt_pk"))]
    if OPT["nochk"]: a.L[:] = [l for l in a.L if not l.startswith(("v_or3", "v_or_b32", "v_cmp_ne", "s_cbranch_vccz", "v_and_b32 v252"))]
    if OPT["prof"] == 2:
        out_ = []; L_ = a.L; inrole = False; i_ = 0
        while i_ < len(L_):
            l = L_[i_]
            if l.startswith(("t0_unit", "t1_slot")): inrole = True
            if l.startswith(("t0_exit", "t1_exit")): inrole = False
            if inrole and l == "s_barrier":
                j = len(out_)
                while j > 0 and (out_[j-1].startswith(("s_waitcnt vmcnt", "s_cmp_eq_u32 s55, 5", "s_cbranch_scc1 t1_wa")) or out_[j-1].startswith("t1_wa")): j -= 1
                blk = out_[j:]; del out_[j:]
                out_ += ["s_memtime s[4:5]"] + blk + ["s_memtime s[6:7]", "s_barrier", "s_memtime s[8:9]", "s_waitcnt lgkmcnt(0)",
                         "s_sub_u32 s4, s6, s4", "s_add_u32 s94, s94, s4", "s_sub_u32 s6, s8, s6", "s_add_u32 s95, s95, s6"]
            elif inrole and l.startswith("buffer_load") and l.endswith("lds"):
                out_ += ["s_memtime s[4:5]", l, "s_memtime s[6:7]", "s_waitcnt lgkmcnt(0)", "s_sub_u32 s4, s6, s4", "s_add_u32 s89, s89, s4"] if OPT["pv"] else [l]
            elif l.startswith(("k1_light:", "k1_t1:")) or l.startswith("s_cbranch_scc1 k1_light"):
                out_ += [l, "s_mov_b32 s94, 0", "s_mov_b32 s95, 0", "s_mov_b32 s89, 0"]
            else: out_.append(l)
            i_ += 1
        a.L[:] = out_
    if OPT["prof"] == 4:
        out_ = []; inrole = False; idx = 0
        L_ = [l for l in a.L if not (l.startswith(("s_cselect_b32 s8", "s_cselect_b32 s9")) or (l.startswith(("s_mov_b32 s8", "s_mov_b32 s9")) and "s100" in l))]
        def st_(k):
            return ["s_memtime s[100:101]", "s_waitcnt lgkmcnt(0)", f"s_cmp_eq_u32 s{sSLOT}, {OPT['ps']}", f"s_cselect_b32 s{80+k}, s100, s{80+k}"] if 0 <= k < 16 else []
        for i_, l in enumerate(L_):
            if l.startswith(("t0_unit", "t1_slot")): inrole = True; idx = 0
            if l.startswith(("t0_exit", "t1_last")): inrole = False
            k = (idx - OPT["pb"]) * 4
            if inrole and l == "s_barrier":
                x = out_.pop() if out_[-1].startswith("s_waitcnt vmcnt") else None
                out_ += st_(k - 2) + ([x] if x else []) + st_(k - 1) + [l] + st_(k); idx += 1
            elif inrole and l.startswith("buffer_load") and l.endswith("lds"):
                nxt = next(y for y in L_[i_+1:] if y == "s_barrier" or (y.startswith("buffer_load") and y.endswith("lds")))
                out_ += [l] + (st_(k - 3) if nxt == "s_barrier" else [])
            else: out_.append(l)
        a.L[:] = out_
    if OPT["prof"] == 3:
        out_ = []; inrole = False; idx = 0
        for l in a.L:
            if l.startswith(("t0_unit", "t1_slot")): inrole = True; idx = 0
            if l.startswith(("t0_exit", "t1_exit")) or l.startswith("s_cbranch_scc1 t1_slot"): inrole = False
            if l.startswith("s_cselect_b32 s8") or l.startswith("s_cselect_b32 s9") or l.startswith("s_mov_b32 s9") and "s100" in l: continue
            if inrole and l == "s_barrier":
                k = idx - OPT["pb"]; idx += 1
                st_ = ["s_memtime s[100:101]", "s_waitcnt lgkmcnt(0)", f"s_cmp_eq_u32 s{sSLOT}, {OPT['ps']}", f"s_cselect_b32 s{80+k}, s100, s{80+k}"] if 0 <= k < 16 else []
                out_ += (st_ + [l]) if OPT["pa"] else ([l] + st_)
            else: out_.append(l)
        a.L[:] = out_
    if OPT["nomfq"] or OPT["nomf1"] or OPT["nomf0"]:
        out_ = []; sec = "q"
        for l in a.L:
            if l.startswith("t0_unit"): sec = "0"
            if l.startswith("k1_t1:"): sec = "1"
            if l.startswith("v_mfma") and OPT["nomf" + sec]: continue
            out_.append(l)
        a.L[:] = out_
    if OPT["xa"]:
        out_ = []; sec = "q"; cnt = 0
        for l in a.L:
            if l.startswith("t0_unit_h"): sec = "h"
            if l.startswith("t0_unit_l"): sec = "l"
            if l.startswith("t0_final"): sec = "f"
            if l.startswith("k1_t1:"): sec = "1"
            if OPT["xa"] == 1 and sec in "hl" and l.startswith("v_mfma") and "v[208:211]" in l: continue
            if OPT["xa"] == 2 and sec == "l" and l.startswith(("v_mfma", "ds_read")): continue
            if OPT["xa"] == 3 and sec == "1" and l.startswith("ds_read_b128"): continue
            if OPT["xa"] == 4 and sec in "hl" and l.startswith("ds_read"):
                continue
            out_.append(l)
        a.L[:] = out_
    if OPT["vwin"]:
        out_ = []; on = False
        for l in a.L:
            if l.startswith("k1_t1:") and OPT["vw1"]: on = True
            if l.startswith("t1_slot:"): on = True
            if l.startswith("t1_last:"): on = False
            if on and l.startswith("buffer_load") and l.endswith("lds"): out_.append(f"s_waitcnt vmcnt({OPT['vwin']-1})")
            out_.append(l)
        a.L[:] = out_
    if OPT["dynp"]:
        out_ = []; int1 = False
        for l in a.L:
            if l.startswith("k1_t1:"): int1 = True
            if int1 and l.startswith("buffer_load") and l.endswith("lds"):
                out_ += [f"s_setprio {OPT['dynp']}", l, f"s_setprio {OPT['prio1']}"]
            else: out_.append(l)
        a.L[:] = out_
    n1 = fix_hazards(a.L); n2 = fix_hazards(b.L)
    print("nops inserted", n1, n2, "instrs", len(a.L), len(b.L), file=sys.stderr)
    hdr = open("cdna_kernels/" + NAME + ".s.ref").read().split("; Override launch")[0]
    out = hdr
    if OPT["two"]:
        out += f"; @launch kernel={NAME}_kernel grid=(256,1,1) block=(512,1,1) lds={LDS_BYTES}\n"
        out += "; @launch kernel=reduce_kernel grid=(1120,1,1) block=(256,1,1) lds=4352\n"
    else:
        out += f"; @launch grid=(256,1,1) block=(512,1,1) lds={LDS_BYTES}\n"
    out += '.amdgcn_target "amdgcn-amd-amdhsa--gfx950"\n.text\n'
    out += a.text() + (b.text() if OPT["two"] else "")
    out += '.section .rodata,"a"\n.p2align 6\n' + desc(NAME + "_kernel", 256)
    if OPT["two"]: out += ".p2align 6\n" + desc("reduce_kernel", 56)
    open(sys.argv[1], "w").write(out)
    import subprocess
    r = subprocess.run(["clang", "-x", "assembler", "-target", "amdgcn-amd-amdhsa", "-mcpu=gfx950", "-c", sys.argv[1], "-o", "chk.o"], capture_output=True, text=True)
    if r.returncode: print("ASSEMBLY FAILED", r.stderr[:600])
main()
```

```python
import sys, math, struct, copy
sys.path.insert(0, "work")
from asmlib import *

NAME = "concat_heads__mha_block_cached__gqa_block_cached__near_ridge"
OPT = dict(kv="nt", w="", x="", wo="", st="sc1", rd="sc1", prof=0, prio0=0, prio1=0, touch=1, nox=0, now=0, nokv=0, nomf=0,
           novm=0, lead=4, bp="6.16.26.36.42", map=0, hack="", t1b=0, ps=5, kdel=0, x0=4, xt=0, dynp=0, nopark=0, gap=0, span=4, pa=0, pb=0, m=2, nlat=0, nonar=0, bar=3, qd=5, rt=0, tf="", tq="", pwo=0, tlb=0, stl=0, dd=0, kw=5, qp1=0, pre=0, kpf=0, wt=6, wtn=14, pkb=1, kw1=0, kwa=0, kwu=0, kw1s=0, kps=18, kpl="nt", lastb=13, stn=1, spin=40000, vcap=0, vpost=0, now0=9, xa=0, burst=0, kpar=0, pwh=1, near=0, vwin=0, cpf=1, fs=0, r5=6, early=3, qv=0, two=0, vw1=1, wo5="", nomfq=0, nomf1=0, nomf0=0, pwf="", kvfirst=1, w2=1, psplit=1, nb1=8, nb2=29, kl=16, tl=4, kvat=18, qst="sc1", noq=0, noqst=0, pv=0, nobar=0, nolg=0, nord=0, norare=0, not1=0, noexp=0, nochk=0, nosm=0)
for a in sys.argv[2:]:
    k, val = a.split("=")
    OPT[k] = int(val) if val.lstrip("-").isdigit() else (val if k in ("bp", "hack") else val.replace("+", " ").replace("-", ""))
TILE = 12288
QO = 0
T1R = 43008
B2 = T1R + 32768
KVB = B2 + 18432
NS = 16
SPARE = KVB + NS * 4096
LDS_BYTES = SPARE + 2048
QPARK = 48 << 20
FLAG0 = 0
PART0 = 1 << 20
PART_CU = 4 * 35 * 1024
LEAD = OPT["lead"]
NX = 30
XB_ = [OPT["x0"] + 4 * ((k * 96) // NX) for k in range(NX)]
def f2u(f): return struct.unpack("<I", struct.pack("<f", f))[0]

sKd, sVd, sWd, sOd, sXd, sPd, sQd = 32, 36, 40, 44, 48, 76, 24
sWAVE, sB, sQUAD, sSLOT, sCTR, sW4 = 52, 53, 54, 55, 57, 56
sT1, sT2, sT3 = 62, 63, 61
sKSO, sVSO, sLW = 58, 59, 60
sWB, sOB, sXB, sXM, sSTR, sXF = 58, 59, 70, 71, 72, 73
sC, sBIT = 66, 68
sRET = 30
sGRP = 3
sWT = 8
sTEAM, sWB2, sKSO2, sL1, sSLO, sSHI = 74, 75, 65, 64, 69, 72
PKV_ = 255
sRX, sRY, sRZ, sSP = 14, 17, 20, 23

def stamp(e, k, real=False):
    if not OPT["prof"]: return
    e(f"s_mem{'real' if real else ''}time s[100:101]")
    e("s_waitcnt lgkmcnt(0)")
    e(f"s_mov_b32 s{80+k}, s100")
def stamp_slot(e):
    if not OPT["prof"]: return
    e("s_memrealtime s[100:101]" if OPT["rt"] else "s_memtime s[100:101]")
    e("s_waitcnt lgkmcnt(0)")
    for k in range(0, 7):
        e(f"s_cmp_eq_u32 s{sSLOT}, {k}")
        e(f"s_cselect_b32 s{82+k}, s100, s{82+k}")
def stamp_if(e, k, slot):
    if not OPT["prof"]: return
    e("s_memtime s[100:101]")
    e("s_waitcnt lgkmcnt(0)")
    e(f"s_cmp_eq_u32 s{sSLOT}, {slot}")
    e(f"s_cselect_b32 s{80+k}, s100, s{80+k}")
def dump_stamps(e, wsreg, base, nw):
    if not OPT["prof"]: return
    if OPT["dd"]:
        e(f"""
s_cmp_lg_u32 s2, {OPT['dd']}
s_cbranch_scc1 k1_end
s_cmp_lg_u32 s{sWAVE}, 4
s_cbranch_scc1 k1_end
s_mov_b32 s96, s26
s_mov_b32 s97, s27
s_mov_b32 s98, 64
s_mov_b32 s99, 0x20000
v_mov_b32 v1, 0
""")
        for k in range(16):
            e(f"s_sub_u32 s100, s{80+k}, s{80 if k == 10 else 81}")
            e("v_mov_b32 v0, s100")
            e(f"buffer_store_dword v0, v1, s[96:99], 0 offen offset:{k*4}")
        e("s_waitcnt vmcnt(0)")
        return
    e(f"""
s_mul_i32 s100, s2, {nw}
s_add_u32 s100, s100, s{sWAVE}
s_lshl_b32 s100, s100, 6
s_add_u32 s100, s100, {base}
s_add_u32 s96, s{wsreg}, s100
s_addc_u32 s97, s{wsreg+1}, 0
s_mov_b32 s98, 64
s_mov_b32 s99, 0x20000
v_mov_b32 v1, 0
""")
    for k in range(16):
        e(f"v_mov_b32 v0, s{80+k}")
        e(f"buffer_store_dword v0, v1, s[96:99], 0 offen offset:{k*4}")
    e("s_waitcnt vmcnt(0)")

class Gen:
    def __init__(self, prog, needs):
        self.p = prog; self.needs = needs; self.rec = {}
        self.mute = 0
        self.vq = []; self.lq = []; self.pend = []; self.issued = {}
        self.nosim = 0
    def e(self, s):
        if not self.mute: self.p(s)
    def label(self, n):
        if not self.mute: self.p.label(n)
    def wait(self, kind, key, tags, drain_tags=()):
        q = self.vq if kind == "vm" else self.lq
        for t in tags:
            assert self.issued.pop(t, 0) > 0, (t, key)
        tags = list(tags) + list(drain_tags)
        idx = [i for i, t in enumerate(q) if t in tags]
        n = len(q) - 1 - max(idx) if idx else 999
        if n != 999: n = min(n, 63 if kind == "vm" else 15)
        k = (kind, key)
        self.rec[k] = min(self.rec.get(k, 999), n)
        val = self.needs.get(k, n)
        if val == 999: return
        self.e(f"s_waitcnt {'vmcnt' if kind == 'vm' else 'lgkmcnt'}({val})")
        del q[:len(q) - val if val < len(q) else 0]
    def wait_alt(self, key, tags, alt, cmp_txt, lab):
        q = self.vq
        for t in tags: assert self.issued.pop(t, 0) > 0, (t, key)
        idx = [i for i, t in enumerate(q) if t in tags]
        n = min(len(q) - 1 - max(idx), 63) if idx else 999
        k = ("vm", key, alt)
        self.rec[k] = min(self.rec.get(k, 999), n)
        va, vb = self.needs.get(("vm", key, False), 0), self.needs.get(("vm", key, True), 0)
        if vb != 999 and vb > va: self.e(f"s_waitcnt vmcnt({vb})")
        if vb > va:
            self.e(cmp_txt); self.e(f"s_cbranch_scc1 {lab}")
        val = min(va, vb) if not (alt and vb > va) else vb
        if min(va, vb) != 999: self.e(f"s_waitcnt vmcnt({min(va, vb)})")
        if vb > va: self.label(lab)
        if val != 999: del q[:len(q) - val if val < len(q) else 0]
    def vm(self, tag, text):
        self.e(text); self.vq.append(tag); self.issued[tag] = self.issued.get(tag, 0) + 1
    def ld(self, tag, text):
        self.e(text); self.lq.append(tag); self.issued[tag] = self.issued.get(tag, 0) + 1
    def drain(self, n=1):
        for _ in range(n):
            if self.pend: self.pend.pop(0)()
    def optional(self, taken, fn):
        if taken: fn()
        elif not self.mute:
            st = (list(self.vq), list(self.lq), dict(self.issued))
            fn()
            self.vq[:], self.lq[:] = st[0], st[1]; self.issued = st[2]

def mfma(e, d, a, b, c):
    if not OPT["nomf"]:
        e(f"v_mfma_f32_16x16x32_bf16 {v(d,4)}, {v(a,4)}, {v(b,4)}, {c if c == '0' else v(c,4)}")


KL = OPT["kl"]
KVT = [k for k in range(NX) if not OPT['burst'] or k % 2 == OPT['kpar']]
N0 = max(u for u in range(300) if 4 * (u - KL) + 4 <= XB_[KVT[-1]]) + 1
def lane_regs(e, b=2):
    e(f"""
v_mbcnt_lo_u32_b32 v{b}, -1, 0
v_mbcnt_hi_u32_b32 v{b}, -1, v{b}
v_and_b32 v{b+1}, 15, v{b}
v_lshrrev_b32 v{b+2}, 4, v{b}
v_lshrrev_b32 v{b+3}, 2, v{b}
v_and_b32 v{b+4}, 3, v{b+3}
v_and_b32 v{b+5}, 3, v{b}
v_lshrrev_b32 v{b+6}, 3, v{b}
v_and_b32 v{b+7}, 7, v{b}
""")
def kv_kind(a):
    a %= 32
    return "K" if (a == 0 or (a % 2 == 1 and a < 31)) else "V"
def kv_tile(a):
    u, a = divmod(a, 32)
    return u * 16 + (0 if a == 0 else 15 if a == 31 else (a + 1) // 2 if a % 2 == 1 else (a - 2) // 2)
def QAC(hh, rt, k): return ((hh * 7 + rt) * 3 + k) * 4
QB = [240, 241, 242]; QT = [251, 252, 253]; NPRE = 12; X9 = KVB + 51200
QW = [248, 249, 250]


class OpEngine:
    def __init__(self, g, PK, AC0, AF0, BF0, RA, OB, PO, ring, sM0, ringoff):
        self.g, self.e = g, g.e
        self.PK, self.AC0, self.AF0, self.BF0, self.RA, self.OB, self.PO = PK, AC0, AF0, BF0, RA, OB, PO
        self.ring, self.sM0, self.ro = ring, sM0, ringoff
        self.dq = []; self.pq = []; self.clock = 0; self.fl = OPT['wo']; self.nr = 4; self.early = 0; self.pkb = 0; self.atbar = []
    def AC(self, k): return self.AC0 + 4 * k
    def AF(self, s, i): return self.AF0 + 8 * (s & 1) + 4 * i
    def BF(self, n): return self.BF0 + 4 * (n % 6)
    def slot(self, i): return ((i + self.ro) % self.nr) * 8192
    def addr_setup(self):
        e = self.e
        lane_regs(e, 232)
        L = 232
        e(f"""
v_lshlrev_b32 v{self.OB}, 4, v{L}
v_lshlrev_b32 v{L+8}, 1, v{L+2}
v_xor_b32 v{L+8}, v{L+1}, v{L+8}
v_lshlrev_b32 v{L+8}, 4, v{L+8}
v_mul_u32_u24 v{L+9}, 1280, v{L+2}
v_add_u32 v{self.PO[0]}, v{L+8}, v{L+9}
v_xor_b32 v{L+8}, 128, v{L+8}
v_add_u32 v{L+8}, v{L+8}, v{L+9}
v_add_u32 v{self.PO[1]}, 4096, v{L+8}
s_lshl_b32 s{sT1}, s{sW4}, 1
v_and_b32 v{L+8}, 7, v{L+3}
v_xor_b32 v{L+8}, s{sT1}, v{L+8}
v_lshlrev_b32 v{L+8}, 5, v{L+8}
v_lshl_add_u32 v{L+8}, v{L+3}, 8, v{L+8}
v_lshl_add_u32 v{L+8}, v{L+5}, 3, v{L+8}
v_add_u32 v{self.RA[0]}, {self.ring}, v{L+8}
v_xor_b32 v{self.RA[1]}, 32, v{self.RA[0]}
""")
    def dma(self, i):
        ps, j = divmod(i, 6)
        out = []
        for q in range(2):
            def f(q=q):
                if q == 0:
                    self.e(f"s_add_u32 m0, s{self.sM0}, {self.ring+self.slot(i)}")
                    self.e(f"s_add_u32 s{sT2}, s{sOB}, {j*32*1280+ps*256}")
                o = "offset:1024 " if q else ""
                self.g.vm(f"O{i}", f"buffer_load_dwordx4 v{self.PO[q]}, s[{sOd}:{sOd+3}], s{sT2} offen {o}{self.fl} lds")
            out.append(f)
        return out
    def defer(self, at, ins):
        for x in ins: self.dq.append((at, x))
    def run_dq(self, n):
        while n > 0 and self.dq and self.dq[0][0] <= self.clock:
            x = self.dq.pop(0)[1]
            if callable(x): x()
            else: self.e(x)
            n -= 1
    def flush_pq(self):
        while self.pq: self.pq.pop(0)[1]()
    def a_read(self, i, n):
        k, hf = divmod(n, 2)
        self.g.ld(f"o{i}a{k}", f"ds_read_b64_tr_b16 {v(self.AF(i,k)+2*hf,2)}, v{self.RA[k]} offset:{self.slot(i)+hf*4096}")
    def b_read(self, b):
        i, rt = divmod(b, 7)
        self.g.ld(f"o{i}b{rt}", f"ds_read_b128 {v(self.BF(b),4)}, v{self.OB} offset:{QO+(i%6*7+rt)*1024}")
    def first_reads(self, i):
        self.a_read(i, 0); self.a_read(i, 1); self.b_read(7 * i); self.a_read(i, 2); self.a_read(i, 3)
        for n in range(1, 6): self.b_read(7 * i + n)
    def unpack_l(self, dst, src):
        return [f"v_perm_b32 v{dst+x}, v{src+x//2}, v{src+x//2}, s{sSHI if x & 1 else sSLO}" for x in range(4)]
    def pack_l(self, dst, src):
        return [f"v_cvt_pk_bf16_f32 v{dst}, v{src}, v{src+1}", f"v_cvt_pk_bf16_f32 v{dst+1}, v{src+2}, v{src+3}"]
    def store_l(self, ps, rt):
        o = (ps * 7 + rt) * 1024
        return [f"s_mov_b32 s{sT3}, {o - o % 4096}",
                lambda: self.g.vm("st", f"buffer_store_dwordx4 {v(self.PK(ps*14+rt*2),4)}, v{self.OB}, s[{sPd}:{sPd+3}], s{sT3} offen offset:{o%4096} {OPT['st']}")]
    def step(self, key, i, last, tick, store=False, hooks=None):
        g, e = self.g, self.e
        ps, j = divmod(i, 6)
        BAR = OPT["bar"]
        c0 = self.clock
        if store and not self.early and i >= last - 3 and i < last:
            todo = [(q, rt) for q in range(store[0], ps) for rt in range(7)]
            k = i - (last - 3)
            mine = todo[k * len(todo) // 3:(k + 1) * len(todo) // 3]
            for n, (q, rt) in enumerate(mine): self.defer(c0 + (6 if k == 0 else 0) + n * (8 if k == 0 else 14) // len(mine), self.store_l(q, rt))
        if j == 5 and (i < last or store):
            for n in range(14):
                ins = self.pack_l(self.PK(ps * 14 + n), self.AC(n))
                if i < last: ins += self.unpack_l(self.AC(n), self.PK((ps + 1) * 14 + n))
                if store and n % 2 == 1 and (i == last or self.early): ins += self.store_l(ps, n // 2)
                if self.pkb and i < last and n >= BAR: self.atbar += ins
                else: self.defer(c0 + n + 4, ins)
        for n in range(14):
            rt, k = divmod(n, 2)
            if n == BAR and i < last: tick(i)
            if n == BAR and j == 0:
                for x in self.atbar:
                    if callable(x): x()
                    else: e(x)
                self.atbar = []
            if hooks and n in hooks: hooks[n]()
            tags = ([f"o{i}b{rt}"] if k == 0 else []) + ([f"o{i}a{k}"] if rt == 0 else [])
            if tags: g.wait("lg", f"{key}{i}m{n}", tags)
            mfma(e, self.AC(n), self.AF(i, k), self.BF(7 * i + rt), self.AC(n))
            if k == 1 and 7 * i + rt + 6 < 7 * (last + 1): self.b_read(7 * i + rt + 6)
            if k == 0 and i < last and BAR < n <= BAR + 8: self.a_read(i + 1, (n - BAR - 1) // 2)
            while self.pq and self.pq[0][0] <= self.clock: self.pq.pop(0)[1]()
            self.clock += 1
            self.run_dq(7)
    def finish(self):
        self.flush_pq(); self.clock += 100; self.run_dq(1000)

def qp_phase(p, needs):
    g = Gen(p, needs); e = g.e
    AC = QAC
    def AF(par, hh, k): return 168 + par * 24 + (hh * 3 + k) * 4
    def BF(n): return 216 + 4 * (n % 4)
    RA = [[232, 233, 234], [235, 236, 237]]; XA = [238, 239]; PW = [243, 244, 245]; PX = 246
    JUNK = 247
    STG = [KVB, T1R]
    NB1, NB2 = OPT["nb1"], OPT["nb2"]
    QV = OPT["qv"]
    HEAD = {(0, 0): 0, (0, 1): 3, (1, 0): 1, (1, 1): 2}
    def dma_w(i, hh):
        out = []
        for tm in (range(2) if QV else [None]):
            for ii in range(3):
                def f(ii=ii, tm=tm):
                    if ii == 0:
                        if QV:
                            e(f"s_add_u32 m0, s{sLW}, {STG[i&1]+hh*2*TILE+tm*TILE}")
                            e(f"s_add_u32 s{sT1}, s{sWB}, {i*32*12288+HEAD[tm,hh]*384}")
                        else:
                            e(f"s_add_u32 m0, s{sLW}, {STG[i&1]+hh*2*TILE}")
                            e(f"s_add_u32 s{sT1}, s{sWB2 if hh else sWB}, {i*32*12288}")
                    o = f"offset:{ii*1024} " if ii else ""
                    g.vm(f"W{i}.{hh}", f"buffer_load_dwordx4 v{PW[ii]}, s[{sWd}:{sWd+3}], s{sT1} offen {o}{OPT['w']} lds")
                out.append(f)
        return out
    def dma_x(pp):
        out = []
        nq = 4 if QV else 2
        xb = X9 if pp == 9 else QO + (pp % 3) * 14336
        for q in range(nq):
            def f(q=q):
                if q < nq - 1: e(f"s_add_u32 m0, s{sXM}, {xb+q*16384//nq}")
                else:
                    e(f"s_add_u32 s{sT2}, s{sXM}, {xb+q*16384//nq}")
                    e(f"s_cmp_ge_u32 s{sWAVE}, 6")
                    e(f"s_cselect_b32 m0, s{sXF}, s{sT2}")
                e(f"s_add_u32 s{sT2}, s{sXB}, {pp*128+q*163840//nq}")
                g.vm(f"X{pp}", f"buffer_load_dwordx4 v{PX}, s[{sXd}:{sXd+3}], s{sT2} offen {OPT['x']} lds")
            out.append(f)
        return out
    nlab = [0]
    def issue(fs):
        if not QV:
            g.pend += fs; return
        if not fs: return
        nlab[0] += 1
        e(f"s_cmp_eq_u32 s{sTEAM}, 0")
        e(f"s_cbranch_scc1 qp_i{nlab[0]}")
        for f in fs: f()
        g.label(f"qp_i{nlab[0]}")
    def a_read(i, hh, n):
        k, hf = divmod(n, 2)
        g.ld(f"{i}a{hh}{k}", f"ds_read_b64_tr_b16 {v(AF(i&1,hh,k)+2*hf,2)}, v{RA[i&1][k]} offset:{hh*2*TILE+hf*1536}")
    def b_read(i, rt):
        g.ld(f"{i}b{rt}", f"ds_read_b128 {v(BF(7*i+rt),4)}, v{XA[i&1]} offset:{((i>>1)%3)*14336+rt*2048}")
    lane_regs(e)
    e(f"""
v_lshrrev_b32 v13, 1, v8
v_and_b32 v13, 3, v13
v_lshlrev_b32 v13, 1, v13
v_xor_b32 v13, v9, v13
v_lshlrev_b32 v13, 4, v13
v_mul_u32_u24 v14, 1280, v8
v_add_u32 v{PX}, v13, v14
v_mul_u32_u24 v14, 384, v8
v_add_u32 v{PKV_}, v13, v14
s_mul_i32 s{sXB}, s{sW4 if QV else sWAVE}, 10240
s_lshl_b32 s{sXM}, s{sW4 if QV else sWAVE}, 10
s_sub_u32 s{sXF}, s{sXM}, {2048 if QV else 6144}
s_add_u32 s{sXF}, s{sXF}, {SPARE}
""")
    issue(dma_x(0)); g.drain(9)
    e(f"""
s_and_b32 s{sT1}, s{sW4}, 1
s_lshl_b32 s{sT1}, s{sT1}, 2
v_xor_b32 v16, s{sT1}, v9
s_mul_i32 s{sWB}, s{sW4}, {8*12288}
s_mul_i32 s{sT1}, s{sTEAM}, {0 if QV else 384}
s_add_u32 s{sWB2}, s{sWB}, 1152
s_add_u32 s{sWB}, s{sWB}, s{sT1}
s_sub_u32 s{sWB2}, s{sWB2}, s{sT1}
s_mul_i32 s{sT1}, s{sTEAM}, {0 if QV else TILE}
s_add_u32 s{sLW}, s{sLW}, s{sT1}
""")
    for q in range(3):
        e(f"""
v_add_u32 v10, {8*q}, v8
v_mul_u32_u24 v11, 43, v10
v_lshrrev_b32 v11, 7, v11
v_mul_u32_u24 v12, 3, v11
v_sub_u32 v12, v10, v12
v_lshrrev_b32 v13, 1, v11
v_and_b32 v14, 1, v13
v_xor_b32 v14, v16, v14
v_lshlrev_b32 v14, 4, v14
v_lshl_add_u32 v14, v12, 7, v14
v_mul_u32_u24 v15, 12288, v11
v_add_u32 v14, v14, v15
v_subrev_u32 v{PW[q]}, {q*1024}, v14
""")
    issue(dma_w(0, 0) + dma_w(0, 1)); g.drain(9)
    if OPT["touch"]:
        nsh = 16 if OPT["map"] == 0 else 8
        rows = 640 // nsh // 8
        e(f"""
v_mul_u32_u24 v10, 43, v2
v_lshrrev_b32 v10, 9, v10
v_mul_u32_u24 v11, 12, v10
v_sub_u32 v11, v2, v11
""")
        if not OPT["wt"]:
            e(f"""
s_and_b32 s{sT1}, s{sB}, {nsh-1}
s_lshl_b32 s{sT1}, s{sT1}, 3
s_add_u32 s{sT1}, s{sT1}, s{sWAVE}
s_mul_i32 s{sT1}, s{sT1}, {rows*12288}
v_mul_u32_u24 v10, 12288, v10
v_lshl_add_u32 v10, v11, 7, v10
""")
            for r in range(rows // 5):
                g.vm("pf", f"buffer_load_dword v{JUNK}, v10, s[{sWd}:{sWd+3}], s{sT1} offen {OPT['tq']}")
                e(f"s_add_u32 s{sT1}, s{sT1}, {5*12288}")
        else:
            e(f"""
v_min_u32 v10, 1, v10
v_mul_u32_u24 v10, 12288, v10
v_lshl_add_u32 v254, v11, 7, v10
s_mul_i32 s{sWT}, s{sB}, {2*12288}
s_add_u32 s{sT1}, s{sWAVE}, 2
s_mul_i32 s{sT1}, s{sT1}, {32*12288}
s_add_u32 s{sT1}, s{sT1}, s{sWT}
s_cmp_lt_u32 s{sWAVE}, {OPT['wt']-2}
s_cselect_b32 s{sT1}, s{sT1}, 0x1000000
""")
            g.vm("pf", f"buffer_load_dword v{JUNK}, v254, s[{sWd}:{sWd+3}], s{sT1} offen {OPT['tq']}")
    if OPT["touch"] and OPT["xt"]:
        e(f"""
s_and_b32 s{sT1}, s{sQUAD}, 1
s_mul_i32 s{sT1}, s{sT1}, 71680
s_mul_i32 s{sT2}, s{sWAVE}, {70*128}
s_add_u32 s{sT1}, s{sT1}, s{sT2}
v_lshlrev_b32 v10, 7, v2
""")
        g.vm("pf", f"buffer_load_dword v{JUNK}, v10, s[{sXd}:{sXd+3}], s{sT1} offen")
        g.vm("pf", f"buffer_load_dword v{JUNK}, v10, s[{sXd}:{sXd+3}], s{sT1} offen offset:768")
    e(f"""
v_lshrrev_b32 v8, 1, v3
v_and_b32 v8, 3, v8
v_lshlrev_b32 v8, 1, v8
v_xor_b32 v8, v4, v8
v_lshlrev_b32 v8, 4, v8
v_lshl_add_u32 v9, v3, 7, v8
v_add_u32 v{XA[0]}, {QO}, v9
v_xor_b32 v{XA[1]}, 64, v{XA[0]}
v_lshl_add_u32 v8, v4, 3, v6
v_mul_u32_u24 v9, 384, v8
v_lshrrev_b32 v8, 1, v6
v_and_b32 v11, 1, v4
v_lshl_add_u32 v8, v11, 2, v8
v_xor_b32 v8, v7, v8
v_lshl_add_u32 v9, v8, 4, v9
v_lshlrev_b32 v12, 3, v11
v_lshl_add_u32 v12, v2, 4, v12
v_and_b32 v11, 1, v7
v_lshl_add_u32 v11, v11, 3, v9
s_mov_b32 s{sC}, {hex(f2u(192 ** -0.5 * math.log2(math.e)))}
s_mov_b32 s{sC+1}, s{sC}
""")
    for i in range(3):
        e(f"""
s_mul_i32 s{sT1}, s{sW4}, 3
s_add_u32 s{sT1}, s{sT1}, {i}
s_lshr_b32 s{sT2}, s{sT1}, 2
s_lshl_b32 s{sRY+i}, s{sT2}, 7
s_and_b32 s{sT3}, s{sT1}, 3
s_xor_b32 s{sT3}, s{sT3}, s{sW4}
s_lshl_b32 s{sRX+i}, s{sT3}, 5
s_and_b32 s{sT3}, s{sT1}, 2
s_lshl_b32 s{sT3}, s{sT3}, 5
s_and_b32 s{sT2}, s{sT1}, 1
s_lshl_b32 s{sT2}, s{sT2}, 3
v_xor_b32 v{QW[i]}, s{sT2}, v12
s_or_b32 s{sT3}, s{sT3}, s{sT2}
v_xor_b32 v13, s{sT3}, v11
s_lshr_b32 s{sT1}, s{sT1}, 1
s_mul_i32 s{sT1}, s{sT1}, 7168
v_add_u32 v{QW[i]}, s{sT1}, v{QW[i]}
s_mul_i32 s{sT1}, s{sW4}, 3
s_add_u32 s{sT1}, s{sT1}, {i}
s_lshr_b32 s{sT1}, s{sT1}, 1
s_cmp_lt_u32 s{sT1}, 3
s_cselect_b32 s{sT3}, {B2 - (T1R + 6144 - 18432)}, 0
s_add_u32 s{sT3}, s{sT3}, {T1R + 6144 - 18432}
s_lshl_b32 s{sT2}, s{sT1}, 10
s_sub_u32 s{sT2}, s{sT3}, s{sT2}
v_add_u32 v{QB[i]}, s{sT2}, v{QW[i]}
s_mul_i32 s{sT2}, s{sT1}, 6144
s_sub_u32 s{sT2}, {T1R}, s{sT2}
v_add_u32 v{QT[i]}, s{sT2}, v{QW[i]}
s_mul_i32 s{sT1}, s{sTEAM}, {TILE}
s_add_u32 s{sT1}, s{sT1}, s{sRY+i}
v_add_u32 v13, s{sT1}, v13
v_add_u32 v{RA[1][i]}, {T1R}, v13
v_add_u32 v{RA[0][i]}, {KVB}, v13
""")
    g.wait("vm", "in", ["W0.0", "W0.1", "X0"])
    e("s_barrier")
    stamp(e, 14, real=bool(OPT["rt"]))
    e(f"""
s_cmp_lg_u32 s{sWAVE}, 0
s_cbranch_scc1 k1_nocnt
s_mov_b32 s4, s26
s_mov_b32 s5, s27
s_mov_b32 s6, 256
s_mov_b32 s7, 0x20000
s_lshl_b32 s{sT1}, s{sGRP}, 2
v_mov_b32 v204, 0
v_mov_b32 v205, 1
s_mov_b64 exec, 1
buffer_atomic_add v205, v204, s[4:7], s{sT1} offen sc1
s_mov_b64 exec, -1
k1_nocnt:
""")
    a_read(0, 0, 0); a_read(0, 0, 1); b_read(0, 0); b_read(0, 1)
    for n in range(2, 6): a_read(0, 0, n)
    for n in range(6): a_read(0, 1, n)
    for rt in range(2, 4): b_read(0, rt)
    issue(dma_w(1, 0) + dma_w(1, 1) + dma_x(1)); g.drain(9)
    ORD = [(rt, 0, k) for rt in (0, 1) for k in range(3)] + [(rt, 1, k) for rt in (0, 1) for k in range(3)]
    ORD += [(rt, hh, k) for rt in range(2, 7) for hh in range(2) for k in range(3)]
    lastb = {rt: max(n for n, x in enumerate(ORD) if x[0] == rt) for rt in range(7)}
    A0 = [NB1 + 2 + 3 * x for x in range(6)]
    A1 = [NB2 + 1 + 2 * x for x in range(6)]
    def qcvt(n):
        rt, hh, k = ORD[n]
        a = AC(hh, rt, k)
        e(f"v_pk_mul_f32 {v(a,2)}, {v(a,2)}, s[{sC}:{sC+1}]")
        e(f"v_pk_mul_f32 {v(a+2,2)}, {v(a+2,2)}, s[{sC}:{sC+1}]")
        e(f"v_cvt_pk_bf16_f32 v{a}, v{a}, v{a+1}")
        e(f"v_cvt_pk_bf16_f32 v{a+1}, v{a+2}, v{a+3}")
        todo.append(n)
        while todo and bar19[0]:
            m = todo.pop(0)
            rt, hh, k = ORD[m]
            r, o = (QW[k], QO + rt * 1024) if hh == 0 else (QB[k], rt * 1024) if rt < 6 else (QT[k], 0)
            e(f"s_cbranch_scc0 qp_w{m}")
            e(f"ds_write_b64 v{r}, {v(AC(hh,rt,k),2)} offset:{o}")
            g.label(f"qp_w{m}")
    todo = []; bar19 = [False]
    lastd = [0]
    for i in range(20):
        if i in (17, 18): e(f"v_add_u32 v{XA[i-17]}, {X9}, v{XA[i-17]}")
        seen = set()
        for n, (rt, hh, k) in enumerate(ORD):
            if n == NB1 and i < 19:
                g.drain(9); lastd[0] = n - 9
                g.wait("lg", f"r1{i}", [], drain_tags=[f"{i}a1{x}" for x in range(3)])
                g.wait("vm", f"s{i}", [f"W{i+1}.0"] + ([f"X{(i+1)//2}"] if i % 2 == 1 else []))
                e("s_barrier")
                issue(((dma_w(i + 2, 0) if i == 0 else []) + dma_w(i + 2, 1) if i + 2 < 20 else []) + (dma_x(i // 2 + 2) if i % 2 == 0 and i // 2 + 2 < 10 else []))
            if OPT["wt"] and n == NB1 + OPT["wtn"] and i + OPT["wt"] < 20:
                e(f"s_cmp_lg_u32 s{sWAVE}, {i % 8}")
                e(f"s_cbranch_scc1 qp_wt{i}")
                e(f"s_add_u32 s{sT3}, s{sWT}, {(i+OPT['wt'])*32*12288}")
                e(f"buffer_load_dword v{JUNK}, v254, s[{sWd}:{sWd+3}], s{sT3} offen {OPT['tq']}")
                g.label(f"qp_wt{i}")
            if n == NB2 and i < 19:
                g.drain(9); lastd[0] = n - 9
                g.wait("lg", f"r2{i}", [], drain_tags=[f"{i+1}a0{x}" for x in range(3)])
                g.wait("vm", f"t{i}", [f"W{i+1}.1"])
                e("s_barrier")
                if i + 3 < 20: issue(dma_w(i + 3, 0))
            if n == NB1 and i == 19:
                g.wait("lg", "r119", [], drain_tags=[f"19a1{x}" for x in range(3)])
                e("s_barrier")
                e(f"s_cmp_eq_u32 s{sTEAM}, 0")
                bar19[0] = True
            if OPT["qp1"] and n == 0 and i == OPT["qp1"]:
                e(f"s_cmp_eq_u32 s{sTEAM}, 0")
                e("s_cbranch_scc1 qp_np")
                e("s_setprio 1")
                g.label("qp_np")
            if OPT["kpf"] and n == NB2 - 1 and i == OPT["kps"]:
                assert not g.pend
                e(f"""
s_cmp_lg_u32 s{sTEAM}, 0
s_cbranch_scc1 qp_nokpf
s_cmp_lt_u32 s{sWAVE}, 2
s_cselect_b64 s[4:5], s[{sKd}:{sKd+1}], s[{sVd}:{sVd+1}]
s_cselect_b32 s{sT3}, {2*TILE}, 0
s_add_u32 s{sT3}, s{sT3}, {TILE}
s_mov_b32 m0, {SPARE+1024+512}
s_mov_b32 s6, 786432
s_mov_b32 s7, 0x20000
s_and_b32 s{sT2}, s{sWAVE}, 1
s_lshl_b32 s{sT2}, s{sT2}, 13
s_add_u32 s{sT3}, s{sT3}, s{sT2}
v_mbcnt_lo_u32_b32 v254, -1, 0
v_mbcnt_hi_u32_b32 v254, -1, v254
v_lshlrev_b32 v254, 7, v254
""")
                for r in range(OPT["kpf"]):
                    e(f"buffer_load_dword v254, s[4:7], s{sT3} offen {OPT['kpl']} lds")
                    e(f"s_add_u32 s{sT3}, s{sT3}, 16384")
                g.label("qp_nokpf")
            if OPT["stl"] and n == NB1 + 1 and i in range(OPT["stl"], OPT["stl"] + 2 * OPT["stn"], 2):
                r = (i - OPT["stl"]) // 2
                e(f"""
s_lshr_b32 s{sT3}, s{sWAVE}, 1
s_cmp_eq_u32 s{sT3}, 0
s_cselect_b64 s[4:5], s[{sKd}:{sKd+1}], s[{sVd}:{sVd+1}]
s_cmp_eq_u32 s{sT3}, 2
s_cselect_b64 s[4:5], s[{sOd}:{sOd+1}], s[4:5]
s_and_b32 s{sT3}, s{sWAVE}, 1
s_mul_i32 s6, s{sT3}, {786432 // 2}
s_add_u32 s6, s6, {r * (786432 // 2 // OPT["stn"]) + (786432 // 2 // OPT["stn"]) - 64}
s_cmp_eq_u32 s{sWAVE}, 6
s_cselect_b64 s[4:5], s[{sPd}:{sPd+1}], s[4:5]
s_cselect_b32 s6, 0, s6
s_cmp_eq_u32 s{sWAVE}, 7
s_cselect_b64 s[4:5], s[24:25], s[4:5]
s_mul_i32 s{sT3}, s{sB}, {112*2560}
s_cselect_b32 s6, s{sT3}, s6
s_load_dword s99, s[4:5], s6
""")
            if OPT["pwo"] and n == 20 and i == OPT["pwo"]:
                nsh = 16 if OPT["map"] == 0 else 8
                per = 245760 * OPT["pwh"] // (8 * nsh)
                e(f"""
s_and_b32 s{sT3}, s{sB}, {nsh-1}
s_lshl_b32 s{sT3}, s{sT3}, 3
s_add_u32 s{sT3}, s{sT3}, s{sWAVE}
s_mul_i32 s{sT3}, s{sT3}, {per}
s_add_u32 s{sT3}, s{sT3}, {245760 * (4 - OPT["pwh"])}
v_mbcnt_lo_u32_b32 v251, -1, 0
v_mbcnt_hi_u32_b32 v251, -1, v251
v_min_u32 v251, {min(59, per // 128 - 1)}, v251
v_lshlrev_b32 v251, 7, v251
""")
                for r in range(max(1, per // 7680)):
                    g.vm("pf", f"buffer_load_dword v{JUNK}, v251, s[{sOd}:{sOd+3}], s{sT3} offen {OPT['pwf']}")
                    e(f"s_add_u32 s{sT3}, s{sT3}, 7680")
            if n == NB2 + 1 and i == 18:
                e(f"s_cmp_eq_u32 s{sTEAM}, 0")
                e("s_cbranch_scc1 qp_nokv")
                e(f"s_mul_i32 s{sKSO2}, s{sW4}, 3072")
                e(f"s_lshl_b32 s{sT3}, s{sW4}, 10")
                for u in range(NPRE):
                    a, bb = divmod(u, 3)
                    e(f"s_add_u32 m0, s{sT3}, {KVB + (u % NS) * 4096 - bb * 128}")
                    e(f"s_add_u32 s{sT1}, s{sKSO2}, {kv_tile(a) * TILE}")
                    srd = sKd if kv_kind(a) == "K" else sVd
                    e(f"buffer_load_dwordx4 v{PKV_}, s[{srd}:{srd+3}], s{sT1} offen offset:{bb*128} {OPT['kv']} lds")
                g.label("qp_nokv")
            tags = [t for t in (f"{i}b{rt}", f"{i}a{hh}{k}") if t not in seen]
            seen.update(tags)
            if tags: g.wait("lg", f"{i}m{n}", tags)
            mfma(e, AC(hh, rt, k), AF(i & 1, hh, k), BF(7 * i + rt), "0" if i == 0 else AC(hh, rt, k))
            if n == lastb[rt]:
                if rt + 4 < 7: b_read(i, rt + 4)
                elif i < 19: b_read(i + 1, rt - 3)
            if i < 19 and n in A0: a_read(i + 1, 0, A0.index(n))
            if i < 19 and n in A1: a_read(i + 1, 1, A1.index(n))
            if g.pend and (n - lastd[0]) % 42 >= (OPT["qd"] if len(g.pend) <= 3 else OPT["qd"] - 2):
                g.drain(1); lastd[0] = n
            if i == 19 and n >= 4: qcvt(n - 4)
    for n in range(38, 42): qcvt(n)
    stamp(e, 15, real=bool(OPT["rt"]))
    return g.rec

def t0_path(p, needs, nrt, tag):
    g = Gen(p, needs); e = g.e
    def ACC(rt, t): return rt * 48 + t * 4
    def Q(rt, j): return 96 + rt * 24 + j * 4
    def S(par, rt, kt=0): return 144 + par * 16 + rt * 8 + kt * 4
    def P(par, rt): return 176 + par * 8 + rt * 4
    def NEGM(rt): return 192 + rt * 4
    def LSUM(rt): return 200 + rt * 4
    def STG(rt, j): return 144 + (j * 2 + rt) * 4 if j < 5 else 192 + rt * 4
    ONES = 208
    FR0 = 212; NFR = 8
    def FR(a, f): return FR0 + ((a * 12 + f) % NFR) * 4
    KA = [244, 245]; VA = [246, 247, 248, 249]; QOA = 250
    TC = 251; T = [252, 253, 254, 255]
    HOLD = [48 + 4 * i for i in range(12)] + [156, 172, 180, 188, 196, 204]
    def rd_l(a, f):
        base = ((3 * a + f // 4) % NS) * 4096; tg = f"A{a%32}f{f}"
        if kv_kind(a) == "K":
            j, kt = divmod(f, 2)
            return [lambda: g.ld(tg, f"ds_read_b128 {v(FR(a,f),4)}, v{KA[j&1]} offset:{base+kt*2048}")]
        return [lambda hf=hf: g.ld(tg, f"ds_read_b64_tr_b16 {v(FR(a,f)+2*hf,2)}, v{VA[f&3]} offset:{base+hf*2048}") for hf in range(2)]
    def run(x):
        if callable(x): x()
        else: e(x)
    def cost(x): return 2 if isinstance(x, str) and x.startswith(("v_exp", "v_rcp")) else 1
    def step(key, a, mfs, valu=(), last=False, extra=None, v0=0):
        valu = list(valu)
        ngap = sum(len(mfs(f, 0)) for f in range(v0, 12))
        tot = sum(cost(x) for x in valu); done = 0; gap = 0
        for f in range(12):
            pos = a * 12 + f
            if extra and f in extra: extra[f]()
            if pos in XB_: e("s_barrier")
            reads = rd_l(a, f + LEAD) if f + LEAD < 12 else ([] if last else rd_l(a + 1, f + LEAD - 12))
            if not OPT["w2"]: g.wait("lg", f"{key}{f}", [f"A{a}f{f}"])
            elif f % 2 == 0: g.wait("lg", f"{key}{f}", [f"A{a}f{f}", f"A{a}f{f+1}"])
            ms = mfs(f, FR(a, f))
            for i, m in enumerate(ms):
                m()
                if reads: reads.pop(0)()
                if i == len(ms) - 1:
                    while reads: reads.pop(0)()
                if f >= v0:
                    gap += 1
                    while valu and done + cost(valu[0]) / 2 <= tot * gap / ngap:
                        done += cost(valu[0]); run(valu.pop(0))
        for x in valu: run(x)
    def mf_qk(par, zero):
        def m(f, fr):
            j, kt = divmod(f, 2)
            return [lambda rt=rt: mfma(e, S(par, rt, kt), fr, Q(rt, j), ("0" if zero else NEGM(rt)) if j == 0 else S(par, rt, kt)) for rt in range(nrt)]
        return m
    def onorm_l(j):
        out = []
        for rt in range(nrt):
            a = ACC(rt, 2 * j)
            out += [f"v_pk_mul_f32 {v(a+i,2)}, {v(a+i,2)}, {v(T[2*rt],2)}" for i in range(0, 8, 2)]
            out += [f"v_cvt_pk_bf16_f32 v{STG(rt,j)+i}, v{a+2*i}, v{a+2*i+1}" for i in range(4)]
        return out
    def mf_pv(par, first, last=False):
        def m(f, fr):
            out = []
            if f == (0 if last else 5):
                out += [lambda rt=rt: mfma(e, LSUM(rt), ONES, P(par, rt), "0" if first else LSUM(rt)) for rt in range(nrt)]
            return out + [lambda rt=rt: mfma(e, ACC(rt, f), fr, P(par, rt), "0" if first else ACC(rt, f)) for rt in range(nrt)]
        return m
    def sm(par, lo=0, hi=None):
        grp = [(rt, i) for rt in range(nrt) for i in range(4)][lo:hi]
        seq = []
        for n, (rt, i) in enumerate(grp):
            a, b = T[(2 * n) % 4], T[(2 * n + 1) % 4]
            r = S(par, rt) + 2 * i
            seq += [f"v_exp_f32 v{a}, v{r}", f"v_exp_f32 v{b}, v{r+1}"]
            if n > 0: seq.append(prev)
            prev = f"v_cvt_pk_bf16_f32 v{P(par,rt)+i}, v{a}, v{b}"
        return seq + [prev] if grp else []
    def chk_l(par):
        p0 = P(par, 0)
        out = [f"v_or3_b32 v{TC}, v{p0}, v{p0+1}, v{p0+2}"]
        if nrt == 2:
            out += [f"v_or3_b32 v{TC}, v{TC}, v{p0+3}, v{p0+4}", f"v_or3_b32 v{TC}, v{TC}, v{p0+5}, v{p0+6}"]
        out += [f"v_bitop3_b32 v{TC}, v{TC}, v{p0+4*nrt-1}, s{sBIT} bitop3:0xa8", f"v_cmp_ne_u32 vcc, 0, v{TC}"]
        return out
    def chk_branch(par, key):
        e(f"s_cbranch_vccz t0_ok{key}_{tag}")
        if not OPT["norare"]: e(f"s_call_b64 s[{sRET}:{sRET+1}], t0_rare{par}_{tag}")
        g.label(f"t0_ok{key}_{tag}")
    def rowmax(par, rt, t, t2):
        r = S(par, rt)
        e(f"""
v_max3_f32 v{t}, v{r}, v{r+1}, v{r+2}
v_max3_f32 v{t}, v{t}, v{r+3}, v{r+4}
v_max3_f32 v{t}, v{t}, v{r+5}, v{r+6}
v_max_f32 v{t}, v{t}, v{r+7}
v_mov_b32 v{t2}, v{t}
v_permlane32_swap_b32 v{t2}, v{t}
v_max_f32 v{t}, v{t}, v{t2}
v_mov_b32 v{t2}, v{t}
v_permlane16_swap_b32 v{t2}, v{t}
v_max_f32 v{t}, v{t}, v{t2}
v_add_f32 v{t}, {hex(f2u(7.0))}, v{t}
""")
    L = 216
    lane_regs(e, L)
    e(f"""
s_waitcnt lgkmcnt(0)
s_lshl_b32 s{sT1}, s{sWAVE}, 11
s_add_u32 s{sT1}, s{sT1}, {QO}
v_lshl_add_u32 v{QOA}, v{L}, 4, s{sT1}
v_lshrrev_b32 v{L+6}, 1, v{L+1}
v_and_b32 v{L+6}, 3, v{L+6}
v_lshlrev_b32 v{L+6}, 1, v{L+6}
v_xor_b32 v{L+6}, v{L+2}, v{L+6}
v_lshlrev_b32 v{L+6}, 4, v{L+6}
v_lshl_add_u32 v{L+6}, v{L+1}, 7, v{L+6}
v_add_u32 v{KA[0]}, {KVB}, v{L+6}
v_xor_b32 v{KA[1]}, 64, v{KA[0]}
v_lshrrev_b32 v{L+6}, 1, v{L+3}
v_and_b32 v{L+6}, 3, v{L+6}
v_lshlrev_b32 v{L+6}, 5, v{L+6}
v_lshl_add_u32 v{L+6}, v{L+3}, 7, v{L+6}
v_lshl_add_u32 v{L+6}, v{L+5}, 3, v{L+6}
v_add_u32 v{VA[0]}, {KVB}, v{L+6}
v_xor_b32 v{VA[1]}, 32, v{VA[0]}
v_xor_b32 v{VA[2]}, 64, v{VA[0]}
v_xor_b32 v{VA[3]}, 96, v{VA[0]}
s_mov_b32 s{sBIT}, 0x40004000
s_mov_b32 s{sSLOT}, 1
""")
    for i in range(4): e(f"v_mov_b32 v{ONES+i}, 0x3f803f80")
    H = 4 if (nrt == 2 and OPT["psplit"]) else (2 if OPT["psplit"] else 0)
    for unit in range(2):
        if unit >= 1: g.mute += 1
        g.label(f"t0_unit_{tag}")
        e("s_barrier")
        if not g.mute: stamp_slot(e)
        e(f"s_cmp_gt_u32 s{sSLOT}, 3")
        e(f"s_cbranch_scc1 t0_q3_{tag}")
        for j in range(6):
            for rt in range(nrt): e(f"ds_read_b128 {v(Q(rt,j),4)}, v{QOA} offset:{(j*7+rt)*1024}")
        e(f"s_cmp_lg_u32 s{sSLOT}, 1")
        e(f"s_cbranch_scc1 t0_w_{tag}")
        if nrt == 1:
            for j in range(6): e(f"ds_read_b128 {v(Q(1,j),4)}, v{QOA} offset:{T1R-6144+j*1024}")
            for n in range(18): e(f"ds_read_b128 {v(HOLD[n],4)}, v{QOA} offset:{T1R+n*1024}")
        e(f"s_branch t0_noo_{tag}")
        g.label(f"t0_q3_{tag}")
        e(f"s_cmp_eq_u32 s{sSLOT}, 5")
        e(f"s_cbranch_scc1 t0_w_{tag}")
        if nrt == 1:
            for i in range(24): e(f"v_mov_b32 v{Q(0,0)+i}, v{Q(1,0)+i}")
        else:
            e(f"v_add_u32 v{TC}, {B2}, v{QOA}")
            for j in range(6):
                for rt in range(nrt):
                    if j < 3: e(f"ds_read_b128 {v(Q(rt,j),4)}, v{TC} offset:{(j*6+rt)*1024}")
                    else: e(f"ds_read_b128 {v(Q(rt,j),4)}, v{QOA} offset:{(j*7+rt)*1024}")
        g.label(f"t0_w_{tag}")
        e("s_waitcnt lgkmcnt(0)")
        for j in range(6):
            for rt in range(nrt): e(f"ds_write_b128 v{QOA}, {v(STG(rt,j),4)} offset:{(j*7+rt)*1024}")
        e(f"s_cmp_eq_u32 s{sSLOT}, 5")
        e(f"s_cbranch_scc1 t0_exit_{tag}")
        g.label(f"t0_noo_{tag}")
        for f in range(LEAD):
            for x in rd_l(0, f): x()
        step("a0_", 0, mf_qk(0, True), extra={1: lambda: e("s_barrier")})
        for rt in range(nrt):
            rowmax(0, rt, T[0], T[1])
            for i in range(4): e(f"v_sub_f32 v{NEGM(rt)+i}, 0, v{T[0]}")
            for i in range(8): e(f"v_sub_f32 v{S(0,rt)+i}, v{S(0,rt)+i}, v{T[0]}")
        for t in range(15):
            step(f"q{t}_", 2 * t + 1, mf_qk((t + 1) & 1, False), valu=sm(t & 1, H if t else 0) + chk_l(t & 1))
            chk_branch(t & 1, f"q{t}")
            va = sm((t + 1) & 1, 0, H)
            if t == 14: va = sm(1) + chk_l(1)
            step(f"p{t}_", 2 * t + 2, mf_pv(t & 1, t == 0), valu=va, v0=1)
        chk_branch(1, "q15")
        rc = [f"v_rcp_f32 v{T[i]}, v{LSUM(i//2)}" for i in range(2 * nrt)]
        ex = {3: lambda: [e(x) for x in rc]}
        for j in range(4): ex[4 + 2 * j] = lambda j=j: [e(x) for x in onorm_l(j)]
        step("p15_", 31, mf_pv(1, False, True), last=True, extra=ex)
        for x in onorm_l(4) + onorm_l(5): e(x)
        if nrt == 1:
            e(f"s_cmp_lg_u32 s{sSLOT}, 3")
            e("s_cbranch_scc1 t0_nohold")
            e(f"v_subrev_u32 v{TC}, 6144, v{QOA}")
            for n in range(18): e(f"ds_write_b128 v{TC}, {v(HOLD[n],4)} offset:{((3+n//6)*7+n%6)*1024}")
            e("s_waitcnt lgkmcnt(0)")
            g.label("t0_nohold")
        e(f"""
s_add_u32 s{sSLOT}, s{sSLOT}, 1
s_branch t0_unit_{tag}
""")
        if unit >= 1: g.mute -= 1
    g.label(f"t0_exit_{tag}")
    e("s_branch t0_final")
    for par in range(2):
        g.label(f"t0_rare{par}_{tag}")
        for rt in range(nrt):
            t, t2 = TC, T[0]
            rowmax(par, rt, t, t2)
            e(f"v_max_f32 v{t}, 0, v{t}")
            for i in range(4): e(f"v_sub_f32 v{NEGM(rt)+i}, v{NEGM(rt)+i}, v{t}")
            for pp in range(2):
                for i in range(8): e(f"v_sub_f32 v{S(pp,rt)+i}, v{S(pp,rt)+i}, v{t}")
            e(f"v_exp_f32 v{t}, -v{t}")
            for i in range(4): e(f"v_mul_f32 v{LSUM(rt)+i}, v{LSUM(rt)+i}, v{t}")
            for i in range(48): e(f"v_mul_f32 v{ACC(rt,0)+i}, v{ACC(rt,0)+i}, v{t}")
        for x in sm(par): e(x)
        e(f"s_setpc_b64 s[{sRET}:{sRET+1}]")
    return g.rec


def t0_final(p, needs):
    g = Gen(p, needs); e = g.e
    g.label("t0_final")
    op = OpEngine(g, lambda tt: 2 * (tt - 42), 56, 112, 128, [244, 245], 246, [247, 248], KVB, sLW, 2)
    op.fl = OPT["wo5"]; op.early = OPT["early"] >> 1
    op.addr_setup()
    e(f"""
s_mul_i32 s{sOB}, s{sW4}, {8*1280}
s_add_u32 s{sOB}, s{sOB}, {3*245760}
s_lshl_b32 s{sLW}, s{sW4}, 11
s_mov_b32 s{sSLO}, 0x01000c0c
s_mov_b32 s{sSHI}, 0x03020c0c
s_lshl_b32 s{sT1}, s{sW4}, 10
s_add_u32 s{sT1}, s{sT1}, {KVB + 32768}
v_add_u32 v249, s{sT1}, v246
""")
    for i in range(18, 22):
        for f in op.dma(i): f()
    def pk_read(ps):
        for rt in range(7): g.ld("pk", f"ds_read_b128 {v(op.PK(ps*14+rt*2),4)}, v249 offset:{rt*4096}")
    e("s_waitcnt lgkmcnt(0)"); g.lq[:] = []
    e("s_barrier")
    pk_read(3)
    e("s_waitcnt lgkmcnt(0)"); g.lq[:] = []
    for k in range(14):
        for x in op.unpack_l(op.AC(k), op.PK(42 + k)): e(x)
    g.wait("vm", "in", ["O18"])
    e("s_barrier")
    op.first_reads(18)
    def tick(i):
        op.flush_pq()
        g.wait("vm", f"t{i}", [f"O{i+1}"])
        e("s_barrier")
        if i + 4 < 30:
            for f in op.dma(i + 4): f()
    for i in range(18, 30):
        op.step("f", i, 29, tick, store=[3], hooks={5: lambda: pk_read(4)} if i == 20 else None)
    op.finish()
    for i in range(OPT["lastb"] - 11): e("s_barrier")
    e("s_branch k1_final")
    return g.rec

def t1_path(p, needs):
    g = Gen(p, needs); e = g.e
    def PK(tt): return 2 * tt
    def Q2(k): return PK(56) + 2 * k if k < 14 else 236 + 2 * (k - 14)
    OB = 252
    op = OpEngine(g, PK, 140, 196, 212, [250, 251], OB, [253, 254], T1R, sLW, 0)
    AC, AF, BF = op.AC, op.AF, op.BF
    op.pkb = OPT["pkb"] & 1
    def dma_sub(u):
        a, bb = divmod(u, 3)
        srd = sKd if kv_kind(a) == "K" else sVd
        def f():
            kw = (OPT["kwa"] if u < OPT["kwu"] else OPT["kw"]) if st.get("mixed") else (OPT["kw1"] if u >= OPT["kw1s"] else 0)
            if kw:
                idx = [i for i, t in enumerate(g.vq) if t.startswith("U")]
                n = len(g.vq) - 1 - idx[-kw] if len(idx) >= kw else 999
                k = ("vm", f"kw{u}.{st.get('mixed')}")
                g.rec[k] = min(g.rec.get(k, 999), n)
                val = g.needs.get(k, n)
                if val != 999:
                    e(f"s_waitcnt vmcnt({val})")
                    del g.vq[:len(g.vq) - val if val < len(g.vq) else 0]
            e(f"s_add_u32 m0, s{sL1}, {KVB + (u % NS) * 4096 - bb * 128}")
            e(f"s_add_u32 s{sT1}, s{sKSO2}, {kv_tile(a) * TILE}")
            off = f"offset:{bb*128} " if bb else ""
            g.vm(f"U{u % 96}", f"buffer_load_dwordx4 v{PKV_}, s[{srd}:{srd+3}], s{sT1} offen {off}{OPT['kv']} lds")
        return f
    st = dict(pub=0, iss=0)
    def kv_tags(k):
        upto = XB_[k + 1] if k < NX - 1 else 384
        n = -(-(upto + LEAD) // 4) if upto < 384 else 96
        tags = [f"U{u}" for u in range(st["pub"], n)]
        st["pub"] = max(st["pub"], n)
        return tags
    def kv_issue(k):
        out = []
        while k in KVT and 4 * (st["iss"] - KL) + 4 <= XB_[k]:
            out.append(dma_sub(st["iss"])); st["iss"] += 1
        return out
    def touch_o(t):
        nsh = 16 if OPT["map"] == 0 else 8
        per = 245760 // (4 * nsh)
        e(f"""
s_and_b32 s{sT1}, s{sB}, {nsh-1}
s_lshl_b32 s{sT1}, s{sT1}, 2
s_add_u32 s{sT1}, s{sT1}, s{sW4}
s_mul_i32 s{sT1}, s{sT1}, {per}
s_sub_u32 s{sT2}, s{sSLOT}, 1
s_mul_i32 s{sT2}, s{sT2}, 245760
s_add_u32 s{sT1}, s{sT1}, s{sT2}
s_mov_b32 m0, {SPARE}
v_lshrrev_b32 v{t}, 4, v{OB}
v_min_u32 v{t}, {per//128-1}, v{t}
v_lshlrev_b32 v{t}, 7, v{t}
""")
        g.vm("pf", f"buffer_load_dword v{t}, s[{sOd}:{sOd+3}], s{sT1} offen {OPT['tf']} lds")
    NEXT = {26: 2, 27: 3, 28: 0, 29: 1}
    def tick(i):
        waits = ([f"O{i+1}"] if i < 29 else []) + kv_tags(i)
        op.flush_pq()
        if waits: g.wait("vm", f"o{i}", waits)
        if OPT["vcap"]: e(f"s_waitcnt vmcnt({OPT['vcap']})")
        e("s_barrier")
        io = []
        if not OPT["burst"]:
            if i == 26: io.append(lambda: e(f"s_add_u32 s{sOB}, s{sOB}, 245760"))
            io += op.dma(NEXT.get(i, i + 4))
        elif i % 2 == 1:
            if i == 27: io.append(lambda: e(f"s_add_u32 s{sOB}, s{sOB}, 245760"))
            io += op.dma(NEXT.get(i - 1, i + 3)) + op.dma(NEXT.get(i, i + 4))
        items = kv_issue(i) + io if OPT["kvfirst"] and i < 28 else io + kv_issue(i)
        if OPT["near"] and i == OPT["near"]: items.append(lambda: touch_o(AF(i + 1, 0) if False else 249))
        for f in items[:OPT["now0"]]: f()
        items = items[OPT["now0"]:]
        for j, f in enumerate(items): op.pq.append((op.clock + OPT["vpost"] + (j * OPT["span"]) // len(items), f))
    def q_write(reg):
        for rt in range(7):
            for k in range(3): e(f"ds_write_b64 v{AC(0)+k}, {v(reg(rt,k),2)} offset:{QO+rt*1024}")
        e("s_waitcnt lgkmcnt(0)")
    def q_addr():
        t = AC(1)
        e(f"v_lshrrev_b32 v{t}, 5, v{OB}")
        e(f"v_and_b32 v{t}, 8, v{t}")
        e(f"v_add_u32 v{t}, v{t}, v{OB}")
        for k in range(3):
            e(f"""
s_mul_i32 s{sT1}, s{sW4}, 3
s_add_u32 s{sT1}, s{sT1}, {k}
s_lshr_b32 s{sT2}, s{sT1}, 1
s_mul_i32 s{sT2}, s{sT2}, 7168
s_and_b32 s{sT1}, s{sT1}, 1
s_lshl_b32 s{sT1}, s{sT1}, 3
v_xor_b32 v{AC(0)+k}, s{sT1}, v{t}
v_add_u32 v{AC(0)+k}, s{sT2}, v{AC(0)+k}
""")

    e(f"""
s_mul_i32 s{sOB}, s{sW4}, {8*1280}
s_lshl_b32 s{sLW}, s{sW4}, 11
s_lshl_b32 s{sL1}, s{sW4}, 10
s_mov_b32 s{sSLOT}, 1
s_mov_b32 s{sRX}, 0x01000c0c
s_mov_b32 s{sRX+1}, 0x03020c0c
""")
    for u in range(NPRE):
        g.vq.append(f"U{u}"); g.issued[f"U{u}"] = 1
    st.update(pub=0, iss=NPRE)
    if OPT["qp1"]: e(f"s_setprio {OPT['prio1']}")
    g.wait("vm", "i_t0", kv_tags(-1))
    e("s_barrier")
    stamp_slot(e)
    for u in range(NPRE, N0 - 96): dma_sub(u)()
    st["iss"] = N0 - 96
    e("s_barrier")
    for rt in range(7):
        for k in range(3): e(f"ds_write_b64 v{QW[k]}, {v(QAC(0,rt,k),2)} offset:{QO+rt*1024}")
    def setup():
        e("s_waitcnt lgkmcnt(0)")
        for k in range(21):
            for x in range(2): e(f"v_mov_b32 v{2*k+x}, v{QAC(1,k//3,k%3)+x}")
        for k in range(21):
            for x in range(2): e(f"v_mov_b32 v{Q2(k)+x}, v{2*k+x}")
    def setup0():
        e("s_waitcnt lgkmcnt(0)")
        op.addr_setup()
        setup()
    task = {0: setup0}
    if OPT["touch"]: task[4] = lambda: touch_o(AF(0, 0))
    for k in range(NX):
        w = kv_tags(k)
        if w: g.wait("vm", f"i{k}", w)
        e("s_barrier")
        for f in kv_issue(k): f()
        if k in task: task[k]()
        if k >= 26:
            for f in op.dma(NEXT[k]): f()
    for s in range(2, 5):
        if s != 2: g.mute += 1
        g.label("t1_slot")
        assert st["iss"] == N0
        st.update(pub=0, iss=N0 - 96, mixed=1)
        e(f"""
s_add_u32 s{sSLOT}, s{sSLOT}, 1
s_add_u32 s{sKSO2}, s{sKSO2}, 196608
s_cmp_eq_u32 s{sSLOT}, 2
s_cselect_b32 s{sSLO}, 0x0c0c0c0c, s{sRX}
s_cselect_b32 s{sSHI}, 0x0c0c0c0c, s{sRX+1}
""")
        g.wait("vm", "t0", kv_tags(-1))
        e("s_barrier")
        if not g.mute: stamp_slot(e)
        if OPT["touch"] and not OPT["near"]: touch_o(AF(0, 0))
        for k in range(14):
            for x in op.unpack_l(AC(k), PK(k)): e(x)
        g.wait("vm", "o_in", ["O0"])
        e("s_barrier")
        stamp_if(e, 12, OPT["ps"])
        op.first_reads(0)
        for i in range(30): op.step("m", i, 29, tick)
        stamp_if(e, 13, OPT["ps"])
        tick(29)
        op.finish()
        e(f"s_cmp_lg_u32 s{sSLOT}, 2")
        e("s_cbranch_scc1 t1_noq2")
        for k in range(3): e(f"v_mov_b32 v{BF(0)+k}, v{AC(0)+k}")
        e(f"v_mov_b32 v{BF(0)+3}, v{AC(1)}")
        q_addr()
        q_write(lambda rt, k: Q2(rt * 3 + k))
        for k in range(3): e(f"v_mov_b32 v{AC(0)+k}, v{BF(0)+k}")
        e(f"v_mov_b32 v{AC(1)}, v{BF(0)+3}")
        g.label("t1_noq2")
        for n in range(14):
            for x in op.pack_l(PK(56 + n), AC(n)): e(x)
        e(f"s_cmp_lg_u32 s{sSLOT}, 4")
        e("s_cbranch_scc1 t1_slot")
        if s != 2: g.mute -= 1
    g.label("t1_last")
    op.fl = OPT["wo5"]; op.nr = OPT["r5"]; op.early = OPT["early"] & 1; op.pkb = OPT["pkb"] >> 1
    R5 = op.nr
    e(f"""
s_mov_b32 s{sSLOT}, 5
s_lshl_b32 s{sT1}, s{sW4}, 10
s_add_u32 s{sT1}, s{sT1}, {KVB + 32768}
v_add_u32 v249, s{sT1}, v{OB}
""")
    def pk_write(ps):
        for rt in range(7): g.ld("pk", f"ds_write_b128 v249, {v(PK(ps*14+rt*2),4)} offset:{rt*4096}")
    for k in range(14):
        for x in op.unpack_l(AC(k), PK(k)): e(x)
    e("s_waitcnt vmcnt(0)"); g.vq[:] = []
    e("s_barrier")
    stamp_slot(e)
    for i in range(4, R5):
        for f in op.dma(i): f()
    pk_write(3)
    e("s_waitcnt lgkmcnt(0)"); g.lq[:] = []
    e("s_barrier")
    stamp_if(e, 12, OPT["ps"])
    g.issued.pop("O0")
    op.first_reads(0)
    def tick5(i):
        op.flush_pq()
        if i > OPT["lastb"]: return
        if i == 2: g.wait("lg", "pkw", ["pk"])
        g.wait("vm", f"f{i}", [f"O{x}" for x in range(i + 1, 18 if i == OPT["lastb"] else i + 2)])
        e("s_barrier")
        if i + R5 < 18:
            for f in op.dma(i + R5): f()
    g.issued.pop("pk")
    for i in range(18):
        op.step("f", i, 17, tick5, store=[0], hooks={5: lambda: pk_write(4)} if i == 1 else None)
    op.finish()
    stamp_if(e, 13, OPT["ps"])
    g.label("t1_exit")
    return g.rec

sG, sMASK, sQ, sPEND, sDOK = 4, 5, 6, 7, 21
sD, sA, sOUT, sF = 8, 32, 36, 40
sLD, sST = 12, 16
def fin_setup(e):
    e(f"""
s_and_b32 s{sG}, s2, 7
s_cmp_lt_u32 s{sG}, 4
s_cselect_b32 s{sG}, 0, 16
s_add_u32 s{sG}, s{sG}, s{sB}
s_mov_b32 s{sD}, s26
s_mov_b32 s{sD+1}, s27
s_mov_b32 s{sD+2}, 256
s_mov_b32 s{sD+3}, 0x20000
s_lshl_b32 s{sT2}, s{sG}, 10
s_add_u32 s{sT2}, s{sT2}, {FLAG0}
s_add_u32 s{sF}, s28, s{sT2}
s_addc_u32 s{sF+1}, s29, 0
s_mov_b32 s{sF+2}, 1024
s_mov_b32 s{sF+3}, 0x20000
s_mul_i32 s{sT1}, s{sG}, {8*PART_CU}
s_add_u32 s{sT1}, s{sT1}, {PART0}
s_add_u32 s{sA}, s28, s{sT1}
s_addc_u32 s{sA+1}, s29, 0
s_mov_b32 s{sA+2}, {8*PART_CU}
s_mov_b32 s{sA+3}, 0x20000
s_mul_i32 s{sT1}, s{sB}, {112*2560}
s_lshr_b32 s{sT2}, s{sG}, 4
s_mul_i32 s{sT2}, s{sT2}, 1280
s_add_u32 s{sT1}, s{sT1}, s{sT2}
s_add_u32 s{sOUT}, s24, s{sT1}
s_addc_u32 s{sOUT+1}, s25, 0
s_sub_u32 s{sOUT+2}, {112*2560}, s{sT2}
s_mov_b32 s{sOUT+3}, 0x20000
s_mov_b32 s{sPEND}, 0xff
s_mov_b32 s{sDOK}, 0
s_mov_b32 s{sCTR}, 0
s_mov_b32 s{sQ}, s{sQUAD}
s_lshl_b32 s{sG}, s{sG}, 2
v_mbcnt_lo_u32_b32 v216, -1, 0
v_mbcnt_hi_u32_b32 v216, -1, v216
v_lshlrev_b32 v217, 4, v216
v_and_b32 v218, 15, v216
v_lshrrev_b32 v219, 4, v216
v_mul_u32_u24 v220, 272, v218
v_lshl_add_u32 v220, v219, 3, v220
s_mul_i32 s{sT2}, s{sTEAM}, {3*4352}
s_add_u32 s{sT2}, s{sT2}, 2048
s_lshl_b32 s{sT1}, s{sW4}, 6
s_add_u32 s{sT1}, s{sT1}, s{sT2}
v_add_u32 v220, s{sT1}, v220
s_mul_i32 s{sT1}, s{sW4}, {4*272}
s_add_u32 s{sT1}, s{sT1}, s{sT2}
v_mul_u32_u24 v221, 272, v219
v_lshl_add_u32 v221, v218, 4, v221
v_add_u32 v221, s{sT1}, v221
v_mul_u32_u24 v219, 2560, v219
v_lshl_add_u32 v218, v218, 4, v219
v_and_b32 v222, 7, v216
v_lshlrev_b32 v222, 7, v222
v_mov_b32 v223, 0
""")
def slice_setup(e):
    for k in range(3):
        e(f"""
s_lshl_b32 s{sT1}, s{sTEAM}, 3
s_add_u32 s{sT1}, s{sT1}, s{sQ}
s_add_u32 s{sT1}, s{sT1}, {16*k}
s_mul_i32 s{sT2}, s{sW4}, 35
s_add_u32 s{sT2}, s{sT2}, s{sT1}
s_lshl_b32 s{sT2}, s{sT2}, 10
s_cmp_lt_u32 s{sT1}, 35
s_cselect_b32 s{sLD+k}, s{sT2}, {8*PART_CU}
s_mul_i32 s{sT2}, s{sT1}, 37
s_lshr_b32 s{sT2}, s{sT2}, 8
s_mul_i32 s{sT3}, s{sT2}, 7
s_sub_u32 s{sT3}, s{sT1}, s{sT3}
s_lshl_b32 s{sT2}, s{sT2}, 8
s_mul_i32 s{sT3}, s{sT3}, {16*2560}
s_add_u32 s{sT2}, s{sT2}, s{sT3}
s_mul_i32 s{sT3}, s{sW4}, {4*2560}
s_add_u32 s{sT2}, s{sT2}, s{sT3}
s_cmp_lt_u32 s{sT1}, 35
s_cselect_b32 s{sST+k}, s{sT2}, 0x1000000
""")
def fin_subs(e):
    e(f"""
k1_round:
s_cmp_lg_u32 s{sDOK}, 0
s_cbranch_scc1 k1_r1
buffer_load_dword v224, v223, s[{sD}:{sD+3}], s{sG} offen sc1
s_waitcnt vmcnt(0)
v_readfirstlane_b32 s{sT1}, v224
s_cmp_eq_u32 s{sT1}, 8
s_cselect_b32 s{sDOK}, 1, 0
s_cbranch_scc0 k1_rret
k1_r1:
buffer_load_dword v224, v222, s[{sF}:{sF+3}], 0 offen sc1
s_waitcnt vmcnt(0)
v_cmp_eq_u32 vcc, 1, v224
s_and_b32 s{sT3}, vcc_lo, s{sPEND}
k1_loads:
s_andn2_b32 s{sPEND}, s{sPEND}, s{sT3}
""")
    for q in range(8):
        e(f"s_bitcmp1_b32 s{sT3}, {q}")
        e(f"s_cbranch_scc0 k1_l{q}")
        for k in range(3):
            e(f"s_add_u32 s{sT1}, s{sLD+k}, {q*PART_CU}")
            e(f"buffer_load_dwordx4 {v(8+32*k+4*q,4)}, v217, s[{sA}:{sA+3}], s{sT1} offen {OPT['rd']}")
        e(f"k1_l{q}:")
    e(f"""
k1_rret:
s_setpc_b64 s[{sRET}:{sRET+1}]
""")
def final_reduce(p):
    e = p
    e.label("k1_final")
    if OPT["two"]:
        if OPT["prof"]: e("s_waitcnt vmcnt(0)")
        stamp(e, 10); stamp(e, 11, real=True)
        dump_stamps(e, 28, 64 << 20, 8)
        return
    fin_setup(e); slice_setup(e)
    e(f"""
s_waitcnt vmcnt(0)
s_cmp_lg_u32 s{sTEAM}, 0
s_cbranch_scc1 k1_fb
""")
    for r in range(OPT["pre"]): e(f"s_call_b64 s[{sRET}:{sRET+1}], k1_round")
    e("""
k1_fb:
s_barrier
""")
    stamp(e, 9, real=bool(OPT["rt"]))
    e(f"""
v_mov_b32 v225, 1
s_cmp_lg_u32 s{sWAVE}, 4
s_cbranch_scc1 k1_n4
s_lshl_b32 s{sT2}, s{sQUAD}, 7
s_mov_b64 exec, 1
buffer_store_dword v225, v223, s[{sF}:{sF+3}], s{sT2} offen sc1
s_mov_b64 exec, -1
k1_n4:
s_cmp_lg_u32 s{sWAVE}, 5
s_cbranch_scc1 k1_poll
s_mov_b64 exec, 1
buffer_atomic_add v225, v223, s[{sD}:{sD+3}], s{sG} offen offset:128 sc0 sc1
s_waitcnt vmcnt(0)
v_readfirstlane_b32 s{sT2}, v225
s_and_b32 s{sT3}, s{sT2}, 0xff
s_bfe_u32 s{sT2}, s{sT2}, 0x80008
s_cmp_eq_u32 s{sT3}, 7
s_cselect_b32 s{sT2}, s{sT2}, 0
v_mov_b32 v225, s{sT2}
ds_write_b32 v223, v225 offset:4
s_mov_b64 exec, -1
k1_poll:
s_call_b64 s[{sRET}:{sRET+1}], k1_round
s_add_u32 s{sCTR}, s{sCTR}, 1
s_cmp_eq_u32 s{sPEND}, 0
s_cbranch_scc1 k1_pd
s_cmp_lt_u32 s{sCTR}, {OPT['spin']}
s_cbranch_scc1 k1_poll
k1_pd:
s_cmp_lg_u32 s{sWAVE}, 0
s_cbranch_scc1 k1_fw
s_lshl_b32 s{sMASK}, 1, s{sQUAD}
s_mov_b64 exec, 1
s_cmp_eq_u32 s{sPEND}, 0
s_cbranch_scc1 k1_go
s_lshl_b32 s{sT2}, s{sMASK}, 8
v_mov_b32 v225, s{sT2}
buffer_atomic_or v225, v223, s[{sD}:{sD+3}], s{sG} offen offset:128 sc0 sc1
s_waitcnt vmcnt(0)
v_readfirstlane_b32 s{sT2}, v225
s_and_b32 s{sT2}, s{sT2}, 0xff
s_cmp_eq_u32 s{sT2}, 8
s_cselect_b32 s{sMASK}, s{sMASK}, 0
k1_go:
v_mov_b32 v225, s{sMASK}
ds_write_b32 v223, v225
s_mov_b64 exec, -1
k1_fw:
s_waitcnt lgkmcnt(0)
s_barrier
ds_read_b64 v[224:225], v223
s_waitcnt lgkmcnt(0)
v_or_b32 v224, v224, v225
v_readfirstlane_b32 s{sMASK}, v224
""")
    stamp(e, 8, real=bool(OPT["rt"]))
    e(f"""
s_bitcmp1_b32 s{sMASK}, s{sQ}
s_cbranch_scc1 k1_own
k1_slice:
s_cmp_eq_u32 s{sMASK}, 0
s_cbranch_scc1 k1_done
s_ff1_i32_b32 s{sQ}, s{sMASK}
s_mov_b32 s{sPEND}, 0xff
s_waitcnt vmcnt(0)
""")
    slice_setup(e)
    e(f"""
k1_own:
s_bitset0_b32 s{sMASK}, s{sQ}
s_mov_b32 s{sT3}, s{sPEND}
s_call_b64 s[{sRET}:{sRET+1}], k1_loads
s_waitcnt vmcnt(0)
""")
    if OPT["fs"]: stamp(e, 14, real=True)
    for k in range(3):
        for i in range(4):
            r = 8 + 32 * k + i
            e(f"v_lshlrev_b32 v{104+2*i}, 16, v{r}")
            e(f"v_and_b32 v{105+2*i}, 0xffff0000, v{r}")
        for q in range(1, 8):
            for i in range(4):
                r = 8 + 32 * k + 4 * q + i
                e(f"v_lshlrev_b32 v{112+2*(i&1)}, 16, v{r}")
                e(f"v_and_b32 v{113+2*(i&1)}, 0xffff0000, v{r}")
                e(f"v_pk_add_f32 {v(104+2*i,2)}, {v(104+2*i,2)}, {v(112+2*(i&1),2)}")
        for i in range(4): e(f"v_cvt_pk_bf16_f32 v{116+4*k+i}, v{104+2*i}, v{105+2*i}")
        e(f"ds_write_b64 v220, {v(116+4*k,2)} offset:{k*4352}")
        e(f"ds_write_b64 v220, {v(118+4*k,2)} offset:{k*4352+32}")
    e("s_waitcnt lgkmcnt(0)")
    e("s_barrier")
    if OPT["fs"]: stamp(e, 15, real=True)
    for k in range(3): e(f"ds_read_b128 {v(128+4*k,4)}, v221 offset:{k*4352}")
    for k in range(3):
        e(f"s_waitcnt lgkmcnt({2-k})")
        e(f"buffer_store_dwordx4 {v(128+4*k,4)}, v218, s[{sOUT}:{sOUT+3}], s{sST+k} offen")
    e(f"""
s_cmp_eq_u32 s{sMASK}, 0
s_cbranch_scc1 k1_done
s_barrier
s_branch k1_slice
""")
    fin_subs(e)
    e("k1_done:")
    if OPT["prof"]: e("s_waitcnt vmcnt(0)")
    stamp(e, 10); stamp(e, 11, real=True)
    dump_stamps(e, 28, 64 << 20, 8)

def build(needs):
    p = Prog()
    p(f"""
.globl {NAME}_kernel
.p2align 8
.type {NAME}_kernel,@function
{NAME}_kernel:
s_cmp_ge_u32 s2, 256
s_cbranch_scc1 k1_end
s_load_dwordx16 s[4:19], s[0:1], 0
s_load_dwordx8 s[20:27], s[0:1], 64
s_load_dwordx2 s[28:29], s[0:1], 96
v_lshrrev_b32 v1, 6, v0
v_and_b32 v2, 63, v0
v_readfirstlane_b32 s{sWAVE}, v1
s_and_b32 s{sT1}, s2, 7
s_lshr_b32 s{sT2}, s2, 3
""")
    if OPT["map"] == 0:
        p(f"""
s_and_b32 s{sQUAD}, s{sT1}, 3
s_lshl_b32 s{sQUAD}, s{sQUAD}, 1
s_and_b32 s{sB}, s{sT2}, 1
s_add_u32 s{sQUAD}, s{sQUAD}, s{sB}
s_lshr_b32 s{sB}, s{sT2}, 1
""")
    else:
        p(f"""
s_and_b32 s{sQUAD}, s{sT1}, 1
s_lshl_b32 s{sQUAD}, s{sQUAD}, 2
s_and_b32 s{sB}, s{sT2}, 3
s_add_u32 s{sQUAD}, s{sQUAD}, s{sB}
s_and_b32 s{sB}, s{sT1}, 2
s_lshl_b32 s{sB}, s{sB}, 2
s_lshr_b32 s{sT2}, s{sT2}, 2
s_add_u32 s{sB}, s{sB}, s{sT2}
""")
    p(f"""
s_and_b32 s{sW4}, s{sWAVE}, 3
s_lshr_b32 s{sTEAM}, s{sWAVE}, 2
s_mul_i32 s{sLW}, s{sW4}, 3072
s_mov_b32 s{sKd+2}, {0 if OPT['nokv'] else 786432}
s_mov_b32 s{sKd+3}, 0x20000
s_mov_b32 s{sVd+2}, {0 if OPT['nokv'] else 786432}
s_mov_b32 s{sVd+3}, 0x20000
s_mov_b32 s{sWd+3}, 0x20000
s_mov_b32 s{sOd+2}, {0 if OPT['now'] else 983040}
s_mov_b32 s{sOd+3}, 0x20000
s_mov_b32 s{sXd+2}, {0 if OPT['nox'] else 143360}
s_mov_b32 s{sXd+3}, 0x20000
s_mov_b32 s{sPd+2}, {35840+QO}
s_mov_b32 s{sPd+3}, 0x20000
s_waitcnt lgkmcnt(0)
s_cmp_lt_u32 s{sT1}, 4
s_cselect_b64 s[4:5], s[4:5], s[14:15]
s_cselect_b64 s[6:7], s[6:7], s[16:17]
s_cselect_b64 s[8:9], s[8:9], s[18:19]
s_cselect_b64 s[10:11], s[10:11], s[20:21]
s_cselect_b64 s[12:13], s[12:13], s[22:23]
s_cselect_b32 s{sT3}, 0, 16
s_mul_i32 s{sT2}, s{sB}, 143360
s_add_u32 s{sXd}, s4, s{sT2}
s_addc_u32 s{sXd+1}, s5, 0
s_mul_i32 s{sT2}, s{sQUAD}, 1536
s_add_u32 s{sWd}, s10, s{sT2}
s_addc_u32 s{sWd+1}, s11, 0
s_sub_u32 s{sWd+2}, 7864320, s{sT2}
{'s_mov_b32 s%d, 0' % (sWd+2) if OPT['now'] else ''}
s_lshl_b32 s{sT1}, s{sB}, 3
s_add_u32 s{sT1}, s{sT1}, s{sQUAD}
s_mul_i32 s{sT2}, s{sT1}, 786432
s_add_u32 s{sKd}, s6, s{sT2}
s_addc_u32 s{sKd+1}, s7, 0
s_add_u32 s{sVd}, s8, s{sT2}
s_addc_u32 s{sVd+1}, s9, 0
s_mul_i32 s{sT2}, s{sQUAD}, 983040
s_add_u32 s{sOd}, s12, s{sT2}
s_addc_u32 s{sOd+1}, s13, 0
s_lshl_b32 s{sT3}, s{sT3}, 3
s_add_u32 s{sT1}, s{sT1}, s{sT3}
s_mul_i32 s{sT1}, s{sT1}, {PART_CU}
s_mul_i32 s{sT2}, s{sW4}, 35840
s_add_u32 s{sT1}, s{sT1}, s{sT2}
s_add_u32 s{sT1}, s{sT1}, {PART0-QO}
s_add_u32 s{sPd}, s28, s{sT1}
s_addc_u32 s{sPd+1}, s29, 0
""")
    stamp(p, 0); stamp(p, 1, real=True)
    p(f"""
s_cmp_lg_u32 s{sWAVE}, 0
s_cbranch_scc1 k1_noclr
s_and_b32 s{sT1}, s2, 7
s_cmp_lt_u32 s{sT1}, 4
s_cselect_b32 s{sT1}, 0, 16
s_add_u32 s{sGRP}, s{sT1}, s{sB}
s_lshl_b32 s{sT1}, s{sGRP}, 3
s_add_u32 s{sT1}, s{sT1}, s{sQUAD}
s_lshl_b32 s{sT1}, s{sT1}, 7
s_add_u32 s{sT1}, s{sT1}, {FLAG0}
s_add_u32 s4, s28, s{sT1}
s_addc_u32 s5, s29, 0
s_mov_b32 s6, 128
s_mov_b32 s7, 0x20000
v_mov_b32 v1, 0
s_mov_b64 exec, 1
buffer_store_dword v1, v1, s[4:7], 0 offen sc1
s_mov_b64 exec, -1
k1_noclr:
""")
    if OPT["cpf"]:
        p(f"""
s_cmp_lg_u32 s{sWAVE}, 7
s_cbranch_scc1 k1_nocpf
s_getpc_b64 s[4:5]
s_mov_b32 s6, k1_end-k1_nocpf
s_mov_b32 s7, 0x20000
s_lshr_b32 s{sT1}, s2, 3
s_and_b32 s{sT1}, s{sT1}, 31
s_lshl_b32 s{sT1}, s{sT1}, 7
v_and_b32 v1, 31, v0
v_lshlrev_b32 v1, 12, v1
buffer_load_dword v247, v1, s[4:7], s{sT1} offen
k1_nocpf:
""")
    if OPT["tlb"]:
        p(f"""
v_and_b32 v1, 3, v0
v_lshlrev_b32 v1, 18, v1
v_min_u32 v1, {786432-128}, v1
s_cmp_lg_u32 s{sWAVE}, 1
s_cbranch_scc1 k1_t1a
buffer_load_dword v254, v1, s[{sKd}:{sKd+3}], 0 offen nt
k1_t1a:
s_cmp_lg_u32 s{sWAVE}, 2
s_cbranch_scc1 k1_t1b
buffer_load_dword v254, v1, s[{sVd}:{sVd+3}], 0 offen nt
k1_t1b:
s_cmp_lg_u32 s{sWAVE}, 3
s_cbranch_scc1 k1_t1c
buffer_load_dword v254, v1, s[{sOd}:{sOd+3}], 0 offen nt
k1_t1c:
s_cmp_lg_u32 s{sWAVE}, 4
s_cbranch_scc1 k1_t1d
s_and_b32 s{sT1}, s2, 7
s_cmp_lt_u32 s{sT1}, 4
s_cselect_b32 s{sT1}, 0, 16
s_add_u32 s{sT1}, s{sT1}, s{sB}
s_mul_i32 s{sT1}, s{sT1}, {8*PART_CU}
s_add_u32 s{sT1}, s{sT1}, {PART0}
s_add_u32 s4, s28, s{sT1}
s_addc_u32 s5, s29, 0
s_mov_b32 s6, {8*PART_CU}
s_mov_b32 s7, 0x20000
v_and_b32 v1, 7, v0
v_mul_u32_u24 v1, {PART_CU}, v1
buffer_load_dword v254, v1, s[4:7], 0 offen nt sc1
k1_t1d:
s_cmp_lg_u32 s{sWAVE}, 5
s_cbranch_scc1 k1_t1e
s_mul_i32 s{sT1}, s{sB}, {112*2560}
s_add_u32 s4, s24, s{sT1}
s_addc_u32 s5, s25, 0
s_mov_b32 s6, {112*2560}
s_mov_b32 s7, 0x20000
v_and_b32 v1, 1, v0
v_mul_u32_u24 v1, {112*2560-128}, v1
buffer_load_dword v254, v1, s[4:7], 0 offen nt sc1
k1_t1e:
""")
    rec = {}
    rec["qp"] = qp_phase(p, needs.get("qp", {}))
    p(f"""
s_cmp_ge_u32 s{sWAVE}, 4
s_cbranch_scc1 k1_t1
""")
    if OPT["prio0"]: p(f"s_setprio {OPT['prio0']}")
    p(f"""
s_cmp_eq_u32 s{sWAVE}, 3
s_cbranch_scc1 k1_light
""")
    rec["h"] = t0_path(p, needs.get("h", {}), 2, "h")
    p.label("k1_light")
    rec["l"] = t0_path(p, needs.get("l", {}), 1, "l")
    rec["f"] = t0_final(p, needs.get("f", {}))
    p.label("k1_t1")
    if OPT["not1"]: p("s_endpgm")
    if OPT["prio1"]: p(f"s_setprio {OPT['prio1']}")
    rec["t1"] = t1_path(p, needs.get("t1", {}))
    final_reduce(p)
    p("""
k1_end:
s_endpgm
""")
    return p, rec

def reduce_kernel():
    p = Prog()
    p(f"""
.globl reduce_kernel
.p2align 8
.type reduce_kernel,@function
reduce_kernel:
s_cmp_ge_u32 s2, 1120
s_cbranch_scc1 k2_end
s_load_dwordx2 s[8:9], s[0:1], 80
s_load_dwordx2 s[10:11], s[0:1], 96
v_lshrrev_b32 v1, 6, v0
v_and_b32 v2, 63, v0
v_readfirstlane_b32 s3, v1
s_mul_i32 s5, s2, 1873
s_lshr_b32 s5, s5, 16
s_mul_i32 s6, s5, 35
s_sub_u32 s22, s2, s6
s_mul_i32 s6, s3, 35
s_add_u32 s6, s6, s22
s_mul_i32 s7, s5, {8*PART_CU}
s_add_u32 s7, s7, {PART0}
s_lshl_b32 s20, s6, 10
v_lshlrev_b32 v3, 4, v2
s_mov_b32 s14, {8*PART_CU}
s_mov_b32 s15, 0x20000
s_waitcnt lgkmcnt(0)
s_add_u32 s12, s10, s7
s_addc_u32 s13, s11, 0
""")
    for q in range(8):
        p(f"buffer_load_dwordx4 v[{8+4*q}:{11+4*q}], v3, s[12:15], s20 offen {OPT['rd']}")
        if q < 7: p(f"s_add_u32 s20, s20, {PART_CU}")
    p(f"""
s_and_b32 s23, s5, 15
s_mul_i32 s23, s23, {112*2560}
s_lshr_b32 s24, s5, 4
s_mul_i32 s24, s24, 1280
s_add_u32 s23, s23, s24
s_mov_b32 s16, s8
s_mov_b32 s17, s9
s_mov_b32 s18, {16*112*2560}
s_mov_b32 s19, 0x20000
s_mul_i32 s26, s22, 37
s_lshr_b32 s26, s26, 8
s_mul_i32 s27, s26, 7
s_sub_u32 s27, s22, s27
s_lshl_b32 s30, s26, 8
s_mul_i32 s28, s27, {16*2560}
s_add_u32 s30, s30, s28
s_mul_i32 s28, s3, {4*2560}
s_add_u32 s30, s30, s28
s_add_u32 s32, s30, s23
v_and_b32 v4, 15, v2
v_lshrrev_b32 v5, 4, v2
v_mul_u32_u24 v6, 272, v4
v_lshl_add_u32 v6, v5, 3, v6
s_lshl_b32 s28, s3, 6
v_add_u32 v6, s28, v6
s_mul_i32 s28, s3, {4*272}
v_mul_u32_u24 v7, 272, v5
v_lshl_add_u32 v7, v4, 4, v7
v_add_u32 v7, s28, v7
v_mul_u32_u24 v5, 2560, v5
v_lshl_add_u32 v4, v4, 4, v5
""")
    for q in range(8):
        p(f"s_waitcnt vmcnt({7-q})")
        for i in range(4):
            r = 8 + 4 * q + i
            if q == 0:
                p(f"v_lshlrev_b32 v{40+2*i}, 16, v{r}")
                p(f"v_and_b32 v{41+2*i}, 0xffff0000, v{r}")
            else:
                p(f"v_lshlrev_b32 v48, 16, v{r}")
                p(f"v_and_b32 v49, 0xffff0000, v{r}")
                p(f"v_add_f32 v{40+2*i}, v{40+2*i}, v48")
                p(f"v_add_f32 v{41+2*i}, v{41+2*i}, v49")
    for i in range(4): p(f"v_cvt_pk_bf16_f32 v{52+i}, v{40+2*i}, v{41+2*i}")
    p("""
ds_write_b64 v6, v[52:53]
ds_write_b64 v6, v[54:55] offset:32
s_waitcnt lgkmcnt(0)
s_barrier
ds_read_b128 v[52:55], v7
s_waitcnt lgkmcnt(0)
buffer_store_dwordx4 v[52:55], v4, s[16:19], s32 offen
k2_end:
s_endpgm
""")
    return p

def desc(name, vg):
    return f""".amdhsa_kernel {name}
  .amdhsa_next_free_vgpr {vg}
  .amdhsa_next_free_sgpr 102
  .amdhsa_accum_offset {vg}
  .amdhsa_group_segment_fixed_size 0
  .amdhsa_kernarg_size 104
  .amdhsa_user_sgpr_count 2
  .amdhsa_user_sgpr_kernarg_segment_ptr 1
  .amdhsa_system_sgpr_workgroup_id_x 1
.end_amdhsa_kernel
"""

def main():
    for t in range(1120): assert (t * 1873) >> 16 == t // 35
    for t in range(140): assert (t * 235) >> 13 == t // 35
    for t in range(35): assert (t * 37) >> 8 == t // 7
    _, rec = build({})
    for it in range(4):
        a, rec2 = build(rec)
        if rec2 == rec: break
        rec = rec2
    else: raise SystemExit("no fixpoint")
    b = reduce_kernel()
    if OPT["novm"]: a.L[:] = [l for l in a.L if not l.startswith("buffer_load")]
    if OPT["nobar"]: a.L[:] = [l for l in a.L if not l.startswith("s_barrier")]
    if OPT["nolg"]:
        out_ = []
        for i_, l in enumerate(a.L):
            if l.startswith("s_waitcnt lgkmcnt") and not a.L[i_-1].startswith(("s_mem", "s_load")) and i_ > 60: continue
            out_.append(l)
        a.L[:] = out_
    if OPT["nord"]: a.L[:] = [l for l in a.L if not l.startswith("ds_read")]
    if OPT["noexp"]: a.L[:] = [l.replace("v_exp_f32", "v_mov_b32") if l.startswith("v_exp_f32") and "-v" not in l else l for l in a.L]
    if OPT["nosm"]: a.L[:] = [l for l in a.L if not l.startswith(("v_exp_f32", "v_cvt_pk"))]
    if OPT["nochk"]: a.L[:] = [l for l in a.L if not l.startswith(("v_or3", "v_or_b32", "v_cmp_ne", "s_cbranch_vccz", "v_and_b32 v252"))]
    if OPT["prof"] == 2:
        out_ = []; L_ = a.L; inrole = False; i_ = 0
        while i_ < len(L_):
            l = L_[i_]
            if l.startswith(("t0_unit", "t1_slot")): inrole = True
            if l.startswith(("t0_exit", "t1_exit")): inrole = False
            if inrole and l == "s_barrier":
                j = len(out_)
                while j > 0 and (out_[j-1].startswith(("s_waitcnt vmcnt", "s_cmp_eq_u32 s55, 5", "s_cbranch_scc1 t1_wa")) or out_[j-1].startswith("t1_wa")): j -= 1
                blk = out_[j:]; del out_[j:]
                out_ += ["s_memtime s[4:5]"] + blk + ["s_memtime s[6:7]", "s_barrier", "s_memtime s[8:9]", "s_waitcnt lgkmcnt(0)",
                         "s_sub_u32 s4, s6, s4", "s_add_u32 s94, s94, s4", "s_sub_u32 s6, s8, s6", "s_add_u32 s95, s95, s6"]
            elif inrole and l.startswith("buffer_load") and l.endswith("lds"):
                out_ += ["s_memtime s[4:5]", l, "s_memtime s[6:7]", "s_waitcnt lgkmcnt(0)", "s_sub_u32 s4, s6, s4", "s_add_u32 s89, s89, s4"] if OPT["pv"] else [l]
            elif l.startswith(("k1_light:", "k1_t1:")) or l.startswith("s_cbranch_scc1 k1_light"):
                out_ += [l, "s_mov_b32 s94, 0", "s_mov_b32 s95, 0", "s_mov_b32 s89, 0"]
            else: out_.append(l)
            i_ += 1
        a.L[:] = out_
    if OPT["prof"] == 4:
        out_ = []; inrole = False; idx = 0
        L_ = [l for l in a.L if not (l.startswith(("s_cselect_b32 s8", "s_cselect_b32 s9")) or (l.startswith(("s_mov_b32 s8", "s_mov_b32 s9")) and "s100" in l))]
        def st_(k):
            return ["s_memtime s[100:101]", "s_waitcnt lgkmcnt(0)", f"s_cmp_eq_u32 s{sSLOT}, {OPT['ps']}", f"s_cselect_b32 s{80+k}, s100, s{80+k}"] if 0 <= k < 16 else []
        for i_, l in enumerate(L_):
            if l.startswith(("t0_unit", "t1_slot")): inrole = True; idx = 0
            if l.startswith(("t0_exit", "t1_last")): inrole = False
            k = (idx - OPT["pb"]) * 4
            if inrole and l == "s_barrier":
                x = out_.pop() if out_[-1].startswith("s_waitcnt vmcnt") else None
                out_ += st_(k - 2) + ([x] if x else []) + st_(k - 1) + [l] + st_(k); idx += 1
            elif inrole and l.startswith("buffer_load") and l.endswith("lds"):
                nxt = next(y for y in L_[i_+1:] if y == "s_barrier" or (y.startswith("buffer_load") and y.endswith("lds")))
                out_ += [l] + (st_(k - 3) if nxt == "s_barrier" else [])
            else: out_.append(l)
        a.L[:] = out_
    if OPT["prof"] == 3:
        out_ = []; inrole = False; idx = 0
        for l in a.L:
            if l.startswith(("t0_unit", "t1_slot")): inrole = True; idx = 0
            if l.startswith(("t0_exit", "t1_exit")) or l.startswith("s_cbranch_scc1 t1_slot"): inrole = False
            if l.startswith(("s_mov_b32 s8", "s_mov_b32 s9")) and "s100" in l: continue
            if l.startswith("s_cselect_b32 s8") or l.startswith("s_cselect_b32 s9") or l.startswith("s_mov_b32 s9") and "s100" in l: continue
            if inrole and l == "s_barrier":
                k = idx - OPT["pb"]; idx += 1
                st_ = ["s_memtime s[100:101]", "s_waitcnt lgkmcnt(0)", f"s_cmp_eq_u32 s{sSLOT}, {OPT['ps']}", f"s_cselect_b32 s{80+k}, s100, s{80+k}"] if 0 <= k < 16 else []
                out_ += (st_ + [l]) if OPT["pa"] else ([l] + st_)
            else: out_.append(l)
        a.L[:] = out_
    if OPT["nomfq"] or OPT["nomf1"] or OPT["nomf0"]:
        out_ = []; sec = "q"
        for l in a.L:
            if l.startswith("t0_unit"): sec = "0"
            if l.startswith("k1_t1:"): sec = "1"
            if l.startswith("v_mfma") and OPT["nomf" + sec]: continue
            out_.append(l)
        a.L[:] = out_
    if OPT["xa"]:
        out_ = []; sec = "q"; cnt = 0
        for l in a.L:
            if l.startswith("t0_unit_h"): sec = "h"
            if l.startswith("t0_unit_l"): sec = "l"
            if l.startswith("t0_final"): sec = "f"
            if l.startswith("k1_t1:"): sec = "1"
            if OPT["xa"] == 1 and sec in "hl" and l.startswith("v_mfma") and "v[208:211]" in l: continue
            if OPT["xa"] == 2 and sec == "l" and l.startswith(("v_mfma", "ds_read")): continue
            if OPT["xa"] == 3 and sec == "1" and l.startswith("ds_read_b128"): continue
            if OPT["xa"] == 4 and sec in "hl" and l.startswith("ds_read"):
                continue
            out_.append(l)
        a.L[:] = out_
    if OPT["vwin"]:
        out_ = []; on = False
        for l in a.L:
            if l.startswith("k1_t1:") and OPT["vw1"]: on = True
            if l.startswith("t1_slot:"): on = True
            if l.startswith("t1_last:"): on = False
            if on and l.startswith("buffer_load") and l.endswith("lds"): out_.append(f"s_waitcnt vmcnt({OPT['vwin']-1})")
            out_.append(l)
        a.L[:] = out_
    if OPT["dynp"]:
        out_ = []; int1 = False
        for l in a.L:
            if l.startswith("k1_t1:"): int1 = True
            if int1 and l.startswith("buffer_load") and l.endswith("lds"):
                out_ += [f"s_setprio {OPT['dynp']}", l, f"s_setprio {OPT['prio1']}"]
            else: out_.append(l)
        a.L[:] = out_
    n1 = fix_hazards(a.L); n2 = fix_hazards(b.L)
    print("nops inserted", n1, n2, "instrs", len(a.L), len(b.L), file=sys.stderr)
    hdr = open("cdna_kernels/" + NAME + ".s.ref").read().split("; Override launch")[0]
    out = hdr
    if OPT["two"]:
        out += f"; @launch kernel={NAME}_kernel grid=(256,1,1) block=(512,1,1) lds={LDS_BYTES}\n"
        out += "; @launch kernel=reduce_kernel grid=(1120,1,1) block=(256,1,1) lds=4352\n"
    else:
        out += f"; @launch grid=(256,1,1) block=(512,1,1) lds={LDS_BYTES}\n"
    out += '.amdgcn_target "amdgcn-amd-amdhsa--gfx950"\n.text\n'
    out += a.text() + (b.text() if OPT["two"] else "")
    out += '.section .rodata,"a"\n.p2align 6\n' + desc(NAME + "_kernel", 256)
    if OPT["two"]: out += ".p2align 6\n" + desc("reduce_kernel", 56)
    open(sys.argv[1], "w").write(out)
    import subprocess
    r = subprocess.run(["clang", "-x", "assembler", "-target", "amdgcn-amd-amdhsa", "-mcpu=gfx950", "-c", sys.argv[1], "-o", "chk.o"], capture_output=True, text=True)
    if r.returncode: print("ASSEMBLY FAILED", r.stderr[:600])
main()
```

```python
import sys, math, struct, copy
sys.path.insert(0, "work")
from asmlib import *

NAME = "concat_heads__mha_block_cached__gqa_block_cached__near_ridge"
OPT = dict(kv="nt", w="", x="", wo="", st="sc1", rd="sc1", prof=0, prio0=0, prio1=0, touch=1, nox=0, now=0, nokv=0, nomf=0,
           novm=0, lead=4, bp="6.16.26.36.42", map=0, hack="", t1b=0, ps=5, kdel=0, x0=4, xt=0, dynp=0, nopark=0, gap=0, span=4, pa=0, pb=0, m=2, nlat=0, nonar=0, bar=3, qd=5, rt=0, tf="", tq="", pwo=0, tlb=0, stl=0, dd=0, kw=5, qp1=0, pre=0, kpf=0, wt=6, wtn=14, pkb=1, kw1=0, kwa=4, kwu=48, oldfin=1, kv0=0, of="", kw1s=0, kps=18, kpl="nt", lastb=16, stn=1, spin=8000, vcap=0, vpost=0, now0=9, xa=0, burst=0, kpar=0, pwh=1, near=0, vwin=0, cpf=1, fs=0, r5=6, early=3, qv=0, two=0, vw1=1, wo5="", nomfq=0, nomf1=0, nomf0=0, pwf="", kvfirst=1, w2=1, psplit=1, nb1=8, nb2=29, kl=16, tl=4, kvat=18, qst="sc1", noq=0, noqst=0, pv=0, nobar=0, nolg=0, nord=0, norare=0, not1=0, noexp=0, nochk=0, nosm=0)
for a in sys.argv[2:]:
    k, val = a.split("=")
    OPT[k] = int(val) if val.lstrip("-").isdigit() else (val if k in ("bp", "hack") else val.replace("+", " ").replace("-", ""))
TILE = 12288
QO = 0
T1R = 43008
B2 = T1R + 32768
KVB = B2 + 18432
NS = 16
SPARE = KVB + NS * 4096
LDS_BYTES = SPARE + 2048
QPARK = 48 << 20
FLAG0 = 0
PART0 = 1 << 20
PART_CU = 4 * 35 * 1024
LEAD = OPT["lead"]
NX = 30
XB_ = [OPT["x0"] + 4 * ((k * 96) // NX) for k in range(NX)]
def f2u(f): return struct.unpack("<I", struct.pack("<f", f))[0]

sKd, sVd, sWd, sOd, sXd, sPd, sQd = 32, 36, 40, 44, 48, 76, 24
sWAVE, sB, sQUAD, sSLOT, sCTR, sW4 = 52, 53, 54, 55, 57, 56
sT1, sT2, sT3 = 62, 63, 61
sKSO, sVSO, sLW = 58, 59, 60
sWB, sOB, sXB, sXM, sSTR, sXF = 58, 59, 70, 71, 72, 73
sC, sBIT = 66, 68
sRET = 30
sGRP = 3
sWT = 8
sTEAM, sWB2, sKSO2, sL1, sSLO, sSHI = 74, 75, 65, 64, 69, 72
PKV_ = 255
sRX, sRY, sRZ, sSP = 14, 17, 20, 23

def stamp(e, k, real=False):
    if not OPT["prof"]: return
    e(f"s_mem{'real' if real else ''}time s[100:101]")
    e("s_waitcnt lgkmcnt(0)")
    e(f"s_mov_b32 s{80+k}, s100")
def stamp_slot(e):
    if not OPT["prof"]: return
    e("s_memrealtime s[100:101]" if OPT["rt"] else "s_memtime s[100:101]")
    e("s_waitcnt lgkmcnt(0)")
    for k in range(0, 7):
        e(f"s_cmp_eq_u32 s{sSLOT}, {k}")
        e(f"s_cselect_b32 s{82+k}, s100, s{82+k}")
def stamp_if(e, k, slot):
    if not OPT["prof"]: return
    e("s_memtime s[100:101]")
    e("s_waitcnt lgkmcnt(0)")
    e(f"s_cmp_eq_u32 s{sSLOT}, {slot}")
    e(f"s_cselect_b32 s{80+k}, s100, s{80+k}")
def dump_stamps(e, wsreg, base, nw):
    if not OPT["prof"]: return
    if OPT["dd"]:
        e(f"""
s_cmp_lg_u32 s2, {OPT['dd']}
s_cbranch_scc1 k1_end
s_cmp_lg_u32 s{sWAVE}, 4
s_cbranch_scc1 k1_end
s_mov_b32 s96, s26
s_mov_b32 s97, s27
s_mov_b32 s98, 64
s_mov_b32 s99, 0x20000
v_mov_b32 v1, 0
""")
        for k in range(16):
            e(f"s_sub_u32 s100, s{80+k}, s{80 if k == 10 else 81}")
            e("v_mov_b32 v0, s100")
            e(f"buffer_store_dword v0, v1, s[96:99], 0 offen offset:{k*4}")
        e("s_waitcnt vmcnt(0)")
        return
    e(f"""
s_mul_i32 s100, s2, {nw}
s_add_u32 s100, s100, s{sWAVE}
s_lshl_b32 s100, s100, 6
s_add_u32 s100, s100, {base}
s_add_u32 s96, s{wsreg}, s100
s_addc_u32 s97, s{wsreg+1}, 0
s_mov_b32 s98, 64
s_mov_b32 s99, 0x20000
v_mov_b32 v1, 0
""")
    for k in range(16):
        e(f"v_mov_b32 v0, s{80+k}")
        e(f"buffer_store_dword v0, v1, s[96:99], 0 offen offset:{k*4}")
    e("s_waitcnt vmcnt(0)")

class Gen:
    def __init__(self, prog, needs):
        self.p = prog; self.needs = needs; self.rec = {}
        self.mute = 0
        self.vq = []; self.lq = []; self.pend = []; self.issued = {}
        self.nosim = 0
    def e(self, s):
        if not self.mute: self.p(s)
    def label(self, n):
        if not self.mute: self.p.label(n)
    def wait(self, kind, key, tags, drain_tags=()):
        q = self.vq if kind == "vm" else self.lq
        for t in tags:
            assert self.issued.pop(t, 0) > 0, (t, key)
        tags = list(tags) + list(drain_tags)
        idx = [i for i, t in enumerate(q) if t in tags]
        n = len(q) - 1 - max(idx) if idx else 999
        if n != 999: n = min(n, 63 if kind == "vm" else 15)
        k = (kind, key)
        self.rec[k] = min(self.rec.get(k, 999), n)
        val = self.needs.get(k, n)
        if val == 999: return
        self.e(f"s_waitcnt {'vmcnt' if kind == 'vm' else 'lgkmcnt'}({val})")
        del q[:len(q) - val if val < len(q) else 0]
    def wait_alt(self, key, tags, alt, cmp_txt, lab):
        q = self.vq
        for t in tags: assert self.issued.pop(t, 0) > 0, (t, key)
        idx = [i for i, t in enumerate(q) if t in tags]
        n = min(len(q) - 1 - max(idx), 63) if idx else 999
        k = ("vm", key, alt)
        self.rec[k] = min(self.rec.get(k, 999), n)
        va, vb = self.needs.get(("vm", key, False), 0), self.needs.get(("vm", key, True), 0)
        if vb != 999 and vb > va: self.e(f"s_waitcnt vmcnt({vb})")
        if vb > va:
            self.e(cmp_txt); self.e(f"s_cbranch_scc1 {lab}")
        val = min(va, vb) if not (alt and vb > va) else vb
        if min(va, vb) != 999: self.e(f"s_waitcnt vmcnt({min(va, vb)})")
        if vb > va: self.label(lab)
        if val != 999: del q[:len(q) - val if val < len(q) else 0]
    def vm(self, tag, text):
        self.e(text); self.vq.append(tag); self.issued[tag] = self.issued.get(tag, 0) + 1
    def ld(self, tag, text):
        self.e(text); self.lq.append(tag); self.issued[tag] = self.issued.get(tag, 0) + 1
    def drain(self, n=1):
        for _ in range(n):
            if self.pend: self.pend.pop(0)()
    def optional(self, taken, fn):
        if taken: fn()
        elif not self.mute:
            st = (list(self.vq), list(self.lq), dict(self.issued))
            fn()
            self.vq[:], self.lq[:] = st[0], st[1]; self.issued = st[2]

def mfma(e, d, a, b, c):
    if not OPT["nomf"]:
        e(f"v_mfma_f32_16x16x32_bf16 {v(d,4)}, {v(a,4)}, {v(b,4)}, {c if c == '0' else v(c,4)}")


KL = OPT["kl"]
KVT = [k for k in range(NX) if not OPT['burst'] or k % 2 == OPT['kpar']]
N0 = max(u for u in range(300) if 4 * (u - KL) + 4 <= XB_[KVT[-1]]) + 1
def lane_regs(e, b=2):
    e(f"""
v_mbcnt_lo_u32_b32 v{b}, -1, 0
v_mbcnt_hi_u32_b32 v{b}, -1, v{b}
v_and_b32 v{b+1}, 15, v{b}
v_lshrrev_b32 v{b+2}, 4, v{b}
v_lshrrev_b32 v{b+3}, 2, v{b}
v_and_b32 v{b+4}, 3, v{b+3}
v_and_b32 v{b+5}, 3, v{b}
v_lshrrev_b32 v{b+6}, 3, v{b}
v_and_b32 v{b+7}, 7, v{b}
""")
def kv_kind(a):
    a %= 32
    return "K" if (a == 0 or (a % 2 == 1 and a < 31)) else "V"
def kv_tile(a):
    u, a = divmod(a, 32)
    return u * 16 + (0 if a == 0 else 15 if a == 31 else (a + 1) // 2 if a % 2 == 1 else (a - 2) // 2)
def QAC(hh, rt, k): return ((hh * 7 + rt) * 3 + k) * 4
QB = [240, 241, 242]; QT = [251, 252, 253]; NPRE = 12; X9 = KVB + 51200
QW = [248, 249, 250]


class OpEngine:
    def __init__(self, g, PK, AC0, AF0, BF0, RA, OB, PO, ring, sM0, ringoff):
        self.g, self.e = g, g.e
        self.PK, self.AC0, self.AF0, self.BF0, self.RA, self.OB, self.PO = PK, AC0, AF0, BF0, RA, OB, PO
        self.ring, self.sM0, self.ro = ring, sM0, ringoff
        self.dq = []; self.pq = []; self.clock = 0; self.fl = OPT['wo']; self.nr = 4; self.early = 0; self.pkb = 0; self.atbar = []
    def AC(self, k): return self.AC0 + 4 * k
    def AF(self, s, i): return self.AF0 + 8 * (s & 1) + 4 * i
    def BF(self, n): return self.BF0 + 4 * (n % 6)
    def slot(self, i): return ((i + self.ro) % self.nr) * 8192
    def addr_setup(self):
        e = self.e
        lane_regs(e, 232)
        L = 232
        e(f"""
v_lshlrev_b32 v{self.OB}, 4, v{L}
v_lshlrev_b32 v{L+8}, 1, v{L+2}
v_xor_b32 v{L+8}, v{L+1}, v{L+8}
v_lshlrev_b32 v{L+8}, 4, v{L+8}
v_mul_u32_u24 v{L+9}, 1280, v{L+2}
v_add_u32 v{self.PO[0]}, v{L+8}, v{L+9}
v_xor_b32 v{L+8}, 128, v{L+8}
v_add_u32 v{L+8}, v{L+8}, v{L+9}
v_add_u32 v{self.PO[1]}, 4096, v{L+8}
s_lshl_b32 s{sT1}, s{sW4}, 1
v_and_b32 v{L+8}, 7, v{L+3}
v_xor_b32 v{L+8}, s{sT1}, v{L+8}
v_lshlrev_b32 v{L+8}, 5, v{L+8}
v_lshl_add_u32 v{L+8}, v{L+3}, 8, v{L+8}
v_lshl_add_u32 v{L+8}, v{L+5}, 3, v{L+8}
v_add_u32 v{self.RA[0]}, {self.ring}, v{L+8}
v_xor_b32 v{self.RA[1]}, 32, v{self.RA[0]}
""")
    def dma(self, i):
        ps, j = divmod(i, 6)
        out = []
        for q in range(2):
            def f(q=q):
                if q == 0:
                    self.e(f"s_add_u32 m0, s{self.sM0}, {self.ring+self.slot(i)}")
                    self.e(f"s_add_u32 s{sT2}, s{sOB}, {j*32*1280+ps*256}")
                o = "offset:1024 " if q else ""
                self.g.vm(f"O{i}", f"buffer_load_dwordx4 v{self.PO[q]}, s[{sOd}:{sOd+3}], s{sT2} offen {o}{self.fl} lds")
            out.append(f)
        return out
    def defer(self, at, ins):
        for x in ins: self.dq.append((at, x))
    def run_dq(self, n):
        while n > 0 and self.dq and self.dq[0][0] <= self.clock:
            x = self.dq.pop(0)[1]
            if callable(x): x()
            else: self.e(x)
            n -= 1
    def flush_pq(self):
        while self.pq: self.pq.pop(0)[1]()
    def a_read(self, i, n):
        k, hf = divmod(n, 2)
        self.g.ld(f"o{i}a{k}", f"ds_read_b64_tr_b16 {v(self.AF(i,k)+2*hf,2)}, v{self.RA[k]} offset:{self.slot(i)+hf*4096}")
    def b_read(self, b):
        i, rt = divmod(b, 7)
        self.g.ld(f"o{i}b{rt}", f"ds_read_b128 {v(self.BF(b),4)}, v{self.OB} offset:{QO+(i%6*7+rt)*1024}")
    def first_reads(self, i):
        self.a_read(i, 0); self.a_read(i, 1); self.b_read(7 * i); self.a_read(i, 2); self.a_read(i, 3)
        for n in range(1, 6): self.b_read(7 * i + n)
    def unpack_l(self, dst, src):
        return [f"v_perm_b32 v{dst+x}, v{src+x//2}, v{src+x//2}, s{sSHI if x & 1 else sSLO}" for x in range(4)]
    def pack_l(self, dst, src):
        return [f"v_cvt_pk_bf16_f32 v{dst}, v{src}, v{src+1}", f"v_cvt_pk_bf16_f32 v{dst+1}, v{src+2}, v{src+3}"]
    def store_l(self, ps, rt):
        o = (ps * 7 + rt) * 1024
        return [f"s_mov_b32 s{sT3}, {o - o % 4096}",
                lambda: self.g.vm("st", f"buffer_store_dwordx4 {v(self.PK(ps*14+rt*2),4)}, v{self.OB}, s[{sPd}:{sPd+3}], s{sT3} offen offset:{o%4096} {OPT['st']}")]
    def step(self, key, i, last, tick, store=False, hooks=None):
        g, e = self.g, self.e
        ps, j = divmod(i, 6)
        BAR = OPT["bar"]
        c0 = self.clock
        if store and not self.early and i >= last - 3 and i < last:
            todo = [(q, rt) for q in range(store[0], ps) for rt in range(7)]
            k = i - (last - 3)
            mine = todo[k * len(todo) // 3:(k + 1) * len(todo) // 3]
            for n, (q, rt) in enumerate(mine): self.defer(c0 + (6 if k == 0 else 0) + n * (8 if k == 0 else 14) // len(mine), self.store_l(q, rt))
        if j == 5 and (i < last or store):
            for n in range(14):
                ins = self.pack_l(self.PK(ps * 14 + n), self.AC(n))
                if i < last: ins += self.unpack_l(self.AC(n), self.PK((ps + 1) * 14 + n))
                if store and n % 2 == 1 and (i == last or self.early): ins += self.store_l(ps, n // 2)
                if self.pkb and i < last and n >= BAR: self.atbar += ins
                else: self.defer(c0 + n + 4, ins)
        for n in range(14):
            rt, k = divmod(n, 2)
            if n == BAR and i < last: tick(i)
            if n == BAR and j == 0:
                for x in self.atbar:
                    if callable(x): x()
                    else: e(x)
                self.atbar = []
            if hooks and n in hooks: hooks[n]()
            tags = ([f"o{i}b{rt}"] if k == 0 else []) + ([f"o{i}a{k}"] if rt == 0 else [])
            if tags: g.wait("lg", f"{key}{i}m{n}", tags)
            mfma(e, self.AC(n), self.AF(i, k), self.BF(7 * i + rt), self.AC(n))
            if k == 1 and 7 * i + rt + 6 < 7 * (last + 1): self.b_read(7 * i + rt + 6)
            if k == 0 and i < last and BAR < n <= BAR + 8: self.a_read(i + 1, (n - BAR - 1) // 2)
            while self.pq and self.pq[0][0] <= self.clock: self.pq.pop(0)[1]()
            self.clock += 1
            self.run_dq(7)
    def finish(self):
        self.flush_pq(); self.clock += 100; self.run_dq(1000)

def qp_phase(p, needs):
    g = Gen(p, needs); e = g.e
    AC = QAC
    def AF(par, hh, k): return 168 + par * 24 + (hh * 3 + k) * 4
    def BF(n): return 216 + 4 * (n % 4)
    RA = [[232, 233, 234], [235, 236, 237]]; XA = [238, 239]; PW = [243, 244, 245]; PX = 246
    JUNK = 247
    STG = [KVB, T1R]
    NB1, NB2 = OPT["nb1"], OPT["nb2"]
    QV = OPT["qv"]
    HEAD = {(0, 0): 0, (0, 1): 3, (1, 0): 1, (1, 1): 2}
    def dma_w(i, hh):
        out = []
        for tm in (range(2) if QV else [None]):
            for ii in range(3):
                def f(ii=ii, tm=tm):
                    if ii == 0:
                        if QV:
                            e(f"s_add_u32 m0, s{sLW}, {STG[i&1]+hh*2*TILE+tm*TILE}")
                            e(f"s_add_u32 s{sT1}, s{sWB}, {i*32*12288+HEAD[tm,hh]*384}")
                        else:
                            e(f"s_add_u32 m0, s{sLW}, {STG[i&1]+hh*2*TILE}")
                            e(f"s_add_u32 s{sT1}, s{sWB2 if hh else sWB}, {i*32*12288}")
                    o = f"offset:{ii*1024} " if ii else ""
                    g.vm(f"W{i}.{hh}", f"buffer_load_dwordx4 v{PW[ii]}, s[{sWd}:{sWd+3}], s{sT1} offen {o}{OPT['w']} lds")
                out.append(f)
        return out
    def dma_x(pp):
        out = []
        nq = 4 if QV else 2
        xb = X9 if pp == 9 else QO + (pp % 3) * 14336
        for q in range(nq):
            def f(q=q):
                if q < nq - 1: e(f"s_add_u32 m0, s{sXM}, {xb+q*16384//nq}")
                else:
                    e(f"s_add_u32 s{sT2}, s{sXM}, {xb+q*16384//nq}")
                    e(f"s_cmp_ge_u32 s{sWAVE}, 6")
                    e(f"s_cselect_b32 m0, s{sXF}, s{sT2}")
                e(f"s_add_u32 s{sT2}, s{sXB}, {pp*128+q*163840//nq}")
                g.vm(f"X{pp}", f"buffer_load_dwordx4 v{PX}, s[{sXd}:{sXd+3}], s{sT2} offen {OPT['x']} lds")
            out.append(f)
        return out
    nlab = [0]
    def issue(fs):
        if not QV:
            g.pend += fs; return
        if not fs: return
        nlab[0] += 1
        e(f"s_cmp_eq_u32 s{sTEAM}, 0")
        e(f"s_cbranch_scc1 qp_i{nlab[0]}")
        for f in fs: f()
        g.label(f"qp_i{nlab[0]}")
    def a_read(i, hh, n):
        k, hf = divmod(n, 2)
        g.ld(f"{i}a{hh}{k}", f"ds_read_b64_tr_b16 {v(AF(i&1,hh,k)+2*hf,2)}, v{RA[i&1][k]} offset:{hh*2*TILE+hf*1536}")
    def b_read(i, rt):
        g.ld(f"{i}b{rt}", f"ds_read_b128 {v(BF(7*i+rt),4)}, v{XA[i&1]} offset:{((i>>1)%3)*14336+rt*2048}")
    lane_regs(e)
    e(f"""
v_lshrrev_b32 v13, 1, v8
v_and_b32 v13, 3, v13
v_lshlrev_b32 v13, 1, v13
v_xor_b32 v13, v9, v13
v_lshlrev_b32 v13, 4, v13
v_mul_u32_u24 v14, 1280, v8
v_add_u32 v{PX}, v13, v14
v_mul_u32_u24 v14, 384, v8
v_add_u32 v{PKV_}, v13, v14
s_mul_i32 s{sXB}, s{sW4 if QV else sWAVE}, 10240
s_lshl_b32 s{sXM}, s{sW4 if QV else sWAVE}, 10
s_sub_u32 s{sXF}, s{sXM}, {2048 if QV else 6144}
s_add_u32 s{sXF}, s{sXF}, {SPARE}
""")
    issue(dma_x(0)); g.drain(9)
    e(f"""
s_and_b32 s{sT1}, s{sW4}, 1
s_lshl_b32 s{sT1}, s{sT1}, 2
v_xor_b32 v16, s{sT1}, v9
s_mul_i32 s{sWB}, s{sW4}, {8*12288}
s_mul_i32 s{sT1}, s{sTEAM}, {0 if QV else 384}
s_add_u32 s{sWB2}, s{sWB}, 1152
s_add_u32 s{sWB}, s{sWB}, s{sT1}
s_sub_u32 s{sWB2}, s{sWB2}, s{sT1}
s_mul_i32 s{sT1}, s{sTEAM}, {0 if QV else TILE}
s_add_u32 s{sLW}, s{sLW}, s{sT1}
""")
    for q in range(3):
        e(f"""
v_add_u32 v10, {8*q}, v8
v_mul_u32_u24 v11, 43, v10
v_lshrrev_b32 v11, 7, v11
v_mul_u32_u24 v12, 3, v11
v_sub_u32 v12, v10, v12
v_lshrrev_b32 v13, 1, v11
v_and_b32 v14, 1, v13
v_xor_b32 v14, v16, v14
v_lshlrev_b32 v14, 4, v14
v_lshl_add_u32 v14, v12, 7, v14
v_mul_u32_u24 v15, 12288, v11
v_add_u32 v14, v14, v15
v_subrev_u32 v{PW[q]}, {q*1024}, v14
""")
    issue(dma_w(0, 0) + dma_w(0, 1)); g.drain(9)
    if OPT["touch"]:
        nsh = 16 if OPT["map"] == 0 else 8
        rows = 640 // nsh // 8
        e(f"""
v_mul_u32_u24 v10, 43, v2
v_lshrrev_b32 v10, 9, v10
v_mul_u32_u24 v11, 12, v10
v_sub_u32 v11, v2, v11
""")
        if not OPT["wt"]:
            e(f"""
s_and_b32 s{sT1}, s{sB}, {nsh-1}
s_lshl_b32 s{sT1}, s{sT1}, 3
s_add_u32 s{sT1}, s{sT1}, s{sWAVE}
s_mul_i32 s{sT1}, s{sT1}, {rows*12288}
v_mul_u32_u24 v10, 12288, v10
v_lshl_add_u32 v10, v11, 7, v10
""")
            for r in range(rows // 5):
                g.vm("pf", f"buffer_load_dword v{JUNK}, v10, s[{sWd}:{sWd+3}], s{sT1} offen {OPT['tq']}")
                e(f"s_add_u32 s{sT1}, s{sT1}, {5*12288}")
        else:
            e(f"""
v_min_u32 v10, 1, v10
v_mul_u32_u24 v10, 12288, v10
v_lshl_add_u32 v254, v11, 7, v10
s_mul_i32 s{sWT}, s{sB}, {2*12288}
s_add_u32 s{sT1}, s{sWAVE}, 2
s_mul_i32 s{sT1}, s{sT1}, {32*12288}
s_add_u32 s{sT1}, s{sT1}, s{sWT}
s_cmp_lt_u32 s{sWAVE}, {OPT['wt']-2}
s_cselect_b32 s{sT1}, s{sT1}, 0x1000000
""")
            g.vm("pf", f"buffer_load_dword v{JUNK}, v254, s[{sWd}:{sWd+3}], s{sT1} offen {OPT['tq']}")
    if OPT["touch"] and OPT["xt"]:
        e(f"""
s_and_b32 s{sT1}, s{sQUAD}, 1
s_mul_i32 s{sT1}, s{sT1}, 71680
s_mul_i32 s{sT2}, s{sWAVE}, {70*128}
s_add_u32 s{sT1}, s{sT1}, s{sT2}
v_lshlrev_b32 v10, 7, v2
""")
        g.vm("pf", f"buffer_load_dword v{JUNK}, v10, s[{sXd}:{sXd+3}], s{sT1} offen")
        g.vm("pf", f"buffer_load_dword v{JUNK}, v10, s[{sXd}:{sXd+3}], s{sT1} offen offset:768")
    e(f"""
v_lshrrev_b32 v8, 1, v3
v_and_b32 v8, 3, v8
v_lshlrev_b32 v8, 1, v8
v_xor_b32 v8, v4, v8
v_lshlrev_b32 v8, 4, v8
v_lshl_add_u32 v9, v3, 7, v8
v_add_u32 v{XA[0]}, {QO}, v9
v_xor_b32 v{XA[1]}, 64, v{XA[0]}
v_lshl_add_u32 v8, v4, 3, v6
v_mul_u32_u24 v9, 384, v8
v_lshrrev_b32 v8, 1, v6
v_and_b32 v11, 1, v4
v_lshl_add_u32 v8, v11, 2, v8
v_xor_b32 v8, v7, v8
v_lshl_add_u32 v9, v8, 4, v9
v_lshlrev_b32 v12, 3, v11
v_lshl_add_u32 v12, v2, 4, v12
v_and_b32 v11, 1, v7
v_lshl_add_u32 v11, v11, 3, v9
s_mov_b32 s{sC}, {hex(f2u(192 ** -0.5 * math.log2(math.e)))}
s_mov_b32 s{sC+1}, s{sC}
""")
    for i in range(3):
        e(f"""
s_mul_i32 s{sT1}, s{sW4}, 3
s_add_u32 s{sT1}, s{sT1}, {i}
s_lshr_b32 s{sT2}, s{sT1}, 2
s_lshl_b32 s{sRY+i}, s{sT2}, 7
s_and_b32 s{sT3}, s{sT1}, 3
s_xor_b32 s{sT3}, s{sT3}, s{sW4}
s_lshl_b32 s{sRX+i}, s{sT3}, 5
s_and_b32 s{sT3}, s{sT1}, 2
s_lshl_b32 s{sT3}, s{sT3}, 5
s_and_b32 s{sT2}, s{sT1}, 1
s_lshl_b32 s{sT2}, s{sT2}, 3
v_xor_b32 v{QW[i]}, s{sT2}, v12
s_or_b32 s{sT3}, s{sT3}, s{sT2}
v_xor_b32 v13, s{sT3}, v11
s_lshr_b32 s{sT1}, s{sT1}, 1
s_mul_i32 s{sT1}, s{sT1}, 7168
v_add_u32 v{QW[i]}, s{sT1}, v{QW[i]}
s_mul_i32 s{sT1}, s{sW4}, 3
s_add_u32 s{sT1}, s{sT1}, {i}
s_lshr_b32 s{sT1}, s{sT1}, 1
s_cmp_lt_u32 s{sT1}, 3
s_cselect_b32 s{sT3}, {B2 - (T1R + 6144 - 18432)}, 0
s_add_u32 s{sT3}, s{sT3}, {T1R + 6144 - 18432}
s_lshl_b32 s{sT2}, s{sT1}, 10
s_sub_u32 s{sT2}, s{sT3}, s{sT2}
v_add_u32 v{QB[i]}, s{sT2}, v{QW[i]}
s_mul_i32 s{sT2}, s{sT1}, 6144
s_sub_u32 s{sT2}, {T1R}, s{sT2}
v_add_u32 v{QT[i]}, s{sT2}, v{QW[i]}
s_mul_i32 s{sT1}, s{sTEAM}, {TILE}
s_add_u32 s{sT1}, s{sT1}, s{sRY+i}
v_add_u32 v13, s{sT1}, v13
v_add_u32 v{RA[1][i]}, {T1R}, v13
v_add_u32 v{RA[0][i]}, {KVB}, v13
""")
    g.wait("vm", "in", ["W0.0", "W0.1", "X0"])
    e("s_barrier")
    stamp(e, 14, real=bool(OPT["rt"]))
    e(f"""
s_cmp_lg_u32 s{sWAVE}, 0
s_cbranch_scc1 k1_nocnt
s_mov_b32 s4, s26
s_mov_b32 s5, s27
s_mov_b32 s6, 256
s_mov_b32 s7, 0x20000
s_lshl_b32 s{sT1}, s{sGRP}, 2
v_mov_b32 v204, 0
v_mov_b32 v205, 1
s_mov_b64 exec, 1
buffer_atomic_add v205, v204, s[4:7], s{sT1} offen sc1
s_mov_b64 exec, -1
k1_nocnt:
""")
    a_read(0, 0, 0); a_read(0, 0, 1); b_read(0, 0); b_read(0, 1)
    for n in range(2, 6): a_read(0, 0, n)
    for n in range(6): a_read(0, 1, n)
    for rt in range(2, 4): b_read(0, rt)
    issue(dma_w(1, 0) + dma_w(1, 1) + dma_x(1)); g.drain(9)
    ORD = [(rt, 0, k) for rt in (0, 1) for k in range(3)] + [(rt, 1, k) for rt in (0, 1) for k in range(3)]
    ORD += [(rt, hh, k) for rt in range(2, 7) for hh in range(2) for k in range(3)]
    lastb = {rt: max(n for n, x in enumerate(ORD) if x[0] == rt) for rt in range(7)}
    A0 = [NB1 + 2 + 3 * x for x in range(6)]
    A1 = [NB2 + 1 + 2 * x for x in range(6)]
    def qcvt(n):
        rt, hh, k = ORD[n]
        a = AC(hh, rt, k)
        e(f"v_pk_mul_f32 {v(a,2)}, {v(a,2)}, s[{sC}:{sC+1}]")
        e(f"v_pk_mul_f32 {v(a+2,2)}, {v(a+2,2)}, s[{sC}:{sC+1}]")
        e(f"v_cvt_pk_bf16_f32 v{a}, v{a}, v{a+1}")
        e(f"v_cvt_pk_bf16_f32 v{a+1}, v{a+2}, v{a+3}")
        todo.append(n)
        while todo and bar19[0]:
            m = todo.pop(0)
            rt, hh, k = ORD[m]
            r, o = (QW[k], QO + rt * 1024) if hh == 0 else (QB[k], rt * 1024) if rt < 6 else (QT[k], 0)
            e(f"s_cbranch_scc0 qp_w{m}")
            e(f"ds_write_b64 v{r}, {v(AC(hh,rt,k),2)} offset:{o}")
            g.label(f"qp_w{m}")
    todo = []; bar19 = [False]
    lastd = [0]
    for i in range(20):
        if i in (17, 18): e(f"v_add_u32 v{XA[i-17]}, {X9}, v{XA[i-17]}")
        seen = set()
        for n, (rt, hh, k) in enumerate(ORD):
            if n == NB1 and i < 19:
                g.drain(9); lastd[0] = n - 9
                g.wait("lg", f"r1{i}", [], drain_tags=[f"{i}a1{x}" for x in range(3)])
                g.wait("vm", f"s{i}", [f"W{i+1}.0"] + ([f"X{(i+1)//2}"] if i % 2 == 1 else []))
                e("s_barrier")
                issue(((dma_w(i + 2, 0) if i == 0 else []) + dma_w(i + 2, 1) if i + 2 < 20 else []) + (dma_x(i // 2 + 2) if i % 2 == 0 and i // 2 + 2 < 10 else []))
            if OPT["wt"] and n == NB1 + OPT["wtn"] and i + OPT["wt"] < 20:
                e(f"s_cmp_lg_u32 s{sWAVE}, {i % 8}")
                e(f"s_cbranch_scc1 qp_wt{i}")
                e(f"s_add_u32 s{sT3}, s{sWT}, {(i+OPT['wt'])*32*12288}")
                e(f"buffer_load_dword v{JUNK}, v254, s[{sWd}:{sWd+3}], s{sT3} offen {OPT['tq']}")
                g.label(f"qp_wt{i}")
            if n == NB2 and i < 19:
                g.drain(9); lastd[0] = n - 9
                g.wait("lg", f"r2{i}", [], drain_tags=[f"{i+1}a0{x}" for x in range(3)])
                g.wait("vm", f"t{i}", [f"W{i+1}.1"])
                e("s_barrier")
                if i + 3 < 20: issue(dma_w(i + 3, 0))
            if n == NB1 and i == 19:
                g.wait("lg", "r119", [], drain_tags=[f"19a1{x}" for x in range(3)])
                e("s_barrier")
                e(f"s_cmp_eq_u32 s{sTEAM}, 0")
                bar19[0] = True
            if OPT["qp1"] and n == 0 and i == OPT["qp1"]:
                e(f"s_cmp_eq_u32 s{sTEAM}, 0")
                e("s_cbranch_scc1 qp_np")
                e("s_setprio 1")
                g.label("qp_np")
            if OPT["kpf"] and n == NB2 - 1 and i == OPT["kps"]:
                assert not g.pend
                e(f"""
s_cmp_lg_u32 s{sTEAM}, 0
s_cbranch_scc1 qp_nokpf
s_cmp_lt_u32 s{sWAVE}, 2
s_cselect_b64 s[4:5], s[{sKd}:{sKd+1}], s[{sVd}:{sVd+1}]
s_cselect_b32 s{sT3}, {2*TILE}, 0
s_add_u32 s{sT3}, s{sT3}, {TILE}
s_mov_b32 m0, {SPARE+1024+512}
s_mov_b32 s6, 786432
s_mov_b32 s7, 0x20000
s_and_b32 s{sT2}, s{sWAVE}, 1
s_lshl_b32 s{sT2}, s{sT2}, 13
s_add_u32 s{sT3}, s{sT3}, s{sT2}
v_mbcnt_lo_u32_b32 v254, -1, 0
v_mbcnt_hi_u32_b32 v254, -1, v254
v_lshlrev_b32 v254, 7, v254
""")
                for r in range(OPT["kpf"]):
                    e(f"buffer_load_dword v254, s[4:7], s{sT3} offen {OPT['kpl']} lds")
                    e(f"s_add_u32 s{sT3}, s{sT3}, 16384")
                g.label("qp_nokpf")
            if OPT["stl"] and n == NB1 + 1 and i in range(OPT["stl"], OPT["stl"] + 2 * OPT["stn"], 2):
                r = (i - OPT["stl"]) // 2
                e(f"""
s_lshr_b32 s{sT3}, s{sWAVE}, 1
s_cmp_eq_u32 s{sT3}, 0
s_cselect_b64 s[4:5], s[{sKd}:{sKd+1}], s[{sVd}:{sVd+1}]
s_cmp_eq_u32 s{sT3}, 2
s_cselect_b64 s[4:5], s[{sOd}:{sOd+1}], s[4:5]
s_and_b32 s{sT3}, s{sWAVE}, 1
s_mul_i32 s6, s{sT3}, {786432 // 2}
s_add_u32 s6, s6, {r * (786432 // 2 // OPT["stn"]) + (786432 // 2 // OPT["stn"]) - 64}
s_cmp_eq_u32 s{sWAVE}, 6
s_cselect_b64 s[4:5], s[{sPd}:{sPd+1}], s[4:5]
s_cselect_b32 s6, 0, s6
s_cmp_eq_u32 s{sWAVE}, 7
s_cselect_b64 s[4:5], s[24:25], s[4:5]
s_mul_i32 s{sT3}, s{sB}, {112*2560}
s_cselect_b32 s6, s{sT3}, s6
s_load_dword s99, s[4:5], s6
""")
            if OPT["pwo"] and n == 20 and i == OPT["pwo"]:
                nsh = 16 if OPT["map"] == 0 else 8
                per = 245760 * OPT["pwh"] // (8 * nsh)
                e(f"""
s_and_b32 s{sT3}, s{sB}, {nsh-1}
s_lshl_b32 s{sT3}, s{sT3}, 3
s_add_u32 s{sT3}, s{sT3}, s{sWAVE}
s_mul_i32 s{sT3}, s{sT3}, {per}
s_add_u32 s{sT3}, s{sT3}, {245760 * (4 - OPT["pwh"])}
v_mbcnt_lo_u32_b32 v251, -1, 0
v_mbcnt_hi_u32_b32 v251, -1, v251
v_min_u32 v251, {min(59, per // 128 - 1)}, v251
v_lshlrev_b32 v251, 7, v251
""")
                for r in range(max(1, per // 7680)):
                    g.vm("pf", f"buffer_load_dword v{JUNK}, v251, s[{sOd}:{sOd+3}], s{sT3} offen {OPT['pwf']}")
                    e(f"s_add_u32 s{sT3}, s{sT3}, 7680")
            if n == NB2 + 1 and i == 18:
                e(f"s_mul_i32 s{sKSO2}, s{sW4}, 3072")
                e(f"s_cmp_eq_u32 s{sTEAM}, {1 if OPT['kv0'] else 0}")
                e("s_cbranch_scc1 qp_nokv")
                e(f"s_lshl_b32 s{sT3}, s{sW4}, 10")
                for u in range(NPRE):
                    a, bb = divmod(u, 3)
                    e(f"s_add_u32 m0, s{sT3}, {KVB + (u % NS) * 4096 - bb * 128}")
                    e(f"s_add_u32 s{sT1}, s{sKSO2}, {kv_tile(a) * TILE}")
                    srd = sKd if kv_kind(a) == "K" else sVd
                    e(f"buffer_load_dwordx4 v{PKV_}, s[{srd}:{srd+3}], s{sT1} offen offset:{bb*128} {OPT['kv']} lds")
                g.label("qp_nokv")
            tags = [t for t in (f"{i}b{rt}", f"{i}a{hh}{k}") if t not in seen]
            seen.update(tags)
            if tags: g.wait("lg", f"{i}m{n}", tags)
            mfma(e, AC(hh, rt, k), AF(i & 1, hh, k), BF(7 * i + rt), "0" if i == 0 else AC(hh, rt, k))
            if n == lastb[rt]:
                if rt + 4 < 7: b_read(i, rt + 4)
                elif i < 19: b_read(i + 1, rt - 3)
            if i < 19 and n in A0: a_read(i + 1, 0, A0.index(n))
            if i < 19 and n in A1: a_read(i + 1, 1, A1.index(n))
            if g.pend and (n - lastd[0]) % 42 >= (OPT["qd"] if len(g.pend) <= 3 else OPT["qd"] - 2):
                g.drain(1); lastd[0] = n
            if i == 19 and n >= 4: qcvt(n - 4)
    for n in range(38, 42): qcvt(n)
    stamp(e, 15, real=bool(OPT["rt"]))
    return g.rec

def t0_path(p, needs, nrt, tag):
    g = Gen(p, needs); e = g.e
    def ACC(rt, t): return rt * 48 + t * 4
    def Q(rt, j): return 96 + rt * 24 + j * 4
    def S(par, rt, kt=0): return 144 + par * 16 + rt * 8 + kt * 4
    def P(par, rt): return 176 + par * 8 + rt * 4
    def NEGM(rt): return 192 + rt * 4
    def LSUM(rt): return 200 + rt * 4
    def STG(rt, j): return 144 + (j * 2 + rt) * 4 if j < 5 else 192 + rt * 4
    ONES = 208
    FR0 = 212; NFR = 8
    def FR(a, f): return FR0 + ((a * 12 + f) % NFR) * 4
    KA = [244, 245]; VA = [246, 247, 248, 249]; QOA = 250
    TC = 251; T = [252, 253, 254, 255]
    HOLD = [48 + 4 * i for i in range(12)] + [156, 172, 180, 188, 196, 204]
    def rd_l(a, f):
        base = ((3 * a + f // 4) % NS) * 4096; tg = f"A{a%32}f{f}"
        if kv_kind(a) == "K":
            j, kt = divmod(f, 2)
            return [lambda: g.ld(tg, f"ds_read_b128 {v(FR(a,f),4)}, v{KA[j&1]} offset:{base+kt*2048}")]
        return [lambda hf=hf: g.ld(tg, f"ds_read_b64_tr_b16 {v(FR(a,f)+2*hf,2)}, v{VA[f&3]} offset:{base+hf*2048}") for hf in range(2)]
    def run(x):
        if callable(x): x()
        else: e(x)
    def cost(x): return 2 if isinstance(x, str) and x.startswith(("v_exp", "v_rcp")) else 1
    def step(key, a, mfs, valu=(), last=False, extra=None, v0=0):
        valu = list(valu)
        ngap = sum(len(mfs(f, 0)) for f in range(v0, 12))
        tot = sum(cost(x) for x in valu); done = 0; gap = 0
        for f in range(12):
            pos = a * 12 + f
            if extra and f in extra: extra[f]()
            if pos in XB_:
                k = XB_.index(pos)
                if OPT["kv0"] and k + 1 < NX and -(-(XB_[k] + LEAD) // 4) < NPRE:
                    e(f"s_waitcnt vmcnt({max(0, NPRE - -(-(XB_[k+1] + LEAD) // 4))})")
                e("s_barrier")
            reads = rd_l(a, f + LEAD) if f + LEAD < 12 else ([] if last else rd_l(a + 1, f + LEAD - 12))
            if not OPT["w2"]: g.wait("lg", f"{key}{f}", [f"A{a}f{f}"])
            elif f % 2 == 0: g.wait("lg", f"{key}{f}", [f"A{a}f{f}", f"A{a}f{f+1}"])
            ms = mfs(f, FR(a, f))
            for i, m in enumerate(ms):
                m()
                if reads: reads.pop(0)()
                if i == len(ms) - 1:
                    while reads: reads.pop(0)()
                if f >= v0:
                    gap += 1
                    while valu and done + cost(valu[0]) / 2 <= tot * gap / ngap:
                        done += cost(valu[0]); run(valu.pop(0))
        for x in valu: run(x)
    def mf_qk(par, zero):
        def m(f, fr):
            j, kt = divmod(f, 2)
            return [lambda rt=rt: mfma(e, S(par, rt, kt), fr, Q(rt, j), ("0" if zero else NEGM(rt)) if j == 0 else S(par, rt, kt)) for rt in range(nrt)]
        return m
    def onorm_l(j):
        out = []
        for rt in range(nrt):
            a = ACC(rt, 2 * j)
            out += [f"v_pk_mul_f32 {v(a+i,2)}, {v(a+i,2)}, {v(T[2*rt],2)}" for i in range(0, 8, 2)]
            out += [f"v_cvt_pk_bf16_f32 v{STG(rt,j)+i}, v{a+2*i}, v{a+2*i+1}" for i in range(4)]
        return out
    def mf_pv(par, first, last=False):
        def m(f, fr):
            out = []
            if f == (0 if last else 5):
                out += [lambda rt=rt: mfma(e, LSUM(rt), ONES, P(par, rt), "0" if first else LSUM(rt)) for rt in range(nrt)]
            return out + [lambda rt=rt: mfma(e, ACC(rt, f), fr, P(par, rt), "0" if first else ACC(rt, f)) for rt in range(nrt)]
        return m
    def sm(par, lo=0, hi=None):
        grp = [(rt, i) for rt in range(nrt) for i in range(4)][lo:hi]
        seq = []
        for n, (rt, i) in enumerate(grp):
            a, b = T[(2 * n) % 4], T[(2 * n + 1) % 4]
            r = S(par, rt) + 2 * i
            seq += [f"v_exp_f32 v{a}, v{r}", f"v_exp_f32 v{b}, v{r+1}"]
            if n > 0: seq.append(prev)
            prev = f"v_cvt_pk_bf16_f32 v{P(par,rt)+i}, v{a}, v{b}"
        return seq + [prev] if grp else []
    def chk_l(par):
        p0 = P(par, 0)
        out = [f"v_or3_b32 v{TC}, v{p0}, v{p0+1}, v{p0+2}"]
        if nrt == 2:
            out += [f"v_or3_b32 v{TC}, v{TC}, v{p0+3}, v{p0+4}", f"v_or3_b32 v{TC}, v{TC}, v{p0+5}, v{p0+6}"]
        out += [f"v_bitop3_b32 v{TC}, v{TC}, v{p0+4*nrt-1}, s{sBIT} bitop3:0xa8", f"v_cmp_ne_u32 vcc, 0, v{TC}"]
        return out
    def chk_branch(par, key):
        e(f"s_cbranch_vccz t0_ok{key}_{tag}")
        if not OPT["norare"]: e(f"s_call_b64 s[{sRET}:{sRET+1}], t0_rare{par}_{tag}")
        g.label(f"t0_ok{key}_{tag}")
    def rowmax(par, rt, t, t2):
        r = S(par, rt)
        e(f"""
v_max3_f32 v{t}, v{r}, v{r+1}, v{r+2}
v_max3_f32 v{t}, v{t}, v{r+3}, v{r+4}
v_max3_f32 v{t}, v{t}, v{r+5}, v{r+6}
v_max_f32 v{t}, v{t}, v{r+7}
v_mov_b32 v{t2}, v{t}
v_permlane32_swap_b32 v{t2}, v{t}
v_max_f32 v{t}, v{t}, v{t2}
v_mov_b32 v{t2}, v{t}
v_permlane16_swap_b32 v{t2}, v{t}
v_max_f32 v{t}, v{t}, v{t2}
v_add_f32 v{t}, {hex(f2u(7.0))}, v{t}
""")
    L = 216
    lane_regs(e, L)
    e(f"""
s_waitcnt lgkmcnt(0)
s_lshl_b32 s{sT1}, s{sWAVE}, 11
s_add_u32 s{sT1}, s{sT1}, {QO}
v_lshl_add_u32 v{QOA}, v{L}, 4, s{sT1}
v_lshrrev_b32 v{L+6}, 1, v{L+1}
v_and_b32 v{L+6}, 3, v{L+6}
v_lshlrev_b32 v{L+6}, 1, v{L+6}
v_xor_b32 v{L+6}, v{L+2}, v{L+6}
v_lshlrev_b32 v{L+6}, 4, v{L+6}
v_lshl_add_u32 v{L+6}, v{L+1}, 7, v{L+6}
v_add_u32 v{KA[0]}, {KVB}, v{L+6}
v_xor_b32 v{KA[1]}, 64, v{KA[0]}
v_lshrrev_b32 v{L+6}, 1, v{L+3}
v_and_b32 v{L+6}, 3, v{L+6}
v_lshlrev_b32 v{L+6}, 5, v{L+6}
v_lshl_add_u32 v{L+6}, v{L+3}, 7, v{L+6}
v_lshl_add_u32 v{L+6}, v{L+5}, 3, v{L+6}
v_add_u32 v{VA[0]}, {KVB}, v{L+6}
v_xor_b32 v{VA[1]}, 32, v{VA[0]}
v_xor_b32 v{VA[2]}, 64, v{VA[0]}
v_xor_b32 v{VA[3]}, 96, v{VA[0]}
s_mov_b32 s{sBIT}, 0x40004000
s_mov_b32 s{sSLOT}, 1
""")
    for i in range(4): e(f"v_mov_b32 v{ONES+i}, 0x3f803f80")
    H = 4 if (nrt == 2 and OPT["psplit"]) else (2 if OPT["psplit"] else 0)
    for unit in range(2):
        if unit >= 1: g.mute += 1
        g.label(f"t0_unit_{tag}")
        if OPT["kv0"]: e(f"s_waitcnt vmcnt({NPRE - -(-(XB_[0] + LEAD) // 4)})")
        e("s_barrier")
        if not g.mute: stamp_slot(e)
        e(f"s_cmp_gt_u32 s{sSLOT}, 3")
        e(f"s_cbranch_scc1 t0_q3_{tag}")
        for j in range(6):
            for rt in range(nrt): e(f"ds_read_b128 {v(Q(rt,j),4)}, v{QOA} offset:{(j*7+rt)*1024}")
        e(f"s_cmp_lg_u32 s{sSLOT}, 1")
        e(f"s_cbranch_scc1 t0_w_{tag}")
        if nrt == 1:
            for j in range(6): e(f"ds_read_b128 {v(Q(1,j),4)}, v{QOA} offset:{T1R-6144+j*1024}")
            for n in range(18): e(f"ds_read_b128 {v(HOLD[n],4)}, v{QOA} offset:{T1R+n*1024}")
        e(f"s_branch t0_noo_{tag}")
        g.label(f"t0_q3_{tag}")
        e(f"s_cmp_eq_u32 s{sSLOT}, 5")
        e(f"s_cbranch_scc1 t0_w_{tag}")
        if nrt == 1:
            for i in range(24): e(f"v_mov_b32 v{Q(0,0)+i}, v{Q(1,0)+i}")
        else:
            e(f"v_add_u32 v{TC}, {B2}, v{QOA}")
            for j in range(6):
                for rt in range(nrt):
                    if j < 3: e(f"ds_read_b128 {v(Q(rt,j),4)}, v{TC} offset:{(j*6+rt)*1024}")
                    else: e(f"ds_read_b128 {v(Q(rt,j),4)}, v{QOA} offset:{(j*7+rt)*1024}")
        g.label(f"t0_w_{tag}")
        e("s_waitcnt lgkmcnt(0)")
        for j in range(6):
            for rt in range(nrt): e(f"ds_write_b128 v{QOA}, {v(STG(rt,j),4)} offset:{(j*7+rt)*1024}")
        e(f"s_cmp_eq_u32 s{sSLOT}, 5")
        e(f"s_cbranch_scc1 t0_exit_{tag}")
        g.label(f"t0_noo_{tag}")
        for f in range(LEAD):
            for x in rd_l(0, f): x()
        step("a0_", 0, mf_qk(0, True), extra={1: lambda: e("s_barrier")})
        for rt in range(nrt):
            rowmax(0, rt, T[0], T[1])
            for i in range(4): e(f"v_sub_f32 v{NEGM(rt)+i}, 0, v{T[0]}")
            for i in range(8): e(f"v_sub_f32 v{S(0,rt)+i}, v{S(0,rt)+i}, v{T[0]}")
        for t in range(15):
            step(f"q{t}_", 2 * t + 1, mf_qk((t + 1) & 1, False), valu=sm(t & 1, H if t else 0) + chk_l(t & 1))
            chk_branch(t & 1, f"q{t}")
            va = sm((t + 1) & 1, 0, H)
            if t == 14: va = sm(1) + chk_l(1)
            step(f"p{t}_", 2 * t + 2, mf_pv(t & 1, t == 0), valu=va, v0=1)
        chk_branch(1, "q15")
        rc = [f"v_rcp_f32 v{T[i]}, v{LSUM(i//2)}" for i in range(2 * nrt)]
        ex = {3: lambda: [e(x) for x in rc]}
        for j in range(4): ex[4 + 2 * j] = lambda j=j: [e(x) for x in onorm_l(j)]
        step("p15_", 31, mf_pv(1, False, True), last=True, extra=ex)
        for x in onorm_l(4) + onorm_l(5): e(x)
        if nrt == 1:
            e(f"s_cmp_lg_u32 s{sSLOT}, 3")
            e("s_cbranch_scc1 t0_nohold")
            e(f"v_subrev_u32 v{TC}, 6144, v{QOA}")
            for n in range(18): e(f"ds_write_b128 v{TC}, {v(HOLD[n],4)} offset:{((3+n//6)*7+n%6)*1024}")
            e("s_waitcnt lgkmcnt(0)")
            g.label("t0_nohold")
        e(f"""
s_add_u32 s{sSLOT}, s{sSLOT}, 1
s_branch t0_unit_{tag}
""")
        if unit >= 1: g.mute -= 1
    g.label(f"t0_exit_{tag}")
    e("s_branch t0_final")
    for par in range(2):
        g.label(f"t0_rare{par}_{tag}")
        for rt in range(nrt):
            t, t2 = TC, T[0]
            rowmax(par, rt, t, t2)
            e(f"v_max_f32 v{t}, 0, v{t}")
            for i in range(4): e(f"v_sub_f32 v{NEGM(rt)+i}, v{NEGM(rt)+i}, v{t}")
            for pp in range(2):
                for i in range(8): e(f"v_sub_f32 v{S(pp,rt)+i}, v{S(pp,rt)+i}, v{t}")
            e(f"v_exp_f32 v{t}, -v{t}")
            for i in range(4): e(f"v_mul_f32 v{LSUM(rt)+i}, v{LSUM(rt)+i}, v{t}")
            for i in range(48): e(f"v_mul_f32 v{ACC(rt,0)+i}, v{ACC(rt,0)+i}, v{t}")
        for x in sm(par): e(x)
        e(f"s_setpc_b64 s[{sRET}:{sRET+1}]")
    return g.rec


def t0_final(p, needs):
    g = Gen(p, needs); e = g.e
    g.label("t0_final")
    op = OpEngine(g, lambda tt: 2 * (tt - 42), 56, 112, 128, [244, 245], 246, [247, 248], KVB, sLW, 2)
    op.fl = OPT["wo5"]; op.early = OPT["early"] >> 1
    op.addr_setup()
    e(f"""
s_mul_i32 s{sOB}, s{sW4}, {8*1280}
s_add_u32 s{sOB}, s{sOB}, {3*245760}
s_lshl_b32 s{sLW}, s{sW4}, 11
s_mov_b32 s{sSLO}, 0x01000c0c
s_mov_b32 s{sSHI}, 0x03020c0c
s_lshl_b32 s{sT1}, s{sW4}, 10
s_add_u32 s{sT1}, s{sT1}, {KVB + 32768}
v_add_u32 v249, s{sT1}, v246
""")
    for i in range(18, 22):
        for f in op.dma(i): f()
    def pk_read(ps):
        for rt in range(7): g.ld("pk", f"ds_read_b128 {v(op.PK(ps*14+rt*2),4)}, v249 offset:{rt*4096}")
    e("s_waitcnt lgkmcnt(0)"); g.lq[:] = []
    e("s_barrier")
    pk_read(3)
    e("s_waitcnt lgkmcnt(0)"); g.lq[:] = []
    for k in range(14):
        for x in op.unpack_l(op.AC(k), op.PK(42 + k)): e(x)
    g.wait("vm", "in", ["O18"])
    e("s_barrier")
    op.first_reads(18)
    def tick(i):
        op.flush_pq()
        g.wait("vm", f"t{i}", [f"O{i+1}"])
        e("s_barrier")
        if i + 4 < 30:
            for f in op.dma(i + 4): f()
    for i in range(18, 30):
        op.step("f", i, 29, tick, store=[3], hooks={5: lambda: pk_read(4)} if i == 20 else None)
    op.finish()
    for i in range(OPT["lastb"] - 12): e("s_barrier")
    if not OPT["oldfin"]: e("s_waitcnt vmcnt(0)")
    e("s_barrier")
    e("s_branch k1_final")
    return g.rec

def t1_path(p, needs):
    g = Gen(p, needs); e = g.e
    def PK(tt): return 2 * tt
    def Q2(k): return PK(56) + 2 * k if k < 14 else 236 + 2 * (k - 14)
    OB = 252
    op = OpEngine(g, PK, 140, 196, 212, [250, 251], OB, [253, 254], T1R, sLW, 0)
    AC, AF, BF = op.AC, op.AF, op.BF
    op.pkb = OPT["pkb"] & 1
    def dma_sub(u):
        a, bb = divmod(u, 3)
        srd = sKd if kv_kind(a) == "K" else sVd
        def f():
            kw = (OPT["kwa"] if u < OPT["kwu"] else OPT["kw"]) if st.get("mixed") else (OPT["kw1"] if u >= OPT["kw1s"] else 0)
            if kw:
                idx = [i for i, t in enumerate(g.vq) if t.startswith("U")]
                n = len(g.vq) - 1 - idx[-kw] if len(idx) >= kw else 999
                k = ("vm", f"kw{u}.{st.get('mixed')}")
                g.rec[k] = min(g.rec.get(k, 999), n)
                val = g.needs.get(k, n)
                if val != 999:
                    e(f"s_waitcnt vmcnt({val})")
                    del g.vq[:len(g.vq) - val if val < len(g.vq) else 0]
            e(f"s_add_u32 m0, s{sL1}, {KVB + (u % NS) * 4096 - bb * 128}")
            e(f"s_add_u32 s{sT1}, s{sKSO2}, {kv_tile(a) * TILE}")
            off = f"offset:{bb*128} " if bb else ""
            g.vm(f"U{u % 96}", f"buffer_load_dwordx4 v{PKV_}, s[{srd}:{srd+3}], s{sT1} offen {off}{OPT['kv']} lds")
        return f
    st = dict(pub=0, iss=0)
    def kv_tags(k):
        upto = XB_[k + 1] if k < NX - 1 else 384
        n = -(-(upto + LEAD) // 4) if upto < 384 else 96
        tags = [f"U{u}" for u in range(st["pub"], n)]
        st["pub"] = max(st["pub"], n)
        return tags
    def kv_issue(k):
        out = []
        while k in KVT and 4 * (st["iss"] - KL) + 4 <= XB_[k]:
            out.append(dma_sub(st["iss"])); st["iss"] += 1
        return out
    def touch_o(t):
        nsh = 16 if OPT["map"] == 0 else 8
        per = 245760 // (4 * nsh)
        e(f"""
s_and_b32 s{sT1}, s{sB}, {nsh-1}
s_lshl_b32 s{sT1}, s{sT1}, 2
s_add_u32 s{sT1}, s{sT1}, s{sW4}
s_mul_i32 s{sT1}, s{sT1}, {per}
s_sub_u32 s{sT2}, s{sSLOT}, 1
s_mul_i32 s{sT2}, s{sT2}, 245760
s_add_u32 s{sT1}, s{sT1}, s{sT2}
s_mov_b32 m0, {SPARE}
v_lshrrev_b32 v{t}, 4, v{OB}
v_min_u32 v{t}, {per//128-1}, v{t}
v_lshlrev_b32 v{t}, 7, v{t}
""")
        g.vm("pf", f"buffer_load_dword v{t}, s[{sOd}:{sOd+3}], s{sT1} offen {OPT['tf']} lds")
    NEXT = {26: 2, 27: 3, 28: 0, 29: 1}
    def tick(i):
        waits = ([f"O{i+1}"] if i < 29 else []) + kv_tags(i)
        op.flush_pq()
        if waits: g.wait("vm", f"o{i}", waits)
        if OPT["vcap"]: e(f"s_waitcnt vmcnt({OPT['vcap']})")
        e("s_barrier")
        io = []
        if not OPT["burst"]:
            if i == 26: io.append(lambda: e(f"s_add_u32 s{sOB}, s{sOB}, 245760"))
            io += op.dma(NEXT.get(i, i + 4))
        elif i % 2 == 1:
            if i == 27: io.append(lambda: e(f"s_add_u32 s{sOB}, s{sOB}, 245760"))
            io += op.dma(NEXT.get(i - 1, i + 3)) + op.dma(NEXT.get(i, i + 4))
        items = kv_issue(i) + io if OPT["kvfirst"] and i < 28 else io + kv_issue(i)
        if OPT["near"] and i == OPT["near"]: items.append(lambda: touch_o(AF(i + 1, 0) if False else 249))
        for f in items[:OPT["now0"]]: f()
        items = items[OPT["now0"]:]
        for j, f in enumerate(items): op.pq.append((op.clock + OPT["vpost"] + (j * OPT["span"]) // len(items), f))
    def q_write(reg):
        for rt in range(7):
            for k in range(3): e(f"ds_write_b64 v{AC(0)+k}, {v(reg(rt,k),2)} offset:{QO+rt*1024}")
        e("s_waitcnt lgkmcnt(0)")
    def q_addr():
        t = AC(1)
        e(f"v_lshrrev_b32 v{t}, 5, v{OB}")
        e(f"v_and_b32 v{t}, 8, v{t}")
        e(f"v_add_u32 v{t}, v{t}, v{OB}")
        for k in range(3):
            e(f"""
s_mul_i32 s{sT1}, s{sW4}, 3
s_add_u32 s{sT1}, s{sT1}, {k}
s_lshr_b32 s{sT2}, s{sT1}, 1
s_mul_i32 s{sT2}, s{sT2}, 7168
s_and_b32 s{sT1}, s{sT1}, 1
s_lshl_b32 s{sT1}, s{sT1}, 3
v_xor_b32 v{AC(0)+k}, s{sT1}, v{t}
v_add_u32 v{AC(0)+k}, s{sT2}, v{AC(0)+k}
""")

    e(f"""
s_mul_i32 s{sOB}, s{sW4}, {8*1280}
s_lshl_b32 s{sLW}, s{sW4}, 11
s_lshl_b32 s{sL1}, s{sW4}, 10
s_mov_b32 s{sSLOT}, 1
s_mov_b32 s{sRX}, 0x01000c0c
s_mov_b32 s{sRX+1}, 0x03020c0c
""")
    for u in range(NPRE):
        if not OPT["kv0"]: g.vq.append(f"U{u}")
        g.issued[f"U{u}"] = 1
    st.update(pub=0, iss=NPRE)
    if OPT["qp1"]: e(f"s_setprio {OPT['prio1']}")
    g.wait("vm", "i_t0", kv_tags(-1))
    e("s_barrier")
    stamp_slot(e)
    for u in range(NPRE, N0 - 96): dma_sub(u)()
    st["iss"] = N0 - 96
    e("s_barrier")
    for rt in range(7):
        for k in range(3): e(f"ds_write_b64 v{QW[k]}, {v(QAC(0,rt,k),2)} offset:{QO+rt*1024}")
    def setup():
        e("s_waitcnt lgkmcnt(0)")
        for k in range(21):
            for x in range(2): e(f"v_mov_b32 v{2*k+x}, v{QAC(1,k//3,k%3)+x}")
        for k in range(21):
            for x in range(2): e(f"v_mov_b32 v{Q2(k)+x}, v{2*k+x}")
    def setup0():
        e(f"v_mov_b32 v232, {SPARE + 1024 + 256}")
        e("v_mov_b32 v234, 0")
        e("v_mov_b32 v235, 0")
        e("ds_write_b64 v232, v[234:235]")
        e("ds_write_b64 v232, v[234:235] offset:8")
        e("s_waitcnt lgkmcnt(0)")
        op.addr_setup()
        setup()
    task = {0: setup0}
    if OPT["touch"]: task[4] = lambda: touch_o(AF(0, 0))
    for k in range(NX):
        w = kv_tags(k)
        if w: g.wait("vm", f"i{k}", w)
        e("s_barrier")
        for f in kv_issue(k): f()
        if k in task: task[k]()
        if k >= 26:
            for f in op.dma(NEXT[k]): f()
    for s in range(2, 5):
        if s != 2: g.mute += 1
        g.label("t1_slot")
        assert st["iss"] == N0
        st.update(pub=0, iss=N0 - 96, mixed=1)
        e(f"""
s_add_u32 s{sSLOT}, s{sSLOT}, 1
s_add_u32 s{sKSO2}, s{sKSO2}, 196608
s_cmp_eq_u32 s{sSLOT}, 2
s_cselect_b32 s{sSLO}, 0x0c0c0c0c, s{sRX}
s_cselect_b32 s{sSHI}, 0x0c0c0c0c, s{sRX+1}
""")
        g.wait("vm", "t0", kv_tags(-1))
        e("s_barrier")
        if not g.mute: stamp_slot(e)
        if OPT["touch"] and not OPT["near"]: touch_o(AF(0, 0))
        for k in range(14):
            for x in op.unpack_l(AC(k), PK(k)): e(x)
        g.wait("vm", "o_in", ["O0"])
        e("s_barrier")
        stamp_if(e, 12, OPT["ps"])
        op.first_reads(0)
        for i in range(30): op.step("m", i, 29, tick)
        stamp_if(e, 13, OPT["ps"])
        tick(29)
        op.finish()
        e(f"s_cmp_lg_u32 s{sSLOT}, 2")
        e("s_cbranch_scc1 t1_noq2")
        for k in range(3): e(f"v_mov_b32 v{BF(0)+k}, v{AC(0)+k}")
        e(f"v_mov_b32 v{BF(0)+3}, v{AC(1)}")
        q_addr()
        q_write(lambda rt, k: Q2(rt * 3 + k))
        for k in range(3): e(f"v_mov_b32 v{AC(0)+k}, v{BF(0)+k}")
        e(f"v_mov_b32 v{AC(1)}, v{BF(0)+3}")
        g.label("t1_noq2")
        for n in range(14):
            for x in op.pack_l(PK(56 + n), AC(n)): e(x)
        e(f"s_cmp_lg_u32 s{sSLOT}, 4")
        e("s_cbranch_scc1 t1_slot")
        if s != 2: g.mute -= 1
    g.label("t1_last")
    op.fl = OPT["wo5"]; op.nr = OPT["r5"]; op.early = OPT["early"] & 1; op.pkb = OPT["pkb"] >> 1
    R5 = op.nr
    e(f"""
s_mov_b32 s{sSLOT}, 5
s_lshl_b32 s{sT1}, s{sW4}, 10
s_add_u32 s{sT1}, s{sT1}, {KVB + 32768}
v_add_u32 v249, s{sT1}, v{OB}
""")
    def pk_write(ps):
        for rt in range(7): g.ld("pk", f"ds_write_b128 v249, {v(PK(ps*14+rt*2),4)} offset:{rt*4096}")
    for k in range(14):
        for x in op.unpack_l(AC(k), PK(k)): e(x)
    e("s_waitcnt vmcnt(0)"); g.vq[:] = []
    e("s_barrier")
    stamp_slot(e)
    for i in range(4, R5):
        for f in op.dma(i): f()
    pk_write(3)
    e("s_waitcnt lgkmcnt(0)"); g.lq[:] = []
    e("s_barrier")
    stamp_if(e, 12, OPT["ps"])
    g.issued.pop("O0")
    op.first_reads(0)
    def tick5(i):
        op.flush_pq()
        if i > OPT["lastb"]: return
        if i == 2: g.wait("lg", "pkw", ["pk"])
        g.wait("vm", f"f{i}", [f"O{x}" for x in range(i + 1, 18 if i == OPT["lastb"] else i + 2)] + (["st"] if i == OPT["lastb"] and not OPT["oldfin"] else []))
        e("s_barrier")
        if i + R5 < 18:
            for f in op.dma(i + R5): f()
    g.issued.pop("pk")
    for i in range(18):
        op.step("f", i, 17, tick5, store=[0], hooks={5: lambda: pk_write(4)} if i == 1 else None)
    op.finish()
    stamp_if(e, 13, OPT["ps"])
    g.label("t1_exit")
    return g.rec

sG, sMASK, sQ, sPEND, sDOK = 4, 5, 6, 7, 21
sD, sA, sOUT, sF = 8, 32, 36, 40
sOK = 20
sLD, sST = 12, 16
def fin_setup(e):
    e(f"""
s_and_b32 s{sG}, s2, 7
s_cmp_lt_u32 s{sG}, 4
s_cselect_b32 s{sG}, 0, 16
s_add_u32 s{sG}, s{sG}, s{sB}
s_mov_b32 s{sD}, s26
s_mov_b32 s{sD+1}, s27
s_mov_b32 s{sD+2}, 256
s_mov_b32 s{sD+3}, 0x20000
s_lshl_b32 s{sT2}, s{sG}, 10
s_add_u32 s{sT2}, s{sT2}, {FLAG0}
s_add_u32 s{sF}, s28, s{sT2}
s_addc_u32 s{sF+1}, s29, 0
s_mov_b32 s{sF+2}, 1024
s_mov_b32 s{sF+3}, 0x20000
s_mul_i32 s{sT1}, s{sG}, {8*PART_CU}
s_add_u32 s{sT1}, s{sT1}, {PART0}
s_add_u32 s{sA}, s28, s{sT1}
s_addc_u32 s{sA+1}, s29, 0
s_mov_b32 s{sA+2}, {8*PART_CU}
s_mov_b32 s{sA+3}, 0x20000
s_mul_i32 s{sT1}, s{sB}, {112*2560}
s_lshr_b32 s{sT2}, s{sG}, 4
s_mul_i32 s{sT2}, s{sT2}, 1280
s_add_u32 s{sT1}, s{sT1}, s{sT2}
s_add_u32 s{sOUT}, s24, s{sT1}
s_addc_u32 s{sOUT+1}, s25, 0
s_sub_u32 s{sOUT+2}, {112*2560}, s{sT2}
s_mov_b32 s{sOUT+3}, 0x20000
s_mov_b32 s{sPEND}, 0xff
s_mov_b32 s{sDOK}, 0
s_mov_b32 s{sCTR}, 0
s_mov_b32 s{sQ}, s{sQUAD}
s_lshl_b32 s{sG}, s{sG}, 2
v_mbcnt_lo_u32_b32 v216, -1, 0
v_mbcnt_hi_u32_b32 v216, -1, v216
v_lshlrev_b32 v217, 4, v216
v_and_b32 v218, 15, v216
v_lshrrev_b32 v219, 4, v216
v_mul_u32_u24 v220, 272, v218
v_lshl_add_u32 v220, v219, 3, v220
s_mul_i32 s{sT2}, s{sTEAM}, {4*4352}
s_add_u32 s{sT2}, s{sT2}, {KVB}
s_lshl_b32 s{sT1}, s{sW4}, 6
s_add_u32 s{sT1}, s{sT1}, s{sT2}
v_add_u32 v220, s{sT1}, v220
s_mul_i32 s{sT1}, s{sW4}, {4*272}
s_add_u32 s{sT1}, s{sT1}, s{sT2}
v_mul_u32_u24 v221, 272, v219
v_lshl_add_u32 v221, v218, 4, v221
v_add_u32 v221, s{sT1}, v221
v_mul_u32_u24 v219, 2560, v219
v_lshl_add_u32 v218, v218, 4, v219
v_and_b32 v222, 7, v216
v_lshlrev_b32 v222, 7, v222
v_mov_b32 v223, 0
""")
FINL = SPARE + 1024 + 256
def slice_setup(e):
    for k in range(4):
        e(f"""
s_add_u32 s{sT1}, s{sQ}, {8*k}
s_cmp_lt_u32 s{sT1}, 28
s_cselect_b32 s{sOK}, 1, 0
s_cmp_ge_u32 s{sT1}, 14
s_cselect_b32 s{sT2}, 7, 0
s_add_u32 s{sT1}, s{sT1}, s{sT2}
""")
        if k == 0:
            e(f"""
s_cmp_eq_u32 s{sTEAM}, 0
s_cbranch_scc1 k1_ss{slice_setup.n}
s_add_u32 s{sT1}, s{sQ}, 14
s_cmp_lt_u32 s{sQ}, 7
s_cselect_b32 s{sOK}, 1, 0
k1_ss{slice_setup.n}:
""")
            slice_setup.n += 1
        e(f"""
s_mul_i32 s{sT2}, s{sW4}, 35
s_add_u32 s{sT2}, s{sT2}, s{sT1}
s_lshl_b32 s{sT2}, s{sT2}, 10
s_cmp_lg_u32 s{sOK}, 0
s_cselect_b32 s{sLD+k}, s{sT2}, {8*PART_CU}
s_mul_i32 s{sT2}, s{sT1}, 37
s_lshr_b32 s{sT2}, s{sT2}, 8
s_mul_i32 s{sT3}, s{sT2}, 7
s_sub_u32 s{sT3}, s{sT1}, s{sT3}
s_lshl_b32 s{sT2}, s{sT2}, 8
s_mul_i32 s{sT3}, s{sT3}, {16*2560}
s_add_u32 s{sT2}, s{sT2}, s{sT3}
s_mul_i32 s{sT3}, s{sW4}, {4*2560}
s_add_u32 s{sT2}, s{sT2}, s{sT3}
s_cmp_lg_u32 s{sOK}, 0
s_cselect_b32 s{sST+k}, s{sT2}, 0x1000000
""")
slice_setup.n = 0
def fin_subs(e):
    e(f"""
k1_round:
s_cmp_lg_u32 s{sDOK}, 0
s_cbranch_scc1 k1_r1
buffer_load_dword v224, v223, s[{sD}:{sD+3}], s{sG} offen sc1
s_waitcnt vmcnt(0)
v_readfirstlane_b32 s{sT1}, v224
s_cmp_eq_u32 s{sT1}, 8
s_cselect_b32 s{sDOK}, 1, 0
s_cbranch_scc0 k1_rret
k1_r1:
buffer_load_dword v224, v222, s[{sF}:{sF+3}], 0 offen sc1
s_waitcnt vmcnt(0)
v_cmp_eq_u32 vcc, 1, v224
s_and_b32 s{sT3}, vcc_lo, s{sPEND}
k1_loads:
s_andn2_b32 s{sPEND}, s{sPEND}, s{sT3}
""")
    for q in range(8):
        e(f"s_bitcmp1_b32 s{sT3}, {q}")
        e(f"s_cbranch_scc0 k1_l{q}")
        for k in range(4):
            e(f"s_add_u32 s{sT1}, s{sLD+k}, {q*PART_CU}")
            e(f"buffer_load_dwordx4 {v(8+32*k+4*q,4)}, v217, s[{sA}:{sA+3}], s{sT1} offen {OPT['rd']}")
            if k == 0:
                e(f"s_cmp_lg_u32 s{sTEAM}, 0")
                e(f"s_cbranch_scc1 k1_l{q}")
        e(f"k1_l{q}:")
    e(f"""
k1_rret:
s_setpc_b64 s[{sRET}:{sRET+1}]
""")
def final_reduce(p):
    slice_setup.n = 0
    e = p
    e.label("k1_final")
    if OPT["two"]:
        if OPT["prof"]: e("s_waitcnt vmcnt(0)")
        stamp(e, 10); stamp(e, 11, real=True)
        dump_stamps(e, 28, 64 << 20, 8)
        return
    fin_setup(e); slice_setup(e)
    e(f"""
v_mov_b32 v225, 1
v_mov_b32 v226, {FINL}
s_lshl_b32 s{sT2}, s{sQUAD}, 7
s_cmp_lg_u32 s{sTEAM}, 0
s_cbranch_scc1 k1_f1
s_cmp_lg_u32 s{sWAVE}, 0
s_cbranch_scc1 k1_poll
s_mov_b64 exec, 1
buffer_store_dword v225, v223, s[{sF}:{sF+3}], s{sT2} offen sc1
s_mov_b64 exec, -1
s_branch k1_poll
k1_f1:
v_add_u32 v222, 4, v222
s_waitcnt vmcnt(0)
""")
    stamp(e, 9, real=bool(OPT["rt"]))
    e(f"""
s_mov_b64 exec, 1
ds_add_rtn_u32 v224, v226, v225 offset:8
s_waitcnt lgkmcnt(0)
v_readfirstlane_b32 s{sT1}, v224
s_cmp_lg_u32 s{sT1}, 3
s_cbranch_scc1 k1_f2
buffer_store_dword v225, v223, s[{sF}:{sF+3}], s{sT2} offen offset:4 sc1
buffer_atomic_add v225, v223, s[{sD}:{sD+3}], s{sG} offen offset:128 sc0 sc1
s_waitcnt vmcnt(0)
v_readfirstlane_b32 s{sT2}, v225
s_and_b32 s{sT3}, s{sT2}, 0xff
s_bfe_u32 s{sT2}, s{sT2}, 0x80008
s_cmp_eq_u32 s{sT3}, 7
s_cselect_b32 s{sT2}, s{sT2}, 0
v_mov_b32 v225, s{sT2}
ds_write_b32 v226, v225 offset:4
k1_f2:
s_mov_b64 exec, -1
k1_poll:
s_call_b64 s[{sRET}:{sRET+1}], k1_round
s_add_u32 s{sCTR}, s{sCTR}, 1
s_cmp_eq_u32 s{sPEND}, 0
s_cbranch_scc1 k1_pd
s_cmp_lt_u32 s{sCTR}, {OPT['spin']}
s_cbranch_scc1 k1_poll
k1_pd:
s_mov_b32 s{sOK}, 0
s_cmp_lg_u32 s{sPEND}, 0
s_cbranch_scc1 k1_np
s_call_b64 s[{sRET}:{sRET+1}], k1_sums
s_mov_b32 s{sOK}, 1
k1_np:
s_waitcnt lgkmcnt(0)
s_barrier
s_cmp_lg_u32 s{sWAVE}, 4
s_cbranch_scc1 k1_fw
s_lshl_b32 s{sMASK}, 1, s{sQUAD}
s_mov_b64 exec, 1
s_cmp_eq_u32 s{sPEND}, 0
s_cbranch_scc1 k1_go
s_lshl_b32 s{sT2}, s{sMASK}, 8
v_mov_b32 v225, s{sT2}
buffer_atomic_or v225, v223, s[{sD}:{sD+3}], s{sG} offen offset:128 sc0 sc1
s_waitcnt vmcnt(0)
v_readfirstlane_b32 s{sT2}, v225
s_and_b32 s{sT2}, s{sT2}, 0xff
s_cmp_eq_u32 s{sT2}, 8
s_cselect_b32 s{sMASK}, s{sMASK}, 0
k1_go:
v_mov_b32 v225, s{sMASK}
ds_write_b32 v226, v225
s_waitcnt lgkmcnt(0)
s_mov_b64 exec, -1
k1_fw:
""")
    def sums(k):
        for i in range(4):
            r = 8 + 32 * k + i
            e(f"v_lshlrev_b32 v{140+2*i}, 16, v{r}")
            e(f"v_and_b32 v{141+2*i}, 0xffff0000, v{r}")
        for q in range(1, 8):
            for i in range(4):
                r = 8 + 32 * k + 4 * q + i
                e(f"v_lshlrev_b32 v{148+2*(i&1)}, 16, v{r}")
                e(f"v_and_b32 v{149+2*(i&1)}, 0xffff0000, v{r}")
                e(f"v_pk_add_f32 {v(140+2*i,2)}, {v(140+2*i,2)}, {v(148+2*(i&1),2)}")
        for i in range(4): e(f"v_cvt_pk_bf16_f32 v{152+4*k+i}, v{140+2*i}, v{141+2*i}")
        e(f"ds_write_b64 v220, {v(152+4*k,2)} offset:{k*4352}")
        e(f"ds_write_b64 v220, {v(154+4*k,2)} offset:{k*4352+32}")
    e(f"""
s_barrier
ds_read_b64 v[224:225], v226
s_waitcnt lgkmcnt(0)
v_or_b32 v224, v224, v225
v_readfirstlane_b32 s{sMASK}, v224
""")
    stamp(e, 8, real=bool(OPT["rt"]))
    e(f"""
s_bitcmp1_b32 s{sMASK}, s{sQ}
s_cbranch_scc1 k1_own0
k1_slice:
s_cmp_eq_u32 s{sMASK}, 0
s_cbranch_scc1 k1_done
s_ff1_i32_b32 s{sQ}, s{sMASK}
s_mov_b32 s{sPEND}, 0xff
s_waitcnt vmcnt(0)
""")
    slice_setup(e)
    e(f"""
s_mov_b32 s{sOK}, 0
k1_own0:
s_bitset0_b32 s{sMASK}, s{sQ}
s_cmp_lg_u32 s{sOK}, 0
s_cbranch_scc1 k1_s0
s_mov_b32 s{sT3}, s{sPEND}
s_call_b64 s[{sRET}:{sRET+1}], k1_loads
s_call_b64 s[{sRET}:{sRET+1}], k1_sums
k1_s0:
s_waitcnt lgkmcnt(0)
s_barrier
""")
    if OPT["fs"]: stamp(e, 15, real=True)
    for k in range(4): e(f"ds_read_b128 {v(168+4*k,4)}, v221 offset:{k*4352}")
    for k in range(4):
        e(f"s_waitcnt lgkmcnt({3-k})")
        e(f"buffer_store_dwordx4 {v(168+4*k,4)}, v218, s[{sOUT}:{sOUT+3}], s{sST+k} offen {OPT['of']}")
        if k == 0:
            e(f"s_cmp_lg_u32 s{sTEAM}, 0")
            e("s_cbranch_scc1 k1_s2")
    e(f"""
k1_s2:
s_cmp_eq_u32 s{sMASK}, 0
s_cbranch_scc1 k1_done
s_waitcnt lgkmcnt(0)
s_barrier
s_branch k1_slice
""")
    e("k1_sums:")
    e("s_waitcnt vmcnt(0)")
    if OPT["fs"]: stamp(e, 14, real=True)
    sums(0)
    e(f"s_cmp_lg_u32 s{sTEAM}, 0")
    e("s_cbranch_scc1 k1_s1")
    for k in range(1, 4): sums(k)
    e("k1_s1:")
    e(f"s_setpc_b64 s[{sRET}:{sRET+1}]")
    fin_subs(e)
    e("k1_done:")
    if OPT["prof"]: e("s_waitcnt vmcnt(0)")
    stamp(e, 10); stamp(e, 11, real=True)
    dump_stamps(e, 28, 64 << 20, 8)

def final_reduce_old(p):
    e = p
    sG, sMASK, sQ, sBL = 4, 5, 6, 7
    sD, sA, sOUT = 8, 32, 36
    e.label("k1_final")
    if OPT["two"]:
        if OPT["prof"]: e("s_waitcnt vmcnt(0)")
        stamp(e, 10); stamp(e, 11, real=True)
        dump_stamps(e, 28, 64 << 20, 8)
        return
    e(f"""
s_waitcnt vmcnt(0)
s_barrier
""")
    stamp(e, 9, real=bool(OPT["rt"]))
    e(f"""
s_and_b32 s{sG}, s2, 7
s_cmp_lt_u32 s{sG}, 4
s_cselect_b32 s{sG}, 0, 16
s_add_u32 s{sG}, s{sG}, s{sB}
v_mbcnt_lo_u32_b32 v2, -1, 0
v_mbcnt_hi_u32_b32 v2, -1, v2
s_cmp_gt_u32 s{sWAVE}, 1
s_cbranch_scc1 k1_fw
s_mov_b32 s{sD}, s26
s_mov_b32 s{sD+1}, s27
s_mov_b32 s{sD+2}, 256
s_mov_b32 s{sD+3}, 0x20000
s_lshl_b32 s{sT1}, s{sG}, 2
v_mov_b32 v3, 0
v_mov_b32 v4, 1
s_cmp_eq_u32 s{sWAVE}, 0
s_cbranch_scc1 k1_w0
s_mov_b64 exec, 1
buffer_atomic_add v4, v3, s[{sD}:{sD+3}], s{sT1} offen offset:128 sc0 sc1
s_waitcnt vmcnt(0)
v_readfirstlane_b32 s{sT2}, v4
s_and_b32 s{sT3}, s{sT2}, 0xff
s_bfe_u32 s{sT2}, s{sT2}, 0x80008
s_cmp_eq_u32 s{sT3}, 7
s_cselect_b32 s{sT2}, s{sT2}, 0
v_mov_b32 v4, s{sT2}
ds_write_b32 v3, v4 offset:4
s_waitcnt lgkmcnt(0)
s_mov_b64 exec, -1
s_branch k1_fw
k1_w0:
s_lshl_b32 s{sMASK}, 1, s{sQUAD}
s_lshl_b32 s{sT2}, s{sG}, 10
s_add_u32 s{sT2}, s{sT2}, {FLAG0}
s_add_u32 s{sA}, s28, s{sT2}
s_addc_u32 s{sA+1}, s29, 0
s_mov_b32 s{sA+2}, 1024
s_mov_b32 s{sA+3}, 0x20000
s_lshl_b32 s{sT2}, s{sQUAD}, 7
s_mov_b64 exec, 1
buffer_store_dword v4, v3, s[{sA}:{sA+3}], s{sT2} offen sc1
s_mov_b64 exec, 0xff
v_lshlrev_b32 v5, 7, v2
s_mov_b32 s{sCTR}, 0
k1_poll:
buffer_load_dword v6, v3, s[{sD}:{sD+3}], s{sT1} offen sc1
buffer_load_dword v4, v5, s[{sA}:{sA+3}], 0 offen sc1
s_waitcnt vmcnt(1)
v_cmp_ne_u32 vcc, 8, v6
s_cbranch_vccnz k1_again
k1_poll2:
s_waitcnt vmcnt(0)
v_cmp_ne_u32 vcc, 1, v4
s_cbranch_vccz k1_go
s_add_u32 s{sCTR}, s{sCTR}, 1
s_cmp_lt_u32 s{sCTR}, {OPT['spin']}
s_cbranch_scc0 k1_late
buffer_load_dword v4, v5, s[{sA}:{sA+3}], 0 offen sc1
s_branch k1_poll2
k1_again:
s_waitcnt vmcnt(0)
s_add_u32 s{sCTR}, s{sCTR}, 1
s_cmp_lt_u32 s{sCTR}, {OPT['spin']}
s_cbranch_scc1 k1_poll
k1_late:
s_mov_b64 exec, 1
s_lshl_b32 s{sT2}, s{sMASK}, 8
v_mov_b32 v4, s{sT2}
buffer_atomic_or v4, v3, s[{sD}:{sD+3}], s{sT1} offen offset:128 sc0 sc1
s_waitcnt vmcnt(0)
v_readfirstlane_b32 s{sT2}, v4
s_and_b32 s{sT2}, s{sT2}, 0xff
s_cmp_eq_u32 s{sT2}, 8
s_cselect_b32 s{sMASK}, s{sMASK}, 0
k1_go:
s_mov_b64 exec, 1
v_mov_b32 v4, s{sMASK}
ds_write_b32 v3, v4
s_waitcnt lgkmcnt(0)
s_mov_b64 exec, -1
k1_fw:
s_mul_i32 s{sT1}, s{sG}, {8*PART_CU}
s_add_u32 s{sT1}, s{sT1}, {PART0}
s_add_u32 s{sA}, s28, s{sT1}
s_addc_u32 s{sA+1}, s29, 0
s_mov_b32 s{sA+2}, {8*PART_CU}
s_mov_b32 s{sA+3}, 0x20000
s_mul_i32 s{sT1}, s{sB}, {112*2560}
s_lshr_b32 s{sT2}, s{sG}, 4
s_mul_i32 s{sT2}, s{sT2}, 1280
s_add_u32 s{sT1}, s{sT1}, s{sT2}
s_add_u32 s{sOUT}, s24, s{sT1}
s_addc_u32 s{sOUT+1}, s25, 0
s_sub_u32 s{sOUT+2}, {112*2560}, s{sT2}
s_mov_b32 s{sOUT+3}, 0x20000
v_lshlrev_b32 v3, 4, v2
v_and_b32 v4, 15, v2
v_lshrrev_b32 v5, 4, v2
v_mul_u32_u24 v6, 272, v4
v_lshl_add_u32 v6, v5, 3, v6
s_mul_i32 s{sT2}, s{sTEAM}, {3*4352}
s_add_u32 s{sT2}, s{sT2}, 2048
s_lshl_b32 s{sT1}, s{sW4}, 6
s_add_u32 s{sT1}, s{sT1}, s{sT2}
v_add_u32 v6, s{sT1}, v6
s_mul_i32 s{sT1}, s{sW4}, {4*272}
s_add_u32 s{sT1}, s{sT1}, s{sT2}
v_mul_u32_u24 v7, 272, v5
v_lshl_add_u32 v7, v4, 4, v7
v_add_u32 v7, s{sT1}, v7
v_mul_u32_u24 v5, 2560, v5
v_lshl_add_u32 v4, v4, 4, v5
v_mov_b32 v5, 0
s_barrier
ds_read_b64 v[8:9], v5
s_waitcnt lgkmcnt(0)
v_or_b32 v5, v8, v9
v_readfirstlane_b32 s{sMASK}, v5
""")
    stamp(e, 8, real=bool(OPT["rt"]))
    e(f"""
k1_slice:
s_cmp_eq_u32 s{sMASK}, 0
s_cbranch_scc1 k1_done
s_ff1_i32_b32 s{sQ}, s{sMASK}
s_bitset0_b32 s{sMASK}, s{sQ}
s_lshl_b32 s{sBL}, s{sTEAM}, 3
s_add_u32 s{sBL}, s{sBL}, s{sQ}
""")
    for k in range(3):
        e(f"""
s_add_u32 s{sT1}, s{sBL}, {16*k}
s_mul_i32 s{sT2}, s{sW4}, 35
s_add_u32 s{sT2}, s{sT2}, s{sT1}
s_lshl_b32 s{sT2}, s{sT2}, 10
s_cmp_lt_u32 s{sT1}, 35
s_cselect_b32 s{sT2}, s{sT2}, {8*PART_CU}
""")
        for q in range(8):
            r = 8 + 32 * k + 4 * q
            e(f"buffer_load_dwordx4 {v(r,4)}, v3, s[{sA}:{sA+3}], s{sT2} offen {OPT['rd']}")
            if q < 7: e(f"s_add_u32 s{sT2}, s{sT2}, {PART_CU}")
        e(f"""
s_mul_i32 s{sT2}, s{sT1}, 37
s_lshr_b32 s{sT2}, s{sT2}, 8
s_mul_i32 s{sT3}, s{sT2}, 7
s_sub_u32 s{sT3}, s{sT1}, s{sT3}
s_lshl_b32 s{sT2}, s{sT2}, 8
s_mul_i32 s{sT3}, s{sT3}, {16*2560}
s_add_u32 s{sT2}, s{sT2}, s{sT3}
s_mul_i32 s{sT3}, s{sW4}, {4*2560}
s_add_u32 s{sT2}, s{sT2}, s{sT3}
s_cmp_lt_u32 s{sT1}, 35
s_cselect_b32 s{12+k}, s{sT2}, 0x1000000
""")
    for k in range(3):
        for q in range(8):
            e(f"s_waitcnt vmcnt({23-8*k-q})")
            if OPT["fs"] and (k, q) in ((0, 0), (0, 7), (2, 7)): stamp(e, {(0, 0): 12, (0, 7): 13, (2, 7): 14}[(k, q)], real=True)
            for i in range(4):
                r = 8 + 32 * k + 4 * q + i
                if q == 0:
                    e(f"v_lshlrev_b32 v{104+2*i}, 16, v{r}")
                    e(f"v_and_b32 v{105+2*i}, 0xffff0000, v{r}")
                else:
                    e(f"v_lshlrev_b32 v112, 16, v{r}")
                    e(f"v_and_b32 v113, 0xffff0000, v{r}")
                    e(f"v_add_f32 v{104+2*i}, v{104+2*i}, v112")
                    e(f"v_add_f32 v{105+2*i}, v{105+2*i}, v113")
        for i in range(4): e(f"v_cvt_pk_bf16_f32 v{116+4*k+i}, v{104+2*i}, v{105+2*i}")
        e(f"ds_write_b64 v6, {v(116+4*k,2)} offset:{k*4352}")
        e(f"ds_write_b64 v6, {v(118+4*k,2)} offset:{k*4352+32}")
    e("s_waitcnt lgkmcnt(0)")
    e("s_barrier")
    if OPT["fs"]: stamp(e, 15, real=True)
    for k in range(3): e(f"ds_read_b128 {v(128+4*k,4)}, v7 offset:{k*4352}")
    for k in range(3):
        e(f"s_waitcnt lgkmcnt({2-k})")
        e(f"buffer_store_dwordx4 {v(128+4*k,4)}, v4, s[{sOUT}:{sOUT+3}], s{12+k} offen {OPT['of']}")
    e("""
s_barrier
s_branch k1_slice
k1_done:
""")
    if OPT["prof"]: e("s_waitcnt vmcnt(0)")
    stamp(e, 10); stamp(e, 11, real=True)
    dump_stamps(e, 28, 64 << 20, 8)

def build(needs):
    p = Prog()
    p(f"""
.globl {NAME}_kernel
.p2align 8
.type {NAME}_kernel,@function
{NAME}_kernel:
s_cmp_ge_u32 s2, 256
s_cbranch_scc1 k1_end
s_load_dwordx16 s[4:19], s[0:1], 0
s_load_dwordx8 s[20:27], s[0:1], 64
s_load_dwordx2 s[28:29], s[0:1], 96
v_lshrrev_b32 v1, 6, v0
v_and_b32 v2, 63, v0
v_readfirstlane_b32 s{sWAVE}, v1
s_and_b32 s{sT1}, s2, 7
s_lshr_b32 s{sT2}, s2, 3
""")
    if OPT["map"] == 0:
        p(f"""
s_and_b32 s{sQUAD}, s{sT1}, 3
s_lshl_b32 s{sQUAD}, s{sQUAD}, 1
s_and_b32 s{sB}, s{sT2}, 1
s_add_u32 s{sQUAD}, s{sQUAD}, s{sB}
s_lshr_b32 s{sB}, s{sT2}, 1
""")
    else:
        p(f"""
s_and_b32 s{sQUAD}, s{sT1}, 1
s_lshl_b32 s{sQUAD}, s{sQUAD}, 2
s_and_b32 s{sB}, s{sT2}, 3
s_add_u32 s{sQUAD}, s{sQUAD}, s{sB}
s_and_b32 s{sB}, s{sT1}, 2
s_lshl_b32 s{sB}, s{sB}, 2
s_lshr_b32 s{sT2}, s{sT2}, 2
s_add_u32 s{sB}, s{sB}, s{sT2}
""")
    p(f"""
s_and_b32 s{sW4}, s{sWAVE}, 3
s_lshr_b32 s{sTEAM}, s{sWAVE}, 2
s_mul_i32 s{sLW}, s{sW4}, 3072
s_mov_b32 s{sKd+2}, {0 if OPT['nokv'] else 786432}
s_mov_b32 s{sKd+3}, 0x20000
s_mov_b32 s{sVd+2}, {0 if OPT['nokv'] else 786432}
s_mov_b32 s{sVd+3}, 0x20000
s_mov_b32 s{sWd+3}, 0x20000
s_mov_b32 s{sOd+2}, {0 if OPT['now'] else 983040}
s_mov_b32 s{sOd+3}, 0x20000
s_mov_b32 s{sXd+2}, {0 if OPT['nox'] else 143360}
s_mov_b32 s{sXd+3}, 0x20000
s_mov_b32 s{sPd+2}, {35840+QO}
s_mov_b32 s{sPd+3}, 0x20000
s_waitcnt lgkmcnt(0)
s_cmp_lt_u32 s{sT1}, 4
s_cselect_b64 s[4:5], s[4:5], s[14:15]
s_cselect_b64 s[6:7], s[6:7], s[16:17]
s_cselect_b64 s[8:9], s[8:9], s[18:19]
s_cselect_b64 s[10:11], s[10:11], s[20:21]
s_cselect_b64 s[12:13], s[12:13], s[22:23]
s_cselect_b32 s{sT3}, 0, 16
s_mul_i32 s{sT2}, s{sB}, 143360
s_add_u32 s{sXd}, s4, s{sT2}
s_addc_u32 s{sXd+1}, s5, 0
s_mul_i32 s{sT2}, s{sQUAD}, 1536
s_add_u32 s{sWd}, s10, s{sT2}
s_addc_u32 s{sWd+1}, s11, 0
s_sub_u32 s{sWd+2}, 7864320, s{sT2}
{'s_mov_b32 s%d, 0' % (sWd+2) if OPT['now'] else ''}
s_lshl_b32 s{sT1}, s{sB}, 3
s_add_u32 s{sT1}, s{sT1}, s{sQUAD}
s_mul_i32 s{sT2}, s{sT1}, 786432
s_add_u32 s{sKd}, s6, s{sT2}
s_addc_u32 s{sKd+1}, s7, 0
s_add_u32 s{sVd}, s8, s{sT2}
s_addc_u32 s{sVd+1}, s9, 0
s_mul_i32 s{sT2}, s{sQUAD}, 983040
s_add_u32 s{sOd}, s12, s{sT2}
s_addc_u32 s{sOd+1}, s13, 0
s_lshl_b32 s{sT3}, s{sT3}, 3
s_add_u32 s{sT1}, s{sT1}, s{sT3}
s_mul_i32 s{sT1}, s{sT1}, {PART_CU}
s_mul_i32 s{sT2}, s{sW4}, 35840
s_add_u32 s{sT1}, s{sT1}, s{sT2}
s_add_u32 s{sT1}, s{sT1}, {PART0-QO}
s_add_u32 s{sPd}, s28, s{sT1}
s_addc_u32 s{sPd+1}, s29, 0
""")
    stamp(p, 0); stamp(p, 1, real=True)
    p(f"""
s_cmp_lg_u32 s{sWAVE}, 0
s_cbranch_scc1 k1_noclr
s_and_b32 s{sT1}, s2, 7
s_cmp_lt_u32 s{sT1}, 4
s_cselect_b32 s{sT1}, 0, 16
s_add_u32 s{sGRP}, s{sT1}, s{sB}
s_lshl_b32 s{sT1}, s{sGRP}, 3
s_add_u32 s{sT1}, s{sT1}, s{sQUAD}
s_lshl_b32 s{sT1}, s{sT1}, 7
s_add_u32 s{sT1}, s{sT1}, {FLAG0}
s_add_u32 s4, s28, s{sT1}
s_addc_u32 s5, s29, 0
s_mov_b32 s6, 128
s_mov_b32 s7, 0x20000
v_mov_b32 v2, 0
v_mov_b32 v3, 0
s_mov_b64 exec, 1
buffer_store_dwordx2 v[2:3], v2, s[4:7], 0 offen sc1
s_mov_b64 exec, -1
k1_noclr:
""")
    if OPT["cpf"]:
        p(f"""
s_cmp_lg_u32 s{sWAVE}, 7
s_cbranch_scc1 k1_nocpf
s_getpc_b64 s[4:5]
s_mov_b32 s6, k1_end-k1_nocpf
s_mov_b32 s7, 0x20000
s_lshr_b32 s{sT1}, s2, 3
s_and_b32 s{sT1}, s{sT1}, 31
s_lshl_b32 s{sT1}, s{sT1}, 7
v_and_b32 v1, 31, v0
v_lshlrev_b32 v1, 12, v1
buffer_load_dword v247, v1, s[4:7], s{sT1} offen
k1_nocpf:
""")
    if OPT["tlb"]:
        p(f"""
v_and_b32 v1, 3, v0
v_lshlrev_b32 v1, 18, v1
v_min_u32 v1, {786432-128}, v1
s_cmp_lg_u32 s{sWAVE}, 1
s_cbranch_scc1 k1_t1a
buffer_load_dword v254, v1, s[{sKd}:{sKd+3}], 0 offen nt
k1_t1a:
s_cmp_lg_u32 s{sWAVE}, 2
s_cbranch_scc1 k1_t1b
buffer_load_dword v254, v1, s[{sVd}:{sVd+3}], 0 offen nt
k1_t1b:
s_cmp_lg_u32 s{sWAVE}, 3
s_cbranch_scc1 k1_t1c
buffer_load_dword v254, v1, s[{sOd}:{sOd+3}], 0 offen nt
k1_t1c:
s_cmp_lg_u32 s{sWAVE}, 4
s_cbranch_scc1 k1_t1d
s_and_b32 s{sT1}, s2, 7
s_cmp_lt_u32 s{sT1}, 4
s_cselect_b32 s{sT1}, 0, 16
s_add_u32 s{sT1}, s{sT1}, s{sB}
s_mul_i32 s{sT1}, s{sT1}, {8*PART_CU}
s_add_u32 s{sT1}, s{sT1}, {PART0}
s_add_u32 s4, s28, s{sT1}
s_addc_u32 s5, s29, 0
s_mov_b32 s6, {8*PART_CU}
s_mov_b32 s7, 0x20000
v_and_b32 v1, 7, v0
v_mul_u32_u24 v1, {PART_CU}, v1
buffer_load_dword v254, v1, s[4:7], 0 offen nt sc1
k1_t1d:
s_cmp_lg_u32 s{sWAVE}, 5
s_cbranch_scc1 k1_t1e
s_mul_i32 s{sT1}, s{sB}, {112*2560}
s_add_u32 s4, s24, s{sT1}
s_addc_u32 s5, s25, 0
s_mov_b32 s6, {112*2560}
s_mov_b32 s7, 0x20000
v_and_b32 v1, 1, v0
v_mul_u32_u24 v1, {112*2560-128}, v1
buffer_load_dword v254, v1, s[4:7], 0 offen nt sc1
k1_t1e:
""")
    rec = {}
    rec["qp"] = qp_phase(p, needs.get("qp", {}))
    p(f"""
s_cmp_ge_u32 s{sWAVE}, 4
s_cbranch_scc1 k1_t1
""")
    if OPT["prio0"]: p(f"s_setprio {OPT['prio0']}")
    p(f"""
s_cmp_eq_u32 s{sWAVE}, 3
s_cbranch_scc1 k1_light
""")
    rec["h"] = t0_path(p, needs.get("h", {}), 2, "h")
    p.label("k1_light")
    rec["l"] = t0_path(p, needs.get("l", {}), 1, "l")
    rec["f"] = t0_final(p, needs.get("f", {}))
    p.label("k1_t1")
    if OPT["not1"]: p("s_endpgm")
    if OPT["prio1"]: p(f"s_setprio {OPT['prio1']}")
    rec["t1"] = t1_path(p, needs.get("t1", {}))
    (final_reduce_old if OPT['oldfin'] else final_reduce)(p)
    p("""
k1_end:
s_endpgm
""")
    return p, rec

def reduce_kernel():
    p = Prog()
    p(f"""
.globl reduce_kernel
.p2align 8
.type reduce_kernel,@function
reduce_kernel:
s_cmp_ge_u32 s2, 1120
s_cbranch_scc1 k2_end
s_load_dwordx2 s[8:9], s[0:1], 80
s_load_dwordx2 s[10:11], s[0:1], 96
v_lshrrev_b32 v1, 6, v0
v_and_b32 v2, 63, v0
v_readfirstlane_b32 s3, v1
s_mul_i32 s5, s2, 1873
s_lshr_b32 s5, s5, 16
s_mul_i32 s6, s5, 35
s_sub_u32 s22, s2, s6
s_mul_i32 s6, s3, 35
s_add_u32 s6, s6, s22
s_mul_i32 s7, s5, {8*PART_CU}
s_add_u32 s7, s7, {PART0}
s_lshl_b32 s20, s6, 10
v_lshlrev_b32 v3, 4, v2
s_mov_b32 s14, {8*PART_CU}
s_mov_b32 s15, 0x20000
s_waitcnt lgkmcnt(0)
s_add_u32 s12, s10, s7
s_addc_u32 s13, s11, 0
""")
    for q in range(8):
        p(f"buffer_load_dwordx4 v[{8+4*q}:{11+4*q}], v3, s[12:15], s20 offen {OPT['rd']}")
        if q < 7: p(f"s_add_u32 s20, s20, {PART_CU}")
    p(f"""
s_and_b32 s23, s5, 15
s_mul_i32 s23, s23, {112*2560}
s_lshr_b32 s24, s5, 4
s_mul_i32 s24, s24, 1280
s_add_u32 s23, s23, s24
s_mov_b32 s16, s8
s_mov_b32 s17, s9
s_mov_b32 s18, {16*112*2560}
s_mov_b32 s19, 0x20000
s_mul_i32 s26, s22, 37
s_lshr_b32 s26, s26, 8
s_mul_i32 s27, s26, 7
s_sub_u32 s27, s22, s27
s_lshl_b32 s30, s26, 8
s_mul_i32 s28, s27, {16*2560}
s_add_u32 s30, s30, s28
s_mul_i32 s28, s3, {4*2560}
s_add_u32 s30, s30, s28
s_add_u32 s32, s30, s23
v_and_b32 v4, 15, v2
v_lshrrev_b32 v5, 4, v2
v_mul_u32_u24 v6, 272, v4
v_lshl_add_u32 v6, v5, 3, v6
s_lshl_b32 s28, s3, 6
v_add_u32 v6, s28, v6
s_mul_i32 s28, s3, {4*272}
v_mul_u32_u24 v7, 272, v5
v_lshl_add_u32 v7, v4, 4, v7
v_add_u32 v7, s28, v7
v_mul_u32_u24 v5, 2560, v5
v_lshl_add_u32 v4, v4, 4, v5
""")
    for q in range(8):
        p(f"s_waitcnt vmcnt({7-q})")
        for i in range(4):
            r = 8 + 4 * q + i
            if q == 0:
                p(f"v_lshlrev_b32 v{40+2*i}, 16, v{r}")
                p(f"v_and_b32 v{41+2*i}, 0xffff0000, v{r}")
            else:
                p(f"v_lshlrev_b32 v48, 16, v{r}")
                p(f"v_and_b32 v49, 0xffff0000, v{r}")
                p(f"v_add_f32 v{40+2*i}, v{40+2*i}, v48")
                p(f"v_add_f32 v{41+2*i}, v{41+2*i}, v49")
    for i in range(4): p(f"v_cvt_pk_bf16_f32 v{52+i}, v{40+2*i}, v{41+2*i}")
    p(f"""
ds_write_b64 v6, v[52:53]
ds_write_b64 v6, v[54:55] offset:32
s_waitcnt lgkmcnt(0)
s_barrier
ds_read_b128 v[52:55], v7
s_waitcnt lgkmcnt(0)
buffer_store_dwordx4 v[52:55], v4, s[16:19], s32 offen {OPT['of']}
k2_end:
s_endpgm
""")
    return p

def desc(name, vg):
    return f""".amdhsa_kernel {name}
  .amdhsa_next_free_vgpr {vg}
  .amdhsa_next_free_sgpr 102
  .amdhsa_accum_offset {vg}
  .amdhsa_group_segment_fixed_size 0
  .amdhsa_kernarg_size 104
  .amdhsa_user_sgpr_count 2
  .amdhsa_user_sgpr_kernarg_segment_ptr 1
  .amdhsa_system_sgpr_workgroup_id_x 1
.end_amdhsa_kernel
"""

def main():
    for t in range(1120): assert (t * 1873) >> 16 == t // 35
    for t in range(140): assert (t * 235) >> 13 == t // 35
    for t in range(35): assert (t * 37) >> 8 == t // 7
    _, rec = build({})
    for it in range(4):
        a, rec2 = build(rec)
        if rec2 == rec: break
        rec = rec2
    else: raise SystemExit("no fixpoint")
    b = reduce_kernel()
    if OPT["novm"]: a.L[:] = [l for l in a.L if not l.startswith("buffer_load")]
    if OPT["nobar"]: a.L[:] = [l for l in a.L if not l.startswith("s_barrier")]
    if OPT["nolg"]:
        out_ = []
        for i_, l in enumerate(a.L):
            if l.startswith("s_waitcnt lgkmcnt") and not a.L[i_-1].startswith(("s_mem", "s_load")) and i_ > 60: continue
            out_.append(l)
        a.L[:] = out_
    if OPT["nord"]: a.L[:] = [l for l in a.L if not l.startswith("ds_read")]
    if OPT["noexp"]: a.L[:] = [l.replace("v_exp_f32", "v_mov_b32") if l.startswith("v_exp_f32") and "-v" not in l else l for l in a.L]
    if OPT["nosm"]: a.L[:] = [l for l in a.L if not l.startswith(("v_exp_f32", "v_cvt_pk"))]
    if OPT["nochk"]: a.L[:] = [l for l in a.L if not l.startswith(("v_or3", "v_or_b32", "v_cmp_ne", "s_cbranch_vccz", "v_and_b32 v252"))]
    if OPT["prof"] == 2:
        out_ = []; L_ = a.L; inrole = False; i_ = 0
        while i_ < len(L_):
            l = L_[i_]
            if l.startswith(("t0_unit", "t1_slot")): inrole = True
            if l.startswith(("t0_exit", "t1_exit")): inrole = False
            if inrole and l == "s_barrier":
                j = len(out_)
                while j > 0 and (out_[j-1].startswith(("s_waitcnt vmcnt", "s_cmp_eq_u32 s55, 5", "s_cbranch_scc1 t1_wa")) or out_[j-1].startswith("t1_wa")): j -= 1
                blk = out_[j:]; del out_[j:]
                out_ += ["s_memtime s[4:5]"] + blk + ["s_memtime s[6:7]", "s_barrier", "s_memtime s[8:9]", "s_waitcnt lgkmcnt(0)",
                         "s_sub_u32 s4, s6, s4", "s_add_u32 s94, s94, s4", "s_sub_u32 s6, s8, s6", "s_add_u32 s95, s95, s6"]
            elif inrole and l.startswith("buffer_load") and l.endswith("lds"):
                out_ += ["s_memtime s[4:5]", l, "s_memtime s[6:7]", "s_waitcnt lgkmcnt(0)", "s_sub_u32 s4, s6, s4", "s_add_u32 s89, s89, s4"] if OPT["pv"] else [l]
            elif l.startswith(("k1_light:", "k1_t1:")) or l.startswith("s_cbranch_scc1 k1_light"):
                out_ += [l, "s_mov_b32 s94, 0", "s_mov_b32 s95, 0", "s_mov_b32 s89, 0"]
            else: out_.append(l)
            i_ += 1
        a.L[:] = out_
    if OPT["prof"] == 4:
        out_ = []; inrole = False; idx = 0
        L_ = [l for l in a.L if not (l.startswith(("s_cselect_b32 s8", "s_cselect_b32 s9")) or (l.startswith(("s_mov_b32 s8", "s_mov_b32 s9")) and "s100" in l))]
        def st_(k):
            return ["s_memtime s[100:101]", "s_waitcnt lgkmcnt(0)", f"s_cmp_eq_u32 s{sSLOT}, {OPT['ps']}", f"s_cselect_b32 s{80+k}, s100, s{80+k}"] if 0 <= k < 16 else []
        for i_, l in enumerate(L_):
            if l.startswith(("t0_unit", "t1_slot")): inrole = True; idx = 0
            if l.startswith(("t0_exit", "t1_last")): inrole = False
            k = (idx - OPT["pb"]) * 4
            if inrole and l == "s_barrier":
                x = out_.pop() if out_[-1].startswith("s_waitcnt vmcnt") else None
                out_ += st_(k - 2) + ([x] if x else []) + st_(k - 1) + [l] + st_(k); idx += 1
            elif inrole and l.startswith("buffer_load") and l.endswith("lds"):
                nxt = next(y for y in L_[i_+1:] if y == "s_barrier" or (y.startswith("buffer_load") and y.endswith("lds")))
                out_ += [l] + (st_(k - 3) if nxt == "s_barrier" else [])
            else: out_.append(l)
        a.L[:] = out_
    if OPT["prof"] == 3:
        out_ = []; inrole = False; idx = 0
        for l in a.L:
            if l.startswith(("t0_unit", "t1_slot")): inrole = True; idx = 0
            if l.startswith(("t0_exit", "t1_exit")) or l.startswith("s_cbranch_scc1 t1_slot"): inrole = False
            if l.startswith(("s_mov_b32 s8", "s_mov_b32 s9")) and "s100" in l: continue
            if l.startswith("s_cselect_b32 s8") or l.startswith("s_cselect_b32 s9") or l.startswith("s_mov_b32 s9") and "s100" in l: continue
            if inrole and l == "s_barrier":
                k = idx - OPT["pb"]; idx += 1
                st_ = ["s_memtime s[100:101]", "s_waitcnt lgkmcnt(0)", f"s_cmp_eq_u32 s{sSLOT}, {OPT['ps']}", f"s_cselect_b32 s{80+k}, s100, s{80+k}"] if 0 <= k < 16 else []
                out_ += (st_ + [l]) if OPT["pa"] else ([l] + st_)
            else: out_.append(l)
        a.L[:] = out_
    if OPT["nomfq"] or OPT["nomf1"] or OPT["nomf0"]:
        out_ = []; sec = "q"
        for l in a.L:
            if l.startswith("t0_unit"): sec = "0"
            if l.startswith("k1_t1:"): sec = "1"
            if l.startswith("v_mfma") and OPT["nomf" + sec]: continue
            out_.append(l)
        a.L[:] = out_
    if OPT["xa"]:
        out_ = []; sec = "q"; cnt = 0
        for l in a.L:
            if l.startswith("t0_unit_h"): sec = "h"
            if l.startswith("t0_unit_l"): sec = "l"
            if l.startswith("t0_final"): sec = "f"
            if l.startswith("k1_t1:"): sec = "1"
            if OPT["xa"] == 1 and sec in "hl" and l.startswith("v_mfma") and "v[208:211]" in l: continue
            if OPT["xa"] == 2 and sec == "l" and l.startswith(("v_mfma", "ds_read")): continue
            if OPT["xa"] == 3 and sec == "1" and l.startswith("ds_read_b128"): continue
            if OPT["xa"] == 4 and sec in "hl" and l.startswith("ds_read"):
                continue
            out_.append(l)
        a.L[:] = out_
    if OPT["vwin"]:
        out_ = []; on = False
        for l in a.L:
            if l.startswith("k1_t1:") and OPT["vw1"]: on = True
            if l.startswith("t1_slot:"): on = True
            if l.startswith("t1_last:"): on = False
            if on and l.startswith("buffer_load") and l.endswith("lds"): out_.append(f"s_waitcnt vmcnt({OPT['vwin']-1})")
            out_.append(l)
        a.L[:] = out_
    if OPT["dynp"]:
        out_ = []; int1 = False
        for l in a.L:
            if l.startswith("k1_t1:"): int1 = True
            if int1 and l.startswith("buffer_load") and l.endswith("lds"):
                out_ += [f"s_setprio {OPT['dynp']}", l, f"s_setprio {OPT['prio1']}"]
            else: out_.append(l)
        a.L[:] = out_
    n1 = fix_hazards(a.L); n2 = fix_hazards(b.L)
    print("nops inserted", n1, n2, "instrs", len(a.L), len(b.L), file=sys.stderr)
    hdr = open("cdna_kernels/" + NAME + ".s.ref").read().split("; Override launch")[0]
    out = hdr
    if OPT["two"]:
        out += f"; @launch kernel={NAME}_kernel grid=(256,1,1) block=(512,1,1) lds={LDS_BYTES}\n"
        out += "; @launch kernel=reduce_kernel grid=(1120,1,1) block=(256,1,1) lds=4352\n"
    else:
        out += f"; @launch grid=(256,1,1) block=(512,1,1) lds={LDS_BYTES}\n"
    out += '.amdgcn_target "amdgcn-amd-amdhsa--gfx950"\n.text\n'
    out += a.text() + (b.text() if OPT["two"] else "")
    out += '.section .rodata,"a"\n.p2align 6\n' + desc(NAME + "_kernel", 256)
    if OPT["two"]: out += ".p2align 6\n" + desc("reduce_kernel", 56)
    open(sys.argv[1], "w").write(out)
    import subprocess
    r = subprocess.run(["clang", "-x", "assembler", "-target", "amdgcn-amd-amdhsa", "-mcpu=gfx950", "-c", sys.argv[1], "-o", "chk.o"], capture_output=True, text=True)
    if r.returncode: print("ASSEMBLY FAILED", r.stderr[:600])
main()
```

```python
import sys, math, struct, copy
sys.path.insert(0, "work")
from asmlib import *

NAME = "concat_heads__mha_block_cached__gqa_block_cached__near_ridge"
OPT = dict(kv="nt", w="", x="", wo="", st="sc1", rd="sc1", prof=0, prio0=0, prio1=0, touch=1, nox=0, now=0, nokv=0, nomf=0,
           novm=0, lead=4, bp="6.16.26.36.42", map=0, hack="", t1b=0, ps=5, kdel=0, x0=4, xt=0, dynp=0, nopark=0, gap=0, span=4, pa=0, pb=0, m=2, nlat=0, nonar=0, bar=3, qd=5, rt=0, tf="", tq="", pwo=0, tlb=0, stl=0, dd=0, kw=5, qp1=0, pre=0, kpf=0, wt=6, wtn=14, pkb=1, kw1=0, kwa=4, kwu=48, oldfin=1, kv0=0, k0=3, nq=4, kw1m=0, of="", kw1s=0, kps=18, kpl="nt", lastb=16, stn=1, spin=8000, vcap=0, vpost=0, now0=9, xa=0, burst=0, kpar=0, pwh=1, near=0, vwin=0, cpf=1, fs=0, r5=6, early=3, qv=0, two=0, vw1=1, wo5="", nomfq=0, nomf1=0, nomf0=0, pwf="", kvfirst=1, w2=1, psplit=1, nb1=8, nb2=29, kl=16, tl=4, kvat=18, qst="sc1", noq=0, noqst=0, pv=0, nobar=0, nolg=0, nord=0, norare=0, not1=0, noexp=0, nochk=0, nosm=0)
for a in sys.argv[2:]:
    k, val = a.split("=")
    OPT[k] = int(val) if val.lstrip("-").isdigit() else (val if k in ("bp", "hack") else val.replace("+", " ").replace("-", ""))
TILE = 12288
QO = 0
T1R = 43008
B2 = T1R + 32768
KVB = B2 + 18432
NS = 16
SPARE = KVB + NS * 4096
LDS_BYTES = SPARE + 2048
QPARK = 48 << 20
FLAG0 = 0
PART0 = 1 << 20
PART_CU = 4 * 35 * 1024
LEAD = OPT["lead"]
NX = 30
XB_ = [OPT["x0"] + 4 * ((k * 96) // NX) for k in range(NX)]
def f2u(f): return struct.unpack("<I", struct.pack("<f", f))[0]

sKd, sVd, sWd, sOd, sXd, sPd, sQd = 32, 36, 40, 44, 48, 76, 24
sWAVE, sB, sQUAD, sSLOT, sCTR, sW4 = 52, 53, 54, 55, 57, 56
sT1, sT2, sT3 = 62, 63, 61
sKSO, sVSO, sLW = 58, 59, 60
sWB, sOB, sXB, sXM, sSTR, sXF = 58, 59, 70, 71, 72, 73
sC, sBIT = 66, 68
sRET = 30
sGRP = 3
sWT = 8
sTEAM, sWB2, sKSO2, sL1, sSLO, sSHI = 74, 75, 65, 64, 69, 72
PKV_ = 255
sRX, sRY, sRZ, sSP = 14, 17, 20, 23

def stamp(e, k, real=False):
    if not OPT["prof"]: return
    e(f"s_mem{'real' if real else ''}time s[100:101]")
    e("s_waitcnt lgkmcnt(0)")
    e(f"s_mov_b32 s{80+k}, s100")
def stamp_slot(e):
    if not OPT["prof"]: return
    e("s_memrealtime s[100:101]" if OPT["rt"] else "s_memtime s[100:101]")
    e("s_waitcnt lgkmcnt(0)")
    for k in range(0, 7):
        e(f"s_cmp_eq_u32 s{sSLOT}, {k}")
        e(f"s_cselect_b32 s{82+k}, s100, s{82+k}")
def stamp_if(e, k, slot):
    if not OPT["prof"]: return
    e("s_memtime s[100:101]")
    e("s_waitcnt lgkmcnt(0)")
    e(f"s_cmp_eq_u32 s{sSLOT}, {slot}")
    e(f"s_cselect_b32 s{80+k}, s100, s{80+k}")
def dump_stamps(e, wsreg, base, nw):
    if not OPT["prof"]: return
    if OPT["dd"]:
        e(f"""
s_cmp_lg_u32 s2, {OPT['dd']}
s_cbranch_scc1 k1_end
s_cmp_lg_u32 s{sWAVE}, 4
s_cbranch_scc1 k1_end
s_mov_b32 s96, s26
s_mov_b32 s97, s27
s_mov_b32 s98, 64
s_mov_b32 s99, 0x20000
v_mov_b32 v1, 0
""")
        for k in range(16):
            e(f"s_sub_u32 s100, s{80+k}, s{80 if k == 10 else 81}")
            e("v_mov_b32 v0, s100")
            e(f"buffer_store_dword v0, v1, s[96:99], 0 offen offset:{k*4}")
        e("s_waitcnt vmcnt(0)")
        return
    e(f"""
s_mul_i32 s100, s2, {nw}
s_add_u32 s100, s100, s{sWAVE}
s_lshl_b32 s100, s100, 6
s_add_u32 s100, s100, {base}
s_add_u32 s96, s{wsreg}, s100
s_addc_u32 s97, s{wsreg+1}, 0
s_mov_b32 s98, 64
s_mov_b32 s99, 0x20000
v_mov_b32 v1, 0
""")
    for k in range(16):
        e(f"v_mov_b32 v0, s{80+k}")
        e(f"buffer_store_dword v0, v1, s[96:99], 0 offen offset:{k*4}")
    e("s_waitcnt vmcnt(0)")

class Gen:
    def __init__(self, prog, needs):
        self.p = prog; self.needs = needs; self.rec = {}
        self.mute = 0
        self.vq = []; self.lq = []; self.pend = []; self.issued = {}
        self.nosim = 0
    def e(self, s):
        if not self.mute: self.p(s)
    def label(self, n):
        if not self.mute: self.p.label(n)
    def wait(self, kind, key, tags, drain_tags=()):
        q = self.vq if kind == "vm" else self.lq
        for t in tags:
            assert self.issued.pop(t, 0) > 0, (t, key)
        tags = list(tags) + list(drain_tags)
        idx = [i for i, t in enumerate(q) if t in tags]
        n = len(q) - 1 - max(idx) if idx else 999
        if n != 999: n = min(n, 63 if kind == "vm" else 15)
        k = (kind, key)
        self.rec[k] = min(self.rec.get(k, 999), n)
        val = self.needs.get(k, n)
        if val == 999: return
        self.e(f"s_waitcnt {'vmcnt' if kind == 'vm' else 'lgkmcnt'}({val})")
        del q[:len(q) - val if val < len(q) else 0]
    def wait_alt(self, key, tags, alt, cmp_txt, lab):
        q = self.vq
        for t in tags: assert self.issued.pop(t, 0) > 0, (t, key)
        idx = [i for i, t in enumerate(q) if t in tags]
        n = min(len(q) - 1 - max(idx), 63) if idx else 999
        k = ("vm", key, alt)
        self.rec[k] = min(self.rec.get(k, 999), n)
        va, vb = self.needs.get(("vm", key, False), 0), self.needs.get(("vm", key, True), 0)
        if vb != 999 and vb > va: self.e(f"s_waitcnt vmcnt({vb})")
        if vb > va:
            self.e(cmp_txt); self.e(f"s_cbranch_scc1 {lab}")
        val = min(va, vb) if not (alt and vb > va) else vb
        if min(va, vb) != 999: self.e(f"s_waitcnt vmcnt({min(va, vb)})")
        if vb > va: self.label(lab)
        if val != 999: del q[:len(q) - val if val < len(q) else 0]
    def vm(self, tag, text):
        self.e(text); self.vq.append(tag); self.issued[tag] = self.issued.get(tag, 0) + 1
    def ld(self, tag, text):
        self.e(text); self.lq.append(tag); self.issued[tag] = self.issued.get(tag, 0) + 1
    def drain(self, n=1):
        for _ in range(n):
            if self.pend: self.pend.pop(0)()
    def optional(self, taken, fn):
        if taken: fn()
        elif not self.mute:
            st = (list(self.vq), list(self.lq), dict(self.issued))
            fn()
            self.vq[:], self.lq[:] = st[0], st[1]; self.issued = st[2]

def mfma(e, d, a, b, c):
    if not OPT["nomf"]:
        e(f"v_mfma_f32_16x16x32_bf16 {v(d,4)}, {v(a,4)}, {v(b,4)}, {c if c == '0' else v(c,4)}")


KL = OPT["kl"]
KVT = [k for k in range(NX) if not OPT['burst'] or k % 2 == OPT['kpar']]
N0 = max(u for u in range(300) if 4 * (u - KL) + 4 <= XB_[KVT[-1]]) + 1
def lane_regs(e, b=2):
    e(f"""
v_mbcnt_lo_u32_b32 v{b}, -1, 0
v_mbcnt_hi_u32_b32 v{b}, -1, v{b}
v_and_b32 v{b+1}, 15, v{b}
v_lshrrev_b32 v{b+2}, 4, v{b}
v_lshrrev_b32 v{b+3}, 2, v{b}
v_and_b32 v{b+4}, 3, v{b+3}
v_and_b32 v{b+5}, 3, v{b}
v_lshrrev_b32 v{b+6}, 3, v{b}
v_and_b32 v{b+7}, 7, v{b}
""")
def kv_kind(a):
    a %= 32
    return "K" if (a == 0 or (a % 2 == 1 and a < 31)) else "V"
def kv_tile(a):
    u, a = divmod(a, 32)
    return u * 16 + (0 if a == 0 else 15 if a == 31 else (a + 1) // 2 if a % 2 == 1 else (a - 2) // 2)
def QAC(hh, rt, k): return ((hh * 7 + rt) * 3 + k) * 4
QB = [240, 241, 242]; QT = [251, 252, 253]; NPRE = 12; X9 = KVB + 51200
QW = [248, 249, 250]


class OpEngine:
    def __init__(self, g, PK, AC0, AF0, BF0, RA, OB, PO, ring, sM0, ringoff):
        self.g, self.e = g, g.e
        self.PK, self.AC0, self.AF0, self.BF0, self.RA, self.OB, self.PO = PK, AC0, AF0, BF0, RA, OB, PO
        self.ring, self.sM0, self.ro = ring, sM0, ringoff
        self.dq = []; self.pq = []; self.clock = 0; self.fl = OPT['wo']; self.nr = 4; self.early = 0; self.pkb = 0; self.atbar = []
    def AC(self, k): return self.AC0 + 4 * k
    def AF(self, s, i): return self.AF0 + 8 * (s & 1) + 4 * i
    def BF(self, n): return self.BF0 + 4 * (n % 6)
    def slot(self, i): return ((i + self.ro) % self.nr) * 8192
    def addr_setup(self):
        e = self.e
        lane_regs(e, 232)
        L = 232
        e(f"""
v_lshlrev_b32 v{self.OB}, 4, v{L}
v_lshlrev_b32 v{L+8}, 1, v{L+2}
v_xor_b32 v{L+8}, v{L+1}, v{L+8}
v_lshlrev_b32 v{L+8}, 4, v{L+8}
v_mul_u32_u24 v{L+9}, 1280, v{L+2}
v_add_u32 v{self.PO[0]}, v{L+8}, v{L+9}
v_xor_b32 v{L+8}, 128, v{L+8}
v_add_u32 v{L+8}, v{L+8}, v{L+9}
v_add_u32 v{self.PO[1]}, 4096, v{L+8}
s_lshl_b32 s{sT1}, s{sW4}, 1
v_and_b32 v{L+8}, 7, v{L+3}
v_xor_b32 v{L+8}, s{sT1}, v{L+8}
v_lshlrev_b32 v{L+8}, 5, v{L+8}
v_lshl_add_u32 v{L+8}, v{L+3}, 8, v{L+8}
v_lshl_add_u32 v{L+8}, v{L+5}, 3, v{L+8}
v_add_u32 v{self.RA[0]}, {self.ring}, v{L+8}
v_xor_b32 v{self.RA[1]}, 32, v{self.RA[0]}
""")
    def dma(self, i):
        ps, j = divmod(i, 6)
        out = []
        for q in range(2):
            def f(q=q):
                if q == 0:
                    self.e(f"s_add_u32 m0, s{self.sM0}, {self.ring+self.slot(i)}")
                    self.e(f"s_add_u32 s{sT2}, s{sOB}, {j*32*1280+ps*256}")
                o = "offset:1024 " if q else ""
                self.g.vm(f"O{i}", f"buffer_load_dwordx4 v{self.PO[q]}, s[{sOd}:{sOd+3}], s{sT2} offen {o}{self.fl} lds")
            out.append(f)
        return out
    def defer(self, at, ins):
        for x in ins: self.dq.append((at, x))
    def run_dq(self, n):
        while n > 0 and self.dq and self.dq[0][0] <= self.clock:
            x = self.dq.pop(0)[1]
            if callable(x): x()
            else: self.e(x)
            n -= 1
    def flush_pq(self):
        while self.pq: self.pq.pop(0)[1]()
    def a_read(self, i, n):
        k, hf = divmod(n, 2)
        self.g.ld(f"o{i}a{k}", f"ds_read_b64_tr_b16 {v(self.AF(i,k)+2*hf,2)}, v{self.RA[k]} offset:{self.slot(i)+hf*4096}")
    def b_read(self, b):
        i, rt = divmod(b, 7)
        self.g.ld(f"o{i}b{rt}", f"ds_read_b128 {v(self.BF(b),4)}, v{self.OB} offset:{QO+(i%6*7+rt)*1024}")
    def first_reads(self, i):
        self.a_read(i, 0); self.a_read(i, 1); self.b_read(7 * i); self.a_read(i, 2); self.a_read(i, 3)
        for n in range(1, 6): self.b_read(7 * i + n)
    def unpack_l(self, dst, src):
        return [f"v_perm_b32 v{dst+x}, v{src+x//2}, v{src+x//2}, s{sSHI if x & 1 else sSLO}" for x in range(4)]
    def pack_l(self, dst, src):
        return [f"v_cvt_pk_bf16_f32 v{dst}, v{src}, v{src+1}", f"v_cvt_pk_bf16_f32 v{dst+1}, v{src+2}, v{src+3}"]
    def store_l(self, ps, rt):
        o = (ps * 7 + rt) * 1024
        return [f"s_mov_b32 s{sT3}, {o - o % 4096}",
                lambda: self.g.vm("st", f"buffer_store_dwordx4 {v(self.PK(ps*14+rt*2),4)}, v{self.OB}, s[{sPd}:{sPd+3}], s{sT3} offen offset:{o%4096} {OPT['st']}")]
    def step(self, key, i, last, tick, store=False, hooks=None):
        g, e = self.g, self.e
        ps, j = divmod(i, 6)
        BAR = OPT["bar"]
        c0 = self.clock
        if store and not self.early and i >= last - 3 and i < last:
            todo = [(q, rt) for q in range(store[0], ps) for rt in range(7)]
            k = i - (last - 3)
            mine = todo[k * len(todo) // 3:(k + 1) * len(todo) // 3]
            for n, (q, rt) in enumerate(mine): self.defer(c0 + (6 if k == 0 else 0) + n * (8 if k == 0 else 14) // len(mine), self.store_l(q, rt))
        if j == 5 and (i < last or store):
            for n in range(14):
                ins = self.pack_l(self.PK(ps * 14 + n), self.AC(n))
                if i < last: ins += self.unpack_l(self.AC(n), self.PK((ps + 1) * 14 + n))
                if store and n % 2 == 1 and (i == last or self.early): ins += self.store_l(ps, n // 2)
                if self.pkb and i < last and n >= BAR: self.atbar += ins
                else: self.defer(c0 + n + 4, ins)
        for n in range(14):
            rt, k = divmod(n, 2)
            if n == BAR and i < last: tick(i)
            if n == BAR and j == 0:
                for x in self.atbar:
                    if callable(x): x()
                    else: e(x)
                self.atbar = []
            if hooks and n in hooks: hooks[n]()
            tags = ([f"o{i}b{rt}"] if k == 0 else []) + ([f"o{i}a{k}"] if rt == 0 else [])
            if tags: g.wait("lg", f"{key}{i}m{n}", tags)
            mfma(e, self.AC(n), self.AF(i, k), self.BF(7 * i + rt), self.AC(n))
            if k == 1 and 7 * i + rt + 6 < 7 * (last + 1): self.b_read(7 * i + rt + 6)
            if k == 0 and i < last and BAR < n <= BAR + 8: self.a_read(i + 1, (n - BAR - 1) // 2)
            while self.pq and self.pq[0][0] <= self.clock: self.pq.pop(0)[1]()
            self.clock += 1
            self.run_dq(7)
    def finish(self):
        self.flush_pq(); self.clock += 100; self.run_dq(1000)

AC_ = QAC
def QAF(par, hh, k): return 168 + par * 24 + (hh * 3 + k) * 4
def QBF(n): return 216 + 4 * (n % 4)
QRA = [[232, 233, 234], [235, 236, 237]]; QXA = [238, 239]; QPW = [243, 244, 245]; QPX = 246; QJUNK = 247; QWT = 254
def x_dma(g, pp, xb):
    e = g.e; out = []
    for q in range(4):
        def f(q=q):
            if q < 3: e(f"s_add_u32 m0, s{sXM}, {xb+q*4096}")
            else:
                e(f"s_add_u32 s{sT2}, s{sXM}, {xb+q*4096}")
                e(f"s_cmp_ge_u32 s{sW4}, 2")
                e(f"s_cselect_b32 m0, s{sXF}, s{sT2}")
            e(f"s_add_u32 s{sT2}, s{sXB}, {pp*128+q*40960}")
            g.vm(f"X{pp}", f"buffer_load_dwordx4 v{QPX}, s[{sXd}:{sXd+3}], s{sT2} offen {OPT['x']} lds")
        out.append(f)
    return out
def w_dma(g, i, head, lds, tag):
    e = g.e; out = []
    for ii in range(3):
        def f(ii=ii):
            if ii == 0:
                e(f"s_add_u32 m0, s{sLW}, {lds}")
                e(f"s_add_u32 s{sT1}, s{sWB}, {i*32*12288+head*384}")
            o = f"offset:{ii*1024} " if ii else ""
            g.vm(tag, f"buffer_load_dwordx4 v{QPW[ii]}, s[{sWd}:{sWd+3}], s{sT1} offen {o}{OPT['w']} lds")
        out.append(f)
    return out
def q_cvt(e, a):
    e(f"v_pk_mul_f32 {v(a,2)}, {v(a,2)}, s[{sC}:{sC+1}]")
    e(f"v_pk_mul_f32 {v(a+2,2)}, {v(a+2,2)}, s[{sC}:{sC+1}]")
    e(f"v_cvt_pk_bf16_f32 v{a}, v{a}, v{a+1}")
    e(f"v_cvt_pk_bf16_f32 v{a+1}, v{a+2}, v{a+3}")

def qp_phase(p, needs, team):
    g = Gen(p, needs); e = g.e
    nh = 1 + team
    STG = [KVB, T1R]
    def dma_w(i, part):
        if team: return []
        return sum((w_dma(g, i, h, STG[i & 1] + h * TILE, f"W{i}.{part}") for h in ((0, 1) if part == 0 else (2,))), [])
    def dma_x(pp): return [] if team else x_dma(g, pp, X9 if pp == 9 else QO + (pp % 3) * 14336)
    def vwait(key, tags):
        if not team: g.wait("vm", key, tags)
    def a_read(i, hh, n):
        k, hf = divmod(n, 2)
        g.ld(f"{i}a{hh}{k}", f"ds_read_b64_tr_b16 {v(QAF(i&1,hh,k)+2*hf,2)}, v{QRA[i&1][k]} offset:{(team+hh)*TILE+hf*1536}")
    def b_read(i, rt):
        g.ld(f"{i}b{rt}", f"ds_read_b128 {v(QBF(7*i+rt),4)}, v{QXA[i&1]} offset:{((i>>1)%3)*14336+rt*2048}")
    lane_regs(e)
    e(f"""
v_lshrrev_b32 v13, 1, v8
v_and_b32 v13, 3, v13
v_lshlrev_b32 v13, 1, v13
v_xor_b32 v13, v9, v13
v_lshlrev_b32 v13, 4, v13
v_mul_u32_u24 v14, 1280, v8
v_add_u32 v{QPX}, v13, v14
v_mul_u32_u24 v14, 384, v8
v_add_u32 v{PKV_}, v13, v14
s_mul_i32 s{sXB}, s{sW4}, 10240
s_lshl_b32 s{sXM}, s{sW4}, 10
s_sub_u32 s{sXF}, s{sXM}, 2048
s_add_u32 s{sXF}, s{sXF}, {SPARE}
""")
    for f in dma_x(0): f()
    e(f"""
s_and_b32 s{sT1}, s{sW4}, 1
s_lshl_b32 s{sT1}, s{sT1}, 2
v_xor_b32 v16, s{sT1}, v9
s_mul_i32 s{sWB}, s{sW4}, {8*12288}
""")
    for q in range(3):
        e(f"""
v_add_u32 v10, {8*q}, v8
v_mul_u32_u24 v11, 43, v10
v_lshrrev_b32 v11, 7, v11
v_mul_u32_u24 v12, 3, v11
v_sub_u32 v12, v10, v12
v_lshrrev_b32 v13, 1, v11
v_and_b32 v14, 1, v13
v_xor_b32 v14, v16, v14
v_lshlrev_b32 v14, 4, v14
v_lshl_add_u32 v14, v12, 7, v14
v_mul_u32_u24 v15, 12288, v11
v_add_u32 v14, v14, v15
v_subrev_u32 v{QPW[q]}, {q*1024}, v14
""")
    for f in dma_w(0, 0) + dma_w(0, 1): f()
    WT = OPT["wt"]
    if not team:
        e(f"""
v_mul_u32_u24 v10, 43, v2
v_lshrrev_b32 v10, 9, v10
v_mul_u32_u24 v11, 12, v10
v_sub_u32 v11, v2, v11
v_min_u32 v10, 1, v10
v_mul_u32_u24 v10, 12288, v10
v_lshl_add_u32 v{QWT}, v11, 7, v10
s_mul_i32 s{sWT}, s{sB}, {2*12288}
s_add_u32 s{sT1}, s{sWAVE}, 2
s_mul_i32 s{sT1}, s{sT1}, {32*12288}
s_add_u32 s{sT1}, s{sT1}, s{sWT}
""")
        assert WT == 6
        g.vm("pf", f"buffer_load_dword v{QJUNK}, v{QWT}, s[{sWd}:{sWd+3}], s{sT1} offen {OPT['tq']}")
    e(f"""
v_lshrrev_b32 v8, 1, v3
v_and_b32 v8, 3, v8
v_lshlrev_b32 v8, 1, v8
v_xor_b32 v8, v4, v8
v_lshlrev_b32 v8, 4, v8
v_lshl_add_u32 v9, v3, 7, v8
v_add_u32 v{QXA[0]}, {QO}, v9
v_xor_b32 v{QXA[1]}, 64, v{QXA[0]}
v_lshl_add_u32 v8, v4, 3, v6
v_mul_u32_u24 v9, 384, v8
v_lshrrev_b32 v8, 1, v6
v_and_b32 v11, 1, v4
v_lshl_add_u32 v8, v11, 2, v8
v_xor_b32 v8, v7, v8
v_lshl_add_u32 v9, v8, 4, v9
v_lshlrev_b32 v12, 3, v11
v_lshl_add_u32 v12, v2, 4, v12
v_and_b32 v11, 1, v7
v_lshl_add_u32 v11, v11, 3, v9
s_mov_b32 s{sC}, {hex(f2u(192 ** -0.5 * math.log2(math.e)))}
s_mov_b32 s{sC+1}, s{sC}
""")
    for i in range(3):
        e(f"""
s_mul_i32 s{sT1}, s{sW4}, 3
s_add_u32 s{sT1}, s{sT1}, {i}
s_and_b32 s{sT3}, s{sT1}, 2
s_lshl_b32 s{sT3}, s{sT3}, 5
s_and_b32 s{sT2}, s{sT1}, 1
s_lshl_b32 s{sT2}, s{sT2}, 3
v_xor_b32 v{QW[i]}, s{sT2}, v12
s_or_b32 s{sT3}, s{sT3}, s{sT2}
v_xor_b32 v13, s{sT3}, v11
s_lshr_b32 s{sT2}, s{sT1}, 2
s_lshl_b32 s{sT2}, s{sT2}, 7
v_add_u32 v13, s{sT2}, v13
v_add_u32 v{QRA[1][i]}, {T1R}, v13
v_add_u32 v{QRA[0][i]}, {KVB}, v13
s_lshr_b32 s{sT1}, s{sT1}, 1
s_mul_i32 s{sT2}, s{sT1}, 7168
v_add_u32 v{QW[i]}, s{sT2}, v{QW[i]}
""")
        if team:
            e(f"""
s_cmp_lt_u32 s{sT1}, 3
s_cselect_b32 s{sT3}, {B2 - (QO + 6144 - 18432)}, 0
s_sub_u32 s{sT3}, s{sT3}, {18432 - 6144 - QO}
s_lshl_b32 s{sT2}, s{sT1}, 10
s_sub_u32 s{sT2}, s{sT3}, s{sT2}
v_add_u32 v{QB[i]}, s{sT2}, v{QW[i]}
s_mul_i32 s{sT2}, s{sT1}, 6144
v_subrev_u32 v{QT[i]}, s{sT2}, v{QW[i]}
""")
    vwait("in", ["W0.0", "W0.1", "X0"])
    e("s_barrier")
    stamp(e, 14, real=bool(OPT["rt"]))
    if not team:
        e(f"""
s_cmp_lg_u32 s{sWAVE}, 0
s_cbranch_scc1 k1_nocnt
s_mov_b32 s4, s26
s_mov_b32 s5, s27
s_mov_b32 s6, 256
s_mov_b32 s7, 0x20000
s_lshl_b32 s{sT1}, s{sGRP}, 2
v_mov_b32 v204, 0
v_mov_b32 v205, 1
s_mov_b64 exec, 1
buffer_atomic_add v205, v204, s[4:7], s{sT1} offen sc1
s_mov_b64 exec, -1
k1_nocnt:
""")
    a_read(0, 0, 0); a_read(0, 0, 1); b_read(0, 0); b_read(0, 1)
    for n in range(2, 6): a_read(0, 0, n)
    if team:
        for n in range(6): a_read(0, 1, n)
    for rt in range(2, 4): b_read(0, rt)
    for f in dma_w(1, 0) + dma_w(1, 1) + dma_x(1): f()
    if team:
        ORD = [(rt, 0, k) for rt in (0, 1) for k in range(3)] + [(rt, 1, k) for rt in (0, 1) for k in range(3)]
        ORD += [(rt, hh, k) for rt in range(2, 7) for hh in range(2) for k in range(3)]
        NB1, NB2 = 8, 29
        A0 = [NB1 + 2 + 3 * x for x in range(6)]; A1 = [NB2 + 1 + 2 * x for x in range(6)]
    else:
        ORD = [(rt, 0, k) for rt in range(7) for k in range(3)]
        NB1, NB2 = 4, 14
        A0 = [6, 7, 9, 10, 12, 13]; A1 = []
    lastb = {rt: max(n for n, x in enumerate(ORD) if x[0] == rt) for rt in range(7)}
    def fin(n):
        rt, hh, k = ORD[n]
        q_cvt(e, AC_(hh, rt, k))
        if not team: e(f"ds_write_b64 v{QW[k]}, {v(AC_(hh,rt,k),2)} offset:{QO+rt*1024}")
    for i in range(20):
        if i in (17, 18): e(f"v_add_u32 v{QXA[i-17]}, {X9}, v{QXA[i-17]}")
        seen = set()
        for n, (rt, hh, k) in enumerate(ORD):
            if n == NB1 and i < 19:
                if team: g.wait("lg", f"r1{i}", [], drain_tags=[f"{i}a1{x}" for x in range(3)])
                vwait(f"s{i}", [f"W{i+1}.0"] + ([f"X{(i+1)//2}"] if i % 2 == 1 else []))
                e("s_barrier")
                if i + 2 < 20:
                    for f in (dma_w(i + 2, 0) if i == 0 else []) + dma_w(i + 2, 1): f()
                if i % 2 == 0 and i // 2 + 2 < 10:
                    for f in dma_x(i // 2 + 2): f()
                if not team and i + WT < 20:
                    e(f"s_cmp_lg_u32 s{sWAVE}, {i % 4}")
                    e(f"s_cbranch_scc1 qp_wt{i}")
                    e(f"s_add_u32 s{sT3}, s{sWT}, {(i+WT)*32*12288}")
                    e(f"buffer_load_dword v{QJUNK}, v{QWT}, s[{sWd}:{sWd+3}], s{sT3} offen {OPT['tq']}")
                    g.label(f"qp_wt{i}")
            if n == NB2 and i < 19:
                g.wait("lg", f"r2{i}", [], drain_tags=[f"{i+1}a0{x}" for x in range(3)])
                vwait(f"t{i}", [f"W{i+1}.1"])
                e("s_barrier")
                if i + 3 < 20:
                    for f in dma_w(i + 3, 0): f()
                if i == 18 and team:
                    e(f"s_mul_i32 s{sKSO2}, s{sW4}, 3072")
                    e(f"s_lshl_b32 s{sL1}, s{sW4}, 10")
                    for u in range(NPRE):
                        a, bb = divmod(u, 3)
                        e(f"s_add_u32 m0, s{sL1}, {KVB + (u % NS) * 4096 - bb * 128}")
                        e(f"s_add_u32 s{sT1}, s{sKSO2}, {kv_tile(a) * TILE}")
                        srd = sKd if kv_kind(a) == "K" else sVd
                        e(f"buffer_load_dwordx4 v{PKV_}, s[{srd}:{srd+3}], s{sT1} offen offset:{bb*128} {OPT['kv']} lds")
            tags = [t for t in (f"{i}b{rt}", f"{i}a{hh}{k}") if t not in seen]
            seen.update(tags)
            if tags: g.wait("lg", f"{i}m{n}", tags)
            mfma(e, AC_(hh, rt, k), QAF(i & 1, hh, k), QBF(7 * i + rt), "0" if i == 0 else AC_(hh, rt, k))
            if n == lastb[rt]:
                if rt + 4 < 7: b_read(i, rt + 4)
                elif i < 19: b_read(i + 1, rt - 3)
            if i < 19 and n in A0: a_read(i + 1, 0, A0.index(n))
            if i < 19 and n in A1: a_read(i + 1, 1, A1.index(n))
            if i == 19 and n >= 4: fin(n - 4)
    for n in range(len(ORD) - 4, len(ORD)): fin(n)
    stamp(e, 15, real=bool(OPT["rt"]))
    return g.rec

def t0_path(p, needs, nrt, tag):
    g = Gen(p, needs); e = g.e
    def ACC(rt, t): return rt * 48 + t * 4
    def Q(rt, j): return 96 + rt * 24 + j * 4
    def S(par, rt, kt=0): return 144 + par * 16 + rt * 8 + kt * 4
    def P(par, rt): return 176 + par * 8 + rt * 4
    def NEGM(rt): return 192 + rt * 4
    def LSUM(rt): return 200 + rt * 4
    def STG(rt, j): return 144 + (j * 2 + rt) * 4 if j < 5 else 192 + rt * 4
    ONES = 208
    FR0 = 212; NFR = 8
    def FR(a, f): return FR0 + ((a * 12 + f) % NFR) * 4
    KA = [244, 245]; VA = [246, 247, 248, 249]; QOA = 250
    TC = 251; T = [252, 253, 254, 255]
    HOLD = [48 + 4 * i for i in range(12)] + [156, 172, 180, 188, 196, 204]
    def rd_l(a, f):
        base = ((3 * a + f // 4) % NS) * 4096; tg = f"A{a%32}f{f}"
        if kv_kind(a) == "K":
            j, kt = divmod(f, 2)
            return [lambda: g.ld(tg, f"ds_read_b128 {v(FR(a,f),4)}, v{KA[j&1]} offset:{base+kt*2048}")]
        return [lambda hf=hf: g.ld(tg, f"ds_read_b64_tr_b16 {v(FR(a,f)+2*hf,2)}, v{VA[f&3]} offset:{base+hf*2048}") for hf in range(2)]
    def run(x):
        if callable(x): x()
        else: e(x)
    def cost(x): return 2 if isinstance(x, str) and x.startswith(("v_exp", "v_rcp")) else 1
    def step(key, a, mfs, valu=(), last=False, extra=None, v0=0):
        valu = list(valu)
        ngap = sum(len(mfs(f, 0)) for f in range(v0, 12))
        tot = sum(cost(x) for x in valu); done = 0; gap = 0
        for f in range(12):
            pos = a * 12 + f
            if extra and f in extra: extra[f]()
            if pos in XB_:
                k = XB_.index(pos)
                if OPT["kv0"] and k + 1 < NX and -(-(XB_[k] + LEAD) // 4) < NPRE:
                    e(f"s_waitcnt vmcnt({max(0, NPRE - -(-(XB_[k+1] + LEAD) // 4))})")
                e("s_barrier")
                if nrt == 1 and k == OPT["k0"] + 20:
                    e(f"s_cmp_lg_u32 s{sSLOT}, 1")
                    e("s_cbranch_scc1 t0_nopick")
                    e(f"v_subrev_u32 v{TC}, 6144, v{QOA}")
                    for j in range(6): e(f"ds_read_b128 {v(Q(1,j),4)}, v{TC} offset:{j*1024}")
                    for n in range(18): e(f"ds_read_b128 {v(HOLD[n],4)}, v{TC} offset:{(6+n)*1024}")
                    e("s_waitcnt lgkmcnt(0)")
                    g.label("t0_nopick")
            reads = rd_l(a, f + LEAD) if f + LEAD < 12 else ([] if last else rd_l(a + 1, f + LEAD - 12))
            if not OPT["w2"]: g.wait("lg", f"{key}{f}", [f"A{a}f{f}"])
            elif f % 2 == 0: g.wait("lg", f"{key}{f}", [f"A{a}f{f}", f"A{a}f{f+1}"])
            ms = mfs(f, FR(a, f))
            for i, m in enumerate(ms):
                m()
                if reads: reads.pop(0)()
                if i == len(ms) - 1:
                    while reads: reads.pop(0)()
                if f >= v0:
                    gap += 1
                    while valu and done + cost(valu[0]) / 2 <= tot * gap / ngap:
                        done += cost(valu[0]); run(valu.pop(0))
        for x in valu: run(x)
    def mf_qk(par, zero):
        def m(f, fr):
            j, kt = divmod(f, 2)
            return [lambda rt=rt: mfma(e, S(par, rt, kt), fr, Q(rt, j), ("0" if zero else NEGM(rt)) if j == 0 else S(par, rt, kt)) for rt in range(nrt)]
        return m
    def onorm_l(j):
        out = []
        for rt in range(nrt):
            a = ACC(rt, 2 * j)
            out += [f"v_pk_mul_f32 {v(a+i,2)}, {v(a+i,2)}, {v(T[2*rt],2)}" for i in range(0, 8, 2)]
            out += [f"v_cvt_pk_bf16_f32 v{STG(rt,j)+i}, v{a+2*i}, v{a+2*i+1}" for i in range(4)]
        return out
    def mf_pv(par, first, last=False):
        def m(f, fr):
            out = []
            if f == (0 if last else 5):
                out += [lambda rt=rt: mfma(e, LSUM(rt), ONES, P(par, rt), "0" if first else LSUM(rt)) for rt in range(nrt)]
            return out + [lambda rt=rt: mfma(e, ACC(rt, f), fr, P(par, rt), "0" if first else ACC(rt, f)) for rt in range(nrt)]
        return m
    def sm(par, lo=0, hi=None):
        grp = [(rt, i) for rt in range(nrt) for i in range(4)][lo:hi]
        seq = []
        for n, (rt, i) in enumerate(grp):
            a, b = T[(2 * n) % 4], T[(2 * n + 1) % 4]
            r = S(par, rt) + 2 * i
            seq += [f"v_exp_f32 v{a}, v{r}", f"v_exp_f32 v{b}, v{r+1}"]
            if n > 0: seq.append(prev)
            prev = f"v_cvt_pk_bf16_f32 v{P(par,rt)+i}, v{a}, v{b}"
        return seq + [prev] if grp else []
    def chk_l(par):
        p0 = P(par, 0)
        out = [f"v_or3_b32 v{TC}, v{p0}, v{p0+1}, v{p0+2}"]
        if nrt == 2:
            out += [f"v_or3_b32 v{TC}, v{TC}, v{p0+3}, v{p0+4}", f"v_or3_b32 v{TC}, v{TC}, v{p0+5}, v{p0+6}"]
        out += [f"v_bitop3_b32 v{TC}, v{TC}, v{p0+4*nrt-1}, s{sBIT} bitop3:0xa8", f"v_cmp_ne_u32 vcc, 0, v{TC}"]
        return out
    def chk_branch(par, key):
        e(f"s_cbranch_vccz t0_ok{key}_{tag}")
        if not OPT["norare"]: e(f"s_call_b64 s[{sRET}:{sRET+1}], t0_rare{par}_{tag}")
        g.label(f"t0_ok{key}_{tag}")
    def rowmax(par, rt, t, t2):
        r = S(par, rt)
        e(f"""
v_max3_f32 v{t}, v{r}, v{r+1}, v{r+2}
v_max3_f32 v{t}, v{t}, v{r+3}, v{r+4}
v_max3_f32 v{t}, v{t}, v{r+5}, v{r+6}
v_max_f32 v{t}, v{t}, v{r+7}
v_mov_b32 v{t2}, v{t}
v_permlane32_swap_b32 v{t2}, v{t}
v_max_f32 v{t}, v{t}, v{t2}
v_mov_b32 v{t2}, v{t}
v_permlane16_swap_b32 v{t2}, v{t}
v_max_f32 v{t}, v{t}, v{t2}
v_add_f32 v{t}, {hex(f2u(7.0))}, v{t}
""")
    L = 216
    lane_regs(e, L)
    e(f"""
s_waitcnt lgkmcnt(0)
s_lshl_b32 s{sT1}, s{sWAVE}, 11
s_add_u32 s{sT1}, s{sT1}, {QO}
v_lshl_add_u32 v{QOA}, v{L}, 4, s{sT1}
v_lshrrev_b32 v{L+6}, 1, v{L+1}
v_and_b32 v{L+6}, 3, v{L+6}
v_lshlrev_b32 v{L+6}, 1, v{L+6}
v_xor_b32 v{L+6}, v{L+2}, v{L+6}
v_lshlrev_b32 v{L+6}, 4, v{L+6}
v_lshl_add_u32 v{L+6}, v{L+1}, 7, v{L+6}
v_add_u32 v{KA[0]}, {KVB}, v{L+6}
v_xor_b32 v{KA[1]}, 64, v{KA[0]}
v_lshrrev_b32 v{L+6}, 1, v{L+3}
v_and_b32 v{L+6}, 3, v{L+6}
v_lshlrev_b32 v{L+6}, 5, v{L+6}
v_lshl_add_u32 v{L+6}, v{L+3}, 7, v{L+6}
v_lshl_add_u32 v{L+6}, v{L+5}, 3, v{L+6}
v_add_u32 v{VA[0]}, {KVB}, v{L+6}
v_xor_b32 v{VA[1]}, 32, v{VA[0]}
v_xor_b32 v{VA[2]}, 64, v{VA[0]}
v_xor_b32 v{VA[3]}, 96, v{VA[0]}
s_mov_b32 s{sBIT}, 0x40004000
s_mov_b32 s{sSLOT}, 1
""")
    for i in range(4): e(f"v_mov_b32 v{ONES+i}, 0x3f803f80")
    H = 4 if (nrt == 2 and OPT["psplit"]) else (2 if OPT["psplit"] else 0)
    for unit in range(2):
        if unit >= 1: g.mute += 1
        g.label(f"t0_unit_{tag}")
        if OPT["kv0"]: e(f"s_waitcnt vmcnt({NPRE - -(-(XB_[0] + LEAD) // 4)})")
        e("s_barrier")
        if not g.mute: stamp_slot(e)
        e(f"s_cmp_gt_u32 s{sSLOT}, 3")
        e(f"s_cbranch_scc1 t0_q3_{tag}")
        for j in range(6):
            for rt in range(nrt): e(f"ds_read_b128 {v(Q(rt,j),4)}, v{QOA} offset:{(j*7+rt)*1024}")
        e(f"s_cmp_lg_u32 s{sSLOT}, 1")
        e(f"s_cbranch_scc1 t0_w_{tag}")
        e(f"s_branch t0_noo_{tag}")
        g.label(f"t0_q3_{tag}")
        e(f"s_cmp_eq_u32 s{sSLOT}, 5")
        e(f"s_cbranch_scc1 t0_w_{tag}")
        if nrt == 1:
            for i in range(24): e(f"v_mov_b32 v{Q(0,0)+i}, v{Q(1,0)+i}")
        else:
            e(f"v_add_u32 v{TC}, {B2}, v{QOA}")
            for j in range(6):
                for rt in range(nrt):
                    if j < 3: e(f"ds_read_b128 {v(Q(rt,j),4)}, v{TC} offset:{(j*6+rt)*1024}")
                    else: e(f"ds_read_b128 {v(Q(rt,j),4)}, v{QOA} offset:{(j*7+rt)*1024}")
        g.label(f"t0_w_{tag}")
        e("s_waitcnt lgkmcnt(0)")
        for j in range(6):
            for rt in range(nrt): e(f"ds_write_b128 v{QOA}, {v(STG(rt,j),4)} offset:{(j*7+rt)*1024}")
        e(f"s_cmp_eq_u32 s{sSLOT}, 5")
        e(f"s_cbranch_scc1 t0_exit_{tag}")
        g.label(f"t0_noo_{tag}")
        for f in range(LEAD):
            for x in rd_l(0, f): x()
        step("a0_", 0, mf_qk(0, True), extra={1: lambda: e("s_barrier")})
        for rt in range(nrt):
            rowmax(0, rt, T[0], T[1])
            for i in range(4): e(f"v_sub_f32 v{NEGM(rt)+i}, 0, v{T[0]}")
            for i in range(8): e(f"v_sub_f32 v{S(0,rt)+i}, v{S(0,rt)+i}, v{T[0]}")
        for t in range(15):
            step(f"q{t}_", 2 * t + 1, mf_qk((t + 1) & 1, False), valu=sm(t & 1, H if t else 0) + chk_l(t & 1))
            chk_branch(t & 1, f"q{t}")
            va = sm((t + 1) & 1, 0, H)
            if t == 14: va = sm(1) + chk_l(1)
            step(f"p{t}_", 2 * t + 2, mf_pv(t & 1, t == 0), valu=va, v0=1)
        chk_branch(1, "q15")
        rc = [f"v_rcp_f32 v{T[i]}, v{LSUM(i//2)}" for i in range(2 * nrt)]
        ex = {3: lambda: [e(x) for x in rc]}
        for j in range(4): ex[4 + 2 * j] = lambda j=j: [e(x) for x in onorm_l(j)]
        step("p15_", 31, mf_pv(1, False, True), last=True, extra=ex)
        for x in onorm_l(4) + onorm_l(5): e(x)
        if nrt == 1:
            e(f"s_cmp_lg_u32 s{sSLOT}, 3")
            e("s_cbranch_scc1 t0_nohold")
            e(f"v_subrev_u32 v{TC}, 6144, v{QOA}")
            for n in range(18): e(f"ds_write_b128 v{TC}, {v(HOLD[n],4)} offset:{((3+n//6)*7+n%6)*1024}")
            e("s_waitcnt lgkmcnt(0)")
            g.label("t0_nohold")
        e(f"""
s_add_u32 s{sSLOT}, s{sSLOT}, 1
s_branch t0_unit_{tag}
""")
        if unit >= 1: g.mute -= 1
    g.label(f"t0_exit_{tag}")
    e("s_branch t0_final")
    for par in range(2):
        g.label(f"t0_rare{par}_{tag}")
        for rt in range(nrt):
            t, t2 = TC, T[0]
            rowmax(par, rt, t, t2)
            e(f"v_max_f32 v{t}, 0, v{t}")
            for i in range(4): e(f"v_sub_f32 v{NEGM(rt)+i}, v{NEGM(rt)+i}, v{t}")
            for pp in range(2):
                for i in range(8): e(f"v_sub_f32 v{S(pp,rt)+i}, v{S(pp,rt)+i}, v{t}")
            e(f"v_exp_f32 v{t}, -v{t}")
            for i in range(4): e(f"v_mul_f32 v{LSUM(rt)+i}, v{LSUM(rt)+i}, v{t}")
            for i in range(48): e(f"v_mul_f32 v{ACC(rt,0)+i}, v{ACC(rt,0)+i}, v{t}")
        for x in sm(par): e(x)
        e(f"s_setpc_b64 s[{sRET}:{sRET+1}]")
    return g.rec


def t0_final(p, needs):
    g = Gen(p, needs); e = g.e
    g.label("t0_final")
    op = OpEngine(g, lambda tt: 2 * (tt - 42), 56, 112, 128, [244, 245], 246, [247, 248], KVB, sLW, 2)
    op.fl = OPT["wo5"]; op.early = OPT["early"] >> 1
    op.addr_setup()
    e(f"""
s_mul_i32 s{sOB}, s{sW4}, {8*1280}
s_add_u32 s{sOB}, s{sOB}, {3*245760}
s_lshl_b32 s{sLW}, s{sW4}, 11
s_mov_b32 s{sSLO}, 0x01000c0c
s_mov_b32 s{sSHI}, 0x03020c0c
s_lshl_b32 s{sT1}, s{sW4}, 10
s_add_u32 s{sT1}, s{sT1}, {KVB + 32768}
v_add_u32 v249, s{sT1}, v246
""")
    for i in range(18, 22):
        for f in op.dma(i): f()
    def pk_read(ps):
        for rt in range(7): g.ld("pk", f"ds_read_b128 {v(op.PK(ps*14+rt*2),4)}, v249 offset:{rt*4096}")
    e("s_waitcnt lgkmcnt(0)"); g.lq[:] = []
    e("s_barrier")
    pk_read(3)
    e("s_waitcnt lgkmcnt(0)"); g.lq[:] = []
    for k in range(14):
        for x in op.unpack_l(op.AC(k), op.PK(42 + k)): e(x)
    g.wait("vm", "in", ["O18"])
    e("s_barrier")
    op.first_reads(18)
    def tick(i):
        op.flush_pq()
        g.wait("vm", f"t{i}", [f"O{i+1}"])
        e("s_barrier")
        if i + 4 < 30:
            for f in op.dma(i + 4): f()
    for i in range(18, 30):
        op.step("f", i, 29, tick, store=[3], hooks={5: lambda: pk_read(4)} if i == 20 else None)
    op.finish()
    for i in range(OPT["lastb"] - 12): e("s_barrier")
    if not OPT["oldfin"]: e("s_waitcnt vmcnt(0)")
    e("s_barrier")
    e("s_branch k1_final")
    return g.rec

def t1_path(p, needs):
    g = Gen(p, needs); e = g.e
    def PK(tt): return 2 * tt
    def Q2(k): return PK(56) + 2 * k if k < 14 else 236 + 2 * (k - 14)
    OB = 252
    op = OpEngine(g, PK, 140, 196, 212, [250, 251], OB, [253, 254], T1R, sLW, 0)
    AC, AF, BF = op.AC, op.AF, op.BF
    op.pkb = OPT["pkb"] & 1
    def dma_sub(u):
        a, bb = divmod(u, 3)
        srd = sKd if kv_kind(a) == "K" else sVd
        def f():
            kw = (OPT["kwa"] if u < OPT["kwu"] else OPT["kw"]) if st.get("mixed") else OPT["kw1m"]
            if kw:
                idx = [i for i, t in enumerate(g.vq) if t.startswith("U")]
                n = len(g.vq) - 1 - idx[-kw] if len(idx) >= kw else 999
                k = ("vm", f"kw{u}.{st.get('mixed')}")
                g.rec[k] = min(g.rec.get(k, 999), n)
                val = g.needs.get(k, n)
                if val != 999:
                    e(f"s_waitcnt vmcnt({val})")
                    del g.vq[:len(g.vq) - val if val < len(g.vq) else 0]
            e(f"s_add_u32 m0, s{sL1}, {KVB + (u % NS) * 4096 - bb * 128}")
            e(f"s_add_u32 s{sT1}, s{sKSO2}, {kv_tile(a) * TILE}")
            off = f"offset:{bb*128} " if bb else ""
            g.vm(f"U{u % 96}", f"buffer_load_dwordx4 v{PKV_}, s[{srd}:{srd+3}], s{sT1} offen {off}{OPT['kv']} lds")
        return f
    st = dict(pub=0, iss=0)
    def kv_tags(k):
        upto = XB_[k + 1] if k < NX - 1 else 384
        n = -(-(upto + LEAD) // 4) if upto < 384 else 96
        tags = [f"U{u}" for u in range(st["pub"], n)]
        st["pub"] = max(st["pub"], n)
        return tags
    def kv_issue(k):
        out = []
        while k in KVT and 4 * (st["iss"] - KL) + 4 <= XB_[k]:
            out.append(dma_sub(st["iss"])); st["iss"] += 1
        return out
    def touch_o(t):
        nsh = 16 if OPT["map"] == 0 else 8
        per = 245760 // (4 * nsh)
        e(f"""
s_and_b32 s{sT1}, s{sB}, {nsh-1}
s_lshl_b32 s{sT1}, s{sT1}, 2
s_add_u32 s{sT1}, s{sT1}, s{sW4}
s_mul_i32 s{sT1}, s{sT1}, {per}
s_sub_u32 s{sT2}, s{sSLOT}, 1
s_mul_i32 s{sT2}, s{sT2}, 245760
s_add_u32 s{sT1}, s{sT1}, s{sT2}
s_mov_b32 m0, {SPARE}
v_lshrrev_b32 v{t}, 4, v{OB}
v_min_u32 v{t}, {per//128-1}, v{t}
v_lshlrev_b32 v{t}, 7, v{t}
""")
        g.vm("pf", f"buffer_load_dword v{t}, s[{sOd}:{sOd+3}], s{sT1} offen {OPT['tf']} lds")
    NEXT = {26: 2, 27: 3, 28: 0, 29: 1}
    def tick(i):
        waits = ([f"O{i+1}"] if i < 29 else []) + kv_tags(i)
        op.flush_pq()
        if waits: g.wait("vm", f"o{i}", waits)
        if OPT["vcap"]: e(f"s_waitcnt vmcnt({OPT['vcap']})")
        e("s_barrier")
        io = []
        if not OPT["burst"]:
            if i == 26: io.append(lambda: e(f"s_add_u32 s{sOB}, s{sOB}, 245760"))
            io += op.dma(NEXT.get(i, i + 4))
        elif i % 2 == 1:
            if i == 27: io.append(lambda: e(f"s_add_u32 s{sOB}, s{sOB}, 245760"))
            io += op.dma(NEXT.get(i - 1, i + 3)) + op.dma(NEXT.get(i, i + 4))
        items = kv_issue(i) + io if OPT["kvfirst"] and i < 28 else io + kv_issue(i)
        if OPT["near"] and i == OPT["near"]: items.append(lambda: touch_o(AF(i + 1, 0) if False else 249))
        for f in items[:OPT["now0"]]: f()
        items = items[OPT["now0"]:]
        for j, f in enumerate(items): op.pq.append((op.clock + OPT["vpost"] + (j * OPT["span"]) // len(items), f))
    def q_write(reg):
        for rt in range(7):
            for k in range(3): e(f"ds_write_b64 v{AC(0)+k}, {v(reg(rt,k),2)} offset:{QO+rt*1024}")
        e("s_waitcnt lgkmcnt(0)")
    def q_addr():
        t = AC(1)
        e(f"v_lshrrev_b32 v{t}, 5, v{OB}")
        e(f"v_and_b32 v{t}, 8, v{t}")
        e(f"v_add_u32 v{t}, v{t}, v{OB}")
        for k in range(3):
            e(f"""
s_mul_i32 s{sT1}, s{sW4}, 3
s_add_u32 s{sT1}, s{sT1}, {k}
s_lshr_b32 s{sT2}, s{sT1}, 1
s_mul_i32 s{sT2}, s{sT2}, 7168
s_and_b32 s{sT1}, s{sT1}, 1
s_lshl_b32 s{sT1}, s{sT1}, 3
v_xor_b32 v{AC(0)+k}, s{sT1}, v{t}
v_add_u32 v{AC(0)+k}, s{sT2}, v{AC(0)+k}
""")

    K0, NQ = OPT["k0"], OPT["nq"]
    e(f"""
s_mov_b32 s{sSLOT}, 1
s_mov_b32 s{sRX}, 0x01000c0c
s_mov_b32 s{sRX+1}, 0x03020c0c
""")
    for k in range(21):
        for x in range(2): e(f"v_mov_b32 v{4*k+2+x}, v{84+4*k+x}")
    for x in range(2): e(f"v_subrev_u32 v{QXA[x]}, {X9}, v{QXA[x]}")
    for u in range(NPRE):
        g.vq.append(f"U{u}"); g.issued[f"U{u}"] = 1
    st.update(pub=0, iss=NPRE)
    g.wait("vm", "i_t0", kv_tags(-1))
    e("s_barrier")
    stamp_slot(e)
    def w3(i): return w_dma(g, i, 3, T1R + (i % 4) * TILE, f"W{i}")
    def x3(pp): return x_dma(g, pp, QO + (pp % 3) * 14336)
    for f in w3(0) + w3(1): f()
    for u in range(NPRE, N0 - 96): dma_sub(u)()
    st["iss"] = N0 - 96
    e("s_barrier")
    for f in x3(0) + w3(2) + x3(1) + w3(3): f()
    def tick1(k, waits=(), issue=()):
        w = list(waits) + kv_tags(k)
        if w: g.wait("vm", f"i{k}", w)
        e("s_barrier")
        for f in kv_issue(k) + list(issue): f()
    def qa(i, n):
        k, hf = divmod(n, 2)
        g.ld(f"{i}a{k}", f"ds_read_b64_tr_b16 {v(QAF(i&1,0,k)+2*hf,2)}, v{QRA[1][k]} offset:{(i%4)*TILE+hf*1536}")
    def qb(i, rt):
        g.ld(f"{i}b{rt}", f"ds_read_b128 {v(QBF(7*i+rt),4)}, v{QXA[i&1]} offset:{((i>>1)%3)*14336+rt*2048}")
    for k in range(K0): tick1(k, ["W0", "X0"] if k == K0 - 1 else [])
    qa(0, 0); qa(0, 1); qb(0, 0); qb(0, 1)
    for n in range(2, 6): qa(0, n)
    qb(0, 2); qb(0, 3)
    A0 = [NQ + 2, NQ + 3, NQ + 5, NQ + 6, NQ + 8, NQ + 9]
    for i in range(20):
        for n in range(21):
            rt, k = divmod(n, 3)
            if n == NQ and i < 19:
                tick1(K0 + i, [f"W{i+1}"] + ([f"X{(i+1)//2}"] if i % 2 == 1 else []),
                      (w3(i + 4) if i + 4 < 20 else []) + (x3(i // 2 + 2) if i % 2 == 0 and i // 2 + 2 < 10 else []))
            tags = ([f"{i}b{rt}"] if k == 0 else []) + ([f"{i}a{k}"] if rt == 0 else [])
            if tags: g.wait("lg", f"q{i}m{n}", tags)
            mfma(e, QAC(1, rt, k), QAF(i & 1, 0, k), QBF(7 * i + rt), "0" if i == 0 else QAC(1, rt, k))
            if k == 2:
                if rt + 4 < 7: qb(i, rt + 4)
                elif i < 19: qb(i + 1, rt - 3)
            if i < 19 and n in A0: qa(i + 1, A0.index(n))
            if i == 19 and n >= 4: q_cvt(e, QAC(1, (n - 4) // 3, (n - 4) % 3))
    for n in range(17, 21): q_cvt(e, QAC(1, n // 3, n % 3))
    tick1(K0 + 19)
    for rt in range(7):
        for k in range(3): e(f"ds_write_b64 v{QB[k] if rt < 6 else QT[k]}, {v(QAC(1,rt,k),2)} offset:{rt*1024 if rt < 6 else 0}")
    e(f"v_mov_b32 v232, {SPARE + 1024 + 256}")
    e("v_mov_b32 v234, 0")
    e("v_mov_b32 v235, 0")
    e("ds_write_b64 v232, v[234:235]")
    e("ds_write_b64 v232, v[234:235] offset:8")
    e("s_waitcnt lgkmcnt(0)")
    tick1(K0 + 20)
    tick1(K0 + 21)
    for rt in range(7):
        for k in range(3): e(f"ds_write_b64 v{QW[k]}, {v(QAC(0,rt,k),2)} offset:{QO+rt*1024}")
    e(f"""
s_waitcnt lgkmcnt(0)
s_mul_i32 s{sOB}, s{sW4}, {8*1280}
s_lshl_b32 s{sLW}, s{sW4}, 11
""")
    op.addr_setup()
    for k in range(21):
        for x in range(2): e(f"v_mov_b32 v{Q2(k)+x}, v{4*k+2+x}")
    for k in range(K0 + 22, NX):
        tick1(k, [], op.dma(NEXT[k]) if k >= 26 else [])
        if k == K0 + 22 and OPT["touch"]: touch_o(AF(0, 0))
    for s in range(2, 5):
        if s != 2: g.mute += 1
        g.label("t1_slot")
        assert st["iss"] == N0
        st.update(pub=0, iss=N0 - 96, mixed=1)
        e(f"""
s_add_u32 s{sSLOT}, s{sSLOT}, 1
s_add_u32 s{sKSO2}, s{sKSO2}, 196608
s_cmp_eq_u32 s{sSLOT}, 2
s_cselect_b32 s{sSLO}, 0x0c0c0c0c, s{sRX}
s_cselect_b32 s{sSHI}, 0x0c0c0c0c, s{sRX+1}
""")
        g.wait("vm", "t0", kv_tags(-1))
        e("s_barrier")
        if not g.mute: stamp_slot(e)
        if OPT["touch"] and not OPT["near"]: touch_o(AF(0, 0))
        for k in range(14):
            for x in op.unpack_l(AC(k), PK(k)): e(x)
        g.wait("vm", "o_in", ["O0"])
        e("s_barrier")
        stamp_if(e, 12, OPT["ps"])
        op.first_reads(0)
        for i in range(30): op.step("m", i, 29, tick)
        stamp_if(e, 13, OPT["ps"])
        tick(29)
        op.finish()
        e(f"s_cmp_lg_u32 s{sSLOT}, 2")
        e("s_cbranch_scc1 t1_noq2")
        for k in range(3): e(f"v_mov_b32 v{BF(0)+k}, v{AC(0)+k}")
        e(f"v_mov_b32 v{BF(0)+3}, v{AC(1)}")
        q_addr()
        q_write(lambda rt, k: Q2(rt * 3 + k))
        for k in range(3): e(f"v_mov_b32 v{AC(0)+k}, v{BF(0)+k}")
        e(f"v_mov_b32 v{AC(1)}, v{BF(0)+3}")
        g.label("t1_noq2")
        for n in range(14):
            for x in op.pack_l(PK(56 + n), AC(n)): e(x)
        e(f"s_cmp_lg_u32 s{sSLOT}, 4")
        e("s_cbranch_scc1 t1_slot")
        if s != 2: g.mute -= 1
    g.label("t1_last")
    op.fl = OPT["wo5"]; op.nr = OPT["r5"]; op.early = OPT["early"] & 1; op.pkb = OPT["pkb"] >> 1
    R5 = op.nr
    e(f"""
s_mov_b32 s{sSLOT}, 5
s_lshl_b32 s{sT1}, s{sW4}, 10
s_add_u32 s{sT1}, s{sT1}, {KVB + 32768}
v_add_u32 v249, s{sT1}, v{OB}
""")
    def pk_write(ps):
        for rt in range(7): g.ld("pk", f"ds_write_b128 v249, {v(PK(ps*14+rt*2),4)} offset:{rt*4096}")
    for k in range(14):
        for x in op.unpack_l(AC(k), PK(k)): e(x)
    e("s_waitcnt vmcnt(0)"); g.vq[:] = []
    e("s_barrier")
    stamp_slot(e)
    for i in range(4, R5):
        for f in op.dma(i): f()
    pk_write(3)
    e("s_waitcnt lgkmcnt(0)"); g.lq[:] = []
    e("s_barrier")
    stamp_if(e, 12, OPT["ps"])
    g.issued.pop("O0")
    op.first_reads(0)
    def tick5(i):
        op.flush_pq()
        if i > OPT["lastb"]: return
        if i == 2: g.wait("lg", "pkw", ["pk"])
        g.wait("vm", f"f{i}", [f"O{x}" for x in range(i + 1, 18 if i == OPT["lastb"] else i + 2)] + (["st"] if i == OPT["lastb"] and not OPT["oldfin"] else []))
        e("s_barrier")
        if i + R5 < 18:
            for f in op.dma(i + R5): f()
    g.issued.pop("pk")
    for i in range(18):
        op.step("f", i, 17, tick5, store=[0], hooks={5: lambda: pk_write(4)} if i == 1 else None)
    op.finish()
    stamp_if(e, 13, OPT["ps"])
    g.label("t1_exit")
    return g.rec

sG, sMASK, sQ, sPEND, sDOK = 4, 5, 6, 7, 21
sD, sA, sOUT, sF = 8, 32, 36, 40
sOK = 20
sLD, sST = 12, 16
def fin_setup(e):
    e(f"""
s_and_b32 s{sG}, s2, 7
s_cmp_lt_u32 s{sG}, 4
s_cselect_b32 s{sG}, 0, 16
s_add_u32 s{sG}, s{sG}, s{sB}
s_mov_b32 s{sD}, s26
s_mov_b32 s{sD+1}, s27
s_mov_b32 s{sD+2}, 256
s_mov_b32 s{sD+3}, 0x20000
s_lshl_b32 s{sT2}, s{sG}, 10
s_add_u32 s{sT2}, s{sT2}, {FLAG0}
s_add_u32 s{sF}, s28, s{sT2}
s_addc_u32 s{sF+1}, s29, 0
s_mov_b32 s{sF+2}, 1024
s_mov_b32 s{sF+3}, 0x20000
s_mul_i32 s{sT1}, s{sG}, {8*PART_CU}
s_add_u32 s{sT1}, s{sT1}, {PART0}
s_add_u32 s{sA}, s28, s{sT1}
s_addc_u32 s{sA+1}, s29, 0
s_mov_b32 s{sA+2}, {8*PART_CU}
s_mov_b32 s{sA+3}, 0x20000
s_mul_i32 s{sT1}, s{sB}, {112*2560}
s_lshr_b32 s{sT2}, s{sG}, 4
s_mul_i32 s{sT2}, s{sT2}, 1280
s_add_u32 s{sT1}, s{sT1}, s{sT2}
s_add_u32 s{sOUT}, s24, s{sT1}
s_addc_u32 s{sOUT+1}, s25, 0
s_sub_u32 s{sOUT+2}, {112*2560}, s{sT2}
s_mov_b32 s{sOUT+3}, 0x20000
s_mov_b32 s{sPEND}, 0xff
s_mov_b32 s{sDOK}, 0
s_mov_b32 s{sCTR}, 0
s_mov_b32 s{sQ}, s{sQUAD}
s_lshl_b32 s{sG}, s{sG}, 2
v_mbcnt_lo_u32_b32 v216, -1, 0
v_mbcnt_hi_u32_b32 v216, -1, v216
v_lshlrev_b32 v217, 4, v216
v_and_b32 v218, 15, v216
v_lshrrev_b32 v219, 4, v216
v_mul_u32_u24 v220, 272, v218
v_lshl_add_u32 v220, v219, 3, v220
s_mul_i32 s{sT2}, s{sTEAM}, {4*4352}
s_add_u32 s{sT2}, s{sT2}, {KVB}
s_lshl_b32 s{sT1}, s{sW4}, 6
s_add_u32 s{sT1}, s{sT1}, s{sT2}
v_add_u32 v220, s{sT1}, v220
s_mul_i32 s{sT1}, s{sW4}, {4*272}
s_add_u32 s{sT1}, s{sT1}, s{sT2}
v_mul_u32_u24 v221, 272, v219
v_lshl_add_u32 v221, v218, 4, v221
v_add_u32 v221, s{sT1}, v221
v_mul_u32_u24 v219, 2560, v219
v_lshl_add_u32 v218, v218, 4, v219
v_and_b32 v222, 7, v216
v_lshlrev_b32 v222, 7, v222
v_mov_b32 v223, 0
""")
FINL = SPARE + 1024 + 256
def slice_setup(e):
    for k in range(4):
        e(f"""
s_add_u32 s{sT1}, s{sQ}, {8*k}
s_cmp_lt_u32 s{sT1}, 28
s_cselect_b32 s{sOK}, 1, 0
s_cmp_ge_u32 s{sT1}, 14
s_cselect_b32 s{sT2}, 7, 0
s_add_u32 s{sT1}, s{sT1}, s{sT2}
""")
        if k == 0:
            e(f"""
s_cmp_eq_u32 s{sTEAM}, 0
s_cbranch_scc1 k1_ss{slice_setup.n}
s_add_u32 s{sT1}, s{sQ}, 14
s_cmp_lt_u32 s{sQ}, 7
s_cselect_b32 s{sOK}, 1, 0
k1_ss{slice_setup.n}:
""")
            slice_setup.n += 1
        e(f"""
s_mul_i32 s{sT2}, s{sW4}, 35
s_add_u32 s{sT2}, s{sT2}, s{sT1}
s_lshl_b32 s{sT2}, s{sT2}, 10
s_cmp_lg_u32 s{sOK}, 0
s_cselect_b32 s{sLD+k}, s{sT2}, {8*PART_CU}
s_mul_i32 s{sT2}, s{sT1}, 37
s_lshr_b32 s{sT2}, s{sT2}, 8
s_mul_i32 s{sT3}, s{sT2}, 7
s_sub_u32 s{sT3}, s{sT1}, s{sT3}
s_lshl_b32 s{sT2}, s{sT2}, 8
s_mul_i32 s{sT3}, s{sT3}, {16*2560}
s_add_u32 s{sT2}, s{sT2}, s{sT3}
s_mul_i32 s{sT3}, s{sW4}, {4*2560}
s_add_u32 s{sT2}, s{sT2}, s{sT3}
s_cmp_lg_u32 s{sOK}, 0
s_cselect_b32 s{sST+k}, s{sT2}, 0x1000000
""")
slice_setup.n = 0
def fin_subs(e):
    e(f"""
k1_round:
s_cmp_lg_u32 s{sDOK}, 0
s_cbranch_scc1 k1_r1
buffer_load_dword v224, v223, s[{sD}:{sD+3}], s{sG} offen sc1
s_waitcnt vmcnt(0)
v_readfirstlane_b32 s{sT1}, v224
s_cmp_eq_u32 s{sT1}, 8
s_cselect_b32 s{sDOK}, 1, 0
s_cbranch_scc0 k1_rret
k1_r1:
buffer_load_dword v224, v222, s[{sF}:{sF+3}], 0 offen sc1
s_waitcnt vmcnt(0)
v_cmp_eq_u32 vcc, 1, v224
s_and_b32 s{sT3}, vcc_lo, s{sPEND}
k1_loads:
s_andn2_b32 s{sPEND}, s{sPEND}, s{sT3}
""")
    for q in range(8):
        e(f"s_bitcmp1_b32 s{sT3}, {q}")
        e(f"s_cbranch_scc0 k1_l{q}")
        for k in range(4):
            e(f"s_add_u32 s{sT1}, s{sLD+k}, {q*PART_CU}")
            e(f"buffer_load_dwordx4 {v(8+32*k+4*q,4)}, v217, s[{sA}:{sA+3}], s{sT1} offen {OPT['rd']}")
            if k == 0:
                e(f"s_cmp_lg_u32 s{sTEAM}, 0")
                e(f"s_cbranch_scc1 k1_l{q}")
        e(f"k1_l{q}:")
    e(f"""
k1_rret:
s_setpc_b64 s[{sRET}:{sRET+1}]
""")
def final_reduce(p):
    slice_setup.n = 0
    e = p
    e.label("k1_final")
    if OPT["two"]:
        if OPT["prof"]: e("s_waitcnt vmcnt(0)")
        stamp(e, 10); stamp(e, 11, real=True)
        dump_stamps(e, 28, 64 << 20, 8)
        return
    fin_setup(e); slice_setup(e)
    e(f"""
v_mov_b32 v225, 1
v_mov_b32 v226, {FINL}
s_lshl_b32 s{sT2}, s{sQUAD}, 7
s_cmp_lg_u32 s{sTEAM}, 0
s_cbranch_scc1 k1_f1
s_cmp_lg_u32 s{sWAVE}, 0
s_cbranch_scc1 k1_poll
s_mov_b64 exec, 1
buffer_store_dword v225, v223, s[{sF}:{sF+3}], s{sT2} offen sc1
s_mov_b64 exec, -1
s_branch k1_poll
k1_f1:
v_add_u32 v222, 4, v222
s_waitcnt vmcnt(0)
""")
    stamp(e, 9, real=bool(OPT["rt"]))
    e(f"""
s_mov_b64 exec, 1
ds_add_rtn_u32 v224, v226, v225 offset:8
s_waitcnt lgkmcnt(0)
v_readfirstlane_b32 s{sT1}, v224
s_cmp_lg_u32 s{sT1}, 3
s_cbranch_scc1 k1_f2
buffer_store_dword v225, v223, s[{sF}:{sF+3}], s{sT2} offen offset:4 sc1
buffer_atomic_add v225, v223, s[{sD}:{sD+3}], s{sG} offen offset:128 sc0 sc1
s_waitcnt vmcnt(0)
v_readfirstlane_b32 s{sT2}, v225
s_and_b32 s{sT3}, s{sT2}, 0xff
s_bfe_u32 s{sT2}, s{sT2}, 0x80008
s_cmp_eq_u32 s{sT3}, 7
s_cselect_b32 s{sT2}, s{sT2}, 0
v_mov_b32 v225, s{sT2}
ds_write_b32 v226, v225 offset:4
k1_f2:
s_mov_b64 exec, -1
k1_poll:
s_call_b64 s[{sRET}:{sRET+1}], k1_round
s_add_u32 s{sCTR}, s{sCTR}, 1
s_cmp_eq_u32 s{sPEND}, 0
s_cbranch_scc1 k1_pd
s_cmp_lt_u32 s{sCTR}, {OPT['spin']}
s_cbranch_scc1 k1_poll
k1_pd:
s_mov_b32 s{sOK}, 0
s_cmp_lg_u32 s{sPEND}, 0
s_cbranch_scc1 k1_np
s_call_b64 s[{sRET}:{sRET+1}], k1_sums
s_mov_b32 s{sOK}, 1
k1_np:
s_waitcnt lgkmcnt(0)
s_barrier
s_cmp_lg_u32 s{sWAVE}, 4
s_cbranch_scc1 k1_fw
s_lshl_b32 s{sMASK}, 1, s{sQUAD}
s_mov_b64 exec, 1
s_cmp_eq_u32 s{sPEND}, 0
s_cbranch_scc1 k1_go
s_lshl_b32 s{sT2}, s{sMASK}, 8
v_mov_b32 v225, s{sT2}
buffer_atomic_or v225, v223, s[{sD}:{sD+3}], s{sG} offen offset:128 sc0 sc1
s_waitcnt vmcnt(0)
v_readfirstlane_b32 s{sT2}, v225
s_and_b32 s{sT2}, s{sT2}, 0xff
s_cmp_eq_u32 s{sT2}, 8
s_cselect_b32 s{sMASK}, s{sMASK}, 0
k1_go:
v_mov_b32 v225, s{sMASK}
ds_write_b32 v226, v225
s_waitcnt lgkmcnt(0)
s_mov_b64 exec, -1
k1_fw:
""")
    def sums(k):
        for i in range(4):
            r = 8 + 32 * k + i
            e(f"v_lshlrev_b32 v{140+2*i}, 16, v{r}")
            e(f"v_and_b32 v{141+2*i}, 0xffff0000, v{r}")
        for q in range(1, 8):
            for i in range(4):
                r = 8 + 32 * k + 4 * q + i
                e(f"v_lshlrev_b32 v{148+2*(i&1)}, 16, v{r}")
                e(f"v_and_b32 v{149+2*(i&1)}, 0xffff0000, v{r}")
                e(f"v_pk_add_f32 {v(140+2*i,2)}, {v(140+2*i,2)}, {v(148+2*(i&1),2)}")
        for i in range(4): e(f"v_cvt_pk_bf16_f32 v{152+4*k+i}, v{140+2*i}, v{141+2*i}")
        e(f"ds_write_b64 v220, {v(152+4*k,2)} offset:{k*4352}")
        e(f"ds_write_b64 v220, {v(154+4*k,2)} offset:{k*4352+32}")
    e(f"""
s_barrier
ds_read_b64 v[224:225], v226
s_waitcnt lgkmcnt(0)
v_or_b32 v224, v224, v225
v_readfirstlane_b32 s{sMASK}, v224
""")
    stamp(e, 8, real=bool(OPT["rt"]))
    e(f"""
s_bitcmp1_b32 s{sMASK}, s{sQ}
s_cbranch_scc1 k1_own0
k1_slice:
s_cmp_eq_u32 s{sMASK}, 0
s_cbranch_scc1 k1_done
s_ff1_i32_b32 s{sQ}, s{sMASK}
s_mov_b32 s{sPEND}, 0xff
s_waitcnt vmcnt(0)
""")
    slice_setup(e)
    e(f"""
s_mov_b32 s{sOK}, 0
k1_own0:
s_bitset0_b32 s{sMASK}, s{sQ}
s_cmp_lg_u32 s{sOK}, 0
s_cbranch_scc1 k1_s0
s_mov_b32 s{sT3}, s{sPEND}
s_call_b64 s[{sRET}:{sRET+1}], k1_loads
s_call_b64 s[{sRET}:{sRET+1}], k1_sums
k1_s0:
s_waitcnt lgkmcnt(0)
s_barrier
""")
    if OPT["fs"]: stamp(e, 15, real=True)
    for k in range(4): e(f"ds_read_b128 {v(168+4*k,4)}, v221 offset:{k*4352}")
    for k in range(4):
        e(f"s_waitcnt lgkmcnt({3-k})")
        e(f"buffer_store_dwordx4 {v(168+4*k,4)}, v218, s[{sOUT}:{sOUT+3}], s{sST+k} offen {OPT['of']}")
        if k == 0:
            e(f"s_cmp_lg_u32 s{sTEAM}, 0")
            e("s_cbranch_scc1 k1_s2")
    e(f"""
k1_s2:
s_cmp_eq_u32 s{sMASK}, 0
s_cbranch_scc1 k1_done
s_waitcnt lgkmcnt(0)
s_barrier
s_branch k1_slice
""")
    e("k1_sums:")
    e("s_waitcnt vmcnt(0)")
    if OPT["fs"]: stamp(e, 14, real=True)
    sums(0)
    e(f"s_cmp_lg_u32 s{sTEAM}, 0")
    e("s_cbranch_scc1 k1_s1")
    for k in range(1, 4): sums(k)
    e("k1_s1:")
    e(f"s_setpc_b64 s[{sRET}:{sRET+1}]")
    fin_subs(e)
    e("k1_done:")
    if OPT["prof"]: e("s_waitcnt vmcnt(0)")
    stamp(e, 10); stamp(e, 11, real=True)
    dump_stamps(e, 28, 64 << 20, 8)

def final_reduce_old(p):
    e = p
    sG, sMASK, sQ, sBL = 4, 5, 6, 7
    sD, sA, sOUT = 8, 32, 36
    e.label("k1_final")
    if OPT["two"]:
        if OPT["prof"]: e("s_waitcnt vmcnt(0)")
        stamp(e, 10); stamp(e, 11, real=True)
        dump_stamps(e, 28, 64 << 20, 8)
        return
    e(f"""
s_waitcnt vmcnt(0)
s_barrier
""")
    stamp(e, 9, real=bool(OPT["rt"]))
    e(f"""
s_and_b32 s{sG}, s2, 7
s_cmp_lt_u32 s{sG}, 4
s_cselect_b32 s{sG}, 0, 16
s_add_u32 s{sG}, s{sG}, s{sB}
v_mbcnt_lo_u32_b32 v2, -1, 0
v_mbcnt_hi_u32_b32 v2, -1, v2
s_cmp_gt_u32 s{sWAVE}, 1
s_cbranch_scc1 k1_fw
s_mov_b32 s{sD}, s26
s_mov_b32 s{sD+1}, s27
s_mov_b32 s{sD+2}, 256
s_mov_b32 s{sD+3}, 0x20000
s_lshl_b32 s{sT1}, s{sG}, 2
v_mov_b32 v3, 0
v_mov_b32 v4, 1
s_cmp_eq_u32 s{sWAVE}, 0
s_cbranch_scc1 k1_w0
s_mov_b64 exec, 1
buffer_atomic_add v4, v3, s[{sD}:{sD+3}], s{sT1} offen offset:128 sc0 sc1
s_waitcnt vmcnt(0)
v_readfirstlane_b32 s{sT2}, v4
s_and_b32 s{sT3}, s{sT2}, 0xff
s_bfe_u32 s{sT2}, s{sT2}, 0x80008
s_cmp_eq_u32 s{sT3}, 7
s_cselect_b32 s{sT2}, s{sT2}, 0
v_mov_b32 v4, s{sT2}
ds_write_b32 v3, v4 offset:4
s_waitcnt lgkmcnt(0)
s_mov_b64 exec, -1
s_branch k1_fw
k1_w0:
s_lshl_b32 s{sMASK}, 1, s{sQUAD}
s_lshl_b32 s{sT2}, s{sG}, 10
s_add_u32 s{sT2}, s{sT2}, {FLAG0}
s_add_u32 s{sA}, s28, s{sT2}
s_addc_u32 s{sA+1}, s29, 0
s_mov_b32 s{sA+2}, 1024
s_mov_b32 s{sA+3}, 0x20000
s_lshl_b32 s{sT2}, s{sQUAD}, 7
s_mov_b64 exec, 1
buffer_store_dword v4, v3, s[{sA}:{sA+3}], s{sT2} offen sc1
s_mov_b64 exec, 0xff
v_lshlrev_b32 v5, 7, v2
s_mov_b32 s{sCTR}, 0
k1_poll:
buffer_load_dword v6, v3, s[{sD}:{sD+3}], s{sT1} offen sc1
buffer_load_dword v4, v5, s[{sA}:{sA+3}], 0 offen sc1
s_waitcnt vmcnt(1)
v_cmp_ne_u32 vcc, 8, v6
s_cbranch_vccnz k1_again
k1_poll2:
s_waitcnt vmcnt(0)
v_cmp_ne_u32 vcc, 1, v4
s_cbranch_vccz k1_go
s_add_u32 s{sCTR}, s{sCTR}, 1
s_cmp_lt_u32 s{sCTR}, {OPT['spin']}
s_cbranch_scc0 k1_late
buffer_load_dword v4, v5, s[{sA}:{sA+3}], 0 offen sc1
s_branch k1_poll2
k1_again:
s_waitcnt vmcnt(0)
s_add_u32 s{sCTR}, s{sCTR}, 1
s_cmp_lt_u32 s{sCTR}, {OPT['spin']}
s_cbranch_scc1 k1_poll
k1_late:
s_mov_b64 exec, 1
s_lshl_b32 s{sT2}, s{sMASK}, 8
v_mov_b32 v4, s{sT2}
buffer_atomic_or v4, v3, s[{sD}:{sD+3}], s{sT1} offen offset:128 sc0 sc1
s_waitcnt vmcnt(0)
v_readfirstlane_b32 s{sT2}, v4
s_and_b32 s{sT2}, s{sT2}, 0xff
s_cmp_eq_u32 s{sT2}, 8
s_cselect_b32 s{sMASK}, s{sMASK}, 0
k1_go:
s_mov_b64 exec, 1
v_mov_b32 v4, s{sMASK}
ds_write_b32 v3, v4
s_waitcnt lgkmcnt(0)
s_mov_b64 exec, -1
k1_fw:
s_mul_i32 s{sT1}, s{sG}, {8*PART_CU}
s_add_u32 s{sT1}, s{sT1}, {PART0}
s_add_u32 s{sA}, s28, s{sT1}
s_addc_u32 s{sA+1}, s29, 0
s_mov_b32 s{sA+2}, {8*PART_CU}
s_mov_b32 s{sA+3}, 0x20000
s_mul_i32 s{sT1}, s{sB}, {112*2560}
s_lshr_b32 s{sT2}, s{sG}, 4
s_mul_i32 s{sT2}, s{sT2}, 1280
s_add_u32 s{sT1}, s{sT1}, s{sT2}
s_add_u32 s{sOUT}, s24, s{sT1}
s_addc_u32 s{sOUT+1}, s25, 0
s_sub_u32 s{sOUT+2}, {112*2560}, s{sT2}
s_mov_b32 s{sOUT+3}, 0x20000
v_lshlrev_b32 v3, 4, v2
v_and_b32 v4, 15, v2
v_lshrrev_b32 v5, 4, v2
v_mul_u32_u24 v6, 272, v4
v_lshl_add_u32 v6, v5, 3, v6
s_mul_i32 s{sT2}, s{sTEAM}, {3*4352}
s_add_u32 s{sT2}, s{sT2}, 2048
s_lshl_b32 s{sT1}, s{sW4}, 6
s_add_u32 s{sT1}, s{sT1}, s{sT2}
v_add_u32 v6, s{sT1}, v6
s_mul_i32 s{sT1}, s{sW4}, {4*272}
s_add_u32 s{sT1}, s{sT1}, s{sT2}
v_mul_u32_u24 v7, 272, v5
v_lshl_add_u32 v7, v4, 4, v7
v_add_u32 v7, s{sT1}, v7
v_mul_u32_u24 v5, 2560, v5
v_lshl_add_u32 v4, v4, 4, v5
v_mov_b32 v5, 0
s_barrier
ds_read_b64 v[8:9], v5
s_waitcnt lgkmcnt(0)
v_or_b32 v5, v8, v9
v_readfirstlane_b32 s{sMASK}, v5
""")
    stamp(e, 8, real=bool(OPT["rt"]))
    e(f"""
k1_slice:
s_cmp_eq_u32 s{sMASK}, 0
s_cbranch_scc1 k1_done
s_ff1_i32_b32 s{sQ}, s{sMASK}
s_bitset0_b32 s{sMASK}, s{sQ}
s_lshl_b32 s{sBL}, s{sTEAM}, 3
s_add_u32 s{sBL}, s{sBL}, s{sQ}
""")
    for k in range(3):
        e(f"""
s_add_u32 s{sT1}, s{sBL}, {16*k}
s_mul_i32 s{sT2}, s{sW4}, 35
s_add_u32 s{sT2}, s{sT2}, s{sT1}
s_lshl_b32 s{sT2}, s{sT2}, 10
s_cmp_lt_u32 s{sT1}, 35
s_cselect_b32 s{sT2}, s{sT2}, {8*PART_CU}
""")
        for q in range(8):
            r = 8 + 32 * k + 4 * q
            e(f"buffer_load_dwordx4 {v(r,4)}, v3, s[{sA}:{sA+3}], s{sT2} offen {OPT['rd']}")
            if q < 7: e(f"s_add_u32 s{sT2}, s{sT2}, {PART_CU}")
        e(f"""
s_mul_i32 s{sT2}, s{sT1}, 37
s_lshr_b32 s{sT2}, s{sT2}, 8
s_mul_i32 s{sT3}, s{sT2}, 7
s_sub_u32 s{sT3}, s{sT1}, s{sT3}
s_lshl_b32 s{sT2}, s{sT2}, 8
s_mul_i32 s{sT3}, s{sT3}, {16*2560}
s_add_u32 s{sT2}, s{sT2}, s{sT3}
s_mul_i32 s{sT3}, s{sW4}, {4*2560}
s_add_u32 s{sT2}, s{sT2}, s{sT3}
s_cmp_lt_u32 s{sT1}, 35
s_cselect_b32 s{12+k}, s{sT2}, 0x1000000
""")
    for k in range(3):
        for q in range(8):
            e(f"s_waitcnt vmcnt({23-8*k-q})")
            if OPT["fs"] and (k, q) in ((0, 0), (0, 7), (2, 7)): stamp(e, {(0, 0): 12, (0, 7): 13, (2, 7): 14}[(k, q)], real=True)
            for i in range(4):
                r = 8 + 32 * k + 4 * q + i
                if q == 0:
                    e(f"v_lshlrev_b32 v{104+2*i}, 16, v{r}")
                    e(f"v_and_b32 v{105+2*i}, 0xffff0000, v{r}")
                else:
                    e(f"v_lshlrev_b32 v112, 16, v{r}")
                    e(f"v_and_b32 v113, 0xffff0000, v{r}")
                    e(f"v_add_f32 v{104+2*i}, v{104+2*i}, v112")
                    e(f"v_add_f32 v{105+2*i}, v{105+2*i}, v113")
        for i in range(4): e(f"v_cvt_pk_bf16_f32 v{116+4*k+i}, v{104+2*i}, v{105+2*i}")
        e(f"ds_write_b64 v6, {v(116+4*k,2)} offset:{k*4352}")
        e(f"ds_write_b64 v6, {v(118+4*k,2)} offset:{k*4352+32}")
    e("s_waitcnt lgkmcnt(0)")
    e("s_barrier")
    if OPT["fs"]: stamp(e, 15, real=True)
    for k in range(3): e(f"ds_read_b128 {v(128+4*k,4)}, v7 offset:{k*4352}")
    for k in range(3):
        e(f"s_waitcnt lgkmcnt({2-k})")
        e(f"buffer_store_dwordx4 {v(128+4*k,4)}, v4, s[{sOUT}:{sOUT+3}], s{12+k} offen {OPT['of']}")
    e("""
s_barrier
s_branch k1_slice
k1_done:
""")
    if OPT["prof"]: e("s_waitcnt vmcnt(0)")
    stamp(e, 10); stamp(e, 11, real=True)
    dump_stamps(e, 28, 64 << 20, 8)

def build(needs):
    p = Prog()
    p(f"""
.globl {NAME}_kernel
.p2align 8
.type {NAME}_kernel,@function
{NAME}_kernel:
s_cmp_ge_u32 s2, 256
s_cbranch_scc1 k1_end
s_load_dwordx16 s[4:19], s[0:1], 0
s_load_dwordx8 s[20:27], s[0:1], 64
s_load_dwordx2 s[28:29], s[0:1], 96
v_lshrrev_b32 v1, 6, v0
v_and_b32 v2, 63, v0
v_readfirstlane_b32 s{sWAVE}, v1
s_and_b32 s{sT1}, s2, 7
s_lshr_b32 s{sT2}, s2, 3
""")
    if OPT["map"] == 0:
        p(f"""
s_and_b32 s{sQUAD}, s{sT1}, 3
s_lshl_b32 s{sQUAD}, s{sQUAD}, 1
s_and_b32 s{sB}, s{sT2}, 1
s_add_u32 s{sQUAD}, s{sQUAD}, s{sB}
s_lshr_b32 s{sB}, s{sT2}, 1
""")
    else:
        p(f"""
s_and_b32 s{sQUAD}, s{sT1}, 1
s_lshl_b32 s{sQUAD}, s{sQUAD}, 2
s_and_b32 s{sB}, s{sT2}, 3
s_add_u32 s{sQUAD}, s{sQUAD}, s{sB}
s_and_b32 s{sB}, s{sT1}, 2
s_lshl_b32 s{sB}, s{sB}, 2
s_lshr_b32 s{sT2}, s{sT2}, 2
s_add_u32 s{sB}, s{sB}, s{sT2}
""")
    p(f"""
s_and_b32 s{sW4}, s{sWAVE}, 3
s_lshr_b32 s{sTEAM}, s{sWAVE}, 2
s_mul_i32 s{sLW}, s{sW4}, 3072
s_mov_b32 s{sKd+2}, {0 if OPT['nokv'] else 786432}
s_mov_b32 s{sKd+3}, 0x20000
s_mov_b32 s{sVd+2}, {0 if OPT['nokv'] else 786432}
s_mov_b32 s{sVd+3}, 0x20000
s_mov_b32 s{sWd+3}, 0x20000
s_mov_b32 s{sOd+2}, {0 if OPT['now'] else 983040}
s_mov_b32 s{sOd+3}, 0x20000
s_mov_b32 s{sXd+2}, {0 if OPT['nox'] else 143360}
s_mov_b32 s{sXd+3}, 0x20000
s_mov_b32 s{sPd+2}, {35840+QO}
s_mov_b32 s{sPd+3}, 0x20000
s_waitcnt lgkmcnt(0)
s_cmp_lt_u32 s{sT1}, 4
s_cselect_b64 s[4:5], s[4:5], s[14:15]
s_cselect_b64 s[6:7], s[6:7], s[16:17]
s_cselect_b64 s[8:9], s[8:9], s[18:19]
s_cselect_b64 s[10:11], s[10:11], s[20:21]
s_cselect_b64 s[12:13], s[12:13], s[22:23]
s_cselect_b32 s{sT3}, 0, 16
s_mul_i32 s{sT2}, s{sB}, 143360
s_add_u32 s{sXd}, s4, s{sT2}
s_addc_u32 s{sXd+1}, s5, 0
s_mul_i32 s{sT2}, s{sQUAD}, 1536
s_add_u32 s{sWd}, s10, s{sT2}
s_addc_u32 s{sWd+1}, s11, 0
s_sub_u32 s{sWd+2}, 7864320, s{sT2}
{'s_mov_b32 s%d, 0' % (sWd+2) if OPT['now'] else ''}
s_lshl_b32 s{sT1}, s{sB}, 3
s_add_u32 s{sT1}, s{sT1}, s{sQUAD}
s_mul_i32 s{sT2}, s{sT1}, 786432
s_add_u32 s{sKd}, s6, s{sT2}
s_addc_u32 s{sKd+1}, s7, 0
s_add_u32 s{sVd}, s8, s{sT2}
s_addc_u32 s{sVd+1}, s9, 0
s_mul_i32 s{sT2}, s{sQUAD}, 983040
s_add_u32 s{sOd}, s12, s{sT2}
s_addc_u32 s{sOd+1}, s13, 0
s_lshl_b32 s{sT3}, s{sT3}, 3
s_add_u32 s{sT1}, s{sT1}, s{sT3}
s_mul_i32 s{sT1}, s{sT1}, {PART_CU}
s_mul_i32 s{sT2}, s{sW4}, 35840
s_add_u32 s{sT1}, s{sT1}, s{sT2}
s_add_u32 s{sT1}, s{sT1}, {PART0-QO}
s_add_u32 s{sPd}, s28, s{sT1}
s_addc_u32 s{sPd+1}, s29, 0
""")
    stamp(p, 0); stamp(p, 1, real=True)
    p(f"""
s_cmp_lg_u32 s{sWAVE}, 0
s_cbranch_scc1 k1_noclr
s_and_b32 s{sT1}, s2, 7
s_cmp_lt_u32 s{sT1}, 4
s_cselect_b32 s{sT1}, 0, 16
s_add_u32 s{sGRP}, s{sT1}, s{sB}
s_lshl_b32 s{sT1}, s{sGRP}, 3
s_add_u32 s{sT1}, s{sT1}, s{sQUAD}
s_lshl_b32 s{sT1}, s{sT1}, 7
s_add_u32 s{sT1}, s{sT1}, {FLAG0}
s_add_u32 s4, s28, s{sT1}
s_addc_u32 s5, s29, 0
s_mov_b32 s6, 128
s_mov_b32 s7, 0x20000
v_mov_b32 v2, 0
v_mov_b32 v3, 0
s_mov_b64 exec, 1
buffer_store_dwordx2 v[2:3], v2, s[4:7], 0 offen sc1
s_mov_b64 exec, -1
k1_noclr:
""")
    if OPT["cpf"]:
        p(f"""
s_cmp_lg_u32 s{sWAVE}, 7
s_cbranch_scc1 k1_nocpf
s_getpc_b64 s[4:5]
s_mov_b32 s6, k1_end-k1_nocpf
s_mov_b32 s7, 0x20000
s_lshr_b32 s{sT1}, s2, 3
s_and_b32 s{sT1}, s{sT1}, 31
s_lshl_b32 s{sT1}, s{sT1}, 7
v_and_b32 v1, 31, v0
v_lshlrev_b32 v1, 12, v1
buffer_load_dword v247, v1, s[4:7], s{sT1} offen
k1_nocpf:
""")
    if OPT["tlb"]:
        p(f"""
v_and_b32 v1, 3, v0
v_lshlrev_b32 v1, 18, v1
v_min_u32 v1, {786432-128}, v1
s_cmp_lg_u32 s{sWAVE}, 1
s_cbranch_scc1 k1_t1a
buffer_load_dword v254, v1, s[{sKd}:{sKd+3}], 0 offen nt
k1_t1a:
s_cmp_lg_u32 s{sWAVE}, 2
s_cbranch_scc1 k1_t1b
buffer_load_dword v254, v1, s[{sVd}:{sVd+3}], 0 offen nt
k1_t1b:
s_cmp_lg_u32 s{sWAVE}, 3
s_cbranch_scc1 k1_t1c
buffer_load_dword v254, v1, s[{sOd}:{sOd+3}], 0 offen nt
k1_t1c:
s_cmp_lg_u32 s{sWAVE}, 4
s_cbranch_scc1 k1_t1d
s_and_b32 s{sT1}, s2, 7
s_cmp_lt_u32 s{sT1}, 4
s_cselect_b32 s{sT1}, 0, 16
s_add_u32 s{sT1}, s{sT1}, s{sB}
s_mul_i32 s{sT1}, s{sT1}, {8*PART_CU}
s_add_u32 s{sT1}, s{sT1}, {PART0}
s_add_u32 s4, s28, s{sT1}
s_addc_u32 s5, s29, 0
s_mov_b32 s6, {8*PART_CU}
s_mov_b32 s7, 0x20000
v_and_b32 v1, 7, v0
v_mul_u32_u24 v1, {PART_CU}, v1
buffer_load_dword v254, v1, s[4:7], 0 offen nt sc1
k1_t1d:
s_cmp_lg_u32 s{sWAVE}, 5
s_cbranch_scc1 k1_t1e
s_mul_i32 s{sT1}, s{sB}, {112*2560}
s_add_u32 s4, s24, s{sT1}
s_addc_u32 s5, s25, 0
s_mov_b32 s6, {112*2560}
s_mov_b32 s7, 0x20000
v_and_b32 v1, 1, v0
v_mul_u32_u24 v1, {112*2560-128}, v1
buffer_load_dword v254, v1, s[4:7], 0 offen nt sc1
k1_t1e:
""")
    rec = {}
    p(f"""
s_cmp_ge_u32 s{sWAVE}, 4
s_cbranch_scc1 k1_q1
""")
    rec["qp0"] = qp_phase(p, needs.get("qp0", {}), 0)
    if OPT["prio0"]: p(f"s_setprio {OPT['prio0']}")
    p(f"""
s_cmp_eq_u32 s{sWAVE}, 3
s_cbranch_scc1 k1_light
""")
    rec["h"] = t0_path(p, needs.get("h", {}), 2, "h")
    p.label("k1_light")
    rec["l"] = t0_path(p, needs.get("l", {}), 1, "l")
    rec["f"] = t0_final(p, needs.get("f", {}))
    p.label("k1_q1")
    rec["qp1"] = qp_phase(p, needs.get("qp1", {}), 1)
    p.label("k1_t1")
    if OPT["not1"]: p("s_endpgm")
    if OPT["prio1"]: p(f"s_setprio {OPT['prio1']}")
    rec["t1"] = t1_path(p, needs.get("t1", {}))
    (final_reduce_old if OPT['oldfin'] else final_reduce)(p)
    p("""
k1_end:
s_endpgm
""")
    return p, rec

def reduce_kernel():
    p = Prog()
    p(f"""
.globl reduce_kernel
.p2align 8
.type reduce_kernel,@function
reduce_kernel:
s_cmp_ge_u32 s2, 1120
s_cbranch_scc1 k2_end
s_load_dwordx2 s[8:9], s[0:1], 80
s_load_dwordx2 s[10:11], s[0:1], 96
v_lshrrev_b32 v1, 6, v0
v_and_b32 v2, 63, v0
v_readfirstlane_b32 s3, v1
s_mul_i32 s5, s2, 1873
s_lshr_b32 s5, s5, 16
s_mul_i32 s6, s5, 35
s_sub_u32 s22, s2, s6
s_mul_i32 s6, s3, 35
s_add_u32 s6, s6, s22
s_mul_i32 s7, s5, {8*PART_CU}
s_add_u32 s7, s7, {PART0}
s_lshl_b32 s20, s6, 10
v_lshlrev_b32 v3, 4, v2
s_mov_b32 s14, {8*PART_CU}
s_mov_b32 s15, 0x20000
s_waitcnt lgkmcnt(0)
s_add_u32 s12, s10, s7
s_addc_u32 s13, s11, 0
""")
    for q in range(8):
        p(f"buffer_load_dwordx4 v[{8+4*q}:{11+4*q}], v3, s[12:15], s20 offen {OPT['rd']}")
        if q < 7: p(f"s_add_u32 s20, s20, {PART_CU}")
    p(f"""
s_and_b32 s23, s5, 15
s_mul_i32 s23, s23, {112*2560}
s_lshr_b32 s24, s5, 4
s_mul_i32 s24, s24, 1280
s_add_u32 s23, s23, s24
s_mov_b32 s16, s8
s_mov_b32 s17, s9
s_mov_b32 s18, {16*112*2560}
s_mov_b32 s19, 0x20000
s_mul_i32 s26, s22, 37
s_lshr_b32 s26, s26, 8
s_mul_i32 s27, s26, 7
s_sub_u32 s27, s22, s27
s_lshl_b32 s30, s26, 8
s_mul_i32 s28, s27, {16*2560}
s_add_u32 s30, s30, s28
s_mul_i32 s28, s3, {4*2560}
s_add_u32 s30, s30, s28
s_add_u32 s32, s30, s23
v_and_b32 v4, 15, v2
v_lshrrev_b32 v5, 4, v2
v_mul_u32_u24 v6, 272, v4
v_lshl_add_u32 v6, v5, 3, v6
s_lshl_b32 s28, s3, 6
v_add_u32 v6, s28, v6
s_mul_i32 s28, s3, {4*272}
v_mul_u32_u24 v7, 272, v5
v_lshl_add_u32 v7, v4, 4, v7
v_add_u32 v7, s28, v7
v_mul_u32_u24 v5, 2560, v5
v_lshl_add_u32 v4, v4, 4, v5
""")
    for q in range(8):
        p(f"s_waitcnt vmcnt({7-q})")
        for i in range(4):
            r = 8 + 4 * q + i
            if q == 0:
                p(f"v_lshlrev_b32 v{40+2*i}, 16, v{r}")
                p(f"v_and_b32 v{41+2*i}, 0xffff0000, v{r}")
            else:
                p(f"v_lshlrev_b32 v48, 16, v{r}")
                p(f"v_and_b32 v49, 0xffff0000, v{r}")
                p(f"v_add_f32 v{40+2*i}, v{40+2*i}, v48")
                p(f"v_add_f32 v{41+2*i}, v{41+2*i}, v49")
    for i in range(4): p(f"v_cvt_pk_bf16_f32 v{52+i}, v{40+2*i}, v{41+2*i}")
    p(f"""
ds_write_b64 v6, v[52:53]
ds_write_b64 v6, v[54:55] offset:32
s_waitcnt lgkmcnt(0)
s_barrier
ds_read_b128 v[52:55], v7
s_waitcnt lgkmcnt(0)
buffer_store_dwordx4 v[52:55], v4, s[16:19], s32 offen {OPT['of']}
k2_end:
s_endpgm
""")
    return p

def desc(name, vg):
    return f""".amdhsa_kernel {name}
  .amdhsa_next_free_vgpr {vg}
  .amdhsa_next_free_sgpr 102
  .amdhsa_accum_offset {vg}
  .amdhsa_group_segment_fixed_size 0
  .amdhsa_kernarg_size 104
  .amdhsa_user_sgpr_count 2
  .amdhsa_user_sgpr_kernarg_segment_ptr 1
  .amdhsa_system_sgpr_workgroup_id_x 1
.end_amdhsa_kernel
"""

def main():
    for t in range(1120): assert (t * 1873) >> 16 == t // 35
    for t in range(140): assert (t * 235) >> 13 == t // 35
    for t in range(35): assert (t * 37) >> 8 == t // 7
    _, rec = build({})
    for it in range(4):
        a, rec2 = build(rec)
        if rec2 == rec: break
        rec = rec2
    else: raise SystemExit("no fixpoint")
    b = reduce_kernel()
    if OPT["novm"]: a.L[:] = [l for l in a.L if not l.startswith("buffer_load")]
    if OPT["nobar"]: a.L[:] = [l for l in a.L if not l.startswith("s_barrier")]
    if OPT["nolg"]:
        out_ = []
        for i_, l in enumerate(a.L):
            if l.startswith("s_waitcnt lgkmcnt") and not a.L[i_-1].startswith(("s_mem", "s_load")) and i_ > 60: continue
            out_.append(l)
        a.L[:] = out_
    if OPT["nord"]: a.L[:] = [l for l in a.L if not l.startswith("ds_read")]
    if OPT["noexp"]: a.L[:] = [l.replace("v_exp_f32", "v_mov_b32") if l.startswith("v_exp_f32") and "-v" not in l else l for l in a.L]
    if OPT["nosm"]: a.L[:] = [l for l in a.L if not l.startswith(("v_exp_f32", "v_cvt_pk"))]
    if OPT["nochk"]: a.L[:] = [l for l in a.L if not l.startswith(("v_or3", "v_or_b32", "v_cmp_ne", "s_cbranch_vccz", "v_and_b32 v252"))]
    if OPT["prof"] == 2:
        out_ = []; L_ = a.L; inrole = False; i_ = 0
        while i_ < len(L_):
            l = L_[i_]
            if l.startswith(("t0_unit", "t1_slot")): inrole = True
            if l.startswith(("t0_exit", "t1_exit")): inrole = False
            if inrole and l == "s_barrier":
                j = len(out_)
                while j > 0 and (out_[j-1].startswith(("s_waitcnt vmcnt", "s_cmp_eq_u32 s55, 5", "s_cbranch_scc1 t1_wa")) or out_[j-1].startswith("t1_wa")): j -= 1
                blk = out_[j:]; del out_[j:]
                out_ += ["s_memtime s[4:5]"] + blk + ["s_memtime s[6:7]", "s_barrier", "s_memtime s[8:9]", "s_waitcnt lgkmcnt(0)",
                         "s_sub_u32 s4, s6, s4", "s_add_u32 s94, s94, s4", "s_sub_u32 s6, s8, s6", "s_add_u32 s95, s95, s6"]
            elif inrole and l.startswith("buffer_load") and l.endswith("lds"):
                out_ += ["s_memtime s[4:5]", l, "s_memtime s[6:7]", "s_waitcnt lgkmcnt(0)", "s_sub_u32 s4, s6, s4", "s_add_u32 s89, s89, s4"] if OPT["pv"] else [l]
            elif l.startswith(("k1_light:", "k1_t1:")) or l.startswith("s_cbranch_scc1 k1_light"):
                out_ += [l, "s_mov_b32 s94, 0", "s_mov_b32 s95, 0", "s_mov_b32 s89, 0"]
            else: out_.append(l)
            i_ += 1
        a.L[:] = out_
    if OPT["prof"] == 4:
        out_ = []; inrole = False; idx = 0
        L_ = [l for l in a.L if not (l.startswith(("s_cselect_b32 s8", "s_cselect_b32 s9")) or (l.startswith(("s_mov_b32 s8", "s_mov_b32 s9")) and "s100" in l))]
        def st_(k):
            return ["s_memtime s[100:101]", "s_waitcnt lgkmcnt(0)", f"s_cmp_eq_u32 s{sSLOT}, {OPT['ps']}", f"s_cselect_b32 s{80+k}, s100, s{80+k}"] if 0 <= k < 16 else []
        for i_, l in enumerate(L_):
            if l.startswith(("t0_unit", "t1_slot")): inrole = True; idx = 0
            if l.startswith(("t0_exit", "t1_last")): inrole = False
            k = (idx - OPT["pb"]) * 4
            if inrole and l == "s_barrier":
                x = out_.pop() if out_[-1].startswith("s_waitcnt vmcnt") else None
                out_ += st_(k - 2) + ([x] if x else []) + st_(k - 1) + [l] + st_(k); idx += 1
            elif inrole and l.startswith("buffer_load") and l.endswith("lds"):
                nxt = next(y for y in L_[i_+1:] if y == "s_barrier" or (y.startswith("buffer_load") and y.endswith("lds")))
                out_ += [l] + (st_(k - 3) if nxt == "s_barrier" else [])
            else: out_.append(l)
        a.L[:] = out_
    if OPT["prof"] == 3:
        out_ = []; inrole = False; idx = 0
        for l in a.L:
            if l.startswith(("t0_unit", "t1_slot")): inrole = True; idx = 0
            if l.startswith(("t0_exit", "t1_exit")) or l.startswith("s_cbranch_scc1 t1_slot"): inrole = False
            if l.startswith(("s_mov_b32 s8", "s_mov_b32 s9")) and "s100" in l: continue
            if l.startswith("s_cselect_b32 s8") or l.startswith("s_cselect_b32 s9") or l.startswith("s_mov_b32 s9") and "s100" in l: continue
            if inrole and l == "s_barrier":
                k = idx - OPT["pb"]; idx += 1
                st_ = ["s_memtime s[100:101]", "s_waitcnt lgkmcnt(0)", f"s_cmp_eq_u32 s{sSLOT}, {OPT['ps']}", f"s_cselect_b32 s{80+k}, s100, s{80+k}"] if 0 <= k < 16 else []
                out_ += (st_ + [l]) if OPT["pa"] else ([l] + st_)
            else: out_.append(l)
        a.L[:] = out_
    if OPT["nomfq"] or OPT["nomf1"] or OPT["nomf0"]:
        out_ = []; sec = "q"
        for l in a.L:
            if l.startswith("t0_unit"): sec = "0"
            if l.startswith("k1_t1:"): sec = "1"
            if l.startswith("v_mfma") and OPT["nomf" + sec]: continue
            out_.append(l)
        a.L[:] = out_
    if OPT["xa"]:
        out_ = []; sec = "q"; cnt = 0
        for l in a.L:
            if l.startswith("t0_unit_h"): sec = "h"
            if l.startswith("t0_unit_l"): sec = "l"
            if l.startswith("t0_final"): sec = "f"
            if l.startswith("k1_t1:"): sec = "1"
            if OPT["xa"] == 1 and sec in "hl" and l.startswith("v_mfma") and "v[208:211]" in l: continue
            if OPT["xa"] == 2 and sec == "l" and l.startswith(("v_mfma", "ds_read")): continue
            if OPT["xa"] == 3 and sec == "1" and l.startswith("ds_read_b128"): continue
            if OPT["xa"] == 4 and sec in "hl" and l.startswith("ds_read"):
                continue
            out_.append(l)
        a.L[:] = out_
    if OPT["vwin"]:
        out_ = []; on = False
        for l in a.L:
            if l.startswith("k1_t1:") and OPT["vw1"]: on = True
            if l.startswith("t1_slot:"): on = True
            if l.startswith("t1_last:"): on = False
            if on and l.startswith("buffer_load") and l.endswith("lds"): out_.append(f"s_waitcnt vmcnt({OPT['vwin']-1})")
            out_.append(l)
        a.L[:] = out_
    if OPT["dynp"]:
        out_ = []; int1 = False
        for l in a.L:
            if l.startswith("k1_t1:"): int1 = True
            if int1 and l.startswith("buffer_load") and l.endswith("lds"):
                out_ += [f"s_setprio {OPT['dynp']}", l, f"s_setprio {OPT['prio1']}"]
            else: out_.append(l)
        a.L[:] = out_
    n1 = fix_hazards(a.L); n2 = fix_hazards(b.L)
    print("nops inserted", n1, n2, "instrs", len(a.L), len(b.L), file=sys.stderr)
    hdr = open("cdna_kernels/" + NAME + ".s.ref").read().split("; Override launch")[0]
    out = hdr
    if OPT["two"]:
        out += f"; @launch kernel={NAME}_kernel grid=(256,1,1) block=(512,1,1) lds={LDS_BYTES}\n"
        out += "; @launch kernel=reduce_kernel grid=(1120,1,1) block=(256,1,1) lds=4352\n"
    else:
        out += f"; @launch grid=(256,1,1) block=(512,1,1) lds={LDS_BYTES}\n"
    out += '.amdgcn_target "amdgcn-amd-amdhsa--gfx950"\n.text\n'
    out += a.text() + (b.text() if OPT["two"] else "")
    out += '.section .rodata,"a"\n.p2align 6\n' + desc(NAME + "_kernel", 256)
    if OPT["two"]: out += ".p2align 6\n" + desc("reduce_kernel", 56)
    open(sys.argv[1], "w").write(out)
    import subprocess
    r = subprocess.run(["clang", "-x", "assembler", "-target", "amdgcn-amd-amdhsa", "-mcpu=gfx950", "-c", sys.argv[1], "-o", "chk.o"], capture_output=True, text=True)
    if r.returncode: print("ASSEMBLY FAILED", r.stderr[:600])
main()
```

```python
import sys, math, struct, copy
sys.path.insert(0, "work")
from asmlib import *

NAME = "concat_heads__mha_block_cached__gqa_block_cached__near_ridge"
OPT = dict(kv="nt", w="", x="", wo="", st="sc1", rd="sc1", prof=0, prio0=0, prio1=0, touch=1, nox=0, now=0, nokv=0, nomf=0,
           novm=0, lead=4, bp="6.16.26.36.42", map=0, hack="", t1b=0, ps=5, kdel=0, x0=4, xt=0, dynp=0, nopark=0, gap=0, span=4, pa=0, pb=0, m=2, nlat=0, nonar=0, bar=3, qd=5, rt=0, tf="", tq="", pwo=0, tlb=0, stl=0, dd=0, kw=5, qp1=0, pre=0, kpf=0, wt=6, wtn=14, pkb=1, kw1=0, kwa=4, kwu=48, oldfin=1, kv0=0, k0=3, nq=4, kw1m=0, kf1=1, b1=1, wp=0, tch=10, sko=1, of="", kw1s=0, kps=18, kpl="nt", lastb=16, stn=1, spin=8000, vcap=0, vpost=0, now0=9, xa=0, burst=0, kpar=0, pwh=1, near=0, vwin=0, cpf=1, fs=0, r5=6, early=3, qv=0, two=0, vw1=1, wo5="", nomfq=0, nomf1=0, nomf0=0, pwf="", kvfirst=1, w2=1, psplit=1, nb1=8, nb2=29, kl=16, tl=4, kvat=18, qst="sc1", noq=0, noqst=0, pv=0, nobar=0, nolg=0, nord=0, norare=0, not1=0, noexp=0, nochk=0, nosm=0)
for a in sys.argv[2:]:
    k, val = a.split("=")
    OPT[k] = int(val) if val.lstrip("-").isdigit() else (val if k in ("bp", "hack") else val.replace("+", " ").replace("-", ""))
TILE = 12288
QO = 0
T1R = 43008
B2 = T1R + 32768
KVB = B2 + 18432
NS = 16
SPARE = KVB + NS * 4096
LDS_BYTES = SPARE + 2048
QPARK = 48 << 20
FLAG0 = 0
PART0 = 1 << 20
PART_CU = 4 * 35 * 1024
LEAD = OPT["lead"]
NX = 30
XB_ = [OPT["x0"] + 4 * ((k * 96) // NX) for k in range(NX)]
def f2u(f): return struct.unpack("<I", struct.pack("<f", f))[0]

sKd, sVd, sWd, sOd, sXd, sPd, sQd = 32, 36, 40, 44, 48, 76, 24
sWAVE, sB, sQUAD, sSLOT, sCTR, sW4 = 52, 53, 54, 55, 57, 56
sT1, sT2, sT3 = 62, 63, 61
sKSO, sVSO, sLW = 58, 59, 60
sWB, sOB, sXB, sXM, sSTR, sXF = 58, 59, 70, 71, 72, 73
sC, sBIT = 66, 68
sRET = 30
sGRP = 3
sWT = 8
sTEAM, sWB2, sKSO2, sL1, sSLO, sSHI = 74, 75, 65, 64, 69, 72
PKV_ = 255
sRX, sRY, sRZ, sSP = 14, 17, 20, 23

def stamp(e, k, real=False):
    if not OPT["prof"]: return
    e(f"s_mem{'real' if real else ''}time s[100:101]")
    e("s_waitcnt lgkmcnt(0)")
    e(f"s_mov_b32 s{80+k}, s100")
def stamp_slot(e):
    if not OPT["prof"]: return
    e("s_memrealtime s[100:101]" if OPT["rt"] else "s_memtime s[100:101]")
    e("s_waitcnt lgkmcnt(0)")
    for k in range(0, 7):
        e(f"s_cmp_eq_u32 s{sSLOT}, {k}")
        e(f"s_cselect_b32 s{82+k}, s100, s{82+k}")
def stamp_if(e, k, slot):
    if not OPT["prof"]: return
    e("s_memtime s[100:101]")
    e("s_waitcnt lgkmcnt(0)")
    e(f"s_cmp_eq_u32 s{sSLOT}, {slot}")
    e(f"s_cselect_b32 s{80+k}, s100, s{80+k}")
def dump_stamps(e, wsreg, base, nw):
    if not OPT["prof"]: return
    if OPT["dd"]:
        e(f"""
s_cmp_lg_u32 s2, {OPT['dd']}
s_cbranch_scc1 k1_end
s_cmp_lg_u32 s{sWAVE}, 4
s_cbranch_scc1 k1_end
s_mov_b32 s96, s26
s_mov_b32 s97, s27
s_mov_b32 s98, 64
s_mov_b32 s99, 0x20000
v_mov_b32 v1, 0
""")
        for k in range(16):
            e(f"s_sub_u32 s100, s{80+k}, s{80 if k == 10 else 81}")
            e("v_mov_b32 v0, s100")
            e(f"buffer_store_dword v0, v1, s[96:99], 0 offen offset:{k*4}")
        e("s_waitcnt vmcnt(0)")
        return
    e(f"""
s_mul_i32 s100, s2, {nw}
s_add_u32 s100, s100, s{sWAVE}
s_lshl_b32 s100, s100, 6
s_add_u32 s100, s100, {base}
s_add_u32 s96, s{wsreg}, s100
s_addc_u32 s97, s{wsreg+1}, 0
s_mov_b32 s98, 64
s_mov_b32 s99, 0x20000
v_mov_b32 v1, 0
""")
    for k in range(16):
        e(f"v_mov_b32 v0, s{80+k}")
        e(f"buffer_store_dword v0, v1, s[96:99], 0 offen offset:{k*4}")
    e("s_waitcnt vmcnt(0)")

class Gen:
    def __init__(self, prog, needs):
        self.p = prog; self.needs = needs; self.rec = {}
        self.mute = 0
        self.vq = []; self.lq = []; self.pend = []; self.issued = {}
        self.nosim = 0
    def e(self, s):
        if not self.mute: self.p(s)
    def label(self, n):
        if not self.mute: self.p.label(n)
    def wait(self, kind, key, tags, drain_tags=()):
        q = self.vq if kind == "vm" else self.lq
        for t in tags:
            assert self.issued.pop(t, 0) > 0, (t, key)
        tags = list(tags) + list(drain_tags)
        idx = [i for i, t in enumerate(q) if t in tags]
        n = len(q) - 1 - max(idx) if idx else 999
        if n != 999: n = min(n, 63 if kind == "vm" else 15)
        k = (kind, key)
        self.rec[k] = min(self.rec.get(k, 999), n)
        val = self.needs.get(k, n)
        if val == 999: return
        self.e(f"s_waitcnt {'vmcnt' if kind == 'vm' else 'lgkmcnt'}({val})")
        del q[:len(q) - val if val < len(q) else 0]
    def wait_alt(self, key, tags, alt, cmp_txt, lab):
        q = self.vq
        for t in tags: assert self.issued.pop(t, 0) > 0, (t, key)
        idx = [i for i, t in enumerate(q) if t in tags]
        n = min(len(q) - 1 - max(idx), 63) if idx else 999
        k = ("vm", key, alt)
        self.rec[k] = min(self.rec.get(k, 999), n)
        va, vb = self.needs.get(("vm", key, False), 0), self.needs.get(("vm", key, True), 0)
        if vb != 999 and vb > va: self.e(f"s_waitcnt vmcnt({vb})")
        if vb > va:
            self.e(cmp_txt); self.e(f"s_cbranch_scc1 {lab}")
        val = min(va, vb) if not (alt and vb > va) else vb
        if min(va, vb) != 999: self.e(f"s_waitcnt vmcnt({min(va, vb)})")
        if vb > va: self.label(lab)
        if val != 999: del q[:len(q) - val if val < len(q) else 0]
    def vm(self, tag, text):
        self.e(text); self.vq.append(tag); self.issued[tag] = self.issued.get(tag, 0) + 1
    def ld(self, tag, text):
        self.e(text); self.lq.append(tag); self.issued[tag] = self.issued.get(tag, 0) + 1
    def drain(self, n=1):
        for _ in range(n):
            if self.pend: self.pend.pop(0)()
    def optional(self, taken, fn):
        if taken: fn()
        elif not self.mute:
            st = (list(self.vq), list(self.lq), dict(self.issued))
            fn()
            self.vq[:], self.lq[:] = st[0], st[1]; self.issued = st[2]

def mfma(e, d, a, b, c):
    if not OPT["nomf"]:
        e(f"v_mfma_f32_16x16x32_bf16 {v(d,4)}, {v(a,4)}, {v(b,4)}, {c if c == '0' else v(c,4)}")


KL = OPT["kl"]
KVT = [k for k in range(NX) if not OPT['burst'] or k % 2 == OPT['kpar']]
N0 = max(u for u in range(300) if 4 * (u - KL) + 4 <= XB_[KVT[-1]]) + 1
def lane_regs(e, b=2):
    e(f"""
v_mbcnt_lo_u32_b32 v{b}, -1, 0
v_mbcnt_hi_u32_b32 v{b}, -1, v{b}
v_and_b32 v{b+1}, 15, v{b}
v_lshrrev_b32 v{b+2}, 4, v{b}
v_lshrrev_b32 v{b+3}, 2, v{b}
v_and_b32 v{b+4}, 3, v{b+3}
v_and_b32 v{b+5}, 3, v{b}
v_lshrrev_b32 v{b+6}, 3, v{b}
v_and_b32 v{b+7}, 7, v{b}
""")
def kv_kind(a):
    a %= 32
    return "K" if (a == 0 or (a % 2 == 1 and a < 31)) else "V"
def kv_tile(a):
    u, a = divmod(a, 32)
    return u * 16 + (0 if a == 0 else 15 if a == 31 else (a + 1) // 2 if a % 2 == 1 else (a - 2) // 2)
def QAC(hh, rt, k): return ((hh * 7 + rt) * 3 + k) * 4
QB = [240, 241, 242]; QT = [251, 252, 253]; NPRE = 12; X9 = KVB + 51200
QW = [248, 249, 250]


class OpEngine:
    def __init__(self, g, PK, AC0, AF0, BF0, RA, OB, PO, ring, sM0, ringoff):
        self.g, self.e = g, g.e
        self.PK, self.AC0, self.AF0, self.BF0, self.RA, self.OB, self.PO = PK, AC0, AF0, BF0, RA, OB, PO
        self.ring, self.sM0, self.ro = ring, sM0, ringoff
        self.dq = []; self.pq = []; self.clock = 0; self.fl = OPT['wo']; self.nr = 4; self.early = 0; self.pkb = 0; self.atbar = []
    def AC(self, k): return self.AC0 + 4 * k
    def AF(self, s, i): return self.AF0 + 8 * (s & 1) + 4 * i
    def BF(self, n): return self.BF0 + 4 * (n % 6)
    def slot(self, i): return ((i + self.ro) % self.nr) * 8192
    def addr_setup(self):
        e = self.e
        lane_regs(e, 232)
        L = 232
        e(f"""
v_lshlrev_b32 v{self.OB}, 4, v{L}
v_lshlrev_b32 v{L+8}, 1, v{L+2}
v_xor_b32 v{L+8}, v{L+1}, v{L+8}
v_lshlrev_b32 v{L+8}, 4, v{L+8}
v_mul_u32_u24 v{L+9}, 1280, v{L+2}
v_add_u32 v{self.PO[0]}, v{L+8}, v{L+9}
v_xor_b32 v{L+8}, 128, v{L+8}
v_add_u32 v{L+8}, v{L+8}, v{L+9}
v_add_u32 v{self.PO[1]}, 4096, v{L+8}
s_lshl_b32 s{sT1}, s{sW4}, 1
v_and_b32 v{L+8}, 7, v{L+3}
v_xor_b32 v{L+8}, s{sT1}, v{L+8}
v_lshlrev_b32 v{L+8}, 5, v{L+8}
v_lshl_add_u32 v{L+8}, v{L+3}, 8, v{L+8}
v_lshl_add_u32 v{L+8}, v{L+5}, 3, v{L+8}
v_add_u32 v{self.RA[0]}, {self.ring}, v{L+8}
v_xor_b32 v{self.RA[1]}, 32, v{self.RA[0]}
""")
    def dma(self, i):
        ps, j = divmod(i, 6)
        out = []
        for q in range(2):
            def f(q=q):
                if q == 0:
                    self.e(f"s_add_u32 m0, s{self.sM0}, {self.ring+self.slot(i)}")
                    self.e(f"s_add_u32 s{sT2}, s{sOB}, {j*32*1280+ps*256}")
                o = "offset:1024 " if q else ""
                self.g.vm(f"O{i}", f"buffer_load_dwordx4 v{self.PO[q]}, s[{sOd}:{sOd+3}], s{sT2} offen {o}{self.fl} lds")
            out.append(f)
        return out
    def defer(self, at, ins):
        for x in ins: self.dq.append((at, x))
    def run_dq(self, n):
        while n > 0 and self.dq and self.dq[0][0] <= self.clock:
            x = self.dq.pop(0)[1]
            if callable(x): x()
            else: self.e(x)
            n -= 1
    def flush_pq(self):
        while self.pq: self.pq.pop(0)[1]()
    def a_read(self, i, n):
        k, hf = divmod(n, 2)
        self.g.ld(f"o{i}a{k}", f"ds_read_b64_tr_b16 {v(self.AF(i,k)+2*hf,2)}, v{self.RA[k]} offset:{self.slot(i)+hf*4096}")
    def b_read(self, b):
        i, rt = divmod(b, 7)
        self.g.ld(f"o{i}b{rt}", f"ds_read_b128 {v(self.BF(b),4)}, v{self.OB} offset:{QO+(i%6*7+rt)*1024}")
    def first_reads(self, i):
        self.a_read(i, 0); self.a_read(i, 1); self.b_read(7 * i); self.a_read(i, 2); self.a_read(i, 3)
        for n in range(1, 6): self.b_read(7 * i + n)
    def unpack_l(self, dst, src):
        return [f"v_perm_b32 v{dst+x}, v{src+x//2}, v{src+x//2}, s{sSHI if x & 1 else sSLO}" for x in range(4)]
    def pack_l(self, dst, src):
        return [f"v_cvt_pk_bf16_f32 v{dst}, v{src}, v{src+1}", f"v_cvt_pk_bf16_f32 v{dst+1}, v{src+2}, v{src+3}"]
    def store_l(self, ps, rt):
        o = (ps * 7 + rt) * 1024
        if OPT["sko"] and not OPT["two"]:
            b = ps * 7 + rt
            def f():
                self.e(f"s_mov_b32 s{sT3}, {o - o % 4096}")
                self.e(f"s_cmp_lg_u32 s{sQUAD}, {b % 8}")
                self.e(f"s_cbranch_scc1 op_k{b}")
                self.e(f"s_mov_b32 s{sT3}, 0x100000")
                self.e(f"ds_write_b128 v249, {v(self.PK(ps*14+rt*2),4)} offset:{(b//8)*4096}")
                self.g.label(f"op_k{b}")
                self.g.vm("st", f"buffer_store_dwordx4 {v(self.PK(ps*14+rt*2),4)}, v{self.OB}, s[{sPd}:{sPd+3}], s{sT3} offen offset:{o%4096} {OPT['st']}")
            return [f]
        return [f"s_mov_b32 s{sT3}, {o - o % 4096}",
                lambda: self.g.vm("st", f"buffer_store_dwordx4 {v(self.PK(ps*14+rt*2),4)}, v{self.OB}, s[{sPd}:{sPd+3}], s{sT3} offen offset:{o%4096} {OPT['st']}")]
    def step(self, key, i, last, tick, store=False, hooks=None):
        g, e = self.g, self.e
        ps, j = divmod(i, 6)
        BAR = OPT["bar"]
        c0 = self.clock
        if store and not self.early and i >= last - 3 and i < last:
            todo = [(q, rt) for q in range(store[0], ps) for rt in range(7)]
            k = i - (last - 3)
            mine = todo[k * len(todo) // 3:(k + 1) * len(todo) // 3]
            for n, (q, rt) in enumerate(mine): self.defer(c0 + (6 if k == 0 else 0) + n * (8 if k == 0 else 14) // len(mine), self.store_l(q, rt))
        if j == 5 and (i < last or store):
            for n in range(14):
                ins = self.pack_l(self.PK(ps * 14 + n), self.AC(n))
                if i < last: ins += self.unpack_l(self.AC(n), self.PK((ps + 1) * 14 + n))
                if store and n % 2 == 1 and (i == last or self.early): ins += self.store_l(ps, n // 2)
                if self.pkb and i < last and n >= BAR: self.atbar += ins
                else: self.defer(c0 + n + 4, ins)
        for n in range(14):
            rt, k = divmod(n, 2)
            if n == BAR and i < last: tick(i)
            if n == BAR and j == 0:
                for x in self.atbar:
                    if callable(x): x()
                    else: e(x)
                self.atbar = []
            if hooks and n in hooks: hooks[n]()
            tags = ([f"o{i}b{rt}"] if k == 0 else []) + ([f"o{i}a{k}"] if rt == 0 else [])
            if tags: g.wait("lg", f"{key}{i}m{n}", tags)
            mfma(e, self.AC(n), self.AF(i, k), self.BF(7 * i + rt), self.AC(n))
            if k == 1 and 7 * i + rt + 6 < 7 * (last + 1): self.b_read(7 * i + rt + 6)
            if k == 0 and i < last and BAR < n <= BAR + 8: self.a_read(i + 1, (n - BAR - 1) // 2)
            while self.pq and self.pq[0][0] <= self.clock: self.pq.pop(0)[1]()
            self.clock += 1
            self.run_dq(7)
    def finish(self):
        self.flush_pq(); self.clock += 100; self.run_dq(1000)

AC_ = QAC
def QAF(par, hh, k): return 168 + par * 24 + (hh * 3 + k) * 4
def QBF(n): return 216 + 4 * (n % 4)
QRA = [[232, 233, 234], [235, 236, 237]]; QXA = [238, 239]; QPW = [243, 244, 245]; QPX = 246; QJUNK = 247; QWT = 254
def x_dma(g, pp, xb):
    e = g.e; out = []
    for q in range(4):
        def f(q=q):
            if q < 3: e(f"s_add_u32 m0, s{sXM}, {xb+q*4096}")
            else:
                e(f"s_add_u32 s{sT2}, s{sXM}, {xb+q*4096}")
                e(f"s_cmp_ge_u32 s{sW4}, 2")
                e(f"s_cselect_b32 m0, s{sXF}, s{sT2}")
            e(f"s_add_u32 s{sT2}, s{sXB}, {pp*128+q*40960}")
            g.vm(f"X{pp}", f"buffer_load_dwordx4 v{QPX}, s[{sXd}:{sXd+3}], s{sT2} offen {OPT['x']} lds")
        out.append(f)
    return out
def w_dma(g, i, head, lds, tag):
    e = g.e; out = []
    for ii in range(3):
        def f(ii=ii):
            if ii == 0:
                e(f"s_add_u32 m0, s{sLW}, {lds}")
                e(f"s_add_u32 s{sT1}, s{sWB}, {i*32*12288+head*384}")
            o = f"offset:{ii*1024} " if ii else ""
            g.vm(tag, f"buffer_load_dwordx4 v{QPW[ii]}, s[{sWd}:{sWd+3}], s{sT1} offen {o}{OPT['w']} lds")
        out.append(f)
    return out
def q_cvt(e, a):
    e(f"v_pk_mul_f32 {v(a,2)}, {v(a,2)}, s[{sC}:{sC+1}]")
    e(f"v_pk_mul_f32 {v(a+2,2)}, {v(a+2,2)}, s[{sC}:{sC+1}]")
    e(f"v_cvt_pk_bf16_f32 v{a}, v{a}, v{a+1}")
    e(f"v_cvt_pk_bf16_f32 v{a+1}, v{a+2}, v{a+3}")

def qp_phase(p, needs, team):
    g = Gen(p, needs); e = g.e
    nh = 1 + team
    STG = [KVB, T1R]
    def dma_w(i, part):
        if team: return []
        return sum((w_dma(g, i, h, STG[i & 1] + h * TILE, f"W{i}.{part}") for h in ((0, 1) if part == 0 else (2,))), [])
    def dma_x(pp): return [] if team else x_dma(g, pp, X9 if pp == 9 else QO + (pp % 3) * 14336)
    def vwait(key, tags):
        if not team: g.wait("vm", key, tags)
    def a_read(i, hh, n):
        k, hf = divmod(n, 2)
        g.ld(f"{i}a{hh}{k}", f"ds_read_b64_tr_b16 {v(QAF(i&1,hh,k)+2*hf,2)}, v{QRA[i&1][k]} offset:{(team+hh)*TILE+hf*1536}")
    def b_read(i, rt):
        g.ld(f"{i}b{rt}", f"ds_read_b128 {v(QBF(7*i+rt),4)}, v{QXA[i&1]} offset:{((i>>1)%3)*14336+rt*2048}")
    lane_regs(e)
    e(f"""
v_lshrrev_b32 v13, 1, v8
v_and_b32 v13, 3, v13
v_lshlrev_b32 v13, 1, v13
v_xor_b32 v13, v9, v13
v_lshlrev_b32 v13, 4, v13
v_mul_u32_u24 v14, 1280, v8
v_add_u32 v{QPX}, v13, v14
v_mul_u32_u24 v14, 384, v8
v_add_u32 v{PKV_}, v13, v14
s_mul_i32 s{sXB}, s{sW4}, 10240
s_lshl_b32 s{sXM}, s{sW4}, 10
s_sub_u32 s{sXF}, s{sXM}, 2048
s_add_u32 s{sXF}, s{sXF}, {SPARE}
""")
    for f in dma_x(0): f()
    e(f"""
s_and_b32 s{sT1}, s{sW4}, 1
s_lshl_b32 s{sT1}, s{sT1}, 2
v_xor_b32 v16, s{sT1}, v9
s_mul_i32 s{sWB}, s{sW4}, {8*12288}
""")
    for q in range(3):
        e(f"""
v_add_u32 v10, {8*q}, v8
v_mul_u32_u24 v11, 43, v10
v_lshrrev_b32 v11, 7, v11
v_mul_u32_u24 v12, 3, v11
v_sub_u32 v12, v10, v12
v_lshrrev_b32 v13, 1, v11
v_and_b32 v14, 1, v13
v_xor_b32 v14, v16, v14
v_lshlrev_b32 v14, 4, v14
v_lshl_add_u32 v14, v12, 7, v14
v_mul_u32_u24 v15, 12288, v11
v_add_u32 v14, v14, v15
v_subrev_u32 v{QPW[q]}, {q*1024}, v14
""")
    for f in dma_w(0, 0) + dma_w(0, 1): f()
    WT = OPT["wt"]
    if not team:
        e(f"""
v_mul_u32_u24 v10, 43, v2
v_lshrrev_b32 v10, 9, v10
v_mul_u32_u24 v11, 12, v10
v_sub_u32 v11, v2, v11
v_min_u32 v10, 1, v10
v_mul_u32_u24 v10, 12288, v10
v_lshl_add_u32 v{QWT}, v11, 7, v10
s_mul_i32 s{sWT}, s{sB}, {2*12288}
s_add_u32 s{sT1}, s{sWAVE}, 2
s_mul_i32 s{sT1}, s{sT1}, {32*12288}
s_add_u32 s{sT1}, s{sT1}, s{sWT}
""")
        assert WT == 6
        g.vm("pf", f"buffer_load_dword v{QJUNK}, v{QWT}, s[{sWd}:{sWd+3}], s{sT1} offen {OPT['tq']}")
    e(f"""
v_lshrrev_b32 v8, 1, v3
v_and_b32 v8, 3, v8
v_lshlrev_b32 v8, 1, v8
v_xor_b32 v8, v4, v8
v_lshlrev_b32 v8, 4, v8
v_lshl_add_u32 v9, v3, 7, v8
v_add_u32 v{QXA[0]}, {QO}, v9
v_xor_b32 v{QXA[1]}, 64, v{QXA[0]}
v_lshl_add_u32 v8, v4, 3, v6
v_mul_u32_u24 v9, 384, v8
v_lshrrev_b32 v8, 1, v6
v_and_b32 v11, 1, v4
v_lshl_add_u32 v8, v11, 2, v8
v_xor_b32 v8, v7, v8
v_lshl_add_u32 v9, v8, 4, v9
v_lshlrev_b32 v12, 3, v11
v_lshl_add_u32 v12, v2, 4, v12
v_and_b32 v11, 1, v7
v_lshl_add_u32 v11, v11, 3, v9
s_mov_b32 s{sC}, {hex(f2u(192 ** -0.5 * math.log2(math.e)))}
s_mov_b32 s{sC+1}, s{sC}
""")
    for i in range(3):
        e(f"""
s_mul_i32 s{sT1}, s{sW4}, 3
s_add_u32 s{sT1}, s{sT1}, {i}
s_and_b32 s{sT3}, s{sT1}, 2
s_lshl_b32 s{sT3}, s{sT3}, 5
s_and_b32 s{sT2}, s{sT1}, 1
s_lshl_b32 s{sT2}, s{sT2}, 3
v_xor_b32 v{QW[i]}, s{sT2}, v12
s_or_b32 s{sT3}, s{sT3}, s{sT2}
v_xor_b32 v13, s{sT3}, v11
s_lshr_b32 s{sT2}, s{sT1}, 2
s_lshl_b32 s{sT2}, s{sT2}, 7
v_add_u32 v13, s{sT2}, v13
v_add_u32 v{QRA[1][i]}, {T1R}, v13
v_add_u32 v{QRA[0][i]}, {KVB}, v13
s_lshr_b32 s{sT1}, s{sT1}, 1
s_mul_i32 s{sT2}, s{sT1}, 7168
v_add_u32 v{QW[i]}, s{sT2}, v{QW[i]}
""")
        if team:
            e(f"""
s_cmp_lt_u32 s{sT1}, 3
s_cselect_b32 s{sT3}, {B2 - (QO + 6144 - 18432)}, 0
s_sub_u32 s{sT3}, s{sT3}, {18432 - 6144 - QO}
s_lshl_b32 s{sT2}, s{sT1}, 10
s_sub_u32 s{sT2}, s{sT3}, s{sT2}
v_add_u32 v{QB[i]}, s{sT2}, v{QW[i]}
s_mul_i32 s{sT2}, s{sT1}, 6144
v_subrev_u32 v{QT[i]}, s{sT2}, v{QW[i]}
""")
    vwait("in", ["W0.0", "W0.1", "X0"])
    e("s_barrier")
    stamp(e, 14, real=bool(OPT["rt"]))
    if not team:
        e(f"""
s_cmp_lg_u32 s{sWAVE}, 0
s_cbranch_scc1 k1_nocnt
s_mov_b32 s4, s26
s_mov_b32 s5, s27
s_mov_b32 s6, 256
s_mov_b32 s7, 0x20000
s_lshl_b32 s{sT1}, s{sGRP}, 2
v_mov_b32 v204, 0
v_mov_b32 v205, 1
s_mov_b64 exec, 1
buffer_atomic_add v205, v204, s[4:7], s{sT1} offen sc1
s_mov_b64 exec, -1
k1_nocnt:
""")
    a_read(0, 0, 0); a_read(0, 0, 1); b_read(0, 0); b_read(0, 1)
    for n in range(2, 6): a_read(0, 0, n)
    if team:
        for n in range(6): a_read(0, 1, n)
    for rt in range(2, 4): b_read(0, rt)
    for f in dma_w(1, 0) + dma_w(1, 1) + dma_x(1): f()
    if team:
        ORD = [(rt, 0, k) for rt in (0, 1) for k in range(3)] + [(rt, 1, k) for rt in (0, 1) for k in range(3)]
        ORD += [(rt, hh, k) for rt in range(2, 7) for hh in range(2) for k in range(3)]
        NB1, NB2 = 8, 29
        A0 = [NB1 + 2 + 3 * x for x in range(6)]; A1 = [NB2 + 1 + 2 * x for x in range(6)]
    else:
        ORD = [(rt, 0, k) for rt in range(7) for k in range(3)]
        NB1, NB2 = 4, 14
        A0 = [6, 7, 9, 10, 12, 13]; A1 = []
    lastb = {rt: max(n for n, x in enumerate(ORD) if x[0] == rt) for rt in range(7)}
    def fin(n):
        rt, hh, k = ORD[n]
        q_cvt(e, AC_(hh, rt, k))
        if not team: e(f"ds_write_b64 v{QW[k]}, {v(AC_(hh,rt,k),2)} offset:{QO+rt*1024}")
    for i in range(20):
        if i in (17, 18): e(f"v_add_u32 v{QXA[i-17]}, {X9}, v{QXA[i-17]}")
        seen = set()
        for n, (rt, hh, k) in enumerate(ORD):
            if n == NB1 and i < 19:
                if team: g.wait("lg", f"r1{i}", [], drain_tags=[f"{i}a1{x}" for x in range(3)])
                vwait(f"s{i}", [f"W{i+1}.0"] + ([f"X{(i+1)//2}"] if i % 2 == 1 else []))
                e("s_barrier")
                if i + 2 < 20:
                    for f in (dma_w(i + 2, 0) if i == 0 else []) + dma_w(i + 2, 1): f()
                if i % 2 == 0 and i // 2 + 2 < 10:
                    for f in dma_x(i // 2 + 2): f()
                if not team and i + WT < 20:
                    e(f"s_cmp_lg_u32 s{sWAVE}, {i % 4}")
                    e(f"s_cbranch_scc1 qp_wt{i}")
                    e(f"s_add_u32 s{sT3}, s{sWT}, {(i+WT)*32*12288}")
                    e(f"buffer_load_dword v{QJUNK}, v{QWT}, s[{sWd}:{sWd+3}], s{sT3} offen {OPT['tq']}")
                    g.label(f"qp_wt{i}")
            if n == NB2 and i < 19:
                g.wait("lg", f"r2{i}", [], drain_tags=[f"{i+1}a0{x}" for x in range(3)])
                vwait(f"t{i}", [f"W{i+1}.1"])
                e("s_barrier")
                if i + 3 < 20:
                    for f in dma_w(i + 3, 0): f()
                if i == 18 and team:
                    e(f"s_mul_i32 s{sKSO2}, s{sW4}, 3072")
                    e(f"s_lshl_b32 s{sL1}, s{sW4}, 10")
                    for u in range(NPRE):
                        a, bb = divmod(u, 3)
                        e(f"s_add_u32 m0, s{sL1}, {KVB + (u % NS) * 4096 - bb * 128}")
                        e(f"s_add_u32 s{sT1}, s{sKSO2}, {kv_tile(a) * TILE}")
                        srd = sKd if kv_kind(a) == "K" else sVd
                        e(f"buffer_load_dwordx4 v{PKV_}, s[{srd}:{srd+3}], s{sT1} offen offset:{bb*128} {OPT['kv']} lds")
            tags = [t for t in (f"{i}b{rt}", f"{i}a{hh}{k}") if t not in seen]
            seen.update(tags)
            if tags: g.wait("lg", f"{i}m{n}", tags)
            mfma(e, AC_(hh, rt, k), QAF(i & 1, hh, k), QBF(7 * i + rt), "0" if i == 0 else AC_(hh, rt, k))
            if n == lastb[rt]:
                if rt + 4 < 7: b_read(i, rt + 4)
                elif i < 19: b_read(i + 1, rt - 3)
            if i < 19 and n in A0: a_read(i + 1, 0, A0.index(n))
            if i < 19 and n in A1: a_read(i + 1, 1, A1.index(n))
            if i == 19 and n >= 4: fin(n - 4)
    for n in range(len(ORD) - 4, len(ORD)): fin(n)
    stamp(e, 15, real=bool(OPT["rt"]))
    return g.rec

def t0_path(p, needs, nrt, tag):
    g = Gen(p, needs); e = g.e
    def ACC(rt, t): return rt * 48 + t * 4
    def Q(rt, j): return 96 + rt * 24 + j * 4
    def S(par, rt, kt=0): return 144 + par * 16 + rt * 8 + kt * 4
    def P(par, rt): return 176 + par * 8 + rt * 4
    def NEGM(rt): return 192 + rt * 4
    def LSUM(rt): return 200 + rt * 4
    def STG(rt, j): return 144 + (j * 2 + rt) * 4 if j < 5 else 192 + rt * 4
    ONES = 208
    FR0 = 212; NFR = 8
    def FR(a, f): return FR0 + ((a * 12 + f) % NFR) * 4
    KA = [244, 245]; VA = [246, 247, 248, 249]; QOA = 250
    TC = 251; T = [252, 253, 254, 255]
    HOLD = [48 + 4 * i for i in range(12)] + [156, 172, 180, 188, 196, 204]
    def rd_l(a, f):
        base = ((3 * a + f // 4) % NS) * 4096; tg = f"A{a%32}f{f}"
        if kv_kind(a) == "K":
            j, kt = divmod(f, 2)
            return [lambda: g.ld(tg, f"ds_read_b128 {v(FR(a,f),4)}, v{KA[j&1]} offset:{base+kt*2048}")]
        return [lambda hf=hf: g.ld(tg, f"ds_read_b64_tr_b16 {v(FR(a,f)+2*hf,2)}, v{VA[f&3]} offset:{base+hf*2048}") for hf in range(2)]
    def run(x):
        if callable(x): x()
        else: e(x)
    def cost(x): return 2 if isinstance(x, str) and x.startswith(("v_exp", "v_rcp")) else 1
    def step(key, a, mfs, valu=(), last=False, extra=None, v0=0):
        valu = list(valu)
        ngap = sum(len(mfs(f, 0)) for f in range(v0, 12))
        tot = sum(cost(x) for x in valu); done = 0; gap = 0
        for f in range(12):
            pos = a * 12 + f
            if extra and f in extra: extra[f]()
            if pos in XB_:
                k = XB_.index(pos)
                if OPT["kv0"] and k + 1 < NX and -(-(XB_[k] + LEAD) // 4) < NPRE:
                    e(f"s_waitcnt vmcnt({max(0, NPRE - -(-(XB_[k+1] + LEAD) // 4))})")
                e("s_barrier")
                if nrt == 1 and k == OPT["k0"] + 20:
                    e(f"s_cmp_lg_u32 s{sSLOT}, 1")
                    e("s_cbranch_scc1 t0_nopick")
                    e(f"v_subrev_u32 v{TC}, 6144, v{QOA}")
                    for j in range(6): e(f"ds_read_b128 {v(Q(1,j),4)}, v{TC} offset:{j*1024}")
                    for n in range(18): e(f"ds_read_b128 {v(HOLD[n],4)}, v{TC} offset:{(6+n)*1024}")
                    e("s_waitcnt lgkmcnt(0)")
                    g.label("t0_nopick")
            reads = rd_l(a, f + LEAD) if f + LEAD < 12 else ([] if last else rd_l(a + 1, f + LEAD - 12))
            if not OPT["w2"]: g.wait("lg", f"{key}{f}", [f"A{a}f{f}"])
            elif f % 2 == 0: g.wait("lg", f"{key}{f}", [f"A{a}f{f}", f"A{a}f{f+1}"])
            ms = mfs(f, FR(a, f))
            for i, m in enumerate(ms):
                m()
                if reads: reads.pop(0)()
                if i == len(ms) - 1:
                    while reads: reads.pop(0)()
                if f >= v0:
                    gap += 1
                    while valu and done + cost(valu[0]) / 2 <= tot * gap / ngap:
                        done += cost(valu[0]); run(valu.pop(0))
        for x in valu: run(x)
    def mf_qk(par, zero):
        def m(f, fr):
            j, kt = divmod(f, 2)
            return [lambda rt=rt: mfma(e, S(par, rt, kt), fr, Q(rt, j), ("0" if zero else NEGM(rt)) if j == 0 else S(par, rt, kt)) for rt in range(nrt)]
        return m
    def onorm_l(j):
        out = []
        for rt in range(nrt):
            a = ACC(rt, 2 * j)
            out += [f"v_pk_mul_f32 {v(a+i,2)}, {v(a+i,2)}, {v(T[2*rt],2)}" for i in range(0, 8, 2)]
            out += [f"v_cvt_pk_bf16_f32 v{STG(rt,j)+i}, v{a+2*i}, v{a+2*i+1}" for i in range(4)]
        return out
    def mf_pv(par, first, last=False):
        def m(f, fr):
            out = []
            if f == (0 if last else 5):
                out += [lambda rt=rt: mfma(e, LSUM(rt), ONES, P(par, rt), "0" if first else LSUM(rt)) for rt in range(nrt)]
            return out + [lambda rt=rt: mfma(e, ACC(rt, f), fr, P(par, rt), "0" if first else ACC(rt, f)) for rt in range(nrt)]
        return m
    def sm(par, lo=0, hi=None):
        grp = [(rt, i) for rt in range(nrt) for i in range(4)][lo:hi]
        seq = []
        for n, (rt, i) in enumerate(grp):
            a, b = T[(2 * n) % 4], T[(2 * n + 1) % 4]
            r = S(par, rt) + 2 * i
            seq += [f"v_exp_f32 v{a}, v{r}", f"v_exp_f32 v{b}, v{r+1}"]
            if n > 0: seq.append(prev)
            prev = f"v_cvt_pk_bf16_f32 v{P(par,rt)+i}, v{a}, v{b}"
        return seq + [prev] if grp else []
    def chk_l(par):
        p0 = P(par, 0)
        out = [f"v_or3_b32 v{TC}, v{p0}, v{p0+1}, v{p0+2}"]
        if nrt == 2:
            out += [f"v_or3_b32 v{TC}, v{TC}, v{p0+3}, v{p0+4}", f"v_or3_b32 v{TC}, v{TC}, v{p0+5}, v{p0+6}"]
        out += [f"v_bitop3_b32 v{TC}, v{TC}, v{p0+4*nrt-1}, s{sBIT} bitop3:0xa8", f"v_cmp_ne_u32 vcc, 0, v{TC}"]
        return out
    def chk_branch(par, key):
        e(f"s_cbranch_vccz t0_ok{key}_{tag}")
        if not OPT["norare"]: e(f"s_call_b64 s[{sRET}:{sRET+1}], t0_rare{par}_{tag}")
        g.label(f"t0_ok{key}_{tag}")
    def rowmax(par, rt, t, t2):
        r = S(par, rt)
        e(f"""
v_max3_f32 v{t}, v{r}, v{r+1}, v{r+2}
v_max3_f32 v{t}, v{t}, v{r+3}, v{r+4}
v_max3_f32 v{t}, v{t}, v{r+5}, v{r+6}
v_max_f32 v{t}, v{t}, v{r+7}
v_mov_b32 v{t2}, v{t}
v_permlane32_swap_b32 v{t2}, v{t}
v_max_f32 v{t}, v{t}, v{t2}
v_mov_b32 v{t2}, v{t}
v_permlane16_swap_b32 v{t2}, v{t}
v_max_f32 v{t}, v{t}, v{t2}
v_add_f32 v{t}, {hex(f2u(7.0))}, v{t}
""")
    L = 216
    lane_regs(e, L)
    e(f"""
s_waitcnt lgkmcnt(0)
s_lshl_b32 s{sT1}, s{sWAVE}, 11
s_add_u32 s{sT1}, s{sT1}, {QO}
v_lshl_add_u32 v{QOA}, v{L}, 4, s{sT1}
v_lshrrev_b32 v{L+6}, 1, v{L+1}
v_and_b32 v{L+6}, 3, v{L+6}
v_lshlrev_b32 v{L+6}, 1, v{L+6}
v_xor_b32 v{L+6}, v{L+2}, v{L+6}
v_lshlrev_b32 v{L+6}, 4, v{L+6}
v_lshl_add_u32 v{L+6}, v{L+1}, 7, v{L+6}
v_add_u32 v{KA[0]}, {KVB}, v{L+6}
v_xor_b32 v{KA[1]}, 64, v{KA[0]}
v_lshrrev_b32 v{L+6}, 1, v{L+3}
v_and_b32 v{L+6}, 3, v{L+6}
v_lshlrev_b32 v{L+6}, 5, v{L+6}
v_lshl_add_u32 v{L+6}, v{L+3}, 7, v{L+6}
v_lshl_add_u32 v{L+6}, v{L+5}, 3, v{L+6}
v_add_u32 v{VA[0]}, {KVB}, v{L+6}
v_xor_b32 v{VA[1]}, 32, v{VA[0]}
v_xor_b32 v{VA[2]}, 64, v{VA[0]}
v_xor_b32 v{VA[3]}, 96, v{VA[0]}
s_mov_b32 s{sBIT}, 0x40004000
s_mov_b32 s{sSLOT}, 1
""")
    for i in range(4): e(f"v_mov_b32 v{ONES+i}, 0x3f803f80")
    H = 4 if (nrt == 2 and OPT["psplit"]) else (2 if OPT["psplit"] else 0)
    for unit in range(2):
        if unit >= 1: g.mute += 1
        g.label(f"t0_unit_{tag}")
        if OPT["kv0"]: e(f"s_waitcnt vmcnt({NPRE - -(-(XB_[0] + LEAD) // 4)})")
        e("s_barrier")
        if not g.mute: stamp_slot(e)
        e(f"s_cmp_gt_u32 s{sSLOT}, 3")
        e(f"s_cbranch_scc1 t0_q3_{tag}")
        for j in range(6):
            for rt in range(nrt): e(f"ds_read_b128 {v(Q(rt,j),4)}, v{QOA} offset:{(j*7+rt)*1024}")
        e(f"s_cmp_lg_u32 s{sSLOT}, 1")
        e(f"s_cbranch_scc1 t0_w_{tag}")
        e(f"s_branch t0_noo_{tag}")
        g.label(f"t0_q3_{tag}")
        e(f"s_cmp_eq_u32 s{sSLOT}, 5")
        e(f"s_cbranch_scc1 t0_w_{tag}")
        if nrt == 1:
            for i in range(24): e(f"v_mov_b32 v{Q(0,0)+i}, v{Q(1,0)+i}")
        else:
            e(f"v_add_u32 v{TC}, {B2}, v{QOA}")
            for j in range(6):
                for rt in range(nrt):
                    if j < 3: e(f"ds_read_b128 {v(Q(rt,j),4)}, v{TC} offset:{(j*6+rt)*1024}")
                    else: e(f"ds_read_b128 {v(Q(rt,j),4)}, v{QOA} offset:{(j*7+rt)*1024}")
        g.label(f"t0_w_{tag}")
        e("s_waitcnt lgkmcnt(0)")
        for j in range(6):
            for rt in range(nrt): e(f"ds_write_b128 v{QOA}, {v(STG(rt,j),4)} offset:{(j*7+rt)*1024}")
        e(f"s_cmp_eq_u32 s{sSLOT}, 5")
        e(f"s_cbranch_scc1 t0_exit_{tag}")
        g.label(f"t0_noo_{tag}")
        for f in range(LEAD):
            for x in rd_l(0, f): x()
        step("a0_", 0, mf_qk(0, True), extra={1: lambda: e("s_barrier")})
        for rt in range(nrt):
            rowmax(0, rt, T[0], T[1])
            for i in range(4): e(f"v_sub_f32 v{NEGM(rt)+i}, 0, v{T[0]}")
            for i in range(8): e(f"v_sub_f32 v{S(0,rt)+i}, v{S(0,rt)+i}, v{T[0]}")
        for t in range(15):
            step(f"q{t}_", 2 * t + 1, mf_qk((t + 1) & 1, False), valu=sm(t & 1, H if t else 0) + chk_l(t & 1))
            chk_branch(t & 1, f"q{t}")
            va = sm((t + 1) & 1, 0, H)
            if t == 14: va = sm(1) + chk_l(1)
            step(f"p{t}_", 2 * t + 2, mf_pv(t & 1, t == 0), valu=va, v0=1)
        chk_branch(1, "q15")
        rc = [f"v_rcp_f32 v{T[i]}, v{LSUM(i//2)}" for i in range(2 * nrt)]
        ex = {3: lambda: [e(x) for x in rc]}
        for j in range(4): ex[4 + 2 * j] = lambda j=j: [e(x) for x in onorm_l(j)]
        step("p15_", 31, mf_pv(1, False, True), last=True, extra=ex)
        for x in onorm_l(4) + onorm_l(5): e(x)
        if nrt == 1:
            e(f"s_cmp_lg_u32 s{sSLOT}, 3")
            e("s_cbranch_scc1 t0_nohold")
            e(f"v_subrev_u32 v{TC}, 6144, v{QOA}")
            for n in range(18): e(f"ds_write_b128 v{TC}, {v(HOLD[n],4)} offset:{((3+n//6)*7+n%6)*1024}")
            e("s_waitcnt lgkmcnt(0)")
            g.label("t0_nohold")
        e(f"""
s_add_u32 s{sSLOT}, s{sSLOT}, 1
s_branch t0_unit_{tag}
""")
        if unit >= 1: g.mute -= 1
    g.label(f"t0_exit_{tag}")
    e("s_branch t0_final")
    for par in range(2):
        g.label(f"t0_rare{par}_{tag}")
        for rt in range(nrt):
            t, t2 = TC, T[0]
            rowmax(par, rt, t, t2)
            e(f"v_max_f32 v{t}, 0, v{t}")
            for i in range(4): e(f"v_sub_f32 v{NEGM(rt)+i}, v{NEGM(rt)+i}, v{t}")
            for pp in range(2):
                for i in range(8): e(f"v_sub_f32 v{S(pp,rt)+i}, v{S(pp,rt)+i}, v{t}")
            e(f"v_exp_f32 v{t}, -v{t}")
            for i in range(4): e(f"v_mul_f32 v{LSUM(rt)+i}, v{LSUM(rt)+i}, v{t}")
            for i in range(48): e(f"v_mul_f32 v{ACC(rt,0)+i}, v{ACC(rt,0)+i}, v{t}")
        for x in sm(par): e(x)
        e(f"s_setpc_b64 s[{sRET}:{sRET+1}]")
    return g.rec


def t0_final(p, needs):
    g = Gen(p, needs); e = g.e
    g.label("t0_final")
    op = OpEngine(g, lambda tt: 2 * (tt - 42), 56, 112, 128, [244, 245], 246, [247, 248], KVB, sLW, 2)
    op.fl = OPT["wo5"]; op.early = OPT["early"] >> 1
    op.addr_setup()
    e(f"""
s_mul_i32 s{sOB}, s{sW4}, {8*1280}
s_add_u32 s{sOB}, s{sOB}, {3*245760}
s_lshl_b32 s{sLW}, s{sW4}, 11
s_mov_b32 s{sSLO}, 0x01000c0c
s_mov_b32 s{sSHI}, 0x03020c0c
s_lshl_b32 s{sT1}, s{sW4}, 10
s_add_u32 s{sT1}, s{sT1}, {KVB + 32768}
v_add_u32 v249, s{sT1}, v246
""")
    for i in range(18, 22):
        for f in op.dma(i): f()
    def pk_read(ps):
        for rt in range(7): g.ld("pk", f"ds_read_b128 {v(op.PK(ps*14+rt*2),4)}, v249 offset:{rt*4096}")
    e("s_waitcnt lgkmcnt(0)"); g.lq[:] = []
    e("s_barrier")
    pk_read(3)
    e("s_waitcnt lgkmcnt(0)"); g.lq[:] = []
    for k in range(14):
        for x in op.unpack_l(op.AC(k), op.PK(42 + k)): e(x)
    g.wait("vm", "in", ["O18"])
    e("s_barrier")
    op.first_reads(18)
    def tick(i):
        op.flush_pq()
        g.wait("vm", f"t{i}", [f"O{i+1}"])
        e("s_barrier")
        if i + 4 < 30:
            for f in op.dma(i + 4): f()
    for i in range(18, 30):
        op.step("f", i, 29, tick, store=[3], hooks={5: lambda: pk_read(4)} if i == 20 else None)
    op.finish()
    for i in range(OPT["lastb"] - 12): e("s_barrier")
    if not OPT["oldfin"]: e("s_waitcnt vmcnt(0)")
    e("s_barrier")
    e("s_branch k1_final")
    return g.rec

def t1_path(p, needs):
    g = Gen(p, needs); e = g.e
    def PK(tt): return 2 * tt
    def Q2(k): return PK(56) + 2 * k if k < 14 else 236 + 2 * (k - 14)
    OB = 252
    op = OpEngine(g, PK, 140, 196, 212, [250, 251], OB, [253, 254], T1R, sLW, 0)
    AC, AF, BF = op.AC, op.AF, op.BF
    op.pkb = OPT["pkb"] & 1
    def dma_sub(u):
        a, bb = divmod(u, 3)
        srd = sKd if kv_kind(a) == "K" else sVd
        def f():
            kw = (OPT["kwa"] if u < OPT["kwu"] else OPT["kw"]) if st.get("mixed") else OPT["kw1m"]
            if kw:
                idx = [i for i, t in enumerate(g.vq) if t.startswith("U")]
                n = len(g.vq) - 1 - idx[-kw] if len(idx) >= kw else 999
                k = ("vm", f"kw{u}.{st.get('mixed')}")
                g.rec[k] = min(g.rec.get(k, 999), n)
                val = g.needs.get(k, n)
                if val != 999:
                    e(f"s_waitcnt vmcnt({val})")
                    del g.vq[:len(g.vq) - val if val < len(g.vq) else 0]
            e(f"s_add_u32 m0, s{sL1}, {KVB + (u % NS) * 4096 - bb * 128}")
            e(f"s_add_u32 s{sT1}, s{sKSO2}, {kv_tile(a) * TILE}")
            off = f"offset:{bb*128} " if bb else ""
            g.vm(f"U{u % 96}", f"buffer_load_dwordx4 v{PKV_}, s[{srd}:{srd+3}], s{sT1} offen {off}{OPT['kv']} lds")
        return f
    st = dict(pub=0, iss=0)
    def kv_tags(k):
        upto = XB_[k + 1] if k < NX - 1 else 384
        n = -(-(upto + LEAD) // 4) if upto < 384 else 96
        tags = [f"U{u}" for u in range(st["pub"], n)]
        st["pub"] = max(st["pub"], n)
        return tags
    def kv_issue(k):
        out = []
        while k in KVT and 4 * (st["iss"] - KL) + 4 <= XB_[k]:
            out.append(dma_sub(st["iss"])); st["iss"] += 1
        return out
    def touch_o(t):
        nsh = 16 if OPT["map"] == 0 else 8
        per = 245760 // (4 * nsh)
        e(f"""
s_and_b32 s{sT1}, s{sB}, {nsh-1}
s_lshl_b32 s{sT1}, s{sT1}, 2
s_add_u32 s{sT1}, s{sT1}, s{sW4}
s_mul_i32 s{sT1}, s{sT1}, {per}
s_sub_u32 s{sT2}, s{sSLOT}, 1
s_mul_i32 s{sT2}, s{sT2}, 245760
s_add_u32 s{sT1}, s{sT1}, s{sT2}
s_mov_b32 m0, {SPARE}
v_mbcnt_lo_u32_b32 v{t}, -1, 0
v_mbcnt_hi_u32_b32 v{t}, -1, v{t}
v_min_u32 v{t}, {per//128-1}, v{t}
v_lshlrev_b32 v{t}, 7, v{t}
""")
        g.vm("pf", f"buffer_load_dword v{t}, s[{sOd}:{sOd+3}], s{sT1} offen {OPT['tf']} lds")
    NEXT = {26: 2, 27: 3, 28: 0, 29: 1}
    def tick(i):
        waits = ([f"O{i+1}"] if i < 29 else []) + kv_tags(i)
        op.flush_pq()
        if waits: g.wait("vm", f"o{i}", waits)
        if OPT["vcap"]: e(f"s_waitcnt vmcnt({OPT['vcap']})")
        e("s_barrier")
        io = []
        if not OPT["burst"]:
            if i == 26: io.append(lambda: e(f"s_add_u32 s{sOB}, s{sOB}, 245760"))
            io += op.dma(NEXT.get(i, i + 4))
        elif i % 2 == 1:
            if i == 27: io.append(lambda: e(f"s_add_u32 s{sOB}, s{sOB}, 245760"))
            io += op.dma(NEXT.get(i - 1, i + 3)) + op.dma(NEXT.get(i, i + 4))
        items = kv_issue(i) + io if OPT["kvfirst"] and i < 28 else io + kv_issue(i)
        if OPT["near"] and i == OPT["near"]: items.append(lambda: touch_o(AF(i + 1, 0) if False else 249))
        for f in items[:OPT["now0"]]: f()
        items = items[OPT["now0"]:]
        for j, f in enumerate(items): op.pq.append((op.clock + OPT["vpost"] + (j * OPT["span"]) // len(items), f))
    def q_write(reg):
        for rt in range(7):
            for k in range(3): e(f"ds_write_b64 v{AC(0)+k}, {v(reg(rt,k),2)} offset:{QO+rt*1024}")
        e("s_waitcnt lgkmcnt(0)")
    def q_addr():
        t = AC(1)
        e(f"v_lshrrev_b32 v{t}, 5, v{OB}")
        e(f"v_and_b32 v{t}, 8, v{t}")
        e(f"v_add_u32 v{t}, v{t}, v{OB}")
        for k in range(3):
            e(f"""
s_mul_i32 s{sT1}, s{sW4}, 3
s_add_u32 s{sT1}, s{sT1}, {k}
s_lshr_b32 s{sT2}, s{sT1}, 1
s_mul_i32 s{sT2}, s{sT2}, 7168
s_and_b32 s{sT1}, s{sT1}, 1
s_lshl_b32 s{sT1}, s{sT1}, 3
v_xor_b32 v{AC(0)+k}, s{sT1}, v{t}
v_add_u32 v{AC(0)+k}, s{sT2}, v{AC(0)+k}
""")

    K0, NQ = OPT["k0"], OPT["nq"]
    e(f"""
s_mov_b32 s{sSLOT}, 1
s_mov_b32 s{sRX}, 0x01000c0c
s_mov_b32 s{sRX+1}, 0x03020c0c
""")
    for k in range(21):
        for x in range(2): e(f"v_mov_b32 v{4*k+2+x}, v{84+4*k+x}")
    for x in range(2): e(f"v_subrev_u32 v{QXA[x]}, {X9}, v{QXA[x]}")
    for u in range(NPRE):
        g.vq.append(f"U{u}"); g.issued[f"U{u}"] = 1
    st.update(pub=0, iss=NPRE)
    g.wait("vm", "i_t0", kv_tags(-1))
    e("s_barrier")
    stamp_slot(e)
    def w3(i): return w_dma(g, i, 3, T1R + (i % 4) * TILE, f"W{i}")
    def x3(pp): return x_dma(g, pp, QO + (pp % 3) * 14336)
    for f in w3(0) + w3(1): f()
    for u in range(NPRE, N0 - 96): dma_sub(u)()
    st["iss"] = N0 - 96
    e("s_barrier")
    for f in x3(0) + w3(2) + x3(1) + w3(3): f()
    def tick1(k, waits=(), issue=()):
        w = list(waits) + kv_tags(k)
        if w: g.wait("vm", f"i{k}", w)
        e("s_barrier")
        kv = kv_issue(k) if not (OPT["b1"] and K0 <= k < K0 + 19 and (k - K0) % 2 == OPT["b1"] - 1) else []
        for f in (kv + list(issue) if OPT["kf1"] else list(issue) + kv): f()
        if k == OPT["tch"] and OPT["touch"]: touch_o(212)
    def qa(i, n):
        k, hf = divmod(n, 2)
        g.ld(f"{i}a{k}", f"ds_read_b64_tr_b16 {v(QAF(i&1,0,k)+2*hf,2)}, v{QRA[1][k]} offset:{(i%4)*TILE+hf*1536}")
    def qb(i, rt):
        g.ld(f"{i}b{rt}", f"ds_read_b128 {v(QBF(7*i+rt),4)}, v{QXA[i&1]} offset:{((i>>1)%3)*14336+rt*2048}")
    for k in range(K0): tick1(k, ["W0", "X0"] if k == K0 - 1 else [])
    qa(0, 0); qa(0, 1); qb(0, 0); qb(0, 1)
    for n in range(2, 6): qa(0, n)
    qb(0, 2); qb(0, 3)
    A0 = [NQ + 2, NQ + 3, NQ + 5, NQ + 6, NQ + 8, NQ + 9]
    for i in range(20):
        for n in range(21):
            rt, k = divmod(n, 3)
            if n == NQ and i < 19:
                tick1(K0 + i, [f"W{i+1}"] + ([f"X{(i+1)//2}"] if i % 2 == 1 else []),
                      ((w3(i + 4) if i + 4 < 20 else []) if not OPT["wp"] else
                       ((w3(i + 3) if 0 < i < 17 else []) + (w3(i + 4) if i + 4 < 20 else []) if i % 2 == 0 else [])) +
                      (x3(i // 2 + 2) if i % 2 == 0 and i // 2 + 2 < 10 else []))
            tags = ([f"{i}b{rt}"] if k == 0 else []) + ([f"{i}a{k}"] if rt == 0 else [])
            if tags: g.wait("lg", f"q{i}m{n}", tags)
            mfma(e, QAC(1, rt, k), QAF(i & 1, 0, k), QBF(7 * i + rt), "0" if i == 0 else QAC(1, rt, k))
            if k == 2:
                if rt + 4 < 7: qb(i, rt + 4)
                elif i < 19: qb(i + 1, rt - 3)
            if i < 19 and n in A0: qa(i + 1, A0.index(n))
            if i == 19 and n >= 4: q_cvt(e, QAC(1, (n - 4) // 3, (n - 4) % 3))
    for n in range(17, 21): q_cvt(e, QAC(1, n // 3, n % 3))
    tick1(K0 + 19)
    for rt in range(7):
        for k in range(3): e(f"ds_write_b64 v{QB[k] if rt < 6 else QT[k]}, {v(QAC(1,rt,k),2)} offset:{rt*1024 if rt < 6 else 0}")
    e(f"v_mov_b32 v232, {SPARE + 1024 + 256}")
    e("v_mov_b32 v234, 0")
    e("v_mov_b32 v235, 0")
    e("ds_write_b64 v232, v[234:235]")
    e("ds_write_b64 v232, v[234:235] offset:8")
    e("s_waitcnt lgkmcnt(0)")
    tick1(K0 + 20)
    tick1(K0 + 21)
    for rt in range(7):
        for k in range(3): e(f"ds_write_b64 v{QW[k]}, {v(QAC(0,rt,k),2)} offset:{QO+rt*1024}")
    e(f"""
s_waitcnt lgkmcnt(0)
s_mul_i32 s{sOB}, s{sW4}, {8*1280}
s_lshl_b32 s{sLW}, s{sW4}, 11
""")
    op.addr_setup()
    for k in range(21):
        for x in range(2): e(f"v_mov_b32 v{Q2(k)+x}, v{4*k+2+x}")
    for k in range(K0 + 22, NX):
        tick1(k, [], op.dma(NEXT[k]) if k >= 26 else [])
    for s in range(2, 5):
        if s != 2: g.mute += 1
        g.label("t1_slot")
        assert st["iss"] == N0
        st.update(pub=0, iss=N0 - 96, mixed=1)
        e(f"""
s_add_u32 s{sSLOT}, s{sSLOT}, 1
s_add_u32 s{sKSO2}, s{sKSO2}, 196608
s_cmp_eq_u32 s{sSLOT}, 2
s_cselect_b32 s{sSLO}, 0x0c0c0c0c, s{sRX}
s_cselect_b32 s{sSHI}, 0x0c0c0c0c, s{sRX+1}
""")
        g.wait("vm", "t0", kv_tags(-1))
        e("s_barrier")
        if not g.mute: stamp_slot(e)
        if OPT["touch"] and not OPT["near"]: touch_o(AF(0, 0))
        for k in range(14):
            for x in op.unpack_l(AC(k), PK(k)): e(x)
        g.wait("vm", "o_in", ["O0"])
        e("s_barrier")
        stamp_if(e, 12, OPT["ps"])
        op.first_reads(0)
        for i in range(30): op.step("m", i, 29, tick)
        stamp_if(e, 13, OPT["ps"])
        tick(29)
        op.finish()
        e(f"s_cmp_lg_u32 s{sSLOT}, 2")
        e("s_cbranch_scc1 t1_noq2")
        for k in range(3): e(f"v_mov_b32 v{BF(0)+k}, v{AC(0)+k}")
        e(f"v_mov_b32 v{BF(0)+3}, v{AC(1)}")
        q_addr()
        q_write(lambda rt, k: Q2(rt * 3 + k))
        for k in range(3): e(f"v_mov_b32 v{AC(0)+k}, v{BF(0)+k}")
        e(f"v_mov_b32 v{AC(1)}, v{BF(0)+3}")
        g.label("t1_noq2")
        for n in range(14):
            for x in op.pack_l(PK(56 + n), AC(n)): e(x)
        e(f"s_cmp_lg_u32 s{sSLOT}, 4")
        e("s_cbranch_scc1 t1_slot")
        if s != 2: g.mute -= 1
    g.label("t1_last")
    op.fl = OPT["wo5"]; op.nr = OPT["r5"]; op.early = OPT["early"] & 1; op.pkb = OPT["pkb"] >> 1
    R5 = op.nr
    e(f"""
s_mov_b32 s{sSLOT}, 5
s_lshl_b32 s{sT1}, s{sW4}, 10
s_add_u32 s{sT1}, s{sT1}, {KVB + 32768}
v_add_u32 v249, s{sT1}, v{OB}
""")
    def pk_write(ps):
        for rt in range(7): g.ld("pk", f"ds_write_b128 v249, {v(PK(ps*14+rt*2),4)} offset:{rt*4096}")
    for k in range(14):
        for x in op.unpack_l(AC(k), PK(k)): e(x)
    e("s_waitcnt vmcnt(0)"); g.vq[:] = []
    e("s_barrier")
    stamp_slot(e)
    for i in range(4, R5):
        for f in op.dma(i): f()
    pk_write(3)
    e("s_waitcnt lgkmcnt(0)"); g.lq[:] = []
    e("s_barrier")
    stamp_if(e, 12, OPT["ps"])
    g.issued.pop("O0")
    op.first_reads(0)
    def tick5(i):
        op.flush_pq()
        if i > OPT["lastb"]: return
        if i == 2: g.wait("lg", "pkw", ["pk"])
        g.wait("vm", f"f{i}", [f"O{x}" for x in range(i + 1, 18 if i == OPT["lastb"] else i + 2)] + (["st"] if i == OPT["lastb"] and not OPT["oldfin"] else []))
        e("s_barrier")
        if i + R5 < 18:
            for f in op.dma(i + R5): f()
    g.issued.pop("pk")
    for i in range(18):
        op.step("f", i, 17, tick5, store=[0], hooks={5: lambda: pk_write(4)} if i == 1 else None)
    op.finish()
    stamp_if(e, 13, OPT["ps"])
    g.label("t1_exit")
    return g.rec

sG, sMASK, sQ, sPEND, sDOK = 4, 5, 6, 7, 21
sD, sA, sOUT, sF = 8, 32, 36, 40
sOK = 20
sLD, sST = 12, 16
def fin_setup(e):
    e(f"""
s_and_b32 s{sG}, s2, 7
s_cmp_lt_u32 s{sG}, 4
s_cselect_b32 s{sG}, 0, 16
s_add_u32 s{sG}, s{sG}, s{sB}
s_mov_b32 s{sD}, s26
s_mov_b32 s{sD+1}, s27
s_mov_b32 s{sD+2}, 256
s_mov_b32 s{sD+3}, 0x20000
s_lshl_b32 s{sT2}, s{sG}, 10
s_add_u32 s{sT2}, s{sT2}, {FLAG0}
s_add_u32 s{sF}, s28, s{sT2}
s_addc_u32 s{sF+1}, s29, 0
s_mov_b32 s{sF+2}, 1024
s_mov_b32 s{sF+3}, 0x20000
s_mul_i32 s{sT1}, s{sG}, {8*PART_CU}
s_add_u32 s{sT1}, s{sT1}, {PART0}
s_add_u32 s{sA}, s28, s{sT1}
s_addc_u32 s{sA+1}, s29, 0
s_mov_b32 s{sA+2}, {8*PART_CU}
s_mov_b32 s{sA+3}, 0x20000
s_mul_i32 s{sT1}, s{sB}, {112*2560}
s_lshr_b32 s{sT2}, s{sG}, 4
s_mul_i32 s{sT2}, s{sT2}, 1280
s_add_u32 s{sT1}, s{sT1}, s{sT2}
s_add_u32 s{sOUT}, s24, s{sT1}
s_addc_u32 s{sOUT+1}, s25, 0
s_sub_u32 s{sOUT+2}, {112*2560}, s{sT2}
s_mov_b32 s{sOUT+3}, 0x20000
s_mov_b32 s{sPEND}, 0xff
s_mov_b32 s{sDOK}, 0
s_mov_b32 s{sCTR}, 0
s_mov_b32 s{sQ}, s{sQUAD}
s_lshl_b32 s{sG}, s{sG}, 2
v_mbcnt_lo_u32_b32 v216, -1, 0
v_mbcnt_hi_u32_b32 v216, -1, v216
v_lshlrev_b32 v217, 4, v216
v_and_b32 v218, 15, v216
v_lshrrev_b32 v219, 4, v216
v_mul_u32_u24 v220, 272, v218
v_lshl_add_u32 v220, v219, 3, v220
s_mul_i32 s{sT2}, s{sTEAM}, {4*4352}
s_add_u32 s{sT2}, s{sT2}, {KVB}
s_lshl_b32 s{sT1}, s{sW4}, 6
s_add_u32 s{sT1}, s{sT1}, s{sT2}
v_add_u32 v220, s{sT1}, v220
s_mul_i32 s{sT1}, s{sW4}, {4*272}
s_add_u32 s{sT1}, s{sT1}, s{sT2}
v_mul_u32_u24 v221, 272, v219
v_lshl_add_u32 v221, v218, 4, v221
v_add_u32 v221, s{sT1}, v221
v_mul_u32_u24 v219, 2560, v219
v_lshl_add_u32 v218, v218, 4, v219
v_and_b32 v222, 7, v216
v_lshlrev_b32 v222, 7, v222
v_mov_b32 v223, 0
""")
FINL = SPARE + 1024 + 256
def slice_setup(e):
    for k in range(4):
        e(f"""
s_add_u32 s{sT1}, s{sQ}, {8*k}
s_cmp_lt_u32 s{sT1}, 28
s_cselect_b32 s{sOK}, 1, 0
s_cmp_ge_u32 s{sT1}, 14
s_cselect_b32 s{sT2}, 7, 0
s_add_u32 s{sT1}, s{sT1}, s{sT2}
""")
        if k == 0:
            e(f"""
s_cmp_eq_u32 s{sTEAM}, 0
s_cbranch_scc1 k1_ss{slice_setup.n}
s_add_u32 s{sT1}, s{sQ}, 14
s_cmp_lt_u32 s{sQ}, 7
s_cselect_b32 s{sOK}, 1, 0
k1_ss{slice_setup.n}:
""")
            slice_setup.n += 1
        e(f"""
s_mul_i32 s{sT2}, s{sW4}, 35
s_add_u32 s{sT2}, s{sT2}, s{sT1}
s_lshl_b32 s{sT2}, s{sT2}, 10
s_cmp_lg_u32 s{sOK}, 0
s_cselect_b32 s{sLD+k}, s{sT2}, {8*PART_CU}
s_mul_i32 s{sT2}, s{sT1}, 37
s_lshr_b32 s{sT2}, s{sT2}, 8
s_mul_i32 s{sT3}, s{sT2}, 7
s_sub_u32 s{sT3}, s{sT1}, s{sT3}
s_lshl_b32 s{sT2}, s{sT2}, 8
s_mul_i32 s{sT3}, s{sT3}, {16*2560}
s_add_u32 s{sT2}, s{sT2}, s{sT3}
s_mul_i32 s{sT3}, s{sW4}, {4*2560}
s_add_u32 s{sT2}, s{sT2}, s{sT3}
s_cmp_lg_u32 s{sOK}, 0
s_cselect_b32 s{sST+k}, s{sT2}, 0x1000000
""")
slice_setup.n = 0
def fin_subs(e):
    e(f"""
k1_round:
s_cmp_lg_u32 s{sDOK}, 0
s_cbranch_scc1 k1_r1
buffer_load_dword v224, v223, s[{sD}:{sD+3}], s{sG} offen sc1
s_waitcnt vmcnt(0)
v_readfirstlane_b32 s{sT1}, v224
s_cmp_eq_u32 s{sT1}, 8
s_cselect_b32 s{sDOK}, 1, 0
s_cbranch_scc0 k1_rret
k1_r1:
buffer_load_dword v224, v222, s[{sF}:{sF+3}], 0 offen sc1
s_waitcnt vmcnt(0)
v_cmp_eq_u32 vcc, 1, v224
s_and_b32 s{sT3}, vcc_lo, s{sPEND}
k1_loads:
s_andn2_b32 s{sPEND}, s{sPEND}, s{sT3}
""")
    for q in range(8):
        e(f"s_bitcmp1_b32 s{sT3}, {q}")
        e(f"s_cbranch_scc0 k1_l{q}")
        for k in range(4):
            e(f"s_add_u32 s{sT1}, s{sLD+k}, {q*PART_CU}")
            e(f"buffer_load_dwordx4 {v(8+32*k+4*q,4)}, v217, s[{sA}:{sA+3}], s{sT1} offen {OPT['rd']}")
            if k == 0:
                e(f"s_cmp_lg_u32 s{sTEAM}, 0")
                e(f"s_cbranch_scc1 k1_l{q}")
        e(f"k1_l{q}:")
    e(f"""
k1_rret:
s_setpc_b64 s[{sRET}:{sRET+1}]
""")
def final_reduce(p):
    slice_setup.n = 0
    e = p
    e.label("k1_final")
    if OPT["two"]:
        if OPT["prof"]: e("s_waitcnt vmcnt(0)")
        stamp(e, 10); stamp(e, 11, real=True)
        dump_stamps(e, 28, 64 << 20, 8)
        return
    fin_setup(e); slice_setup(e)
    e(f"""
v_mov_b32 v225, 1
v_mov_b32 v226, {FINL}
s_lshl_b32 s{sT2}, s{sQUAD}, 7
s_cmp_lg_u32 s{sTEAM}, 0
s_cbranch_scc1 k1_f1
s_cmp_lg_u32 s{sWAVE}, 0
s_cbranch_scc1 k1_poll
s_mov_b64 exec, 1
buffer_store_dword v225, v223, s[{sF}:{sF+3}], s{sT2} offen sc1
s_mov_b64 exec, -1
s_branch k1_poll
k1_f1:
v_add_u32 v222, 4, v222
s_waitcnt vmcnt(0)
""")
    stamp(e, 9, real=bool(OPT["rt"]))
    e(f"""
s_mov_b64 exec, 1
ds_add_rtn_u32 v224, v226, v225 offset:8
s_waitcnt lgkmcnt(0)
v_readfirstlane_b32 s{sT1}, v224
s_cmp_lg_u32 s{sT1}, 3
s_cbranch_scc1 k1_f2
buffer_store_dword v225, v223, s[{sF}:{sF+3}], s{sT2} offen offset:4 sc1
buffer_atomic_add v225, v223, s[{sD}:{sD+3}], s{sG} offen offset:128 sc0 sc1
s_waitcnt vmcnt(0)
v_readfirstlane_b32 s{sT2}, v225
s_and_b32 s{sT3}, s{sT2}, 0xff
s_bfe_u32 s{sT2}, s{sT2}, 0x80008
s_cmp_eq_u32 s{sT3}, 7
s_cselect_b32 s{sT2}, s{sT2}, 0
v_mov_b32 v225, s{sT2}
ds_write_b32 v226, v225 offset:4
k1_f2:
s_mov_b64 exec, -1
k1_poll:
s_call_b64 s[{sRET}:{sRET+1}], k1_round
s_add_u32 s{sCTR}, s{sCTR}, 1
s_cmp_eq_u32 s{sPEND}, 0
s_cbranch_scc1 k1_pd
s_cmp_lt_u32 s{sCTR}, {OPT['spin']}
s_cbranch_scc1 k1_poll
k1_pd:
s_mov_b32 s{sOK}, 0
s_cmp_lg_u32 s{sPEND}, 0
s_cbranch_scc1 k1_np
s_call_b64 s[{sRET}:{sRET+1}], k1_sums
s_mov_b32 s{sOK}, 1
k1_np:
s_waitcnt lgkmcnt(0)
s_barrier
s_cmp_lg_u32 s{sWAVE}, 4
s_cbranch_scc1 k1_fw
s_lshl_b32 s{sMASK}, 1, s{sQUAD}
s_mov_b64 exec, 1
s_cmp_eq_u32 s{sPEND}, 0
s_cbranch_scc1 k1_go
s_lshl_b32 s{sT2}, s{sMASK}, 8
v_mov_b32 v225, s{sT2}
buffer_atomic_or v225, v223, s[{sD}:{sD+3}], s{sG} offen offset:128 sc0 sc1
s_waitcnt vmcnt(0)
v_readfirstlane_b32 s{sT2}, v225
s_and_b32 s{sT2}, s{sT2}, 0xff
s_cmp_eq_u32 s{sT2}, 8
s_cselect_b32 s{sMASK}, s{sMASK}, 0
k1_go:
v_mov_b32 v225, s{sMASK}
ds_write_b32 v226, v225
s_waitcnt lgkmcnt(0)
s_mov_b64 exec, -1
k1_fw:
""")
    def sums(k):
        for i in range(4):
            r = 8 + 32 * k + i
            e(f"v_lshlrev_b32 v{140+2*i}, 16, v{r}")
            e(f"v_and_b32 v{141+2*i}, 0xffff0000, v{r}")
        for q in range(1, 8):
            for i in range(4):
                r = 8 + 32 * k + 4 * q + i
                e(f"v_lshlrev_b32 v{148+2*(i&1)}, 16, v{r}")
                e(f"v_and_b32 v{149+2*(i&1)}, 0xffff0000, v{r}")
                e(f"v_pk_add_f32 {v(140+2*i,2)}, {v(140+2*i,2)}, {v(148+2*(i&1),2)}")
        for i in range(4): e(f"v_cvt_pk_bf16_f32 v{152+4*k+i}, v{140+2*i}, v{141+2*i}")
        e(f"ds_write_b64 v220, {v(152+4*k,2)} offset:{k*4352}")
        e(f"ds_write_b64 v220, {v(154+4*k,2)} offset:{k*4352+32}")
    e(f"""
s_barrier
ds_read_b64 v[224:225], v226
s_waitcnt lgkmcnt(0)
v_or_b32 v224, v224, v225
v_readfirstlane_b32 s{sMASK}, v224
""")
    stamp(e, 8, real=bool(OPT["rt"]))
    e(f"""
s_bitcmp1_b32 s{sMASK}, s{sQ}
s_cbranch_scc1 k1_own0
k1_slice:
s_cmp_eq_u32 s{sMASK}, 0
s_cbranch_scc1 k1_done
s_ff1_i32_b32 s{sQ}, s{sMASK}
s_mov_b32 s{sPEND}, 0xff
s_waitcnt vmcnt(0)
""")
    slice_setup(e)
    e(f"""
s_mov_b32 s{sOK}, 0
k1_own0:
s_bitset0_b32 s{sMASK}, s{sQ}
s_cmp_lg_u32 s{sOK}, 0
s_cbranch_scc1 k1_s0
s_mov_b32 s{sT3}, s{sPEND}
s_call_b64 s[{sRET}:{sRET+1}], k1_loads
s_call_b64 s[{sRET}:{sRET+1}], k1_sums
k1_s0:
s_waitcnt lgkmcnt(0)
s_barrier
""")
    if OPT["fs"]: stamp(e, 15, real=True)
    for k in range(4): e(f"ds_read_b128 {v(168+4*k,4)}, v221 offset:{k*4352}")
    for k in range(4):
        e(f"s_waitcnt lgkmcnt({3-k})")
        e(f"buffer_store_dwordx4 {v(168+4*k,4)}, v218, s[{sOUT}:{sOUT+3}], s{sST+k} offen {OPT['of']}")
        if k == 0:
            e(f"s_cmp_lg_u32 s{sTEAM}, 0")
            e("s_cbranch_scc1 k1_s2")
    e(f"""
k1_s2:
s_cmp_eq_u32 s{sMASK}, 0
s_cbranch_scc1 k1_done
s_waitcnt lgkmcnt(0)
s_barrier
s_branch k1_slice
""")
    e("k1_sums:")
    e("s_waitcnt vmcnt(0)")
    if OPT["fs"]: stamp(e, 14, real=True)
    sums(0)
    e(f"s_cmp_lg_u32 s{sTEAM}, 0")
    e("s_cbranch_scc1 k1_s1")
    for k in range(1, 4): sums(k)
    e("k1_s1:")
    e(f"s_setpc_b64 s[{sRET}:{sRET+1}]")
    fin_subs(e)
    e("k1_done:")
    if OPT["prof"]: e("s_waitcnt vmcnt(0)")
    stamp(e, 10); stamp(e, 11, real=True)
    dump_stamps(e, 28, 64 << 20, 8)

def final_reduce_old(p):
    e = p
    sG, sMASK, sQ, sBL = 4, 5, 6, 7
    sD, sA, sOUT = 8, 32, 36
    SKO = OPT["sko"]
    def late():
        if not SKO: return ""
        x = f"""s_mov_b64 exec, -1
s_lshl_b32 s{sT2}, s{sG}, 3
s_add_u32 s{sT2}, s{sT2}, s{sQUAD}
s_mul_i32 s{sT2}, s{sT2}, {PART_CU}
s_add_u32 s{sT2}, s{sT2}, {PART0}
s_add_u32 s{sA}, s28, s{sT2}
s_addc_u32 s{sA+1}, s29, 0
s_mov_b32 s{sA+2}, {PART_CU}
s_mov_b32 s{sA+3}, 0x20000
v_lshlrev_b32 v5, 4, v2
v_add_u32 v6, {KVB+32768}, v5
"""
        for m in range(5):
            for c in range(4):
                x += f"ds_read_b128 {v(8+16*m+4*c,4)}, v6 offset:{m*4096+c*1024}\n"
            x += "s_waitcnt lgkmcnt(0)\n"
            for c in range(4):
                x += f"""s_add_u32 s{sT2}, s{sQUAD}, {8*m}
s_cmp_lt_u32 s{sT2}, 35
s_cselect_b32 s{sT2}, s{sT2}, 0x1000
s_add_u32 s{sT2}, s{sT2}, {35*c}
s_lshl_b32 s{sT2}, s{sT2}, 10
buffer_store_dwordx4 {v(8+16*m+4*c,4)}, v5, s[{sA}:{sA+3}], s{sT2} offen sc1
"""
        return x + "s_waitcnt vmcnt(0)"
    e.label("k1_final")
    if OPT["two"]:
        if OPT["prof"]: e("s_waitcnt vmcnt(0)")
        stamp(e, 10); stamp(e, 11, real=True)
        dump_stamps(e, 28, 64 << 20, 8)
        return
    e(f"""
s_waitcnt vmcnt(0) lgkmcnt(0)
s_barrier
""")
    stamp(e, 9, real=bool(OPT["rt"]))
    e(f"""
s_and_b32 s{sG}, s2, 7
s_cmp_lt_u32 s{sG}, 4
s_cselect_b32 s{sG}, 0, 16
s_add_u32 s{sG}, s{sG}, s{sB}
v_mbcnt_lo_u32_b32 v2, -1, 0
v_mbcnt_hi_u32_b32 v2, -1, v2
s_cmp_gt_u32 s{sWAVE}, 1
s_cbranch_scc1 k1_fw
s_mov_b32 s{sD}, s26
s_mov_b32 s{sD+1}, s27
s_mov_b32 s{sD+2}, 256
s_mov_b32 s{sD+3}, 0x20000
s_lshl_b32 s{sT1}, s{sG}, 2
v_mov_b32 v3, 0
v_mov_b32 v4, 1
s_cmp_eq_u32 s{sWAVE}, 0
s_cbranch_scc1 k1_w0
s_mov_b64 exec, 1
buffer_atomic_add v4, v3, s[{sD}:{sD+3}], s{sT1} offen offset:128 sc0 sc1
s_waitcnt vmcnt(0)
v_readfirstlane_b32 s{sT2}, v4
s_and_b32 s{sT3}, s{sT2}, 0xff
s_bfe_u32 s{sT2}, s{sT2}, 0x80008
s_cmp_eq_u32 s{sT3}, 7
s_cselect_b32 s{sT2}, s{sT2}, 0
v_mov_b32 v4, s{sT2}
ds_write_b32 v3, v4 offset:4
s_waitcnt lgkmcnt(0)
s_mov_b64 exec, -1
s_branch k1_fw
k1_w0:
s_lshl_b32 s{sMASK}, 1, s{sQUAD}
s_lshl_b32 s{sT2}, s{sG}, 10
s_add_u32 s{sT2}, s{sT2}, {FLAG0}
s_add_u32 s{sA}, s28, s{sT2}
s_addc_u32 s{sA+1}, s29, 0
s_mov_b32 s{sA+2}, 1024
s_mov_b32 s{sA+3}, 0x20000
s_lshl_b32 s{sT2}, s{sQUAD}, 7
s_mov_b64 exec, 1
buffer_store_dword v4, v3, s[{sA}:{sA+3}], s{sT2} offen sc1
s_mov_b64 exec, 0xff
v_lshlrev_b32 v5, 7, v2
s_mov_b32 s{sCTR}, 0
k1_poll:
buffer_load_dword v6, v3, s[{sD}:{sD+3}], s{sT1} offen sc1
buffer_load_dword v4, v5, s[{sA}:{sA+3}], 0 offen sc1
s_waitcnt vmcnt(1)
v_cmp_ne_u32 vcc, 8, v6
s_cbranch_vccnz k1_again
k1_poll2:
s_waitcnt vmcnt(0)
v_cmp_ne_u32 vcc, 1, v4
s_cbranch_vccz k1_go
s_add_u32 s{sCTR}, s{sCTR}, 1
s_cmp_lt_u32 s{sCTR}, {OPT['spin']}
s_cbranch_scc0 k1_late
buffer_load_dword v4, v5, s[{sA}:{sA+3}], 0 offen sc1
s_branch k1_poll2
k1_again:
s_waitcnt vmcnt(0)
s_add_u32 s{sCTR}, s{sCTR}, 1
s_cmp_lt_u32 s{sCTR}, {OPT['spin']}
s_cbranch_scc1 k1_poll
k1_late:
{late()}
s_mov_b64 exec, 1
s_lshl_b32 s{sT2}, s{sMASK}, 8
v_mov_b32 v4, s{sT2}
buffer_atomic_or v4, v3, s[{sD}:{sD+3}], s{sT1} offen offset:128 sc0 sc1
s_waitcnt vmcnt(0)
v_readfirstlane_b32 s{sT2}, v4
s_and_b32 s{sT2}, s{sT2}, 0xff
s_cmp_eq_u32 s{sT2}, 8
s_cselect_b32 s{sMASK}, s{sMASK}, 0
k1_go:
s_mov_b64 exec, 1
v_mov_b32 v4, s{sMASK}
ds_write_b32 v3, v4
s_waitcnt lgkmcnt(0)
s_mov_b64 exec, -1
k1_fw:
s_mul_i32 s{sT1}, s{sG}, {8*PART_CU}
s_add_u32 s{sT1}, s{sT1}, {PART0}
s_add_u32 s{sA}, s28, s{sT1}
s_addc_u32 s{sA+1}, s29, 0
s_mov_b32 s{sA+2}, {8*PART_CU}
s_mov_b32 s{sA+3}, 0x20000
s_mul_i32 s{sT1}, s{sB}, {112*2560}
s_lshr_b32 s{sT2}, s{sG}, 4
s_mul_i32 s{sT2}, s{sT2}, 1280
s_add_u32 s{sT1}, s{sT1}, s{sT2}
s_add_u32 s{sOUT}, s24, s{sT1}
s_addc_u32 s{sOUT+1}, s25, 0
s_sub_u32 s{sOUT+2}, {112*2560}, s{sT2}
s_mov_b32 s{sOUT+3}, 0x20000
v_lshlrev_b32 v3, 4, v2
v_and_b32 v4, 15, v2
v_lshrrev_b32 v5, 4, v2
v_mul_u32_u24 v6, 272, v4
v_lshl_add_u32 v6, v5, 3, v6
s_mul_i32 s{sT2}, s{sTEAM}, {3*4352}
s_add_u32 s{sT2}, s{sT2}, 2048
s_lshl_b32 s{sT1}, s{sW4}, 6
s_add_u32 s{sT1}, s{sT1}, s{sT2}
v_add_u32 v6, s{sT1}, v6
s_mul_i32 s{sT1}, s{sW4}, {4*272}
s_add_u32 s{sT1}, s{sT1}, s{sT2}
v_mul_u32_u24 v7, 272, v5
v_lshl_add_u32 v7, v4, 4, v7
v_add_u32 v7, s{sT1}, v7
v_mul_u32_u24 v5, 2560, v5
v_lshl_add_u32 v4, v4, 4, v5
v_mov_b32 v5, 0
s_barrier
ds_read_b64 v[8:9], v5
s_waitcnt lgkmcnt(0)
v_or_b32 v5, v8, v9
v_readfirstlane_b32 s{sMASK}, v5
""")
    stamp(e, 8, real=bool(OPT["rt"]))
    e(f"""
k1_slice:
s_cmp_eq_u32 s{sMASK}, 0
s_cbranch_scc1 k1_done
s_ff1_i32_b32 s{sQ}, s{sMASK}
s_bitset0_b32 s{sMASK}, s{sQ}
s_cmp_eq_u32 s{sQ}, s{sQUAD}
s_cselect_b32 s15, s{sQUAD}, 8
s_cselect_b32 s16, -1, 0
s_lshl_b32 s{sBL}, s{sTEAM}, 3
s_add_u32 s{sBL}, s{sBL}, s{sQ}
""")
    for k in range(3):
        e(f"""
s_add_u32 s{sT1}, s{sBL}, {16*k}
s_mul_i32 s{sT2}, s{sW4}, 35
s_add_u32 s{sT2}, s{sT2}, s{sT1}
s_lshl_b32 s{sT2}, s{sT2}, 10
s_cmp_lt_u32 s{sT1}, 35
s_cselect_b32 s{sT2}, s{sT2}, {8*PART_CU}
""")
        for q in range(8):
            r = 8 + 32 * k + 4 * q
            if SKO:
                e(f"s_cmp_eq_u32 s15, {q}")
                e(f"s_cselect_b32 s{sT3}, {8*PART_CU}, s{sT2}")
            e(f"buffer_load_dwordx4 {v(r,4)}, v3, s[{sA}:{sA+3}], s{sT3 if SKO else sT2} offen {OPT['rd']}")
            if q < 7: e(f"s_add_u32 s{sT2}, s{sT2}, {PART_CU}")
        e(f"""
s_mul_i32 s{sT2}, s{sT1}, 37
s_lshr_b32 s{sT2}, s{sT2}, 8
s_mul_i32 s{sT3}, s{sT2}, 7
s_sub_u32 s{sT3}, s{sT1}, s{sT3}
s_lshl_b32 s{sT2}, s{sT2}, 8
s_mul_i32 s{sT3}, s{sT3}, {16*2560}
s_add_u32 s{sT2}, s{sT2}, s{sT3}
s_mul_i32 s{sT3}, s{sW4}, {4*2560}
s_add_u32 s{sT2}, s{sT2}, s{sT3}
s_cmp_lt_u32 s{sT1}, 35
s_cselect_b32 s{12+k}, s{sT2}, 0x1000000
""")
    if SKO:
        e(f"""
s_lshl_b32 s{sT1}, s{sTEAM}, 12
s_lshl_b32 s{sT2}, s{sW4}, 10
s_add_u32 s{sT1}, s{sT1}, s{sT2}
s_add_u32 s{sT1}, s{sT1}, {KVB+32768}
v_add_u32 v140, s{sT1}, v3
""")
        for k in range(3): e(f"ds_read_b128 {v(144+4*k,4)}, v140 offset:{k*8192}")
        e("s_waitcnt lgkmcnt(0)")
        for i in range(12): e(f"v_and_b32 v{144+i}, s16, v{144+i}")
    for k in range(3):
        if SKO:
            for i in range(4):
                e(f"v_lshlrev_b32 v{104+2*i}, 16, v{144+4*k+i}")
                e(f"v_and_b32 v{105+2*i}, 0xffff0000, v{144+4*k+i}")
        for q in range(8):
            e(f"s_waitcnt vmcnt({23-8*k-q})")
            if OPT["fs"] and (k, q) in ((0, 0), (0, 7), (2, 7)): stamp(e, {(0, 0): 12, (0, 7): 13, (2, 7): 14}[(k, q)], real=True)
            for i in range(4):
                r = 8 + 32 * k + 4 * q + i
                if q == 0 and not SKO:
                    e(f"v_lshlrev_b32 v{104+2*i}, 16, v{r}")
                    e(f"v_and_b32 v{105+2*i}, 0xffff0000, v{r}")
                else:
                    e(f"v_lshlrev_b32 v112, 16, v{r}")
                    e(f"v_and_b32 v113, 0xffff0000, v{r}")
                    e(f"v_add_f32 v{104+2*i}, v{104+2*i}, v112")
                    e(f"v_add_f32 v{105+2*i}, v{105+2*i}, v113")
        for i in range(4): e(f"v_cvt_pk_bf16_f32 v{116+4*k+i}, v{104+2*i}, v{105+2*i}")
        e(f"ds_write_b64 v6, {v(116+4*k,2)} offset:{k*4352}")
        e(f"ds_write_b64 v6, {v(118+4*k,2)} offset:{k*4352+32}")
    e("s_waitcnt lgkmcnt(0)")
    e("s_barrier")
    if OPT["fs"]: stamp(e, 15, real=True)
    for k in range(3): e(f"ds_read_b128 {v(128+4*k,4)}, v7 offset:{k*4352}")
    for k in range(3):
        e(f"s_waitcnt lgkmcnt({2-k})")
        e(f"buffer_store_dwordx4 {v(128+4*k,4)}, v4, s[{sOUT}:{sOUT+3}], s{12+k} offen {OPT['of']}")
    e("""
s_barrier
s_branch k1_slice
k1_done:
""")
    if OPT["prof"]: e("s_waitcnt vmcnt(0)")
    stamp(e, 10); stamp(e, 11, real=True)
    dump_stamps(e, 28, 64 << 20, 8)

def build(needs):
    p = Prog()
    p(f"""
.globl {NAME}_kernel
.p2align 8
.type {NAME}_kernel,@function
{NAME}_kernel:
s_cmp_ge_u32 s2, 256
s_cbranch_scc1 k1_end
s_load_dwordx16 s[4:19], s[0:1], 0
s_load_dwordx8 s[20:27], s[0:1], 64
s_load_dwordx2 s[28:29], s[0:1], 96
v_lshrrev_b32 v1, 6, v0
v_and_b32 v2, 63, v0
v_readfirstlane_b32 s{sWAVE}, v1
s_and_b32 s{sT1}, s2, 7
s_lshr_b32 s{sT2}, s2, 3
""")
    if OPT["map"] == 0:
        p(f"""
s_and_b32 s{sQUAD}, s{sT1}, 3
s_lshl_b32 s{sQUAD}, s{sQUAD}, 1
s_and_b32 s{sB}, s{sT2}, 1
s_add_u32 s{sQUAD}, s{sQUAD}, s{sB}
s_lshr_b32 s{sB}, s{sT2}, 1
""")
    else:
        p(f"""
s_and_b32 s{sQUAD}, s{sT1}, 1
s_lshl_b32 s{sQUAD}, s{sQUAD}, 2
s_and_b32 s{sB}, s{sT2}, 3
s_add_u32 s{sQUAD}, s{sQUAD}, s{sB}
s_and_b32 s{sB}, s{sT1}, 2
s_lshl_b32 s{sB}, s{sB}, 2
s_lshr_b32 s{sT2}, s{sT2}, 2
s_add_u32 s{sB}, s{sB}, s{sT2}
""")
    p(f"""
s_and_b32 s{sW4}, s{sWAVE}, 3
s_lshr_b32 s{sTEAM}, s{sWAVE}, 2
s_mul_i32 s{sLW}, s{sW4}, 3072
s_mov_b32 s{sKd+2}, {0 if OPT['nokv'] else 786432}
s_mov_b32 s{sKd+3}, 0x20000
s_mov_b32 s{sVd+2}, {0 if OPT['nokv'] else 786432}
s_mov_b32 s{sVd+3}, 0x20000
s_mov_b32 s{sWd+3}, 0x20000
s_mov_b32 s{sOd+2}, {0 if OPT['now'] else 983040}
s_mov_b32 s{sOd+3}, 0x20000
s_mov_b32 s{sXd+2}, {0 if OPT['nox'] else 143360}
s_mov_b32 s{sXd+3}, 0x20000
s_mov_b32 s{sPd+2}, {35840+QO}
s_mov_b32 s{sPd+3}, 0x20000
s_waitcnt lgkmcnt(0)
s_cmp_lt_u32 s{sT1}, 4
s_cselect_b64 s[4:5], s[4:5], s[14:15]
s_cselect_b64 s[6:7], s[6:7], s[16:17]
s_cselect_b64 s[8:9], s[8:9], s[18:19]
s_cselect_b64 s[10:11], s[10:11], s[20:21]
s_cselect_b64 s[12:13], s[12:13], s[22:23]
s_cselect_b32 s{sT3}, 0, 16
s_mul_i32 s{sT2}, s{sB}, 143360
s_add_u32 s{sXd}, s4, s{sT2}
s_addc_u32 s{sXd+1}, s5, 0
s_mul_i32 s{sT2}, s{sQUAD}, 1536
s_add_u32 s{sWd}, s10, s{sT2}
s_addc_u32 s{sWd+1}, s11, 0
s_sub_u32 s{sWd+2}, 7864320, s{sT2}
{'s_mov_b32 s%d, 0' % (sWd+2) if OPT['now'] else ''}
s_lshl_b32 s{sT1}, s{sB}, 3
s_add_u32 s{sT1}, s{sT1}, s{sQUAD}
s_mul_i32 s{sT2}, s{sT1}, 786432
s_add_u32 s{sKd}, s6, s{sT2}
s_addc_u32 s{sKd+1}, s7, 0
s_add_u32 s{sVd}, s8, s{sT2}
s_addc_u32 s{sVd+1}, s9, 0
s_mul_i32 s{sT2}, s{sQUAD}, 983040
s_add_u32 s{sOd}, s12, s{sT2}
s_addc_u32 s{sOd+1}, s13, 0
s_lshl_b32 s{sT3}, s{sT3}, 3
s_add_u32 s{sT1}, s{sT1}, s{sT3}
s_mul_i32 s{sT1}, s{sT1}, {PART_CU}
s_mul_i32 s{sT2}, s{sW4}, 35840
s_add_u32 s{sT1}, s{sT1}, s{sT2}
s_add_u32 s{sT1}, s{sT1}, {PART0-QO}
s_add_u32 s{sPd}, s28, s{sT1}
s_addc_u32 s{sPd+1}, s29, 0
""")
    stamp(p, 0); stamp(p, 1, real=True)
    p(f"""
s_cmp_lg_u32 s{sWAVE}, 0
s_cbranch_scc1 k1_noclr
s_and_b32 s{sT1}, s2, 7
s_cmp_lt_u32 s{sT1}, 4
s_cselect_b32 s{sT1}, 0, 16
s_add_u32 s{sGRP}, s{sT1}, s{sB}
s_lshl_b32 s{sT1}, s{sGRP}, 3
s_add_u32 s{sT1}, s{sT1}, s{sQUAD}
s_lshl_b32 s{sT1}, s{sT1}, 7
s_add_u32 s{sT1}, s{sT1}, {FLAG0}
s_add_u32 s4, s28, s{sT1}
s_addc_u32 s5, s29, 0
s_mov_b32 s6, 128
s_mov_b32 s7, 0x20000
v_mov_b32 v2, 0
v_mov_b32 v3, 0
s_mov_b64 exec, 1
buffer_store_dwordx2 v[2:3], v2, s[4:7], 0 offen sc1
s_mov_b64 exec, -1
k1_noclr:
""")
    if OPT["cpf"]:
        p(f"""
s_cmp_lg_u32 s{sWAVE}, 7
s_cbranch_scc1 k1_nocpf
s_getpc_b64 s[4:5]
s_mov_b32 s6, k1_end-k1_nocpf
s_mov_b32 s7, 0x20000
s_lshr_b32 s{sT1}, s2, 3
s_and_b32 s{sT1}, s{sT1}, 31
s_lshl_b32 s{sT1}, s{sT1}, 7
v_and_b32 v1, 31, v0
v_lshlrev_b32 v1, 12, v1
buffer_load_dword v247, v1, s[4:7], s{sT1} offen
k1_nocpf:
""")
    if OPT["tlb"]:
        p(f"""
v_and_b32 v1, 3, v0
v_lshlrev_b32 v1, 18, v1
v_min_u32 v1, {786432-128}, v1
s_cmp_lg_u32 s{sWAVE}, 1
s_cbranch_scc1 k1_t1a
buffer_load_dword v254, v1, s[{sKd}:{sKd+3}], 0 offen nt
k1_t1a:
s_cmp_lg_u32 s{sWAVE}, 2
s_cbranch_scc1 k1_t1b
buffer_load_dword v254, v1, s[{sVd}:{sVd+3}], 0 offen nt
k1_t1b:
s_cmp_lg_u32 s{sWAVE}, 3
s_cbranch_scc1 k1_t1c
buffer_load_dword v254, v1, s[{sOd}:{sOd+3}], 0 offen nt
k1_t1c:
s_cmp_lg_u32 s{sWAVE}, 4
s_cbranch_scc1 k1_t1d
s_and_b32 s{sT1}, s2, 7
s_cmp_lt_u32 s{sT1}, 4
s_cselect_b32 s{sT1}, 0, 16
s_add_u32 s{sT1}, s{sT1}, s{sB}
s_mul_i32 s{sT1}, s{sT1}, {8*PART_CU}
s_add_u32 s{sT1}, s{sT1}, {PART0}
s_add_u32 s4, s28, s{sT1}
s_addc_u32 s5, s29, 0
s_mov_b32 s6, {8*PART_CU}
s_mov_b32 s7, 0x20000
v_and_b32 v1, 7, v0
v_mul_u32_u24 v1, {PART_CU}, v1
buffer_load_dword v254, v1, s[4:7], 0 offen nt sc1
k1_t1d:
s_cmp_lg_u32 s{sWAVE}, 5
s_cbranch_scc1 k1_t1e
s_mul_i32 s{sT1}, s{sB}, {112*2560}
s_add_u32 s4, s24, s{sT1}
s_addc_u32 s5, s25, 0
s_mov_b32 s6, {112*2560}
s_mov_b32 s7, 0x20000
v_and_b32 v1, 1, v0
v_mul_u32_u24 v1, {112*2560-128}, v1
buffer_load_dword v254, v1, s[4:7], 0 offen nt sc1
k1_t1e:
""")
    rec = {}
    p(f"""
s_cmp_ge_u32 s{sWAVE}, 4
s_cbranch_scc1 k1_q1
""")
    rec["qp0"] = qp_phase(p, needs.get("qp0", {}), 0)
    if OPT["prio0"]: p(f"s_setprio {OPT['prio0']}")
    p(f"""
s_cmp_eq_u32 s{sWAVE}, 3
s_cbranch_scc1 k1_light
""")
    rec["h"] = t0_path(p, needs.get("h", {}), 2, "h")
    p.label("k1_light")
    rec["l"] = t0_path(p, needs.get("l", {}), 1, "l")
    rec["f"] = t0_final(p, needs.get("f", {}))
    p.label("k1_q1")
    rec["qp1"] = qp_phase(p, needs.get("qp1", {}), 1)
    p.label("k1_t1")
    if OPT["not1"]: p("s_endpgm")
    if OPT["prio1"]: p(f"s_setprio {OPT['prio1']}")
    rec["t1"] = t1_path(p, needs.get("t1", {}))
    (final_reduce_old if OPT['oldfin'] else final_reduce)(p)
    p("""
k1_end:
s_endpgm
""")
    return p, rec

def reduce_kernel():
    p = Prog()
    p(f"""
.globl reduce_kernel
.p2align 8
.type reduce_kernel,@function
reduce_kernel:
s_cmp_ge_u32 s2, 1120
s_cbranch_scc1 k2_end
s_load_dwordx2 s[8:9], s[0:1], 80
s_load_dwordx2 s[10:11], s[0:1], 96
v_lshrrev_b32 v1, 6, v0
v_and_b32 v2, 63, v0
v_readfirstlane_b32 s3, v1
s_mul_i32 s5, s2, 1873
s_lshr_b32 s5, s5, 16
s_mul_i32 s6, s5, 35
s_sub_u32 s22, s2, s6
s_mul_i32 s6, s3, 35
s_add_u32 s6, s6, s22
s_mul_i32 s7, s5, {8*PART_CU}
s_add_u32 s7, s7, {PART0}
s_lshl_b32 s20, s6, 10
v_lshlrev_b32 v3, 4, v2
s_mov_b32 s14, {8*PART_CU}
s_mov_b32 s15, 0x20000
s_waitcnt lgkmcnt(0)
s_add_u32 s12, s10, s7
s_addc_u32 s13, s11, 0
""")
    for q in range(8):
        p(f"buffer_load_dwordx4 v[{8+4*q}:{11+4*q}], v3, s[12:15], s20 offen {OPT['rd']}")
        if q < 7: p(f"s_add_u32 s20, s20, {PART_CU}")
    p(f"""
s_and_b32 s23, s5, 15
s_mul_i32 s23, s23, {112*2560}
s_lshr_b32 s24, s5, 4
s_mul_i32 s24, s24, 1280
s_add_u32 s23, s23, s24
s_mov_b32 s16, s8
s_mov_b32 s17, s9
s_mov_b32 s18, {16*112*2560}
s_mov_b32 s19, 0x20000
s_mul_i32 s26, s22, 37
s_lshr_b32 s26, s26, 8
s_mul_i32 s27, s26, 7
s_sub_u32 s27, s22, s27
s_lshl_b32 s30, s26, 8
s_mul_i32 s28, s27, {16*2560}
s_add_u32 s30, s30, s28
s_mul_i32 s28, s3, {4*2560}
s_add_u32 s30, s30, s28
s_add_u32 s32, s30, s23
v_and_b32 v4, 15, v2
v_lshrrev_b32 v5, 4, v2
v_mul_u32_u24 v6, 272, v4
v_lshl_add_u32 v6, v5, 3, v6
s_lshl_b32 s28, s3, 6
v_add_u32 v6, s28, v6
s_mul_i32 s28, s3, {4*272}
v_mul_u32_u24 v7, 272, v5
v_lshl_add_u32 v7, v4, 4, v7
v_add_u32 v7, s28, v7
v_mul_u32_u24 v5, 2560, v5
v_lshl_add_u32 v4, v4, 4, v5
""")
    for q in range(8):
        p(f"s_waitcnt vmcnt({7-q})")
        for i in range(4):
            r = 8 + 4 * q + i
            if q == 0:
                p(f"v_lshlrev_b32 v{40+2*i}, 16, v{r}")
                p(f"v_and_b32 v{41+2*i}, 0xffff0000, v{r}")
            else:
                p(f"v_lshlrev_b32 v48, 16, v{r}")
                p(f"v_and_b32 v49, 0xffff0000, v{r}")
                p(f"v_add_f32 v{40+2*i}, v{40+2*i}, v48")
                p(f"v_add_f32 v{41+2*i}, v{41+2*i}, v49")
    for i in range(4): p(f"v_cvt_pk_bf16_f32 v{52+i}, v{40+2*i}, v{41+2*i}")
    p(f"""
ds_write_b64 v6, v[52:53]
ds_write_b64 v6, v[54:55] offset:32
s_waitcnt lgkmcnt(0)
s_barrier
ds_read_b128 v[52:55], v7
s_waitcnt lgkmcnt(0)
buffer_store_dwordx4 v[52:55], v4, s[16:19], s32 offen {OPT['of']}
k2_end:
s_endpgm
""")
    return p

def desc(name, vg):
    return f""".amdhsa_kernel {name}
  .amdhsa_next_free_vgpr {vg}
  .amdhsa_next_free_sgpr 102
  .amdhsa_accum_offset {vg}
  .amdhsa_group_segment_fixed_size 0
  .amdhsa_kernarg_size 104
  .amdhsa_user_sgpr_count 2
  .amdhsa_user_sgpr_kernarg_segment_ptr 1
  .amdhsa_system_sgpr_workgroup_id_x 1
.end_amdhsa_kernel
"""

def main():
    for t in range(1120): assert (t * 1873) >> 16 == t // 35
    for t in range(140): assert (t * 235) >> 13 == t // 35
    for t in range(35): assert (t * 37) >> 8 == t // 7
    _, rec = build({})
    for it in range(4):
        a, rec2 = build(rec)
        if rec2 == rec: break
        rec = rec2
    else: raise SystemExit("no fixpoint")
    b = reduce_kernel()
    if OPT["novm"]: a.L[:] = [l for l in a.L if not l.startswith("buffer_load")]
    if OPT["nobar"]: a.L[:] = [l for l in a.L if not l.startswith("s_barrier")]
    if OPT["nolg"]:
        out_ = []
        for i_, l in enumerate(a.L):
            if l.startswith("s_waitcnt lgkmcnt") and not a.L[i_-1].startswith(("s_mem", "s_load")) and i_ > 60: continue
            out_.append(l)
        a.L[:] = out_
    if OPT["nord"]: a.L[:] = [l for l in a.L if not l.startswith("ds_read")]
    if OPT["noexp"]: a.L[:] = [l.replace("v_exp_f32", "v_mov_b32") if l.startswith("v_exp_f32") and "-v" not in l else l for l in a.L]
    if OPT["nosm"]: a.L[:] = [l for l in a.L if not l.startswith(("v_exp_f32", "v_cvt_pk"))]
    if OPT["nochk"]: a.L[:] = [l for l in a.L if not l.startswith(("v_or3", "v_or_b32", "v_cmp_ne", "s_cbranch_vccz", "v_and_b32 v252"))]
    if OPT["prof"] == 2:
        out_ = []; L_ = a.L; inrole = False; i_ = 0
        while i_ < len(L_):
            l = L_[i_]
            if l.startswith(("t0_unit", "t1_slot")): inrole = True
            if l.startswith(("t0_exit", "t1_exit")): inrole = False
            if inrole and l == "s_barrier":
                j = len(out_)
                while j > 0 and (out_[j-1].startswith(("s_waitcnt vmcnt", "s_cmp_eq_u32 s55, 5", "s_cbranch_scc1 t1_wa")) or out_[j-1].startswith("t1_wa")): j -= 1
                blk = out_[j:]; del out_[j:]
                out_ += ["s_memtime s[4:5]"] + blk + ["s_memtime s[6:7]", "s_barrier", "s_memtime s[8:9]", "s_waitcnt lgkmcnt(0)",
                         "s_sub_u32 s4, s6, s4", "s_add_u32 s94, s94, s4", "s_sub_u32 s6, s8, s6", "s_add_u32 s95, s95, s6"]
            elif inrole and l.startswith("buffer_load") and l.endswith("lds"):
                out_ += ["s_memtime s[4:5]", l, "s_memtime s[6:7]", "s_waitcnt lgkmcnt(0)", "s_sub_u32 s4, s6, s4", "s_add_u32 s89, s89, s4"] if OPT["pv"] else [l]
            elif l.startswith(("k1_light:", "k1_t1:")) or l.startswith("s_cbranch_scc1 k1_light"):
                out_ += [l, "s_mov_b32 s94, 0", "s_mov_b32 s95, 0", "s_mov_b32 s89, 0"]
            else: out_.append(l)
            i_ += 1
        a.L[:] = out_
    if OPT["prof"] == 4:
        out_ = []; inrole = False; idx = 0
        L_ = [l for l in a.L if not (l.startswith(("s_cselect_b32 s8", "s_cselect_b32 s9")) or (l.startswith(("s_mov_b32 s8", "s_mov_b32 s9")) and "s100" in l))]
        def st_(k):
            return ["s_memtime s[100:101]", "s_waitcnt lgkmcnt(0)", f"s_cmp_eq_u32 s{sSLOT}, {OPT['ps']}", f"s_cselect_b32 s{80+k}, s100, s{80+k}"] if 0 <= k < 16 else []
        for i_, l in enumerate(L_):
            if l.startswith(("t0_unit", "t1_slot")): inrole = True; idx = 0
            if l.startswith(("t0_exit", "t1_last")): inrole = False
            k = (idx - OPT["pb"]) * 4
            if inrole and l == "s_barrier":
                x = out_.pop() if out_[-1].startswith("s_waitcnt vmcnt") else None
                out_ += st_(k - 2) + ([x] if x else []) + st_(k - 1) + [l] + st_(k); idx += 1
            elif inrole and l.startswith("buffer_load") and l.endswith("lds"):
                nxt = next(y for y in L_[i_+1:] if y == "s_barrier" or (y.startswith("buffer_load") and y.endswith("lds")))
                out_ += [l] + (st_(k - 3) if nxt == "s_barrier" else [])
            else: out_.append(l)
        a.L[:] = out_
    if OPT["prof"] == 3:
        out_ = []; inrole = False; idx = 0
        for l in a.L:
            if l.startswith(("t0_unit", "t1_slot")): inrole = True; idx = 0
            if l.startswith(("t0_exit", "t1_exit")) or l.startswith("s_cbranch_scc1 t1_slot"): inrole = False
            if l.startswith(("s_mov_b32 s8", "s_mov_b32 s9")) and "s100" in l: continue
            if l.startswith("s_cselect_b32 s8") or l.startswith("s_cselect_b32 s9") or l.startswith("s_mov_b32 s9") and "s100" in l: continue
            if inrole and l == "s_barrier":
                k = idx - OPT["pb"]; idx += 1
                st_ = ["s_memtime s[100:101]", "s_waitcnt lgkmcnt(0)", f"s_cmp_eq_u32 s{sSLOT}, {OPT['ps']}", f"s_cselect_b32 s{80+k}, s100, s{80+k}"] if 0 <= k < 16 else []
                out_ += (st_ + [l]) if OPT["pa"] else ([l] + st_)
            else: out_.append(l)
        a.L[:] = out_
    if OPT["nomfq"] or OPT["nomf1"] or OPT["nomf0"]:
        out_ = []; sec = "q"
        for l in a.L:
            if l.startswith("t0_unit"): sec = "0"
            if l.startswith("k1_t1:"): sec = "1"
            if l.startswith("v_mfma") and OPT["nomf" + sec]: continue
            out_.append(l)
        a.L[:] = out_
    if OPT["xa"]:
        out_ = []; sec = "q"; cnt = 0
        for l in a.L:
            if l.startswith("t0_unit_h"): sec = "h"
            if l.startswith("t0_unit_l"): sec = "l"
            if l.startswith("t0_final"): sec = "f"
            if l.startswith("k1_t1:"): sec = "1"
            if OPT["xa"] == 1 and sec in "hl" and l.startswith("v_mfma") and "v[208:211]" in l: continue
            if OPT["xa"] == 2 and sec == "l" and l.startswith(("v_mfma", "ds_read")): continue
            if OPT["xa"] == 3 and sec == "1" and l.startswith("ds_read_b128"): continue
            if OPT["xa"] == 4 and sec in "hl" and l.startswith("ds_read"):
                continue
            out_.append(l)
        a.L[:] = out_
    if OPT["vwin"]:
        out_ = []; on = False
        for l in a.L:
            if l.startswith("k1_t1:") and OPT["vw1"]: on = True
            if l.startswith("t1_slot:"): on = True
            if l.startswith("t1_last:"): on = False
            if on and l.startswith("buffer_load") and l.endswith("lds"): out_.append(f"s_waitcnt vmcnt({OPT['vwin']-1})")
            out_.append(l)
        a.L[:] = out_
    if OPT["dynp"]:
        out_ = []; int1 = False
        for l in a.L:
            if l.startswith("k1_t1:"): int1 = True
            if int1 and l.startswith("buffer_load") and l.endswith("lds"):
                out_ += [f"s_setprio {OPT['dynp']}", l, f"s_setprio {OPT['prio1']}"]
            else: out_.append(l)
        a.L[:] = out_
    n1 = fix_hazards(a.L); n2 = fix_hazards(b.L)
    print("nops inserted", n1, n2, "instrs", len(a.L), len(b.L), file=sys.stderr)
    hdr = open("cdna_kernels/" + NAME + ".s.ref").read().split("; Override launch")[0]
    out = hdr
    if OPT["two"]:
        out += f"; @launch kernel={NAME}_kernel grid=(256,1,1) block=(512,1,1) lds={LDS_BYTES}\n"
        out += "; @launch kernel=reduce_kernel grid=(1120,1,1) block=(256,1,1) lds=4352\n"
    else:
        out += f"; @launch grid=(256,1,1) block=(512,1,1) lds={LDS_BYTES}\n"
    out += '.amdgcn_target "amdgcn-amd-amdhsa--gfx950"\n.text\n'
    out += a.text() + (b.text() if OPT["two"] else "")
    out += '.section .rodata,"a"\n.p2align 6\n' + desc(NAME + "_kernel", 256)
    if OPT["two"]: out += ".p2align 6\n" + desc("reduce_kernel", 56)
    open(sys.argv[1], "w").write(out)
    import subprocess
    r = subprocess.run(["clang", "-x", "assembler", "-target", "amdgcn-amd-amdhsa", "-mcpu=gfx950", "-c", sys.argv[1], "-o", "chk.o"], capture_output=True, text=True)
    if r.returncode: print("ASSEMBLY FAILED", r.stderr[:600])
main()
```

```python
import sys, math, struct, copy
sys.path.insert(0, "work")
from asmlib import *

NAME = "concat_heads__mha_block_cached__gqa_block_cached__near_ridge"
OPT = dict(kv="nt", w="", x="", wo="", st="sc1", rd="sc1", prof=0, prio0=0, prio1=0, touch=1, nox=0, now=0, nokv=0, nomf=0,
           novm=0, lead=4, bp="6.16.26.36.42", map=0, hack="", t1b=0, ps=5, kdel=0, x0=4, xt=0, dynp=0, nopark=0, gap=0, span=4, pa=0, pb=0, m=2, nlat=0, nonar=0, bar=3, qd=5, rt=0, tf="", tq="", pwo=0, tlb=0, stl=0, dd=0, kw=5, qp1=0, pre=0, kpf=0, wt=6, wtn=14, pkb=1, kw1=0, kwa=4, kwu=48, oldfin=1, kv0=0, k0=3, nq=4, kw1m=0, kf1=1, b1=1, wp=0, tch=10, sko=1, t0i=1, t0w=0, of="", kw1s=0, kps=18, kpl="nt", lastb=16, stn=1, spin=8000, vcap=0, vpost=0, now0=9, xa=0, burst=0, kpar=0, pwh=1, near=0, vwin=0, cpf=1, fs=0, r5=6, early=3, qv=0, two=0, vw1=1, wo5="", nomfq=0, nomf1=0, nomf0=0, pwf="", kvfirst=1, w2=1, psplit=1, nb1=8, nb2=29, kl=16, tl=4, kvat=18, qst="sc1", noq=0, noqst=0, pv=0, nobar=0, nolg=0, nord=0, norare=0, not1=0, noexp=0, nochk=0, nosm=0)
for a in sys.argv[2:]:
    k, val = a.split("=")
    OPT[k] = int(val) if val.lstrip("-").isdigit() else (val if k in ("bp", "hack") else val.replace("+", " ").replace("-", ""))
TILE = 12288
QO = 0
T1R = 43008
B2 = T1R + 32768
KVB = B2 + 18432
NS = 16
SPARE = KVB + NS * 4096
LDS_BYTES = SPARE + 2048
QPARK = 48 << 20
FLAG0 = 0
PART0 = 1 << 20
PART_CU = 4 * 35 * 1024
LEAD = OPT["lead"]
NX = 30
XB_ = [OPT["x0"] + 4 * ((k * 96) // NX) for k in range(NX)]
def f2u(f): return struct.unpack("<I", struct.pack("<f", f))[0]

sKd, sVd, sWd, sOd, sXd, sPd, sQd = 32, 36, 40, 44, 48, 76, 24
sWAVE, sB, sQUAD, sSLOT, sCTR, sW4 = 52, 53, 54, 55, 57, 56
sT1, sT2, sT3 = 62, 63, 61
sKSO, sVSO, sLW = 58, 59, 60
sWB, sOB, sXB, sXM, sSTR, sXF = 58, 59, 70, 71, 72, 73
sC, sBIT = 66, 68
sRET = 30
sGRP = 3
sWT = 8
sTEAM, sWB2, sKSO2, sL1, sSLO, sSHI = 74, 75, 65, 64, 69, 72
PKV_ = 255
sRX, sRY, sRZ, sSP = 14, 17, 20, 23

def stamp(e, k, real=False):
    if not OPT["prof"]: return
    e(f"s_mem{'real' if real else ''}time s[100:101]")
    e("s_waitcnt lgkmcnt(0)")
    e(f"s_mov_b32 s{80+k}, s100")
def stamp_slot(e):
    if not OPT["prof"]: return
    e("s_memrealtime s[100:101]" if OPT["rt"] else "s_memtime s[100:101]")
    e("s_waitcnt lgkmcnt(0)")
    for k in range(0, 7):
        e(f"s_cmp_eq_u32 s{sSLOT}, {k}")
        e(f"s_cselect_b32 s{82+k}, s100, s{82+k}")
def stamp_if(e, k, slot):
    if not OPT["prof"]: return
    e("s_memtime s[100:101]")
    e("s_waitcnt lgkmcnt(0)")
    e(f"s_cmp_eq_u32 s{sSLOT}, {slot}")
    e(f"s_cselect_b32 s{80+k}, s100, s{80+k}")
def dump_stamps(e, wsreg, base, nw):
    if not OPT["prof"]: return
    if OPT["dd"]:
        e(f"""
s_cmp_lg_u32 s2, {OPT['dd']}
s_cbranch_scc1 k1_end
s_cmp_lg_u32 s{sWAVE}, 4
s_cbranch_scc1 k1_end
s_mov_b32 s96, s26
s_mov_b32 s97, s27
s_mov_b32 s98, 64
s_mov_b32 s99, 0x20000
v_mov_b32 v1, 0
""")
        for k in range(16):
            e(f"s_sub_u32 s100, s{80+k}, s{80 if k == 10 else 81}")
            e("v_mov_b32 v0, s100")
            e(f"buffer_store_dword v0, v1, s[96:99], 0 offen offset:{k*4}")
        e("s_waitcnt vmcnt(0)")
        return
    e(f"""
s_mul_i32 s100, s2, {nw}
s_add_u32 s100, s100, s{sWAVE}
s_lshl_b32 s100, s100, 6
s_add_u32 s100, s100, {base}
s_add_u32 s96, s{wsreg}, s100
s_addc_u32 s97, s{wsreg+1}, 0
s_mov_b32 s98, 64
s_mov_b32 s99, 0x20000
v_mov_b32 v1, 0
""")
    for k in range(16):
        e(f"v_mov_b32 v0, s{80+k}")
        e(f"buffer_store_dword v0, v1, s[96:99], 0 offen offset:{k*4}")
    e("s_waitcnt vmcnt(0)")

class Gen:
    def __init__(self, prog, needs):
        self.p = prog; self.needs = needs; self.rec = {}
        self.mute = 0
        self.vq = []; self.lq = []; self.pend = []; self.issued = {}
        self.nosim = 0
    def e(self, s):
        if not self.mute: self.p(s)
    def label(self, n):
        if not self.mute: self.p.label(n)
    def wait(self, kind, key, tags, drain_tags=()):
        q = self.vq if kind == "vm" else self.lq
        for t in tags:
            assert self.issued.pop(t, 0) > 0, (t, key)
        tags = list(tags) + list(drain_tags)
        idx = [i for i, t in enumerate(q) if t in tags]
        n = len(q) - 1 - max(idx) if idx else 999
        if n != 999: n = min(n, 63 if kind == "vm" else 15)
        k = (kind, key)
        self.rec[k] = min(self.rec.get(k, 999), n)
        val = self.needs.get(k, n)
        if val == 999: return
        self.e(f"s_waitcnt {'vmcnt' if kind == 'vm' else 'lgkmcnt'}({val})")
        del q[:len(q) - val if val < len(q) else 0]
    def wait_alt(self, key, tags, alt, cmp_txt, lab):
        q = self.vq
        for t in tags: assert self.issued.pop(t, 0) > 0, (t, key)
        idx = [i for i, t in enumerate(q) if t in tags]
        n = min(len(q) - 1 - max(idx), 63) if idx else 999
        k = ("vm", key, alt)
        self.rec[k] = min(self.rec.get(k, 999), n)
        va, vb = self.needs.get(("vm", key, False), 0), self.needs.get(("vm", key, True), 0)
        if vb != 999 and vb > va: self.e(f"s_waitcnt vmcnt({vb})")
        if vb > va:
            self.e(cmp_txt); self.e(f"s_cbranch_scc1 {lab}")
        val = min(va, vb) if not (alt and vb > va) else vb
        if min(va, vb) != 999: self.e(f"s_waitcnt vmcnt({min(va, vb)})")
        if vb > va: self.label(lab)
        if val != 999: del q[:len(q) - val if val < len(q) else 0]
    def vm(self, tag, text):
        self.e(text); self.vq.append(tag); self.issued[tag] = self.issued.get(tag, 0) + 1
    def ld(self, tag, text):
        self.e(text); self.lq.append(tag); self.issued[tag] = self.issued.get(tag, 0) + 1
    def drain(self, n=1):
        for _ in range(n):
            if self.pend: self.pend.pop(0)()
    def optional(self, taken, fn):
        if taken: fn()
        elif not self.mute:
            st = (list(self.vq), list(self.lq), dict(self.issued))
            fn()
            self.vq[:], self.lq[:] = st[0], st[1]; self.issued = st[2]

def mfma(e, d, a, b, c):
    if not OPT["nomf"]:
        e(f"v_mfma_f32_16x16x32_bf16 {v(d,4)}, {v(a,4)}, {v(b,4)}, {c if c == '0' else v(c,4)}")


KL = OPT["kl"]
KVT = [k for k in range(NX) if not OPT['burst'] or k % 2 == OPT['kpar']]
N0 = max(u for u in range(300) if 4 * (u - KL) + 4 <= XB_[KVT[-1]]) + 1
def lane_regs(e, b=2):
    e(f"""
v_mbcnt_lo_u32_b32 v{b}, -1, 0
v_mbcnt_hi_u32_b32 v{b}, -1, v{b}
v_and_b32 v{b+1}, 15, v{b}
v_lshrrev_b32 v{b+2}, 4, v{b}
v_lshrrev_b32 v{b+3}, 2, v{b}
v_and_b32 v{b+4}, 3, v{b+3}
v_and_b32 v{b+5}, 3, v{b}
v_lshrrev_b32 v{b+6}, 3, v{b}
v_and_b32 v{b+7}, 7, v{b}
""")
def kv_kind(a):
    a %= 32
    return "K" if (a == 0 or (a % 2 == 1 and a < 31)) else "V"
def kv_tile(a):
    u, a = divmod(a, 32)
    return u * 16 + (0 if a == 0 else 15 if a == 31 else (a + 1) // 2 if a % 2 == 1 else (a - 2) // 2)
def QAC(hh, rt, k): return ((hh * 7 + rt) * 3 + k) * 4
QB = [240, 241, 242]; QT = [251, 252, 253]; NPRE = 12; X9 = KVB + 51200
QW = [248, 249, 250]


class OpEngine:
    def __init__(self, g, PK, AC0, AF0, BF0, RA, OB, PO, ring, sM0, ringoff):
        self.g, self.e = g, g.e
        self.PK, self.AC0, self.AF0, self.BF0, self.RA, self.OB, self.PO = PK, AC0, AF0, BF0, RA, OB, PO
        self.ring, self.sM0, self.ro = ring, sM0, ringoff
        self.dq = []; self.pq = []; self.clock = 0; self.fl = OPT['wo']; self.nr = 4; self.early = 0; self.pkb = 0; self.atbar = []
    def AC(self, k): return self.AC0 + 4 * k
    def AF(self, s, i): return self.AF0 + 8 * (s & 1) + 4 * i
    def BF(self, n): return self.BF0 + 4 * (n % 6)
    def slot(self, i): return ((i + self.ro) % self.nr) * 8192
    def addr_setup(self):
        e = self.e
        lane_regs(e, 232)
        L = 232
        e(f"""
v_lshlrev_b32 v{self.OB}, 4, v{L}
v_lshlrev_b32 v{L+8}, 1, v{L+2}
v_xor_b32 v{L+8}, v{L+1}, v{L+8}
v_lshlrev_b32 v{L+8}, 4, v{L+8}
v_mul_u32_u24 v{L+9}, 1280, v{L+2}
v_add_u32 v{self.PO[0]}, v{L+8}, v{L+9}
v_xor_b32 v{L+8}, 128, v{L+8}
v_add_u32 v{L+8}, v{L+8}, v{L+9}
v_add_u32 v{self.PO[1]}, 4096, v{L+8}
s_lshl_b32 s{sT1}, s{sW4}, 1
v_and_b32 v{L+8}, 7, v{L+3}
v_xor_b32 v{L+8}, s{sT1}, v{L+8}
v_lshlrev_b32 v{L+8}, 5, v{L+8}
v_lshl_add_u32 v{L+8}, v{L+3}, 8, v{L+8}
v_lshl_add_u32 v{L+8}, v{L+5}, 3, v{L+8}
v_add_u32 v{self.RA[0]}, {self.ring}, v{L+8}
v_xor_b32 v{self.RA[1]}, 32, v{self.RA[0]}
""")
    def dma(self, i):
        ps, j = divmod(i, 6)
        out = []
        for q in range(2):
            def f(q=q):
                if q == 0:
                    self.e(f"s_add_u32 m0, s{self.sM0}, {self.ring+self.slot(i)}")
                    self.e(f"s_add_u32 s{sT2}, s{sOB}, {j*32*1280+ps*256}")
                o = "offset:1024 " if q else ""
                self.g.vm(f"O{i}", f"buffer_load_dwordx4 v{self.PO[q]}, s[{sOd}:{sOd+3}], s{sT2} offen {o}{self.fl} lds")
            out.append(f)
        return out
    def defer(self, at, ins):
        for x in ins: self.dq.append((at, x))
    def run_dq(self, n):
        while n > 0 and self.dq and self.dq[0][0] <= self.clock:
            x = self.dq.pop(0)[1]
            if callable(x): x()
            else: self.e(x)
            n -= 1
    def flush_pq(self):
        while self.pq: self.pq.pop(0)[1]()
    def a_read(self, i, n):
        k, hf = divmod(n, 2)
        self.g.ld(f"o{i}a{k}", f"ds_read_b64_tr_b16 {v(self.AF(i,k)+2*hf,2)}, v{self.RA[k]} offset:{self.slot(i)+hf*4096}")
    def b_read(self, b):
        i, rt = divmod(b, 7)
        self.g.ld(f"o{i}b{rt}", f"ds_read_b128 {v(self.BF(b),4)}, v{self.OB} offset:{QO+(i%6*7+rt)*1024}")
    def first_reads(self, i):
        self.a_read(i, 0); self.a_read(i, 1); self.b_read(7 * i); self.a_read(i, 2); self.a_read(i, 3)
        for n in range(1, 6): self.b_read(7 * i + n)
    def unpack_l(self, dst, src):
        return [f"v_perm_b32 v{dst+x}, v{src+x//2}, v{src+x//2}, s{sSHI if x & 1 else sSLO}" for x in range(4)]
    def pack_l(self, dst, src):
        return [f"v_cvt_pk_bf16_f32 v{dst}, v{src}, v{src+1}", f"v_cvt_pk_bf16_f32 v{dst+1}, v{src+2}, v{src+3}"]
    def store_l(self, ps, rt):
        o = (ps * 7 + rt) * 1024
        if OPT["sko"] and not OPT["two"]:
            b = ps * 7 + rt
            def f():
                self.e(f"s_mov_b32 s{sT3}, {o - o % 4096}")
                self.e(f"s_cmp_lg_u32 s{sQUAD}, {b % 8}")
                self.e(f"s_cbranch_scc1 op_k{b}")
                self.e(f"s_mov_b32 s{sT3}, 0x100000")
                self.e(f"ds_write_b128 v249, {v(self.PK(ps*14+rt*2),4)} offset:{(b//8)*4096}")
                self.g.label(f"op_k{b}")
                self.g.vm("st", f"buffer_store_dwordx4 {v(self.PK(ps*14+rt*2),4)}, v{self.OB}, s[{sPd}:{sPd+3}], s{sT3} offen offset:{o%4096} {OPT['st']}")
            return [f]
        return [f"s_mov_b32 s{sT3}, {o - o % 4096}",
                lambda: self.g.vm("st", f"buffer_store_dwordx4 {v(self.PK(ps*14+rt*2),4)}, v{self.OB}, s[{sPd}:{sPd+3}], s{sT3} offen offset:{o%4096} {OPT['st']}")]
    def step(self, key, i, last, tick, store=False, hooks=None):
        g, e = self.g, self.e
        ps, j = divmod(i, 6)
        BAR = OPT["bar"]
        c0 = self.clock
        if store and not self.early and i >= last - 3 and i < last:
            todo = [(q, rt) for q in range(store[0], ps) for rt in range(7)]
            k = i - (last - 3)
            mine = todo[k * len(todo) // 3:(k + 1) * len(todo) // 3]
            for n, (q, rt) in enumerate(mine): self.defer(c0 + (6 if k == 0 else 0) + n * (8 if k == 0 else 14) // len(mine), self.store_l(q, rt))
        if j == 5 and (i < last or store):
            for n in range(14):
                ins = self.pack_l(self.PK(ps * 14 + n), self.AC(n))
                if i < last: ins += self.unpack_l(self.AC(n), self.PK((ps + 1) * 14 + n))
                if store and n % 2 == 1 and (i == last or self.early): ins += self.store_l(ps, n // 2)
                if self.pkb and i < last and n >= BAR: self.atbar += ins
                else: self.defer(c0 + n + 4, ins)
        for n in range(14):
            rt, k = divmod(n, 2)
            if n == BAR and i < last: tick(i)
            if n == BAR and j == 0:
                for x in self.atbar:
                    if callable(x): x()
                    else: e(x)
                self.atbar = []
            if hooks and n in hooks: hooks[n]()
            tags = ([f"o{i}b{rt}"] if k == 0 else []) + ([f"o{i}a{k}"] if rt == 0 else [])
            if tags: g.wait("lg", f"{key}{i}m{n}", tags)
            mfma(e, self.AC(n), self.AF(i, k), self.BF(7 * i + rt), self.AC(n))
            if k == 1 and 7 * i + rt + 6 < 7 * (last + 1): self.b_read(7 * i + rt + 6)
            if k == 0 and i < last and BAR < n <= BAR + 8: self.a_read(i + 1, (n - BAR - 1) // 2)
            while self.pq and self.pq[0][0] <= self.clock: self.pq.pop(0)[1]()
            self.clock += 1
            self.run_dq(7)
    def finish(self):
        self.flush_pq(); self.clock += 100; self.run_dq(1000)

AC_ = QAC
def QAF(par, hh, k): return 168 + par * 24 + (hh * 3 + k) * 4
def QBF(n): return 216 + 4 * (n % 4)
QRA = [[232, 233, 234], [235, 236, 237]]; QXA = [238, 239]; QPW = [243, 244, 245]; QPX = 246; QJUNK = 247; QWT = 254
def x_dma(g, pp, xb):
    e = g.e; out = []
    for q in range(4):
        def f(q=q):
            if q < 3: e(f"s_add_u32 m0, s{sXM}, {xb+q*4096}")
            else:
                e(f"s_add_u32 s{sT2}, s{sXM}, {xb+q*4096}")
                e(f"s_cmp_ge_u32 s{sW4}, 2")
                e(f"s_cselect_b32 m0, s{sXF}, s{sT2}")
            e(f"s_add_u32 s{sT2}, s{sXB}, {pp*128+q*40960}")
            g.vm(f"X{pp}", f"buffer_load_dwordx4 v{QPX}, s[{sXd}:{sXd+3}], s{sT2} offen {OPT['x']} lds")
        out.append(f)
    return out
def w_dma(g, i, head, lds, tag):
    e = g.e; out = []
    for ii in range(3):
        def f(ii=ii):
            if ii == 0:
                e(f"s_add_u32 m0, s{sLW}, {lds}")
                e(f"s_add_u32 s{sT1}, s{sWB}, {i*32*12288+head*384}")
            o = f"offset:{ii*1024} " if ii else ""
            g.vm(tag, f"buffer_load_dwordx4 v{QPW[ii]}, s[{sWd}:{sWd+3}], s{sT1} offen {o}{OPT['w']} lds")
        out.append(f)
    return out
def q_cvt(e, a):
    e(f"v_pk_mul_f32 {v(a,2)}, {v(a,2)}, s[{sC}:{sC+1}]")
    e(f"v_pk_mul_f32 {v(a+2,2)}, {v(a+2,2)}, s[{sC}:{sC+1}]")
    e(f"v_cvt_pk_bf16_f32 v{a}, v{a}, v{a+1}")
    e(f"v_cvt_pk_bf16_f32 v{a+1}, v{a+2}, v{a+3}")

def qp_phase(p, needs, team):
    g = Gen(p, needs); e = g.e
    nh = 1 + team
    STG = [KVB, T1R]
    def dma_w(i, part):
        if team: return []
        return sum((w_dma(g, i, h, STG[i & 1] + h * TILE, f"W{i}.{part}") for h in ((0, 1) if part == 0 else (2,))), [])
    def dma_x(pp): return [] if team else x_dma(g, pp, X9 if pp == 9 else QO + (pp % 3) * 14336)
    def vwait(key, tags):
        if not team: g.wait("vm", key, tags)
    def a_read(i, hh, n):
        k, hf = divmod(n, 2)
        g.ld(f"{i}a{hh}{k}", f"ds_read_b64_tr_b16 {v(QAF(i&1,hh,k)+2*hf,2)}, v{QRA[i&1][k]} offset:{(team+hh)*TILE+hf*1536}")
    def b_read(i, rt):
        g.ld(f"{i}b{rt}", f"ds_read_b128 {v(QBF(7*i+rt),4)}, v{QXA[i&1]} offset:{((i>>1)%3)*14336+rt*2048}")
    lane_regs(e)
    e(f"""
v_lshrrev_b32 v13, 1, v8
v_and_b32 v13, 3, v13
v_lshlrev_b32 v13, 1, v13
v_xor_b32 v13, v9, v13
v_lshlrev_b32 v13, 4, v13
v_mul_u32_u24 v14, 1280, v8
v_add_u32 v{QPX}, v13, v14
v_mul_u32_u24 v14, 384, v8
v_add_u32 v{PKV_}, v13, v14
s_mul_i32 s{sXB}, s{sW4}, 10240
s_lshl_b32 s{sXM}, s{sW4}, 10
s_sub_u32 s{sXF}, s{sXM}, 2048
s_add_u32 s{sXF}, s{sXF}, {SPARE}
""")
    for f in dma_x(0): f()
    e(f"""
s_and_b32 s{sT1}, s{sW4}, 1
s_lshl_b32 s{sT1}, s{sT1}, 2
v_xor_b32 v16, s{sT1}, v9
s_mul_i32 s{sWB}, s{sW4}, {8*12288}
""")
    for q in range(3):
        e(f"""
v_add_u32 v10, {8*q}, v8
v_mul_u32_u24 v11, 43, v10
v_lshrrev_b32 v11, 7, v11
v_mul_u32_u24 v12, 3, v11
v_sub_u32 v12, v10, v12
v_lshrrev_b32 v13, 1, v11
v_and_b32 v14, 1, v13
v_xor_b32 v14, v16, v14
v_lshlrev_b32 v14, 4, v14
v_lshl_add_u32 v14, v12, 7, v14
v_mul_u32_u24 v15, 12288, v11
v_add_u32 v14, v14, v15
v_subrev_u32 v{QPW[q]}, {q*1024}, v14
""")
    for f in dma_w(0, 0) + dma_w(0, 1): f()
    WT = OPT["wt"]
    if not team:
        e(f"""
v_mul_u32_u24 v10, 43, v2
v_lshrrev_b32 v10, 9, v10
v_mul_u32_u24 v11, 12, v10
v_sub_u32 v11, v2, v11
v_min_u32 v10, 1, v10
v_mul_u32_u24 v10, 12288, v10
v_lshl_add_u32 v{QWT}, v11, 7, v10
s_mul_i32 s{sWT}, s{sB}, {2*12288}
s_add_u32 s{sT1}, s{sWAVE}, 2
s_mul_i32 s{sT1}, s{sT1}, {32*12288}
s_add_u32 s{sT1}, s{sT1}, s{sWT}
""")
        assert WT == 6
        g.vm("pf", f"buffer_load_dword v{QJUNK}, v{QWT}, s[{sWd}:{sWd+3}], s{sT1} offen {OPT['tq']}")
    e(f"""
v_lshrrev_b32 v8, 1, v3
v_and_b32 v8, 3, v8
v_lshlrev_b32 v8, 1, v8
v_xor_b32 v8, v4, v8
v_lshlrev_b32 v8, 4, v8
v_lshl_add_u32 v9, v3, 7, v8
v_add_u32 v{QXA[0]}, {QO}, v9
v_xor_b32 v{QXA[1]}, 64, v{QXA[0]}
v_lshl_add_u32 v8, v4, 3, v6
v_mul_u32_u24 v9, 384, v8
v_lshrrev_b32 v8, 1, v6
v_and_b32 v11, 1, v4
v_lshl_add_u32 v8, v11, 2, v8
v_xor_b32 v8, v7, v8
v_lshl_add_u32 v9, v8, 4, v9
v_lshlrev_b32 v12, 3, v11
v_lshl_add_u32 v12, v2, 4, v12
v_and_b32 v11, 1, v7
v_lshl_add_u32 v11, v11, 3, v9
s_mov_b32 s{sC}, {hex(f2u(192 ** -0.5 * math.log2(math.e)))}
s_mov_b32 s{sC+1}, s{sC}
""")
    for i in range(3):
        e(f"""
s_mul_i32 s{sT1}, s{sW4}, 3
s_add_u32 s{sT1}, s{sT1}, {i}
s_and_b32 s{sT3}, s{sT1}, 2
s_lshl_b32 s{sT3}, s{sT3}, 5
s_and_b32 s{sT2}, s{sT1}, 1
s_lshl_b32 s{sT2}, s{sT2}, 3
v_xor_b32 v{QW[i]}, s{sT2}, v12
s_or_b32 s{sT3}, s{sT3}, s{sT2}
v_xor_b32 v13, s{sT3}, v11
s_lshr_b32 s{sT2}, s{sT1}, 2
s_lshl_b32 s{sT2}, s{sT2}, 7
v_add_u32 v13, s{sT2}, v13
v_add_u32 v{QRA[1][i]}, {T1R}, v13
v_add_u32 v{QRA[0][i]}, {KVB}, v13
s_lshr_b32 s{sT1}, s{sT1}, 1
s_mul_i32 s{sT2}, s{sT1}, 7168
v_add_u32 v{QW[i]}, s{sT2}, v{QW[i]}
""")
        if team:
            e(f"""
s_cmp_lt_u32 s{sT1}, 3
s_cselect_b32 s{sT3}, {B2 - (QO + 6144 - 18432)}, 0
s_sub_u32 s{sT3}, s{sT3}, {18432 - 6144 - QO}
s_lshl_b32 s{sT2}, s{sT1}, 10
s_sub_u32 s{sT2}, s{sT3}, s{sT2}
v_add_u32 v{QB[i]}, s{sT2}, v{QW[i]}
s_mul_i32 s{sT2}, s{sT1}, 6144
v_subrev_u32 v{QT[i]}, s{sT2}, v{QW[i]}
""")
    vwait("in", ["W0.0", "W0.1", "X0"])
    e("s_barrier")
    stamp(e, 14, real=bool(OPT["rt"]))
    if not team:
        e(f"""
s_cmp_lg_u32 s{sWAVE}, 0
s_cbranch_scc1 k1_nocnt
s_mov_b32 s4, s26
s_mov_b32 s5, s27
s_mov_b32 s6, 256
s_mov_b32 s7, 0x20000
s_lshl_b32 s{sT1}, s{sGRP}, 2
v_mov_b32 v204, 0
v_mov_b32 v205, 1
s_mov_b64 exec, 1
buffer_atomic_add v205, v204, s[4:7], s{sT1} offen sc1
s_mov_b64 exec, -1
k1_nocnt:
""")
    a_read(0, 0, 0); a_read(0, 0, 1); b_read(0, 0); b_read(0, 1)
    for n in range(2, 6): a_read(0, 0, n)
    if team:
        for n in range(6): a_read(0, 1, n)
    for rt in range(2, 4): b_read(0, rt)
    for f in dma_w(1, 0) + dma_w(1, 1) + dma_x(1): f()
    if team:
        ORD = [(rt, 0, k) for rt in (0, 1) for k in range(3)] + [(rt, 1, k) for rt in (0, 1) for k in range(3)]
        ORD += [(rt, hh, k) for rt in range(2, 7) for hh in range(2) for k in range(3)]
        NB1, NB2 = 8, 29
        A0 = [NB1 + 2 + 3 * x for x in range(6)]; A1 = [NB2 + 1 + 2 * x for x in range(6)]
    else:
        ORD = [(rt, 0, k) for rt in range(7) for k in range(3)]
        NB1, NB2 = 4, 14
        A0 = [6, 7, 9, 10, 12, 13]; A1 = []
    lastb = {rt: max(n for n, x in enumerate(ORD) if x[0] == rt) for rt in range(7)}
    def fin(n):
        rt, hh, k = ORD[n]
        q_cvt(e, AC_(hh, rt, k))
        if not team: e(f"ds_write_b64 v{QW[k]}, {v(AC_(hh,rt,k),2)} offset:{QO+rt*1024}")
    for i in range(20):
        if i in (17, 18): e(f"v_add_u32 v{QXA[i-17]}, {X9}, v{QXA[i-17]}")
        seen = set()
        for n, (rt, hh, k) in enumerate(ORD):
            if n == NB1 and i < 19:
                if team: g.wait("lg", f"r1{i}", [], drain_tags=[f"{i}a1{x}" for x in range(3)])
                vwait(f"s{i}", [f"W{i+1}.0"] + ([f"X{(i+1)//2}"] if i % 2 == 1 else []))
                e("s_barrier")
                if i + 2 < 20:
                    for f in (dma_w(i + 2, 0) if i == 0 else []) + dma_w(i + 2, 1): f()
                if i % 2 == 0 and i // 2 + 2 < 10:
                    for f in dma_x(i // 2 + 2): f()
                if not team and i + WT < 20:
                    e(f"s_cmp_lg_u32 s{sWAVE}, {i % 4}")
                    e(f"s_cbranch_scc1 qp_wt{i}")
                    e(f"s_add_u32 s{sT3}, s{sWT}, {(i+WT)*32*12288}")
                    e(f"buffer_load_dword v{QJUNK}, v{QWT}, s[{sWd}:{sWd+3}], s{sT3} offen {OPT['tq']}")
                    g.label(f"qp_wt{i}")
            if n == NB2 and i < 19:
                g.wait("lg", f"r2{i}", [], drain_tags=[f"{i+1}a0{x}" for x in range(3)])
                vwait(f"t{i}", [f"W{i+1}.1"])
                e("s_barrier")
                if i + 3 < 20:
                    for f in dma_w(i + 3, 0): f()
                if i == 18 and team:
                    e(f"s_mul_i32 s{sKSO2}, s{sW4}, 3072")
                    e(f"s_lshl_b32 s{sL1}, s{sW4}, 10")
                    for u in range(NPRE):
                        a, bb = divmod(u, 3)
                        e(f"s_add_u32 m0, s{sL1}, {KVB + (u % NS) * 4096 - bb * 128}")
                        e(f"s_add_u32 s{sT1}, s{sKSO2}, {kv_tile(a) * TILE}")
                        srd = sKd if kv_kind(a) == "K" else sVd
                        e(f"buffer_load_dwordx4 v{PKV_}, s[{srd}:{srd+3}], s{sT1} offen offset:{bb*128} {OPT['kv']} lds")
            tags = [t for t in (f"{i}b{rt}", f"{i}a{hh}{k}") if t not in seen]
            seen.update(tags)
            if tags: g.wait("lg", f"{i}m{n}", tags)
            mfma(e, AC_(hh, rt, k), QAF(i & 1, hh, k), QBF(7 * i + rt), "0" if i == 0 else AC_(hh, rt, k))
            if n == lastb[rt]:
                if rt + 4 < 7: b_read(i, rt + 4)
                elif i < 19: b_read(i + 1, rt - 3)
            if i < 19 and n in A0: a_read(i + 1, 0, A0.index(n))
            if i < 19 and n in A1: a_read(i + 1, 1, A1.index(n))
            if i == 19 and n >= 4: fin(n - 4)
    for n in range(len(ORD) - 4, len(ORD)): fin(n)
    stamp(e, 15, real=bool(OPT["rt"]))
    return g.rec

def t0_path(p, needs, nrt, tag):
    g = Gen(p, needs); e = g.e
    def ACC(rt, t): return rt * 48 + t * 4
    def Q(rt, j): return 96 + rt * 24 + j * 4
    def S(par, rt, kt=0): return 144 + par * 16 + rt * 8 + kt * 4
    def P(par, rt): return 176 + par * 8 + rt * 4
    def NEGM(rt): return 192 + rt * 4
    def LSUM(rt): return 200 + rt * 4
    def STG(rt, j): return 144 + (j * 2 + rt) * 4 if j < 5 else 192 + rt * 4
    ONES = 208
    FR0 = 212; NFR = 8
    def FR(a, f): return FR0 + ((a * 12 + f) % NFR) * 4
    KA = [244, 245]; VA = [246, 247, 248, 249]; QOA = 250
    TC = 251; T = [252, 253, 254, 255]
    HOLD = [48 + 4 * i for i in range(12)] + [156, 172, 180, 188, 196, 204]
    def rd_l(a, f):
        base = ((3 * a + f // 4) % NS) * 4096; tg = f"A{a%32}f{f}"
        if kv_kind(a) == "K":
            j, kt = divmod(f, 2)
            return [lambda: g.ld(tg, f"ds_read_b128 {v(FR(a,f),4)}, v{KA[j&1]} offset:{base+kt*2048}")]
        return [lambda hf=hf: g.ld(tg, f"ds_read_b64_tr_b16 {v(FR(a,f)+2*hf,2)}, v{VA[f&3]} offset:{base+hf*2048}") for hf in range(2)]
    def run(x):
        if callable(x): x()
        else: e(x)
    def cost(x): return 2 if isinstance(x, str) and x.startswith(("v_exp", "v_rcp")) else 1
    def step(key, a, mfs, valu=(), last=False, extra=None, v0=0):
        valu = list(valu)
        ngap = sum(len(mfs(f, 0)) for f in range(v0, 12))
        tot = sum(cost(x) for x in valu); done = 0; gap = 0
        for f in range(12):
            pos = a * 12 + f
            if extra and f in extra: extra[f]()
            if pos in XB_:
                k = XB_.index(pos)
                if OPT["kv0"] and k + 1 < NX and -(-(XB_[k] + LEAD) // 4) < NPRE:
                    e(f"s_waitcnt vmcnt({max(0, NPRE - -(-(XB_[k+1] + LEAD) // 4))})")
                e("s_barrier")
                if nrt == 1 and k == OPT["k0"] + 20:
                    e(f"s_cmp_lg_u32 s{sSLOT}, 1")
                    e("s_cbranch_scc1 t0_nopick")
                    e(f"v_subrev_u32 v{TC}, 6144, v{QOA}")
                    for j in range(6): e(f"ds_read_b128 {v(Q(1,j),4)}, v{TC} offset:{j*1024}")
                    for n in range(18): e(f"ds_read_b128 {v(HOLD[n],4)}, v{TC} offset:{(6+n)*1024}")
                    e("s_waitcnt lgkmcnt(0)")
                    g.label("t0_nopick")
            reads = rd_l(a, f + LEAD) if f + LEAD < 12 else ([] if last else rd_l(a + 1, f + LEAD - 12))
            if not OPT["w2"]: g.wait("lg", f"{key}{f}", [f"A{a}f{f}"])
            elif f % 2 == 0: g.wait("lg", f"{key}{f}", [f"A{a}f{f}", f"A{a}f{f+1}"])
            ms = mfs(f, FR(a, f))
            for i, m in enumerate(ms):
                m()
                if reads: reads.pop(0)()
                if i == len(ms) - 1:
                    while reads: reads.pop(0)()
                if f >= v0:
                    gap += 1
                    while valu and done + cost(valu[0]) / 2 <= tot * gap / ngap:
                        done += cost(valu[0]); run(valu.pop(0))
        for x in valu: run(x)
    def mf_qk(par, zero):
        def m(f, fr):
            j, kt = divmod(f, 2)
            return [lambda rt=rt: mfma(e, S(par, rt, kt), fr, Q(rt, j), ("0" if zero else NEGM(rt)) if j == 0 else S(par, rt, kt)) for rt in range(nrt)]
        return m
    def onorm_l(j):
        out = []
        for rt in range(nrt):
            a = ACC(rt, 2 * j)
            out += [f"v_pk_mul_f32 {v(a+i,2)}, {v(a+i,2)}, {v(T[2*rt],2)}" for i in range(0, 8, 2)]
            out += [f"v_cvt_pk_bf16_f32 v{STG(rt,j)+i}, v{a+2*i}, v{a+2*i+1}" for i in range(4)]
        return out
    def mf_pv(par, first, last=False):
        def m(f, fr):
            out = []
            if f == (0 if last else 5):
                out += [lambda rt=rt: mfma(e, LSUM(rt), ONES, P(par, rt), "0" if first else LSUM(rt)) for rt in range(nrt)]
            return out + [lambda rt=rt: mfma(e, ACC(rt, f), fr, P(par, rt), "0" if first else ACC(rt, f)) for rt in range(nrt)]
        return m
    def sm(par, lo=0, hi=None):
        grp = [(rt, i) for rt in range(nrt) for i in range(4)][lo:hi]
        seq = []
        for n, (rt, i) in enumerate(grp):
            a, b = T[(2 * n) % 4], T[(2 * n + 1) % 4]
            r = S(par, rt) + 2 * i
            seq += [f"v_exp_f32 v{a}, v{r}", f"v_exp_f32 v{b}, v{r+1}"]
            if n > 0: seq.append(prev)
            prev = f"v_cvt_pk_bf16_f32 v{P(par,rt)+i}, v{a}, v{b}"
        return seq + [prev] if grp else []
    def chk_l(par):
        p0 = P(par, 0)
        out = [f"v_or3_b32 v{TC}, v{p0}, v{p0+1}, v{p0+2}"]
        if nrt == 2:
            out += [f"v_or3_b32 v{TC}, v{TC}, v{p0+3}, v{p0+4}", f"v_or3_b32 v{TC}, v{TC}, v{p0+5}, v{p0+6}"]
        out += [f"v_bitop3_b32 v{TC}, v{TC}, v{p0+4*nrt-1}, s{sBIT} bitop3:0xa8", f"v_cmp_ne_u32 vcc, 0, v{TC}"]
        return out
    def chk_branch(par, key):
        e(f"s_cbranch_vccz t0_ok{key}_{tag}")
        if not OPT["norare"]: e(f"s_call_b64 s[{sRET}:{sRET+1}], t0_rare{par}_{tag}")
        g.label(f"t0_ok{key}_{tag}")
    def rowmax(par, rt, t, t2):
        r = S(par, rt)
        e(f"""
v_max3_f32 v{t}, v{r}, v{r+1}, v{r+2}
v_max3_f32 v{t}, v{t}, v{r+3}, v{r+4}
v_max3_f32 v{t}, v{t}, v{r+5}, v{r+6}
v_max_f32 v{t}, v{t}, v{r+7}
v_mov_b32 v{t2}, v{t}
v_permlane32_swap_b32 v{t2}, v{t}
v_max_f32 v{t}, v{t}, v{t2}
v_mov_b32 v{t2}, v{t}
v_permlane16_swap_b32 v{t2}, v{t}
v_max_f32 v{t}, v{t}, v{t2}
v_add_f32 v{t}, {hex(f2u(7.0))}, v{t}
""")
    L = 216
    lane_regs(e, L)
    e(f"""
s_waitcnt lgkmcnt(0)
s_lshl_b32 s{sT1}, s{sWAVE}, 11
s_add_u32 s{sT1}, s{sT1}, {QO}
v_lshl_add_u32 v{QOA}, v{L}, 4, s{sT1}
v_lshrrev_b32 v{L+6}, 1, v{L+1}
v_and_b32 v{L+6}, 3, v{L+6}
v_lshlrev_b32 v{L+6}, 1, v{L+6}
v_xor_b32 v{L+6}, v{L+2}, v{L+6}
v_lshlrev_b32 v{L+6}, 4, v{L+6}
v_lshl_add_u32 v{L+6}, v{L+1}, 7, v{L+6}
v_add_u32 v{KA[0]}, {KVB}, v{L+6}
v_xor_b32 v{KA[1]}, 64, v{KA[0]}
v_lshrrev_b32 v{L+6}, 1, v{L+3}
v_and_b32 v{L+6}, 3, v{L+6}
v_lshlrev_b32 v{L+6}, 5, v{L+6}
v_lshl_add_u32 v{L+6}, v{L+3}, 7, v{L+6}
v_lshl_add_u32 v{L+6}, v{L+5}, 3, v{L+6}
v_add_u32 v{VA[0]}, {KVB}, v{L+6}
v_xor_b32 v{VA[1]}, 32, v{VA[0]}
v_xor_b32 v{VA[2]}, 64, v{VA[0]}
v_xor_b32 v{VA[3]}, 96, v{VA[0]}
s_mov_b32 s{sBIT}, 0x40004000
s_mov_b32 s{sSLOT}, 1
""")
    for i in range(4): e(f"v_mov_b32 v{ONES+i}, 0x3f803f80")
    H = 4 if (nrt == 2 and OPT["psplit"]) else (2 if OPT["psplit"] else 0)
    for unit in range(2):
        if unit >= 1: g.mute += 1
        g.label(f"t0_unit_{tag}")
        if OPT["kv0"]: e(f"s_waitcnt vmcnt({NPRE - -(-(XB_[0] + LEAD) // 4)})")
        e("s_barrier")
        if not g.mute: stamp_slot(e)
        e(f"s_cmp_gt_u32 s{sSLOT}, 3")
        e(f"s_cbranch_scc1 t0_q3_{tag}")
        for j in range(6):
            for rt in range(nrt): e(f"ds_read_b128 {v(Q(rt,j),4)}, v{QOA} offset:{(j*7+rt)*1024}")
        e(f"s_cmp_lg_u32 s{sSLOT}, 1")
        e(f"s_cbranch_scc1 t0_w_{tag}")
        e(f"s_branch t0_noo_{tag}")
        g.label(f"t0_q3_{tag}")
        e(f"s_cmp_eq_u32 s{sSLOT}, 5")
        e(f"s_cbranch_scc1 t0_w_{tag}")
        if nrt == 1:
            for i in range(24): e(f"v_mov_b32 v{Q(0,0)+i}, v{Q(1,0)+i}")
        else:
            e(f"v_add_u32 v{TC}, {B2}, v{QOA}")
            for j in range(6):
                for rt in range(nrt):
                    if j < 3: e(f"ds_read_b128 {v(Q(rt,j),4)}, v{TC} offset:{(j*6+rt)*1024}")
                    else: e(f"ds_read_b128 {v(Q(rt,j),4)}, v{QOA} offset:{(j*7+rt)*1024}")
        g.label(f"t0_w_{tag}")
        e("s_waitcnt lgkmcnt(0)")
        for j in range(6):
            for rt in range(nrt): e(f"ds_write_b128 v{QOA}, {v(STG(rt,j),4)} offset:{(j*7+rt)*1024}")
        e(f"s_cmp_eq_u32 s{sSLOT}, 5")
        e(f"s_cbranch_scc1 t0_exit_{tag}")
        g.label(f"t0_noo_{tag}")
        for f in range(LEAD):
            for x in rd_l(0, f): x()
        step("a0_", 0, mf_qk(0, True), extra={1: lambda: e("s_barrier")})
        for rt in range(nrt):
            rowmax(0, rt, T[0], T[1])
            for i in range(4): e(f"v_sub_f32 v{NEGM(rt)+i}, 0, v{T[0]}")
            for i in range(8): e(f"v_sub_f32 v{S(0,rt)+i}, v{S(0,rt)+i}, v{T[0]}")
        for t in range(15):
            step(f"q{t}_", 2 * t + 1, mf_qk((t + 1) & 1, False), valu=sm(t & 1, H if t else 0) + chk_l(t & 1))
            chk_branch(t & 1, f"q{t}")
            va = sm((t + 1) & 1, 0, H)
            if t == 14: va = sm(1) + chk_l(1)
            step(f"p{t}_", 2 * t + 2, mf_pv(t & 1, t == 0), valu=va, v0=1)
        chk_branch(1, "q15")
        rc = [f"v_rcp_f32 v{T[i]}, v{LSUM(i//2)}" for i in range(2 * nrt)]
        ex = {3: lambda: [e(x) for x in rc]}
        for j in range(4): ex[4 + 2 * j] = lambda j=j: [e(x) for x in onorm_l(j)]
        step("p15_", 31, mf_pv(1, False, True), last=True, extra=ex)
        for x in onorm_l(4) + onorm_l(5): e(x)
        if nrt == 1:
            e(f"s_cmp_lg_u32 s{sSLOT}, 3")
            e("s_cbranch_scc1 t0_nohold")
            e(f"v_subrev_u32 v{TC}, 6144, v{QOA}")
            for n in range(18): e(f"ds_write_b128 v{TC}, {v(HOLD[n],4)} offset:{((3+n//6)*7+n%6)*1024}")
            e("s_waitcnt lgkmcnt(0)")
            g.label("t0_nohold")
        e(f"""
s_add_u32 s{sSLOT}, s{sSLOT}, 1
s_branch t0_unit_{tag}
""")
        if unit >= 1: g.mute -= 1
    g.label(f"t0_exit_{tag}")
    e("s_branch t0_final")
    for par in range(2):
        g.label(f"t0_rare{par}_{tag}")
        for rt in range(nrt):
            t, t2 = TC, T[0]
            rowmax(par, rt, t, t2)
            e(f"v_max_f32 v{t}, 0, v{t}")
            for i in range(4): e(f"v_sub_f32 v{NEGM(rt)+i}, v{NEGM(rt)+i}, v{t}")
            for pp in range(2):
                for i in range(8): e(f"v_sub_f32 v{S(pp,rt)+i}, v{S(pp,rt)+i}, v{t}")
            e(f"v_exp_f32 v{t}, -v{t}")
            for i in range(4): e(f"v_mul_f32 v{LSUM(rt)+i}, v{LSUM(rt)+i}, v{t}")
            for i in range(48): e(f"v_mul_f32 v{ACC(rt,0)+i}, v{ACC(rt,0)+i}, v{t}")
        for x in sm(par): e(x)
        e(f"s_setpc_b64 s[{sRET}:{sRET+1}]")
    return g.rec


def t0_final(p, needs):
    g = Gen(p, needs); e = g.e
    g.label("t0_final")
    op = OpEngine(g, lambda tt: 2 * (tt - 42), 56, 112, 128, [244, 245], 246, [247, 248], KVB, sLW, 2)
    op.fl = OPT["wo5"]; op.early = OPT["early"] >> 1
    op.addr_setup()
    e(f"""
s_mul_i32 s{sOB}, s{sW4}, {8*1280}
s_add_u32 s{sOB}, s{sOB}, {3*245760}
s_lshl_b32 s{sLW}, s{sW4}, 11
s_mov_b32 s{sSLO}, 0x01000c0c
s_mov_b32 s{sSHI}, 0x03020c0c
s_lshl_b32 s{sT1}, s{sW4}, 10
s_add_u32 s{sT1}, s{sT1}, {KVB + 32768}
v_add_u32 v249, s{sT1}, v246
""")
    for i in range(18, 22):
        for f in op.dma(i): f()
    def pk_read(ps):
        for rt in range(7): g.ld("pk", f"ds_read_b128 {v(op.PK(ps*14+rt*2),4)}, v249 offset:{rt*4096}")
    e("s_waitcnt lgkmcnt(0)"); g.lq[:] = []
    e("s_barrier")
    pk_read(3)
    e("s_waitcnt lgkmcnt(0)"); g.lq[:] = []
    for k in range(14):
        for x in op.unpack_l(op.AC(k), op.PK(42 + k)): e(x)
    g.wait("vm", "in", ["O18"])
    e("s_barrier")
    op.first_reads(18)
    def tick(i):
        op.flush_pq()
        g.wait("vm", f"t{i}", [f"O{i+1}"])
        e("s_barrier")
        if i + 4 < 30:
            for f in op.dma(i + 4): f()
    for i in range(18, 30):
        op.step("f", i, 29, tick, store=[3], hooks={5: lambda: pk_read(4)} if i == 20 else None)
    op.finish()
    for i in range(OPT["lastb"] - 12): e("s_barrier")
    if not OPT["oldfin"]: e("s_waitcnt vmcnt(0)")
    e("s_barrier")
    e("s_branch k1_final")
    return g.rec

def t1_path(p, needs):
    g = Gen(p, needs); e = g.e
    def PK(tt): return 2 * tt
    def Q2(k): return PK(56) + 2 * k if k < 14 else 236 + 2 * (k - 14)
    OB = 252
    op = OpEngine(g, PK, 140, 196, 212, [250, 251], OB, [253, 254], T1R, sLW, 0)
    AC, AF, BF = op.AC, op.AF, op.BF
    op.pkb = OPT["pkb"] & 1
    def dma_sub(u):
        a, bb = divmod(u, 3)
        srd = sKd if kv_kind(a) == "K" else sVd
        def f():
            kw = (OPT["kwa"] if u < OPT["kwu"] else OPT["kw"]) if st.get("mixed") else OPT["kw1m"]
            if u < KL and not OPT["t0w"]: kw = 0
            if kw:
                idx = [i for i, t in enumerate(g.vq) if t.startswith("U")]
                n = len(g.vq) - 1 - idx[-kw] if len(idx) >= kw else 999
                k = ("vm", f"kw{u}.{st.get('mixed')}")
                g.rec[k] = min(g.rec.get(k, 999), n)
                val = g.needs.get(k, n)
                if val != 999:
                    e(f"s_waitcnt vmcnt({val})")
                    del g.vq[:len(g.vq) - val if val < len(g.vq) else 0]
            e(f"s_add_u32 m0, s{sL1}, {KVB + (u % NS) * 4096 - bb * 128}")
            e(f"s_add_u32 s{sT1}, s{sKSO2}, {kv_tile(a) * TILE}")
            off = f"offset:{bb*128} " if bb else ""
            g.vm(f"U{u % 96}", f"buffer_load_dwordx4 v{PKV_}, s[{srd}:{srd+3}], s{sT1} offen {off}{OPT['kv']} lds")
        return f
    st = dict(pub=0, iss=0)
    def kv_tags(k):
        upto = XB_[k + 1] if k < NX - 1 else 384
        n = -(-(upto + LEAD) // 4) if upto < 384 else 96
        tags = [f"U{u}" for u in range(st["pub"], n)]
        st["pub"] = max(st["pub"], n)
        return tags
    def kv_issue(k):
        out = []
        while k in KVT and 4 * (st["iss"] - KL) + 4 <= XB_[k]:
            out.append(dma_sub(st["iss"])); st["iss"] += 1
        return out
    def touch_o(t):
        nsh = 16 if OPT["map"] == 0 else 8
        per = 245760 // (4 * nsh)
        e(f"""
s_and_b32 s{sT1}, s{sB}, {nsh-1}
s_lshl_b32 s{sT1}, s{sT1}, 2
s_add_u32 s{sT1}, s{sT1}, s{sW4}
s_mul_i32 s{sT1}, s{sT1}, {per}
s_sub_u32 s{sT2}, s{sSLOT}, 1
s_mul_i32 s{sT2}, s{sT2}, 245760
s_add_u32 s{sT1}, s{sT1}, s{sT2}
s_mov_b32 m0, {SPARE}
v_mbcnt_lo_u32_b32 v{t}, -1, 0
v_mbcnt_hi_u32_b32 v{t}, -1, v{t}
v_min_u32 v{t}, {per//128-1}, v{t}
v_lshlrev_b32 v{t}, 7, v{t}
""")
        g.vm("pf", f"buffer_load_dword v{t}, s[{sOd}:{sOd+3}], s{sT1} offen {OPT['tf']} lds")
    NEXT = {26: 2, 27: 3, 28: 0, 29: 1}
    def tick(i):
        waits = ([f"O{i+1}"] if i < 29 else []) + kv_tags(i)
        op.flush_pq()
        if waits: g.wait("vm", f"o{i}", waits)
        if OPT["vcap"]: e(f"s_waitcnt vmcnt({OPT['vcap']})")
        e("s_barrier")
        io = []
        if not OPT["burst"]:
            if i == 26: io.append(lambda: e(f"s_add_u32 s{sOB}, s{sOB}, 245760"))
            io += op.dma(NEXT.get(i, i + 4))
        elif i % 2 == 1:
            if i == 27: io.append(lambda: e(f"s_add_u32 s{sOB}, s{sOB}, 245760"))
            io += op.dma(NEXT.get(i - 1, i + 3)) + op.dma(NEXT.get(i, i + 4))
        items = kv_issue(i) + io if OPT["kvfirst"] and i < 28 else io + kv_issue(i)
        if OPT["near"] and i == OPT["near"]: items.append(lambda: touch_o(AF(i + 1, 0) if False else 249))
        for f in items[:OPT["now0"]]: f()
        items = items[OPT["now0"]:]
        for j, f in enumerate(items): op.pq.append((op.clock + OPT["vpost"] + (j * OPT["span"]) // len(items), f))
    def q_write(reg):
        for rt in range(7):
            for k in range(3): e(f"ds_write_b64 v{AC(0)+k}, {v(reg(rt,k),2)} offset:{QO+rt*1024}")
        e("s_waitcnt lgkmcnt(0)")
    def q_addr():
        t = AC(1)
        e(f"v_lshrrev_b32 v{t}, 5, v{OB}")
        e(f"v_and_b32 v{t}, 8, v{t}")
        e(f"v_add_u32 v{t}, v{t}, v{OB}")
        for k in range(3):
            e(f"""
s_mul_i32 s{sT1}, s{sW4}, 3
s_add_u32 s{sT1}, s{sT1}, {k}
s_lshr_b32 s{sT2}, s{sT1}, 1
s_mul_i32 s{sT2}, s{sT2}, 7168
s_and_b32 s{sT1}, s{sT1}, 1
s_lshl_b32 s{sT1}, s{sT1}, 3
v_xor_b32 v{AC(0)+k}, s{sT1}, v{t}
v_add_u32 v{AC(0)+k}, s{sT2}, v{AC(0)+k}
""")

    K0, NQ = OPT["k0"], OPT["nq"]
    e(f"""
s_mov_b32 s{sSLOT}, 1
s_mov_b32 s{sRX}, 0x01000c0c
s_mov_b32 s{sRX+1}, 0x03020c0c
""")
    for k in range(21):
        for x in range(2): e(f"v_mov_b32 v{4*k+2+x}, v{84+4*k+x}")
    for x in range(2): e(f"v_subrev_u32 v{QXA[x]}, {X9}, v{QXA[x]}")
    for u in range(NPRE):
        g.vq.append(f"U{u}"); g.issued[f"U{u}"] = 1
    st.update(pub=0, iss=NPRE)
    g.wait("vm", "i_t0", kv_tags(-1))
    e("s_barrier")
    stamp_slot(e)
    def w3(i): return w_dma(g, i, 3, T1R + (i % 4) * TILE, f"W{i}")
    def x3(pp): return x_dma(g, pp, QO + (pp % 3) * 14336)
    for f in w3(0) + w3(1): f()
    NT0 = KL if OPT["t0i"] else N0 - 96
    for u in range(NPRE, NT0): dma_sub(u)()
    st["iss"] = NT0
    e("s_barrier")
    for f in x3(0) + w3(2) + x3(1) + w3(3): f()
    def tick1(k, waits=(), issue=()):
        w = list(waits) + kv_tags(k)
        if w: g.wait("vm", f"i{k}", w)
        e("s_barrier")
        kv = kv_issue(k) if not (OPT["b1"] and K0 <= k < K0 + 19 and (k - K0) % 2 == OPT["b1"] - 1) else []
        for f in (kv + list(issue) if OPT["kf1"] else list(issue) + kv): f()
        if k == OPT["tch"] and OPT["touch"]: touch_o(212)
    def qa(i, n):
        k, hf = divmod(n, 2)
        g.ld(f"{i}a{k}", f"ds_read_b64_tr_b16 {v(QAF(i&1,0,k)+2*hf,2)}, v{QRA[1][k]} offset:{(i%4)*TILE+hf*1536}")
    def qb(i, rt):
        g.ld(f"{i}b{rt}", f"ds_read_b128 {v(QBF(7*i+rt),4)}, v{QXA[i&1]} offset:{((i>>1)%3)*14336+rt*2048}")
    for k in range(K0): tick1(k, ["W0", "X0"] if k == K0 - 1 else [])
    qa(0, 0); qa(0, 1); qb(0, 0); qb(0, 1)
    for n in range(2, 6): qa(0, n)
    qb(0, 2); qb(0, 3)
    A0 = [NQ + 2, NQ + 3, NQ + 5, NQ + 6, NQ + 8, NQ + 9]
    for i in range(20):
        for n in range(21):
            rt, k = divmod(n, 3)
            if n == NQ and i < 19:
                tick1(K0 + i, [f"W{i+1}"] + ([f"X{(i+1)//2}"] if i % 2 == 1 else []),
                      ((w3(i + 4) if i + 4 < 20 else []) if not OPT["wp"] else
                       ((w3(i + 3) if 0 < i < 17 else []) + (w3(i + 4) if i + 4 < 20 else []) if i % 2 == 0 else [])) +
                      (x3(i // 2 + 2) if i % 2 == 0 and i // 2 + 2 < 10 else []))
            tags = ([f"{i}b{rt}"] if k == 0 else []) + ([f"{i}a{k}"] if rt == 0 else [])
            if tags: g.wait("lg", f"q{i}m{n}", tags)
            mfma(e, QAC(1, rt, k), QAF(i & 1, 0, k), QBF(7 * i + rt), "0" if i == 0 else QAC(1, rt, k))
            if k == 2:
                if rt + 4 < 7: qb(i, rt + 4)
                elif i < 19: qb(i + 1, rt - 3)
            if i < 19 and n in A0: qa(i + 1, A0.index(n))
            if i == 19 and n >= 4: q_cvt(e, QAC(1, (n - 4) // 3, (n - 4) % 3))
    for n in range(17, 21): q_cvt(e, QAC(1, n // 3, n % 3))
    tick1(K0 + 19)
    for rt in range(7):
        for k in range(3): e(f"ds_write_b64 v{QB[k] if rt < 6 else QT[k]}, {v(QAC(1,rt,k),2)} offset:{rt*1024 if rt < 6 else 0}")
    e(f"v_mov_b32 v232, {SPARE + 1024 + 256}")
    e("v_mov_b32 v234, 0")
    e("v_mov_b32 v235, 0")
    e("ds_write_b64 v232, v[234:235]")
    e("ds_write_b64 v232, v[234:235] offset:8")
    e("s_waitcnt lgkmcnt(0)")
    tick1(K0 + 20)
    tick1(K0 + 21)
    for rt in range(7):
        for k in range(3): e(f"ds_write_b64 v{QW[k]}, {v(QAC(0,rt,k),2)} offset:{QO+rt*1024}")
    e(f"""
s_waitcnt lgkmcnt(0)
s_mul_i32 s{sOB}, s{sW4}, {8*1280}
s_lshl_b32 s{sLW}, s{sW4}, 11
""")
    op.addr_setup()
    for k in range(21):
        for x in range(2): e(f"v_mov_b32 v{Q2(k)+x}, v{4*k+2+x}")
    for k in range(K0 + 22, NX):
        tick1(k, [], op.dma(NEXT[k]) if k >= 26 else [])
    for s in range(2, 5):
        if s != 2: g.mute += 1
        g.label("t1_slot")
        assert st["iss"] == N0
        st.update(pub=0, iss=N0 - 96, mixed=1)
        e(f"""
s_add_u32 s{sSLOT}, s{sSLOT}, 1
s_add_u32 s{sKSO2}, s{sKSO2}, 196608
s_cmp_eq_u32 s{sSLOT}, 2
s_cselect_b32 s{sSLO}, 0x0c0c0c0c, s{sRX}
s_cselect_b32 s{sSHI}, 0x0c0c0c0c, s{sRX+1}
""")
        g.wait("vm", "t0", kv_tags(-1))
        e("s_barrier")
        if not g.mute: stamp_slot(e)
        for u in range(N0 - 96, NT0): dma_sub(u)()
        st["iss"] = NT0
        if OPT["touch"] and not OPT["near"]: touch_o(AF(0, 0))
        for k in range(14):
            for x in op.unpack_l(AC(k), PK(k)): e(x)
        g.wait("vm", "o_in", ["O0"])
        e("s_barrier")
        stamp_if(e, 12, OPT["ps"])
        op.first_reads(0)
        for i in range(30): op.step("m", i, 29, tick)
        stamp_if(e, 13, OPT["ps"])
        tick(29)
        op.finish()
        e(f"s_cmp_lg_u32 s{sSLOT}, 2")
        e("s_cbranch_scc1 t1_noq2")
        for k in range(3): e(f"v_mov_b32 v{BF(0)+k}, v{AC(0)+k}")
        e(f"v_mov_b32 v{BF(0)+3}, v{AC(1)}")
        q_addr()
        q_write(lambda rt, k: Q2(rt * 3 + k))
        for k in range(3): e(f"v_mov_b32 v{AC(0)+k}, v{BF(0)+k}")
        e(f"v_mov_b32 v{AC(1)}, v{BF(0)+3}")
        g.label("t1_noq2")
        for n in range(14):
            for x in op.pack_l(PK(56 + n), AC(n)): e(x)
        e(f"s_cmp_lg_u32 s{sSLOT}, 4")
        e("s_cbranch_scc1 t1_slot")
        if s != 2: g.mute -= 1
    g.label("t1_last")
    op.fl = OPT["wo5"]; op.nr = OPT["r5"]; op.early = OPT["early"] & 1; op.pkb = OPT["pkb"] >> 1
    R5 = op.nr
    e(f"""
s_mov_b32 s{sSLOT}, 5
s_lshl_b32 s{sT1}, s{sW4}, 10
s_add_u32 s{sT1}, s{sT1}, {KVB + 32768}
v_add_u32 v249, s{sT1}, v{OB}
""")
    def pk_write(ps):
        for rt in range(7): g.ld("pk", f"ds_write_b128 v249, {v(PK(ps*14+rt*2),4)} offset:{rt*4096}")
    for k in range(14):
        for x in op.unpack_l(AC(k), PK(k)): e(x)
    e("s_waitcnt vmcnt(0)"); g.vq[:] = []
    e("s_barrier")
    stamp_slot(e)
    for i in range(4, R5):
        for f in op.dma(i): f()
    pk_write(3)
    e("s_waitcnt lgkmcnt(0)"); g.lq[:] = []
    e("s_barrier")
    stamp_if(e, 12, OPT["ps"])
    g.issued.pop("O0")
    op.first_reads(0)
    def tick5(i):
        op.flush_pq()
        if i > OPT["lastb"]: return
        if i == 2: g.wait("lg", "pkw", ["pk"])
        g.wait("vm", f"f{i}", [f"O{x}" for x in range(i + 1, 18 if i == OPT["lastb"] else i + 2)] + (["st"] if i == OPT["lastb"] and not OPT["oldfin"] else []))
        e("s_barrier")
        if i + R5 < 18:
            for f in op.dma(i + R5): f()
    g.issued.pop("pk")
    for i in range(18):
        op.step("f", i, 17, tick5, store=[0], hooks={5: lambda: pk_write(4)} if i == 1 else None)
    op.finish()
    stamp_if(e, 13, OPT["ps"])
    g.label("t1_exit")
    return g.rec

sG, sMASK, sQ, sPEND, sDOK = 4, 5, 6, 7, 21
sD, sA, sOUT, sF = 8, 32, 36, 40
sOK = 20
sLD, sST = 12, 16
def fin_setup(e):
    e(f"""
s_and_b32 s{sG}, s2, 7
s_cmp_lt_u32 s{sG}, 4
s_cselect_b32 s{sG}, 0, 16
s_add_u32 s{sG}, s{sG}, s{sB}
s_mov_b32 s{sD}, s26
s_mov_b32 s{sD+1}, s27
s_mov_b32 s{sD+2}, 256
s_mov_b32 s{sD+3}, 0x20000
s_lshl_b32 s{sT2}, s{sG}, 10
s_add_u32 s{sT2}, s{sT2}, {FLAG0}
s_add_u32 s{sF}, s28, s{sT2}
s_addc_u32 s{sF+1}, s29, 0
s_mov_b32 s{sF+2}, 1024
s_mov_b32 s{sF+3}, 0x20000
s_mul_i32 s{sT1}, s{sG}, {8*PART_CU}
s_add_u32 s{sT1}, s{sT1}, {PART0}
s_add_u32 s{sA}, s28, s{sT1}
s_addc_u32 s{sA+1}, s29, 0
s_mov_b32 s{sA+2}, {8*PART_CU}
s_mov_b32 s{sA+3}, 0x20000
s_mul_i32 s{sT1}, s{sB}, {112*2560}
s_lshr_b32 s{sT2}, s{sG}, 4
s_mul_i32 s{sT2}, s{sT2}, 1280
s_add_u32 s{sT1}, s{sT1}, s{sT2}
s_add_u32 s{sOUT}, s24, s{sT1}
s_addc_u32 s{sOUT+1}, s25, 0
s_sub_u32 s{sOUT+2}, {112*2560}, s{sT2}
s_mov_b32 s{sOUT+3}, 0x20000
s_mov_b32 s{sPEND}, 0xff
s_mov_b32 s{sDOK}, 0
s_mov_b32 s{sCTR}, 0
s_mov_b32 s{sQ}, s{sQUAD}
s_lshl_b32 s{sG}, s{sG}, 2
v_mbcnt_lo_u32_b32 v216, -1, 0
v_mbcnt_hi_u32_b32 v216, -1, v216
v_lshlrev_b32 v217, 4, v216
v_and_b32 v218, 15, v216
v_lshrrev_b32 v219, 4, v216
v_mul_u32_u24 v220, 272, v218
v_lshl_add_u32 v220, v219, 3, v220
s_mul_i32 s{sT2}, s{sTEAM}, {4*4352}
s_add_u32 s{sT2}, s{sT2}, {KVB}
s_lshl_b32 s{sT1}, s{sW4}, 6
s_add_u32 s{sT1}, s{sT1}, s{sT2}
v_add_u32 v220, s{sT1}, v220
s_mul_i32 s{sT1}, s{sW4}, {4*272}
s_add_u32 s{sT1}, s{sT1}, s{sT2}
v_mul_u32_u24 v221, 272, v219
v_lshl_add_u32 v221, v218, 4, v221
v_add_u32 v221, s{sT1}, v221
v_mul_u32_u24 v219, 2560, v219
v_lshl_add_u32 v218, v218, 4, v219
v_and_b32 v222, 7, v216
v_lshlrev_b32 v222, 7, v222
v_mov_b32 v223, 0
""")
FINL = SPARE + 1024 + 256
def slice_setup(e):
    for k in range(4):
        e(f"""
s_add_u32 s{sT1}, s{sQ}, {8*k}
s_cmp_lt_u32 s{sT1}, 28
s_cselect_b32 s{sOK}, 1, 0
s_cmp_ge_u32 s{sT1}, 14
s_cselect_b32 s{sT2}, 7, 0
s_add_u32 s{sT1}, s{sT1}, s{sT2}
""")
        if k == 0:
            e(f"""
s_cmp_eq_u32 s{sTEAM}, 0
s_cbranch_scc1 k1_ss{slice_setup.n}
s_add_u32 s{sT1}, s{sQ}, 14
s_cmp_lt_u32 s{sQ}, 7
s_cselect_b32 s{sOK}, 1, 0
k1_ss{slice_setup.n}:
""")
            slice_setup.n += 1
        e(f"""
s_mul_i32 s{sT2}, s{sW4}, 35
s_add_u32 s{sT2}, s{sT2}, s{sT1}
s_lshl_b32 s{sT2}, s{sT2}, 10
s_cmp_lg_u32 s{sOK}, 0
s_cselect_b32 s{sLD+k}, s{sT2}, {8*PART_CU}
s_mul_i32 s{sT2}, s{sT1}, 37
s_lshr_b32 s{sT2}, s{sT2}, 8
s_mul_i32 s{sT3}, s{sT2}, 7
s_sub_u32 s{sT3}, s{sT1}, s{sT3}
s_lshl_b32 s{sT2}, s{sT2}, 8
s_mul_i32 s{sT3}, s{sT3}, {16*2560}
s_add_u32 s{sT2}, s{sT2}, s{sT3}
s_mul_i32 s{sT3}, s{sW4}, {4*2560}
s_add_u32 s{sT2}, s{sT2}, s{sT3}
s_cmp_lg_u32 s{sOK}, 0
s_cselect_b32 s{sST+k}, s{sT2}, 0x1000000
""")
slice_setup.n = 0
def fin_subs(e):
    e(f"""
k1_round:
s_cmp_lg_u32 s{sDOK}, 0
s_cbranch_scc1 k1_r1
buffer_load_dword v224, v223, s[{sD}:{sD+3}], s{sG} offen sc1
s_waitcnt vmcnt(0)
v_readfirstlane_b32 s{sT1}, v224
s_cmp_eq_u32 s{sT1}, 8
s_cselect_b32 s{sDOK}, 1, 0
s_cbranch_scc0 k1_rret
k1_r1:
buffer_load_dword v224, v222, s[{sF}:{sF+3}], 0 offen sc1
s_waitcnt vmcnt(0)
v_cmp_eq_u32 vcc, 1, v224
s_and_b32 s{sT3}, vcc_lo, s{sPEND}
k1_loads:
s_andn2_b32 s{sPEND}, s{sPEND}, s{sT3}
""")
    for q in range(8):
        e(f"s_bitcmp1_b32 s{sT3}, {q}")
        e(f"s_cbranch_scc0 k1_l{q}")
        for k in range(4):
            e(f"s_add_u32 s{sT1}, s{sLD+k}, {q*PART_CU}")
            e(f"buffer_load_dwordx4 {v(8+32*k+4*q,4)}, v217, s[{sA}:{sA+3}], s{sT1} offen {OPT['rd']}")
            if k == 0:
                e(f"s_cmp_lg_u32 s{sTEAM}, 0")
                e(f"s_cbranch_scc1 k1_l{q}")
        e(f"k1_l{q}:")
    e(f"""
k1_rret:
s_setpc_b64 s[{sRET}:{sRET+1}]
""")
def final_reduce(p):
    slice_setup.n = 0
    e = p
    e.label("k1_final")
    if OPT["two"]:
        if OPT["prof"]: e("s_waitcnt vmcnt(0)")
        stamp(e, 10); stamp(e, 11, real=True)
        dump_stamps(e, 28, 64 << 20, 8)
        return
    fin_setup(e); slice_setup(e)
    e(f"""
v_mov_b32 v225, 1
v_mov_b32 v226, {FINL}
s_lshl_b32 s{sT2}, s{sQUAD}, 7
s_cmp_lg_u32 s{sTEAM}, 0
s_cbranch_scc1 k1_f1
s_cmp_lg_u32 s{sWAVE}, 0
s_cbranch_scc1 k1_poll
s_mov_b64 exec, 1
buffer_store_dword v225, v223, s[{sF}:{sF+3}], s{sT2} offen sc1
s_mov_b64 exec, -1
s_branch k1_poll
k1_f1:
v_add_u32 v222, 4, v222
s_waitcnt vmcnt(0)
""")
    stamp(e, 9, real=bool(OPT["rt"]))
    e(f"""
s_mov_b64 exec, 1
ds_add_rtn_u32 v224, v226, v225 offset:8
s_waitcnt lgkmcnt(0)
v_readfirstlane_b32 s{sT1}, v224
s_cmp_lg_u32 s{sT1}, 3
s_cbranch_scc1 k1_f2
buffer_store_dword v225, v223, s[{sF}:{sF+3}], s{sT2} offen offset:4 sc1
buffer_atomic_add v225, v223, s[{sD}:{sD+3}], s{sG} offen offset:128 sc0 sc1
s_waitcnt vmcnt(0)
v_readfirstlane_b32 s{sT2}, v225
s_and_b32 s{sT3}, s{sT2}, 0xff
s_bfe_u32 s{sT2}, s{sT2}, 0x80008
s_cmp_eq_u32 s{sT3}, 7
s_cselect_b32 s{sT2}, s{sT2}, 0
v_mov_b32 v225, s{sT2}
ds_write_b32 v226, v225 offset:4
k1_f2:
s_mov_b64 exec, -1
k1_poll:
s_call_b64 s[{sRET}:{sRET+1}], k1_round
s_add_u32 s{sCTR}, s{sCTR}, 1
s_cmp_eq_u32 s{sPEND}, 0
s_cbranch_scc1 k1_pd
s_cmp_lt_u32 s{sCTR}, {OPT['spin']}
s_cbranch_scc1 k1_poll
k1_pd:
s_mov_b32 s{sOK}, 0
s_cmp_lg_u32 s{sPEND}, 0
s_cbranch_scc1 k1_np
s_call_b64 s[{sRET}:{sRET+1}], k1_sums
s_mov_b32 s{sOK}, 1
k1_np:
s_waitcnt lgkmcnt(0)
s_barrier
s_cmp_lg_u32 s{sWAVE}, 4
s_cbranch_scc1 k1_fw
s_lshl_b32 s{sMASK}, 1, s{sQUAD}
s_mov_b64 exec, 1
s_cmp_eq_u32 s{sPEND}, 0
s_cbranch_scc1 k1_go
s_lshl_b32 s{sT2}, s{sMASK}, 8
v_mov_b32 v225, s{sT2}
buffer_atomic_or v225, v223, s[{sD}:{sD+3}], s{sG} offen offset:128 sc0 sc1
s_waitcnt vmcnt(0)
v_readfirstlane_b32 s{sT2}, v225
s_and_b32 s{sT2}, s{sT2}, 0xff
s_cmp_eq_u32 s{sT2}, 8
s_cselect_b32 s{sMASK}, s{sMASK}, 0
k1_go:
v_mov_b32 v225, s{sMASK}
ds_write_b32 v226, v225
s_waitcnt lgkmcnt(0)
s_mov_b64 exec, -1
k1_fw:
""")
    def sums(k):
        for i in range(4):
            r = 8 + 32 * k + i
            e(f"v_lshlrev_b32 v{140+2*i}, 16, v{r}")
            e(f"v_and_b32 v{141+2*i}, 0xffff0000, v{r}")
        for q in range(1, 8):
            for i in range(4):
                r = 8 + 32 * k + 4 * q + i
                e(f"v_lshlrev_b32 v{148+2*(i&1)}, 16, v{r}")
                e(f"v_and_b32 v{149+2*(i&1)}, 0xffff0000, v{r}")
                e(f"v_pk_add_f32 {v(140+2*i,2)}, {v(140+2*i,2)}, {v(148+2*(i&1),2)}")
        for i in range(4): e(f"v_cvt_pk_bf16_f32 v{152+4*k+i}, v{140+2*i}, v{141+2*i}")
        e(f"ds_write_b64 v220, {v(152+4*k,2)} offset:{k*4352}")
        e(f"ds_write_b64 v220, {v(154+4*k,2)} offset:{k*4352+32}")
    e(f"""
s_barrier
ds_read_b64 v[224:225], v226
s_waitcnt lgkmcnt(0)
v_or_b32 v224, v224, v225
v_readfirstlane_b32 s{sMASK}, v224
""")
    stamp(e, 8, real=bool(OPT["rt"]))
    e(f"""
s_bitcmp1_b32 s{sMASK}, s{sQ}
s_cbranch_scc1 k1_own0
k1_slice:
s_cmp_eq_u32 s{sMASK}, 0
s_cbranch_scc1 k1_done
s_ff1_i32_b32 s{sQ}, s{sMASK}
s_mov_b32 s{sPEND}, 0xff
s_waitcnt vmcnt(0)
""")
    slice_setup(e)
    e(f"""
s_mov_b32 s{sOK}, 0
k1_own0:
s_bitset0_b32 s{sMASK}, s{sQ}
s_cmp_lg_u32 s{sOK}, 0
s_cbranch_scc1 k1_s0
s_mov_b32 s{sT3}, s{sPEND}
s_call_b64 s[{sRET}:{sRET+1}], k1_loads
s_call_b64 s[{sRET}:{sRET+1}], k1_sums
k1_s0:
s_waitcnt lgkmcnt(0)
s_barrier
""")
    if OPT["fs"]: stamp(e, 15, real=True)
    for k in range(4): e(f"ds_read_b128 {v(168+4*k,4)}, v221 offset:{k*4352}")
    for k in range(4):
        e(f"s_waitcnt lgkmcnt({3-k})")
        e(f"buffer_store_dwordx4 {v(168+4*k,4)}, v218, s[{sOUT}:{sOUT+3}], s{sST+k} offen {OPT['of']}")
        if k == 0:
            e(f"s_cmp_lg_u32 s{sTEAM}, 0")
            e("s_cbranch_scc1 k1_s2")
    e(f"""
k1_s2:
s_cmp_eq_u32 s{sMASK}, 0
s_cbranch_scc1 k1_done
s_waitcnt lgkmcnt(0)
s_barrier
s_branch k1_slice
""")
    e("k1_sums:")
    e("s_waitcnt vmcnt(0)")
    if OPT["fs"]: stamp(e, 14, real=True)
    sums(0)
    e(f"s_cmp_lg_u32 s{sTEAM}, 0")
    e("s_cbranch_scc1 k1_s1")
    for k in range(1, 4): sums(k)
    e("k1_s1:")
    e(f"s_setpc_b64 s[{sRET}:{sRET+1}]")
    fin_subs(e)
    e("k1_done:")
    if OPT["prof"]: e("s_waitcnt vmcnt(0)")
    stamp(e, 10); stamp(e, 11, real=True)
    dump_stamps(e, 28, 64 << 20, 8)

def final_reduce_old(p):
    e = p
    sG, sMASK, sQ, sBL = 4, 5, 6, 7
    sD, sA, sOUT = 8, 32, 36
    SKO = OPT["sko"]
    def late():
        if not SKO: return ""
        x = f"""s_mov_b64 exec, -1
s_lshl_b32 s{sT2}, s{sG}, 3
s_add_u32 s{sT2}, s{sT2}, s{sQUAD}
s_mul_i32 s{sT2}, s{sT2}, {PART_CU}
s_add_u32 s{sT2}, s{sT2}, {PART0}
s_add_u32 s{sA}, s28, s{sT2}
s_addc_u32 s{sA+1}, s29, 0
s_mov_b32 s{sA+2}, {PART_CU}
s_mov_b32 s{sA+3}, 0x20000
v_lshlrev_b32 v5, 4, v2
v_add_u32 v6, {KVB+32768}, v5
"""
        for m in range(5):
            for c in range(4):
                x += f"ds_read_b128 {v(8+16*m+4*c,4)}, v6 offset:{m*4096+c*1024}\n"
            x += "s_waitcnt lgkmcnt(0)\n"
            for c in range(4):
                x += f"""s_add_u32 s{sT2}, s{sQUAD}, {8*m}
s_cmp_lt_u32 s{sT2}, 35
s_cselect_b32 s{sT2}, s{sT2}, 0x1000
s_add_u32 s{sT2}, s{sT2}, {35*c}
s_lshl_b32 s{sT2}, s{sT2}, 10
buffer_store_dwordx4 {v(8+16*m+4*c,4)}, v5, s[{sA}:{sA+3}], s{sT2} offen sc1
"""
        return x + "s_waitcnt vmcnt(0)"
    e.label("k1_final")
    if OPT["two"]:
        if OPT["prof"]: e("s_waitcnt vmcnt(0)")
        stamp(e, 10); stamp(e, 11, real=True)
        dump_stamps(e, 28, 64 << 20, 8)
        return
    e(f"""
s_waitcnt vmcnt(0) lgkmcnt(0)
s_barrier
""")
    stamp(e, 9, real=bool(OPT["rt"]))
    e(f"""
s_and_b32 s{sG}, s2, 7
s_cmp_lt_u32 s{sG}, 4
s_cselect_b32 s{sG}, 0, 16
s_add_u32 s{sG}, s{sG}, s{sB}
v_mbcnt_lo_u32_b32 v2, -1, 0
v_mbcnt_hi_u32_b32 v2, -1, v2
s_cmp_gt_u32 s{sWAVE}, 1
s_cbranch_scc1 k1_fw
s_mov_b32 s{sD}, s26
s_mov_b32 s{sD+1}, s27
s_mov_b32 s{sD+2}, 256
s_mov_b32 s{sD+3}, 0x20000
s_lshl_b32 s{sT1}, s{sG}, 2
v_mov_b32 v3, 0
v_mov_b32 v4, 1
s_cmp_eq_u32 s{sWAVE}, 0
s_cbranch_scc1 k1_w0
s_mov_b64 exec, 1
buffer_atomic_add v4, v3, s[{sD}:{sD+3}], s{sT1} offen offset:128 sc0 sc1
s_waitcnt vmcnt(0)
v_readfirstlane_b32 s{sT2}, v4
s_and_b32 s{sT3}, s{sT2}, 0xff
s_bfe_u32 s{sT2}, s{sT2}, 0x80008
s_cmp_eq_u32 s{sT3}, 7
s_cselect_b32 s{sT2}, s{sT2}, 0
v_mov_b32 v4, s{sT2}
ds_write_b32 v3, v4 offset:4
s_waitcnt lgkmcnt(0)
s_mov_b64 exec, -1
s_branch k1_fw
k1_w0:
s_lshl_b32 s{sMASK}, 1, s{sQUAD}
s_lshl_b32 s{sT2}, s{sG}, 10
s_add_u32 s{sT2}, s{sT2}, {FLAG0}
s_add_u32 s{sA}, s28, s{sT2}
s_addc_u32 s{sA+1}, s29, 0
s_mov_b32 s{sA+2}, 1024
s_mov_b32 s{sA+3}, 0x20000
s_lshl_b32 s{sT2}, s{sQUAD}, 7
s_mov_b64 exec, 1
buffer_store_dword v4, v3, s[{sA}:{sA+3}], s{sT2} offen sc1
s_mov_b64 exec, 0xff
v_lshlrev_b32 v5, 7, v2
s_mov_b32 s{sCTR}, 0
k1_poll:
buffer_load_dword v6, v3, s[{sD}:{sD+3}], s{sT1} offen sc1
buffer_load_dword v4, v5, s[{sA}:{sA+3}], 0 offen sc1
s_waitcnt vmcnt(1)
v_cmp_ne_u32 vcc, 8, v6
s_cbranch_vccnz k1_again
k1_poll2:
s_waitcnt vmcnt(0)
v_cmp_ne_u32 vcc, 1, v4
s_cbranch_vccz k1_go
s_add_u32 s{sCTR}, s{sCTR}, 1
s_cmp_lt_u32 s{sCTR}, {OPT['spin']}
s_cbranch_scc0 k1_late
buffer_load_dword v4, v5, s[{sA}:{sA+3}], 0 offen sc1
s_branch k1_poll2
k1_again:
s_waitcnt vmcnt(0)
s_add_u32 s{sCTR}, s{sCTR}, 1
s_cmp_lt_u32 s{sCTR}, {OPT['spin']}
s_cbranch_scc1 k1_poll
k1_late:
{late()}
s_mov_b64 exec, 1
s_lshl_b32 s{sT2}, s{sMASK}, 8
v_mov_b32 v4, s{sT2}
buffer_atomic_or v4, v3, s[{sD}:{sD+3}], s{sT1} offen offset:128 sc0 sc1
s_waitcnt vmcnt(0)
v_readfirstlane_b32 s{sT2}, v4
s_and_b32 s{sT2}, s{sT2}, 0xff
s_cmp_eq_u32 s{sT2}, 8
s_cselect_b32 s{sMASK}, s{sMASK}, 0
k1_go:
s_mov_b64 exec, 1
v_mov_b32 v4, s{sMASK}
ds_write_b32 v3, v4
s_waitcnt lgkmcnt(0)
s_mov_b64 exec, -1
k1_fw:
s_mul_i32 s{sT1}, s{sG}, {8*PART_CU}
s_add_u32 s{sT1}, s{sT1}, {PART0}
s_add_u32 s{sA}, s28, s{sT1}
s_addc_u32 s{sA+1}, s29, 0
s_mov_b32 s{sA+2}, {8*PART_CU}
s_mov_b32 s{sA+3}, 0x20000
s_mul_i32 s{sT1}, s{sB}, {112*2560}
s_lshr_b32 s{sT2}, s{sG}, 4
s_mul_i32 s{sT2}, s{sT2}, 1280
s_add_u32 s{sT1}, s{sT1}, s{sT2}
s_add_u32 s{sOUT}, s24, s{sT1}
s_addc_u32 s{sOUT+1}, s25, 0
s_sub_u32 s{sOUT+2}, {112*2560}, s{sT2}
s_mov_b32 s{sOUT+3}, 0x20000
v_lshlrev_b32 v3, 4, v2
v_and_b32 v4, 15, v2
v_lshrrev_b32 v5, 4, v2
v_mul_u32_u24 v6, 272, v4
v_lshl_add_u32 v6, v5, 3, v6
s_mul_i32 s{sT2}, s{sTEAM}, {3*4352}
s_add_u32 s{sT2}, s{sT2}, 2048
s_lshl_b32 s{sT1}, s{sW4}, 6
s_add_u32 s{sT1}, s{sT1}, s{sT2}
v_add_u32 v6, s{sT1}, v6
s_mul_i32 s{sT1}, s{sW4}, {4*272}
s_add_u32 s{sT1}, s{sT1}, s{sT2}
v_mul_u32_u24 v7, 272, v5
v_lshl_add_u32 v7, v4, 4, v7
v_add_u32 v7, s{sT1}, v7
v_mul_u32_u24 v5, 2560, v5
v_lshl_add_u32 v4, v4, 4, v5
v_mov_b32 v5, 0
s_barrier
ds_read_b64 v[8:9], v5
s_waitcnt lgkmcnt(0)
v_or_b32 v5, v8, v9
v_readfirstlane_b32 s{sMASK}, v5
""")
    stamp(e, 8, real=bool(OPT["rt"]))
    e(f"""
k1_slice:
s_cmp_eq_u32 s{sMASK}, 0
s_cbranch_scc1 k1_done
s_ff1_i32_b32 s{sQ}, s{sMASK}
s_bitset0_b32 s{sMASK}, s{sQ}
s_cmp_eq_u32 s{sQ}, s{sQUAD}
s_cselect_b32 s15, s{sQUAD}, 8
s_cselect_b32 s16, -1, 0
s_lshl_b32 s{sBL}, s{sTEAM}, 3
s_add_u32 s{sBL}, s{sBL}, s{sQ}
""")
    for k in range(3):
        e(f"""
s_add_u32 s{sT1}, s{sBL}, {16*k}
s_mul_i32 s{sT2}, s{sW4}, 35
s_add_u32 s{sT2}, s{sT2}, s{sT1}
s_lshl_b32 s{sT2}, s{sT2}, 10
s_cmp_lt_u32 s{sT1}, 35
s_cselect_b32 s{sT2}, s{sT2}, {8*PART_CU}
""")
        for q in range(8):
            r = 8 + 32 * k + 4 * q
            if SKO:
                e(f"s_cmp_eq_u32 s15, {q}")
                e(f"s_cselect_b32 s{sT3}, {8*PART_CU}, s{sT2}")
            e(f"buffer_load_dwordx4 {v(r,4)}, v3, s[{sA}:{sA+3}], s{sT3 if SKO else sT2} offen {OPT['rd']}")
            if q < 7: e(f"s_add_u32 s{sT2}, s{sT2}, {PART_CU}")
        e(f"""
s_mul_i32 s{sT2}, s{sT1}, 37
s_lshr_b32 s{sT2}, s{sT2}, 8
s_mul_i32 s{sT3}, s{sT2}, 7
s_sub_u32 s{sT3}, s{sT1}, s{sT3}
s_lshl_b32 s{sT2}, s{sT2}, 8
s_mul_i32 s{sT3}, s{sT3}, {16*2560}
s_add_u32 s{sT2}, s{sT2}, s{sT3}
s_mul_i32 s{sT3}, s{sW4}, {4*2560}
s_add_u32 s{sT2}, s{sT2}, s{sT3}
s_cmp_lt_u32 s{sT1}, 35
s_cselect_b32 s{12+k}, s{sT2}, 0x1000000
""")
    if SKO:
        e(f"""
s_lshl_b32 s{sT1}, s{sTEAM}, 12
s_lshl_b32 s{sT2}, s{sW4}, 10
s_add_u32 s{sT1}, s{sT1}, s{sT2}
s_add_u32 s{sT1}, s{sT1}, {KVB+32768}
v_add_u32 v140, s{sT1}, v3
""")
        for k in range(3): e(f"ds_read_b128 {v(144+4*k,4)}, v140 offset:{k*8192}")
        e("s_waitcnt lgkmcnt(0)")
        for i in range(12): e(f"v_and_b32 v{144+i}, s16, v{144+i}")
    for k in range(3):
        if SKO:
            for i in range(4):
                e(f"v_lshlrev_b32 v{104+2*i}, 16, v{144+4*k+i}")
                e(f"v_and_b32 v{105+2*i}, 0xffff0000, v{144+4*k+i}")
        for q in range(8):
            e(f"s_waitcnt vmcnt({23-8*k-q})")
            if OPT["fs"] and (k, q) in ((0, 0), (0, 7), (2, 7)): stamp(e, {(0, 0): 12, (0, 7): 13, (2, 7): 14}[(k, q)], real=True)
            for i in range(4):
                r = 8 + 32 * k + 4 * q + i
                if q == 0 and not SKO:
                    e(f"v_lshlrev_b32 v{104+2*i}, 16, v{r}")
                    e(f"v_and_b32 v{105+2*i}, 0xffff0000, v{r}")
                else:
                    e(f"v_lshlrev_b32 v112, 16, v{r}")
                    e(f"v_and_b32 v113, 0xffff0000, v{r}")
                    e(f"v_add_f32 v{104+2*i}, v{104+2*i}, v112")
                    e(f"v_add_f32 v{105+2*i}, v{105+2*i}, v113")
        for i in range(4): e(f"v_cvt_pk_bf16_f32 v{116+4*k+i}, v{104+2*i}, v{105+2*i}")
        e(f"ds_write_b64 v6, {v(116+4*k,2)} offset:{k*4352}")
        e(f"ds_write_b64 v6, {v(118+4*k,2)} offset:{k*4352+32}")
    e("s_waitcnt lgkmcnt(0)")
    e("s_barrier")
    if OPT["fs"]: stamp(e, 15, real=True)
    for k in range(3): e(f"ds_read_b128 {v(128+4*k,4)}, v7 offset:{k*4352}")
    for k in range(3):
        e(f"s_waitcnt lgkmcnt({2-k})")
        e(f"buffer_store_dwordx4 {v(128+4*k,4)}, v4, s[{sOUT}:{sOUT+3}], s{12+k} offen {OPT['of']}")
    e("""
s_barrier
s_branch k1_slice
k1_done:
""")
    if OPT["prof"]: e("s_waitcnt vmcnt(0)")
    stamp(e, 10); stamp(e, 11, real=True)
    dump_stamps(e, 28, 64 << 20, 8)

def build(needs):
    p = Prog()
    p(f"""
.globl {NAME}_kernel
.p2align 8
.type {NAME}_kernel,@function
{NAME}_kernel:
s_cmp_ge_u32 s2, 256
s_cbranch_scc1 k1_end
s_load_dwordx16 s[4:19], s[0:1], 0
s_load_dwordx8 s[20:27], s[0:1], 64
s_load_dwordx2 s[28:29], s[0:1], 96
v_lshrrev_b32 v1, 6, v0
v_and_b32 v2, 63, v0
v_readfirstlane_b32 s{sWAVE}, v1
s_and_b32 s{sT1}, s2, 7
s_lshr_b32 s{sT2}, s2, 3
""")
    if OPT["map"] == 0:
        p(f"""
s_and_b32 s{sQUAD}, s{sT1}, 3
s_lshl_b32 s{sQUAD}, s{sQUAD}, 1
s_and_b32 s{sB}, s{sT2}, 1
s_add_u32 s{sQUAD}, s{sQUAD}, s{sB}
s_lshr_b32 s{sB}, s{sT2}, 1
""")
    else:
        p(f"""
s_and_b32 s{sQUAD}, s{sT1}, 1
s_lshl_b32 s{sQUAD}, s{sQUAD}, 2
s_and_b32 s{sB}, s{sT2}, 3
s_add_u32 s{sQUAD}, s{sQUAD}, s{sB}
s_and_b32 s{sB}, s{sT1}, 2
s_lshl_b32 s{sB}, s{sB}, 2
s_lshr_b32 s{sT2}, s{sT2}, 2
s_add_u32 s{sB}, s{sB}, s{sT2}
""")
    p(f"""
s_and_b32 s{sW4}, s{sWAVE}, 3
s_lshr_b32 s{sTEAM}, s{sWAVE}, 2
s_mul_i32 s{sLW}, s{sW4}, 3072
s_mov_b32 s{sKd+2}, {0 if OPT['nokv'] else 786432}
s_mov_b32 s{sKd+3}, 0x20000
s_mov_b32 s{sVd+2}, {0 if OPT['nokv'] else 786432}
s_mov_b32 s{sVd+3}, 0x20000
s_mov_b32 s{sWd+3}, 0x20000
s_mov_b32 s{sOd+2}, {0 if OPT['now'] else 983040}
s_mov_b32 s{sOd+3}, 0x20000
s_mov_b32 s{sXd+2}, {0 if OPT['nox'] else 143360}
s_mov_b32 s{sXd+3}, 0x20000
s_mov_b32 s{sPd+2}, {35840+QO}
s_mov_b32 s{sPd+3}, 0x20000
s_waitcnt lgkmcnt(0)
s_cmp_lt_u32 s{sT1}, 4
s_cselect_b64 s[4:5], s[4:5], s[14:15]
s_cselect_b64 s[6:7], s[6:7], s[16:17]
s_cselect_b64 s[8:9], s[8:9], s[18:19]
s_cselect_b64 s[10:11], s[10:11], s[20:21]
s_cselect_b64 s[12:13], s[12:13], s[22:23]
s_cselect_b32 s{sT3}, 0, 16
s_mul_i32 s{sT2}, s{sB}, 143360
s_add_u32 s{sXd}, s4, s{sT2}
s_addc_u32 s{sXd+1}, s5, 0
s_mul_i32 s{sT2}, s{sQUAD}, 1536
s_add_u32 s{sWd}, s10, s{sT2}
s_addc_u32 s{sWd+1}, s11, 0
s_sub_u32 s{sWd+2}, 7864320, s{sT2}
{'s_mov_b32 s%d, 0' % (sWd+2) if OPT['now'] else ''}
s_lshl_b32 s{sT1}, s{sB}, 3
s_add_u32 s{sT1}, s{sT1}, s{sQUAD}
s_mul_i32 s{sT2}, s{sT1}, 786432
s_add_u32 s{sKd}, s6, s{sT2}
s_addc_u32 s{sKd+1}, s7, 0
s_add_u32 s{sVd}, s8, s{sT2}
s_addc_u32 s{sVd+1}, s9, 0
s_mul_i32 s{sT2}, s{sQUAD}, 983040
s_add_u32 s{sOd}, s12, s{sT2}
s_addc_u32 s{sOd+1}, s13, 0
s_lshl_b32 s{sT3}, s{sT3}, 3
s_add_u32 s{sT1}, s{sT1}, s{sT3}
s_mul_i32 s{sT1}, s{sT1}, {PART_CU}
s_mul_i32 s{sT2}, s{sW4}, 35840
s_add_u32 s{sT1}, s{sT1}, s{sT2}
s_add_u32 s{sT1}, s{sT1}, {PART0-QO}
s_add_u32 s{sPd}, s28, s{sT1}
s_addc_u32 s{sPd+1}, s29, 0
""")
    stamp(p, 0); stamp(p, 1, real=True)
    p(f"""
s_cmp_lg_u32 s{sWAVE}, 0
s_cbranch_scc1 k1_noclr
s_and_b32 s{sT1}, s2, 7
s_cmp_lt_u32 s{sT1}, 4
s_cselect_b32 s{sT1}, 0, 16
s_add_u32 s{sGRP}, s{sT1}, s{sB}
s_lshl_b32 s{sT1}, s{sGRP}, 3
s_add_u32 s{sT1}, s{sT1}, s{sQUAD}
s_lshl_b32 s{sT1}, s{sT1}, 7
s_add_u32 s{sT1}, s{sT1}, {FLAG0}
s_add_u32 s4, s28, s{sT1}
s_addc_u32 s5, s29, 0
s_mov_b32 s6, 128
s_mov_b32 s7, 0x20000
v_mov_b32 v2, 0
v_mov_b32 v3, 0
s_mov_b64 exec, 1
buffer_store_dwordx2 v[2:3], v2, s[4:7], 0 offen sc1
s_mov_b64 exec, -1
k1_noclr:
""")
    if OPT["cpf"]:
        p(f"""
s_cmp_lg_u32 s{sWAVE}, 7
s_cbranch_scc1 k1_nocpf
s_getpc_b64 s[4:5]
s_mov_b32 s6, k1_end-k1_nocpf
s_mov_b32 s7, 0x20000
s_lshr_b32 s{sT1}, s2, 3
s_and_b32 s{sT1}, s{sT1}, 31
s_lshl_b32 s{sT1}, s{sT1}, 7
v_and_b32 v1, 31, v0
v_lshlrev_b32 v1, 12, v1
buffer_load_dword v247, v1, s[4:7], s{sT1} offen
k1_nocpf:
""")
    if OPT["tlb"]:
        p(f"""
v_and_b32 v1, 3, v0
v_lshlrev_b32 v1, 18, v1
v_min_u32 v1, {786432-128}, v1
s_cmp_lg_u32 s{sWAVE}, 1
s_cbranch_scc1 k1_t1a
buffer_load_dword v254, v1, s[{sKd}:{sKd+3}], 0 offen nt
k1_t1a:
s_cmp_lg_u32 s{sWAVE}, 2
s_cbranch_scc1 k1_t1b
buffer_load_dword v254, v1, s[{sVd}:{sVd+3}], 0 offen nt
k1_t1b:
s_cmp_lg_u32 s{sWAVE}, 3
s_cbranch_scc1 k1_t1c
buffer_load_dword v254, v1, s[{sOd}:{sOd+3}], 0 offen nt
k1_t1c:
s_cmp_lg_u32 s{sWAVE}, 4
s_cbranch_scc1 k1_t1d
s_and_b32 s{sT1}, s2, 7
s_cmp_lt_u32 s{sT1}, 4
s_cselect_b32 s{sT1}, 0, 16
s_add_u32 s{sT1}, s{sT1}, s{sB}
s_mul_i32 s{sT1}, s{sT1}, {8*PART_CU}
s_add_u32 s{sT1}, s{sT1}, {PART0}
s_add_u32 s4, s28, s{sT1}
s_addc_u32 s5, s29, 0
s_mov_b32 s6, {8*PART_CU}
s_mov_b32 s7, 0x20000
v_and_b32 v1, 7, v0
v_mul_u32_u24 v1, {PART_CU}, v1
buffer_load_dword v254, v1, s[4:7], 0 offen nt sc1
k1_t1d:
s_cmp_lg_u32 s{sWAVE}, 5
s_cbranch_scc1 k1_t1e
s_mul_i32 s{sT1}, s{sB}, {112*2560}
s_add_u32 s4, s24, s{sT1}
s_addc_u32 s5, s25, 0
s_mov_b32 s6, {112*2560}
s_mov_b32 s7, 0x20000
v_and_b32 v1, 1, v0
v_mul_u32_u24 v1, {112*2560-128}, v1
buffer_load_dword v254, v1, s[4:7], 0 offen nt sc1
k1_t1e:
""")
    rec = {}
    p(f"""
s_cmp_ge_u32 s{sWAVE}, 4
s_cbranch_scc1 k1_q1
""")
    rec["qp0"] = qp_phase(p, needs.get("qp0", {}), 0)
    if OPT["prio0"]: p(f"s_setprio {OPT['prio0']}")
    p(f"""
s_cmp_eq_u32 s{sWAVE}, 3
s_cbranch_scc1 k1_light
""")
    rec["h"] = t0_path(p, needs.get("h", {}), 2, "h")
    p.label("k1_light")
    rec["l"] = t0_path(p, needs.get("l", {}), 1, "l")
    rec["f"] = t0_final(p, needs.get("f", {}))
    p.label("k1_q1")
    rec["qp1"] = qp_phase(p, needs.get("qp1", {}), 1)
    p.label("k1_t1")
    if OPT["not1"]: p("s_endpgm")
    if OPT["prio1"]: p(f"s_setprio {OPT['prio1']}")
    rec["t1"] = t1_path(p, needs.get("t1", {}))
    (final_reduce_old if OPT['oldfin'] else final_reduce)(p)
    p("""
k1_end:
s_endpgm
""")
    return p, rec

def reduce_kernel():
    p = Prog()
    p(f"""
.globl reduce_kernel
.p2align 8
.type reduce_kernel,@function
reduce_kernel:
s_cmp_ge_u32 s2, 1120
s_cbranch_scc1 k2_end
s_load_dwordx2 s[8:9], s[0:1], 80
s_load_dwordx2 s[10:11], s[0:1], 96
v_lshrrev_b32 v1, 6, v0
v_and_b32 v2, 63, v0
v_readfirstlane_b32 s3, v1
s_mul_i32 s5, s2, 1873
s_lshr_b32 s5, s5, 16
s_mul_i32 s6, s5, 35
s_sub_u32 s22, s2, s6
s_mul_i32 s6, s3, 35
s_add_u32 s6, s6, s22
s_mul_i32 s7, s5, {8*PART_CU}
s_add_u32 s7, s7, {PART0}
s_lshl_b32 s20, s6, 10
v_lshlrev_b32 v3, 4, v2
s_mov_b32 s14, {8*PART_CU}
s_mov_b32 s15, 0x20000
s_waitcnt lgkmcnt(0)
s_add_u32 s12, s10, s7
s_addc_u32 s13, s11, 0
""")
    for q in range(8):
        p(f"buffer_load_dwordx4 v[{8+4*q}:{11+4*q}], v3, s[12:15], s20 offen {OPT['rd']}")
        if q < 7: p(f"s_add_u32 s20, s20, {PART_CU}")
    p(f"""
s_and_b32 s23, s5, 15
s_mul_i32 s23, s23, {112*2560}
s_lshr_b32 s24, s5, 4
s_mul_i32 s24, s24, 1280
s_add_u32 s23, s23, s24
s_mov_b32 s16, s8
s_mov_b32 s17, s9
s_mov_b32 s18, {16*112*2560}
s_mov_b32 s19, 0x20000
s_mul_i32 s26, s22, 37
s_lshr_b32 s26, s26, 8
s_mul_i32 s27, s26, 7
s_sub_u32 s27, s22, s27
s_lshl_b32 s30, s26, 8
s_mul_i32 s28, s27, {16*2560}
s_add_u32 s30, s30, s28
s_mul_i32 s28, s3, {4*2560}
s_add_u32 s30, s30, s28
s_add_u32 s32, s30, s23
v_and_b32 v4, 15, v2
v_lshrrev_b32 v5, 4, v2
v_mul_u32_u24 v6, 272, v4
v_lshl_add_u32 v6, v5, 3, v6
s_lshl_b32 s28, s3, 6
v_add_u32 v6, s28, v6
s_mul_i32 s28, s3, {4*272}
v_mul_u32_u24 v7, 272, v5
v_lshl_add_u32 v7, v4, 4, v7
v_add_u32 v7, s28, v7
v_mul_u32_u24 v5, 2560, v5
v_lshl_add_u32 v4, v4, 4, v5
""")
    for q in range(8):
        p(f"s_waitcnt vmcnt({7-q})")
        for i in range(4):
            r = 8 + 4 * q + i
            if q == 0:
                p(f"v_lshlrev_b32 v{40+2*i}, 16, v{r}")
                p(f"v_and_b32 v{41+2*i}, 0xffff0000, v{r}")
            else:
                p(f"v_lshlrev_b32 v48, 16, v{r}")
                p(f"v_and_b32 v49, 0xffff0000, v{r}")
                p(f"v_add_f32 v{40+2*i}, v{40+2*i}, v48")
                p(f"v_add_f32 v{41+2*i}, v{41+2*i}, v49")
    for i in range(4): p(f"v_cvt_pk_bf16_f32 v{52+i}, v{40+2*i}, v{41+2*i}")
    p(f"""
ds_write_b64 v6, v[52:53]
ds_write_b64 v6, v[54:55] offset:32
s_waitcnt lgkmcnt(0)
s_barrier
ds_read_b128 v[52:55], v7
s_waitcnt lgkmcnt(0)
buffer_store_dwordx4 v[52:55], v4, s[16:19], s32 offen {OPT['of']}
k2_end:
s_endpgm
""")
    return p

def desc(name, vg):
    return f""".amdhsa_kernel {name}
  .amdhsa_next_free_vgpr {vg}
  .amdhsa_next_free_sgpr 102
  .amdhsa_accum_offset {vg}
  .amdhsa_group_segment_fixed_size 0
  .amdhsa_kernarg_size 104
  .amdhsa_user_sgpr_count 2
  .amdhsa_user_sgpr_kernarg_segment_ptr 1
  .amdhsa_system_sgpr_workgroup_id_x 1
.end_amdhsa_kernel
"""

def main():
    for t in range(1120): assert (t * 1873) >> 16 == t // 35
    for t in range(140): assert (t * 235) >> 13 == t // 35
    for t in range(35): assert (t * 37) >> 8 == t // 7
    _, rec = build({})
    for it in range(4):
        a, rec2 = build(rec)
        if rec2 == rec: break
        rec = rec2
    else: raise SystemExit("no fixpoint")
    b = reduce_kernel()
    if OPT["novm"]: a.L[:] = [l for l in a.L if not l.startswith("buffer_load")]
    if OPT["nobar"]: a.L[:] = [l for l in a.L if not l.startswith("s_barrier")]
    if OPT["nolg"]:
        out_ = []
        for i_, l in enumerate(a.L):
            if l.startswith("s_waitcnt lgkmcnt") and not a.L[i_-1].startswith(("s_mem", "s_load")) and i_ > 60: continue
            out_.append(l)
        a.L[:] = out_
    if OPT["nord"]: a.L[:] = [l for l in a.L if not l.startswith("ds_read")]
    if OPT["noexp"]: a.L[:] = [l.replace("v_exp_f32", "v_mov_b32") if l.startswith("v_exp_f32") and "-v" not in l else l for l in a.L]
    if OPT["nosm"]: a.L[:] = [l for l in a.L if not l.startswith(("v_exp_f32", "v_cvt_pk"))]
    if OPT["nochk"]: a.L[:] = [l for l in a.L if not l.startswith(("v_or3", "v_or_b32", "v_cmp_ne", "s_cbranch_vccz", "v_and_b32 v252"))]
    if OPT["prof"] == 2:
        out_ = []; L_ = a.L; inrole = False; i_ = 0
        while i_ < len(L_):
            l = L_[i_]
            if l.startswith(("t0_unit", "t1_slot")): inrole = True
            if l.startswith(("t0_exit", "t1_exit")): inrole = False
            if inrole and l == "s_barrier":
                j = len(out_)
                while j > 0 and (out_[j-1].startswith(("s_waitcnt vmcnt", "s_cmp_eq_u32 s55, 5", "s_cbranch_scc1 t1_wa")) or out_[j-1].startswith("t1_wa")): j -= 1
                blk = out_[j:]; del out_[j:]
                out_ += ["s_memtime s[4:5]"] + blk + ["s_memtime s[6:7]", "s_barrier", "s_memtime s[8:9]", "s_waitcnt lgkmcnt(0)",
                         "s_sub_u32 s4, s6, s4", "s_add_u32 s94, s94, s4", "s_sub_u32 s6, s8, s6", "s_add_u32 s95, s95, s6"]
            elif inrole and l.startswith("buffer_load") and l.endswith("lds"):
                out_ += ["s_memtime s[4:5]", l, "s_memtime s[6:7]", "s_waitcnt lgkmcnt(0)", "s_sub_u32 s4, s6, s4", "s_add_u32 s89, s89, s4"] if OPT["pv"] else [l]
            elif l.startswith(("k1_light:", "k1_t1:")) or l.startswith("s_cbranch_scc1 k1_light"):
                out_ += [l, "s_mov_b32 s94, 0", "s_mov_b32 s95, 0", "s_mov_b32 s89, 0"]
            else: out_.append(l)
            i_ += 1
        a.L[:] = out_
    if OPT["prof"] == 4:
        out_ = []; inrole = False; idx = 0
        L_ = [l for l in a.L if not (l.startswith(("s_cselect_b32 s8", "s_cselect_b32 s9")) or (l.startswith(("s_mov_b32 s8", "s_mov_b32 s9")) and "s100" in l))]
        def st_(k):
            return ["s_memtime s[100:101]", "s_waitcnt lgkmcnt(0)", f"s_cmp_eq_u32 s{sSLOT}, {OPT['ps']}", f"s_cselect_b32 s{80+k}, s100, s{80+k}"] if 0 <= k < 16 else []
        for i_, l in enumerate(L_):
            if l.startswith(("t0_unit", "t1_slot")): inrole = True; idx = 0
            if l.startswith(("t0_exit", "t1_last")): inrole = False
            k = (idx - OPT["pb"]) * 4
            if inrole and l == "s_barrier":
                x = out_.pop() if out_[-1].startswith("s_waitcnt vmcnt") else None
                out_ += st_(k - 2) + ([x] if x else []) + st_(k - 1) + [l] + st_(k); idx += 1
            elif inrole and l.startswith("buffer_load") and l.endswith("lds"):
                nxt = next(y for y in L_[i_+1:] if y == "s_barrier" or (y.startswith("buffer_load") and y.endswith("lds")))
                out_ += [l] + (st_(k - 3) if nxt == "s_barrier" else [])
            else: out_.append(l)
        a.L[:] = out_
    if OPT["prof"] == 3:
        out_ = []; inrole = False; idx = 0
        for l in a.L:
            if l.startswith(("t0_unit", "t1_slot")): inrole = True; idx = 0
            if l.startswith(("t0_exit", "t1_exit")) or l.startswith("s_cbranch_scc1 t1_slot"): inrole = False
            if l.startswith(("s_mov_b32 s8", "s_mov_b32 s9")) and "s100" in l: continue
            if l.startswith("s_cselect_b32 s8") or l.startswith("s_cselect_b32 s9") or l.startswith("s_mov_b32 s9") and "s100" in l: continue
            if inrole and l == "s_barrier":
                k = idx - OPT["pb"]; idx += 1
                st_ = ["s_memtime s[100:101]", "s_waitcnt lgkmcnt(0)", f"s_cmp_eq_u32 s{sSLOT}, {OPT['ps']}", f"s_cselect_b32 s{80+k}, s100, s{80+k}"] if 0 <= k < 16 else []
                out_ += (st_ + [l]) if OPT["pa"] else ([l] + st_)
            else: out_.append(l)
        a.L[:] = out_
    if OPT["nomfq"] or OPT["nomf1"] or OPT["nomf0"]:
        out_ = []; sec = "q"
        for l in a.L:
            if l.startswith("t0_unit"): sec = "0"
            if l.startswith("k1_t1:"): sec = "1"
            if l.startswith("v_mfma") and OPT["nomf" + sec]: continue
            out_.append(l)
        a.L[:] = out_
    if OPT["xa"]:
        out_ = []; sec = "q"; cnt = 0
        for l in a.L:
            if l.startswith("t0_unit_h"): sec = "h"
            if l.startswith("t0_unit_l"): sec = "l"
            if l.startswith("t0_final"): sec = "f"
            if l.startswith("k1_t1:"): sec = "1"
            if OPT["xa"] == 1 and sec in "hl" and l.startswith("v_mfma") and "v[208:211]" in l: continue
            if OPT["xa"] == 2 and sec == "l" and l.startswith(("v_mfma", "ds_read")): continue
            if OPT["xa"] == 3 and sec == "1" and l.startswith("ds_read_b128"): continue
            if OPT["xa"] == 4 and sec in "hl" and l.startswith("ds_read"):
                continue
            out_.append(l)
        a.L[:] = out_
    if OPT["vwin"]:
        out_ = []; on = False
        for l in a.L:
            if l.startswith("k1_t1:") and OPT["vw1"]: on = True
            if l.startswith("t1_slot:"): on = True
            if l.startswith("t1_last:"): on = False
            if on and l.startswith("buffer_load") and l.endswith("lds"): out_.append(f"s_waitcnt vmcnt({OPT['vwin']-1})")
            out_.append(l)
        a.L[:] = out_
    if OPT["dynp"]:
        out_ = []; int1 = False
        for l in a.L:
            if l.startswith("k1_t1:"): int1 = True
            if int1 and l.startswith("buffer_load") and l.endswith("lds"):
                out_ += [f"s_setprio {OPT['dynp']}", l, f"s_setprio {OPT['prio1']}"]
            else: out_.append(l)
        a.L[:] = out_
    n1 = fix_hazards(a.L); n2 = fix_hazards(b.L)
    print("nops inserted", n1, n2, "instrs", len(a.L), len(b.L), file=sys.stderr)
    hdr = open("cdna_kernels/" + NAME + ".s.ref").read().split("; Override launch")[0]
    out = hdr
    if OPT["two"]:
        out += f"; @launch kernel={NAME}_kernel grid=(256,1,1) block=(512,1,1) lds={LDS_BYTES}\n"
        out += "; @launch kernel=reduce_kernel grid=(1120,1,1) block=(256,1,1) lds=4352\n"
    else:
        out += f"; @launch grid=(256,1,1) block=(512,1,1) lds={LDS_BYTES}\n"
    out += '.amdgcn_target "amdgcn-amd-amdhsa--gfx950"\n.text\n'
    out += a.text() + (b.text() if OPT["two"] else "")
    out += '.section .rodata,"a"\n.p2align 6\n' + desc(NAME + "_kernel", 256)
    if OPT["two"]: out += ".p2align 6\n" + desc("reduce_kernel", 56)
    open(sys.argv[1], "w").write(out)
    import subprocess
    r = subprocess.run(["clang", "-x", "assembler", "-target", "amdgcn-amd-amdhsa", "-mcpu=gfx950", "-c", sys.argv[1], "-o", "chk.o"], capture_output=True, text=True)
    if r.returncode: print("ASSEMBLY FAILED", r.stderr[:600])
main()
```

```python
import sys, math, struct, copy
sys.path.insert(0, "work")
from asmlib import *

NAME = "concat_heads__mha_block_cached__gqa_block_cached__near_ridge"
OPT = dict(kv="nt", w="", x="", wo="", st="sc1", rd="sc1", prof=0, prio0=0, prio1=0, touch=1, nox=0, now=0, nokv=0, nomf=0,
           novm=0, lead=4, bp="6.16.26.36.42", map=0, hack="", t1b=0, ps=5, kdel=0, x0=4, xt=0, dynp=0, nopark=0, gap=0, span=4, pa=0, pb=0, m=2, nlat=0, nonar=0, bar=3, qd=5, rt=0, tf="", tq="", pwo=0, tlb=0, stl=0, dd=0, kw=5, qp1=0, pre=0, kpf=0, wt=6, wtn=14, pkb=1, kw1=0, kwa=4, kwu=60, oldfin=1, kv0=0, k0=3, nq=4, kw1m=5, kf1=1, b1=0, wp=0, tch=10, sko=1, t0i=1, t0w=0, st1=0, p5=1, of="", kw1s=0, kps=18, kpl="nt", lastb=16, stn=1, spin=8000, vcap=0, vpost=0, now0=9, xa=0, burst=0, kpar=0, pwh=1, near=0, vwin=0, cpf=1, fs=0, r5=6, early=3, qv=0, two=0, vw1=1, wo5="", nomfq=0, nomf1=0, nomf0=0, pwf="", kvfirst=1, w2=1, psplit=1, nb1=8, nb2=29, kl=16, tl=4, kvat=18, qst="sc1", noq=0, noqst=0, pv=0, nobar=0, nolg=0, nord=0, norare=0, not1=0, noexp=0, nochk=0, nosm=0)
for a in sys.argv[2:]:
    k, val = a.split("=")
    OPT[k] = int(val) if val.lstrip("-").isdigit() else (val if k in ("bp", "hack") else val.replace("+", " ").replace("-", ""))
TILE = 12288
QO = 0
T1R = 43008
B2 = T1R + 32768
KVB = B2 + 18432
NS = 16
SPARE = KVB + NS * 4096
LDS_BYTES = SPARE + 2048
QPARK = 48 << 20
FLAG0 = 0
PART0 = 1 << 20
PART_CU = 4 * 35 * 1024
LEAD = OPT["lead"]
NX = 30
XB_ = [OPT["x0"] + 4 * ((k * 96) // NX) for k in range(NX)]
def f2u(f): return struct.unpack("<I", struct.pack("<f", f))[0]

sKd, sVd, sWd, sOd, sXd, sPd, sQd = 32, 36, 40, 44, 48, 76, 24
sWAVE, sB, sQUAD, sSLOT, sCTR, sW4 = 52, 53, 54, 55, 57, 56
sT1, sT2, sT3 = 62, 63, 61
sKSO, sVSO, sLW = 58, 59, 60
sWB, sOB, sXB, sXM, sSTR, sXF = 58, 59, 70, 71, 72, 73
sC, sBIT = 66, 68
sRET = 30
sGRP = 3
sWT = 8
sTEAM, sWB2, sKSO2, sL1, sSLO, sSHI = 74, 75, 65, 64, 69, 72
PKV_ = 255
sRX, sRY, sRZ, sSP = 14, 17, 20, 23

def stamp(e, k, real=False):
    if not OPT["prof"]: return
    e(f"s_mem{'real' if real else ''}time s[100:101]")
    e("s_waitcnt lgkmcnt(0)")
    e(f"s_mov_b32 s{80+k}, s100")
def stamp_slot(e):
    if not OPT["prof"]: return
    e("s_memrealtime s[100:101]" if OPT["rt"] else "s_memtime s[100:101]")
    e("s_waitcnt lgkmcnt(0)")
    for k in range(0, 7):
        e(f"s_cmp_eq_u32 s{sSLOT}, {k}")
        e(f"s_cselect_b32 s{82+k}, s100, s{82+k}")
def stamp_if(e, k, slot):
    if not OPT["prof"]: return
    e("s_memtime s[100:101]")
    e("s_waitcnt lgkmcnt(0)")
    e(f"s_cmp_eq_u32 s{sSLOT}, {slot}")
    e(f"s_cselect_b32 s{80+k}, s100, s{80+k}")
def dump_stamps(e, wsreg, base, nw):
    if not OPT["prof"]: return
    if OPT["dd"]:
        e(f"""
s_cmp_lg_u32 s2, {OPT['dd']}
s_cbranch_scc1 k1_end
s_cmp_lg_u32 s{sWAVE}, 4
s_cbranch_scc1 k1_end
s_mov_b32 s96, s26
s_mov_b32 s97, s27
s_mov_b32 s98, 64
s_mov_b32 s99, 0x20000
v_mov_b32 v1, 0
""")
        for k in range(16):
            e(f"s_sub_u32 s100, s{80+k}, s{80 if k == 10 else 81}")
            e("v_mov_b32 v0, s100")
            e(f"buffer_store_dword v0, v1, s[96:99], 0 offen offset:{k*4}")
        e("s_waitcnt vmcnt(0)")
        return
    e(f"""
s_mul_i32 s100, s2, {nw}
s_add_u32 s100, s100, s{sWAVE}
s_lshl_b32 s100, s100, 6
s_add_u32 s100, s100, {base}
s_add_u32 s96, s{wsreg}, s100
s_addc_u32 s97, s{wsreg+1}, 0
s_mov_b32 s98, 64
s_mov_b32 s99, 0x20000
v_mov_b32 v1, 0
""")
    for k in range(16):
        e(f"v_mov_b32 v0, s{80+k}")
        e(f"buffer_store_dword v0, v1, s[96:99], 0 offen offset:{k*4}")
    e("s_waitcnt vmcnt(0)")

class Gen:
    def __init__(self, prog, needs):
        self.p = prog; self.needs = needs; self.rec = {}
        self.mute = 0
        self.vq = []; self.lq = []; self.pend = []; self.issued = {}
        self.nosim = 0
    def e(self, s):
        if not self.mute: self.p(s)
    def label(self, n):
        if not self.mute: self.p.label(n)
    def wait(self, kind, key, tags, drain_tags=()):
        q = self.vq if kind == "vm" else self.lq
        for t in tags:
            assert self.issued.pop(t, 0) > 0, (t, key)
        tags = list(tags) + list(drain_tags)
        idx = [i for i, t in enumerate(q) if t in tags]
        n = len(q) - 1 - max(idx) if idx else 999
        if n != 999: n = min(n, 63 if kind == "vm" else 15)
        k = (kind, key)
        self.rec[k] = min(self.rec.get(k, 999), n)
        val = self.needs.get(k, n)
        if val == 999: return
        self.e(f"s_waitcnt {'vmcnt' if kind == 'vm' else 'lgkmcnt'}({val})")
        del q[:len(q) - val if val < len(q) else 0]
    def wait_alt(self, key, tags, alt, cmp_txt, lab):
        q = self.vq
        for t in tags: assert self.issued.pop(t, 0) > 0, (t, key)
        idx = [i for i, t in enumerate(q) if t in tags]
        n = min(len(q) - 1 - max(idx), 63) if idx else 999
        k = ("vm", key, alt)
        self.rec[k] = min(self.rec.get(k, 999), n)
        va, vb = self.needs.get(("vm", key, False), 0), self.needs.get(("vm", key, True), 0)
        if vb != 999 and vb > va: self.e(f"s_waitcnt vmcnt({vb})")
        if vb > va:
            self.e(cmp_txt); self.e(f"s_cbranch_scc1 {lab}")
        val = min(va, vb) if not (alt and vb > va) else vb
        if min(va, vb) != 999: self.e(f"s_waitcnt vmcnt({min(va, vb)})")
        if vb > va: self.label(lab)
        if val != 999: del q[:len(q) - val if val < len(q) else 0]
    def vm(self, tag, text):
        self.e(text); self.vq.append(tag); self.issued[tag] = self.issued.get(tag, 0) + 1
    def ld(self, tag, text):
        self.e(text); self.lq.append(tag); self.issued[tag] = self.issued.get(tag, 0) + 1
    def drain(self, n=1):
        for _ in range(n):
            if self.pend: self.pend.pop(0)()
    def optional(self, taken, fn):
        if taken: fn()
        elif not self.mute:
            st = (list(self.vq), list(self.lq), dict(self.issued))
            fn()
            self.vq[:], self.lq[:] = st[0], st[1]; self.issued = st[2]

def mfma(e, d, a, b, c):
    if not OPT["nomf"]:
        e(f"v_mfma_f32_16x16x32_bf16 {v(d,4)}, {v(a,4)}, {v(b,4)}, {c if c == '0' else v(c,4)}")


KL = OPT["kl"]
KVT = [k for k in range(NX) if not OPT['burst'] or k % 2 == OPT['kpar']]
N0 = max(u for u in range(300) if 4 * (u - KL) + 4 <= XB_[KVT[-1]]) + 1
def lane_regs(e, b=2):
    e(f"""
v_mbcnt_lo_u32_b32 v{b}, -1, 0
v_mbcnt_hi_u32_b32 v{b}, -1, v{b}
v_and_b32 v{b+1}, 15, v{b}
v_lshrrev_b32 v{b+2}, 4, v{b}
v_lshrrev_b32 v{b+3}, 2, v{b}
v_and_b32 v{b+4}, 3, v{b+3}
v_and_b32 v{b+5}, 3, v{b}
v_lshrrev_b32 v{b+6}, 3, v{b}
v_and_b32 v{b+7}, 7, v{b}
""")
def kv_kind(a):
    a %= 32
    return "K" if (a == 0 or (a % 2 == 1 and a < 31)) else "V"
def kv_tile(a):
    u, a = divmod(a, 32)
    return u * 16 + (0 if a == 0 else 15 if a == 31 else (a + 1) // 2 if a % 2 == 1 else (a - 2) // 2)
def QAC(hh, rt, k): return ((hh * 7 + rt) * 3 + k) * 4
QB = [240, 241, 242]; QT = [251, 252, 253]; NPRE = 12; X9 = KVB + 51200
QW = [248, 249, 250]


class OpEngine:
    def __init__(self, g, PK, AC0, AF0, BF0, RA, OB, PO, ring, sM0, ringoff):
        self.g, self.e = g, g.e
        self.PK, self.AC0, self.AF0, self.BF0, self.RA, self.OB, self.PO = PK, AC0, AF0, BF0, RA, OB, PO
        self.ring, self.sM0, self.ro = ring, sM0, ringoff
        self.dq = []; self.pq = []; self.clock = 0; self.fl = OPT['wo']; self.nr = 4; self.early = 0; self.pkb = 0; self.atbar = []
    def AC(self, k): return self.AC0 + 4 * k
    def AF(self, s, i): return self.AF0 + 8 * (s & 1) + 4 * i
    def BF(self, n): return self.BF0 + 4 * (n % 6)
    def slot(self, i): return ((i + self.ro) % self.nr) * 8192
    def addr_setup(self):
        e = self.e
        lane_regs(e, 232)
        L = 232
        e(f"""
v_lshlrev_b32 v{self.OB}, 4, v{L}
v_lshlrev_b32 v{L+8}, 1, v{L+2}
v_xor_b32 v{L+8}, v{L+1}, v{L+8}
v_lshlrev_b32 v{L+8}, 4, v{L+8}
v_mul_u32_u24 v{L+9}, 1280, v{L+2}
v_add_u32 v{self.PO[0]}, v{L+8}, v{L+9}
v_xor_b32 v{L+8}, 128, v{L+8}
v_add_u32 v{L+8}, v{L+8}, v{L+9}
v_add_u32 v{self.PO[1]}, 4096, v{L+8}
s_lshl_b32 s{sT1}, s{sW4}, 1
v_and_b32 v{L+8}, 7, v{L+3}
v_xor_b32 v{L+8}, s{sT1}, v{L+8}
v_lshlrev_b32 v{L+8}, 5, v{L+8}
v_lshl_add_u32 v{L+8}, v{L+3}, 8, v{L+8}
v_lshl_add_u32 v{L+8}, v{L+5}, 3, v{L+8}
v_add_u32 v{self.RA[0]}, {self.ring}, v{L+8}
v_xor_b32 v{self.RA[1]}, 32, v{self.RA[0]}
""")
    def dma(self, i):
        ps, j = divmod(i, 6)
        out = []
        for q in range(2):
            def f(q=q):
                if q == 0:
                    self.e(f"s_add_u32 m0, s{self.sM0}, {self.ring+self.slot(i)}")
                    self.e(f"s_add_u32 s{sT2}, s{sOB}, {j*32*1280+ps*256}")
                o = "offset:1024 " if q else ""
                self.g.vm(f"O{i}", f"buffer_load_dwordx4 v{self.PO[q]}, s[{sOd}:{sOd+3}], s{sT2} offen {o}{self.fl} lds")
            out.append(f)
        return out
    def defer(self, at, ins):
        for x in ins: self.dq.append((at, x))
    def run_dq(self, n):
        while n > 0 and self.dq and self.dq[0][0] <= self.clock:
            x = self.dq.pop(0)[1]
            if callable(x): x()
            else: self.e(x)
            n -= 1
    def flush_pq(self):
        while self.pq: self.pq.pop(0)[1]()
    def a_read(self, i, n):
        k, hf = divmod(n, 2)
        self.g.ld(f"o{i}a{k}", f"ds_read_b64_tr_b16 {v(self.AF(i,k)+2*hf,2)}, v{self.RA[k]} offset:{self.slot(i)+hf*4096}")
    def b_read(self, b):
        i, rt = divmod(b, 7)
        self.g.ld(f"o{i}b{rt}", f"ds_read_b128 {v(self.BF(b),4)}, v{self.OB} offset:{QO+(i%6*7+rt)*1024}")
    def first_reads(self, i):
        self.a_read(i, 0); self.a_read(i, 1); self.b_read(7 * i); self.a_read(i, 2); self.a_read(i, 3)
        for n in range(1, 6): self.b_read(7 * i + n)
    def unpack_l(self, dst, src):
        return [f"v_perm_b32 v{dst+x}, v{src+x//2}, v{src+x//2}, s{sSHI if x & 1 else sSLO}" for x in range(4)]
    def pack_l(self, dst, src):
        return [f"v_cvt_pk_bf16_f32 v{dst}, v{src}, v{src+1}", f"v_cvt_pk_bf16_f32 v{dst+1}, v{src+2}, v{src+3}"]
    def store_l(self, ps, rt):
        o = (ps * 7 + rt) * 1024
        if OPT["sko"] and not OPT["two"]:
            b = ps * 7 + rt
            def f():
                self.e(f"s_mov_b32 s{sT3}, {o - o % 4096}")
                self.e(f"s_cmp_lg_u32 s{sQUAD}, {b % 8}")
                self.e(f"s_cbranch_scc1 op_k{b}")
                self.e(f"s_mov_b32 s{sT3}, 0x100000")
                self.e(f"ds_write_b128 v249, {v(self.PK(ps*14+rt*2),4)} offset:{(b//8)*4096}")
                self.g.label(f"op_k{b}")
                self.g.vm("st", f"buffer_store_dwordx4 {v(self.PK(ps*14+rt*2),4)}, v{self.OB}, s[{sPd}:{sPd+3}], s{sT3} offen offset:{o%4096} {OPT['st']}")
            return [f]
        return [f"s_mov_b32 s{sT3}, {o - o % 4096}",
                lambda: self.g.vm("st", f"buffer_store_dwordx4 {v(self.PK(ps*14+rt*2),4)}, v{self.OB}, s[{sPd}:{sPd+3}], s{sT3} offen offset:{o%4096} {OPT['st']}")]
    def step(self, key, i, last, tick, store=False, hooks=None):
        g, e = self.g, self.e
        ps, j = divmod(i, 6)
        BAR = OPT["bar"]
        c0 = self.clock
        if store and not self.early and i >= last - 3 and i < last:
            todo = [(q, rt) for q in range(store[0], ps) for rt in range(7)]
            k = i - (last - 3)
            mine = todo[k * len(todo) // 3:(k + 1) * len(todo) // 3]
            for n, (q, rt) in enumerate(mine): self.defer(c0 + (6 if k == 0 else 0) + n * (8 if k == 0 else 14) // len(mine), self.store_l(q, rt))
        if j == 5 and (i < last or store):
            for n in range(14):
                ins = self.pack_l(self.PK(ps * 14 + n), self.AC(n))
                if i < last: ins += self.unpack_l(self.AC(n), self.PK((ps + 1) * 14 + n))
                if store and n % 2 == 1 and (i == last or self.early): ins += self.store_l(ps, n // 2)
                if self.pkb and i < last and n >= BAR: self.atbar += ins
                else: self.defer(c0 + n + 4, ins)
        for n in range(14):
            rt, k = divmod(n, 2)
            if n == BAR and i < last: tick(i)
            if n == BAR and j == 0:
                for x in self.atbar:
                    if callable(x): x()
                    else: e(x)
                self.atbar = []
            if hooks and n in hooks: hooks[n]()
            tags = ([f"o{i}b{rt}"] if k == 0 else []) + ([f"o{i}a{k}"] if rt == 0 else [])
            if tags: g.wait("lg", f"{key}{i}m{n}", tags)
            mfma(e, self.AC(n), self.AF(i, k), self.BF(7 * i + rt), self.AC(n))
            if k == 1 and 7 * i + rt + 6 < 7 * (last + 1): self.b_read(7 * i + rt + 6)
            if k == 0 and i < last and BAR < n <= BAR + 8: self.a_read(i + 1, (n - BAR - 1) // 2)
            while self.pq and self.pq[0][0] <= self.clock: self.pq.pop(0)[1]()
            self.clock += 1
            self.run_dq(7)
    def finish(self):
        self.flush_pq(); self.clock += 100; self.run_dq(1000)

AC_ = QAC
def QAF(par, hh, k): return 168 + par * 24 + (hh * 3 + k) * 4
def QBF(n): return 216 + 4 * (n % 4)
QRA = [[232, 233, 234], [235, 236, 237]]; QXA = [238, 239]; QPW = [243, 244, 245]; QPX = 246; QJUNK = 247; QWT = 254
def x_dma(g, pp, xb):
    e = g.e; out = []
    for q in range(4):
        def f(q=q):
            if q < 3: e(f"s_add_u32 m0, s{sXM}, {xb+q*4096}")
            else:
                e(f"s_add_u32 s{sT2}, s{sXM}, {xb+q*4096}")
                e(f"s_cmp_ge_u32 s{sW4}, 2")
                e(f"s_cselect_b32 m0, s{sXF}, s{sT2}")
            e(f"s_add_u32 s{sT2}, s{sXB}, {pp*128+q*40960}")
            g.vm(f"X{pp}", f"buffer_load_dwordx4 v{QPX}, s[{sXd}:{sXd+3}], s{sT2} offen {OPT['x']} lds")
        out.append(f)
    return out
def w_dma(g, i, head, lds, tag):
    e = g.e; out = []
    for ii in range(3):
        def f(ii=ii):
            if ii == 0:
                e(f"s_add_u32 m0, s{sLW}, {lds}")
                e(f"s_add_u32 s{sT1}, s{sWB}, {i*32*12288+head*384}")
            o = f"offset:{ii*1024} " if ii else ""
            g.vm(tag, f"buffer_load_dwordx4 v{QPW[ii]}, s[{sWd}:{sWd+3}], s{sT1} offen {o}{OPT['w']} lds")
        out.append(f)
    return out
def q_cvt(e, a):
    e(f"v_pk_mul_f32 {v(a,2)}, {v(a,2)}, s[{sC}:{sC+1}]")
    e(f"v_pk_mul_f32 {v(a+2,2)}, {v(a+2,2)}, s[{sC}:{sC+1}]")
    e(f"v_cvt_pk_bf16_f32 v{a}, v{a}, v{a+1}")
    e(f"v_cvt_pk_bf16_f32 v{a+1}, v{a+2}, v{a+3}")

def qp_phase(p, needs, team):
    g = Gen(p, needs); e = g.e
    nh = 1 + team
    STG = [KVB, T1R]
    def dma_w(i, part):
        if team: return []
        return sum((w_dma(g, i, h, STG[i & 1] + h * TILE, f"W{i}.{part}") for h in ((0, 1) if part == 0 else (2,))), [])
    def dma_x(pp): return [] if team else x_dma(g, pp, X9 if pp == 9 else QO + (pp % 3) * 14336)
    def vwait(key, tags):
        if not team: g.wait("vm", key, tags)
    def a_read(i, hh, n):
        k, hf = divmod(n, 2)
        g.ld(f"{i}a{hh}{k}", f"ds_read_b64_tr_b16 {v(QAF(i&1,hh,k)+2*hf,2)}, v{QRA[i&1][k]} offset:{(team+hh)*TILE+hf*1536}")
    def b_read(i, rt):
        g.ld(f"{i}b{rt}", f"ds_read_b128 {v(QBF(7*i+rt),4)}, v{QXA[i&1]} offset:{((i>>1)%3)*14336+rt*2048}")
    lane_regs(e)
    e(f"""
v_lshrrev_b32 v13, 1, v8
v_and_b32 v13, 3, v13
v_lshlrev_b32 v13, 1, v13
v_xor_b32 v13, v9, v13
v_lshlrev_b32 v13, 4, v13
v_mul_u32_u24 v14, 1280, v8
v_add_u32 v{QPX}, v13, v14
v_mul_u32_u24 v14, 384, v8
v_add_u32 v{PKV_}, v13, v14
s_mul_i32 s{sXB}, s{sW4}, 10240
s_lshl_b32 s{sXM}, s{sW4}, 10
s_sub_u32 s{sXF}, s{sXM}, 2048
s_add_u32 s{sXF}, s{sXF}, {SPARE}
""")
    e(f"""
s_and_b32 s{sT1}, s{sW4}, 1
s_lshl_b32 s{sT1}, s{sT1}, 2
v_xor_b32 v16, s{sT1}, v9
s_mul_i32 s{sWB}, s{sW4}, {8*12288}
""")
    for q in range(3):
        e(f"""
v_add_u32 v10, {8*q}, v8
v_mul_u32_u24 v11, 43, v10
v_lshrrev_b32 v11, 7, v11
v_mul_u32_u24 v12, 3, v11
v_sub_u32 v12, v10, v12
v_lshrrev_b32 v13, 1, v11
v_and_b32 v14, 1, v13
v_xor_b32 v14, v16, v14
v_lshlrev_b32 v14, 4, v14
v_lshl_add_u32 v14, v12, 7, v14
v_mul_u32_u24 v15, 12288, v11
v_add_u32 v14, v14, v15
v_subrev_u32 v{QPW[q]}, {q*1024}, v14
""")
    e(f"""
s_waitcnt lgkmcnt(0)
s_and_b32 s{sT1}, s2, 7
s_cmp_lt_u32 s{sT1}, 4
s_cselect_b64 s[4:5], s[4:5], s[14:15]
s_cselect_b64 s[10:11], s[10:11], s[20:21]
s_mul_i32 s{sT2}, s{sB}, 143360
s_add_u32 s{sXd}, s4, s{sT2}
s_addc_u32 s{sXd+1}, s5, 0
s_mul_i32 s{sT2}, s{sQUAD}, 1536
s_add_u32 s{sWd}, s10, s{sT2}
s_addc_u32 s{sWd+1}, s11, 0
s_sub_u32 s{sWd+2}, 7864320, s{sT2}
{'s_mov_b32 s%d, 0' % (sWd+2) if OPT['now'] else ''}
""")
    for f in dma_x(0): f()
    ST1 = OPT["st1"]
    if ST1 and team:
        for h in range(3):
            for f in w_dma(g, 0, h, STG[0] + h * TILE, "W0"): f()
    elif ST1: g.issued["W0.0"] = g.issued["W0.1"] = 1
    else:
        for f in dma_w(0, 0) + dma_w(0, 1): f()
    e(f"""
s_and_b32 s{sT1}, s2, 7
s_cmp_lt_u32 s{sT1}, 4
s_cselect_b64 s[6:7], s[6:7], s[16:17]
s_cselect_b64 s[8:9], s[8:9], s[18:19]
s_cselect_b64 s[12:13], s[12:13], s[22:23]
s_cselect_b32 s{sGRP}, 0, 16
s_add_u32 s{sGRP}, s{sGRP}, s{sB}
s_lshl_b32 s{sT1}, s{sB}, 3
s_add_u32 s{sT1}, s{sT1}, s{sQUAD}
s_mul_i32 s{sT2}, s{sT1}, 786432
s_add_u32 s{sKd}, s6, s{sT2}
s_addc_u32 s{sKd+1}, s7, 0
s_add_u32 s{sVd}, s8, s{sT2}
s_addc_u32 s{sVd+1}, s9, 0
s_mul_i32 s{sT2}, s{sQUAD}, 983040
s_add_u32 s{sOd}, s12, s{sT2}
s_addc_u32 s{sOd+1}, s13, 0
s_lshl_b32 s{sT1}, s{sGRP}, 3
s_add_u32 s{sT1}, s{sT1}, s{sQUAD}
s_mul_i32 s{sT3}, s{sT1}, {PART_CU}
s_mul_i32 s{sT2}, s{sW4}, 35840
s_add_u32 s{sT3}, s{sT3}, s{sT2}
s_add_u32 s{sT3}, s{sT3}, {PART0-QO}
s_add_u32 s{sPd}, s28, s{sT3}
s_addc_u32 s{sPd+1}, s29, 0
""")
    if team:
        e(f"""
s_cmp_lg_u32 s{sWAVE}, 4
s_cbranch_scc1 k1_noclr
s_lshl_b32 s{sT1}, s{sT1}, 7
s_add_u32 s{sT1}, s{sT1}, {FLAG0}
s_add_u32 s4, s28, s{sT1}
s_addc_u32 s5, s29, 0
s_mov_b32 s6, 128
s_mov_b32 s7, 0x20000
v_mov_b32 v204, 0
v_mov_b32 v205, 0
s_mov_b64 exec, 1
buffer_store_dwordx2 v[204:205], v204, s[4:7], 0 offen sc1
s_mov_b64 exec, -1
k1_noclr:
""")
    if OPT["cpf"] and team:
        e(f"""
s_cmp_lg_u32 s{sWAVE}, 7
s_cbranch_scc1 k1_nocpf
s_getpc_b64 s[4:5]
k1_pc:
s_sub_u32 s4, s4, k1_pc-k1_q0
s_subb_u32 s5, s5, 0
s_lshr_b32 s{sT1}, s2, 3
s_and_b32 s{sT1}, s{sT1}, 31
s_lshl_b32 s{sT1}, s{sT1}, 7
v_lshlrev_b32 v10, 12, v2
v_add_u32 v10, s{sT1}, v10
v_min_u32 v10, k1_end-k1_q0, v10
v_mov_b32 v11, s5
v_add_co_u32 v10, vcc, s4, v10
v_addc_co_u32 v11, vcc, 0, v11, vcc
global_load_dword v247, v[10:11], off
k1_nocpf:
""")
    WT = OPT["wt"]
    if not team:
        e(f"""
v_mul_u32_u24 v10, 43, v2
v_lshrrev_b32 v10, 9, v10
v_mul_u32_u24 v11, 12, v10
v_sub_u32 v11, v2, v11
v_min_u32 v10, 1, v10
v_mul_u32_u24 v10, 12288, v10
v_lshl_add_u32 v{QWT}, v11, 7, v10
s_mul_i32 s{sWT}, s{sB}, {2*12288}
s_add_u32 s{sT1}, s{sWAVE}, 2
s_mul_i32 s{sT1}, s{sT1}, {32*12288}
s_add_u32 s{sT1}, s{sT1}, s{sWT}
""")
        assert WT == 6
        g.vm("pf", f"buffer_load_dword v{QJUNK}, v{QWT}, s[{sWd}:{sWd+3}], s{sT1} offen {OPT['tq']}")
    e(f"""
v_lshrrev_b32 v8, 1, v3
v_and_b32 v8, 3, v8
v_lshlrev_b32 v8, 1, v8
v_xor_b32 v8, v4, v8
v_lshlrev_b32 v8, 4, v8
v_lshl_add_u32 v9, v3, 7, v8
v_add_u32 v{QXA[0]}, {QO}, v9
v_xor_b32 v{QXA[1]}, 64, v{QXA[0]}
v_lshl_add_u32 v8, v4, 3, v6
v_mul_u32_u24 v9, 384, v8
v_lshrrev_b32 v8, 1, v6
v_and_b32 v11, 1, v4
v_lshl_add_u32 v8, v11, 2, v8
v_xor_b32 v8, v7, v8
v_lshl_add_u32 v9, v8, 4, v9
v_lshlrev_b32 v12, 3, v11
v_lshl_add_u32 v12, v2, 4, v12
v_and_b32 v11, 1, v7
v_lshl_add_u32 v11, v11, 3, v9
s_mov_b32 s{sC}, {hex(f2u(192 ** -0.5 * math.log2(math.e)))}
s_mov_b32 s{sC+1}, s{sC}
""")
    for i in range(3):
        e(f"""
s_mul_i32 s{sT1}, s{sW4}, 3
s_add_u32 s{sT1}, s{sT1}, {i}
s_and_b32 s{sT3}, s{sT1}, 2
s_lshl_b32 s{sT3}, s{sT3}, 5
s_and_b32 s{sT2}, s{sT1}, 1
s_lshl_b32 s{sT2}, s{sT2}, 3
v_xor_b32 v{QW[i]}, s{sT2}, v12
s_or_b32 s{sT3}, s{sT3}, s{sT2}
v_xor_b32 v13, s{sT3}, v11
s_lshr_b32 s{sT2}, s{sT1}, 2
s_lshl_b32 s{sT2}, s{sT2}, 7
v_add_u32 v13, s{sT2}, v13
v_add_u32 v{QRA[1][i]}, {T1R}, v13
v_add_u32 v{QRA[0][i]}, {KVB}, v13
s_lshr_b32 s{sT1}, s{sT1}, 1
s_mul_i32 s{sT2}, s{sT1}, 7168
v_add_u32 v{QW[i]}, s{sT2}, v{QW[i]}
""")
        if team:
            e(f"""
s_cmp_lt_u32 s{sT1}, 3
s_cselect_b32 s{sT3}, {B2 - (QO + 6144 - 18432)}, 0
s_sub_u32 s{sT3}, s{sT3}, {18432 - 6144 - QO}
s_lshl_b32 s{sT2}, s{sT1}, 10
s_sub_u32 s{sT2}, s{sT3}, s{sT2}
v_add_u32 v{QB[i]}, s{sT2}, v{QW[i]}
s_mul_i32 s{sT2}, s{sT1}, 6144
v_subrev_u32 v{QT[i]}, s{sT2}, v{QW[i]}
""")
    if team:
        e(f"""
s_cmp_lg_u32 s{sWAVE}, 4
s_cbranch_scc1 k1_nocnt
s_mov_b32 s4, s26
s_mov_b32 s5, s27
s_mov_b32 s6, 256
s_mov_b32 s7, 0x20000
s_lshl_b32 s{sT1}, s{sGRP}, 2
v_mov_b32 v204, 0
v_mov_b32 v206, 1
s_mov_b64 exec, 1
s_waitcnt vmcnt(0)
buffer_atomic_add v206, v204, s[4:7], s{sT1} offen sc1
s_mov_b64 exec, -1
k1_nocnt:
""")
    vwait("in", ["W0.0", "W0.1", "X0"])
    if ST1 and team: e("s_waitcnt vmcnt(1)" if OPT["cpf"] else "s_waitcnt vmcnt(0)"); e(f"s_cmp_eq_u32 s{sWAVE}, 7"); e("s_cbranch_scc1 qp_in1"); e("s_waitcnt vmcnt(0)"); g.label("qp_in1"); g.vq[:] = []
    e("s_barrier")
    stamp(e, 14, real=bool(OPT["rt"]))
    a_read(0, 0, 0); a_read(0, 0, 1); b_read(0, 0); b_read(0, 1)
    for n in range(2, 6): a_read(0, 0, n)
    if team:
        for n in range(6): a_read(0, 1, n)
    for rt in range(2, 4): b_read(0, rt)
    for f in dma_w(1, 0) + dma_w(1, 1) + dma_x(1): f()
    if team:
        ORD = [(rt, 0, k) for rt in (0, 1) for k in range(3)] + [(rt, 1, k) for rt in (0, 1) for k in range(3)]
        ORD += [(rt, hh, k) for rt in range(2, 7) for hh in range(2) for k in range(3)]
        NB1, NB2 = 8, 29
        A0 = [NB1 + 2 + 3 * x for x in range(6)]; A1 = [NB2 + 1 + 2 * x for x in range(6)]
    else:
        ORD = [(rt, 0, k) for rt in range(7) for k in range(3)]
        NB1, NB2 = 4, 14
        A0 = [6, 7, 9, 10, 12, 13]; A1 = []
    lastb = {rt: max(n for n, x in enumerate(ORD) if x[0] == rt) for rt in range(7)}
    def fin(n):
        rt, hh, k = ORD[n]
        q_cvt(e, AC_(hh, rt, k))
        if not team: e(f"ds_write_b64 v{QW[k]}, {v(AC_(hh,rt,k),2)} offset:{QO+rt*1024}")
    for i in range(20):
        if i in (17, 18): e(f"v_add_u32 v{QXA[i-17]}, {X9}, v{QXA[i-17]}")
        seen = set()
        for n, (rt, hh, k) in enumerate(ORD):
            if n == NB1 and i < 19:
                if team: g.wait("lg", f"r1{i}", [], drain_tags=[f"{i}a1{x}" for x in range(3)])
                vwait(f"s{i}", [f"W{i+1}.0"] + ([f"X{(i+1)//2}"] if i % 2 == 1 else []))
                e("s_barrier")
                if i + 2 < 20:
                    for f in (dma_w(i + 2, 0) if i == 0 else []) + dma_w(i + 2, 1): f()
                if i % 2 == 0 and i // 2 + 2 < 10:
                    for f in dma_x(i // 2 + 2): f()
                if not team and i + WT < 20:
                    e(f"s_cmp_lg_u32 s{sWAVE}, {i % 4}")
                    e(f"s_cbranch_scc1 qp_wt{i}")
                    e(f"s_add_u32 s{sT3}, s{sWT}, {(i+WT)*32*12288}")
                    e(f"buffer_load_dword v{QJUNK}, v{QWT}, s[{sWd}:{sWd+3}], s{sT3} offen {OPT['tq']}")
                    g.label(f"qp_wt{i}")
            if n == NB2 and i < 19:
                g.wait("lg", f"r2{i}", [], drain_tags=[f"{i+1}a0{x}" for x in range(3)])
                vwait(f"t{i}", [f"W{i+1}.1"])
                e("s_barrier")
                if i + 3 < 20:
                    for f in dma_w(i + 3, 0): f()
                if i == 18 and team:
                    e(f"s_mul_i32 s{sKSO2}, s{sW4}, 3072")
                    e(f"s_lshl_b32 s{sL1}, s{sW4}, 10")
                    for u in range(NPRE):
                        a, bb = divmod(u, 3)
                        e(f"s_add_u32 m0, s{sL1}, {KVB + (u % NS) * 4096 - bb * 128}")
                        e(f"s_add_u32 s{sT1}, s{sKSO2}, {kv_tile(a) * TILE}")
                        srd = sKd if kv_kind(a) == "K" else sVd
                        e(f"buffer_load_dwordx4 v{PKV_}, s[{srd}:{srd+3}], s{sT1} offen offset:{bb*128} {OPT['kv']} lds")
            tags = [t for t in (f"{i}b{rt}", f"{i}a{hh}{k}") if t not in seen]
            seen.update(tags)
            if tags: g.wait("lg", f"{i}m{n}", tags)
            mfma(e, AC_(hh, rt, k), QAF(i & 1, hh, k), QBF(7 * i + rt), "0" if i == 0 else AC_(hh, rt, k))
            if n == lastb[rt]:
                if rt + 4 < 7: b_read(i, rt + 4)
                elif i < 19: b_read(i + 1, rt - 3)
            if i < 19 and n in A0: a_read(i + 1, 0, A0.index(n))
            if i < 19 and n in A1: a_read(i + 1, 1, A1.index(n))
            if i == 19 and n >= 4: fin(n - 4)
    for n in range(len(ORD) - 4, len(ORD)): fin(n)
    stamp(e, 15, real=bool(OPT["rt"]))
    return g.rec

def t0_path(p, needs, nrt, tag):
    g = Gen(p, needs); e = g.e
    def ACC(rt, t): return rt * 48 + t * 4
    def Q(rt, j): return 96 + rt * 24 + j * 4
    def S(par, rt, kt=0): return 144 + par * 16 + rt * 8 + kt * 4
    def P(par, rt): return 176 + par * 8 + rt * 4
    def NEGM(rt): return 192 + rt * 4
    def LSUM(rt): return 200 + rt * 4
    def STG(rt, j): return 144 + (j * 2 + rt) * 4 if j < 5 else 192 + rt * 4
    ONES = 208
    FR0 = 212; NFR = 8
    def FR(a, f): return FR0 + ((a * 12 + f) % NFR) * 4
    KA = [244, 245]; VA = [246, 247, 248, 249]; QOA = 250
    TC = 251; T = [252, 253, 254, 255]
    HOLD = [48 + 4 * i for i in range(12)] + [156, 172, 180, 188, 196, 204]
    def rd_l(a, f):
        base = ((3 * a + f // 4) % NS) * 4096; tg = f"A{a%32}f{f}"
        if kv_kind(a) == "K":
            j, kt = divmod(f, 2)
            return [lambda: g.ld(tg, f"ds_read_b128 {v(FR(a,f),4)}, v{KA[j&1]} offset:{base+kt*2048}")]
        return [lambda hf=hf: g.ld(tg, f"ds_read_b64_tr_b16 {v(FR(a,f)+2*hf,2)}, v{VA[f&3]} offset:{base+hf*2048}") for hf in range(2)]
    def run(x):
        if callable(x): x()
        else: e(x)
    def cost(x): return 2 if isinstance(x, str) and x.startswith(("v_exp", "v_rcp")) else 1
    def step(key, a, mfs, valu=(), last=False, extra=None, v0=0):
        valu = list(valu)
        ngap = sum(len(mfs(f, 0)) for f in range(v0, 12))
        tot = sum(cost(x) for x in valu); done = 0; gap = 0
        for f in range(12):
            pos = a * 12 + f
            if extra and f in extra: extra[f]()
            if pos in XB_:
                k = XB_.index(pos)
                if OPT["kv0"] and k + 1 < NX and -(-(XB_[k] + LEAD) // 4) < NPRE:
                    e(f"s_waitcnt vmcnt({max(0, NPRE - -(-(XB_[k+1] + LEAD) // 4))})")
                e("s_barrier")
                if nrt == 1 and k == OPT["k0"] + 20:
                    e(f"s_cmp_lg_u32 s{sSLOT}, 1")
                    e("s_cbranch_scc1 t0_nopick")
                    e(f"v_subrev_u32 v{TC}, 6144, v{QOA}")
                    for j in range(6): e(f"ds_read_b128 {v(Q(1,j),4)}, v{TC} offset:{j*1024}")
                    for n in range(18): e(f"ds_read_b128 {v(HOLD[n],4)}, v{TC} offset:{(6+n)*1024}")
                    e("s_waitcnt lgkmcnt(0)")
                    g.label("t0_nopick")
            reads = rd_l(a, f + LEAD) if f + LEAD < 12 else ([] if last else rd_l(a + 1, f + LEAD - 12))
            if not OPT["w2"]: g.wait("lg", f"{key}{f}", [f"A{a}f{f}"])
            elif f % 2 == 0: g.wait("lg", f"{key}{f}", [f"A{a}f{f}", f"A{a}f{f+1}"])
            ms = mfs(f, FR(a, f))
            for i, m in enumerate(ms):
                m()
                if reads: reads.pop(0)()
                if i == len(ms) - 1:
                    while reads: reads.pop(0)()
                if f >= v0:
                    gap += 1
                    while valu and done + cost(valu[0]) / 2 <= tot * gap / ngap:
                        done += cost(valu[0]); run(valu.pop(0))
        for x in valu: run(x)
    def mf_qk(par, zero):
        def m(f, fr):
            j, kt = divmod(f, 2)
            return [lambda rt=rt: mfma(e, S(par, rt, kt), fr, Q(rt, j), ("0" if zero else NEGM(rt)) if j == 0 else S(par, rt, kt)) for rt in range(nrt)]
        return m
    def onorm_l(j):
        out = []
        for rt in range(nrt):
            a = ACC(rt, 2 * j)
            out += [f"v_pk_mul_f32 {v(a+i,2)}, {v(a+i,2)}, {v(T[2*rt],2)}" for i in range(0, 8, 2)]
            out += [f"v_cvt_pk_bf16_f32 v{STG(rt,j)+i}, v{a+2*i}, v{a+2*i+1}" for i in range(4)]
        return out
    def mf_pv(par, first, last=False):
        def m(f, fr):
            out = []
            if f == (0 if last else 5):
                out += [lambda rt=rt: mfma(e, LSUM(rt), ONES, P(par, rt), "0" if first else LSUM(rt)) for rt in range(nrt)]
            return out + [lambda rt=rt: mfma(e, ACC(rt, f), fr, P(par, rt), "0" if first else ACC(rt, f)) for rt in range(nrt)]
        return m
    def sm(par, lo=0, hi=None):
        grp = [(rt, i) for rt in range(nrt) for i in range(4)][lo:hi]
        seq = []
        for n, (rt, i) in enumerate(grp):
            a, b = T[(2 * n) % 4], T[(2 * n + 1) % 4]
            r = S(par, rt) + 2 * i
            seq += [f"v_exp_f32 v{a}, v{r}", f"v_exp_f32 v{b}, v{r+1}"]
            if n > 0: seq.append(prev)
            prev = f"v_cvt_pk_bf16_f32 v{P(par,rt)+i}, v{a}, v{b}"
        return seq + [prev] if grp else []
    def chk_l(par):
        p0 = P(par, 0)
        out = [f"v_or3_b32 v{TC}, v{p0}, v{p0+1}, v{p0+2}"]
        if nrt == 2:
            out += [f"v_or3_b32 v{TC}, v{TC}, v{p0+3}, v{p0+4}", f"v_or3_b32 v{TC}, v{TC}, v{p0+5}, v{p0+6}"]
        out += [f"v_bitop3_b32 v{TC}, v{TC}, v{p0+4*nrt-1}, s{sBIT} bitop3:0xa8", f"v_cmp_ne_u32 vcc, 0, v{TC}"]
        return out
    def chk_branch(par, key):
        e(f"s_cbranch_vccz t0_ok{key}_{tag}")
        if not OPT["norare"]: e(f"s_call_b64 s[{sRET}:{sRET+1}], t0_rare{par}_{tag}")
        g.label(f"t0_ok{key}_{tag}")
    def rowmax(par, rt, t, t2):
        r = S(par, rt)
        e(f"""
v_max3_f32 v{t}, v{r}, v{r+1}, v{r+2}
v_max3_f32 v{t}, v{t}, v{r+3}, v{r+4}
v_max3_f32 v{t}, v{t}, v{r+5}, v{r+6}
v_max_f32 v{t}, v{t}, v{r+7}
v_mov_b32 v{t2}, v{t}
v_permlane32_swap_b32 v{t2}, v{t}
v_max_f32 v{t}, v{t}, v{t2}
v_mov_b32 v{t2}, v{t}
v_permlane16_swap_b32 v{t2}, v{t}
v_max_f32 v{t}, v{t}, v{t2}
v_add_f32 v{t}, {hex(f2u(7.0))}, v{t}
""")
    L = 216
    lane_regs(e, L)
    e(f"""
s_waitcnt lgkmcnt(0)
s_lshl_b32 s{sT1}, s{sWAVE}, 11
s_add_u32 s{sT1}, s{sT1}, {QO}
v_lshl_add_u32 v{QOA}, v{L}, 4, s{sT1}
v_lshrrev_b32 v{L+6}, 1, v{L+1}
v_and_b32 v{L+6}, 3, v{L+6}
v_lshlrev_b32 v{L+6}, 1, v{L+6}
v_xor_b32 v{L+6}, v{L+2}, v{L+6}
v_lshlrev_b32 v{L+6}, 4, v{L+6}
v_lshl_add_u32 v{L+6}, v{L+1}, 7, v{L+6}
v_add_u32 v{KA[0]}, {KVB}, v{L+6}
v_xor_b32 v{KA[1]}, 64, v{KA[0]}
v_lshrrev_b32 v{L+6}, 1, v{L+3}
v_and_b32 v{L+6}, 3, v{L+6}
v_lshlrev_b32 v{L+6}, 5, v{L+6}
v_lshl_add_u32 v{L+6}, v{L+3}, 7, v{L+6}
v_lshl_add_u32 v{L+6}, v{L+5}, 3, v{L+6}
v_add_u32 v{VA[0]}, {KVB}, v{L+6}
v_xor_b32 v{VA[1]}, 32, v{VA[0]}
v_xor_b32 v{VA[2]}, 64, v{VA[0]}
v_xor_b32 v{VA[3]}, 96, v{VA[0]}
s_mov_b32 s{sBIT}, 0x40004000
s_mov_b32 s{sSLOT}, 1
""")
    for i in range(4): e(f"v_mov_b32 v{ONES+i}, 0x3f803f80")
    H = 4 if (nrt == 2 and OPT["psplit"]) else (2 if OPT["psplit"] else 0)
    for unit in range(2):
        if unit >= 1: g.mute += 1
        g.label(f"t0_unit_{tag}")
        if OPT["kv0"]: e(f"s_waitcnt vmcnt({NPRE - -(-(XB_[0] + LEAD) // 4)})")
        e("s_barrier")
        if not g.mute: stamp_slot(e)
        e(f"s_cmp_gt_u32 s{sSLOT}, 3")
        e(f"s_cbranch_scc1 t0_q3_{tag}")
        for j in range(6):
            for rt in range(nrt): e(f"ds_read_b128 {v(Q(rt,j),4)}, v{QOA} offset:{(j*7+rt)*1024}")
        e(f"s_cmp_lg_u32 s{sSLOT}, 1")
        e(f"s_cbranch_scc1 t0_w_{tag}")
        e(f"s_branch t0_noo_{tag}")
        g.label(f"t0_q3_{tag}")
        e(f"s_cmp_eq_u32 s{sSLOT}, 5")
        e(f"s_cbranch_scc1 t0_w_{tag}")
        if nrt == 1:
            for i in range(24): e(f"v_mov_b32 v{Q(0,0)+i}, v{Q(1,0)+i}")
        else:
            e(f"v_add_u32 v{TC}, {B2}, v{QOA}")
            for j in range(6):
                for rt in range(nrt):
                    if j < 3: e(f"ds_read_b128 {v(Q(rt,j),4)}, v{TC} offset:{(j*6+rt)*1024}")
                    else: e(f"ds_read_b128 {v(Q(rt,j),4)}, v{QOA} offset:{(j*7+rt)*1024}")
        g.label(f"t0_w_{tag}")
        e("s_waitcnt lgkmcnt(0)")
        for j in range(6):
            for rt in range(nrt): e(f"ds_write_b128 v{QOA}, {v(STG(rt,j),4)} offset:{(j*7+rt)*1024}")
        e(f"s_cmp_eq_u32 s{sSLOT}, 5")
        e(f"s_cbranch_scc1 t0_exit_{tag}")
        g.label(f"t0_noo_{tag}")
        for f in range(LEAD):
            for x in rd_l(0, f): x()
        step("a0_", 0, mf_qk(0, True), extra={1: lambda: e("s_barrier")})
        for rt in range(nrt):
            rowmax(0, rt, T[0], T[1])
            for i in range(4): e(f"v_sub_f32 v{NEGM(rt)+i}, 0, v{T[0]}")
            for i in range(8): e(f"v_sub_f32 v{S(0,rt)+i}, v{S(0,rt)+i}, v{T[0]}")
        for t in range(15):
            step(f"q{t}_", 2 * t + 1, mf_qk((t + 1) & 1, False), valu=sm(t & 1, H if t else 0) + chk_l(t & 1))
            chk_branch(t & 1, f"q{t}")
            va = sm((t + 1) & 1, 0, H)
            if t == 14: va = sm(1) + chk_l(1)
            step(f"p{t}_", 2 * t + 2, mf_pv(t & 1, t == 0), valu=va, v0=1)
        chk_branch(1, "q15")
        rc = [f"v_rcp_f32 v{T[i]}, v{LSUM(i//2)}" for i in range(2 * nrt)]
        ex = {3: lambda: [e(x) for x in rc]}
        for j in range(4): ex[4 + 2 * j] = lambda j=j: [e(x) for x in onorm_l(j)]
        step("p15_", 31, mf_pv(1, False, True), last=True, extra=ex)
        for x in onorm_l(4) + onorm_l(5): e(x)
        if nrt == 1:
            e(f"s_cmp_lg_u32 s{sSLOT}, 3")
            e("s_cbranch_scc1 t0_nohold")
            e(f"v_subrev_u32 v{TC}, 6144, v{QOA}")
            for n in range(18): e(f"ds_write_b128 v{TC}, {v(HOLD[n],4)} offset:{((3+n//6)*7+n%6)*1024}")
            e("s_waitcnt lgkmcnt(0)")
            g.label("t0_nohold")
        e(f"""
s_add_u32 s{sSLOT}, s{sSLOT}, 1
s_branch t0_unit_{tag}
""")
        if unit >= 1: g.mute -= 1
    g.label(f"t0_exit_{tag}")
    e("s_branch t0_final")
    for par in range(2):
        g.label(f"t0_rare{par}_{tag}")
        for rt in range(nrt):
            t, t2 = TC, T[0]
            rowmax(par, rt, t, t2)
            e(f"v_max_f32 v{t}, 0, v{t}")
            for i in range(4): e(f"v_sub_f32 v{NEGM(rt)+i}, v{NEGM(rt)+i}, v{t}")
            for pp in range(2):
                for i in range(8): e(f"v_sub_f32 v{S(pp,rt)+i}, v{S(pp,rt)+i}, v{t}")
            e(f"v_exp_f32 v{t}, -v{t}")
            for i in range(4): e(f"v_mul_f32 v{LSUM(rt)+i}, v{LSUM(rt)+i}, v{t}")
            for i in range(48): e(f"v_mul_f32 v{ACC(rt,0)+i}, v{ACC(rt,0)+i}, v{t}")
        for x in sm(par): e(x)
        e(f"s_setpc_b64 s[{sRET}:{sRET+1}]")
    return g.rec


def t0_final(p, needs):
    g = Gen(p, needs); e = g.e
    g.label("t0_final")
    op = OpEngine(g, lambda tt: 2 * (tt - 42), 56, 112, 128, [244, 245], 246, [247, 248], KVB, sLW, 2)
    op.fl = OPT["wo5"]; op.early = OPT["early"] >> 1
    op.addr_setup()
    e(f"""
s_mul_i32 s{sOB}, s{sW4}, {8*1280}
s_add_u32 s{sOB}, s{sOB}, {3*245760}
s_lshl_b32 s{sLW}, s{sW4}, 11
s_mov_b32 s{sSLO}, 0x01000c0c
s_mov_b32 s{sSHI}, 0x03020c0c
s_lshl_b32 s{sT1}, s{sW4}, 10
s_add_u32 s{sT1}, s{sT1}, {KVB + 32768}
v_add_u32 v249, s{sT1}, v246
""")
    for i in range(18, 22):
        for f in op.dma(i): f()
    def pk_read(ps):
        for rt in range(7): g.ld("pk", f"ds_read_b128 {v(op.PK(ps*14+rt*2),4)}, v249 offset:{rt*4096}")
    e("s_waitcnt lgkmcnt(0)"); g.lq[:] = []
    e("s_barrier")
    pk_read(3)
    e("s_waitcnt lgkmcnt(0)"); g.lq[:] = []
    for k in range(14):
        for x in op.unpack_l(op.AC(k), op.PK(42 + k)): e(x)
    g.wait("vm", "in", ["O18"])
    e("s_barrier")
    op.first_reads(18)
    def tick(i):
        op.flush_pq()
        g.wait("vm", f"t{i}", [f"O{i+1}"])
        e("s_barrier")
        if i + 4 < 30:
            for f in op.dma(i + 4): f()
    for i in range(18, 30):
        op.step("f", i, 29, tick, store=[3], hooks={5: lambda: pk_read(4)} if i == 20 else None)
    op.finish()
    for i in range(OPT["lastb"] - 12): e("s_barrier")
    if not OPT["oldfin"]: e("s_waitcnt vmcnt(0)")
    e("s_barrier")
    e("s_branch k1_final")
    return g.rec

def t1_path(p, needs):
    g = Gen(p, needs); e = g.e
    def PK(tt): return 2 * tt
    def Q2(k): return PK(56) + 2 * k if k < 14 else 236 + 2 * (k - 14)
    OB = 252
    op = OpEngine(g, PK, 140, 196, 212, [250, 251], OB, [253, 254], T1R, sLW, 0)
    AC, AF, BF = op.AC, op.AF, op.BF
    op.pkb = OPT["pkb"] & 1
    def dma_sub(u):
        a, bb = divmod(u, 3)
        srd = sKd if kv_kind(a) == "K" else sVd
        def f():
            kw = (OPT["kwa"] if u < OPT["kwu"] else OPT["kw"]) if st.get("mixed") else OPT["kw1m"]
            if u < KL and not OPT["t0w"]: kw = 0
            if kw:
                idx = [i for i, t in enumerate(g.vq) if t.startswith("U")]
                n = len(g.vq) - 1 - idx[-kw] if len(idx) >= kw else 999
                k = ("vm", f"kw{u}.{st.get('mixed')}")
                g.rec[k] = min(g.rec.get(k, 999), n)
                val = g.needs.get(k, n)
                if val != 999:
                    e(f"s_waitcnt vmcnt({val})")
                    del g.vq[:len(g.vq) - val if val < len(g.vq) else 0]
            e(f"s_add_u32 m0, s{sL1}, {KVB + (u % NS) * 4096 - bb * 128}")
            e(f"s_add_u32 s{sT1}, s{sKSO2}, {kv_tile(a) * TILE}")
            off = f"offset:{bb*128} " if bb else ""
            g.vm(f"U{u % 96}", f"buffer_load_dwordx4 v{PKV_}, s[{srd}:{srd+3}], s{sT1} offen {off}{OPT['kv']} lds")
        return f
    st = dict(pub=0, iss=0)
    def kv_tags(k):
        upto = XB_[k + 1] if k < NX - 1 else 384
        n = -(-(upto + LEAD) // 4) if upto < 384 else 96
        tags = [f"U{u}" for u in range(st["pub"], n)]
        st["pub"] = max(st["pub"], n)
        return tags
    def kv_issue(k):
        out = []
        while k in KVT and 4 * (st["iss"] - KL) + 4 <= XB_[k]:
            out.append(dma_sub(st["iss"])); st["iss"] += 1
        return out
    def touch_o(t):
        nsh = 16 if OPT["map"] == 0 else 8
        per = 245760 // (4 * nsh)
        e(f"""
s_and_b32 s{sT1}, s{sB}, {nsh-1}
s_lshl_b32 s{sT1}, s{sT1}, 2
s_add_u32 s{sT1}, s{sT1}, s{sW4}
s_mul_i32 s{sT1}, s{sT1}, {per}
s_sub_u32 s{sT2}, s{sSLOT}, 1
s_mul_i32 s{sT2}, s{sT2}, 245760
s_add_u32 s{sT1}, s{sT1}, s{sT2}
s_mov_b32 m0, {SPARE}
v_mbcnt_lo_u32_b32 v{t}, -1, 0
v_mbcnt_hi_u32_b32 v{t}, -1, v{t}
v_min_u32 v{t}, {per//128-1}, v{t}
v_lshlrev_b32 v{t}, 7, v{t}
""")
        g.vm("pf", f"buffer_load_dword v{t}, s[{sOd}:{sOd+3}], s{sT1} offen {OPT['tf']} lds")
    NEXT = {26: 2, 27: 3, 28: 0, 29: 1}
    def tick(i):
        waits = ([f"O{i+1}"] if i < 29 else []) + kv_tags(i)
        op.flush_pq()
        if waits: g.wait("vm", f"o{i}", waits)
        if OPT["vcap"]: e(f"s_waitcnt vmcnt({OPT['vcap']})")
        e("s_barrier")
        io = []
        if not OPT["burst"]:
            if i == 26: io.append(lambda: e(f"s_add_u32 s{sOB}, s{sOB}, 245760"))
            io += op.dma(NEXT.get(i, i + 4))
        elif i % 2 == 1:
            if i == 27: io.append(lambda: e(f"s_add_u32 s{sOB}, s{sOB}, 245760"))
            io += op.dma(NEXT.get(i - 1, i + 3)) + op.dma(NEXT.get(i, i + 4))
        items = kv_issue(i) + io if OPT["kvfirst"] and i < 28 else io + kv_issue(i)
        if OPT["near"] and i == OPT["near"]: items.append(lambda: touch_o(AF(i + 1, 0) if False else 249))
        for f in items[:OPT["now0"]]: f()
        items = items[OPT["now0"]:]
        for j, f in enumerate(items): op.pq.append((op.clock + OPT["vpost"] + (j * OPT["span"]) // len(items), f))
    def q_write(reg):
        for rt in range(7):
            for k in range(3): e(f"ds_write_b64 v{AC(0)+k}, {v(reg(rt,k),2)} offset:{QO+rt*1024}")
        e("s_waitcnt lgkmcnt(0)")
    def q_addr():
        t = AC(1)
        e(f"v_lshrrev_b32 v{t}, 5, v{OB}")
        e(f"v_and_b32 v{t}, 8, v{t}")
        e(f"v_add_u32 v{t}, v{t}, v{OB}")
        for k in range(3):
            e(f"""
s_mul_i32 s{sT1}, s{sW4}, 3
s_add_u32 s{sT1}, s{sT1}, {k}
s_lshr_b32 s{sT2}, s{sT1}, 1
s_mul_i32 s{sT2}, s{sT2}, 7168
s_and_b32 s{sT1}, s{sT1}, 1
s_lshl_b32 s{sT1}, s{sT1}, 3
v_xor_b32 v{AC(0)+k}, s{sT1}, v{t}
v_add_u32 v{AC(0)+k}, s{sT2}, v{AC(0)+k}
""")

    K0, NQ = OPT["k0"], OPT["nq"]
    e(f"""
s_mov_b32 s{sSLOT}, 1
s_mov_b32 s{sRX}, 0x01000c0c
s_mov_b32 s{sRX+1}, 0x03020c0c
""")
    for k in range(21):
        for x in range(2): e(f"v_mov_b32 v{4*k+2+x}, v{84+4*k+x}")
    for x in range(2): e(f"v_subrev_u32 v{QXA[x]}, {X9}, v{QXA[x]}")
    for u in range(NPRE):
        g.vq.append(f"U{u}"); g.issued[f"U{u}"] = 1
    st.update(pub=0, iss=NPRE)
    g.wait("vm", "i_t0", kv_tags(-1))
    e("s_barrier")
    stamp_slot(e)
    def w3(i): return w_dma(g, i, 3, T1R + (i % 4) * TILE, f"W{i}")
    def x3(pp): return x_dma(g, pp, QO + (pp % 3) * 14336)
    for f in w3(0) + w3(1): f()
    NT0 = KL if OPT["t0i"] else N0 - 96
    for u in range(NPRE, NT0): dma_sub(u)()
    st["iss"] = NT0
    e("s_barrier")
    for f in x3(0) + w3(2) + x3(1) + w3(3): f()
    def tick1(k, waits=(), issue=()):
        w = list(waits) + kv_tags(k)
        if w: g.wait("vm", f"i{k}", w)
        e("s_barrier")
        kv = kv_issue(k) if not (OPT["b1"] and K0 <= k < K0 + 19 and (k - K0) % 2 == OPT["b1"] - 1) else []
        for f in (kv + list(issue) if OPT["kf1"] else list(issue) + kv): f()
        if k == OPT["tch"] and OPT["touch"]: touch_o(212)
    def qa(i, n):
        k, hf = divmod(n, 2)
        g.ld(f"{i}a{k}", f"ds_read_b64_tr_b16 {v(QAF(i&1,0,k)+2*hf,2)}, v{QRA[1][k]} offset:{(i%4)*TILE+hf*1536}")
    def qb(i, rt):
        g.ld(f"{i}b{rt}", f"ds_read_b128 {v(QBF(7*i+rt),4)}, v{QXA[i&1]} offset:{((i>>1)%3)*14336+rt*2048}")
    for k in range(K0): tick1(k, ["W0", "X0"] if k == K0 - 1 else [])
    qa(0, 0); qa(0, 1); qb(0, 0); qb(0, 1)
    for n in range(2, 6): qa(0, n)
    qb(0, 2); qb(0, 3)
    A0 = [NQ + 2, NQ + 3, NQ + 5, NQ + 6, NQ + 8, NQ + 9]
    for i in range(20):
        for n in range(21):
            rt, k = divmod(n, 3)
            if n == NQ and i < 19:
                tick1(K0 + i, [f"W{i+1}"] + ([f"X{(i+1)//2}"] if i % 2 == 1 else []),
                      ((w3(i + 4) if i + 4 < 20 else []) if not OPT["wp"] else
                       ((w3(i + 3) if 0 < i < 17 else []) + (w3(i + 4) if i + 4 < 20 else []) if i % 2 == 0 else [])) +
                      (x3(i // 2 + 2) if i % 2 == 0 and i // 2 + 2 < 10 else []))
            tags = ([f"{i}b{rt}"] if k == 0 else []) + ([f"{i}a{k}"] if rt == 0 else [])
            if tags: g.wait("lg", f"q{i}m{n}", tags)
            mfma(e, QAC(1, rt, k), QAF(i & 1, 0, k), QBF(7 * i + rt), "0" if i == 0 else QAC(1, rt, k))
            if k == 2:
                if rt + 4 < 7: qb(i, rt + 4)
                elif i < 19: qb(i + 1, rt - 3)
            if i < 19 and n in A0: qa(i + 1, A0.index(n))
            if i == 19 and n >= 4: q_cvt(e, QAC(1, (n - 4) // 3, (n - 4) % 3))
    for n in range(17, 21): q_cvt(e, QAC(1, n // 3, n % 3))
    tick1(K0 + 19)
    for rt in range(7):
        for k in range(3): e(f"ds_write_b64 v{QB[k] if rt < 6 else QT[k]}, {v(QAC(1,rt,k),2)} offset:{rt*1024 if rt < 6 else 0}")
    e(f"v_mov_b32 v232, {SPARE + 1024 + 256}")
    e("v_mov_b32 v234, 0")
    e("v_mov_b32 v235, 0")
    e("ds_write_b64 v232, v[234:235]")
    e("ds_write_b64 v232, v[234:235] offset:8")
    e("s_waitcnt lgkmcnt(0)")
    tick1(K0 + 20)
    tick1(K0 + 21)
    for rt in range(7):
        for k in range(3): e(f"ds_write_b64 v{QW[k]}, {v(QAC(0,rt,k),2)} offset:{QO+rt*1024}")
    e(f"""
s_waitcnt lgkmcnt(0)
s_mul_i32 s{sOB}, s{sW4}, {8*1280}
s_lshl_b32 s{sLW}, s{sW4}, 11
""")
    op.addr_setup()
    for k in range(21):
        for x in range(2): e(f"v_mov_b32 v{Q2(k)+x}, v{4*k+2+x}")
    for k in range(K0 + 22, NX):
        tick1(k, [], op.dma(NEXT[k]) if k >= 26 else [])
    for s in range(2, 5):
        if s != 2: g.mute += 1
        g.label("t1_slot")
        assert st["iss"] == N0
        st.update(pub=0, iss=N0 - 96, mixed=1)
        e(f"""
s_add_u32 s{sSLOT}, s{sSLOT}, 1
s_add_u32 s{sKSO2}, s{sKSO2}, 196608
s_cmp_eq_u32 s{sSLOT}, 2
s_cselect_b32 s{sSLO}, 0x0c0c0c0c, s{sRX}
s_cselect_b32 s{sSHI}, 0x0c0c0c0c, s{sRX+1}
""")
        g.wait("vm", "t0", kv_tags(-1))
        e("s_barrier")
        if not g.mute: stamp_slot(e)
        for u in range(N0 - 96, NT0): dma_sub(u)()
        st["iss"] = NT0
        if OPT["touch"] and not OPT["near"]: touch_o(AF(0, 0))
        for k in range(14):
            for x in op.unpack_l(AC(k), PK(k)): e(x)
        g.wait("vm", "o_in", ["O0"])
        e("s_barrier")
        stamp_if(e, 12, OPT["ps"])
        op.first_reads(0)
        for i in range(30): op.step("m", i, 29, tick)
        stamp_if(e, 13, OPT["ps"])
        tick(29)
        op.finish()
        e(f"s_cmp_lg_u32 s{sSLOT}, 2")
        e("s_cbranch_scc1 t1_noq2")
        for k in range(3): e(f"v_mov_b32 v{BF(0)+k}, v{AC(0)+k}")
        e(f"v_mov_b32 v{BF(0)+3}, v{AC(1)}")
        q_addr()
        q_write(lambda rt, k: Q2(rt * 3 + k))
        for k in range(3): e(f"v_mov_b32 v{AC(0)+k}, v{BF(0)+k}")
        e(f"v_mov_b32 v{AC(1)}, v{BF(0)+3}")
        g.label("t1_noq2")
        for n in range(14):
            for x in op.pack_l(PK(56 + n), AC(n)): e(x)
        e(f"s_cmp_lg_u32 s{sSLOT}, 4")
        e("s_cbranch_scc1 t1_slot")
        if s != 2: g.mute -= 1
    g.label("t1_last")
    if OPT["p5"]: e(f"s_setprio {OPT['p5']}")
    op.fl = OPT["wo5"]; op.nr = OPT["r5"]; op.early = OPT["early"] & 1; op.pkb = OPT["pkb"] >> 1
    R5 = op.nr
    e(f"""
s_mov_b32 s{sSLOT}, 5
s_lshl_b32 s{sT1}, s{sW4}, 10
s_add_u32 s{sT1}, s{sT1}, {KVB + 32768}
v_add_u32 v249, s{sT1}, v{OB}
""")
    def pk_write(ps):
        for rt in range(7): g.ld("pk", f"ds_write_b128 v249, {v(PK(ps*14+rt*2),4)} offset:{rt*4096}")
    for k in range(14):
        for x in op.unpack_l(AC(k), PK(k)): e(x)
    e("s_waitcnt vmcnt(0)"); g.vq[:] = []
    e("s_barrier")
    stamp_slot(e)
    for i in range(4, R5):
        for f in op.dma(i): f()
    pk_write(3)
    e("s_waitcnt lgkmcnt(0)"); g.lq[:] = []
    e("s_barrier")
    stamp_if(e, 12, OPT["ps"])
    g.issued.pop("O0")
    op.first_reads(0)
    def tick5(i):
        op.flush_pq()
        if i > OPT["lastb"]: return
        if i == 2: g.wait("lg", "pkw", ["pk"])
        g.wait("vm", f"f{i}", [f"O{x}" for x in range(i + 1, 18 if i == OPT["lastb"] else i + 2)] + (["st"] if i == OPT["lastb"] and not OPT["oldfin"] else []))
        e("s_barrier")
        if i + R5 < 18:
            for f in op.dma(i + R5): f()
    g.issued.pop("pk")
    for i in range(18):
        op.step("f", i, 17, tick5, store=[0], hooks={5: lambda: pk_write(4)} if i == 1 else None)
    op.finish()
    stamp_if(e, 13, OPT["ps"])
    g.label("t1_exit")
    return g.rec

sG, sMASK, sQ, sPEND, sDOK = 4, 5, 6, 7, 21
sD, sA, sOUT, sF = 8, 32, 36, 40
sOK = 20
sLD, sST = 12, 16
def fin_setup(e):
    e(f"""
s_and_b32 s{sG}, s2, 7
s_cmp_lt_u32 s{sG}, 4
s_cselect_b32 s{sG}, 0, 16
s_add_u32 s{sG}, s{sG}, s{sB}
s_mov_b32 s{sD}, s26
s_mov_b32 s{sD+1}, s27
s_mov_b32 s{sD+2}, 256
s_mov_b32 s{sD+3}, 0x20000
s_lshl_b32 s{sT2}, s{sG}, 10
s_add_u32 s{sT2}, s{sT2}, {FLAG0}
s_add_u32 s{sF}, s28, s{sT2}
s_addc_u32 s{sF+1}, s29, 0
s_mov_b32 s{sF+2}, 1024
s_mov_b32 s{sF+3}, 0x20000
s_mul_i32 s{sT1}, s{sG}, {8*PART_CU}
s_add_u32 s{sT1}, s{sT1}, {PART0}
s_add_u32 s{sA}, s28, s{sT1}
s_addc_u32 s{sA+1}, s29, 0
s_mov_b32 s{sA+2}, {8*PART_CU}
s_mov_b32 s{sA+3}, 0x20000
s_mul_i32 s{sT1}, s{sB}, {112*2560}
s_lshr_b32 s{sT2}, s{sG}, 4
s_mul_i32 s{sT2}, s{sT2}, 1280
s_add_u32 s{sT1}, s{sT1}, s{sT2}
s_add_u32 s{sOUT}, s24, s{sT1}
s_addc_u32 s{sOUT+1}, s25, 0
s_sub_u32 s{sOUT+2}, {112*2560}, s{sT2}
s_mov_b32 s{sOUT+3}, 0x20000
s_mov_b32 s{sPEND}, 0xff
s_mov_b32 s{sDOK}, 0
s_mov_b32 s{sCTR}, 0
s_mov_b32 s{sQ}, s{sQUAD}
s_lshl_b32 s{sG}, s{sG}, 2
v_mbcnt_lo_u32_b32 v216, -1, 0
v_mbcnt_hi_u32_b32 v216, -1, v216
v_lshlrev_b32 v217, 4, v216
v_and_b32 v218, 15, v216
v_lshrrev_b32 v219, 4, v216
v_mul_u32_u24 v220, 272, v218
v_lshl_add_u32 v220, v219, 3, v220
s_mul_i32 s{sT2}, s{sTEAM}, {4*4352}
s_add_u32 s{sT2}, s{sT2}, {KVB}
s_lshl_b32 s{sT1}, s{sW4}, 6
s_add_u32 s{sT1}, s{sT1}, s{sT2}
v_add_u32 v220, s{sT1}, v220
s_mul_i32 s{sT1}, s{sW4}, {4*272}
s_add_u32 s{sT1}, s{sT1}, s{sT2}
v_mul_u32_u24 v221, 272, v219
v_lshl_add_u32 v221, v218, 4, v221
v_add_u32 v221, s{sT1}, v221
v_mul_u32_u24 v219, 2560, v219
v_lshl_add_u32 v218, v218, 4, v219
v_and_b32 v222, 7, v216
v_lshlrev_b32 v222, 7, v222
v_mov_b32 v223, 0
""")
FINL = SPARE + 1024 + 256
def slice_setup(e):
    for k in range(4):
        e(f"""
s_add_u32 s{sT1}, s{sQ}, {8*k}
s_cmp_lt_u32 s{sT1}, 28
s_cselect_b32 s{sOK}, 1, 0
s_cmp_ge_u32 s{sT1}, 14
s_cselect_b32 s{sT2}, 7, 0
s_add_u32 s{sT1}, s{sT1}, s{sT2}
""")
        if k == 0:
            e(f"""
s_cmp_eq_u32 s{sTEAM}, 0
s_cbranch_scc1 k1_ss{slice_setup.n}
s_add_u32 s{sT1}, s{sQ}, 14
s_cmp_lt_u32 s{sQ}, 7
s_cselect_b32 s{sOK}, 1, 0
k1_ss{slice_setup.n}:
""")
            slice_setup.n += 1
        e(f"""
s_mul_i32 s{sT2}, s{sW4}, 35
s_add_u32 s{sT2}, s{sT2}, s{sT1}
s_lshl_b32 s{sT2}, s{sT2}, 10
s_cmp_lg_u32 s{sOK}, 0
s_cselect_b32 s{sLD+k}, s{sT2}, {8*PART_CU}
s_mul_i32 s{sT2}, s{sT1}, 37
s_lshr_b32 s{sT2}, s{sT2}, 8
s_mul_i32 s{sT3}, s{sT2}, 7
s_sub_u32 s{sT3}, s{sT1}, s{sT3}
s_lshl_b32 s{sT2}, s{sT2}, 8
s_mul_i32 s{sT3}, s{sT3}, {16*2560}
s_add_u32 s{sT2}, s{sT2}, s{sT3}
s_mul_i32 s{sT3}, s{sW4}, {4*2560}
s_add_u32 s{sT2}, s{sT2}, s{sT3}
s_cmp_lg_u32 s{sOK}, 0
s_cselect_b32 s{sST+k}, s{sT2}, 0x1000000
""")
slice_setup.n = 0
def fin_subs(e):
    e(f"""
k1_round:
s_cmp_lg_u32 s{sDOK}, 0
s_cbranch_scc1 k1_r1
buffer_load_dword v224, v223, s[{sD}:{sD+3}], s{sG} offen sc1
s_waitcnt vmcnt(0)
v_readfirstlane_b32 s{sT1}, v224
s_cmp_eq_u32 s{sT1}, 8
s_cselect_b32 s{sDOK}, 1, 0
s_cbranch_scc0 k1_rret
k1_r1:
buffer_load_dword v224, v222, s[{sF}:{sF+3}], 0 offen sc1
s_waitcnt vmcnt(0)
v_cmp_eq_u32 vcc, 1, v224
s_and_b32 s{sT3}, vcc_lo, s{sPEND}
k1_loads:
s_andn2_b32 s{sPEND}, s{sPEND}, s{sT3}
""")
    for q in range(8):
        e(f"s_bitcmp1_b32 s{sT3}, {q}")
        e(f"s_cbranch_scc0 k1_l{q}")
        for k in range(4):
            e(f"s_add_u32 s{sT1}, s{sLD+k}, {q*PART_CU}")
            e(f"buffer_load_dwordx4 {v(8+32*k+4*q,4)}, v217, s[{sA}:{sA+3}], s{sT1} offen {OPT['rd']}")
            if k == 0:
                e(f"s_cmp_lg_u32 s{sTEAM}, 0")
                e(f"s_cbranch_scc1 k1_l{q}")
        e(f"k1_l{q}:")
    e(f"""
k1_rret:
s_setpc_b64 s[{sRET}:{sRET+1}]
""")
def final_reduce(p):
    slice_setup.n = 0
    e = p
    e.label("k1_final")
    if OPT["two"]:
        if OPT["prof"]: e("s_waitcnt vmcnt(0)")
        stamp(e, 10); stamp(e, 11, real=True)
        dump_stamps(e, 28, 64 << 20, 8)
        return
    fin_setup(e); slice_setup(e)
    e(f"""
v_mov_b32 v225, 1
v_mov_b32 v226, {FINL}
s_lshl_b32 s{sT2}, s{sQUAD}, 7
s_cmp_lg_u32 s{sTEAM}, 0
s_cbranch_scc1 k1_f1
s_cmp_lg_u32 s{sWAVE}, 0
s_cbranch_scc1 k1_poll
s_mov_b64 exec, 1
buffer_store_dword v225, v223, s[{sF}:{sF+3}], s{sT2} offen sc1
s_mov_b64 exec, -1
s_branch k1_poll
k1_f1:
v_add_u32 v222, 4, v222
s_waitcnt vmcnt(0)
""")
    stamp(e, 9, real=bool(OPT["rt"]))
    e(f"""
s_mov_b64 exec, 1
ds_add_rtn_u32 v224, v226, v225 offset:8
s_waitcnt lgkmcnt(0)
v_readfirstlane_b32 s{sT1}, v224
s_cmp_lg_u32 s{sT1}, 3
s_cbranch_scc1 k1_f2
buffer_store_dword v225, v223, s[{sF}:{sF+3}], s{sT2} offen offset:4 sc1
buffer_atomic_add v225, v223, s[{sD}:{sD+3}], s{sG} offen offset:128 sc0 sc1
s_waitcnt vmcnt(0)
v_readfirstlane_b32 s{sT2}, v225
s_and_b32 s{sT3}, s{sT2}, 0xff
s_bfe_u32 s{sT2}, s{sT2}, 0x80008
s_cmp_eq_u32 s{sT3}, 7
s_cselect_b32 s{sT2}, s{sT2}, 0
v_mov_b32 v225, s{sT2}
ds_write_b32 v226, v225 offset:4
k1_f2:
s_mov_b64 exec, -1
k1_poll:
s_call_b64 s[{sRET}:{sRET+1}], k1_round
s_add_u32 s{sCTR}, s{sCTR}, 1
s_cmp_eq_u32 s{sPEND}, 0
s_cbranch_scc1 k1_pd
s_cmp_lt_u32 s{sCTR}, {OPT['spin']}
s_cbranch_scc1 k1_poll
k1_pd:
s_mov_b32 s{sOK}, 0
s_cmp_lg_u32 s{sPEND}, 0
s_cbranch_scc1 k1_np
s_call_b64 s[{sRET}:{sRET+1}], k1_sums
s_mov_b32 s{sOK}, 1
k1_np:
s_waitcnt lgkmcnt(0)
s_barrier
s_cmp_lg_u32 s{sWAVE}, 4
s_cbranch_scc1 k1_fw
s_lshl_b32 s{sMASK}, 1, s{sQUAD}
s_mov_b64 exec, 1
s_cmp_eq_u32 s{sPEND}, 0
s_cbranch_scc1 k1_go
s_lshl_b32 s{sT2}, s{sMASK}, 8
v_mov_b32 v225, s{sT2}
buffer_atomic_or v225, v223, s[{sD}:{sD+3}], s{sG} offen offset:128 sc0 sc1
s_waitcnt vmcnt(0)
v_readfirstlane_b32 s{sT2}, v225
s_and_b32 s{sT2}, s{sT2}, 0xff
s_cmp_eq_u32 s{sT2}, 8
s_cselect_b32 s{sMASK}, s{sMASK}, 0
k1_go:
v_mov_b32 v225, s{sMASK}
ds_write_b32 v226, v225
s_waitcnt lgkmcnt(0)
s_mov_b64 exec, -1
k1_fw:
""")
    def sums(k):
        for i in range(4):
            r = 8 + 32 * k + i
            e(f"v_lshlrev_b32 v{140+2*i}, 16, v{r}")
            e(f"v_and_b32 v{141+2*i}, 0xffff0000, v{r}")
        for q in range(1, 8):
            for i in range(4):
                r = 8 + 32 * k + 4 * q + i
                e(f"v_lshlrev_b32 v{148+2*(i&1)}, 16, v{r}")
                e(f"v_and_b32 v{149+2*(i&1)}, 0xffff0000, v{r}")
                e(f"v_pk_add_f32 {v(140+2*i,2)}, {v(140+2*i,2)}, {v(148+2*(i&1),2)}")
        for i in range(4): e(f"v_cvt_pk_bf16_f32 v{152+4*k+i}, v{140+2*i}, v{141+2*i}")
        e(f"ds_write_b64 v220, {v(152+4*k,2)} offset:{k*4352}")
        e(f"ds_write_b64 v220, {v(154+4*k,2)} offset:{k*4352+32}")
    e(f"""
s_barrier
ds_read_b64 v[224:225], v226
s_waitcnt lgkmcnt(0)
v_or_b32 v224, v224, v225
v_readfirstlane_b32 s{sMASK}, v224
""")
    stamp(e, 8, real=bool(OPT["rt"]))
    e(f"""
s_bitcmp1_b32 s{sMASK}, s{sQ}
s_cbranch_scc1 k1_own0
k1_slice:
s_cmp_eq_u32 s{sMASK}, 0
s_cbranch_scc1 k1_done
s_ff1_i32_b32 s{sQ}, s{sMASK}
s_mov_b32 s{sPEND}, 0xff
s_waitcnt vmcnt(0)
""")
    slice_setup(e)
    e(f"""
s_mov_b32 s{sOK}, 0
k1_own0:
s_bitset0_b32 s{sMASK}, s{sQ}
s_cmp_lg_u32 s{sOK}, 0
s_cbranch_scc1 k1_s0
s_mov_b32 s{sT3}, s{sPEND}
s_call_b64 s[{sRET}:{sRET+1}], k1_loads
s_call_b64 s[{sRET}:{sRET+1}], k1_sums
k1_s0:
s_waitcnt lgkmcnt(0)
s_barrier
""")
    if OPT["fs"]: stamp(e, 15, real=True)
    for k in range(4): e(f"ds_read_b128 {v(168+4*k,4)}, v221 offset:{k*4352}")
    for k in range(4):
        e(f"s_waitcnt lgkmcnt({3-k})")
        e(f"buffer_store_dwordx4 {v(168+4*k,4)}, v218, s[{sOUT}:{sOUT+3}], s{sST+k} offen {OPT['of']}")
        if k == 0:
            e(f"s_cmp_lg_u32 s{sTEAM}, 0")
            e("s_cbranch_scc1 k1_s2")
    e(f"""
k1_s2:
s_cmp_eq_u32 s{sMASK}, 0
s_cbranch_scc1 k1_done
s_waitcnt lgkmcnt(0)
s_barrier
s_branch k1_slice
""")
    e("k1_sums:")
    e("s_waitcnt vmcnt(0)")
    if OPT["fs"]: stamp(e, 14, real=True)
    sums(0)
    e(f"s_cmp_lg_u32 s{sTEAM}, 0")
    e("s_cbranch_scc1 k1_s1")
    for k in range(1, 4): sums(k)
    e("k1_s1:")
    e(f"s_setpc_b64 s[{sRET}:{sRET+1}]")
    fin_subs(e)
    e("k1_done:")
    if OPT["prof"]: e("s_waitcnt vmcnt(0)")
    stamp(e, 10); stamp(e, 11, real=True)
    dump_stamps(e, 28, 64 << 20, 8)

def final_reduce_old(p):
    e = p
    sG, sMASK, sQ, sBL = 4, 5, 6, 7
    sD, sA, sOUT = 8, 32, 36
    SKO = OPT["sko"]
    def late():
        if not SKO: return ""
        x = f"""s_mov_b64 exec, -1
s_lshl_b32 s{sT2}, s{sG}, 3
s_add_u32 s{sT2}, s{sT2}, s{sQUAD}
s_mul_i32 s{sT2}, s{sT2}, {PART_CU}
s_add_u32 s{sT2}, s{sT2}, {PART0}
s_add_u32 s{sA}, s28, s{sT2}
s_addc_u32 s{sA+1}, s29, 0
s_mov_b32 s{sA+2}, {PART_CU}
s_mov_b32 s{sA+3}, 0x20000
v_lshlrev_b32 v5, 4, v2
v_add_u32 v6, {KVB+32768}, v5
"""
        for m in range(5):
            for c in range(4):
                x += f"ds_read_b128 {v(8+16*m+4*c,4)}, v6 offset:{m*4096+c*1024}\n"
            x += "s_waitcnt lgkmcnt(0)\n"
            for c in range(4):
                x += f"""s_add_u32 s{sT2}, s{sQUAD}, {8*m}
s_cmp_lt_u32 s{sT2}, 35
s_cselect_b32 s{sT2}, s{sT2}, 0x1000
s_add_u32 s{sT2}, s{sT2}, {35*c}
s_lshl_b32 s{sT2}, s{sT2}, 10
buffer_store_dwordx4 {v(8+16*m+4*c,4)}, v5, s[{sA}:{sA+3}], s{sT2} offen sc1
"""
        return x + "s_waitcnt vmcnt(0)"
    e.label("k1_final")
    if OPT["two"]:
        if OPT["prof"]: e("s_waitcnt vmcnt(0)")
        stamp(e, 10); stamp(e, 11, real=True)
        dump_stamps(e, 28, 64 << 20, 8)
        return
    e(f"""
s_waitcnt vmcnt(0) lgkmcnt(0)
s_barrier
""")
    stamp(e, 9, real=bool(OPT["rt"]))
    e(f"""
s_and_b32 s{sG}, s2, 7
s_cmp_lt_u32 s{sG}, 4
s_cselect_b32 s{sG}, 0, 16
s_add_u32 s{sG}, s{sG}, s{sB}
v_mbcnt_lo_u32_b32 v2, -1, 0
v_mbcnt_hi_u32_b32 v2, -1, v2
s_cmp_gt_u32 s{sWAVE}, 1
s_cbranch_scc1 k1_fw
s_mov_b32 s{sD}, s26
s_mov_b32 s{sD+1}, s27
s_mov_b32 s{sD+2}, 256
s_mov_b32 s{sD+3}, 0x20000
s_lshl_b32 s{sT1}, s{sG}, 2
v_mov_b32 v3, 0
v_mov_b32 v4, 1
s_cmp_eq_u32 s{sWAVE}, 0
s_cbranch_scc1 k1_w0
s_mov_b64 exec, 1
buffer_atomic_add v4, v3, s[{sD}:{sD+3}], s{sT1} offen offset:128 sc0 sc1
s_waitcnt vmcnt(0)
v_readfirstlane_b32 s{sT2}, v4
s_and_b32 s{sT3}, s{sT2}, 0xff
s_bfe_u32 s{sT2}, s{sT2}, 0x80008
s_cmp_eq_u32 s{sT3}, 7
s_cselect_b32 s{sT2}, s{sT2}, 0
v_mov_b32 v4, s{sT2}
ds_write_b32 v3, v4 offset:4
s_waitcnt lgkmcnt(0)
s_mov_b64 exec, -1
s_branch k1_fw
k1_w0:
s_lshl_b32 s{sMASK}, 1, s{sQUAD}
s_lshl_b32 s{sT2}, s{sG}, 10
s_add_u32 s{sT2}, s{sT2}, {FLAG0}
s_add_u32 s{sA}, s28, s{sT2}
s_addc_u32 s{sA+1}, s29, 0
s_mov_b32 s{sA+2}, 1024
s_mov_b32 s{sA+3}, 0x20000
s_lshl_b32 s{sT2}, s{sQUAD}, 7
s_mov_b64 exec, 1
buffer_store_dword v4, v3, s[{sA}:{sA+3}], s{sT2} offen sc1
s_mov_b64 exec, 0xff
v_lshlrev_b32 v5, 7, v2
s_mov_b32 s{sCTR}, 0
k1_poll:
buffer_load_dword v6, v3, s[{sD}:{sD+3}], s{sT1} offen sc1
buffer_load_dword v4, v5, s[{sA}:{sA+3}], 0 offen sc1
s_waitcnt vmcnt(1)
v_cmp_ne_u32 vcc, 8, v6
s_cbranch_vccnz k1_again
k1_poll2:
s_waitcnt vmcnt(0)
v_cmp_ne_u32 vcc, 1, v4
s_cbranch_vccz k1_go
s_add_u32 s{sCTR}, s{sCTR}, 1
s_cmp_lt_u32 s{sCTR}, {OPT['spin']}
s_cbranch_scc0 k1_late
buffer_load_dword v4, v5, s[{sA}:{sA+3}], 0 offen sc1
s_branch k1_poll2
k1_again:
s_waitcnt vmcnt(0)
s_add_u32 s{sCTR}, s{sCTR}, 1
s_cmp_lt_u32 s{sCTR}, {OPT['spin']}
s_cbranch_scc1 k1_poll
k1_late:
{late()}
s_mov_b64 exec, 1
s_lshl_b32 s{sT2}, s{sMASK}, 8
v_mov_b32 v4, s{sT2}
buffer_atomic_or v4, v3, s[{sD}:{sD+3}], s{sT1} offen offset:128 sc0 sc1
s_waitcnt vmcnt(0)
v_readfirstlane_b32 s{sT2}, v4
s_and_b32 s{sT2}, s{sT2}, 0xff
s_cmp_eq_u32 s{sT2}, 8
s_cselect_b32 s{sMASK}, s{sMASK}, 0
k1_go:
s_mov_b64 exec, 1
v_mov_b32 v4, s{sMASK}
ds_write_b32 v3, v4
s_waitcnt lgkmcnt(0)
s_mov_b64 exec, -1
k1_fw:
s_mul_i32 s{sT1}, s{sG}, {8*PART_CU}
s_add_u32 s{sT1}, s{sT1}, {PART0}
s_add_u32 s{sA}, s28, s{sT1}
s_addc_u32 s{sA+1}, s29, 0
s_mov_b32 s{sA+2}, {8*PART_CU}
s_mov_b32 s{sA+3}, 0x20000
s_mul_i32 s{sT1}, s{sB}, {112*2560}
s_lshr_b32 s{sT2}, s{sG}, 4
s_mul_i32 s{sT2}, s{sT2}, 1280
s_add_u32 s{sT1}, s{sT1}, s{sT2}
s_add_u32 s{sOUT}, s24, s{sT1}
s_addc_u32 s{sOUT+1}, s25, 0
s_sub_u32 s{sOUT+2}, {112*2560}, s{sT2}
s_mov_b32 s{sOUT+3}, 0x20000
v_lshlrev_b32 v3, 4, v2
v_and_b32 v4, 15, v2
v_lshrrev_b32 v5, 4, v2
v_mul_u32_u24 v6, 272, v4
v_lshl_add_u32 v6, v5, 3, v6
s_mul_i32 s{sT2}, s{sTEAM}, {3*4352}
s_add_u32 s{sT2}, s{sT2}, 2048
s_lshl_b32 s{sT1}, s{sW4}, 6
s_add_u32 s{sT1}, s{sT1}, s{sT2}
v_add_u32 v6, s{sT1}, v6
s_mul_i32 s{sT1}, s{sW4}, {4*272}
s_add_u32 s{sT1}, s{sT1}, s{sT2}
v_mul_u32_u24 v7, 272, v5
v_lshl_add_u32 v7, v4, 4, v7
v_add_u32 v7, s{sT1}, v7
v_mul_u32_u24 v5, 2560, v5
v_lshl_add_u32 v4, v4, 4, v5
v_mov_b32 v5, 0
s_barrier
ds_read_b64 v[8:9], v5
s_waitcnt lgkmcnt(0)
v_or_b32 v5, v8, v9
v_readfirstlane_b32 s{sMASK}, v5
""")
    stamp(e, 8, real=bool(OPT["rt"]))
    e(f"""
k1_slice:
s_cmp_eq_u32 s{sMASK}, 0
s_cbranch_scc1 k1_done
s_ff1_i32_b32 s{sQ}, s{sMASK}
s_bitset0_b32 s{sMASK}, s{sQ}
s_cmp_eq_u32 s{sQ}, s{sQUAD}
s_cselect_b32 s15, s{sQUAD}, 8
s_cselect_b32 s16, -1, 0
s_lshl_b32 s{sBL}, s{sTEAM}, 3
s_add_u32 s{sBL}, s{sBL}, s{sQ}
""")
    for k in range(3):
        e(f"""
s_add_u32 s{sT1}, s{sBL}, {16*k}
s_mul_i32 s{sT2}, s{sW4}, 35
s_add_u32 s{sT2}, s{sT2}, s{sT1}
s_lshl_b32 s{sT2}, s{sT2}, 10
s_cmp_lt_u32 s{sT1}, 35
s_cselect_b32 s{sT2}, s{sT2}, {8*PART_CU}
""")
        for q in range(8):
            r = 8 + 32 * k + 4 * q
            if SKO:
                e(f"s_cmp_eq_u32 s15, {q}")
                e(f"s_cselect_b32 s{sT3}, {8*PART_CU}, s{sT2}")
            e(f"buffer_load_dwordx4 {v(r,4)}, v3, s[{sA}:{sA+3}], s{sT3 if SKO else sT2} offen {OPT['rd']}")
            if q < 7: e(f"s_add_u32 s{sT2}, s{sT2}, {PART_CU}")
        e(f"""
s_mul_i32 s{sT2}, s{sT1}, 37
s_lshr_b32 s{sT2}, s{sT2}, 8
s_mul_i32 s{sT3}, s{sT2}, 7
s_sub_u32 s{sT3}, s{sT1}, s{sT3}
s_lshl_b32 s{sT2}, s{sT2}, 8
s_mul_i32 s{sT3}, s{sT3}, {16*2560}
s_add_u32 s{sT2}, s{sT2}, s{sT3}
s_mul_i32 s{sT3}, s{sW4}, {4*2560}
s_add_u32 s{sT2}, s{sT2}, s{sT3}
s_cmp_lt_u32 s{sT1}, 35
s_cselect_b32 s{12+k}, s{sT2}, 0x1000000
""")
    if SKO:
        e(f"""
s_lshl_b32 s{sT1}, s{sTEAM}, 12
s_lshl_b32 s{sT2}, s{sW4}, 10
s_add_u32 s{sT1}, s{sT1}, s{sT2}
s_add_u32 s{sT1}, s{sT1}, {KVB+32768}
v_add_u32 v140, s{sT1}, v3
""")
        for k in range(3): e(f"ds_read_b128 {v(144+4*k,4)}, v140 offset:{k*8192}")
        e("s_waitcnt lgkmcnt(0)")
        for i in range(12): e(f"v_and_b32 v{144+i}, s16, v{144+i}")
    for k in range(3):
        if SKO:
            for i in range(4):
                e(f"v_lshlrev_b32 v{104+2*i}, 16, v{144+4*k+i}")
                e(f"v_and_b32 v{105+2*i}, 0xffff0000, v{144+4*k+i}")
        for q in range(8):
            e(f"s_waitcnt vmcnt({23-8*k-q})")
            if OPT["fs"] and (k, q) in ((0, 0), (0, 7), (2, 7)): stamp(e, {(0, 0): 12, (0, 7): 13, (2, 7): 14}[(k, q)], real=True)
            for i in range(4):
                r = 8 + 32 * k + 4 * q + i
                if q == 0 and not SKO:
                    e(f"v_lshlrev_b32 v{104+2*i}, 16, v{r}")
                    e(f"v_and_b32 v{105+2*i}, 0xffff0000, v{r}")
                else:
                    e(f"v_lshlrev_b32 v112, 16, v{r}")
                    e(f"v_and_b32 v113, 0xffff0000, v{r}")
                    e(f"v_add_f32 v{104+2*i}, v{104+2*i}, v112")
                    e(f"v_add_f32 v{105+2*i}, v{105+2*i}, v113")
        for i in range(4): e(f"v_cvt_pk_bf16_f32 v{116+4*k+i}, v{104+2*i}, v{105+2*i}")
        e(f"ds_write_b64 v6, {v(116+4*k,2)} offset:{k*4352}")
        e(f"ds_write_b64 v6, {v(118+4*k,2)} offset:{k*4352+32}")
    e("s_waitcnt lgkmcnt(0)")
    e("s_barrier")
    if OPT["fs"]: stamp(e, 15, real=True)
    for k in range(3): e(f"ds_read_b128 {v(128+4*k,4)}, v7 offset:{k*4352}")
    for k in range(3):
        e(f"s_waitcnt lgkmcnt({2-k})")
        e(f"buffer_store_dwordx4 {v(128+4*k,4)}, v4, s[{sOUT}:{sOUT+3}], s{12+k} offen {OPT['of']}")
    e("""
s_barrier
s_branch k1_slice
k1_done:
""")
    if OPT["prof"]: e("s_waitcnt vmcnt(0)")
    stamp(e, 10); stamp(e, 11, real=True)
    dump_stamps(e, 28, 64 << 20, 8)

def build(needs):
    p = Prog()
    p(f"""
.globl {NAME}_kernel
.p2align 8
.type {NAME}_kernel,@function
{NAME}_kernel:
s_cmp_ge_u32 s2, 256
s_cbranch_scc1 k1_end
""")
    stamp(p, 0); stamp(p, 1, real=True)
    p(f"""
s_load_dwordx16 s[4:19], s[0:1], 0
s_load_dwordx8 s[20:27], s[0:1], 64
s_load_dwordx2 s[28:29], s[0:1], 96
v_lshrrev_b32 v1, 6, v0
v_and_b32 v2, 63, v0
v_readfirstlane_b32 s{sWAVE}, v1
s_and_b32 s{sT1}, s2, 7
s_lshr_b32 s{sT2}, s2, 3
""")
    if OPT["map"] == 0:
        p(f"""
s_and_b32 s{sQUAD}, s{sT1}, 3
s_lshl_b32 s{sQUAD}, s{sQUAD}, 1
s_and_b32 s{sB}, s{sT2}, 1
s_add_u32 s{sQUAD}, s{sQUAD}, s{sB}
s_lshr_b32 s{sB}, s{sT2}, 1
""")
    else:
        p(f"""
s_and_b32 s{sQUAD}, s{sT1}, 1
s_lshl_b32 s{sQUAD}, s{sQUAD}, 2
s_and_b32 s{sB}, s{sT2}, 3
s_add_u32 s{sQUAD}, s{sQUAD}, s{sB}
s_and_b32 s{sB}, s{sT1}, 2
s_lshl_b32 s{sB}, s{sB}, 2
s_lshr_b32 s{sT2}, s{sT2}, 2
s_add_u32 s{sB}, s{sB}, s{sT2}
""")
    p(f"""
s_and_b32 s{sW4}, s{sWAVE}, 3
s_lshr_b32 s{sTEAM}, s{sWAVE}, 2
s_mul_i32 s{sLW}, s{sW4}, 3072
s_mov_b32 s{sKd+2}, {0 if OPT['nokv'] else 786432}
s_mov_b32 s{sKd+3}, 0x20000
s_mov_b32 s{sVd+2}, {0 if OPT['nokv'] else 786432}
s_mov_b32 s{sVd+3}, 0x20000
s_mov_b32 s{sWd+3}, 0x20000
s_mov_b32 s{sOd+2}, {0 if OPT['now'] else 983040}
s_mov_b32 s{sOd+3}, 0x20000
s_mov_b32 s{sXd+2}, {0 if OPT['nox'] else 143360}
s_mov_b32 s{sXd+3}, 0x20000
s_mov_b32 s{sPd+2}, {35840+QO}
s_mov_b32 s{sPd+3}, 0x20000
""")
    rec = {}
    p(f"""
s_cmp_ge_u32 s{sWAVE}, 4
s_cbranch_scc1 k1_q1
""")
    p.label("k1_q0")
    rec["qp0"] = qp_phase(p, needs.get("qp0", {}), 0)
    if OPT["prio0"]: p(f"s_setprio {OPT['prio0']}")
    p(f"""
s_cmp_eq_u32 s{sWAVE}, 3
s_cbranch_scc1 k1_light
""")
    rec["h"] = t0_path(p, needs.get("h", {}), 2, "h")
    p.label("k1_light")
    rec["l"] = t0_path(p, needs.get("l", {}), 1, "l")
    rec["f"] = t0_final(p, needs.get("f", {}))
    p.label("k1_q1")
    rec["qp1"] = qp_phase(p, needs.get("qp1", {}), 1)
    p.label("k1_t1")
    if OPT["not1"]: p("s_endpgm")
    if OPT["prio1"]: p(f"s_setprio {OPT['prio1']}")
    rec["t1"] = t1_path(p, needs.get("t1", {}))
    (final_reduce_old if OPT['oldfin'] else final_reduce)(p)
    p("""
k1_end:
s_endpgm
""")
    return p, rec

def reduce_kernel():
    p = Prog()
    p(f"""
.globl reduce_kernel
.p2align 8
.type reduce_kernel,@function
reduce_kernel:
s_cmp_ge_u32 s2, 1120
s_cbranch_scc1 k2_end
s_load_dwordx2 s[8:9], s[0:1], 80
s_load_dwordx2 s[10:11], s[0:1], 96
v_lshrrev_b32 v1, 6, v0
v_and_b32 v2, 63, v0
v_readfirstlane_b32 s3, v1
s_mul_i32 s5, s2, 1873
s_lshr_b32 s5, s5, 16
s_mul_i32 s6, s5, 35
s_sub_u32 s22, s2, s6
s_mul_i32 s6, s3, 35
s_add_u32 s6, s6, s22
s_mul_i32 s7, s5, {8*PART_CU}
s_add_u32 s7, s7, {PART0}
s_lshl_b32 s20, s6, 10
v_lshlrev_b32 v3, 4, v2
s_mov_b32 s14, {8*PART_CU}
s_mov_b32 s15, 0x20000
s_waitcnt lgkmcnt(0)
s_add_u32 s12, s10, s7
s_addc_u32 s13, s11, 0
""")
    for q in range(8):
        p(f"buffer_load_dwordx4 v[{8+4*q}:{11+4*q}], v3, s[12:15], s20 offen {OPT['rd']}")
        if q < 7: p(f"s_add_u32 s20, s20, {PART_CU}")
    p(f"""
s_and_b32 s23, s5, 15
s_mul_i32 s23, s23, {112*2560}
s_lshr_b32 s24, s5, 4
s_mul_i32 s24, s24, 1280
s_add_u32 s23, s23, s24
s_mov_b32 s16, s8
s_mov_b32 s17, s9
s_mov_b32 s18, {16*112*2560}
s_mov_b32 s19, 0x20000
s_mul_i32 s26, s22, 37
s_lshr_b32 s26, s26, 8
s_mul_i32 s27, s26, 7
s_sub_u32 s27, s22, s27
s_lshl_b32 s30, s26, 8
s_mul_i32 s28, s27, {16*2560}
s_add_u32 s30, s30, s28
s_mul_i32 s28, s3, {4*2560}
s_add_u32 s30, s30, s28
s_add_u32 s32, s30, s23
v_and_b32 v4, 15, v2
v_lshrrev_b32 v5, 4, v2
v_mul_u32_u24 v6, 272, v4
v_lshl_add_u32 v6, v5, 3, v6
s_lshl_b32 s28, s3, 6
v_add_u32 v6, s28, v6
s_mul_i32 s28, s3, {4*272}
v_mul_u32_u24 v7, 272, v5
v_lshl_add_u32 v7, v4, 4, v7
v_add_u32 v7, s28, v7
v_mul_u32_u24 v5, 2560, v5
v_lshl_add_u32 v4, v4, 4, v5
""")
    for q in range(8):
        p(f"s_waitcnt vmcnt({7-q})")
        for i in range(4):
            r = 8 + 4 * q + i
            if q == 0:
                p(f"v_lshlrev_b32 v{40+2*i}, 16, v{r}")
                p(f"v_and_b32 v{41+2*i}, 0xffff0000, v{r}")
            else:
                p(f"v_lshlrev_b32 v48, 16, v{r}")
                p(f"v_and_b32 v49, 0xffff0000, v{r}")
                p(f"v_add_f32 v{40+2*i}, v{40+2*i}, v48")
                p(f"v_add_f32 v{41+2*i}, v{41+2*i}, v49")
    for i in range(4): p(f"v_cvt_pk_bf16_f32 v{52+i}, v{40+2*i}, v{41+2*i}")
    p(f"""
ds_write_b64 v6, v[52:53]
ds_write_b64 v6, v[54:55] offset:32
s_waitcnt lgkmcnt(0)
s_barrier
ds_read_b128 v[52:55], v7
s_waitcnt lgkmcnt(0)
buffer_store_dwordx4 v[52:55], v4, s[16:19], s32 offen {OPT['of']}
k2_end:
s_endpgm
""")
    return p

def desc(name, vg):
    return f""".amdhsa_kernel {name}
  .amdhsa_next_free_vgpr {vg}
  .amdhsa_next_free_sgpr 102
  .amdhsa_accum_offset {vg}
  .amdhsa_group_segment_fixed_size 0
  .amdhsa_kernarg_size 104
  .amdhsa_user_sgpr_count 2
  .amdhsa_user_sgpr_kernarg_segment_ptr 1
  .amdhsa_system_sgpr_workgroup_id_x 1
.end_amdhsa_kernel
"""

DOC = """;
; One workgroup of eight waves per CU handles (block, batch b, four heads); everything is fused into one launch.
"""
def main():
    for t in range(1120): assert (t * 1873) >> 16 == t // 35
    for t in range(140): assert (t * 235) >> 13 == t // 35
    for t in range(35): assert (t * 37) >> 8 == t // 7
    _, rec = build({})
    for it in range(4):
        a, rec2 = build(rec)
        if rec2 == rec: break
        rec = rec2
    else: raise SystemExit("no fixpoint")
    b = reduce_kernel()
    if OPT["novm"]: a.L[:] = [l for l in a.L if not l.startswith("buffer_load")]
    if OPT["nobar"]: a.L[:] = [l for l in a.L if not l.startswith("s_barrier")]
    if OPT["nolg"]:
        out_ = []
        for i_, l in enumerate(a.L):
            if l.startswith("s_waitcnt lgkmcnt") and not a.L[i_-1].startswith(("s_mem", "s_load")) and i_ > 60: continue
            out_.append(l)
        a.L[:] = out_
    if OPT["nord"]: a.L[:] = [l for l in a.L if not l.startswith("ds_read")]
    if OPT["noexp"]: a.L[:] = [l.replace("v_exp_f32", "v_mov_b32") if l.startswith("v_exp_f32") and "-v" not in l else l for l in a.L]
    if OPT["nosm"]: a.L[:] = [l for l in a.L if not l.startswith(("v_exp_f32", "v_cvt_pk"))]
    if OPT["nochk"]: a.L[:] = [l for l in a.L if not l.startswith(("v_or3", "v_or_b32", "v_cmp_ne", "s_cbranch_vccz", "v_and_b32 v252"))]
    if OPT["prof"] == 2:
        out_ = []; L_ = a.L; inrole = False; i_ = 0
        while i_ < len(L_):
            l = L_[i_]
            if l.startswith(("t0_unit", "t1_slot")): inrole = True
            if l.startswith(("t0_exit", "t1_exit")): inrole = False
            if inrole and l == "s_barrier":
                j = len(out_)
                while j > 0 and (out_[j-1].startswith(("s_waitcnt vmcnt", "s_cmp_eq_u32 s55, 5", "s_cbranch_scc1 t1_wa")) or out_[j-1].startswith("t1_wa")): j -= 1
                blk = out_[j:]; del out_[j:]
                out_ += ["s_memtime s[4:5]"] + blk + ["s_memtime s[6:7]", "s_barrier", "s_memtime s[8:9]", "s_waitcnt lgkmcnt(0)",
                         "s_sub_u32 s4, s6, s4", "s_add_u32 s94, s94, s4", "s_sub_u32 s6, s8, s6", "s_add_u32 s95, s95, s6"]
            elif inrole and l.startswith("buffer_load") and l.endswith("lds"):
                out_ += ["s_memtime s[4:5]", l, "s_memtime s[6:7]", "s_waitcnt lgkmcnt(0)", "s_sub_u32 s4, s6, s4", "s_add_u32 s89, s89, s4"] if OPT["pv"] else [l]
            elif l.startswith(("k1_light:", "k1_t1:")) or l.startswith("s_cbranch_scc1 k1_light"):
                out_ += [l, "s_mov_b32 s94, 0", "s_mov_b32 s95, 0", "s_mov_b32 s89, 0"]
            else: out_.append(l)
            i_ += 1
        a.L[:] = out_
    if OPT["prof"] == 4:
        out_ = []; inrole = False; idx = 0
        L_ = [l for l in a.L if not (l.startswith(("s_cselect_b32 s8", "s_cselect_b32 s9")) or (l.startswith(("s_mov_b32 s8", "s_mov_b32 s9")) and "s100" in l))]
        def st_(k):
            return ["s_memtime s[100:101]", "s_waitcnt lgkmcnt(0)", f"s_cmp_eq_u32 s{sSLOT}, {OPT['ps']}", f"s_cselect_b32 s{80+k}, s100, s{80+k}"] if 0 <= k < 16 else []
        for i_, l in enumerate(L_):
            if l.startswith(("t0_unit", "t1_slot")): inrole = True; idx = 0
            if l.startswith(("t0_exit", "t1_last")): inrole = False
            k = (idx - OPT["pb"]) * 4
            if inrole and l == "s_barrier":
                x = out_.pop() if out_[-1].startswith("s_waitcnt vmcnt") else None
                out_ += st_(k - 2) + ([x] if x else []) + st_(k - 1) + [l] + st_(k); idx += 1
            elif inrole and l.startswith("buffer_load") and l.endswith("lds"):
                nxt = next(y for y in L_[i_+1:] if y == "s_barrier" or (y.startswith("buffer_load") and y.endswith("lds")))
                out_ += [l] + (st_(k - 3) if nxt == "s_barrier" else [])
            else: out_.append(l)
        a.L[:] = out_
    if OPT["prof"] == 3:
        out_ = []; inrole = False; idx = 0
        for l in a.L:
            if l.startswith(("t0_unit", "t1_slot")): inrole = True; idx = 0
            if l.startswith(("t0_exit", "t1_exit")) or l.startswith("s_cbranch_scc1 t1_slot"): inrole = False
            if l.startswith(("s_mov_b32 s8", "s_mov_b32 s9")) and "s100" in l: continue
            if l.startswith("s_cselect_b32 s8") or l.startswith("s_cselect_b32 s9") or l.startswith("s_mov_b32 s9") and "s100" in l: continue
            if inrole and l == "s_barrier":
                k = idx - OPT["pb"]; idx += 1
                st_ = ["s_memtime s[100:101]", "s_waitcnt lgkmcnt(0)", f"s_cmp_eq_u32 s{sSLOT}, {OPT['ps']}", f"s_cselect_b32 s{80+k}, s100, s{80+k}"] if 0 <= k < 16 else []
                out_ += (st_ + [l]) if OPT["pa"] else ([l] + st_)
            else: out_.append(l)
        a.L[:] = out_
    if OPT["nomfq"] or OPT["nomf1"] or OPT["nomf0"]:
        out_ = []; sec = "q"
        for l in a.L:
            if l.startswith("t0_unit"): sec = "0"
            if l.startswith("k1_t1:"): sec = "1"
            if l.startswith("v_mfma") and OPT["nomf" + sec]: continue
            out_.append(l)
        a.L[:] = out_
    if OPT["xa"]:
        out_ = []; sec = "q"; cnt = 0
        for l in a.L:
            if l.startswith("t0_unit_h"): sec = "h"
            if l.startswith("t0_unit_l"): sec = "l"
            if l.startswith("t0_final"): sec = "f"
            if l.startswith("k1_t1:"): sec = "1"
            if OPT["xa"] == 1 and sec in "hl" and l.startswith("v_mfma") and "v[208:211]" in l: continue
            if OPT["xa"] == 2 and sec == "l" and l.startswith(("v_mfma", "ds_read")): continue
            if OPT["xa"] == 3 and sec == "1" and l.startswith("ds_read_b128"): continue
            if OPT["xa"] == 4 and sec in "hl" and l.startswith("ds_read"):
                continue
            out_.append(l)
        a.L[:] = out_
    if OPT["vwin"]:
        out_ = []; on = False
        for l in a.L:
            if l.startswith("k1_t1:") and OPT["vw1"]: on = True
            if l.startswith("t1_slot:"): on = True
            if l.startswith("t1_last:"): on = False
            if on and l.startswith("buffer_load") and l.endswith("lds"): out_.append(f"s_waitcnt vmcnt({OPT['vwin']-1})")
            out_.append(l)
        a.L[:] = out_
    if OPT["dynp"]:
        out_ = []; int1 = False
        for l in a.L:
            if l.startswith("k1_t1:"): int1 = True
            if int1 and l.startswith("buffer_load") and l.endswith("lds"):
                out_ += [f"s_setprio {OPT['dynp']}", l, f"s_setprio {OPT['prio1']}"]
            else: out_.append(l)
        a.L[:] = out_
    n1 = fix_hazards(a.L); n2 = fix_hazards(b.L)
    print("nops inserted", n1, n2, "instrs", len(a.L), len(b.L), file=sys.stderr)
    hdr = open("cdna_kernels/" + NAME + ".s.ref").read().split("; Override launch")[0]
    out = hdr
    if OPT["two"]:
        out += f"; @launch kernel={NAME}_kernel grid=(256,1,1) block=(512,1,1) lds={LDS_BYTES}\n"
        out += "; @launch kernel=reduce_kernel grid=(1120,1,1) block=(256,1,1) lds=4352\n"
    else:
        out += f"; @launch grid=(256,1,1) block=(512,1,1) lds={LDS_BYTES}\n"
    out += DOC
    out += '.amdgcn_target "amdgcn-amd-amdhsa--gfx950"\n.text\n'
    out += a.text() + (b.text() if OPT["two"] else "")
    out += '.section .rodata,"a"\n.p2align 6\n' + desc(NAME + "_kernel", 256)
    if OPT["two"]: out += ".p2align 6\n" + desc("reduce_kernel", 56)
    open(sys.argv[1], "w").write(out)
    import subprocess
    r = subprocess.run(["clang", "-x", "assembler", "-target", "amdgcn-amd-amdhsa", "-mcpu=gfx950", "-c", sys.argv[1], "-o", "chk.o"], capture_output=True, text=True)
    if r.returncode: print("ASSEMBLY FAILED", r.stderr[:600])
main()
```
